```python
import torch

def _softmax(x, axis=-1):
    return torch.softmax(x, dim=axis)

def _gelu(x):
    return torch.nn.functional.gelu(x, approximate='tanh')

def _silu(x):
    return torch.nn.functional.silu(x)

def _sigmoid(x):
    return torch.sigmoid(x)

def _layernorm(x, axis=-1, eps=1e-05):
    m = x.mean(dim=axis, keepdim=True)
    v = x.var(dim=axis, keepdim=True, unbiased=False)
    return (x - m) / torch.sqrt(v + eps)

def _scatter_add(tgt, idx, src, axis=0):
    return tgt.clone().index_add_(axis, idx, src)

def _segment_sum(src, seg, n):
    out = torch.zeros((n,) + src.shape[1:], dtype=src.dtype)
    return out.index_add_(0, seg, src)

def _pad(x, pw):
    flat = tuple((v for pair in reversed(pw) for v in pair))
    return torch.nn.functional.pad(x, flat)
kernel_name = 'adaLN_cond__memory_aug_recurrent_mem_tr__glu_gated_bilinear__prompt'

def setup_inputs():

    _w = lambda a: (lambda t: t.to(torch.bfloat16) if t.is_floating_point() else t)(torch.as_tensor(a))

    def _A_setup():
        B, S, Dm = (1, 2048, 512)
        H, Dh = (32, 128)
        M, seg = (8, 32)
        seg = min(seg, S)
        S = S // seg * seg
        return {'x': _w((lambda *s: torch.randn(*s, dtype=torch.bfloat16) * 0.05)(B, S, Dm)), 'mem0': _w((lambda *s: torch.randn(*s, dtype=torch.bfloat16) * 0.8)(B, M, Dm)), 'Wq': _w((lambda *s: torch.randn(*s, dtype=torch.bfloat16) * 1.6)(Dm, H, Dh) * Dm ** (-0.5)), 'Wk': _w((lambda *s: torch.randn(*s, dtype=torch.bfloat16) * 1.6)(Dm, H, Dh) * Dm ** (-0.5)), 'Wv': _w((lambda *s: torch.randn(*s, dtype=torch.bfloat16) * 0.8)(Dm, H, Dh) * Dm ** (-0.5)), 'Wo': _w((lambda *s: torch.randn(*s, dtype=torch.bfloat16) * 0.8)(H, Dh, Dm) * (H * Dh) ** (-0.5)), 'seg_len': seg}
    _A_in = _A_setup()

    def _B_setup():
        B, S, D, F = (1, 2048, 512, 1792)
        return {'x': _w((lambda *s: torch.randn(*s, dtype=torch.bfloat16) * 0.05)(B, S, D)), 'w_gate': _w((lambda *s: torch.randn(*s, dtype=torch.bfloat16) * 0.8)(D, F) * D ** (-0.5)), 'w_up': _w((lambda *s: torch.randn(*s, dtype=torch.bfloat16) * 0.8)(D, F) * D ** (-0.5)), 'w_down': _w((lambda *s: torch.randn(*s, dtype=torch.bfloat16) * 0.8)(F, D) * F ** (-0.5))}
    _B_in = _B_setup()
    return {'A_x': _A_in['x'], 'A_mem0': _A_in['mem0'], 'A_Wq': _A_in['Wq'], 'A_Wk': _A_in['Wk'], 'A_Wv': _A_in['Wv'], 'A_Wo': _A_in['Wo'], 'A_seg_len': _A_in['seg_len'], 'B_x': _B_in['x'], 'B_w_gate': _B_in['w_gate'], 'B_w_up': _B_in['w_up'], 'B_w_down': _B_in['w_down'], 'c': _w((lambda *s: torch.randn(*s, dtype=torch.bfloat16) * 0.1)(1, 512) * 8.0), 'w_mod': _w((lambda *s: torch.randn(*s, dtype=torch.bfloat16) * 0.1)(512, 6 * 512) * 512 ** (-0.5) * 8.0)}

def reference(A_x, A_mem0, A_Wq, A_Wk, A_Wv, A_Wo, A_seg_len, B_x, B_w_gate, B_w_up, B_w_down, c, w_mod):

    def _A_ref(x, mem0, Wq, Wk, Wv, Wo, seg_len):
        B, S, Dm = x.shape
        H, Dh = (Wq.shape[1], Wq.shape[2])
        M = mem0.shape[1]
        scale = Dh ** (-0.5)
        n_seg = S // seg_len
        L = M + seg_len
        idx = torch.arange(L)
        mask = (idx[:, None] < M) | (idx[:, None] >= idx[None, :])
        mem = mem0
        outs = []
        for s in range(n_seg):
            xs = x[:, s * seg_len:(s + 1) * seg_len, :].clone()
            h = torch.concatenate([mem, xs], axis=1)
            q = torch.einsum('btd,dhe->bhte', h, Wq)
            k = torch.einsum('btd,dhe->bhte', h, Wk)
            v = torch.einsum('btd,dhe->bhte', h, Wv)
            scores = torch.einsum('bhqe,bhke->bhqk', q, k) * scale
            scores = torch.where(mask[None, None], scores, -1000000000.0)
            p = _softmax(scores, axis=-1)
            o = torch.einsum('bhqk,bhke->bhqe', p, v)
            o = torch.einsum('bhte,hed->btd', o, Wo)
            mem = o[:, :M, :].clone()
            outs.append(o[:, M:, :])
        return torch.concatenate(outs, axis=1)

    def _B_ref(x, w_gate, w_up, w_down):
        g = torch.einsum('bsd,df->bsf', x, w_gate)
        u = torch.einsum('bsd,df->bsf', x, w_up)
        h = g * u
        return torch.einsum('bsf,fd->bsd', h, w_down)
    x = A_x
    mod = (_silu(c) @ w_mod).reshape(c.shape[0], 6, 1, -1)
    sa, ca, ga, sb, cb, gb = (mod[:, 0].clone(), mod[:, 1].clone(), mod[:, 2].clone(), mod[:, 3].clone(), mod[:, 4].clone(), mod[:, 5].clone())
    h = _layernorm(x, axis=-1) * (1 + ca) + sa
    x = x + ga * _A_ref(h, A_mem0, A_Wq, A_Wk, A_Wv, A_Wo, A_seg_len)
    h = _layernorm(x, axis=-1) * (1 + cb) + sb
    x = x + gb * _B_ref(h, B_w_gate, B_w_up, B_w_down)
    return x
```

```python
import re

class Asm:
    def __init__(self):
        self.lines = []
        self._uid = 0
    def __call__(self, s):
        for ln in s.split("\n"):
            ln = ln.strip()
            if ln:
                self.lines.append("    " + ln)
    def label(self, name):
        self.lines.append(name + ":")
    def c(self, s):
        self.lines.append("    ; " + s)
    def raw(self, s):
        self.lines.append(s)
    def uid(self, p="L"):
        self._uid += 1
        return f"{p}_{self._uid}"
    def text(self):
        return "\n".join(self.lines) + "\n"

def vr(b, n=1):
    return f"v{b}" if n == 1 else f"v[{b}:{b+n-1}]"
def ar(b, n=1):
    return f"a{b}" if n == 1 else f"a[{b}:{b+n-1}]"
def sr(b, n=1):
    return f"s{b}" if n == 1 else f"s[{b}:{b+n-1}]"

_REG = re.compile(r"^(-?)(?:abs\()?([vas])(?:(\d+)|\[(\d+):(\d+)\])\)?$")
def regs_of(op):
    op = op.strip()
    if op in ("vcc",): return {("s", 106), ("s", 107)}
    if op == "vcc_lo": return {("s", 106)}
    if op == "vcc_hi": return {("s", 107)}
    if op == "exec": return {("s", 126), ("s", 127)}
    if op == "exec_lo": return {("s", 126)}
    if op == "exec_hi": return {("s", 127)}
    if op == "m0": return {("s", 124)}
    m = _REG.match(op)
    if not m: return set()
    k = m.group(2)
    if m.group(3) is not None:
        return {(k, int(m.group(3)))}
    return {(k, i) for i in range(int(m.group(4)), int(m.group(5)) + 1)}

TRANS = ("v_exp_", "v_log_", "v_rcp_", "v_rsq_", "v_sqrt_", "v_sin_", "v_cos_")
class Ins:
    __slots__ = ("text", "mn", "ops", "mods", "kind", "defs", "uses", "A", "B", "C", "passes", "ln", "sdata", "nop")
    def __init__(self, text, ln):
        self.text = text; self.ln = ln
        t = text.split(";")[0].strip()
        parts = t.split(None, 1)
        self.mn = parts[0]
        rest = parts[1] if len(parts) > 1 else ""
        ops = []; cur = ""; depth = 0
        for ch in rest:
            if ch in "[(": depth += 1
            if ch in "])": depth -= 1
            if ch == "," and depth == 0:
                ops.append(cur.strip()); cur = ""
            else:
                cur += ch
        if cur.strip(): ops.append(cur.strip())
        self.mods = ""
        if ops:
            last = ops[-1].split(None, 1)
            ops[-1] = last[0]
            if len(last) > 1: self.mods = last[1]
        self.ops = ops
        mn = self.mn
        self.defs = set(); self.uses = set(); self.A = set(); self.B = set(); self.C = set()
        self.passes = 0; self.sdata = set(); self.nop = 0
        R = [regs_of(o) for o in ops]
        if mn.startswith("v_mfma") or mn.startswith("v_smfmac"):
            self.kind = "mfma"
            self.defs = R[0]; self.A = R[1]; self.B = R[2]
            if mn.startswith("v_smfmac"):
                self.C = R[0]; self.B = self.B | R[3]
            else:
                self.C = R[3]
            self.uses = self.A | self.B | self.C
            self.passes = 8 if "32x32" in mn else 4
            if mn.endswith("_f32"): self.passes *= 2
        elif mn.startswith("v_"):
            self.kind = "valu"
            if "permlane" in mn and "swap" in mn:
                self.defs = R[0] | R[1]; self.uses = R[0] | R[1]
            elif mn.startswith("v_cmp"):
                self.defs = R[0]; self.uses = set().union(*R[1:])
            elif "_co_" in mn:
                self.defs = R[0] | R[1]; self.uses = set().union(*R[2:])
            else:
                self.defs = R[0]; self.uses = set().union(*R[1:]) if len(R) > 1 else set()
                if mn.startswith("v_fmac") or "UNUSED_PRESERVE" in self.mods or "_dpp" in mn or mn.startswith("v_writelane") or mn.startswith("v_dot2c") or mn.startswith("v_pk_fmac"):
                    self.uses |= R[0]
                if mn.startswith("v_cndmask") and len(ops) == 3:
                    self.uses |= regs_of("vcc")
        elif mn.startswith("ds_"):
            self.kind = "ds"
            if mn.startswith("ds_read") or mn.startswith("ds_bpermute") or mn.startswith("ds_permute") or mn.startswith("ds_swizzle") or "_rtn" in mn:
                self.defs = R[0]; self.uses = set().union(*R[1:])
            else:
                self.uses = set().union(*R)
        elif mn.startswith("buffer_") or mn.startswith("global_") or mn.startswith("flat_"):
            self.kind = "vmem"
            if mn in ("buffer_inv", "buffer_wbl2"):
                pass
            elif "_load" in mn:
                if re.search(r"\blds\b", self.mods) or "_lds_" in mn:
                    self.uses = set().union(*R) | regs_of("m0")
                else:
                    self.defs = R[0]; self.uses = set().union(*R[1:])
                    if "d16" in mn: self.uses |= R[0]
            elif "atomic" in mn:
                self.uses = set().union(*R)
                if "sc0" in self.mods: self.defs = R[0]
            else:
                self.uses = set().union(*R)
                if "x4" in mn or "x3" in mn:
                    self.sdata = R[0] if mn.startswith("buffer_") else R[1]
        elif mn.startswith("s_"):
            self.kind = "salu"
            if mn == "s_nop":
                self.nop = int(ops[0], 0)
            elif mn.startswith("s_cmp") or mn.startswith("s_bitcmp") or mn.startswith("s_cbranch") or mn in ("s_branch", "s_barrier", "s_waitcnt", "s_sleep", "s_setprio", "s_endpgm"):
                self.uses = set().union(*R) if R else set()
            else:
                self.defs = R[0] if R else set(); self.uses = set().union(*R[1:]) if len(R) > 1 else set()
        else:
            raise ValueError("unknown instr: " + text)

def _need(p, c):
    n = 0
    if p.kind == "valu":
        vd = {r for r in p.defs if r[0] in "va"}
        sd = {r for r in p.defs if r[0] == "s"}
        if c.kind == "mfma" and vd & c.uses: n = max(n, 2)
        if c.kind == "valu":
            if "permlane" in c.mn and vd & c.uses: n = max(n, 2)
            if "_dpp" in c.mn and vd & regs_of(c.ops[1]): n = max(n, 2)
            if (c.mn.startswith("v_readfirstlane") or c.mn.startswith("v_readlane")) and vd & c.uses: n = max(n, 1)
            if p.mn.startswith(TRANS) and vd & c.uses and not c.mn.startswith(TRANS): n = max(n, 1)
            if ("dst_sel" in p.mods and "dst_sel:DWORD" not in p.mods) and vd & (c.uses | c.defs): n = max(n, 1)
            if sd & c.uses:
                n = max(n, 4 if c.mn.startswith(("v_readlane", "v_writelane")) else 2)
        if c.kind == "vmem" and sd & c.uses: n = max(n, 5)
    if p.kind == "mfma":
        P = {2: 0, 4: 1, 8: 2, 16: 3}[p.passes]
        if c.kind == "mfma":
            if p.defs & (c.A | c.B): n = max(n, (5, 8, 12, 20)[P])
            if p.defs & c.C:
                if p.defs == c.C and p.mn == c.mn: n = max(n, (2, 0, 0, 0)[P])
                else: n = max(n, (4, 6, 10, 18)[P])
            elif p.defs & c.defs and not (p.mn == c.mn and p.defs == c.defs): n = max(n, (4, 6, 10, 18)[P])
        elif c.kind in ("valu", "ds", "vmem"):
            if p.defs & (c.uses | c.defs): n = max(n, (5, 8, 12, 20)[P])
            if c.kind == "valu" and p.C & c.defs: n = max(n, (1, 3, 7, 15)[P])
    if p.kind == "vmem" and p.sdata:
        if p.sdata & c.defs: n = max(n, 2 if c.kind in ("valu", "mfma") else 1)
    if p.kind == "salu" and ("s", 124) in p.defs and c.kind == "vmem" and ("s", 124) in c.uses: n = max(n, 1)
    return n

def check_hazards(text):
    ins = []; labels = {}
    intext = True
    for ln, raw in enumerate(text.split("\n"), 1):
        s = raw.split(";")[0].strip()
        if not s: continue
        if s.startswith(".section"): intext = False
        if s.startswith(".text"): intext = True
        if s.startswith("."): continue
        if not intext: continue
        if s.endswith(":"):
            labels[s[:-1]] = len(ins); continue
        ins.append(Ins(raw, ln))
    n = len(ins)
    succ = []
    for k, x in enumerate(ins):
        sc = []
        if x.mn not in ("s_branch", "s_endpgm", "s_setpc_b64") and k + 1 < n: sc.append(k + 1)
        if x.mn.startswith("s_cbranch") or x.mn == "s_branch":
            t = labels.get(x.ops[0])
            if t is not None and t < n: sc.append(t)
        succ.append(sc)
    errs = set()
    for k, p in enumerate(ins):
        if p.kind == "ds": continue
        if p.kind == "salu" and ("s", 124) not in p.defs: continue
        if p.kind == "vmem" and not p.sdata: continue
        lim = 21 if p.kind == "mfma" else 6
        stack = [(j, 1 + p.nop, p.passes if p.kind == "mfma" else 0) for j in succ[k]]
        seen = set()
        while stack:
            j, t, mf = stack.pop()
            if (j, t, mf) in seen: continue
            seen.add((j, t, mf))
            c = ins[j]
            if c.kind == "mfma":
                t = max(t, mf); mf = t + c.passes
            d = t - 1
            if d >= lim: continue
            need = _need(p, c)
            if need > d:
                errs.add((p.ln, c.ln, need, d, p.text.strip(), c.text.strip()))
            for j2 in succ[j]:
                stack.append((j2, t + 1 + c.nop, mf))
    return sorted(errs)
```

```python
from asmlib import *

KNAME = "adaLN_cond__memory_aug_recurrent_mem_tr__glu_gated_bilinear__prompt"

HSTR    = 65 * 16384
WS_KV   = 0x0000000
QSTR    = 65 * 8192
WS_QX   = 0x4000000
MSTR    = 65 * 4096
WS_KM   = 0x6000000
WS_PART = 0x6C00000
WS_MEM  = 0x6C80000
WS_STAMP= 0x6D00000
WS_H    = 0x7000000
WS_MOD  = 0x7200000
WS_FLAG = 0x7210000
WS_P1   = 0x7400000
WS_P2   = 0x7800000
WS_H2   = 0x7C00000
D_CNT0, D_RTB = 0, 1
D_CNT1 = 16
D_MOD, D_LN = 32, 33
D_INIT, D_TTB = 48, 49
D_ERR = 60
S_WS = 4
S_T  = 8
S_DBG = 12
S_H, S_W = 14, 15
S_TEAM = 3
WS_SIZE = 0x10000000

class VmQ:
    def __init__(self, a): self.a = a; self.q = []
    def issue(self, tag, n=1): self.q += [tag] * n
    def wait(self, tag):
        idx = max(i for i, t in enumerate(self.q) if t == tag)
        n = len(self.q) - 1 - idx
        assert n <= 63
        self.a(f"s_waitcnt vmcnt({n})")
        self.q = self.q[idx + 1:]
    def clone(self, a=None):
        o = VmQ(a or self.a); o.q = list(self.q); return o

def lane_expr(a, dst, src, terms, const=0, tmp="v15", sadd=None):
    first = True
    for (sr_, w, sl) in terms:
        a(f"v_bfe_u32 {tmp}, {src}, {sr_}, {w}")
        if first:
            a(f"v_lshlrev_b32 {dst}, {sl}, {tmp}"); first = False
        else:
            a(f"v_lshl_add_u32 {dst}, {tmp}, {sl}, {dst}")
    if const:
        a(f"v_add_u32 {dst}, {const}, {dst}")
    if sadd:
        a(f"v_add_u32 {dst}, {sadd}, {dst}")

def srd(a, d, ptr, nbytes):
    a(f"s_mov_b32 s{d}, s{ptr}")
    a(f"s_and_b32 s{d+1}, s{ptr+1}, 0xffff")
    a(f"s_mov_b32 s{d+2}, {hex(nbytes)}")
    a(f"s_mov_b32 s{d+3}, 0x00020000")

def sexpr(a, dst, terms, const=0, tmp=49):
    first = True
    for (reg, sr_, w, sl) in terms:
        t = dst if first else tmp
        a(f"s_bfe_u32 s{t}, s{reg}, {hex(sr_ | (w << 16))}")
        if sl: a(f"s_lshl_b32 s{t}, s{t}, {sl}")
        if not first: a(f"s_add_u32 s{dst}, s{dst}, s{t}")
        first = False
    if const: a(f"s_add_u32 s{dst}, s{dst}, {hex(const)}")

class LQ:
    def __init__(s): s.q = []
    def issue(s, tag): s.q.append(tag)
    def wait(s, tag):
        idx = max(i for i, t in enumerate(s.q) if t == tag)
        n = min(len(s.q) - 1 - idx, 15)
        s.q = s.q[idx + 1:]
        return f"s_waitcnt lgkmcnt({n})"

def dbg_arrive(a, idx, va="v24", vb="v25", soff=None):
    a(f"v_mov_b32 {va}, {('s%d' % soff) if soff is not None else 0}")
    a(f"v_mov_b32 {vb}, 1")
    a("s_mov_b64 exec, 1")
    a(f"global_atomic_add {va}, {vb}, {sr(S_DBG,2)} offset:{4*idx}")
    a("s_mov_b64 exec, -1")

def dbg_wait(a, idx, target, va="v24", vb="v25", st=48, sc=49, soff=None, limit=200000, sleep=4):
    l = a.uid("dw")
    a(f"v_mov_b32 {va}, {('s%d' % soff) if soff is not None else 0}")
    a(f"s_mov_b32 s{sc}, 0")
    a.label(l)
    a(f"global_load_dword {vb}, {va}, {sr(S_DBG,2)} offset:{4*idx} sc1")
    a("s_waitcnt vmcnt(0)")
    a(f"v_readfirstlane_b32 s{st}, {vb}")
    a(f"s_cmp_ge_u32 s{st}, {target}")
    a(f"s_cbranch_scc1 {l}_ok")
    a(f"s_sleep {sleep}")
    a(f"s_add_u32 s{sc}, s{sc}, 1")
    a(f"s_cmp_lt_u32 s{sc}, {limit}")
    a(f"s_cbranch_scc1 {l}")
    a.label(l + "_ok")

def f32bits(x):
    import struct
    return hex(struct.unpack('<I', struct.pack('<f', x))[0])
```

```python
from common import *
S_GID = 16
def emit_gemm(a):
    a.c("==== G role: s3 = team (1:K, 2:V, 3:Q), s14 = head ====")
    LE = lambda *x, **k: lane_expr(a, *x, tmp="v31", **k)
    S_OUT, S_OUT2, S_STR, S_HS, S_M0, S_SEG, S_FL = 17, 18, 19, 20, 21, 22, 23
    a("s_load_dwordx2 s[32:33], s[0:1], 24")
    a("s_load_dwordx2 s[34:35], s[0:1], 32")
    a("s_load_dwordx2 s[36:37], s[0:1], 16")
    a(f"s_lshl_b32 s{S_FL}, s{S_GID}, 7")
    a(f"s_add_u32 s{S_FL}, s{S_FL}, {hex(WS_FLAG)}")
    a("v_and_b32 v4, 63, v0")
    a("v_cmp_eq_u32 vcc, 0, v4")
    a("v_mov_b32 v3, 0x40000000")
    a("s_nop 0")
    a("v_cndmask_b32 v3, v3, 0, vcc")
    a("v_mov_b32 v4, 0")
    a(f"buffer_store_dword v4, v3, {sr(S_WS,4)}, s{S_FL} offen sc1")
    a("s_waitcnt lgkmcnt(0)")
    a(f"s_cmp_eq_u32 s{S_TEAM}, 2")
    a("s_cselect_b32 s32, s34, s32"); a("s_cselect_b32 s33, s35, s33")
    a(f"s_cmp_eq_u32 s{S_TEAM}, 3")
    a("s_cselect_b32 s32, s36, s32"); a("s_cselect_b32 s33, s37, s33")
    srd(a, S_T, 32, 4194304)
    LE("v28", "v0", [(4, 2, 5)])
    LE("v29", "v0", [(0, 4, 4)])
    a("v_xor_b32 v28, v28, v29")
    LE("v30", "v0", [(4, 2, 13)])
    a("v_add_u32 v5, v28, v30")
    a("v_xor_b32 v6, 128, v5")
    sexpr(a, 50, [(S_H, 0, 5, 8), (S_W, 0, 2, 20)])
    sexpr(a, 51, [(S_W, 0, 2, 15)])
    for i in range(32):
        a(f"s_add_u32 m0, s51, {i * 1024}")
        a(f"s_add_u32 s48, s50, {hex(4 * i * 8192)}")
        a(f"buffer_load_dwordx4 v{5 + ((i >> 1) & 1)}, {sr(S_T,4)}, s48 offen lds")
    a("s_waitcnt vmcnt(32)")
    a(f"s_cmp_lg_u32 s{S_W}, 0")
    a("s_cbranch_scc1 G_noarr")
    dbg_arrive(a, D_INIT)
    a.label("G_noarr")
    LE("v28", "v0", [(4, 2, 11), (2, 2, 8), (0, 1, 3)])
    LE("v29", "v0", [(6, 2, 6), (1, 1, 4)])
    LE("v30", "v0", [(2, 2, 5), (4, 1, 7)])
    a("v_xor_b32 v29, v29, v30")
    a("v_add_u32 v8, v28, v29")
    a("v_xor_b32 v9, 32, v8")
    a("v_add_u32 v10, 0x10000, v8")
    a("v_add_u32 v11, 0x10000, v9")
    a("s_waitcnt vmcnt(0)")
    a("s_barrier")
    W = lambda t, ks, off=0, n=4: ar((t * 16 + ks) * 4 + off, n)
    for ks in range(16):
        for t in range(2):
            for u in range(2):
                off = ((32 * ks + 4 * u) * 256) % 65536
                a(f"ds_read_b64_tr_b16 {W(t, ks, 2*u, 2)}, v{8 + t + 2 * (ks // 8)} offset:{off}")
    a(f"s_mul_i32 s48, s{S_H}, {HSTR}")
    a(f"s_mul_i32 s50, s{S_H}, {QSTR}")
    a(f"s_cmp_eq_u32 s{S_TEAM}, 1")
    a("s_cbranch_scc0 G_notk")
    sexpr(a, S_OUT, [(S_W, 1, 1, 12), (S_W, 0, 1, 10)], WS_KV)
    a(f"s_add_u32 s{S_OUT}, s{S_OUT}, s48")
    a(f"s_add_u32 s{S_OUT2}, s{S_OUT}, 8192")
    a(f"s_mov_b32 s{S_STR}, 16384")
    a("s_branch G_addr")
    a.label("G_notk")
    a(f"s_cmp_eq_u32 s{S_TEAM}, 2")
    a("s_cbranch_scc0 G_notv")
    sexpr(a, S_OUT, [(S_W, 0, 2, 12)], WS_KV + 2048)
    a(f"s_add_u32 s{S_OUT}, s{S_OUT}, s48")
    a(f"s_add_u32 s{S_OUT2}, s{S_OUT}, 1024")
    a(f"s_mov_b32 s{S_STR}, 16384")
    a("s_branch G_addr")
    a.label("G_notv")
    sexpr(a, S_OUT, [(S_W, 0, 2, 10)], WS_QX)
    a(f"s_add_u32 s{S_OUT}, s{S_OUT}, s50")
    a(f"s_add_u32 s{S_OUT2}, s{S_OUT}, 4096")
    a(f"s_mov_b32 s{S_STR}, 8192")
    a.label("G_addr")
    LE("v1", "v0", [(0, 6, 4)])
    sexpr(a, S_HS, [(S_W, 0, 2, 13)], WS_H)
    sexpr(a, S_M0, [(S_W, 0, 2, 13)])
    dbg_wait(a, D_LN, 128, sleep=2)
    a("s_waitcnt lgkmcnt(0)")
    a("s_barrier")
    def dma():
        for half in range(2):
            a(f"s_add_u32 m0, s{S_M0}, {half * 4096}")
            a(f"s_add_u32 s48, s{S_HS}, {half * 4096}")
            for i in range(4):
                a(f"buffer_load_dwordx4 v1, {sr(S_WS,4)}, s48 offen offset:{1024*i} sc1 lds")
        a(f"s_add_u32 s{S_HS}, s{S_HS}, 32768")
        a(f"s_add_u32 s{S_M0}, s{S_M0}, 32768")
        a(f"s_and_b32 s{S_M0}, s{S_M0}, 0x1ffff")
    for _ in range(3): dma()
    a(f"s_mov_b32 s{S_SEG}, 0")
    a("v_mov_b32 v2, v1")
    a("s_waitcnt vmcnt(16)")
    a(f"s_cmp_eq_u32 s{S_TEAM}, 2")
    a("s_cbranch_scc1 G_loopV")
    for var in ("K", "V"):
        a.raw(".p2align 6")
        a.label(f"G_loop{var}")
        a("s_barrier")
        dma()
        a(f"s_cmp_lg_u32 s{S_W}, 0")
        a(f"s_cbranch_scc1 G_nf{var}")
        a(f"s_sub_u32 s48, s{S_SEG}, 1")
        a(f"s_max_i32 s48, s48, 0")
        a("v_mov_b32 v4, s48")
        a(f"buffer_store_dword v4, v3, {sr(S_WS,4)}, s{S_FL} offen sc1")
        a.label(f"G_nf{var}")
        lq = LQ()
        HB = lambda rt, ks: 32 + ((ks % 4) * 2 + rt) * 4
        def rd(ks):
            for rt in range(2):
                a(f"ds_read_b128 {vr(HB(rt, ks),4)}, v2 offset:{(rt * 16 + ks) * 1024}"); lq.issue(ks)
        for ks in range(3): rd(ks)
        AC = lambda rt, t: 16 + (rt * 2 + t) * 4 if var == "K" else 16 + (t * 2 + rt) * 4
        for ks in range(16):
            a(lq.wait(ks))
            n = 0
            for rt in range(2):
                for t in range(2):
                    d = vr(AC(rt, t), 4)
                    c = d if ks else "0"
                    if var == "K": a(f"v_mfma_f32_16x16x32_bf16 {d}, {W(t, ks)}, {vr(HB(rt, ks),4)}, {c}")
                    else: a(f"v_mfma_f32_16x16x32_bf16 {d}, {vr(HB(rt, ks),4)}, {W(t, ks)}, {c}")
                    if n == 0 and ks + 3 < 16: rd(ks + 3)
                    n += 1
        a("v_add_u32 v2, 0x8000, v2")
        a("v_and_b32 v2, 0x1ffff, v2")
        a(f"s_add_u32 s{S_SEG}, s{S_SEG}, 1")
        a("s_nop 1")
        for i in range(4): a(f"v_cvt_pk_bf16_f32 v{64+i}, v{16+2*i}, v{17+2*i}")
        a(f"buffer_store_dwordx4 v[64:67], v1, {sr(S_WS,4)}, s{S_OUT} offen sc1")
        for i in range(4): a(f"v_cvt_pk_bf16_f32 v{68+i}, v{24+2*i}, v{25+2*i}")
        a(f"buffer_store_dwordx4 v[68:71], v1, {sr(S_WS,4)}, s{S_OUT2} offen sc1")
        a(f"s_add_u32 s{S_OUT}, s{S_OUT}, s{S_STR}")
        a(f"s_add_u32 s{S_OUT2}, s{S_OUT2}, s{S_STR}")
        a("s_waitcnt vmcnt(10)")
        a(f"s_cmp_lt_u32 s{S_SEG}, 64")
        a(f"s_cbranch_scc1 G_loop{var}")
        if var == "K": a("s_branch G_fin")
    a.label("G_fin")
    a("s_waitcnt vmcnt(0)")
    a("s_barrier")
    a("v_mov_b32 v4, 64")
    a(f"buffer_store_dword v4, v3, {sr(S_WS,4)}, s{S_FL} offen sc1")
    a("s_waitcnt vmcnt(0)")
```

```python
from common import *
from pre import rnd1, rnd2, MASK, S_TID, xsum_g
import math

S_X, S_O = 20, 24
S_SEG, S_TAG, S_PC, S_PMAX, S_SC = 28, 29, 30, 31, 18
S_P1S, S_P1L, S_P2S, S_P2L = 52, 53, 54, 55
S_H2W, S_H2P, S_H2R, S_H2B = 56, 57, 58, 59
S_KV, S_Q, S_KM, S_ROW, S_FLG, S_HAVE = 60, 61, 62, 63, 64, 65
S_P1S2, S_P2S2, S_H2O, S_KMV = 66, 67, 68, 69
vL16, vCol, vP, vKw, vKr, vHg, vAw, vOw, vL16w8, vZero = ["v%d" % i for i in range(1, 11)]
MC = 16
BIAS, SEL, ONE = 24, 32, 36
X2 = 40
QF, KX, VX, KF, SS = 48, 64, 96, 112, 128
L_K, L_O, L_ST, L_A, L_H = 0, 4096, 12288, 16384, 32768
WoF = lambda ct, ks, off=0, n=4: ar((ct * 4 + ks) * 4 + off, n)
GF = lambda m, ks, off=0, n=4: ar(128 + (m * 16 + ks) * 4 + off, n)
DF = lambda ct, ks, off=0, n=4: vr(192 + (ct * 2 + ks) * 4 + off, n)

def wave_sum(a, x, t):
    a("s_nop 1")
    for ror in (1, 2, 4, 8):
        a(f"v_add_f32_dpp v{x}, v{x}, v{x} row_ror:{ror} row_mask:0xf bank_mask:0xf")
        a("s_nop 1")
    xsum_g(a, x, t)

def emit_post_setup(a, opt):
    LE = lambda *x, **k: lane_expr(a, *x, tmp="v47", **k)
    a.c("==== T role: s3 = team (4..7), s14 = member, s16 = tid ====")
    a("s_load_dwordx2 s[32:33], s[0:1], 0")
    a("s_load_dwordx2 s[34:35], s[0:1], 40")
    a("s_load_dwordx4 s[36:39], s[0:1], 64")
    a("s_load_dwordx2 s[40:41], s[0:1], 80")
    a("s_load_dwordx2 s[42:43], s[0:1], 104")
    LE(vL16, "v0", [(0, 6, 4)])
    LE(vCol, "v0", [(6, 2, 8), (2, 2, 6), (5, 1, 5), (0, 2, 3), (4, 1, 2)])
    LE(vP, "v0", [(0, 4, 15), (4, 2, 4)])
    LE(vKw, "v0", [(6, 2, 10), (0, 4, 5), (4, 2, 3)], L_K)
    LE(vKr, "v0", [(0, 6, 3)], L_K)
    LE(vHg, "v0", [(0, 4, 10), (4, 2, 4), (6, 2, 8)])
    LE(vAw, "v0", [(7, 1, 10), (0, 6, 4), (6, 1, 3)], L_A)
    LE(vOw, "v0", [(6, 1, 12), (7, 1, 11), (0, 6, 4)], L_O)
    LE(vL16w8, "v0", [(0, 6, 4), (6, 2, 12)], L_H)
    a(f"v_mov_b32 {vZero}, 0")
    a(f"s_sub_u32 s50, s{S_TEAM}, 4")
    sexpr(a, S_P1S, [(50, 0, 2, 20), (S_W, 0, 2, 13), (S_H, 0, 5, 8)], WS_P1)
    a(f"s_add_u32 s{S_P1S2}, s{S_P1S}, {16*32768}")
    sexpr(a, S_P1L, [(50, 0, 2, 20), (S_H, 0, 5, 15), (S_W, 0, 2, 13)], WS_P1)
    a(f"s_add_u32 s{S_P2S}, s{S_P1S}, {hex(WS_P2 - WS_P1)}")
    a(f"s_add_u32 s{S_P2S2}, s{S_P1S2}, {hex(WS_P2 - WS_P1)}")
    a(f"s_add_u32 s{S_P2L}, s{S_P1L}, {hex(WS_P2 - WS_P1)}")
    sexpr(a, S_H2B, [(50, 0, 2, 17)], WS_H2)
    a(f"s_lshl_b32 s{S_H2O}, s{S_H}, 10")
    a(f"s_mov_b32 s{S_H2R}, s{S_H2B}")
    for i in range(4): a(f"v_mov_b32 v{48+i}, -1")
    for i in range(4): a(f"v_mov_b32 v{52+i}, 0")
    a(f"s_mul_i32 s48, s{S_TID}, {65*1024}")
    a(f"s_add_u32 s48, s48, {hex(WS_KM)}")
    a(f"buffer_store_dwordx4 v[48:51], {vL16}, {sr(S_WS,4)}, s48 offen sc1")
    sexpr(a, 51, [(S_W, 0, 2, 14)], 1024)
    a("s_add_u32 s48, s48, s51")
    for i in range(4):
        for k in range(4):
            a(f"buffer_store_dwordx4 v[48:51], {vL16}, {sr(S_WS,4)}, s48 offen offset:{1024*k} sc1")
        a("s_add_u32 s48, s48, 4096")
    for base in (S_P1L, S_P2L):
        for half in range(2):
            a(f"s_add_u32 s48, s{base}, {half*4096}")
            for k in range(4):
                a(f"buffer_store_dwordx4 v[52:55], {vL16}, {sr(S_WS,4)}, s48 offen offset:{1024*k} sc1")
    for sl in range(3):
        a(f"s_add_u32 s48, s{S_H2B}, s{S_H2O}")
        if sl: a(f"s_add_u32 s48, s48, {sl*32768}")
        a(f"buffer_store_dword v48, {vCol}, {sr(S_WS,4)}, s48 offen sc1")
    a(f"s_mov_b32 s48, {hex(WS_MOD + 2048)}")
    for i, k in enumerate((0, 2, 1, 3)):
        a(f"buffer_load_dword v{56+i}, {vCol}, {sr(S_WS,4)}, s48 offen offset:{1024*k} sc1")
    a("s_waitcnt vmcnt(0) lgkmcnt(0)")
    a("s_barrier")
    a(f"s_cmp_lg_u32 s{S_W}, 0")
    a("s_cbranch_scc1 T_noarr")
    dbg_arrive(a, D_INIT, "v44", "v45")
    a("s_lshl_b32 s48, s50, 2")
    dbg_arrive(a, D_TTB, "v44", "v45", soff=48)
    a.label("T_noarr")
    for i in range(4):
        a(f"v_lshlrev_b32 v{MC+2*i}, 16, v{56+i}")
        a(f"v_and_b32 v{MC+2*i+1}, s{MASK}, v{56+i}")
    a(f"v_add_f32 v{MC+2}, 1.0, v{MC+2}"); a(f"v_add_f32 v{MC+3}, 1.0, v{MC+3}")
    rnd2(a, MC + 2, MC + 3, 47)
    srd(a, S_X, 32, 2048 * 1024)
    srd(a, S_O, 42, 2048 * 1024)
    LE("v60", "v0", [(4, 2, 5)])
    LE("v61", "v0", [(0, 4, 4)])
    a("v_xor_b32 v60, v60, v61")
    LE("v61", "v0", [(4, 2, 10)])
    a("v_add_u32 v62, v60, v61")
    a("v_xor_b32 v63, 128, v62")
    LE("v64", "v0", [(6, 2, 15), (2, 4, 8), (1, 1, 4), (2, 3, 5), (0, 1, 3)])
    sexpr(a, 51, [(S_W, 0, 2, 15)])
    def stage_rows(ptr, nbytes, sbase_terms, nrows, dst, nks):
        srd(a, S_T, ptr, nbytes)
        sexpr(a, 50, sbase_terms)
        for i in range(nrows // 4):
            a(f"s_add_u32 m0, s51, {i * 1024}")
            a(f"s_add_u32 s48, s50, {4 * i * 1024}")
            a(f"buffer_load_dwordx4 v{62 + (i & 1)}, {sr(S_T,4)}, s48 offen lds")
        a("s_waitcnt vmcnt(0)")
        for ct in range(8):
            a(f"v_xor_b32 v65, {32 * ct}, v64")
            for ks in range(nks):
                for u in range(2):
                    a(f"ds_read_b64_tr_b16 {dst(ct, ks, 2*u, 2)}, v65 offset:{(32*ks + 16*u) * 256}")
        a("s_waitcnt lgkmcnt(0)")
    stage_rows(34, 4194304, [(S_H, 0, 5, 17), (S_W, 0, 2, 8)], 128, WoF, 4)
    a(f"s_cmp_ge_u32 s{S_H}, 28")
    a("s_cbranch_scc1 T_now")
    stage_rows(40, 1792 * 1024, [(S_H, 0, 5, 16), (S_W, 0, 2, 8)], 64, DF, 2)
    a("s_barrier")
    a("v_bfe_u32 v60, v0, 3, 3")
    a("v_mul_u32_u24 v60, 3584, v60")
    LE("v61", "v0", [(0, 3, 4)])
    LE("v62", "v0", [(4, 1, 5)])
    a("v_xor_b32 v61, v61, v62")
    a("v_add_u32 v62, v60, v61")
    a("v_xor_b32 v63, 64, v61")
    a("v_add_u32 v63, v60, v63")
    a(f"s_mul_i32 s50, s{S_W}, {128*3584}")
    a(f"s_lshl_b32 s48, s{S_H}, 7")
    a("s_add_u32 s50, s50, s48")
    sexpr(a, 51, [(S_W, 0, 2, 14)])
    for m in range(2):
        srd(a, S_T, 36 + 2 * m, 512 * 3584)
        for i in range(16):
            a(f"s_add_u32 m0, s51, {m * 65536 + i * 1024}")
            a(f"s_add_u32 s48, s50, {8 * i * 3584}")
            a(f"buffer_load_dwordx4 v{62 + (i & 1)}, {sr(S_T,4)}, s48 offen lds")
    LE("v60", "v0", [(4, 2, 10), (2, 2, 7), (0, 1, 3)])
    LE("v61", "v0", [(6, 2, 5), (1, 1, 4)])
    LE("v64", "v0", [(3, 1, 5), (4, 1, 6)])
    a("v_xor_b32 v61, v61, v64")
    a("v_add_u32 v64, v60, v61")
    a("v_add_u32 v65, 0x10000, v64")
    a("s_waitcnt vmcnt(0)")
    a("s_barrier")
    for m in range(2):
        for ks in range(16):
            for u in range(2):
                a(f"ds_read_b64_tr_b16 {GF(m, ks, 2*u, 2)}, v{64+m} offset:{(32*ks + 4*u) * 128}")
    a("s_waitcnt lgkmcnt(0)")
    a.label("T_now")
    a("s_barrier")
    a("v_and_b32 v60, 3, v0"); a("v_bfe_u32 v61, v0, 2, 2")
    a("v_mov_b32 v62, 0x3f80"); a("v_mov_b32 v63, 0x3f800000")
    a("v_cmp_eq_u32 vcc, 1, v60"); a("s_nop 1"); a("v_cndmask_b32 v62, v62, v63, vcc")
    a("v_cmp_gt_u32 vcc, 2, v60"); a("s_nop 1"); a("v_cndmask_b32 v62, 0, v62, vcc")
    for d in range(4):
        a(f"v_cmp_eq_u32 vcc, {d}, v61"); a("s_nop 1"); a(f"v_cndmask_b32 v{SEL+d}, 0, v62, vcc")
        a(f"v_mov_b32 v{ONE+d}, 0x3f803f80")
    LE("v60", "v0", [(6, 1, 4), (0, 4, 0)])
    LE("v61", "v0", [(4, 2, 2)])
    a(f"v_mov_b32 v63, {f32bits(-1e30)}")
    for t in range(2):
        for r in range(4):
            a(f"v_add_u32 v62, {16*t + r}, v61")
            a("v_cmp_gt_u32 vcc, v62, v60"); a("s_nop 1")
            a(f"v_cndmask_b32 v{BIAS+4*t+r}, 0, v63, vcc")
    a(f"s_sub_u32 s{S_SEG}, s{S_TEAM}, 4")
    a(f"s_mul_i32 s{S_KV}, s{S_H}, {HSTR}")
    a(f"s_lshl_b32 s48, s{S_SEG}, 14"); a(f"s_add_u32 s{S_KV}, s{S_KV}, s48")
    if WS_KV: a(f"s_add_u32 s{S_KV}, s{S_KV}, {hex(WS_KV)}")
    a(f"s_mul_i32 s{S_Q}, s{S_H}, {QSTR}")
    a(f"s_lshl_b32 s48, s{S_SEG}, 13"); a(f"s_add_u32 s{S_Q}, s{S_Q}, s48")
    sexpr(a, 48, [(S_W, 0, 1, 12)], WS_QX); a(f"s_add_u32 s{S_Q}, s{S_Q}, s48")
    a(f"s_mul_i32 s{S_KM}, s{S_H}, {MSTR}")
    a(f"s_lshl_b32 s48, s{S_SEG}, 12"); a(f"s_add_u32 s{S_KM}, s{S_KM}, s48")
    sexpr(a, 48, [(S_W, 1, 1, 11)], WS_KM + 4096); a(f"s_add_u32 s{S_KMV}, s{S_KM}, s48")
    sexpr(a, 48, [(S_W, 0, 2, 10)], WS_KM); a(f"s_add_u32 s{S_KM}, s{S_KM}, s48")
    sexpr(a, S_ROW, [(S_SEG, 0, 2, 15), (S_H, 0, 5, 10)])
    sexpr(a, S_FLG, [(S_H, 0, 5, 7)], WS_FLAG)
    a(f"s_mov_b32 s{S_HAVE}, 0")
    a(f"s_mov_b32 s{S_TAG}, 1")
    a(f"s_mov_b32 s{S_PMAX}, 100000")
    a(f"s_mov_b32 s{S_SC}, {f32bits((128 ** -0.5) * math.log2(math.e))}")
    dbg_wait(a, D_INIT, 224, "v44", "v45")
    a(f"s_sub_u32 s50, s{S_TEAM}, 4"); a("s_lshl_b32 s50, s50, 2")
    dbg_wait(a, D_TTB, 32, "v44", "v45", soff=50)

def poll(a, name, loads, check, sleep=3):
    a(f"s_mov_b32 s{S_PC}, 0")
    a.label(name)
    loads()
    a("s_waitcnt vmcnt(0)")
    check()
    a(f"s_cbranch_vccz {name}_ok")
    a(f"s_sleep {sleep}")
    a(f"s_add_u32 s{S_PC}, s{S_PC}, 1")
    a(f"s_cmp_lt_u32 s{S_PC}, s{S_PMAX}")
    a(f"s_cbranch_scc1 {name}")
    a(f"s_mov_b32 s{S_PMAX}, 1")
    a.label(name + "_ok")

def emit_post_loop(a, fast, pfx, opt):
    st = "" if fast else " sc1"
    WS = sr(S_WS, 4)
    a.raw(".p2align 6")
    a.label(pfx + "_loop")
    a(f"s_cmp_gt_u32 s{S_HAVE}, s{S_SEG}")
    a(f"s_cbranch_scc1 {pfx}_fok")
    a(f"s_mov_b32 s{S_PC}, 0")
    a(f"v_lshlrev_b32 v44, 8, {vL16}")
    a.label(pfx + "_fl")
    a("s_mov_b64 exec, 7")
    a(f"buffer_load_dword v45, v44, {WS}, s{S_FLG} offen sc1")
    a("s_mov_b64 exec, -1")
    a("s_waitcnt vmcnt(0)")
    a(f"v_readlane_b32 s{S_HAVE}, v45, 0"); a("v_readlane_b32 s48, v45, 1"); a("v_readlane_b32 s49, v45, 2")
    a("s_nop 1")
    a(f"s_min_u32 s{S_HAVE}, s{S_HAVE}, s48"); a(f"s_min_u32 s{S_HAVE}, s{S_HAVE}, s49")
    a(f"s_cmp_gt_u32 s{S_HAVE}, s{S_SEG}")
    a(f"s_cbranch_scc1 {pfx}_fok")
    a("s_sleep 8")
    a(f"s_add_u32 s{S_PC}, s{S_PC}, 1")
    a(f"s_cmp_lt_u32 s{S_PC}, s{S_PMAX}")
    a(f"s_cbranch_scc1 {pfx}_fl")
    a(f"s_mov_b32 s{S_PMAX}, 1")
    a.label(pfx + "_fok")
    for ks in range(4):
        a(f"buffer_load_dwordx4 {vr(QF+4*ks,4)}, {vL16}, {WS}, s{S_Q} offen offset:{1024*ks} sc1")
    for i in range(8):
        if i % 2 == 0: a(f"s_add_u32 s48, s{S_KV}, {(i//2)*4096}")
        a(f"buffer_load_dwordx4 {vr(KX+4*i,4)}, {vL16}, {WS}, s48 offen offset:{1024*(i%2)} sc1")
    sexpr(a, 50, [(S_W, 1, 1, 13)])
    a(f"s_add_u32 s50, s50, s{S_KV}")
    for i in range(4):
        if i % 2 == 0: a(f"s_add_u32 s48, s50, {(i//2)*4096}")
        a(f"buffer_load_dwordx4 {vr(VX+4*i,4)}, {vL16}, {WS}, s48 offen offset:{2048+1024*(i%2)} sc1")
    a(f"buffer_load_dword v42, {vCol}, {sr(S_X,4)}, s{S_ROW} offen")
    a("s_waitcnt vmcnt(5)")
    for ks in range(4):
        for t in range(2):
            d = vr(SS + 4 * t, 4)
            a(f"v_mfma_f32_16x16x32_bf16 {d}, {vr(KX+4*(t*4+ks),4)}, {vr(QF+4*ks,4)}, {d if ks else vr(BIAS+4*t,4)}")
    KMR, VMR = 140, 142
    def ld():
        a(f"buffer_load_dwordx2 {vr(KMR,2)}, {vL16}, {WS}, s{S_KM} offen sc1")
        a(f"buffer_load_dwordx2 {vr(VMR,2)}, {vL16}, {WS}, s{S_KMV} offen offset:8 sc1")
        a(f"buffer_load_dwordx2 {vr(VMR+2,2)}, {vL16}, {WS}, s{S_KMV} offen offset:1032 sc1")
    def ck():
        a(f"v_max3_u32 v44, v{KMR}, v{KMR+1}, v{VMR}")
        a(f"v_max3_u32 v45, v{VMR+1}, v{VMR+2}, v{VMR+3}")
        a("v_max_u32 v44, v44, v45")
        a("v_cmp_eq_u32 vcc, -1, v44")
    poll(a, pfx + "_km", ld, ck, sleep=6)
    a(f"ds_write2st64_b32 {vKw}, v{KMR}, v{KMR+1} offset1:2")
    a("s_waitcnt lgkmcnt(0)"); a("s_barrier")
    for ks in range(4):
        for u in range(2):
            a(f"ds_read_b64_tr_b16 {vr(KF+4*ks+2*u,2)}, {vKr} offset:{1024*ks+512*u}")
    a(f"v_max3_f32 v44, v{SS}, v{SS+1}, v{SS+2}"); a(f"v_max3_f32 v45, v{SS+3}, v{SS+4}, v{SS+5}")
    a(f"v_max3_f32 v44, v44, v{SS+6}, v{SS+7}"); a("v_max_f32 v44, v44, v45")
    for ks in range(4):
        a(f"s_waitcnt lgkmcnt({6-2*ks})")
        d = vr(SS + 8, 4)
        a(f"v_mfma_f32_16x16x32_bf16 {d}, {vr(KF+4*ks,4)}, {vr(QF+4*ks,4)}, {d if ks else 0}")
    a("s_nop 7")
    a(f"v_max3_f32 v44, v44, v{SS+8}, v{SS+9}")
    xsum_g(a, 44, 45, "v_max_f32")
    a(f"v_mul_f32 v44, s{S_SC}, v44")
    for r in range(10): a(f"v_fma_f32 v{SS+r}, v{SS+r}, s{S_SC}, -v44")
    for r in range(10): a(f"v_exp_f32 v{SS+r}, v{SS+r}")
    PX, PM0, PM1, OC, LL = 148, 152, 154, 160, 156
    a(f"v_mov_b32 v{PM0+1}, 0"); a(f"v_mov_b32 v{PM1}, 0")
    for i in range(4): a(f"v_cvt_pk_bf16_f32 v{PX+i}, v{SS+2*i}, v{SS+2*i+1}")
    a(f"v_cvt_pk_bf16_f32 v{PM0}, v{SS+8}, v{SS+9}"); a(f"v_cvt_pk_bf16_f32 v{PM1+1}, v{SS+8}, v{SS+9}")
    a("s_nop 1")
    a(f"v_mfma_f32_16x16x32_bf16 {vr(LL,4)}, {vr(ONE,4)}, {vr(PX,4)}, 0")
    for i in range(4):
        a(f"v_mfma_f32_16x16x32_bf16 {vr(OC+4*i,4)}, {vr(VX+4*i,4)}, {vr(PX,4)}, 0")
    a(f"v_mfma_f32_16x16x16_bf16 {vr(LL,4)}, {vr(ONE,2)}, {vr(PM0,2)}, {vr(LL,4)}")
    for i in range(4):
        a(f"v_mfma_f32_16x16x16_bf16 {vr(OC+4*i,4)}, {vr(VMR+2*(i//2),2)}, {vr((PM0, PM1)[i%2],2)}, {vr(OC+4*i,4)}")
    a(f"v_rcp_f32 v44, v{LL}")
    a("s_nop 0")
    for r in range(16): a(f"v_mul_f32 v{OC+r}, v44, v{OC+r}")
    for i in range(8): a(f"v_cvt_pk_bf16_f32 v{176+i}, v{OC+2*i}, v{OC+2*i+1}")
    a(f"ds_write_b128 {vOw}, v[176:179]"); a(f"ds_write_b128 {vOw}, v[180:183] offset:1024")
    a("s_waitcnt lgkmcnt(0)"); a("s_barrier")
    OF = 64
    for i in range(8): a(f"ds_read_b128 {vr(OF+4*i,4)}, {vL16} offset:{L_O+1024*i}")

    def partial_gemm(Wf, nks, Bf, s0, s1, first_wait):
        jobs = [(cq, rt) for rt in range(2) for cq in range(4)]
        def epi(n):
            cq, rt = jobs[n]; ac = 128 + (n % 2) * 8; g = 144 + (n % 2) * 4
            for i in range(4): a(f"v_cvt_pk_bf16_f32 v{g+i}, v{ac+2*i}, v{ac+2*i+1}")
            a(f"v_and_or_b32 v{g}, v{g}, -2, s{S_TAG}")
            a(f"buffer_store_dwordx4 {vr(g,4)}, {vP}, {WS}, s{(s0, s1)[rt]} offen offset:{64*cq}{st}")
        for n, (cq, rt) in enumerate(jobs):
            if n in first_wait: a(first_wait[n])
            ac = 128 + (n % 2) * 8
            k = 0
            for ks in range(nks):
                for u in range(2):
                    d = vr(ac + 4 * u, 4)
                    a(f"v_mfma_f32_16x16x32_bf16 {d}, {Wf(2*cq+u, ks)}, {vr(Bf+4*(rt*nks+ks),4)}, {d if ks else 0}")
                    k += 1
                    if k == 3 and n > 0: epi(n - 1)
        a("s_nop 7")
        epi(7)
    def reduce(name, sld, n):
        R = 64
        def ld():
            for i in range(n):
                if i % 4 == 0: a(f"s_add_u32 s48, s{sld}, {(i//4)*4096}")
                a(f"buffer_load_dwordx4 {vr(R+4*i,4)}, {vL16}, {WS}, s48 offen offset:{1024*(i%4)} sc1")
        def ck():
            a(f"v_xor_b32 v44, s{S_TAG}, v{R}")
            for i in range(1, n):
                a(f"v_xor_b32 v45, s{S_TAG}, v{R+4*i}")
                a("v_or_b32 v44, v44, v45")
            a("v_and_b32 v44, 1, v44")
            a("v_cmp_ne_u32 vcc, 0, v44")
        poll(a, name, ld, ck)
        for i in range(n):
            a(f"v_mfma_f32_16x16x32_bf16 v[128:131], {vr(SEL,4)}, {vr(R+4*i,4)}, {'v[128:131]' if i else 0}")
        a("s_nop 7")
    partial_gemm(WoF, 4, OF, S_P1S, S_P1S2, {0: "s_waitcnt lgkmcnt(4)", 4: "s_waitcnt lgkmcnt(0)"})
    a("s_sleep 4")
    reduce(pfx + "_r1", S_P1L, 8)
    rnd2(a, 128, 129, 44)
    a(f"v_mul_f32 v128, v{MC}, v128"); a(f"v_mul_f32 v129, v{MC+1}, v129")
    rnd2(a, 128, 129, 44)
    a(f"v_lshlrev_b32 v{X2}, 16, v42"); a(f"v_and_b32 v{X2+1}, s{MASK}, v42")
    a(f"v_add_f32 v{X2}, v{X2}, v128"); a(f"v_add_f32 v{X2+1}, v{X2+1}, v129")
    rnd2(a, X2, X2 + 1, 44)
    a(f"s_lshl_b32 s48, s{S_W}, 2")
    a("v_mov_b32 v43, s48")
    a(f"v_add_f32 v44, v{X2}, v{X2+1}")
    wave_sum(a, 44, 45)
    a(f"ds_write_b32 v43, v44 offset:{L_ST}")
    a("s_waitcnt lgkmcnt(0)"); a("s_barrier")
    a(f"ds_read_b128 v[132:135], {vZero} offset:{L_ST}")
    a("s_waitcnt lgkmcnt(0)")
    a("v_add_f32 v132, v132, v133"); a("v_add_f32 v134, v134, v135"); a("v_add_f32 v132, v132, v134")
    a(f"v_mul_f32 v136, {f32bits(1/512)}, v132")
    a(f"v_sub_f32 v128, v{X2}, v136"); a(f"v_sub_f32 v129, v{X2+1}, v136")
    a("v_mul_f32 v44, v128, v128"); a("v_fmac_f32 v44, v129, v129")
    wave_sum(a, 44, 45)
    a(f"ds_write_b32 v43, v44 offset:{L_ST+16}")
    a("s_waitcnt lgkmcnt(0)"); a("s_barrier")
    a(f"ds_read_b128 v[132:135], {vZero} offset:{L_ST+16}")
    rnd1(a, 136)
    a(f"v_sub_f32 v128, v{X2}, v136"); a(f"v_sub_f32 v129, v{X2+1}, v136")
    rnd2(a, 128, 129, 44)
    a("s_waitcnt lgkmcnt(0)")
    a("v_add_f32 v132, v132, v133"); a("v_add_f32 v134, v134, v135"); a("v_add_f32 v132, v132, v134")
    a(f"v_mul_f32 v137, {f32bits(1/512)}, v132")
    rnd1(a, 137)
    a(f"v_add_f32 v137, {f32bits(1e-5)}, v137"); rnd1(a, 137)
    a("v_sqrt_f32 v137, v137"); a("s_nop 0"); rnd1(a, 137)
    a("v_rcp_f32 v137, v137"); a("s_nop 0")
    a("v_mul_f32 v128, v128, v137"); a("v_mul_f32 v129, v129, v137")
    rnd2(a, 128, 129, 44)
    a(f"v_mul_f32 v128, v128, v{MC+2}"); a(f"v_mul_f32 v129, v129, v{MC+3}")
    rnd2(a, 128, 129, 44)
    a(f"v_add_f32 v128, v128, v{MC+4}"); a(f"v_add_f32 v129, v129, v{MC+5}")
    a("v_cvt_pk_bf16_f32 v44, v128, v129")
    a(f"s_add_u32 s48, s{S_H2R}, s{S_H2O}")
    a(f"buffer_store_dword v44, {vCol}, {WS}, s48 offen{st}")
    a(f"s_sub_u32 s49, s{S_H2R}, 32768")
    a(f"s_add_u32 s50, s{S_H2B}, 65536")
    a(f"s_cmp_lt_u32 s49, s{S_H2B}")
    a("s_cselect_b32 s49, s50, s49")
    a(f"s_add_u32 s49, s49, s{S_H2O}")
    a("v_mov_b32 v45, -1")
    a(f"buffer_store_dword v45, {vCol}, {WS}, s49 offen{st}")
    a(f"s_cmp_ge_u32 s{S_H}, 28")
    a(f"s_cbranch_scc1 {pfx}_noffn")
    HR = 64
    def ld():
        for rt in range(2):
            a(f"s_add_u32 s48, s{S_H2R}, {rt*16384}")
            for i in range(4):
                a(f"buffer_load_dwordx4 {vr(HR+4*(rt*4+i),4)}, {vHg}, {WS}, s48 offen offset:{64*i} sc1")
    def ck():
        a(f"v_max3_u32 v44, v{HR}, v{HR+4}, v{HR+8}"); a(f"v_max3_u32 v45, v{HR+12}, v{HR+16}, v{HR+20}")
        a(f"v_max3_u32 v44, v44, v{HR+24}, v{HR+28}"); a("v_max_u32 v44, v44, v45")
        a("v_cmp_eq_u32 vcc, -1, v44")
    a("s_sleep 2")
    poll(a, pfx + "_h2", ld, ck)
    for rt in range(2):
        for i in range(4):
            a(f"ds_write_b128 {vL16w8}, {vr(HR+4*(rt*4+i),4)} offset:{rt*16384 + i*1024}")
    a("s_waitcnt lgkmcnt(0)"); a("s_barrier")
    lq = LQ()
    HB = lambda rt, ks: 96 + ((ks % 4) * 2 + rt) * 4
    def rd(ks):
        for rt in range(2):
            a(f"ds_read_b128 {vr(HB(rt, ks),4)}, {vL16} offset:{L_H + (rt*16+ks)*1024}"); lq.issue(ks)
    for ks in range(3): rd(ks)
    for ks in range(16):
        a(lq.wait(ks))
        n = 0
        for rt in range(2):
            for m in range(2):
                d = vr(128 + (rt * 2 + m) * 4, 4)
                a(f"v_mfma_f32_16x16x32_bf16 {d}, {GF(m, ks)}, {vr(HB(rt, ks),4)}, {d if ks else 0}")
                if n == 0 and ks + 3 < 16: rd(ks + 3)
                n += 1
    a("s_nop 3")
    for rt in range(2):
        g0 = 128 + rt * 8; u0 = g0 + 4
        for j in (0, 2):
            rnd2(a, g0 + j, g0 + j + 1, 44)
        for j in (0, 2):
            rnd2(a, u0 + j, u0 + j + 1, 44)
        for j in range(4): a(f"v_mul_f32 v{g0+j}, v{g0+j}, v{u0+j}")
        a(f"v_cvt_pk_bf16_f32 v{144+2*rt}, v{g0}, v{g0+1}"); a(f"v_cvt_pk_bf16_f32 v{145+2*rt}, v{g0+2}, v{g0+3}")
        a(f"ds_write_b64 {vAw}, {vr(144+2*rt,2)} offset:{rt*2048}")
    a("s_waitcnt lgkmcnt(0)"); a("s_barrier")
    AF = 64
    for i in range(4): a(f"ds_read_b128 {vr(AF+4*i,4)}, {vL16} offset:{L_A+1024*i}")
    partial_gemm(DF, 2, AF, S_P2S, S_P2S2, {0: "s_waitcnt lgkmcnt(0)"})
    a("s_sleep 4")
    a.label(pfx + "_noffn")
    reduce(pfx + "_r2", S_P2L, 7)
    rnd2(a, 128, 129, 44)
    a(f"v_mul_f32 v128, v{MC+6}, v128"); a(f"v_mul_f32 v129, v{MC+7}, v129")
    rnd2(a, 128, 129, 44)
    a(f"v_add_f32 v128, v{X2}, v128"); a(f"v_add_f32 v129, v{X2+1}, v129")
    a("v_cvt_pk_bf16_f32 v44, v128, v129")
    a(f"buffer_store_dword v44, {vCol}, {sr(S_O,4)}, s{S_ROW} offen")
    a(f"s_add_u32 s{S_SEG}, s{S_SEG}, 4")
    a(f"s_add_u32 s{S_KV}, s{S_KV}, {4*16384}")
    a(f"s_add_u32 s{S_Q}, s{S_Q}, {4*8192}")
    a(f"s_add_u32 s{S_KM}, s{S_KM}, {4*4096}")
    a(f"s_add_u32 s{S_KMV}, s{S_KMV}, {4*4096}")
    a(f"s_add_u32 s{S_ROW}, s{S_ROW}, {4*32768}")
    a(f"s_xor_b32 s{S_TAG}, s{S_TAG}, 1")
    a(f"s_add_u32 s{S_H2R}, s{S_H2R}, 32768")
    a(f"s_add_u32 s48, s{S_H2B}, {3*32768}")
    a(f"s_cmp_ge_u32 s{S_H2R}, s48")
    a(f"s_cselect_b32 s{S_H2R}, s{S_H2B}, s{S_H2R}")
    a(f"s_cmp_lt_u32 s{S_SEG}, 64")
    a(f"s_cbranch_scc1 {pfx}_loop")
    a("s_waitcnt vmcnt(0)")

def emit_post(a, opt):
    import mega
    if "time" in opt: a("s_memrealtime s[84:85]")
    emit_post_setup(a, opt)
    if "time" in opt: a("s_memrealtime s[86:87]")
    mega.emit_mode(a, opt, "T_slow", "v44", "v45")
    emit_post_loop(a, True, "TF", opt)
    a("s_branch L_done")
    a.label("T_slow")
    emit_post_loop(a, False, "TS", opt)
```

```python
from common import *
import math
S_TID = 16
MASK = 17

def rnd2(a, x, y, p):
    a(f"v_cvt_pk_bf16_f32 v{p}, v{x}, v{y}")
    a(f"v_lshlrev_b32 v{x}, 16, v{p}")
    a(f"v_and_b32 v{y}, s{MASK}, v{p}")
def rnd1(a, x):
    a(f"v_cvt_pk_bf16_f32 v{x}, v{x}, v{x}")
    a(f"v_and_b32 v{x}, s{MASK}, v{x}")
def unpack(a, src, dst, n):
    for d in range(n):
        a(f"v_lshlrev_b32 v{dst+2*d}, 16, v{src+d}")
        a(f"v_and_b32 v{dst+2*d+1}, s{MASK}, v{src+d}")
def xsum_g(a, x, t, op="v_add_f32"):
    a(f"v_mov_b32 v{t}, v{x}"); a("s_nop 1")
    a(f"v_permlane32_swap_b32 v{x}, v{t}"); a(f"{op} v{x}, v{x}, v{t}")
    a(f"v_mov_b32 v{t}, v{x}"); a("s_nop 1")
    a(f"v_permlane16_swap_b32 v{x}, v{t}"); a(f"{op} v{x}, v{x}, v{t}")
def tree(a, regs):
    regs = list(regs)
    while len(regs) > 1:
        nxt = []
        for i in range(0, len(regs) - 1, 2):
            a(f"v_add_f32 v{regs[i]}, v{regs[i]}, v{regs[i+1]}"); nxt.append(regs[i])
        if len(regs) % 2: nxt.append(regs[-1])
        regs = nxt
    return regs[0]

def emit_pre(a):
    a.c("==== prologue work of the post teams: mod + LN1 ; s16 = tid (0..127) ====")
    LE = lambda *x, **k: lane_expr(a, *x, tmp="v31", **k)
    a("s_load_dwordx2 s[32:33], s[0:1], 0")
    a("s_load_dwordx4 s[36:39], s[0:1], 88")
    a(f"s_mov_b32 s{MASK}, 0xffff0000")
    LE("v1", "v0", [(0, 4, 10), (4, 2, 4), (6, 2, 8)])
    a(f"s_lshl_b32 s48, s{S_TID}, 14")
    a("s_waitcnt lgkmcnt(0)")
    srd(a, S_T, 32, 2048 * 1024)
    for i in range(4):
        a(f"buffer_load_dwordx4 {vr(32+4*i,4)}, v1, {sr(S_T,4)}, s48 offen offset:{64*i}")
    a(f"s_cmp_ge_u32 s{S_TID}, 96")
    a("s_cbranch_scc1 P_nomod")
    srd(a, 40, 36, 1024)
    srd(a, 44, 38, 512 * 6144)
    LE("v2", "v0", [(2, 6, 4)])
    a("buffer_load_dwordx4 v[4:7], v2, s[40:43], 0 offen")
    a("v_lshrrev_b32 v2, 2, v0")
    a("v_mul_u32_u24 v2, 49152, v2")
    a("v_and_b32 v3, 3, v0")
    a("v_lshl_add_u32 v2, v3, 4, v2")
    a(f"s_lshl_b32 s48, s{S_TID}, 6")
    for i in range(8):
        a(f"buffer_load_dwordx4 {vr(64+4*i,4)}, v2, s[44:47], s48 offen")
        if i < 7: a("s_add_u32 s48, s48, 6144")
    a("s_waitcnt vmcnt(8)")
    unpack(a, 4, 8, 4)
    a(f"s_mov_b32 s48, {f32bits(-math.log2(math.e))}")
    for j in range(8): a(f"v_mul_f32 v{16+j}, s48, v{8+j}")
    for j in range(8): a(f"v_exp_f32 v{16+j}, v{16+j}")
    for j in range(8): a(f"v_add_f32 v{16+j}, 1.0, v{16+j}")
    for j in range(8): a(f"v_rcp_f32 v{16+j}, v{16+j}")
    for j in range(8): a(f"v_mul_f32 v{8+j}, v{8+j}, v{16+j}")
    for j in range(0, 8, 2): rnd2(a, 8 + j, 9 + j, 31)
    for j in range(8): a(f"v_mov_b32 v{16+j}, 0")
    for i in range(8):
        a(f"s_waitcnt vmcnt({7-i})")
        for d in range(4):
            a(f"v_lshlrev_b32 v24, 16, v{64+4*i+d}")
            a(f"v_and_b32 v25, s{MASK}, v{64+4*i+d}")
            a(f"v_fmac_f32 v{16+2*d}, v{8+i}, v24")
            a(f"v_fmac_f32 v{17+2*d}, v{8+i}, v25")
    a("s_nop 1")
    for ror in (4, 8):
        for j in range(8):
            a(f"v_add_f32_dpp v{16+j}, v{16+j}, v{16+j} row_ror:{ror} row_mask:0xf bank_mask:0xf")
    LE("v2", "v0", [(4, 4, 7), (0, 2, 5)])
    a("ds_write_b128 v2, v[16:19] offset:1024")
    a("ds_write_b128 v2, v[20:23] offset:1040")
    a("s_waitcnt lgkmcnt(0)")
    a("s_barrier")
    a(f"s_cmp_lg_u32 s{S_W}, 0")
    a("s_cbranch_scc1 P_nomod")
    LE("v2", "v0", [(0, 5, 2)])
    for p in range(16): a(f"ds_read_b32 v{64+p}, v2 offset:{1024+128*p}")
    a("s_waitcnt lgkmcnt(0)")
    r = tree(a, range(64, 80))
    a(f"v_cvt_pk_bf16_f32 v{r}, v{r}, v{r}")
    LE("v2", "v0", [(0, 5, 1), (5, 1, 30)])
    a(f"s_lshl_b32 s48, s{S_TID}, 6")
    a(f"s_add_u32 s48, s48, {hex(WS_MOD)}")
    a(f"buffer_store_short v{r}, v2, {sr(S_WS,4)}, s48 offen sc1")
    a("s_waitcnt vmcnt(0)")
    dbg_arrive(a, D_MOD)
    a.label("P_nomod")
    a("s_waitcnt vmcnt(0)")
    unpack(a, 32, 64, 16)
    LE("v2", "v0", [(0, 4, 4), (6, 2, 2)])
    LE("v3", "v0", [(0, 4, 4)])
    for j in range(16): a(f"v_add_f32 v{96+j}, v{64+2*j}, v{65+2*j}")
    r = tree(a, range(96, 112))
    xsum_g(a, r, 31)
    a(f"ds_write_b32 v2, v{r}")
    a("s_waitcnt lgkmcnt(0)"); a("s_barrier")
    a("ds_read_b128 v[4:7], v3")
    a("s_waitcnt lgkmcnt(0)")
    tree(a, range(4, 8))
    a(f"v_mul_f32 v8, {f32bits(1/512)}, v4")
    for j in range(32): a(f"v_sub_f32 v{96+j}, v{64+j}, v8")
    for j in range(32): a(f"v_mul_f32 v{96+j}, v{96+j}, v{96+j}")
    r = tree(a, range(96, 128))
    xsum_g(a, r, 31)
    a(f"ds_write_b32 v2, v{r} offset:256")
    a("s_waitcnt lgkmcnt(0)"); a("s_barrier")
    a("ds_read_b128 v[4:7], v3 offset:256")
    a("s_waitcnt lgkmcnt(0)")
    tree(a, range(4, 8))
    a(f"v_mul_f32 v9, {f32bits(1/512)}, v4")
    rnd1(a, 8); rnd1(a, 9)
    a(f"v_add_f32 v9, {f32bits(1e-5)}, v9"); rnd1(a, 9)
    a("v_sqrt_f32 v9, v9"); a("s_nop 0"); rnd1(a, 9)
    a("v_rcp_f32 v9, v9")
    for j in range(32): a(f"v_sub_f32 v{64+j}, v{64+j}, v8")
    for j in range(0, 32, 2): rnd2(a, 64 + j, 65 + j, 31)
    for j in range(32): a(f"v_mul_f32 v{64+j}, v{64+j}, v9")
    for j in range(0, 32, 2): rnd2(a, 64 + j, 65 + j, 31)
    dbg_wait(a, D_MOD, 96, sleep=2)
    LE("v2", "v0", [(4, 2, 4), (6, 2, 8)])
    a(f"s_mov_b32 s48, {hex(WS_MOD)}")
    for i in range(4):
        a(f"buffer_load_dwordx4 {vr(32+4*i,4)}, v2, {sr(S_WS,4)}, s48 offen offset:{1024+64*i} sc1")
    for i in range(4):
        a(f"buffer_load_dwordx4 {vr(48+4*i,4)}, v2, {sr(S_WS,4)}, s48 offen offset:{64*i} sc1")
    a("s_waitcnt vmcnt(4)")
    unpack(a, 32, 96, 16)
    for j in range(32): a(f"v_add_f32 v{96+j}, 1.0, v{96+j}")
    for j in range(0, 32, 2): rnd2(a, 96 + j, 97 + j, 31)
    for j in range(32): a(f"v_mul_f32 v{64+j}, v{64+j}, v{96+j}")
    for j in range(0, 32, 2): rnd2(a, 64 + j, 65 + j, 31)
    a("s_waitcnt vmcnt(0)")
    unpack(a, 48, 96, 16)
    for j in range(32): a(f"v_add_f32 v{64+j}, v{64+j}, v{96+j}")
    for j in range(16): a(f"v_cvt_pk_bf16_f32 v{32+j}, v{64+2*j}, v{65+2*j}")
    LE("v2", "v0", [(0, 6, 4), (6, 2, 12)])
    a(f"s_lshl_b32 s48, s{S_TID}, 14")
    a(f"s_add_u32 s48, s48, {hex(WS_H)}")
    for i in range(4):
        a(f"buffer_store_dwordx4 {vr(32+4*i,4)}, v2, {sr(S_WS,4)}, s48 offen offset:{1024*i} sc1")
    a("s_waitcnt vmcnt(0)")
    a("s_barrier")
    a(f"s_cmp_lg_u32 s{S_W}, 0")
    a("s_cbranch_scc1 P_done")
    dbg_arrive(a, D_LN)
    a.label("P_done")
```

```python
from common import *
import math, struct

L_MEM = 0
L_KV  = 8192
L_QK  = 24576
L_OS  = 28672
L_SEL = 30720
L_JUNK= 31744
L_MISC= 32256
L_WO  = 32768

S_STEP = 16
S_PST = 17
S_PLD = 19
S_MRD, S_MWR, S_MPO = 22, 23, 24
S_KX, S_VX, S_KVM = 25, 26, 27
S_TAG, S_PMAX, S_PC = 28, 29, 30
S_SC = 31
S_PTR = 32
S_T0, S_T1, S_T2, S_T3 = 48, 49, 50, 51
S_OWN = 52
S_WOB = 53
S_WOL = 54
S_STAMP = 60

vVr = "v0"
vL16w, vL16, vXw, vXr, vOw, vWo, vPs, vMp, vIdx = ["v%d" % i for i in range(1, 10)]
vPl = vL16
vZ = "v[10:11]"
vT0, vT1 = "v12", "v13"
vFx = ["v28", "v29", "v30"]
SX0, SX1, SM = 16, 20, 24
vM = "v31"
FA, FB = 32, 120
F = [32 + 4 * i for i in range(8)]
ACC = {("q", 0): 64, ("q", 1): 68, ("k", 0): 72, ("k", 1): 76, ("v", 0): 80, ("v", 1): 84}
QF = [88 + 4 * i for i in range(4)]
KF = [104 + 4 * i for i in range(4)]
KXR = {(0, 0): 104, (1, 0): 108, (0, 1): 112, (1, 1): 116, (0, 2): 32, (1, 2): 36, (0, 3): 120, (1, 3): 124}
VX = [64, 68]
OC = [88, 92]
MI = {"q": 0, "k": 1, "v": 2}

def wreg(m, t, sig, off=0, n=8):
    idx = ((MI[m] * 2 + t) * 8 + sig) * 8 + off
    if idx < 256: return ar(idx, n)
    return vr(128 + idx - 256, n)

def smf(m, t, sig, own=FA):
    f = own + 4 * sig if sig < 2 else F[sig]
    return f"v_smfmac_f32_16x16x64_bf16 {vr(ACC[(m,t)],4)}, {vr(f,4)}, {wreg(m,t,sig)}, {vIdx}"

S_HAVE, S_FLG = 55, 56
def emit_rec_setup(a, pfx="R"):
    st = " sc1"
    LE = lambda *x, **k: lane_expr(a, *x, tmp="v31", **k)
    a.c("==== recurrence role: s14 = head, s15 = wave ====")
    LE(vL16w, "v0", [(0, 6, 4), (6, 2, 11)])
    LE(vL16, "v0", [(0, 6, 4)])
    LE(vXw, "v0", [(6, 2, 10), (0, 4, 5), (4, 2, 3)], L_QK)
    LE(vXr, "v0", [(0, 6, 3)], L_QK)
    LE(vOw, "v0", [(6, 2, 9), (5, 1, 8), (2, 2, 6), (0, 1, 5), (4, 1, 4)], L_OS)
    LE("v16", "v0", [(5, 1, 8), (2, 2, 6), (0, 1, 5), (4, 1, 4)], L_JUNK)
    a("v_and_b32 v17, 2, v0")
    a("v_cmp_ne_u32 vcc, 0, v17")
    a("s_nop 1")
    a(f"v_cndmask_b32 {vOw}, {vOw}, v16, vcc")
    for r in (10, 11, 14, 15): a(f"v_mov_b32 v{r}, 0")
    LE(vWo, "v0", [(6, 2, 15), (0, 6, 4)], L_WO)
    LE(vPs, "v0", [(4, 2, 13), (2, 2, 10), (0, 2, 4)])
    LE(vMp, "v0", [(5, 1, 5), (0, 2, 3), (4, 1, 2), (2, 2, 30)])
    a(f"v_and_b32 v16, 1, v0")
    a(f"v_mul_u32_u24 {vIdx}, 0xaaaa, v16")
    a(f"v_add_u32 {vIdx}, 0x4444, {vIdx}")
    a("v_and_b32 v16, 3, v0")
    a("v_bfe_u32 v17, v0, 2, 2")
    a("v_mov_b32 v18, 0x3f80")
    a("v_mov_b32 v19, 0x3f800000")
    a("v_cmp_eq_u32 vcc, 1, v16")
    a("s_nop 1")
    a("v_cndmask_b32 v18, v18, v19, vcc")
    a("v_cmp_gt_u32 vcc, 2, v16")
    a("s_nop 1")
    a("v_cndmask_b32 v18, 0, v18, vcc")
    for d in range(4):
        a(f"v_cmp_eq_u32 vcc, {d}, v17")
        a("s_nop 1")
        a(f"v_cndmask_b32 v{20+d}, 0, v18, vcc")
    a(f"ds_write_b128 {vL16}, v[20:23] offset:{L_SEL}")
    for tau in range(2):
        a(f"s_add_u32 s{S_T0}, s{S_H}, {tau}")
        sexpr(a, S_PST + tau, [(S_T0, 0, 1, 15), (S_W, 0, 2, 16), (S_H, 1, 4, 6)], WS_PART + tau * 4096)
        sexpr(a, S_PLD + tau, [(S_H, 0, 5, 13), (S_W, 0, 2, 10)], WS_PART + tau * 4096)
    sexpr(a, S_OWN, [(S_H, 2, 3, 10), (S_W, 0, 2, 8), (S_H, 0, 2, 6)])
    a(f"s_mov_b32 s{S_MRD}, {hex(WS_MEM)}")
    a(f"s_add_u32 s{S_MPO}, s{S_OWN}, {hex(WS_MEM)}")
    a(f"s_add_u32 s{S_MWR}, s{S_OWN}, {hex(WS_MEM + 8192)}")
    a(f"s_mul_i32 s{S_T0}, s{S_H}, {HSTR}")
    sexpr(a, S_KX, [(S_W, 0, 2, 12)], WS_KV)
    a(f"s_add_u32 s{S_KX}, s{S_KX}, s{S_T0}")
    a(f"s_mul_i32 s{S_T0}, s{S_H}, {MSTR}")
    sexpr(a, S_KVM, [(S_W, 0, 2, 10)], WS_KM)
    a(f"s_add_u32 s{S_KVM}, s{S_KVM}, s{S_T0}")
    a(f"s_mov_b32 s{S_STEP}, 0")
    a(f"s_mov_b32 s{S_TAG}, 1")
    a(f"s_mov_b32 s{S_PMAX}, 20000")
    sc = (128 ** -0.5) * math.log2(math.e)
    a(f"s_mov_b32 s{S_SC}, {hex(struct.unpack('<I', struct.pack('<f', sc))[0])}")

    q = VmQ(a)
    srd(a, S_T, S_PTR + 2, 8192)
    LE("v16", "v0", [(5, 1, 10), (4, 1, 6), (0, 2, 1)])
    sexpr(a, S_T0, [(S_H, 0, 2, 11), (S_H, 2, 3, 7), (S_W, 0, 2, 3)])
    a(f"buffer_load_ushort v17, v16, {sr(S_T,4)}, s{S_T0} offen")
    a(f"buffer_load_ushort v18, v16, {sr(S_T,4)}, s{S_T0} offen offset:32")
    q.issue("m0", 2)
    for i in range(4): a(f"v_mov_b32 v{24+i}, 0")
    a("v_mov_b32 v19, -1")
    for i in range(2):
        a(f"buffer_store_dwordx4 v[24:27], {vPl}, {sr(S_WS,4)}, s{S_PLD+i} offen{st}")
    a(f"buffer_store_dword v19, {vMp}, {sr(S_WS,4)}, s{S_MWR} offen{st}")
    a(f"s_add_u32 s{S_T0}, s{S_MWR}, 8192")
    a(f"buffer_store_dword v19, {vMp}, {sr(S_WS,4)}, s{S_T0} offen{st}")
    q.issue("init", 4)

    D = [32, 33]
    LE("v28", "v0", [(4, 2, 5)])
    LE("v29", "v0", [(0, 4, 4)])
    a("v_xor_b32 v28, v28, v29")
    LE("v30", "v0", [(4, 2, 13)])
    a(f"v_add_u32 v{D[0]}, v28, v30")
    a(f"v_xor_b32 v{D[1]}, 128, v{D[0]}")
    E = [36, 37, 38, 39]
    LE("v28", "v0", [(4, 1, 5)])
    a("v_xor_b32 v28, v28, v29")
    LE("v30", "v0", [(4, 2, 10)])
    a(f"v_add_u32 v{E[0]}, v28, v30")
    a(f"v_xor_b32 v{E[1]}, 64, v{E[0]}")
    a(f"v_xor_b32 v{E[2]}, 128, v{E[0]}")
    a(f"v_xor_b32 v{E[3]}, 192, v{E[0]}")
    TR = [40, 41]
    LE("v28", "v0", [(2, 1, 12), (5, 1, 10), (3, 1, 9), (4, 1, 8), (0, 1, 3)])
    LE("v29", "v0", [(6, 2, 6), (1, 1, 4)])
    LE("v30", "v0", [(4, 1, 5), (3, 1, 6), (2, 1, 7)])
    a("v_xor_b32 v29, v29, v30")
    a(f"v_add_u32 v{TR[0]}, v28, v29")
    a(f"v_xor_b32 v{TR[1]}, 32, v{TR[0]}")
    sexpr(a, S_T2, [(S_H, 0, 5, 8), (S_W, 0, 2, 18)])
    sexpr(a, S_T3, [(S_W, 0, 2, 13)], L_WO)
    sexpr(a, S_WOB, [(S_H, 0, 5, 17), (S_W, 0, 2, 15)])

    def dma_chunk(a, q, n):
        m, ch = divmod(n, 4)
        if ch == 0:
            srd(a, S_T, S_PTR + 4 + 2 * m, 4194304)
        for i in range(8):
            a(f"s_add_u32 m0, s{S_T3}, {ch * 32768 + i * 1024}")
            if m < 3:
                a(f"s_add_u32 s{S_T0}, s{S_T2}, {hex((128 * ch + 4 * i) * 8192)}")
                a(f"buffer_load_dwordx4 v{D[(i >> 2) & 1]}, {sr(S_T,4)}, s{S_T0} offen lds")
            else:
                a(f"s_add_u32 s{S_T0}, s{S_WOB}, {hex(4 * i * 1024 + ch * 256)}")
                a(f"buffer_load_dwordx4 v{E[(i & 1) + 2 * ((i >> 2) & 1)]}, {sr(S_T,4)}, s{S_T0} offen lds")
        q.issue(("d", n), 8)

    for n in range(3): dma_chunk(a, q, n)
    q.wait("m0")
    a("v_lshl_or_b32 v17, v18, 16, v17")
    a(f"buffer_store_dword v17, {vMp}, {sr(S_WS,4)}, s{S_MPO} offen{st}")
    q.issue("init", 1)

    done = pfx + "_wdone"
    for w in range(4):
        if w < 3:
            a(f"s_cmp_lg_u32 s{S_W}, {w}")
            a(f"s_cbranch_scc1 {pfx}_wl{w+1}")
        qq = q.clone()
        for n in range(13):
            if n < 12:
                qq.wait(("d", n))
            if n == 4:
                a("v_mov_b32 v24, 0")
                a("v_mov_b32 v25, 1")
                a("s_mov_b64 exec, 1")
                a(f"global_atomic_add v24, v25, {sr(S_DBG,2)} offset:{4*D_RTB}")
                a("s_mov_b64 exec, -1")
                qq.issue("at")
            a("s_barrier")
            if n + 3 < 16: dma_chunk(a, qq, n + 3)
            if n == 12: break
            m, ch = divmod(n, 4)
            mn = "qkv"[m]
            a(f"v_add_u32 v26, {L_WO + ch * 32768}, v{TR[0]}")
            a(f"v_add_u32 v27, {L_WO + ch * 32768}, v{TR[1]}")
            for k2 in range(2):
                sig = (2 * ch + k2) ^ (2 * w)
                for t in range(2):
                    for p in range(4):
                        off = (64 * k2 + 32 * (p % 2) + 8 * (p // 2)) * 256
                        a(f"ds_read_b64_tr_b16 {wreg(mn, t, sig, 2 * p, 2)}, v{26+t} offset:{off}")
            a("s_waitcnt lgkmcnt(0)")
        if w < 3:
            a(f"s_branch {done}")
            a.label(f"{pfx}_wl{w+1}")
    a.label(done)
    LE("v24", "v0", [(4, 1, 12), (5, 1, 11), (3, 1, 10), (2, 1, 8), (6, 2, 15), (1, 1, 4), (0, 1, 3),
                     (2, 1, 5), (3, 1, 6), (4, 1, 7)], L_WO)
    a("s_waitcnt vmcnt(0)")
    a("s_barrier")
    for ks in range(2):
        for tau in range(2):
            a(f"s_add_u32 s{S_T0}, s{S_H}, {tau}")
            a(f"s_and_b32 s{S_T0}, s{S_T0}, 1")
            a(f"s_lshl_b32 s{S_T0}, s{S_T0}, 7")
            for b in range(4):
                a(f"s_or_b32 s{S_T1}, s{S_T0}, {32 * b}")
                a(f"v_xor_b32 v25, s{S_T1}, v24")
                base = 32 + (tau * 4 + b) * 8
                for p in range(4):
                    off = (64 * ks + 32 * (p // 2) + 2 * (p % 2)) * 256
                    a(f"ds_read_b64_tr_b16 {vr(base + 2 * p, 2)}, v25 offset:{off}")
        a("s_waitcnt lgkmcnt(0)")
        for i in range(16):
            a(f"ds_write_b128 {vWo}, {vr(32 + 4 * i, 4)} offset:{ks * 16384 + i * 1024}")
        a("s_waitcnt lgkmcnt(0)")
    a(f"s_mov_b32 s{S_PC}, 0")
    a("v_mov_b32 v24, 0")
    a.label(pfx + "_tb")
    a(f"global_load_dword v25, v24, {sr(S_DBG,2)} offset:{4*D_RTB} sc1")
    a("s_waitcnt vmcnt(0)")
    a(f"v_readfirstlane_b32 s{S_T0}, v25")
    a(f"s_cmp_ge_u32 s{S_T0}, 128")
    a(f"s_cbranch_scc1 {pfx}_tbok")
    a(f"s_add_u32 s{S_PC}, s{S_PC}, 1")
    a(f"s_cmp_lt_u32 s{S_PC}, s{S_PMAX}")
    a(f"s_cbranch_scc1 {pfx}_tb")
    a(f"s_mov_b32 s{S_PMAX}, 1")
    a.label(pfx + "_tbok")

def kv_wait(a, need_sreg_or_imm, tag):
    l = a.uid(tag)
    need = need_sreg_or_imm
    a(f"s_cmp_ge_u32 s{S_HAVE}, {need}")
    a(f"s_cbranch_scc1 {l}_ok")
    a(f"s_mov_b32 s{S_PC}, 0")
    a(f"v_lshlrev_b32 v118, 8, {vL16}")
    a.label(l)
    a("s_mov_b64 exec, 3")
    a(f"buffer_load_dword v119, v118, {sr(S_WS,4)}, s{S_FLG} offen sc1")
    a("s_mov_b64 exec, -1")
    a("s_waitcnt vmcnt(0)")
    a(f"v_readlane_b32 s{S_HAVE}, v119, 0")
    a(f"v_readlane_b32 s{S_T0}, v119, 1")
    a("s_nop 1")
    a(f"s_min_u32 s{S_HAVE}, s{S_HAVE}, s{S_T0}")
    a(f"s_cmp_ge_u32 s{S_HAVE}, {need}")
    a(f"s_cbranch_scc1 {l}_ok")
    a("s_sleep 2")
    a(f"s_add_u32 s{S_PC}, s{S_PC}, 1")
    a(f"s_cmp_lt_u32 s{S_PC}, s{S_PMAX}")
    a(f"s_cbranch_scc1 {l}")
    a(f"s_mov_b32 s{S_PMAX}, 1")
    a.label(l + "_ok")

def emit_rec_mega(a, opt):
    import mega
    a(f"s_load_dwordx16 {sr(S_PTR,16)}, s[0:1], 0")
    a("s_waitcnt lgkmcnt(0)")
    emit_rec_setup(a)
    if "time" in opt: a("s_memrealtime s[84:85]")
    dbg_wait(a, D_INIT, 96 if "noT" in opt else 224, sleep=2)
    sexpr(a, S_FLG, [(S_H, 0, 5, 7)], WS_FLAG)
    a(f"s_mov_b32 s{S_HAVE}, 0")
    kv_wait(a, 2, "kvw")
    if "time" in opt: a("s_memrealtime s[86:87]")
    mega.emit_mode(a, opt, "R_slow")
    ropt = list(opt) + ["mega", "nopj", "nopd", "da10", "dz6"]
    emit_rec(a, fast=True, pfx="RF", opt=ropt)
    a("s_branch L_done")
    a.label("R_slow")
    emit_rec(a, fast=False, pfx="RS", opt=ropt)

def emit_rec(a, fast=True, stamps=False, nsteps=64, pfx="R", warm=True, opt=()):
    st = "" if fast else " sc1"
    def geti(p, d):
        for o in opt:
            if o.startswith(p) and o[len(p):].isdigit(): return int(o[len(p):])
        return d
    nst = [0]
    tr0 = geti("tr", -1)
    slotno = [0]
    def stamp(force=False):
        if stamps and (tr0 < 0 or force):
            a(f"s_memtime {sr(S_STAMP + 2 * nst[0], 2)}"); nst[0] += 1
    if "mega" not in opt: emit_rec_setup(a, pfx)

    lq = LQ()
    rms = [o[3:] for o in opt if o.startswith("rm:")]
    def emit(x):
        txt = x if isinstance(x, str) else x[0]
        if isinstance(x, str) and any(r in txt for r in rms): return
        if x == "STAMP": stamp()
        elif isinstance(x, tuple):
            if x[0] == "w": a(lq.wait(x[1]))
            else:
                a(x[0]); lq.issue(x[1])
        else: a(x)
    def run(seq, count=True):
        for m, fill in seq:
            if m: a(m)
            if tr0 >= 0 and count and tr0 <= slotno[0] < tr0 + geti("tn", 13): stamp(True)
            if count: slotno[0] += 1
            for f in fill: emit(f)

    kvd = [f"buffer_load_dwordx4 {vL16}, {sr(S_WS,4)}, s{S_KX} offen offset:{1024*i} sc1 lds" for i in range(4)] + [f"s_add_u32 s{S_KX}, s{S_KX}, 16384"]
    zero16 = lambda r: f"v_mfma_f32_32x32x8_bf16 {vr(r,16)}, {vZ}, {vZ}, 0"
    zero4 = lambda r: f"v_mfma_f32_16x16x16_bf16 {vr(r,4)}, {vZ}, {vZ}, 0"
    def gather(own):
        a(f"buffer_load_dwordx4 {vr(own,4)}, {vL16w}, {sr(S_WS,4)}, s{S_MRD} offen sc1")
        a(f"buffer_load_dwordx4 {vr(own+4,4)}, {vL16w}, {sr(S_WS,4)}, s{S_MRD} offen offset:1024 sc1")
    def fx():
        for i in range(3): a(f"v_xor_b32 {vFx[i]}, {2048 * (i + 1)}, {vL16w}")
    sexpr(a, S_T0, [(S_W, 0, 2, 12)], L_KV)
    a(f"s_mov_b32 m0, s{S_T0}")
    lane_expr(a, "v24", "v0", [(0, 6, 4), (6, 2, 12)], L_KV + 2048, tmp="v31")
    a(f"v_mov_b32 {vVr}, v24")
    for x in kvd: a(x)
    if "nokv" in opt: kvd = ["s_nop 0"] * 5
    a(zero16(64)); a(zero16(80))
    fx()
    a(f"s_mov_b32 s{S_PC}, 0")
    if stamps or "nost" in opt:
        a("s_memrealtime s[96:97]"); a("s_memtime s[98:99]")
    gather(FA); gather(FB)

    rdF = lambda sig: (f"ds_read_b128 {vr(F[sig],4)}, {vFx[sig//2-1]} offset:{L_MEM + (sig%2)*1024}", ("F", sig))
    rdKX = lambda t, ks: (f"ds_read_b128 {vr(KXR[(t,ks)],4)}, {vL16} offset:{L_KV + ((t*4+ks)//2)*4096 + (ks%2)*1024}", "KX")
    trQ = lambda ks, u: (f"ds_read_b64_tr_b16 {vr(QF[ks]+2*u,2)}, {vXr} offset:{1024*ks+512*u}", ("Q", ks))
    trK = lambda ks, u: (f"ds_read_b64_tr_b16 {vr(KF[ks]+2*u,2)}, {vXr} offset:{1024*ks+512*u}", ("K", ks))
    rdV = lambda t: (f"ds_read_b128 {vr(VX[t],4)}, {vVr} offset:{t*1024}", "V")
    def sx(t, ks):
        d = vr([SX0, SX1][t], 4)
        return f"v_mfma_f32_16x16x32_bf16 {d}, {vr(KXR[(t,ks)],4)}, {vr(QF[ks],4)}, {d if ks else 0}"
    def sm(ks):
        d = vr(SM, 4)
        return f"v_mfma_f32_16x16x32_bf16 {d}, {vr(KF[ks],4)}, {vr(KF[ks],4)}, {d if ks else 0}"
    kvm = [f"buffer_store_dwordx4 v[12:15], {vL16}, {sr(S_WS,4)}, s{S_KVM} offen{' sc1 nt' if 'kvmnt' in opt else (' sc0 sc1' if 'kvmsys' in opt else ' sc1')}", f"s_add_u32 s{S_KVM}, s{S_KVM}, 4096"]
    if "nokvm" in opt: kvm = kvm[1:]

    def head(own, nm):
        lq.q = []
        a.label(f"{pfx}_g{nm}")
        if "nocomm" not in opt: a("s_waitcnt vmcnt(2)")
        a(f"v_max_u32 {vT1}, v{own}, v{own+4}")
        a(f"v_cmp_eq_u32 vcc, -1, {vT1}")
        emit((f"ds_write_b128 {vL16w}, {vr(own,4)} offset:{L_MEM}", "Fw"))
        emit((f"ds_write_b128 {vL16w}, {vr(own+4,4)} offset:{L_MEM+1024}", "Fw"))
        a(smf("q", 0, 0, own))
        if "nocomm" not in opt: a(f"s_cbranch_vccnz {pfx}_gf{nm}")
        a.label(f"{pfx}_gok{nm}")
        if stamps:
            a(f"s_memtime {sr(S_STAMP, 2)}")
            a(f"s_mov_b32 s{S_STAMP+29}, s{S_PC}")
        run([(smf("q", 1, 0, own), []), (smf("k", 0, 0, own), []), (smf("k", 1, 0, own), []), (smf("v", 0, 0, own), [("w", "Fw"), "s_barrier", rdF(2)]),
             (smf("v", 1, 0, own), [rdF(3), rdF(4)]),
             (smf("q", 0, 1, own), [rdF(5), rdF(6)]), (smf("q", 1, 1, own), [rdF(7)]), (smf("k", 0, 1, own), []),
             (smf("k", 1, 1, own), []), (smf("v", 0, 1, own), []), (smf("v", 1, 1, own), [])], count=False)
    def gfail(own, nm, other):
        a.label(f"{pfx}_gf{nm}")
        gather(own)
        a(f"s_add_u32 s{S_PC}, s{S_PC}, 1")
        a(f"s_cmp_ge_u32 s{S_PC}, s{S_PMAX}")
        a(f"s_cbranch_scc1 {pfx}_gto{nm}")
        a("s_nop 0")
        a(zero4(64))
        a("s_nop 0")
        a(f"s_branch {pfx}_g{other}")
        a.label(f"{pfx}_gto{nm}")
        a(f"s_mov_b32 s{S_PMAX}, 1")
        a("s_waitcnt vmcnt(2)")
        a(f"s_branch {pfx}_gok{nm}")

    a(f"s_branch {pfx}_gA")
    gfail(FA, "A", "B"); gfail(FB, "B", "A")
    head(FB, "B")
    a(f"s_branch {pfx}_common")
    a.raw(".p2align 6")
    head(FA, "A")
    nst[0] = 1
    a.label(f"{pfx}_common")
    seq = []
    kx = [rdKX(t, ks) for ks in range(4) for t in range(2)]
    qf = {k: [] for k in range(12)}
    for x in [("w", ("F", 3)), "STAMP"]: emit(x)
    qf[1] = [("w", ("F", 5))]
    qf[3] = [("w", ("F", 7)), kx[0]]
    qf[4] += [kx[1]]; qf[5] += [kx[2]]; qf[6] += [kx[3]]
    qf[7] += ["s_waitcnt vmcnt(0)" if "nocomm" not in opt else "s_nop 0", kx[4]]
    qf[8] += [kx[5], "v_add_f32 v64, v64, v65"]
    qf[9] += [kx[6], "v_add_f32 v65, v66, v67"]
    qf[10] += [kx[7], f"v_cvt_pk_bf16_f32 {vT0}, v64, v65"]
    qf[11] += [(f"ds_write_b32 {vXw}, {vT0}", "Qw"), rdV(0)]
    i = 0
    for t in range(2):
        for sig in range(2, 8):
            seq.append((smf("q", t, sig), qf[i])); i += 1
    kf = {k: [] for k in range(12)}
    kf[0] = ["STAMP"]
    kf[1] = ["v_add_f32 v68, v68, v69", "v_add_f32 v69, v70, v71", f"v_cvt_pk_bf16_f32 {vT1}, v68, v69"]
    kf[2] = [(f"ds_write_b32 {vXw}, {vT1} offset:512", "Qw"), rdV(1)]
    kf[7] = [("w", "V"), "s_barrier", trQ(0, 0)]
    kf[8] = [trQ(0, 1), "v_add_f32 v72, v72, v73"]
    kf[9] = [trQ(1, 0), "v_add_f32 v73, v74, v75"]
    kf[10] = [trQ(1, 1), f"v_cvt_pk_bf16_f32 {vT0}, v72, v73"]
    kf[11] = [(f"ds_write_b32 {vXw}, {vT0} offset:4", "Kw"), trQ(2, 0), kvd[0], "STAMP"]
    i = 0
    for t in range(2):
        for sig in range(2, 8):
            seq.append((smf("k", t, sig), kf[i])); i += 1
    vs = [smf("v", t, sig) for sig in range(2, 8) for t in range(2)]
    WB = [32, 120, 96, 40, 104, 112, 48, 56, 24]
    def rdWo(k, buf, half):
        T, ks = divmod(k, 2)
        return (f"ds_read_b128 {vr(buf + 4*half, 4)}, {vWo} offset:{ks*16384 + T*2048 + half*1024}", ("W", k))
    W = [rdWo(k, WB[k], h) for k in range(9) for h in range(2)]
    ONE = 76
    ex = [16, 17, 18, 19, 20, 21, 22, 23, 26, 27]
    fm = [f"v_fma_f32 v{r}, v{r}, s{S_SC}, -{vM}" for r in ex]
    ee = [f"v_exp_f32 v{r}, v{r}" for r in ex]
    seq += [(vs[0], [trQ(2, 1), trQ(3, 0), ("w", ("Q", 0))]),
            (sx(0, 0), [trQ(3, 1), "v_add_f32 v76, v76, v77", "v_add_f32 v77, v78, v79"]),
            (sx(1, 0), [("w", ("Q", 1)), f"v_cvt_pk_bf16_f32 {vT1}, v76, v77", (f"ds_write_b32 {vXw}, {vT1} offset:516", "Kw")]),
            (sx(0, 1), [kvd[1]]),
            (sx(1, 1), [("w", ("Q", 3)), "v_mov_b32 v76, 0x3f803f80", "v_mov_b32 v77, 0x3f803f80"]),
            (sx(0, 2), ["v_mov_b32 v78, 0x3f803f80", "v_mov_b32 v79, 0x3f803f80"]),
            (sx(1, 2), []),
            (sx(0, 3), [("w", "Kw"), "s_barrier", trK(0, 0)]),
            (sx(1, 3), [trK(0, 1), trK(1, 0), kvd[2], "STAMP"]),
            (vs[1], [trK(1, 1), trK(2, 0)]),
            (vs[2], [trK(2, 1), trK(3, 0)]),
            (vs[3], [trK(3, 1), ("w", ("K", 1)), f"v_max3_f32 {vM}, v16, v17, v18"]),
            (sm(0), [kvd[3], f"v_max3_f32 v30, v19, v20, v21", f"v_max3_f32 {vM}, {vM}, v22, v23"]),
            (sm(1), [("w", ("K", 3)), W[0], f"v_max_f32 {vM}, {vM}, v30"]),
            (sm(2), [W[1], kvd[4]]),
            (sm(3), [W[2], "STAMP"]),
            (vs[4], [W[3]] + kvm),
            (vs[5], [W[4], f"v_max3_f32 {vM}, {vM}, v26, v27", f"v_mov_b32 v30, {vM}"]),
            (vs[6], [W[5], f"v_permlane32_swap_b32 {vM}, v30", f"v_max_f32 {vM}, {vM}, v30", f"v_mov_b32 v30, {vM}"]),
            (vs[7], [W[6], f"v_permlane16_swap_b32 {vM}, v30", f"v_max_f32 {vM}, {vM}, v30", f"v_mul_f32 {vM}, s{S_SC}, {vM}"])]
    seq += [(vs[8], [W[7], W[8]] + fm[0:3]), (vs[9], [W[9]] + fm[3:6]), (vs[10], [W[10], W[11]] + fm[6:8]),
            (vs[11], [W[12]] + fm[8:10] + ["STAMP"])]
    run(seq)
    for x in [ee[0], ee[1], ee[2], "v_cvt_pk_bf16_f32 v72, v16, v17", ee[3], ee[4], "v_cvt_pk_bf16_f32 v73, v18, v19", ee[5], ee[6],
              "v_cvt_pk_bf16_f32 v74, v20, v21", ee[7], "v_add_f32 v80, v80, v81", "v_cvt_pk_bf16_f32 v75, v22, v23", "s_nop 0", "v_add_f32 v81, v82, v83"]:
        emit(x)
    run([(f"v_mfma_f32_16x16x32_bf16 v[16:19], v[76:79], v[72:75], 0", [W[13], ee[8]]),
         (f"v_mfma_f32_16x16x32_bf16 v[88:91], {vr(VX[0],4)}, v[72:75], 0", [W[14], ee[9]]),
         (f"v_mfma_f32_16x16x32_bf16 v[92:95], {vr(VX[1],4)}, v[72:75], 0", [W[15], "v_add_f32 v84, v84, v85", "v_add_f32 v85, v86, v87",
            "v_cvt_pk_bf16_f32 v82, v26, v27", "v_mov_b32 v83, 0", "v_cvt_pk_bf16_f32 v14, v80, v81", "v_cvt_pk_bf16_f32 v15, v84, v85"]),
         ("v_mfma_f32_16x16x16_bf16 v[16:19], v[76:77], v[82:83], v[16:19]", [W[16], "v_mov_b32 v84, 0", "v_mov_b32 v85, v82"]),
         ("v_mfma_f32_16x16x16_bf16 v[88:91], v[14:15], v[82:83], v[88:91]", [W[17], f"s_cmp_eq_u32 s{S_STEP}, {nsteps-1}"]),
         ("v_mfma_f32_16x16x16_bf16 v[92:95], v[14:15], v[84:85], v[92:95]", ["v_rcp_f32 v20, v16"])])
    if not stamps: a(f"s_cbranch_scc1 {pfx}_end")
    else: a(f"s_cbranch_scc1 {pfx}_cont"); a.label(f"{pfx}_cont")
    a("s_nop 1")
    for r in range(88, 92): a(f"v_mul_f32 v{r}, v20, v{r}")
    a("v_pk_mul_f32 v[92:93], v[92:93], v[20:21] op_sel_hi:[1,0]")
    a("v_pk_mul_f32 v[94:95], v[94:95], v[20:21] op_sel_hi:[1,0]")
    for i in range(4): a(f"v_cvt_pk_bf16_f32 v{16+i}, v{88+2*i}, v{89+2*i}")
    emit((f"ds_write_b128 {vOw}, v[16:19]", "Ow"))
    stamp()
    a(zero16(64))
    a(zero16(80))
    emit(("w", "Ow"))
    a("s_barrier")
    emit((f"ds_read_b128 v[16:19], {vL16} offset:{L_OS}", "O0"))
    emit((f"ds_read_b128 v[20:23], {vL16} offset:{L_OS+1024}", "O1"))
    a(zero16(80))
    emit(("w", "O1"))
    stamp()
    OA = [64 + 4 * T for T in range(8)]
    buf = {k: WB[k] for k in range(9)}
    for k in range(9, 16): buf[k] = WB[k - 9]
    def wo(k):
        T, ks = divmod(k, 2)
        return f"v_smfmac_f32_16x16x64_bf16 {vr(OA[T], 4)}, {vr(16 + 4*ks, 4)}, {vr(buf[k], 8)}, {vIdx}"
    def add(T):
        o = OA[T]; return [f"v_add_f32 v{o}, v{o}, v{o+1}", f"v_add_f32 v{o+2}, v{o+2}, v{o+3}"]
    G = [OA[0], OA[4]]
    def cvt(tau, bb):
        o0, o1 = OA[tau*4 + 2*bb], OA[tau*4 + 2*bb + 1]
        return [f"v_cvt_pk_bf16_f32 v{G[tau]+bb}, v{o0}, v{o1}", f"v_cvt_pk_bf16_f32 v{G[tau]+2+bb}, v{o0+2}, v{o1+2}"]
    tag = lambda tau: [f"v_and_or_b32 v{G[tau]}, v{G[tau]}, -2, s{S_TAG}"]
    stp = lambda tau: [f"buffer_store_dwordx4 {vr(G[tau],4)}, {vPs}, {sr(S_WS,4)}, s{S_PST+tau} offen{st}"]
    fill = {k: [] for k in range(16)}
    rest = [rdWo(k, buf[k], h) for k in range(9, 16) for h in range(2)]
    sched_rd = {0: 2, 1: 2, 2: 2, 3: 1, 4: 1, 5: 1, 6: 1, 7: 1, 8: 1, 9: 1, 10: 1}
    for k, n in sched_rd.items():
        for _ in range(n): fill[k].append(rest.pop(0))
    fill[8].append(("w", ("W", 11)))
    fill[11].append(("w", ("W", 13)))
    fill[13].append(("w", ("W", 15)))
    va = {3: add(0)[:1], 4: add(0)[1:], 5: add(1), 6: cvt(0, 0), 7: tag(0) + add(2)[:1], 8: add(2)[1:], 9: add(3) + cvt(0, 1), 10: stp(0),
          11: add(4)[:1], 12: add(4)[1:], 13: add(5), 14: cvt(1, 0) + tag(1), 15: add(6)}
    for k, v in va.items(): fill[k] += v
    SEL, RA0, RA1, RB1, RD = 96, 100, 104, 108, 112
    fill[15] = [(f"ds_read_b128 {vr(SEL,4)}, {vL16} offset:{L_SEL}", "SEL")] + fill[15] + ["v_mov_b32 v117, -1", f"s_mov_b32 s{S_PC}, 0", "s_nop 2"] + add(7) + cvt(1, 1) + stp(1)
    run([(wo(k), fill[k]) for k in range(16)])
    stamp()
    if "nocomm" in opt:
        a(zero16(64)); fx(); a(zero16(80))
        if stamps:
            a(f"s_cmp_eq_u32 s{S_STEP}, {nsteps-1}")
            a(f"s_cbranch_scc1 {pfx}_end")
        a(f"s_add_u32 s{S_STEP}, s{S_STEP}, 1")
        a("s_nop 7")
        a(f"s_branch {pfx}_gA")
    def ldp(reg, tau): a(f"buffer_load_dwordx4 {vr(reg,4)}, {vPl}, {sr(S_WS,4)}, s{S_PLD+tau} offen sc1")
    d0 = geti("dz", 5); d1 = geti("da", 9); d2 = geti("db", 3); d3 = geti("dc", 3)
    a(zero16(64))
    fx()
    a(zero16(80))
    JD = zero16(80) if "nopd" not in opt else "s_nop 7"
    for _ in range(d0 - 2): a(JD)
    ldp(RA0, 0)
    for _ in range(d1 - d0): a(JD)
    ldp(RA1, 1)
    for _ in range(d2): a(zero16(80) if "nopd2" not in opt else "s_nop 7")
    ldp(RB1, 1)
    emit(("w", "SEL"))
    a.label(f"{pfx}_rc0")
    a("s_waitcnt vmcnt(2)")
    a(f"v_and_b32 {vT1}, 1, v{RA0}")
    a(f"v_cmp_ne_u32 vcc, s{S_TAG}, {vT1}")
    a(f"v_mfma_f32_16x16x32_bf16 {vr(RD,4)}, {vr(SEL,4)}, {vr(RA0,4)}, 0")
    a(f"s_cbranch_vccnz {pfx}_rf0")
    for _ in range(d3): a(zero16(80) if "nopd2" not in opt else "s_nop 7")
    def fin(reg, nm):
        a.label(f"{pfx}_rc{nm}")
        a("s_waitcnt vmcnt(1)")
        a(f"v_mfma_f32_16x16x32_bf16 v[16:19], {vr(SEL,4)}, {vr(reg,4)}, {vr(RD,4)}")
        a(f"v_and_b32 {vT1}, 1, v{reg}")
        a(f"v_cmp_ne_u32 vcc, s{S_TAG}, {vT1}")
        a(f"s_cbranch_vccnz {pfx}_rf{nm}")
    fin(RA1, "A")
    a.label(f"{pfx}_rok")
    stamp()
    if stamps: a(f"s_mov_b32 s{S_STAMP+28}, s{S_PC}")
    a("s_nop 2" if (stamps and tr0 < 0) else "s_nop 4")
    a("v_add_f32_dpp v16, v16, v16 row_ror:8 row_mask:0xf bank_mask:0xf")
    a("v_add_f32_dpp v17, v17, v17 row_ror:8 row_mask:0xf bank_mask:0xf")
    a("s_nop 0")
    a("v_add_f32_dpp v16, v16, v16 row_ror:4 row_mask:0xf bank_mask:0xf")
    a("v_add_f32_dpp v17, v17, v17 row_ror:4 row_mask:0xf bank_mask:0xf")
    a("v_cvt_pk_bf16_f32 v116, v16, v17")
    a(f"buffer_store_dword v116, {vMp}, {sr(S_WS,4)}, s{S_MWR} offen{st}")
    a(f"buffer_store_dword v117, {vMp}, {sr(S_WS,4)}, s{S_MPO} offen{st}")
    if stamps:
        a(f"s_mov_b32 s{S_STAMP+30}, s{S_STAMP+2*nst[0]}")
    stamp()
    if stamps:
        a(f"s_cmp_eq_u32 s{S_STEP}, {nsteps-1}")
        a(f"s_cbranch_scc1 {pfx}_end")
    g1 = geti("ga", 5); g2 = geti("gb", 3); g3 = geti("gc", 3)
    J = zero16(96) if "nopj" not in opt else "s_nop 7"
    a(J)
    a(f"s_mov_b32 s{S_MPO}, s{S_MWR}")
    a(f"s_sub_u32 s{S_MRD}, s{S_MWR}, s{S_OWN}")
    a(f"s_add_u32 s{S_MWR}, s{S_MWR}, 8192")
    a(f"s_cmp_ge_u32 s{S_MRD}, {hex(WS_MEM + 2*8192)}")
    a(f"s_cselect_b32 s{S_T0}, {3*8192}, 0")
    a(f"s_sub_u32 s{S_MWR}, s{S_MWR}, s{S_T0}")
    a(J)
    a(f"s_add_u32 s{S_STEP}, s{S_STEP}, 1")
    a(f"s_xor_b32 s{S_TAG}, s{S_TAG}, 1")
    if "mega" in opt:
        a(f"s_add_u32 s{S_T1}, s{S_STEP}, 2")
        a(f"s_min_u32 s{S_T1}, s{S_T1}, 64")
        kv_wait(a, f"s{S_T1}", pfx + "_kvw")
        g1 -= 1
    a(f"s_mov_b32 s{S_PC}, 0")
    for _ in range(g1 - 1): a(J)
    gather(FA)
    for _ in range(g2): a(J)
    gather(FB)
    for _ in range(g3): a(J)
    a(f"s_branch {pfx}_gA")
    def tmo(nm):
        a(f"s_add_u32 s{S_PC}, s{S_PC}, 1")
        a(f"s_cmp_ge_u32 s{S_PC}, s{S_PMAX}")
        a(f"s_cbranch_scc1 {pfx}_rt{nm}")
    a.label(f"{pfx}_rf0")
    tmo("0")
    ldp(RA0, 0); ldp(RA1, 1); ldp(RB1, 1)
    a(f"s_branch {pfx}_rc0")
    a.label(f"{pfx}_rt0")
    a(f"s_mov_b32 s{S_PMAX}, 1")
    a(f"s_branch {pfx}_rcA")
    a.label(f"{pfx}_rfA")
    ldp(RA1, 1)
    a(f"s_add_u32 s{S_PC}, s{S_PC}, 1")
    fin(RB1, "B")
    a(f"s_branch {pfx}_rok")
    a.label(f"{pfx}_rfB")
    ldp(RB1, 1)
    tmo("X")
    a(f"s_branch {pfx}_rcA")
    a.label(f"{pfx}_rtX")
    a(f"s_mov_b32 s{S_PMAX}, 1")
    a(f"s_branch {pfx}_rok")
    a.label(pfx + "_end")
    a(f"buffer_store_dwordx4 v[12:15], {vL16}, {sr(S_WS,4)}, s{S_KVM} offen sc1")
    return nst[0]
```

```python
import sys
from common import *
import rec, pre, gemm
L_BOOT = 163840 - 64

def read_counts(a, vdst="v25", vaddr="v24"):
    a(f"global_load_dword {vdst}, {vaddr}, {sr(S_DBG,2)} sc1")
    a("s_waitcnt vmcnt(0)")

def emit_entry(a, opt):
    a("s_cmp_ge_u32 s2, 256")
    a("s_cbranch_scc1 L_exit")
    a("s_load_dwordx4 s[48:51], s[0:1], 112")
    a(f"s_getreg_b32 s{S_TEAM}, hwreg(HW_REG_XCC_ID)")
    a(f"s_and_b32 s{S_TEAM}, s{S_TEAM}, 7")
    if "fakexcc" in opt:
        a(f"s_lshr_b32 s{S_TEAM}, s2, 5")
        a("s_and_b32 s16, s2, 7")
        a("s_cmp_eq_u32 s16, 3")
        a(f"s_cselect_b32 s16, 5, s{S_TEAM}")
        a(f"s_mov_b32 s{S_TEAM}, s16")
    if "time" in opt: a("s_memrealtime s[92:93]")
    a("v_lshrrev_b32 v1, 6, v0")
    a("s_nop 0")
    a(f"v_readfirstlane_b32 s{S_W}, v1")
    a(f"s_lshl_b32 s16, s{S_TEAM}, 2")
    a("s_add_u32 s16, s16, 60")
    a(f"s_cmp_eq_u32 s{S_TEAM}, 0")
    a("s_cselect_b32 s16, 0, s16")
    a("s_waitcnt lgkmcnt(0)")
    a(f"s_mov_b32 s{S_DBG}, s48")
    a(f"s_mov_b32 s{S_DBG+1}, s49")
    srd(a, S_WS, 50, WS_SIZE)
    a("v_mov_b32 v2, s16"); a("v_mov_b32 v3, 1"); a(f"v_mov_b32 v5, {L_BOOT}")
    a(f"s_cmp_lg_u32 s{S_W}, 0")
    a("s_cbranch_scc1 L_norank")
    a("s_mov_b64 exec, 1")
    a(f"global_atomic_add v4, v2, v3, {sr(S_DBG,2)} sc0")
    a("s_waitcnt vmcnt(0)")
    a("ds_write_b32 v5, v4")
    a("s_waitcnt lgkmcnt(0)")
    a("s_mov_b64 exec, -1")
    a.label("L_norank")
    a("s_barrier")
    a("ds_read_b32 v4, v5")
    a("s_waitcnt lgkmcnt(0)")
    a(f"v_readfirstlane_b32 s{S_H}, v4")
    a("s_barrier")
    a(f"s_cmp_lt_u32 s{S_H}, 32")
    a("s_cbranch_scc1 L_role")
    a("v_and_b32 v24, 31, v0"); a("v_lshlrev_b32 v24, 2, v24")
    a("s_mov_b32 s17, 0")
    a.label("L_ov")
    read_counts(a)
    a("s_mov_b32 s18, 0")
    for x in range(8):
        a(f"v_readlane_b32 s{20+x}, v25, {0 if x == 0 else 15 + x}")
    a("s_nop 1")
    for x in range(8): a(f"s_add_u32 s18, s18, s{20+x}")
    a("s_cmp_ge_u32 s18, 256")
    a("s_cbranch_scc1 L_ovok")
    a("s_sleep 4")
    a("s_add_u32 s17, s17, 1")
    a("s_cmp_lt_u32 s17, 200000")
    a("s_cbranch_scc1 L_ov")
    a("s_branch L_exit")
    a.label("L_ovok")
    a(f"s_sub_u32 s18, s{S_H}, 32")
    for x in range(7):
        a(f"s_sub_u32 s19, s{20+x}, 32")
        a("s_max_i32 s19, s19, 0")
        a(f"s_cmp_gt_u32 s{S_TEAM}, {x}")
        a("s_cselect_b32 s19, s19, 0")
        a("s_add_u32 s18, s18, s19")
    for x in range(8):
        a(f"s_sub_u32 s19, 32, s{20+x}")
        a("s_max_i32 s19, s19, 0")
        a(f"s_mov_b32 s{S_TEAM}, {x}")
        a(f"s_add_u32 s{S_H}, s{20+x}, s18")
        a("s_cmp_lt_u32 s18, s19")
        a("s_cbranch_scc1 L_role")
        a("s_sub_u32 s18, s18, s19")
    a("s_branch L_exit")
    a.label("L_role")
    a(f"s_and_b32 s{S_H}, s{S_H}, 31")

def emit_mode(a, opt, slow_label, va="v24", vb="v25"):
    if "fakexcc" in opt or "slow" in opt:
        a(f"s_branch {slow_label}")
        return
    l = a.uid("md")
    a(f"v_mbcnt_lo_u32_b32 {va}, -1, 0")
    a(f"v_and_b32 {va}, 31, {va}"); a(f"v_lshlrev_b32 {va}, 2, {va}")
    a(f"s_add_u32 s50, s{S_TEAM}, 15")
    a(f"s_cmp_eq_u32 s{S_TEAM}, 0")
    a("s_cselect_b32 s50, 0, s50")
    a("s_mov_b32 s51, 0")
    a.label(l)
    read_counts(a, vb, va)
    a(f"v_readlane_b32 s48, {vb}, s50")
    a("s_nop 1")
    a("s_cmp_ge_u32 s48, 32")
    a(f"s_cbranch_scc1 {l}_ok")
    a("s_mov_b32 s48, 0")
    for x in range(8):
        a(f"v_readlane_b32 s49, {vb}, {0 if x == 0 else 15 + x}")
        a("s_nop 1")
        a("s_add_u32 s48, s48, s49")
    a("s_cmp_ge_u32 s48, 256")
    a(f"s_cbranch_scc1 {slow_label}")
    a("s_sleep 4")
    a("s_add_u32 s51, s51, 1")
    a("s_cmp_lt_u32 s51, 200000")
    a(f"s_cbranch_scc1 {l}")
    a(f"s_branch {slow_label}")
    a.label(l + "_ok")

def build(opt=()):
    a = Asm()
    hdr = open("cdna_kernels/" + KNAME + ".s.ref").read().split("\n") if "nohdr" not in opt else []
    for l in hdr:
        if l.startswith(";") and "@launch" not in l: a.raw(l)
        elif not l.startswith(";"): break
    a.raw("; @launch grid=(256,1,1) block=(256,1,1) lds=163840")
    a.raw('.amdgcn_target "amdgcn-amd-amdhsa--gfx950"')
    a.raw(".text")
    a.raw(f".globl {KNAME}_kernel")
    a.raw(".p2align 8")
    a.raw(f".type {KNAME}_kernel,@function")
    a.label(f"{KNAME}_kernel")
    emit_entry(a, opt)
    a(f"s_cmp_eq_u32 s{S_TEAM}, 0")
    a("s_cbranch_scc1 L_R")
    a(f"s_cmp_ge_u32 s{S_TEAM}, 4")
    a("s_cbranch_scc1 L_T")
    a(f"s_sub_u32 s16, s{S_TEAM}, 1")
    a("s_lshl_b32 s16, s16, 5")
    a(f"s_add_u32 s16, s16, s{S_H}")
    gemm.emit_gemm(a)
    a("s_branch L_done")
    a.label("L_T")
    a(f"s_sub_u32 s16, s{S_TEAM}, 4")
    a("s_lshl_b32 s16, s16, 5")
    a(f"s_add_u32 s16, s16, s{S_H}")
    pre.emit_pre(a)
    if "noT" not in opt:
        import post
        post.emit_post(a, opt)
    a("s_branch L_done")
    a.label("L_R")
    if "noR" not in opt:
        rec.emit_rec_mega(a, opt)
    a.label("L_done")
    if "time" in opt:
        a("s_memrealtime s[94:95]")
        a("s_waitcnt vmcnt(0) lgkmcnt(0)")
        a(f"s_lshl_b32 s48, s{S_TEAM}, 5")
        a(f"s_add_u32 s48, s48, s{S_H}")
        a("s_lshl_b32 s48, s48, 8")
        a(f"s_add_u32 s48, s48, {hex(WS_STAMP)}")
        a("v_mov_b32 v2, 0")
        a("s_mov_b64 exec, 1")
        for i in range(18):
            a(f"v_mov_b32 v3, s{84+i}")
            a(f"buffer_store_dword v3, v2, {sr(S_WS,4)}, s48 offen offset:{4*i}")
        a("s_waitcnt vmcnt(0)")
    a.label("L_exit")
    a("s_endpgm")
    a.raw('.section .rodata,"a"')
    a.raw(".p2align 6")
    a.raw(f".amdhsa_kernel {KNAME}_kernel")
    for l in ["next_free_vgpr 512", "next_free_sgpr 102", "accum_offset 256", "group_segment_fixed_size 0", "kernarg_size 128",
              "user_sgpr_count 2", "user_sgpr_kernarg_segment_ptr 1", "system_sgpr_workgroup_id_x 1", "float_denorm_mode_32 3"]:
        a.raw("  .amdhsa_" + l)
    a.raw(".end_amdhsa_kernel")
    return a.text()

if __name__ == "__main__":
    out = sys.argv[1]
    t = build(sys.argv[2:])
    open(out, "w").write(t)
    errs = check_hazards(t)
    for e in errs: print("HAZARD", e)
    print("lines", t.count("\n"), "bytes", len(t), "hazards", len(errs))
```

```python
from asmlib import *

KNAME = "adaLN_cond__memory_aug_recurrent_mem_tr__glu_gated_bilinear__prompt"

HSTR    = 65 * 16384
WS_KV   = 0x0000000
QSTR    = 65 * 8192
WS_QX   = 0x4000000
MSTR    = 65 * 4096
WS_KM   = 0x6000000
WS_PART = 0x6C00000
WS_MEM  = 0x6C80000
WS_STAMP= 0x6D00000
WS_H    = 0x7000000
WS_MOD  = 0x7200000
WS_FLAG = 0x7210000
WS_P1   = 0x7400000
WS_ACT  = 0x7800000
WS_H2   = 0x7C00000
D_CNT0, D_RTB = 0, 1
D_CNT1 = 16
D_MOD1, D_LN1 = 32, 2
D_MOD2, D_LN2 = 53, 54
D_INIT, D_TTB = 48, 49
N_LN1 = 32
D_ERR = 60
S_WS = 4
S_T  = 8
S_DBG = 12
S_H, S_W = 14, 15
S_TEAM = 3
WS_SIZE = 0x10000000

class VmQ:
    def __init__(self, a): self.a = a; self.q = []
    def issue(self, tag, n=1): self.q += [tag] * n
    def wait(self, tag):
        idx = max(i for i, t in enumerate(self.q) if t == tag)
        n = len(self.q) - 1 - idx
        assert n <= 63
        self.a(f"s_waitcnt vmcnt({n})")
        self.q = self.q[idx + 1:]
    def clone(self, a=None):
        o = VmQ(a or self.a); o.q = list(self.q); return o

def lane_expr(a, dst, src, terms, const=0, tmp="v15", sadd=None):
    first = True
    for (sr_, w, sl) in terms:
        a(f"v_bfe_u32 {tmp}, {src}, {sr_}, {w}")
        if first:
            a(f"v_lshlrev_b32 {dst}, {sl}, {tmp}"); first = False
        else:
            a(f"v_lshl_add_u32 {dst}, {tmp}, {sl}, {dst}")
    if const:
        a(f"v_add_u32 {dst}, {const}, {dst}")
    if sadd:
        a(f"v_add_u32 {dst}, {sadd}, {dst}")

def srd(a, d, ptr, nbytes):
    a(f"s_mov_b32 s{d}, s{ptr}")
    a(f"s_and_b32 s{d+1}, s{ptr+1}, 0xffff")
    a(f"s_mov_b32 s{d+2}, {hex(nbytes)}")
    a(f"s_mov_b32 s{d+3}, 0x00020000")

def sexpr(a, dst, terms, const=0, tmp=49):
    first = True
    for (reg, sr_, w, sl) in terms:
        t = dst if first else tmp
        a(f"s_bfe_u32 s{t}, s{reg}, {hex(sr_ | (w << 16))}")
        if sl: a(f"s_lshl_b32 s{t}, s{t}, {sl}")
        if not first: a(f"s_add_u32 s{dst}, s{dst}, s{t}")
        first = False
    if const: a(f"s_add_u32 s{dst}, s{dst}, {hex(const)}")

class LQ:
    def __init__(s): s.q = []
    def issue(s, tag): s.q.append(tag)
    def wait(s, tag):
        idx = max(i for i, t in enumerate(s.q) if t == tag)
        n = min(len(s.q) - 1 - idx, 15)
        s.q = s.q[idx + 1:]
        return f"s_waitcnt lgkmcnt({n})"

def dbg_arrive(a, idx, va="v24", vb="v25", soff=None):
    a(f"v_mov_b32 {va}, {('s%d' % soff) if soff is not None else 0}")
    a(f"v_mov_b32 {vb}, 1")
    a("s_mov_b64 exec, 1")
    a(f"global_atomic_add {va}, {vb}, {sr(S_DBG,2)} offset:{4*idx}")
    a("s_mov_b64 exec, -1")

def dbg_wait(a, idx, target, va="v24", vb="v25", st=48, sc=49, soff=None, limit=100000, sleep=8):
    l = a.uid("dw")
    a(f"s_cmp_lg_u32 s{S_W}, 0")
    a(f"s_cbranch_scc1 {l}_ok")
    a(f"v_mov_b32 {va}, {('s%d' % soff) if soff is not None else 0}")
    a(f"s_mov_b32 s{sc}, 0")
    a("s_mov_b64 exec, 1")
    a.label(l)
    a(f"global_load_dword {vb}, {va}, {sr(S_DBG,2)} offset:{4*idx} sc1")
    a("s_waitcnt vmcnt(0)")
    a(f"v_readfirstlane_b32 s{st}, {vb}")
    a(f"s_cmp_ge_u32 s{st}, {target}")
    a(f"s_cbranch_scc1 {l}_x")
    a(f"s_sleep {sleep}")
    a(f"s_add_u32 s{sc}, s{sc}, 1")
    a(f"s_cmp_lt_u32 s{sc}, {limit}")
    a(f"s_cbranch_scc1 {l}")
    a.label(l + "_x")
    a("s_mov_b64 exec, -1")
    a.label(l + "_ok")
    a("s_barrier")

def f32bits(x):
    import struct
    return hex(struct.unpack('<I', struct.pack('<f', x))[0])

def tstamp(a, opt, idx):
    if "time" in opt:
        a("s_memrealtime s[70:71]")
        a("s_waitcnt lgkmcnt(0)")
        a(f"v_writelane_b32 v143, s70, {idx}")
```

```python
from common import *
S_GID = 16
def emit_gemm(a, opt=()):
    a.c("==== G role: s3 = team (1:K, 2:V, 3:Q), s14 = head ====")
    LE = lambda *x, **k: lane_expr(a, *x, tmp="v31", **k)
    S_OUT, S_OUT2, S_STR, S_HS, S_M0, S_SEG, S_FL, S_HT, S_DONE = 17, 18, 19, 20, 21, 22, 23, 24, 25
    a("s_load_dwordx2 s[32:33], s[0:1], 24")
    a("s_load_dwordx2 s[34:35], s[0:1], 32")
    a("s_load_dwordx2 s[36:37], s[0:1], 16")
    a(f"s_lshl_b32 s{S_FL}, s{S_GID}, 7")
    a(f"s_add_u32 s{S_FL}, s{S_FL}, {hex(WS_FLAG)}")
    a("v_and_b32 v4, 63, v0")
    a("v_cmp_eq_u32 vcc, 0, v4")
    a("v_mov_b32 v3, 0x40000000")
    a("s_nop 0")
    a("v_cndmask_b32 v3, v3, 0, vcc")
    a("v_mov_b32 v4, 0")
    a(f"buffer_store_dword v4, v3, {sr(S_WS,4)}, s{S_FL} offen sc1")
    a("s_waitcnt lgkmcnt(0)")
    a(f"s_cmp_eq_u32 s{S_TEAM}, 2")
    a("s_cselect_b32 s32, s34, s32"); a("s_cselect_b32 s33, s35, s33")
    a(f"s_cmp_eq_u32 s{S_TEAM}, 3")
    a("s_cselect_b32 s32, s36, s32"); a("s_cselect_b32 s33, s37, s33")
    srd(a, S_T, 32, 4194304)
    LE("v28", "v0", [(4, 2, 5)])
    LE("v29", "v0", [(0, 4, 4)])
    a("v_xor_b32 v28, v28, v29")
    LE("v30", "v0", [(4, 2, 13)])
    a("v_add_u32 v5, v28, v30")
    a("v_xor_b32 v6, 128, v5")
    sexpr(a, 50, [(S_H, 0, 5, 8), (S_W, 0, 2, 20)])
    sexpr(a, 51, [(S_W, 0, 2, 15)])
    for i in range(32):
        a(f"s_add_u32 m0, s51, {i * 1024}")
        a(f"s_add_u32 s48, s50, {hex(4 * i * 8192)}")
        a(f"buffer_load_dwordx4 v{5 + ((i >> 1) & 1)}, {sr(S_T,4)}, s48 offen lds")
    LE("v1", "v0", [(0, 6, 4)])
    for i in range(4): a(f"v_mov_b32 v{12+i}, -1")
    a(f"s_lshl_b32 s48, s{S_GID}, 2"); a(f"s_add_u32 s48, s48, s{S_W}")
    a(f"s_mul_i32 s48, s48, {22*1024}"); a(f"s_add_u32 s48, s48, {hex(WS_KM)}")
    for i in range(22):
        a(f"buffer_store_dwordx4 v[12:15], v1, {sr(S_WS,4)}, s48 offen offset:{1024*(i%4)} sc1")
        if i % 4 == 3: a("s_add_u32 s48, s48, 4096")
    LE("v28", "v0", [(4, 2, 11), (2, 2, 8), (0, 1, 3)])
    LE("v29", "v0", [(6, 2, 6), (1, 1, 4)])
    LE("v30", "v0", [(2, 2, 5), (4, 1, 7)])
    a("v_xor_b32 v29, v29, v30")
    a("v_add_u32 v8, v28, v29")
    a("v_xor_b32 v9, 32, v8")
    a("v_add_u32 v10, 0x10000, v8")
    a("v_add_u32 v11, 0x10000, v9")
    a("s_waitcnt vmcnt(0)")
    a("s_barrier")
    a(f"s_cmp_lg_u32 s{S_W}, 0")
    a("s_cbranch_scc1 G_noarr")
    dbg_arrive(a, D_INIT)
    a.label("G_noarr")
    W = lambda t, ks, off=0, n=4: ar((t * 16 + ks) * 4 + off, n)
    for ks in range(16):
        for t in range(2):
            for u in range(2):
                off = ((32 * ks + 4 * u) * 256) % 65536
                a(f"ds_read_b64_tr_b16 {W(t, ks, 2*u, 2)}, v{8 + t + 2 * (ks // 8)} offset:{off}")
    a(f"s_mul_i32 s48, s{S_H}, {HSTR}")
    a(f"s_mul_i32 s50, s{S_H}, {QSTR}")
    a(f"s_cmp_eq_u32 s{S_TEAM}, 1")
    a("s_cbranch_scc0 G_notk")
    sexpr(a, S_OUT, [(S_W, 1, 1, 12), (S_W, 0, 1, 10)], WS_KV)
    a(f"s_add_u32 s{S_OUT}, s{S_OUT}, s48")
    a(f"s_add_u32 s{S_OUT2}, s{S_OUT}, 8192")
    a(f"s_mov_b32 s{S_STR}, 16384")
    a("s_branch G_addr")
    a.label("G_notk")
    a(f"s_cmp_eq_u32 s{S_TEAM}, 2")
    a("s_cbranch_scc0 G_notv")
    sexpr(a, S_OUT, [(S_W, 0, 2, 12)], WS_KV + 2048)
    a(f"s_add_u32 s{S_OUT}, s{S_OUT}, s48")
    a(f"s_add_u32 s{S_OUT2}, s{S_OUT}, 1024")
    a(f"s_mov_b32 s{S_STR}, 16384")
    a("s_branch G_addr")
    a.label("G_notv")
    sexpr(a, S_OUT, [(S_W, 0, 2, 10)], WS_QX)
    a(f"s_add_u32 s{S_OUT}, s{S_OUT}, s50")
    a(f"s_add_u32 s{S_OUT2}, s{S_OUT}, 4096")
    a(f"s_mov_b32 s{S_STR}, 8192")
    a.label("G_addr")
    LE("v1", "v0", [(0, 6, 4)])
    sexpr(a, S_HS, [(S_W, 0, 2, 13)], WS_H)
    sexpr(a, S_M0, [(S_W, 0, 2, 13)])
    a("s_waitcnt lgkmcnt(0)")
    tstamp(a, opt, 16)
    dbg_wait(a, D_LN1, N_LN1, sleep=6)
    tstamp(a, opt, 17)
    def dma_list():
        L = []
        for half in range(2):
            for i in range(4):
                pre_ = [f"s_add_u32 m0, s{S_M0}, {half * 4096}", f"s_add_u32 s{S_HT}, s{S_HS}, {half * 4096}"] if i == 0 else []
                L.append(pre_ + [f"buffer_load_dwordx4 v1, {sr(S_WS,4)}, s{S_HT} offen offset:{1024*i} sc1 lds"])
        L[-1] += [f"s_add_u32 s{S_HS}, s{S_HS}, 32768", f"s_add_u32 s{S_M0}, s{S_M0}, 32768", f"s_and_b32 s{S_M0}, s{S_M0}, 0x1ffff"]
        return L
    for _ in range(3):
        for grp in dma_list():
            for x in grp: a(x)
    a(f"s_mov_b32 s{S_SEG}, 0")
    a(f"s_mov_b32 s{S_DONE}, 0")
    a("v_mov_b32 v2, v1")
    a("s_waitcnt vmcnt(16)")
    a(f"s_cmp_eq_u32 s{S_TEAM}, 2")
    a("s_cbranch_scc1 G_loopV")
    for var in ("K", "V"):
        a.raw(".p2align 6")
        a.label(f"G_loop{var}")
        a("s_barrier")
        lq = LQ()
        HB = lambda rt, ks: 32 + ((ks % 4) * 2 + rt) * 4
        def rd(ks):
            for rt in range(2):
                a(f"ds_read_b128 {vr(HB(rt, ks),4)}, v2 offset:{(rt * 16 + ks) * 1024}"); lq.issue(ks)
        for ks in range(3): rd(ks)
        a(f"s_cmp_lg_u32 s{S_W}, 0")
        a(f"s_cbranch_scc1 G_nf{var}")
        a(f"v_mov_b32 v4, s{S_DONE}")
        a(f"buffer_store_dword v4, v3, {sr(S_WS,4)}, s{S_FL} offen sc1")
        a.label(f"G_nf{var}")
        dl = dma_list()
        AC = lambda rt, t: 16 + (rt * 2 + t) * 4 if var == "K" else 16 + (t * 2 + rt) * 4
        for ks in range(16):
            a(lq.wait(ks))
            n = 0
            for rt in range(2):
                for t in range(2):
                    d = vr(AC(rt, t), 4)
                    c = d if ks else "0"
                    if var == "K": a(f"v_mfma_f32_16x16x32_bf16 {d}, {W(t, ks)}, {vr(HB(rt, ks),4)}, {c}")
                    else: a(f"v_mfma_f32_16x16x32_bf16 {d}, {vr(HB(rt, ks),4)}, {W(t, ks)}, {c}")
                    if n == 0 and ks + 3 < 16: rd(ks + 3)
                    if n == 2 and ks % 2 == 0:
                        for x in dl[ks // 2]: a(x)
                    n += 1
        a("v_add_u32 v2, 0x8000, v2")
        a("v_and_b32 v2, 0x1ffff, v2")
        a(f"s_mov_b32 s{S_DONE}, s{S_SEG}")
        a(f"s_add_u32 s{S_SEG}, s{S_SEG}, 1")
        a("s_nop 0")
        for i in range(4): a(f"v_cvt_pk_bf16_f32 v{64+i}, v{16+2*i}, v{17+2*i}")
        a(f"buffer_store_dwordx4 v[64:67], v1, {sr(S_WS,4)}, s{S_OUT} offen sc1")
        for i in range(4): a(f"v_cvt_pk_bf16_f32 v{68+i}, v{24+2*i}, v{25+2*i}")
        a(f"buffer_store_dwordx4 v[68:71], v1, {sr(S_WS,4)}, s{S_OUT2} offen sc1")
        a(f"s_add_u32 s{S_OUT}, s{S_OUT}, s{S_STR}")
        a(f"s_add_u32 s{S_OUT2}, s{S_OUT2}, s{S_STR}")
        a("s_waitcnt vmcnt(10)")
        a(f"s_cmp_eq_u32 s{S_SEG}, {N_LN1//2-3}")
        a(f"s_cbranch_scc1 G_first{var}")
        a(f"s_cmp_eq_u32 s{S_SEG}, 2")
        a(f"s_cbranch_scc1 G_second{var}")
        a(f"s_cmp_lt_u32 s{S_SEG}, 64")
        a(f"s_cbranch_scc1 G_loop{var}")
        a("s_branch G_fin")
        a.label(f"G_first{var}")
        dbg_wait(a, D_LN2, 128 - N_LN1, sleep=6)
        a(f"s_branch G_loop{var}")
        a.label(f"G_second{var}")
        a("s_waitcnt vmcnt(0)")
        a(f"s_mov_b32 s{S_DONE}, 2")
        tstamp(a, opt, 18)
        a(f"s_branch G_loop{var}")
    a.label("G_fin")
    a("s_waitcnt vmcnt(0)")
    a("s_barrier")
    a("v_mov_b32 v4, 64")
    a(f"buffer_store_dword v4, v3, {sr(S_WS,4)}, s{S_FL} offen sc1")
    a("s_waitcnt vmcnt(0)")
```

```python
from common import *
from pre import rnd1, rnd2, MASK, S_TID, xsum_g
import math

S_X, S_O = 20, 24
S_SEG, S_TAG, S_PC, S_PMAX, S_SC, S_L2E = 28, 29, 30, 31, 18, 19
S_P1S, S_P1L, S_P1S2 = 52, 53, 54
S_SLOT, S_PSLOT = 55, 56
S_H2B, S_H2O, S_ACTW, S_ACTR = 57, 58, 59, 60
S_KV, S_Q, S_KM, S_KMV, S_ROW, S_OUT, S_FLG, S_HAVE, S_X2R = 61, 62, 63, 64, 65, 66, 67, 68, 69
S_MKV, S_MQ = 72, 73
vL16, vCol, vP, vKw, vKr, vHg, vHw, vHr, vOw, vZero, vQr, vVr, vEw, vEr, vEo = ["v%d" % i for i in range(1, 16)]
MC = 16
BIAS, SEL = 24, 32
vX2g = "v36"
XR = 37
T0, T1, T2 = 38, 39, 40
L_K, L_O, L_ST, L_E, L_KV, L_Q, L_H = 0, 4096, 12288, 16384, 24576, 40960, 49152
FS, RTS = 1088, 17408
WoF = lambda ct, ks, off=0, n=4: ar((ct * 4 + ks) * 4 + off, n)
GF = lambda m, ks, off=0, n=4: ar(128 + (m * 16 + ks) * 4 + off, n)
DF = lambda t, ks, off=0, n=4: vr(144 + (t * 14 + ks) * 4 + off, n)

def wave_sum(a, x, t):
    a("s_nop 1")
    for ror in (1, 2, 4, 8):
        a(f"v_add_f32_dpp v{x}, v{x}, v{x} row_ror:{ror} row_mask:0xf bank_mask:0xf")
        if ror < 8: a("s_nop 1")
    xsum_g(a, x, t)

def emit_post_addr(a):
    LE = lambda *x, **k: lane_expr(a, *x, tmp="v47", **k)
    WS = sr(S_WS, 4)
    LE(vL16, "v0", [(0, 6, 4)])
    LE(vCol, "v0", [(6, 2, 8), (2, 2, 6), (5, 1, 5), (0, 2, 3), (4, 1, 2)])
    LE(vP, "v0", [(0, 4, 15), (4, 2, 4)])
    LE(vKw, "v0", [(6, 2, 10), (0, 4, 5), (4, 2, 3)], L_K)
    LE(vKr, "v0", [(0, 6, 3)], L_K)
    LE(vHg, "v0", [(4, 2, 11), (6, 2, 8), (0, 4, 4)])
    LE("v48", "v0", [(6, 2, 2), (2, 2, 0)])
    a(f"v_mul_u32_u24 {vHw}, {FS}, v48")
    a("v_and_b32 v48, 3, v0"); a("v_mul_u32_u24 v48, 272, v48"); a(f"v_add_u32 {vHw}, {vHw}, v48")
    LE("v48", "v0", [(4, 2, 4)], L_H); a(f"v_add_u32 {vHw}, {vHw}, v48")
    a("v_bfe_u32 v48, v0, 4, 2"); a(f"v_mul_u32_u24 {vHr}, 272, v48")
    LE("v48", "v0", [(0, 4, 4)], L_H); a(f"v_add_u32 {vHr}, {vHr}, v48")
    LE(vOw, "v0", [(6, 1, 12), (7, 1, 11), (0, 6, 4)], L_O)
    a(f"v_mov_b32 {vZero}, 0")
    LE(vQr, "v0", [(6, 1, 12), (0, 6, 4)], L_Q)
    LE(vVr, "v0", [(7, 1, 13), (0, 6, 4)], L_KV + 2048)
    LE(vEw, "v0", [(6, 2, 11), (0, 6, 4)], L_E)
    LE(vEr, "v0", [(3, 1, 10), (1, 2, 8), (4, 4, 4), (0, 1, 3)], L_E)
    LE(vEo, "v0", [(4, 4, 10), (0, 4, 2)])
    LE(vX2g, "v0", [(4, 4, 11), (0, 4, 2)])
    a(f"s_sub_u32 s50, s{S_TEAM}, 4")
    sexpr(a, S_P1S, [(50, 0, 2, 20), (S_W, 0, 2, 13), (S_H, 0, 5, 8)], WS_P1)
    a(f"s_add_u32 s{S_P1S2}, s{S_P1S}, {16*32768}")
    sexpr(a, S_P1L, [(50, 0, 2, 20), (S_H, 0, 5, 15), (S_W, 0, 2, 13)], WS_P1)
    sexpr(a, S_H2B, [(50, 0, 2, 18)], WS_H2)
    sexpr(a, S_H2O, [(50, 0, 2, 18), (S_H, 0, 5, 11)], WS_H2)
    sexpr(a, S_X2R, [(50, 0, 2, 18), (S_H, 0, 1, 15), (S_H, 1, 4, 6)], WS_H2 + 1024)
    sexpr(a, S_ACTW, [(50, 0, 2, 19), (S_H, 0, 5, 11), (S_W, 1, 1, 10), (S_W, 0, 1, 3)], WS_ACT)
    a(f"s_and_b32 s48, s{S_H}, 1"); a(f"s_mul_i32 s48, s48, {56*1024}")
    a(f"s_mul_i32 s51, s{S_W}, {14*1024}"); a("s_add_u32 s48, s48, s51")
    sexpr(a, S_ACTR, [(50, 0, 2, 19)], WS_ACT); a(f"s_add_u32 s{S_ACTR}, s{S_ACTR}, s48")

def emit_post_weights(a, opt):
    LE = lambda *x, **k: lane_expr(a, *x, tmp="v47", **k)
    WS = sr(S_WS, 4)
    a.c("==== T role: team-buffer init + stationary weights ====")
    a("s_load_dwordx2 s[34:35], s[0:1], 40")
    a("s_load_dwordx4 s[36:39], s[0:1], 64")
    a("s_load_dwordx2 s[40:41], s[0:1], 80")
    emit_post_addr(a)
    for i in range(2): a(f"v_mov_b32 v{48+i}, -1")
    for i in range(4): a(f"v_mov_b32 v{52+i}, 0")
    for half in range(2):
        a(f"s_add_u32 s48, s{S_P1L}, {half*4096}")
        for k in range(4):
            a(f"buffer_store_dwordx4 v[52:55], {vL16}, {WS}, s48 offen offset:{1024*k} sc1")
    for sl in range(3):
        a(f"s_add_u32 s48, s{S_H2O}, {sl*65536}")
        a(f"buffer_store_dword v48, {vCol}, {WS}, s48 offen sc1")
        a(f"buffer_store_dword v48, {vCol}, {WS}, s48 offen offset:1024 sc1")
    a(f"s_cmp_ge_u32 s{S_H}, 28")
    a("s_cbranch_scc1 T_nopa")
    for sl in range(3):
        for rt in range(2):
            a(f"s_add_u32 s48, s{S_ACTW}, {sl*131072 + rt*56*1024}")
            a(f"buffer_store_dwordx2 v[48:49], {vL16}, {WS}, s48 offen sc1")
    a.label("T_nopa")
    a("s_waitcnt lgkmcnt(0)")
    a("s_barrier")
    LE("v60", "v0", [(4, 2, 5)])
    LE("v61", "v0", [(0, 4, 4)])
    a("v_xor_b32 v60, v60, v61")
    LE("v61", "v0", [(4, 2, 10)])
    a("v_add_u32 v62, v60, v61")
    a("v_xor_b32 v63, 128, v62")
    LE("v64", "v0", [(6, 2, 15), (2, 4, 8), (1, 1, 4), (2, 3, 5), (0, 1, 3)])
    sexpr(a, 51, [(S_W, 0, 2, 15)])
    srd(a, S_T, 34, 4194304)
    sexpr(a, 50, [(S_H, 0, 5, 17), (S_W, 0, 2, 8)])
    for i in range(32):
        a(f"s_add_u32 m0, s51, {i * 1024}")
        a(f"s_add_u32 s48, s50, {4 * i * 1024}")
        a(f"buffer_load_dwordx4 v{62 + (i & 1)}, {sr(S_T,4)}, s48 offen lds")
    a("s_waitcnt vmcnt(0)")
    for ct in range(8):
        a(f"v_xor_b32 v65, {32 * ct}, v64")
        for ks in range(4):
            for u in range(2):
                a(f"ds_read_b64_tr_b16 {WoF(ct, ks, 2*u, 2)}, v65 offset:{(32*ks + 16*u) * 256}")
    a("s_waitcnt lgkmcnt(0)")
    LE("v60", "v0", [(2, 4, 10)])
    LE("v61", "v0", [(0, 2, 4)])
    LE("v62", "v0", [(4, 1, 5)])
    a("v_xor_b32 v61, v61, v62")
    a("v_add_u32 v62, v60, v61")
    srd(a, S_T, 40, 1792 * 1024)
    a(f"s_mul_i32 s50, s{S_W}, {448*1024}")
    sexpr(a, 48, [(S_H, 1, 4, 6)]); a("s_add_u32 s50, s50, s48")
    for i in range(28):
        a(f"s_add_u32 m0, s51, {i * 1024}")
        a(f"s_add_u32 s48, s50, {16 * i * 1024}")
        a(f"buffer_load_dwordx4 v62, {sr(S_T,4)}, s48 offen lds")
    LE("v64", "v0", [(6, 2, 15), (2, 4, 6), (1, 1, 4), (4, 1, 5), (0, 1, 3)])
    a("v_xor_b32 v65, 32, v64")
    a("s_waitcnt vmcnt(0)")
    for t in range(2):
        for ks in range(14):
            for u in range(2):
                a(f"ds_read_b64_tr_b16 {DF(t, ks, 2*u, 2)}, v{64+t} offset:{(32*ks + 16*u) * 64}")
    a("s_waitcnt lgkmcnt(0)")
    a("s_barrier")
    a(f"s_cmp_lg_u32 s{S_W}, 0")
    a("s_cbranch_scc1 T_noarr")
    a(f"s_sub_u32 s48, s{S_TEAM}, 4"); a("s_lshl_b32 s48, s48, 2")
    dbg_arrive(a, D_TTB, "v44", "v45", soff=48)
    a.label("T_noarr")
    a(f"s_cmp_ge_u32 s{S_H}, 28")
    a("s_cbranch_scc1 T_now")
    a("v_bfe_u32 v60, v0, 3, 3")
    a("v_mul_u32_u24 v60, 3584, v60")
    LE("v61", "v0", [(0, 3, 4)])
    LE("v62", "v0", [(4, 1, 5)])
    a("v_xor_b32 v61, v61, v62")
    a("v_add_u32 v62, v60, v61")
    a("v_xor_b32 v63, 64, v61")
    a("v_add_u32 v63, v60, v63")
    a(f"s_mul_i32 s50, s{S_W}, {128*3584}")
    a(f"s_lshl_b32 s48, s{S_H}, 7")
    a("s_add_u32 s50, s50, s48")
    sexpr(a, 51, [(S_W, 0, 2, 14)])
    for m in range(2):
        srd(a, S_T, 36 + 2 * m, 512 * 3584)
        for i in range(16):
            a(f"s_add_u32 m0, s51, {m * 65536 + i * 1024}")
            a(f"s_add_u32 s48, s50, {8 * i * 3584}")
            a(f"buffer_load_dwordx4 v{62 + (i & 1)}, {sr(S_T,4)}, s48 offen lds")
    LE("v60", "v0", [(4, 2, 10), (2, 2, 7), (0, 1, 3)])
    LE("v61", "v0", [(6, 2, 5), (1, 1, 4)])
    LE("v64", "v0", [(3, 1, 5), (4, 1, 6)])
    a("v_xor_b32 v61, v61, v64")
    a("v_add_u32 v64, v60, v61")
    a("v_add_u32 v65, 0x10000, v64")
    a("s_waitcnt vmcnt(0)")
    a("s_barrier")
    for m in range(2):
        for ks in range(16):
            for u in range(2):
                a(f"ds_read_b64_tr_b16 {GF(m, ks, 2*u, 2)}, v{64+m} offset:{(32*ks + 4*u) * 128}")
    a("s_waitcnt lgkmcnt(0)")
    a.label("T_now")
    a("s_barrier")

def emit_post_final(a, opt):
    LE = lambda *x, **k: lane_expr(a, *x, tmp="v47", **k)
    WS = sr(S_WS, 4)
    a("s_load_dwordx2 s[32:33], s[0:1], 0")
    a("s_load_dwordx2 s[42:43], s[0:1], 104")
    a(f"s_mov_b32 s{MASK}, 0xffff0000")
    emit_post_addr(a)
    dbg_wait(a, D_MOD2, 64, "v44", "v45")
    a(f"s_mov_b32 s48, {hex(WS_MOD + 2048)}")
    for i, k in enumerate((0, 2, 1)):
        a(f"buffer_load_dword v{56+i}, {vCol}, {WS}, s48 offen offset:{1024*k} sc1")
    LE("v60", "v0", [(0, 4, 2)])
    sexpr(a, 48, [(S_H, 1, 4, 6)], WS_MOD + 5 * 1024)
    a(f"buffer_load_dword v59, v60, {WS}, s48 offen sc1")
    a("s_waitcnt vmcnt(0) lgkmcnt(0)")
    for i in range(4):
        a(f"v_lshlrev_b32 v{MC+2*i}, 16, v{56+i}")
        a(f"v_and_b32 v{MC+2*i+1}, s{MASK}, v{56+i}")
    a(f"v_add_f32 v{MC+2}, 1.0, v{MC+2}"); a(f"v_add_f32 v{MC+3}, 1.0, v{MC+3}")
    rnd2(a, MC + 2, MC + 3, 47)
    srd(a, S_X, 32, 2048 * 1024)
    srd(a, S_O, 42, 2048 * 1024)
    a("v_and_b32 v60, 3, v0"); a("v_bfe_u32 v61, v0, 2, 2")
    a("v_mov_b32 v62, 0x3f80"); a("v_mov_b32 v63, 0x3f800000")
    a("v_cmp_eq_u32 vcc, 1, v60"); a("s_nop 1"); a("v_cndmask_b32 v62, v62, v63, vcc")
    a("v_cmp_gt_u32 vcc, 2, v60"); a("s_nop 1"); a("v_cndmask_b32 v62, 0, v62, vcc")
    for d in range(4):
        a(f"v_cmp_eq_u32 vcc, {d}, v61"); a("s_nop 1"); a(f"v_cndmask_b32 v{SEL+d}, 0, v62, vcc")
    LE("v60", "v0", [(6, 1, 4), (0, 4, 0)])
    LE("v61", "v0", [(4, 2, 2)])
    a(f"v_mov_b32 v63, {f32bits(-1e30)}")
    for t in range(2):
        for r in range(4):
            a(f"v_add_u32 v62, {16*t + r}, v61")
            a("v_cmp_gt_u32 vcc, v62, v60"); a("s_nop 1")
            a(f"v_cndmask_b32 v{BIAS+4*t+r}, 0, v63, vcc")
    a(f"s_sub_u32 s{S_SEG}, s{S_TEAM}, 4")
    a(f"s_mul_i32 s{S_KV}, s{S_H}, {HSTR}")
    sexpr(a, 48, [(S_SEG, 0, 2, 14), (S_W, 0, 2, 12)], WS_KV); a(f"s_add_u32 s{S_KV}, s{S_KV}, s48")
    a(f"s_mul_i32 s{S_Q}, s{S_H}, {QSTR}")
    sexpr(a, 48, [(S_SEG, 0, 2, 13), (S_W, 0, 2, 11)], WS_QX); a(f"s_add_u32 s{S_Q}, s{S_Q}, s48")
    sexpr(a, S_MKV, [(S_W, 0, 2, 12)], L_KV)
    sexpr(a, S_MQ, [(S_W, 0, 2, 11)], L_Q)
    a(f"s_mul_i32 s{S_KM}, s{S_H}, {MSTR}")
    a(f"s_lshl_b32 s48, s{S_SEG}, 12"); a(f"s_add_u32 s{S_KM}, s{S_KM}, s48")
    sexpr(a, 48, [(S_W, 1, 1, 11)], WS_KM); a(f"s_add_u32 s{S_KMV}, s{S_KM}, s48")
    sexpr(a, 48, [(S_W, 0, 2, 10)], WS_KM); a(f"s_add_u32 s{S_KM}, s{S_KM}, s48")
    sexpr(a, S_ROW, [(S_SEG, 0, 2, 15), (S_H, 0, 5, 10)])
    sexpr(a, S_OUT, [(S_SEG, 0, 2, 15), (S_H, 0, 1, 14), (S_H, 1, 4, 6)])
    sexpr(a, S_FLG, [(S_H, 0, 5, 7)], WS_FLAG)
    a(f"s_mov_b32 s{S_HAVE}, 0")
    a(f"s_mov_b32 s{S_TAG}, 1")
    a(f"s_mov_b32 s{S_SLOT}, 0")
    a(f"s_mov_b32 s{S_PSLOT}, 2")
    a(f"s_mov_b32 s{S_PMAX}, 100000")
    a(f"s_mov_b32 s{S_SC}, {f32bits(128 ** -0.5)}")
    a(f"s_mov_b32 s{S_L2E}, {f32bits(math.log2(math.e))}")
    dbg_wait(a, D_INIT, 96, "v44", "v45")
    a(f"s_sub_u32 s50, s{S_TEAM}, 4"); a("s_lshl_b32 s50, s50, 2")
    dbg_wait(a, D_TTB, 32, "v44", "v45", soff=50)

def poll(a, name, loads, check, sleep=3):
    a(f"s_mov_b32 s{S_PC}, 0")
    a.label(name)
    loads()
    check()
    a(f"s_cbranch_vccz {name}_ok")
    a(f"s_sleep {sleep}")
    a(f"s_add_u32 s{S_PC}, s{S_PC}, 1")
    a(f"s_cmp_lt_u32 s{S_PC}, s{S_PMAX}")
    a(f"s_cbranch_scc1 {name}")
    a(f"s_mov_b32 s{S_PMAX}, 1")
    a.label(name + "_ok")

def prefetch(a, name, segreg):
    WS = sr(S_WS, 4)
    a(f"s_cmp_ge_u32 s{segreg}, 64")
    a(f"s_cbranch_scc1 {name}_skip")
    a(f"s_cmp_gt_u32 s{S_HAVE}, s{segreg}")
    a(f"s_cbranch_scc1 {name}_fok")
    a(f"s_mov_b32 s{S_PC}, 0")
    a(f"v_lshlrev_b32 v44, 8, {vL16}")
    a.label(name + "_fl")
    a("s_mov_b64 exec, 7")
    a(f"buffer_load_dword v45, v44, {WS}, s{S_FLG} offen sc1")
    a("s_mov_b64 exec, -1")
    a("s_waitcnt vmcnt(0)")
    a(f"v_readlane_b32 s{S_HAVE}, v45, 0"); a("v_readlane_b32 s48, v45, 1"); a("v_readlane_b32 s49, v45, 2")
    a("s_nop 1")
    a(f"s_min_u32 s{S_HAVE}, s{S_HAVE}, s48"); a(f"s_min_u32 s{S_HAVE}, s{S_HAVE}, s49")
    a(f"s_cmp_gt_u32 s{S_HAVE}, s{segreg}")
    a(f"s_cbranch_scc1 {name}_fok")
    a("s_sleep 8")
    a(f"s_add_u32 s{S_PC}, s{S_PC}, 1")
    a(f"s_cmp_lt_u32 s{S_PC}, s{S_PMAX}")
    a(f"s_cbranch_scc1 {name}_fl")
    a(f"s_mov_b32 s{S_PMAX}, 1")
    a.label(name + "_fok")
    a(f"s_mov_b32 m0, s{S_MKV}"); a("s_nop 0")
    for i in range(4): a(f"buffer_load_dwordx4 {vL16}, {WS}, s{S_KV} offen offset:{1024*i} sc1 lds")
    a(f"s_mov_b32 m0, s{S_MQ}"); a("s_nop 0")
    for i in range(2): a(f"buffer_load_dwordx4 {vL16}, {WS}, s{S_Q} offen offset:{1024*i} sc1 lds")
    a(f"buffer_load_dword v{XR}, {vCol}, {sr(S_X,4)}, s{S_ROW} offen")
    a(f"s_add_u32 s{S_KV}, s{S_KV}, {4*16384}")
    a(f"s_add_u32 s{S_Q}, s{S_Q}, {4*8192}")
    a(f"s_add_u32 s{S_ROW}, s{S_ROW}, {4*32768}")
    a.label(name + "_skip")

def emit_post_loop(a, fast, pfx, opt):
    def geti(p, d):
        for o in opt:
            if o.startswith(p) and o[len(p):].isdigit(): return int(o[len(p):])
        return d
    st = "" if fast else " sc1"
    WS = sr(S_WS, 4)
    QF, KX, VX, KF, SS = 48, 64, 96, 64, 112
    prefetch(a, pfx + "_pf0", S_SEG)
    a("s_waitcnt vmcnt(0)")
    a("s_barrier")
    a.raw(".p2align 6")
    a.label(pfx + "_loop")
    tstamp(a, opt, 0)
    for ks in range(4):
        a(f"ds_read_b128 {vr(QF+4*ks,4)}, {vQr} offset:{1024*ks}")
        for t in range(2):
            i = t * 4 + ks
            a(f"ds_read_b128 {vr(KX+4*i,4)}, {vL16} offset:{L_KV + (i//2)*4096 + (i%2)*1024}")
    for ks in range(4):
        a(f"s_waitcnt lgkmcnt({9-3*ks})")
        for t in range(2):
            d = vr(SS + 4 * t, 4)
            a(f"v_mfma_f32_16x16x32_bf16 {d}, {vr(KX+4*(t*4+ks),4)}, {vr(QF+4*ks,4)}, {d if ks else vr(BIAS+4*t,4)}")
    for i in range(4):
        a(f"ds_read_b128 {vr(VX+4*i,4)}, {vVr} offset:{(i//2)*4096 + (i%2)*1024}")
    a("s_nop 3")
    def scale(regs):
        for i in range(0, len(regs), 2): rnd2(a, regs[i], regs[i+1], T2)
        for r in regs: a(f"v_mul_f32 v{r}, s{S_SC}, v{r}")
        for i in range(0, len(regs), 2): rnd2(a, regs[i], regs[i+1], T2)
    scale(list(range(SS, SS + 8)))
    a(f"v_max3_f32 v41, v{SS}, v{SS+1}, v{SS+2}"); a(f"v_max3_f32 v{T1}, v{SS+3}, v{SS+4}, v{SS+5}")
    a(f"v_max3_f32 v41, v41, v{SS+6}, v{SS+7}"); a(f"v_max_f32 v41, v41, v{T1}")
    tstamp(a, opt, 1)
    KMR, VMR = 124, 126
    def ld():
        a(f"buffer_load_dwordx2 {vr(KMR,2)}, {vL16}, {WS}, s{S_KM} offen sc1")
        a(f"buffer_load_dwordx2 {vr(VMR,2)}, {vL16}, {WS}, s{S_KMV} offen offset:8 sc1")
        a(f"buffer_load_dwordx2 {vr(VMR+2,2)}, {vL16}, {WS}, s{S_KMV} offen offset:1032 sc1")
        a("s_waitcnt vmcnt(0)")
    def ck():
        a(f"v_max3_u32 v{T0}, v{KMR}, v{VMR}, v{VMR+2}")
        a(f"v_cmp_eq_u32 vcc, -1, v{T0}")
        a(f"ds_write2st64_b32 {vKw}, v{KMR}, v{KMR+1} offset1:2")
    poll(a, pfx + "_km", ld, ck, sleep=geti("tk", 4))
    tstamp(a, opt, 2)
    a("s_waitcnt lgkmcnt(0)"); a("s_barrier")
    for ks in range(4):
        for u in range(2):
            a(f"ds_read_b64_tr_b16 {vr(KF+4*ks+2*u,2)}, {vKr} offset:{1024*ks+512*u}")
    PX, PM0, PM1, OC = 80, 84, 86, 48
    a(f"v_mov_b32 v{PM0+1}, 0"); a(f"v_mov_b32 v{PM1}, 0")
    for ks in range(4):
        a(f"s_waitcnt lgkmcnt({6-2*ks})")
        d = vr(SS + 8, 4)
        a(f"v_mfma_f32_16x16x32_bf16 {d}, {vr(KF+4*ks,4)}, {vr(QF+4*ks,4)}, {d if ks else 0}")
    a("s_nop 7")
    scale([SS + 8, SS + 9])
    a(f"v_max3_f32 v41, v41, v{SS+8}, v{SS+9}")
    xsum_g(a, 41, T1, "v_max_f32")
    a(f"v_mul_f32 v41, s{S_L2E}, v41")
    for r in range(10): a(f"v_fma_f32 v{SS+r}, v{SS+r}, s{S_L2E}, -v41")
    for r in range(10): a(f"v_exp_f32 v{SS+r}, v{SS+r}")
    a(f"v_add_f32 v41, v{SS}, v{SS+1}"); a(f"v_add_f32 v{T0}, v{SS+2}, v{SS+3}"); a(f"v_add_f32 v{T1}, v{SS+4}, v{SS+5}")
    a(f"v_add_f32 v{T2}, v{SS+6}, v{SS+7}"); a(f"v_add_f32 v41, v41, v{T0}"); a(f"v_add_f32 v{T1}, v{T1}, v{T2}")
    a(f"v_add_f32 v{T0}, v{SS+8}, v{SS+9}"); a(f"v_add_f32 v41, v41, v{T1}"); a(f"v_add_f32 v41, v41, v{T0}")
    xsum_g(a, 41, T1)
    a("v_rcp_f32 v42, v41")
    a("s_nop 0")
    for r in range(0, 10, 2): a(f"v_pk_mul_f32 {vr(SS+r,2)}, {vr(SS+r,2)}, v[42:43] op_sel_hi:[1,0]")
    for i in range(4): a(f"v_cvt_pk_bf16_f32 v{PX+i}, v{SS+2*i}, v{SS+2*i+1}")
    a(f"v_cvt_pk_bf16_f32 v{PM0}, v{SS+8}, v{SS+9}"); a(f"v_cvt_pk_bf16_f32 v{PM1+1}, v{SS+8}, v{SS+9}")
    for i in range(4):
        a(f"v_mfma_f32_16x16x32_bf16 {vr(OC+4*i,4)}, {vr(VX+4*i,4)}, {vr(PX,4)}, 0")
    for i in range(4):
        a(f"v_mfma_f32_16x16x16_bf16 {vr(OC+4*i,4)}, {vr(VMR+2*(i//2),2)}, {vr((PM0, PM1)[i%2],2)}, {vr(OC+4*i,4)}")
    for i in range(4): a(f"v_cvt_pk_bf16_f32 v{88+i}, v{OC+2*i}, v{OC+2*i+1}")
    a(f"ds_write_b128 {vOw}, v[88:91]")
    a("s_nop 0")
    for i in range(4, 8): a(f"v_cvt_pk_bf16_f32 v{88+i}, v{OC+2*i}, v{OC+2*i+1}")
    a(f"ds_write_b128 {vOw}, v[92:95] offset:1024")
    a("s_waitcnt lgkmcnt(0)"); a("s_barrier")
    OF = 48
    for i in range(8): a(f"ds_read_b128 {vr(OF+4*i,4)}, {vL16} offset:{L_O+1024*i}")
    tstamp(a, opt, 3)
    jobs = [(cq, rt) for rt in range(2) for cq in range(4)]
    def epi(n):
        cq, rt = jobs[n]; ac = 112 + (n % 2) * 8; g = 128 + (n % 2) * 4
        return [f"v_cvt_pk_bf16_f32 v{g+i}, v{ac+2*i}, v{ac+2*i+1}" for i in range(4)] + [f"v_and_or_b32 v{g}, v{g}, -2, s{S_TAG}",
                f"buffer_store_dwordx4 {vr(g,4)}, {vP}, {WS}, s{(S_P1S, S_P1S2)[rt]} offen offset:{64*cq}{st}"]
    for n, (cq, rt) in enumerate(jobs):
        ac = 112 + (n % 2) * 8
        e = epi(n - 1) if n else []
        k = 0
        for ks in range(4):
            if n == 0: a(f"s_waitcnt lgkmcnt({7-ks})")
            if n == 4 and ks == 0: a("s_waitcnt lgkmcnt(0)")
            for u in range(2):
                d = vr(ac + 4 * u, 4)
                a(f"v_mfma_f32_16x16x32_bf16 {d}, {WoF(2*cq+u, ks)}, {vr(OF+4*(rt*4+ks),4)}, {d if ks else 0}")
                k += 1
                if k >= 2:
                    for x in e[2*(k-2):2*(k-1)]: a(x)
    a("s_nop 7")
    for x in epi(7): a(x)
    tstamp(a, opt, 4)
    if geti("t1", 4): a(f"s_sleep {geti('t1', 4)}")
    R = 48
    def ld():
        for i in range(8):
            if i % 4 == 0: a(f"s_add_u32 s48, s{S_P1L}, {(i//4)*4096}")
            a(f"buffer_load_dwordx4 {vr(R+4*i,4)}, {vL16}, {WS}, s48 offen offset:{1024*(i%4)} sc1")
    def ck():
        for i in range(8):
            a(f"s_waitcnt vmcnt({7-i})")
            a(f"v_mfma_f32_16x16x32_bf16 v[112:115], {vr(SEL,4)}, {vr(R+4*i,4)}, {'v[112:115]' if i else 0}")
            a(f"v_xor_b32 v{T1 if i else T0}, s{S_TAG}, v{R+4*i}")
            if i: a(f"v_or_b32 v{T0}, v{T0}, v{T1}")
        a(f"v_and_b32 v{T0}, 1, v{T0}")
        a(f"v_cmp_ne_u32 vcc, 0, v{T0}")
        a(f"v_lshlrev_b32 v116, 16, v{XR}"); a(f"v_and_b32 v117, s{MASK}, v{XR}")
        a(f"s_lshl_b32 s48, s{S_W}, 3"); a("v_mov_b32 v43, s48")
    poll(a, pfx + "_r1", ld, ck, sleep=2)
    tstamp(a, opt, 5)
    rnd2(a, 112, 113, T0)
    a(f"v_mul_f32 v112, v{MC}, v112"); a(f"v_mul_f32 v113, v{MC+1}, v113")
    rnd2(a, 112, 113, T0)
    a("v_add_f32 v116, v116, v112"); a("v_add_f32 v117, v117, v113")
    rnd2(a, 116, 117, 118)
    a(f"s_lshl_b32 s49, s{S_SLOT}, 16"); a(f"s_add_u32 s50, s{S_H2O}, s49")
    a(f"buffer_store_dword v118, {vCol}, {WS}, s50 offen offset:1024{st}")
    a("v_add_f32 v120, v116, v117")
    wave_sum(a, 120, T1)
    a(f"v_mul_f32 v120, {f32bits(1/128)}, v120")
    a("v_sub_f32 v112, v116, v120"); a("v_sub_f32 v113, v117, v120")
    a("v_mul_f32 v121, v112, v112"); a("v_fmac_f32 v121, v113, v113")
    wave_sum(a, 121, T1)
    a(f"ds_write_b64 v43, v[120:121] offset:{L_ST}")
    a("s_waitcnt lgkmcnt(0)"); a("s_barrier")
    a(f"ds_read_b128 v[124:127], {vZero} offset:{L_ST}")
    a(f"ds_read_b128 v[128:131], {vZero} offset:{L_ST+16}")
    a("s_waitcnt lgkmcnt(0)")
    a("v_add_f32 v120, v124, v126"); a("v_add_f32 v121, v128, v130"); a("v_add_f32 v120, v120, v121")
    a("v_mul_f32 v120, 0.25, v120")
    a("v_add_f32 v122, v125, v127"); a("v_add_f32 v123, v129, v131"); a("v_add_f32 v122, v122, v123")
    for r in (124, 126, 128, 130): a(f"v_sub_f32 v{r}, v{r}, v120")
    a("v_mul_f32 v123, v124, v124")
    for r in (126, 128, 130): a(f"v_fmac_f32 v123, v{r}, v{r}")
    a(f"v_mul_f32 v122, {f32bits(1/512)}, v122")
    a("v_fmac_f32 v122, 0.25, v123")
    rnd1(a, 120); rnd1(a, 122)
    a(f"v_add_f32 v122, {f32bits(1e-5)}, v122"); rnd1(a, 122)
    a("v_sqrt_f32 v122, v122")
    a("v_sub_f32 v112, v116, v120"); a("v_sub_f32 v113, v117, v120")
    rnd1(a, 122)
    a("v_rcp_f32 v122, v122")
    rnd2(a, 112, 113, T0)
    a("v_mul_f32 v112, v112, v122"); a("v_mul_f32 v113, v113, v122")
    rnd2(a, 112, 113, T0)
    a(f"v_mul_f32 v112, v112, v{MC+2}"); a(f"v_mul_f32 v113, v113, v{MC+3}")
    rnd2(a, 112, 113, T0)
    a(f"v_add_f32 v112, v112, v{MC+4}"); a(f"v_add_f32 v113, v113, v{MC+5}")
    a(f"v_cvt_pk_bf16_f32 v{T0}, v112, v113")
    a(f"buffer_store_dword v{T0}, {vCol}, {WS}, s50 offen{st}")
    tstamp(a, opt, 6)
    a(f"s_lshl_b32 s48, s{S_PSLOT}, 16"); a(f"s_add_u32 s48, s{S_H2O}, s48")
    a("v_mov_b32 v42, -1"); a("v_mov_b32 v43, -1")
    a(f"buffer_store_dword v42, {vCol}, {WS}, s48 offen{st}")
    a(f"buffer_store_dword v42, {vCol}, {WS}, s48 offen offset:1024{st}")
    a(f"s_add_u32 s51, s{S_SEG}, 4")
    a(f"s_cmp_ge_u32 s{S_H}, 28")
    a(f"s_cbranch_scc1 {pfx}_noffn")
    HR = 48
    a(f"s_add_u32 s50, s{S_H2B}, s49")
    def ld():
        for i in range(8):
            a(f"s_add_u32 s48, s50, {i*8192}")
            a(f"buffer_load_dwordx4 {vr(HR+4*i,4)}, {vHg}, {WS}, s48 offen sc1")
    def ck():
        for i in range(8):
            a(f"s_waitcnt vmcnt({7-i})")
            a(f"ds_write_b128 {vHw}, {vr(HR+4*i,4)} offset:{(i//4)*RTS + (i%4)*64}")
            if i: a(f"v_max_u32 v{T0}, v{T0 if i > 1 else HR}, v{HR+4*i}")
        a(f"v_cmp_eq_u32 vcc, -1, v{T0}")
    if geti("t2", 2): a(f"s_sleep {geti('t2', 2)}")
    poll(a, pfx + "_h2", ld, ck, sleep=2)
    tstamp(a, opt, 7)
    a("s_waitcnt lgkmcnt(0)"); a("s_barrier")
    lq = LQ()
    HB = lambda rt, ks: 80 + ((ks % 4) * 2 + rt) * 4
    def rd(ks):
        for rt in range(2):
            a(f"ds_read_b128 {vr(HB(rt, ks),4)}, {vHr} offset:{rt*RTS + ks*FS}"); lq.issue(ks)
    for ks in range(3): rd(ks)
    prefetch(a, pfx + "_pf1", 51)
    for ks in range(16):
        a(lq.wait(ks))
        n = 0
        for rt in range(2):
            for m in range(2):
                d = vr(112 + (rt * 2 + m) * 4, 4)
                a(f"v_mfma_f32_16x16x32_bf16 {d}, {GF(m, ks)}, {vr(HB(rt, ks),4)}, {d if ks else 0}")
                if n == 0 and ks + 3 < 16: rd(ks + 3)
                n += 1
    a(f"s_lshl_b32 s48, s{S_SLOT}, 17"); a(f"s_add_u32 s48, s{S_ACTW}, s48"); a(f"s_add_u32 s50, s48, {56*1024}")
    a("s_nop 0")
    for rt in range(2):
        g0 = 112 + rt * 8; u0 = g0 + 4
        for j in (0, 2): rnd2(a, g0 + j, g0 + j + 1, T0)
        for j in (0, 2): rnd2(a, u0 + j, u0 + j + 1, T0)
        for j in range(4): a(f"v_mul_f32 v{g0+j}, v{g0+j}, v{u0+j}")
        a(f"v_cvt_pk_bf16_f32 v{128+2*rt}, v{g0}, v{g0+1}"); a(f"v_cvt_pk_bf16_f32 v{129+2*rt}, v{g0+2}, v{g0+3}")
        a(f"buffer_store_dwordx2 {vr(128+2*rt,2)}, {vL16}, {WS}, s{(48, 50)[rt]} offen{st}")
    a(f"s_lshl_b32 s48, s{S_PSLOT}, 17"); a(f"s_add_u32 s48, s{S_ACTW}, s48"); a(f"s_add_u32 s50, s48, {56*1024}")
    a(f"buffer_store_dwordx2 v[42:43], {vL16}, {WS}, s48 offen{st}")
    a(f"buffer_store_dwordx2 v[42:43], {vL16}, {WS}, s50 offen{st}")
    if geti("t3", 2): a(f"s_sleep {geti('t3', 2)}")
    a(f"s_branch {pfx}_E")
    a.label(pfx + "_noffn")
    prefetch(a, pfx + "_pf2", 51)
    a("s_sleep 32")
    a.label(pfx + "_E")
    tstamp(a, opt, 8)
    AR = 48
    a(f"s_lshl_b32 s50, s{S_SLOT}, 17"); a(f"s_add_u32 s50, s{S_ACTR}, s50")
    a(f"s_lshl_b32 s49, s{S_SLOT}, 16"); a(f"s_add_u32 s49, s{S_X2R}, s49")
    def ld():
        a(f"buffer_load_dword v41, {vX2g}, {WS}, s49 offen sc1")
        for i in range(14):
            if i % 4 == 0: a(f"s_add_u32 s48, s50, {(i//4)*4096}")
            a(f"buffer_load_dwordx4 {vr(AR+4*i,4)}, {vL16}, {WS}, s48 offen offset:{1024*(i%4)} sc1")
    def ck():
        for i in range(14):
            a(f"s_waitcnt vmcnt({13-i})")
            for t in range(2):
                d = vr(112 + 4 * t, 4)
                a(f"v_mfma_f32_16x16x32_bf16 {d}, {DF(t, i)}, {vr(AR+4*i,4)}, {d if i else 0}")
            a(f"v_max3_u32 v{T0}, v{T0 if i else 41}, v{AR+4*i}, v{AR+4*i+2}")
        a(f"v_cmp_eq_u32 vcc, -1, v{T0}")
        a(f"v_lshlrev_b32 v124, 16, v41"); a(f"v_and_b32 v125, s{MASK}, v41")
    poll(a, pfx + "_act", ld, ck, sleep=2)
    tstamp(a, opt, 9)
    a("s_nop 2")
    a(f"ds_write_b128 {vEw}, v[112:115]"); a(f"ds_write_b128 {vEw}, v[116:119] offset:1024")
    a("s_waitcnt lgkmcnt(0)"); a("s_barrier")
    for w in range(4): a(f"ds_read_b64 {vr(112+2*w,2)}, {vEr} offset:{2048*w}")
    a("s_waitcnt lgkmcnt(0)")
    a("v_add_f32 v112, v112, v114"); a("v_add_f32 v113, v113, v115"); a("v_add_f32 v116, v116, v118"); a("v_add_f32 v117, v117, v119")
    a("v_add_f32 v112, v112, v116"); a("v_add_f32 v113, v113, v117")
    rnd2(a, 112, 113, T0)
    a(f"v_mul_f32 v112, v{MC+6}, v112"); a(f"v_mul_f32 v113, v{MC+7}, v113")
    rnd2(a, 112, 113, T0)
    a("v_add_f32 v112, v124, v112"); a("v_add_f32 v113, v125, v113")
    a(f"v_cvt_pk_bf16_f32 v{T0}, v112, v113")
    a(f"buffer_store_dword v{T0}, {vEo}, {sr(S_O,4)}, s{S_OUT} offen")
    tstamp(a, opt, 10)
    a(f"s_add_u32 s{S_SEG}, s{S_SEG}, 4")
    a(f"s_add_u32 s{S_KM}, s{S_KM}, {4*4096}")
    a(f"s_add_u32 s{S_KMV}, s{S_KMV}, {4*4096}")
    a(f"s_add_u32 s{S_OUT}, s{S_OUT}, {4*32768}")
    a(f"s_xor_b32 s{S_TAG}, s{S_TAG}, 1")
    a(f"s_mov_b32 s{S_PSLOT}, s{S_SLOT}")
    a(f"s_add_u32 s{S_SLOT}, s{S_SLOT}, 1")
    a(f"s_cmp_ge_u32 s{S_SLOT}, 3")
    a(f"s_cselect_b32 s{S_SLOT}, 0, s{S_SLOT}")
    a(f"s_cmp_lt_u32 s{S_SEG}, 64")
    a(f"s_cbranch_scc1 {pfx}_loop")
    a("s_waitcnt vmcnt(0)")

def emit_post(a, opt):
    import mega, pre
    a(f"s_cmp_ge_u32 s{S_TID}, 32")
    a("s_cbranch_scc1 T_wgt")
    a.label("T_pre")
    pre.emit_pre(a, opt)
    a(f"s_cmp_ge_u32 s{S_TID}, 32")
    a("s_cbranch_scc1 T_fin")
    a.label("T_wgt")
    emit_post_weights(a, opt)
    if "time" in opt: a("s_memrealtime s[84:85]")
    a(f"s_cmp_ge_u32 s{S_TID}, 32")
    a("s_cbranch_scc1 T_pre")
    a.label("T_fin")
    emit_post_final(a, opt)
    if "time" in opt: a("s_memrealtime s[86:87]")
    mega.emit_mode(a, opt, "T_slow", "v44", "v45")
    emit_post_loop(a, True, "TF", opt)
    a("s_branch L_done")
    a.label("T_slow")
    emit_post_loop(a, False, "TS", opt)
```

```python
from common import *
import math
S_TID = 16
MASK = 17

def rnd2(a, x, y, p):
    a(f"v_cvt_pk_bf16_f32 v{p}, v{x}, v{y}")
    a(f"v_lshlrev_b32 v{x}, 16, v{p}")
    a(f"v_and_b32 v{y}, s{MASK}, v{p}")
def rnd1(a, x):
    a(f"v_cvt_pk_bf16_f32 v{x}, v{x}, v{x}")
    a(f"v_and_b32 v{x}, s{MASK}, v{x}")
def unpack(a, src, dst, n):
    for d in range(n):
        a(f"v_lshlrev_b32 v{dst+2*d}, 16, v{src+d}")
        a(f"v_and_b32 v{dst+2*d+1}, s{MASK}, v{src+d}")
def xsum_g(a, x, t, op="v_add_f32"):
    a(f"v_mov_b32 v{t}, v{x}"); a("s_nop 1")
    a(f"v_permlane32_swap_b32 v{x}, v{t}"); a(f"{op} v{x}, v{x}, v{t}")
    a(f"v_mov_b32 v{t}, v{x}"); a("s_nop 1")
    a(f"v_permlane16_swap_b32 v{x}, v{t}"); a(f"{op} v{x}, v{x}, v{t}")
def tree(a, regs):
    regs = list(regs)
    while len(regs) > 1:
        nxt = []
        for i in range(0, len(regs) - 1, 2):
            a(f"v_add_f32 v{regs[i]}, v{regs[i]}, v{regs[i+1]}"); nxt.append(regs[i])
        if len(regs) % 2: nxt.append(regs[-1])
        regs = nxt
    return regs[0]

def emit_pre(a, opt=()):
    a.c("==== prologue work of the post teams: mod + LN1 ; s16 = tid (0..127) ====")
    LE = lambda *x, **k: lane_expr(a, *x, tmp="v31", **k)
    tstamp(a, opt, 16)
    a("s_load_dwordx2 s[32:33], s[0:1], 0")
    a("s_load_dwordx4 s[36:39], s[0:1], 88")
    a(f"s_mov_b32 s{MASK}, 0xffff0000")
    LE("v1", "v0", [(0, 4, 10), (4, 2, 4), (6, 2, 8)])
    a(f"s_lshl_b32 s48, s{S_TID}, 14")
    a("s_waitcnt lgkmcnt(0)")
    srd(a, S_T, 32, 2048 * 1024)
    for i in range(4):
        a(f"buffer_load_dwordx4 {vr(32+4*i,4)}, v1, {sr(S_T,4)}, s48 offen offset:{64*i}")
    a(f"s_cmp_ge_u32 s{S_TID}, 96")
    a("s_cbranch_scc1 P_nomod")
    srd(a, 40, 36, 1024)
    srd(a, 44, 38, 512 * 6144)
    LE("v2", "v0", [(2, 6, 4)])
    a("buffer_load_dwordx4 v[4:7], v2, s[40:43], 0 offen")
    a("v_lshrrev_b32 v2, 2, v0")
    a("v_mul_u32_u24 v2, 49152, v2")
    a("v_and_b32 v3, 3, v0")
    a("v_lshl_add_u32 v2, v3, 4, v2")
    a(f"s_lshl_b32 s48, s{S_TID}, 6")
    for i in range(8):
        a(f"buffer_load_dwordx4 {vr(64+4*i,4)}, v2, s[44:47], s48 offen")
        if i < 7: a("s_add_u32 s48, s48, 6144")
    a("s_waitcnt vmcnt(8)")
    tstamp(a, opt, 17)
    unpack(a, 4, 8, 4)
    a(f"s_mov_b32 s48, {f32bits(-math.log2(math.e))}")
    for j in range(8): a(f"v_mul_f32 v{16+j}, s48, v{8+j}")
    for j in range(8): a(f"v_exp_f32 v{16+j}, v{16+j}")
    for j in range(8): a(f"v_add_f32 v{16+j}, 1.0, v{16+j}")
    for j in range(8): a(f"v_rcp_f32 v{16+j}, v{16+j}")
    for j in range(8): a(f"v_mul_f32 v{8+j}, v{8+j}, v{16+j}")
    for j in range(0, 8, 2): rnd2(a, 8 + j, 9 + j, 31)
    for j in range(8): a(f"v_mov_b32 v{16+j}, 0")
    for i in range(8):
        a(f"s_waitcnt vmcnt({7-i})")
        for d in range(4):
            a(f"v_lshlrev_b32 v24, 16, v{64+4*i+d}")
            a(f"v_and_b32 v25, s{MASK}, v{64+4*i+d}")
            a(f"v_fmac_f32 v{16+2*d}, v{8+i}, v24")
            a(f"v_fmac_f32 v{17+2*d}, v{8+i}, v25")
    a("s_nop 1")
    for ror in (4, 8):
        for j in range(8):
            a(f"v_add_f32_dpp v{16+j}, v{16+j}, v{16+j} row_ror:{ror} row_mask:0xf bank_mask:0xf")
    LE("v2", "v0", [(4, 4, 7), (0, 2, 5)])
    a("ds_write_b128 v2, v[16:19] offset:1024")
    a("ds_write_b128 v2, v[20:23] offset:1040")
    a("s_waitcnt lgkmcnt(0)")
    a("s_barrier")
    a(f"s_cmp_lg_u32 s{S_W}, 0")
    a("s_cbranch_scc1 P_nomod")
    LE("v2", "v0", [(0, 5, 2)])
    for p in range(16): a(f"ds_read_b32 v{64+p}, v2 offset:{1024+128*p}")
    a("s_waitcnt lgkmcnt(0)")
    r = tree(a, range(64, 80))
    a(f"v_cvt_pk_bf16_f32 v{r}, v{r}, v{r}")
    LE("v2", "v0", [(0, 5, 1), (5, 1, 30)])
    a(f"s_lshl_b32 s48, s{S_TID}, 6")
    a(f"s_add_u32 s48, s48, {hex(WS_MOD)}")
    a(f"buffer_store_short v{r}, v2, {sr(S_WS,4)}, s48 offen sc1")
    a("s_waitcnt vmcnt(0)")
    tstamp(a, opt, 18)
    a(f"s_cmp_lt_u32 s{S_TID}, 32")
    a(f"s_cselect_b32 s48, {D_MOD1}, {D_MOD2}")
    a("s_lshl_b32 s48, s48, 2")
    dbg_arrive(a, 0, soff=48)
    a.label("P_nomod")
    a("s_waitcnt vmcnt(0)")
    unpack(a, 32, 64, 16)
    LE("v2", "v0", [(0, 4, 4), (6, 2, 2)])
    LE("v3", "v0", [(0, 4, 4)])
    for j in range(16): a(f"v_add_f32 v{96+j}, v{64+2*j}, v{65+2*j}")
    r = tree(a, range(96, 112))
    xsum_g(a, r, 31)
    a(f"ds_write_b32 v2, v{r}")
    a("s_waitcnt lgkmcnt(0)"); a("s_barrier")
    a("ds_read_b128 v[4:7], v3")
    a("s_waitcnt lgkmcnt(0)")
    tree(a, range(4, 8))
    a(f"v_mul_f32 v8, {f32bits(1/512)}, v4")
    for j in range(32): a(f"v_sub_f32 v{96+j}, v{64+j}, v8")
    for j in range(32): a(f"v_mul_f32 v{96+j}, v{96+j}, v{96+j}")
    r = tree(a, range(96, 128))
    xsum_g(a, r, 31)
    a(f"ds_write_b32 v2, v{r} offset:256")
    a("s_waitcnt lgkmcnt(0)"); a("s_barrier")
    a("ds_read_b128 v[4:7], v3 offset:256")
    a("s_waitcnt lgkmcnt(0)")
    tree(a, range(4, 8))
    a(f"v_mul_f32 v9, {f32bits(1/512)}, v4")
    rnd1(a, 8); rnd1(a, 9)
    a(f"v_add_f32 v9, {f32bits(1e-5)}, v9"); rnd1(a, 9)
    a("v_sqrt_f32 v9, v9"); a("s_nop 0"); rnd1(a, 9)
    a("v_rcp_f32 v9, v9")
    for j in range(32): a(f"v_sub_f32 v{64+j}, v{64+j}, v8")
    for j in range(0, 32, 2): rnd2(a, 64 + j, 65 + j, 31)
    for j in range(32): a(f"v_mul_f32 v{64+j}, v{64+j}, v9")
    for j in range(0, 32, 2): rnd2(a, 64 + j, 65 + j, 31)
    tstamp(a, opt, 19)
    dbg_wait(a, D_MOD1, 32, sleep=4)
    tstamp(a, opt, 20)
    LE("v2", "v0", [(4, 2, 4), (6, 2, 8)])
    a(f"s_mov_b32 s48, {hex(WS_MOD)}")
    for i in range(4):
        a(f"buffer_load_dwordx4 {vr(32+4*i,4)}, v2, {sr(S_WS,4)}, s48 offen offset:{1024+64*i} sc1")
    for i in range(4):
        a(f"buffer_load_dwordx4 {vr(48+4*i,4)}, v2, {sr(S_WS,4)}, s48 offen offset:{64*i} sc1")
    a("s_waitcnt vmcnt(4)")
    unpack(a, 32, 96, 16)
    for j in range(32): a(f"v_add_f32 v{96+j}, 1.0, v{96+j}")
    for j in range(0, 32, 2): rnd2(a, 96 + j, 97 + j, 31)
    for j in range(32): a(f"v_mul_f32 v{64+j}, v{64+j}, v{96+j}")
    for j in range(0, 32, 2): rnd2(a, 64 + j, 65 + j, 31)
    a("s_waitcnt vmcnt(0)")
    unpack(a, 48, 96, 16)
    for j in range(32): a(f"v_add_f32 v{64+j}, v{64+j}, v{96+j}")
    for j in range(16): a(f"v_cvt_pk_bf16_f32 v{32+j}, v{64+2*j}, v{65+2*j}")
    tstamp(a, opt, 21)
    LE("v2", "v0", [(0, 6, 4), (6, 2, 12)])
    a(f"s_lshl_b32 s48, s{S_TID}, 14")
    a(f"s_add_u32 s48, s48, {hex(WS_H)}")
    for i in range(4):
        a(f"buffer_store_dwordx4 {vr(32+4*i,4)}, v2, {sr(S_WS,4)}, s48 offen offset:{1024*i} sc1")
    a("s_waitcnt vmcnt(0)")
    a("s_barrier")
    a(f"s_cmp_lg_u32 s{S_W}, 0")
    a("s_cbranch_scc1 P_done")
    tstamp(a, opt, 22)
    a(f"s_cmp_lt_u32 s{S_TID}, {N_LN1}")
    a(f"s_cselect_b32 s48, {D_LN1}, {D_LN2}")
    a("s_lshl_b32 s48, s48, 2")
    dbg_arrive(a, 0, soff=48)
    a.label("P_done")
```

```python
from common import *
import math, struct

L_MEM = 0
L_KV  = 8192
L_QK  = 24576
L_OS  = 28672
L_SEL = 30720
L_JUNK= 31744
L_MISC= 32256
L_WO  = 32768

S_STEP = 16
S_PST = 17
S_PLD = 19
S_MRD, S_MWR, S_MPO = 22, 23, 24
S_KX, S_VX, S_KVM = 25, 26, 27
S_TAG, S_PMAX, S_PC = 28, 29, 30
S_SC = 31
S_PTR = 32
S_T0, S_T1, S_T2, S_T3 = 48, 49, 50, 51
S_OWN = 52
S_WOB = 53
S_WOL = 54
S_STAMP = 60

vVr = "v0"
vL16w, vL16, vXw, vXr, vOw, vWo, vPs, vMp, vIdx = ["v%d" % i for i in range(1, 10)]
vPl = vL16
vZ = "v[10:11]"
vT0, vT1 = "v12", "v13"
vFx = ["v28", "v29", "v30"]
SX0, SX1, SM = 16, 20, 24
vM = "v31"
FA, FB = 32, 120
F = [32 + 4 * i for i in range(8)]
ACC = {("q", 0): 64, ("q", 1): 68, ("k", 0): 72, ("k", 1): 76, ("v", 0): 80, ("v", 1): 84}
QF = [88 + 4 * i for i in range(4)]
KF = [104 + 4 * i for i in range(4)]
KXR = {(0, 0): 104, (1, 0): 108, (0, 1): 112, (1, 1): 116, (0, 2): 32, (1, 2): 36, (0, 3): 120, (1, 3): 124}
VX = [64, 72]
MI = {"q": 0, "k": 1, "v": 2}

def wreg(m, t, sig, off=0, n=8):
    idx = ((MI[m] * 2 + t) * 8 + sig) * 8 + off
    if idx < 256: return ar(idx, n)
    return vr(128 + idx - 256, n)

def smf(m, t, sig, own=FA):
    f = own + 4 * sig if sig < 2 else F[sig]
    return f"v_smfmac_f32_16x16x64_bf16 {vr(ACC[(m,t)],4)}, {vr(f,4)}, {wreg(m,t,sig)}, {vIdx}"

S_HAVE, S_FLG = 55, 56
S_SC2, S_OM = 58, 46
def emit_rec_setup(a, pfx="R"):
    st = " sc1"
    LE = lambda *x, **k: lane_expr(a, *x, tmp="v31", **k)
    a.c("==== recurrence role: s14 = head, s15 = wave ====")
    LE(vL16w, "v0", [(0, 6, 4), (6, 2, 11)])
    LE(vL16, "v0", [(0, 6, 4)])
    LE(vXw, "v0", [(6, 2, 10), (0, 4, 5), (4, 2, 3)], L_QK)
    LE(vXr, "v0", [(0, 6, 3)], L_QK)
    LE(vOw, "v0", [(6, 2, 9), (5, 1, 8), (2, 2, 6), (0, 1, 5), (4, 1, 4)], L_OS)
    LE("v16", "v0", [(5, 1, 8), (2, 2, 6), (0, 1, 5), (4, 1, 4)], L_JUNK)
    a("v_and_b32 v17, 2, v0")
    a("v_cmp_ne_u32 vcc, 0, v17")
    a("s_nop 1")
    a(f"v_cndmask_b32 {vOw}, {vOw}, v16, vcc")
    for r in (10, 11, 14, 15): a(f"v_mov_b32 v{r}, 0")
    LE(vWo, "v0", [(6, 2, 15), (0, 6, 4)], L_WO)
    LE(vPs, "v0", [(4, 2, 13), (2, 2, 10), (0, 2, 4)])
    LE(vMp, "v0", [(5, 1, 5), (0, 2, 3), (4, 1, 2), (2, 2, 30)])
    a(f"v_and_b32 v16, 1, v0")
    a(f"v_mul_u32_u24 {vIdx}, 0xaaaa, v16")
    a(f"v_add_u32 {vIdx}, 0x4444, {vIdx}")
    a("v_and_b32 v16, 3, v0")
    a("v_bfe_u32 v17, v0, 2, 2")
    a("v_mov_b32 v18, 0x3f80")
    a("v_mov_b32 v19, 0x3f800000")
    a("v_cmp_eq_u32 vcc, 1, v16")
    a("s_nop 1")
    a("v_cndmask_b32 v18, v18, v19, vcc")
    a("v_cmp_gt_u32 vcc, 2, v16")
    a("s_nop 1")
    a("v_cndmask_b32 v18, 0, v18, vcc")
    for d in range(4):
        a(f"v_cmp_eq_u32 vcc, {d}, v17")
        a("s_nop 1")
        a(f"v_cndmask_b32 v{20+d}, 0, v18, vcc")
    a(f"ds_write_b128 {vL16}, v[20:23] offset:{L_SEL}")
    for tau in range(2):
        a(f"s_add_u32 s{S_T0}, s{S_H}, {tau}")
        sexpr(a, S_PST + tau, [(S_T0, 0, 1, 15), (S_W, 0, 2, 16), (S_H, 1, 4, 6)], WS_PART + tau * 4096)
        sexpr(a, S_PLD + tau, [(S_H, 0, 5, 13), (S_W, 0, 2, 10)], WS_PART + tau * 4096)
    sexpr(a, S_OWN, [(S_H, 2, 3, 10), (S_W, 0, 2, 8), (S_H, 0, 2, 6)])
    a(f"s_mov_b32 s{S_MRD}, {hex(WS_MEM)}")
    a(f"s_add_u32 s{S_MPO}, s{S_OWN}, {hex(WS_MEM)}")
    a(f"s_add_u32 s{S_MWR}, s{S_OWN}, {hex(WS_MEM + 8192)}")
    a(f"s_mul_i32 s{S_T0}, s{S_H}, {HSTR}")
    sexpr(a, S_KX, [(S_W, 0, 2, 12)], WS_KV)
    a(f"s_add_u32 s{S_KX}, s{S_KX}, s{S_T0}")
    a(f"s_mul_i32 s{S_T0}, s{S_H}, {MSTR}")
    sexpr(a, S_KVM, [(S_W, 0, 2, 10)], WS_KM)
    a(f"s_add_u32 s{S_KVM}, s{S_KVM}, s{S_T0}")
    a(f"s_mov_b32 s{S_STEP}, 0")
    a(f"s_mov_b32 s{S_TAG}, 1")
    a(f"s_mov_b32 s{S_PMAX}, 20000")
    sc = (128 ** -0.5) * math.log2(math.e)
    a(f"s_mov_b32 s{S_SC}, {hex(struct.unpack('<I', struct.pack('<f', sc))[0])}")

    a(f"s_mov_b32 s{S_SC2}, s{S_SC}"); a(f"s_mov_b32 s{S_SC2+1}, s{S_SC}")
    a(f"s_mov_b32 s{S_OM}, 0x33333333"); a(f"s_mov_b32 s{S_OM+1}, 0x33333333")
    q = VmQ(a)
    srd(a, S_T, S_PTR + 2, 8192)
    LE("v16", "v0", [(5, 1, 10), (4, 1, 6), (0, 2, 1)])
    sexpr(a, S_T0, [(S_H, 0, 2, 11), (S_H, 2, 3, 7), (S_W, 0, 2, 3)])
    a(f"buffer_load_ushort v17, v16, {sr(S_T,4)}, s{S_T0} offen")
    a(f"buffer_load_ushort v18, v16, {sr(S_T,4)}, s{S_T0} offen offset:32")
    q.issue("m0", 2)
    for i in range(4): a(f"v_mov_b32 v{24+i}, 0")
    a("v_mov_b32 v19, -1")
    for i in range(2):
        a(f"buffer_store_dwordx4 v[24:27], {vPl}, {sr(S_WS,4)}, s{S_PLD+i} offen{st}")
    a(f"buffer_store_dword v19, {vMp}, {sr(S_WS,4)}, s{S_MWR} offen{st}")
    a(f"s_add_u32 s{S_T0}, s{S_MWR}, 8192")
    a(f"buffer_store_dword v19, {vMp}, {sr(S_WS,4)}, s{S_T0} offen{st}")
    q.issue("init", 4)

    D = [32, 33]
    LE("v28", "v0", [(4, 2, 5)])
    LE("v29", "v0", [(0, 4, 4)])
    a("v_xor_b32 v28, v28, v29")
    LE("v30", "v0", [(4, 2, 13)])
    a(f"v_add_u32 v{D[0]}, v28, v30")
    a(f"v_xor_b32 v{D[1]}, 128, v{D[0]}")
    E = [36, 37, 38, 39]
    LE("v28", "v0", [(4, 1, 5)])
    a("v_xor_b32 v28, v28, v29")
    LE("v30", "v0", [(4, 2, 10)])
    a(f"v_add_u32 v{E[0]}, v28, v30")
    a(f"v_xor_b32 v{E[1]}, 64, v{E[0]}")
    a(f"v_xor_b32 v{E[2]}, 128, v{E[0]}")
    a(f"v_xor_b32 v{E[3]}, 192, v{E[0]}")
    TR = [40, 41]
    LE("v28", "v0", [(2, 1, 12), (5, 1, 10), (3, 1, 9), (4, 1, 8), (0, 1, 3)])
    LE("v29", "v0", [(6, 2, 6), (1, 1, 4)])
    LE("v30", "v0", [(4, 1, 5), (3, 1, 6), (2, 1, 7)])
    a("v_xor_b32 v29, v29, v30")
    a(f"v_add_u32 v{TR[0]}, v28, v29")
    a(f"v_xor_b32 v{TR[1]}, 32, v{TR[0]}")
    sexpr(a, S_T2, [(S_H, 0, 5, 8), (S_W, 0, 2, 18)])
    sexpr(a, S_T3, [(S_W, 0, 2, 13)], L_WO)
    sexpr(a, S_WOB, [(S_H, 0, 5, 17), (S_W, 0, 2, 15)])

    def dma_chunk(a, q, n):
        m, ch = divmod(n, 4)
        if ch == 0:
            srd(a, S_T, S_PTR + 4 + 2 * m, 4194304)
        for i in range(8):
            a(f"s_add_u32 m0, s{S_T3}, {ch * 32768 + i * 1024}")
            if m < 3:
                a(f"s_add_u32 s{S_T0}, s{S_T2}, {hex((128 * ch + 4 * i) * 8192)}")
                a(f"buffer_load_dwordx4 v{D[(i >> 2) & 1]}, {sr(S_T,4)}, s{S_T0} offen lds")
            else:
                a(f"s_add_u32 s{S_T0}, s{S_WOB}, {hex(4 * i * 1024 + ch * 256)}")
                a(f"buffer_load_dwordx4 v{E[(i & 1) + 2 * ((i >> 2) & 1)]}, {sr(S_T,4)}, s{S_T0} offen lds")
        q.issue(("d", n), 8)

    for n in range(3): dma_chunk(a, q, n)
    q.wait("m0")
    a("v_lshl_or_b32 v17, v18, 16, v17")
    a(f"buffer_store_dword v17, {vMp}, {sr(S_WS,4)}, s{S_MPO} offen{st}")
    q.issue("init", 1)

    done = pfx + "_wdone"
    for w in range(4):
        if w < 3:
            a(f"s_cmp_lg_u32 s{S_W}, {w}")
            a(f"s_cbranch_scc1 {pfx}_wl{w+1}")
        qq = q.clone()
        for n in range(13):
            if n < 12:
                qq.wait(("d", n))
            if n == 4:
                a("v_mov_b32 v24, 0")
                a("v_mov_b32 v25, 1")
                a("s_mov_b64 exec, 1")
                a(f"global_atomic_add v24, v25, {sr(S_DBG,2)} offset:{4*D_RTB}")
                a("s_mov_b64 exec, -1")
                qq.issue("at")
            a("s_barrier")
            if n + 3 < 16: dma_chunk(a, qq, n + 3)
            if n == 12: break
            m, ch = divmod(n, 4)
            mn = "qkv"[m]
            a(f"v_add_u32 v26, {L_WO + ch * 32768}, v{TR[0]}")
            a(f"v_add_u32 v27, {L_WO + ch * 32768}, v{TR[1]}")
            for k2 in range(2):
                sig = (2 * ch + k2) ^ (2 * w)
                for t in range(2):
                    for p in range(4):
                        off = (64 * k2 + 32 * (p % 2) + 8 * (p // 2)) * 256
                        a(f"ds_read_b64_tr_b16 {wreg(mn, t, sig, 2 * p, 2)}, v{26+t} offset:{off}")
            a("s_waitcnt lgkmcnt(0)")
        if w < 3:
            a(f"s_branch {done}")
            a.label(f"{pfx}_wl{w+1}")
    a.label(done)
    LE("v24", "v0", [(4, 1, 12), (5, 1, 11), (3, 1, 10), (2, 1, 8), (6, 2, 15), (1, 1, 4), (0, 1, 3),
                     (2, 1, 5), (3, 1, 6), (4, 1, 7)], L_WO)
    a("s_waitcnt vmcnt(0)")
    a("s_barrier")
    for ks in range(2):
        for tau in range(2):
            a(f"s_add_u32 s{S_T0}, s{S_H}, {tau}")
            a(f"s_and_b32 s{S_T0}, s{S_T0}, 1")
            a(f"s_lshl_b32 s{S_T0}, s{S_T0}, 7")
            for b in range(4):
                a(f"s_or_b32 s{S_T1}, s{S_T0}, {32 * b}")
                a(f"v_xor_b32 v25, s{S_T1}, v24")
                base = 32 + (tau * 4 + b) * 8
                for p in range(4):
                    off = (64 * ks + 32 * (p // 2) + 2 * (p % 2)) * 256
                    a(f"ds_read_b64_tr_b16 {vr(base + 2 * p, 2)}, v25 offset:{off}")
        a("s_waitcnt lgkmcnt(0)")
        for i in range(16):
            a(f"ds_write_b128 {vWo}, {vr(32 + 4 * i, 4)} offset:{ks * 16384 + i * 1024}")
        a("s_waitcnt lgkmcnt(0)")
    a(f"s_mov_b32 s{S_PC}, 0")
    a("v_mov_b32 v24, 0")
    a.label(pfx + "_tb")
    a(f"global_load_dword v25, v24, {sr(S_DBG,2)} offset:{4*D_RTB} sc1")
    a("s_waitcnt vmcnt(0)")
    a(f"v_readfirstlane_b32 s{S_T0}, v25")
    a(f"s_cmp_ge_u32 s{S_T0}, 128")
    a(f"s_cbranch_scc1 {pfx}_tbok")
    a(f"s_add_u32 s{S_PC}, s{S_PC}, 1")
    a(f"s_cmp_lt_u32 s{S_PC}, s{S_PMAX}")
    a(f"s_cbranch_scc1 {pfx}_tb")
    a(f"s_mov_b32 s{S_PMAX}, 1")
    a.label(pfx + "_tbok")

def kv_wait(a, need_sreg_or_imm, tag):
    l = a.uid(tag)
    need = need_sreg_or_imm
    a(f"s_cmp_ge_u32 s{S_HAVE}, {need}")
    a(f"s_cbranch_scc1 {l}_ok")
    a(f"s_mov_b32 s{S_PC}, 0")
    a(f"v_lshlrev_b32 v118, 8, {vL16}")
    a.label(l)
    a("s_mov_b64 exec, 3")
    a(f"buffer_load_dword v119, v118, {sr(S_WS,4)}, s{S_FLG} offen sc1")
    a("s_mov_b64 exec, -1")
    a("s_waitcnt vmcnt(0)")
    a(f"v_readlane_b32 s{S_HAVE}, v119, 0")
    a(f"v_readlane_b32 s{S_T0}, v119, 1")
    a("s_nop 1")
    a(f"s_min_u32 s{S_HAVE}, s{S_HAVE}, s{S_T0}")
    a(f"s_cmp_ge_u32 s{S_HAVE}, {need}")
    a(f"s_cbranch_scc1 {l}_ok")
    a("s_sleep 2")
    a(f"s_add_u32 s{S_PC}, s{S_PC}, 1")
    a(f"s_cmp_lt_u32 s{S_PC}, s{S_PMAX}")
    a(f"s_cbranch_scc1 {l}")
    a(f"s_mov_b32 s{S_PMAX}, 1")
    a.label(l + "_ok")

def emit_rec_mega(a, opt):
    import mega
    a(f"s_load_dwordx16 {sr(S_PTR,16)}, s[0:1], 0")
    a("s_waitcnt lgkmcnt(0)")
    emit_rec_setup(a)
    if "time" in opt: a("s_memrealtime s[84:85]")
    dbg_wait(a, D_INIT, 96, sleep=2)
    sexpr(a, S_FLG, [(S_H, 0, 5, 7)], WS_FLAG)
    a(f"s_mov_b32 s{S_HAVE}, 0")
    kv_wait(a, 2, "kvw")
    if "time" in opt: a("s_memrealtime s[86:87]")
    mega.emit_mode(a, opt, "R_slow")
    ropt = list(opt) + ["mega", "nopj", "nopd", "da10", "dz6", "hb5", "oexec"]
    emit_rec(a, fast=True, pfx="RF", opt=ropt)
    a("s_branch L_done")
    a.label("R_slow")
    emit_rec(a, fast=False, pfx="RS", opt=ropt)

def emit_rec(a, fast=True, stamps=False, nsteps=64, pfx="R", warm=True, opt=()):
    st = "" if fast else " sc1"
    def geti(p, d):
        for o in opt:
            if o.startswith(p) and o[len(p):].isdigit(): return int(o[len(p):])
        return d
    nst = [0]
    tr0 = geti("tr", -1)
    slotno = [0]
    def stamp(force=False):
        if stamps and (tr0 < 0 or force):
            a(f"s_memtime {sr(S_STAMP + 2 * nst[0], 2)}"); nst[0] += 1
    if "mega" not in opt: emit_rec_setup(a, pfx)

    lq = LQ()
    rms = [o[3:] for o in opt if o.startswith("rm:")]
    def emit(x):
        txt = x if isinstance(x, str) else x[0]
        if isinstance(x, str) and any(r in txt for r in rms): return
        if x == "STAMP": stamp()
        elif isinstance(x, tuple):
            if x[0] == "w": a(lq.wait(x[1]))
            else:
                a(x[0]); lq.issue(x[1])
        else: a(x)
    def run(seq, count=True):
        for m, fill in seq:
            if m: a(m)
            if tr0 >= 0 and count and tr0 <= slotno[0] < tr0 + geti("tn", 13): stamp(True)
            if count: slotno[0] += 1
            for f in fill: emit(f)

    kvd = [f"buffer_load_dwordx4 {vL16}, {sr(S_WS,4)}, s{S_KX} offen offset:{1024*i} sc1 lds" for i in range(4)] + [f"s_add_u32 s{S_KX}, s{S_KX}, 16384"]
    zero16 = lambda r: f"v_mfma_f32_32x32x8_bf16 {vr(r,16)}, {vZ}, {vZ}, 0"
    zero4 = lambda r: f"v_mfma_f32_16x16x16_bf16 {vr(r,4)}, {vZ}, {vZ}, 0"
    def gather(own):
        a(f"buffer_load_dwordx4 {vr(own,4)}, {vL16w}, {sr(S_WS,4)}, s{S_MRD} offen sc1")
        a(f"buffer_load_dwordx4 {vr(own+4,4)}, {vL16w}, {sr(S_WS,4)}, s{S_MRD} offen offset:1024 sc1")
    def fx():
        for i in range(3): a(f"v_xor_b32 {vFx[i]}, {2048 * (i + 1)}, {vL16w}")
    sexpr(a, S_T0, [(S_W, 0, 2, 12)], L_KV)
    a(f"s_mov_b32 m0, s{S_T0}")
    lane_expr(a, "v24", "v0", [(0, 6, 4), (6, 2, 12)], L_KV + 2048, tmp="v31")
    a(f"v_mov_b32 {vVr}, v24")
    for x in kvd: a(x)
    if "nokv" in opt: kvd = ["s_nop 0"] * 5
    a(zero16(64)); a(zero16(80))
    fx()
    a(f"s_mov_b32 s{S_PC}, 0")
    if stamps or "nost" in opt:
        a("s_memrealtime s[96:97]"); a("s_memtime s[98:99]")
    gather(FA); gather(FB)

    rdF = lambda sig: (f"ds_read_b128 {vr(F[sig],4)}, {vFx[sig//2-1]} offset:{L_MEM + (sig%2)*1024}", ("F", sig))
    rdKX = lambda t, ks: (f"ds_read_b128 {vr(KXR[(t,ks)],4)}, {vL16} offset:{L_KV + ((t*4+ks)//2)*4096 + (ks%2)*1024}", "KX")
    trQ = lambda ks, u: (f"ds_read_b64_tr_b16 {vr(QF[ks]+2*u,2)}, {vXr} offset:{1024*ks+512*u}", ("Q", ks))
    trK = lambda ks, u: (f"ds_read_b64_tr_b16 {vr(KF[ks]+2*u,2)}, {vXr} offset:{1024*ks+512*u}", ("K", ks))
    rdV = lambda t: (f"ds_read_b128 {vr(VX[t],4)}, {vVr} offset:{t*1024}", "V")
    def sx(t, ks):
        d = vr([SX0, SX1][t], 4)
        return f"v_mfma_f32_16x16x32_bf16 {d}, {vr(KXR[(t,ks)],4)}, {vr(QF[ks],4)}, {d if ks else 0}"
    def sm(ks):
        d = vr(SM, 4)
        return f"v_mfma_f32_16x16x32_bf16 {d}, {vr(QF[ks],4)}, {vr(QF[ks],4)}, {d if ks else 0}"
    kvm = [f"buffer_store_dwordx4 v[12:15], {vL16}, {sr(S_WS,4)}, s{S_KVM} offen{' sc1 nt' if 'kvmnt' in opt else (' sc0 sc1' if 'kvmsys' in opt else ' sc1')}", f"s_add_u32 s{S_KVM}, s{S_KVM}, 4096"]
    if "nokvm" in opt: kvm = ["s_nop 0"] + kvm[1:]

    def head(own, nm):
        lq.q = []
        a.label(f"{pfx}_g{nm}")
        if "nocomm" not in opt: a("s_waitcnt vmcnt(2)")
        a(f"v_max_u32 {vT1}, v{own}, v{own+4}")
        a(f"v_cmp_eq_u32 vcc, -1, {vT1}")
        emit((f"ds_write_b128 {vL16w}, {vr(own,4)} offset:{L_MEM}", "Fw"))
        emit((f"ds_write_b128 {vL16w}, {vr(own+4,4)} offset:{L_MEM+1024}", "Fw"))
        a(smf("q", 0, 0, own))
        if "nocomm" not in opt: a(f"s_cbranch_vccnz {pfx}_gf{nm}")
        a.label(f"{pfx}_gok{nm}")
        if stamps:
            a(f"s_memtime {sr(S_STAMP, 2)}")
            a(f"s_mov_b32 s{S_STAMP+29}, s{S_PC}")
        hm = [smf(m, t, sg, own) for sg in range(2) for m in "qkv" for t in range(2)][1:]
        hb = geti("hb", 4)
        hf = {k: [] for k in range(1, 12)}
        hf[hb] = [("w", "Fw"), "s_barrier", rdF(2)]; hf[hb + 1] = [rdF(3), rdF(4)]; hf[hb + 2] = [rdF(5), rdF(6)]; hf[hb + 3] = [rdF(7)]
        run([(m, hf[i + 1]) for i, m in enumerate(hm)], count=False)
    def gfail(own, nm, other):
        a.label(f"{pfx}_gf{nm}")
        gather(own)
        a(f"s_add_u32 s{S_PC}, s{S_PC}, 1")
        a(f"s_cmp_ge_u32 s{S_PC}, s{S_PMAX}")
        a(f"s_cbranch_scc1 {pfx}_gto{nm}")
        a("s_nop 0")
        a(zero4(64))
        a("s_nop 0")
        a(f"s_branch {pfx}_g{other}")
        a.label(f"{pfx}_gto{nm}")
        a(f"s_mov_b32 s{S_PMAX}, 1")
        a("s_waitcnt vmcnt(2)")
        a(f"s_branch {pfx}_gok{nm}")

    a(f"s_branch {pfx}_gA")
    gfail(FA, "A", "B"); gfail(FB, "B", "A")
    head(FB, "B")
    a(f"s_branch {pfx}_common")
    a.raw(".p2align 6")
    head(FA, "A")
    nst[0] = 1
    a.label(f"{pfx}_common")
    seq = []
    kx = [rdKX(t, ks) for ks in range(4) for t in range(2)]
    for x in [("w", ("F", 3)), "STAMP"]: emit(x)
    WB = [40, 48, 56, 104, 112, 32, 120, 96, 24]
    def rdWo(k, buf, half):
        T, ks = divmod(k, 2)
        return (f"ds_read_b128 {vr(buf + 4*half, 4)}, {vWo} offset:{ks*16384 + T*2048 + half*1024}", ("W", k))
    W = [rdWo(k, WB[k], h) for k in range(9) for h in range(2)]
    def post(acc, dst):
        return [f"v_add_f32 v{acc}, v{acc}, v{acc+1}", f"v_add_f32 v{acc+2}, v{acc+2}, v{acc+3}", f"v_cvt_pk_bf16_f32 v{dst}, v{acc}, v{acc+2}"]
    one = [f"v_mov_b32 v{28+i}, 0x3f803f80" for i in range(4)]
    pq0, pk0, pq1, pk1 = post(64, 16), post(72, 12), post(68, 17), post(76, 13)
    pv0, pv1 = post(80, 14), post(84, 15)
    tr = [trQ(ks, u) for ks in range(4) for u in range(2)]
    fl = {k: [] for k in range(12, 60)}
    fl[12] = [one[0]]
    fl[13] = [("w", ("F", 5)), one[1]]
    fl[14] = [one[2]]
    fl[15] = [("w", ("F", 7)), kx[0]]
    fl[16] = [kx[1], one[3]]
    fl[17] = [kx[2]]
    fl[18] = [kx[3]]
    fl[19] = ["s_waitcnt vmcnt(0)" if "nocomm" not in opt else "s_nop 0", kx[4]]
    fl[20] = [kx[5], pq0[0]]
    fl[21] = [kx[6], pq0[1]]
    fl[22] = [kx[7], pq0[2]]
    fl[23] = [rdV(0)]
    fl[24] = ["STAMP"]
    fl[25] = [pk0[0]]
    fl[26] = [("w", "KX"), pk0[1]]
    fl[27] = ["s_barrier", pk0[2]]
    fl[28] = [(f"ds_write2_b32 {vXw}, v16, v12 offset1:1", "Xw")]
    fl[29] = [rdV(1)]
    fl[30] = [kvd[0]]
    fl[31] = [pq1[0]]
    fl[32] = [pq1[1]]
    fl[33] = [pq1[2]]
    fl[34] = [kvd[1]]
    fl[35] = [("w", "V"), "STAMP"]
    fl[36] = []
    fl[37] = pk1
    fl[38] = [(f"ds_write2_b32 {vXw}, v17, v13 offset0:128 offset1:129", "Xw")]
    fl[39] = [kvd[2]]
    fl[40] = [W[0], "v_mov_b32 v77, 0"]
    fl[41] = [W[1], "v_mov_b32 v78, 0"]
    fl[42] = [kvd[3]]
    fl[43] = [("w", "Xw"), "s_barrier"]
    fl[44] = tr[0:2]
    fl[45] = tr[2:4]
    fl[46] = tr[4:6]
    fl[47] = tr[6:8] + [("w", ("Q", 0)), "STAMP"]
    fl[48] = [W[2], pv0[0]]
    fl[49] = [W[3], pv0[1]]
    fl[50] = [("w", ("Q", 1)), pv0[2]]
    fl[51] = [W[4], pv1[0]]
    fl[52] = [W[5], pv1[1]]
    fl[53] = [("w", ("Q", 3)), pv1[2]]
    fl[54] = kvm[:1]
    fl[55] = [W[6], f"s_cmp_eq_u32 s{S_STEP}, {nsteps-1}"]
    fl[56] = [W[7]] + ([f"s_cbranch_scc1 {pfx}_end"] if not stamps else [])
    fl[57] = [W[8], "v_max3_f32 v80, v16, v17, v18"]
    fl[58] = [W[9], kvd[4]]
    fl[59] = [W[10], "v_max3_f32 v82, v19, v20, v21", "v_max3_f32 v80, v80, v22, v23", "v_max_f32 v80, v80, v82", W[11], W[12], kvm[-1], W[13], "STAMP"]
    ms = []
    for m, t in (("q", 0), ("k", 0), ("q", 1), ("k", 1)):
        ms += [smf(m, t, sig) for sig in range(2, 8)]
    ms += [smf("v", t, sig) for sig in range(2, 8) for t in range(2)]
    ms += [sx(0, 0), sx(1, 0), sm(0), sx(0, 1), sx(1, 1), sm(1), sx(0, 2), sx(0, 3), sx(1, 2), sx(1, 3), sm(2), sm(3)]
    run([(m, fl[12 + i]) for i, m in enumerate(ms)])
    ee = lambda r: f"v_exp_f32 v{r}, v{r}"
    for x in ["v_max3_f32 v80, v80, v26, v27", "v_mov_b32 v82, v80", W[14], W[15], "v_permlane32_swap_b32 v80, v82", "v_max_f32 v80, v80, v82",
              "v_mov_b32 v82, v80", "s_nop 1", "v_permlane16_swap_b32 v80, v82", "v_max_f32 v80, v80, v82", f"v_mul_f32 v80, s{S_SC}, v80"]:
        emit(x)
    for r in (26, 16, 18, 20, 22):
        a(f"v_pk_fma_f32 {vr(r,2)}, {vr(r,2)}, {sr(S_SC2,2)}, v[80:81] op_sel_hi:[1,1,0] neg_lo:[0,0,1] neg_hi:[0,0,1]")
    stamp()
    for x in [ee(26), ee(27), ee(16), "v_cvt_pk_bf16_f32 v76, v26, v27", "v_cvt_pk_bf16_f32 v79, v26, v27", ee(17)]:
        emit(x)
    run([("v_mfma_f32_16x16x16_bf16 v[84:87], v[28:29], v[76:77], 0", [ee(18), "v_cvt_pk_bf16_f32 v68, v16, v17"]),
         ("v_mfma_f32_16x16x16_bf16 v[88:91], v[14:15], v[76:77], 0", [ee(19), ee(20)]),
         ("v_mfma_f32_16x16x16_bf16 v[92:95], v[14:15], v[78:79], 0", [ee(21), "v_cvt_pk_bf16_f32 v69, v18, v19", ee(22), ee(23),
            "v_cvt_pk_bf16_f32 v70, v20, v21", "v_cvt_pk_bf16_f32 v71, v22, v23", W[16], "s_nop 0"]),
         ("v_mfma_f32_16x16x32_bf16 v[84:87], v[28:31], v[68:71], v[84:87]", [W[17]]),
         (f"v_mfma_f32_16x16x32_bf16 v[88:91], {vr(VX[0],4)}, v[68:71], v[88:91]", []),
         (f"v_mfma_f32_16x16x32_bf16 v[92:95], {vr(VX[1],4)}, v[68:71], v[92:95]", ["v_rcp_f32 v20, v84", "s_nop 2"])])
    for r in range(88, 92): a(f"v_mul_f32 v{r}, v20, v{r}")
    a("v_pk_mul_f32 v[92:93], v[92:93], v[20:21] op_sel_hi:[1,0]")
    a("v_pk_mul_f32 v[94:95], v[94:95], v[20:21] op_sel_hi:[1,0]")
    for i in range(4): a(f"v_cvt_pk_bf16_f32 v{16+i}, v{88+2*i}, v{89+2*i}")
    if "oexec" in opt: a(f"s_mov_b64 exec, {sr(S_OM,2)}")
    emit((f"ds_write_b128 {vOw}, v[16:19]", "Ow"))
    if "oexec" in opt: a("s_mov_b64 exec, -1")
    stamp()
    a(zero16(64))
    a(zero16(80))
    emit(("w", "Ow"))
    a("s_barrier")
    emit((f"ds_read_b128 v[16:19], {vL16} offset:{L_OS}", "O0"))
    emit((f"ds_read_b128 v[20:23], {vL16} offset:{L_OS+1024}", "O1"))
    a(zero16(80))
    emit(("w", "O1"))
    stamp()
    OA = [64 + 4 * T for T in range(8)]
    buf = {k: WB[k] for k in range(9)}
    for k in range(9, 16): buf[k] = WB[k - 9]
    def wo(k):
        T, ks = divmod(k, 2)
        return f"v_smfmac_f32_16x16x64_bf16 {vr(OA[T], 4)}, {vr(16 + 4*ks, 4)}, {vr(buf[k], 8)}, {vIdx}"
    def add(T):
        o = OA[T]; return [f"v_add_f32 v{o}, v{o}, v{o+1}", f"v_add_f32 v{o+2}, v{o+2}, v{o+3}"]
    G = [OA[0], OA[4]]
    def cvt(tau, bb):
        o0, o1 = OA[tau*4 + 2*bb], OA[tau*4 + 2*bb + 1]
        return [f"v_cvt_pk_bf16_f32 v{G[tau]+bb}, v{o0}, v{o1}", f"v_cvt_pk_bf16_f32 v{G[tau]+2+bb}, v{o0+2}, v{o1+2}"]
    tag = lambda tau: [f"v_and_or_b32 v{G[tau]}, v{G[tau]}, -2, s{S_TAG}"]
    stp = lambda tau: [f"buffer_store_dwordx4 {vr(G[tau],4)}, {vPs}, {sr(S_WS,4)}, s{S_PST+tau} offen{st}"]
    fill = {k: [] for k in range(16)}
    rest = [rdWo(k, buf[k], h) for k in range(9, 16) for h in range(2)]
    sched_rd = {0: 2, 1: 2, 2: 2, 3: 1, 4: 1, 5: 1, 6: 1, 7: 1, 8: 1, 9: 1, 10: 1}
    for k, n in sched_rd.items():
        for _ in range(n): fill[k].append(rest.pop(0))
    fill[8].append(("w", ("W", 11)))
    fill[11].append(("w", ("W", 13)))
    fill[13].append(("w", ("W", 15)))
    va = {3: add(0)[:1], 4: add(0)[1:], 5: add(1), 6: cvt(0, 0), 7: tag(0) + add(2)[:1], 8: add(2)[1:], 9: add(3) + cvt(0, 1), 10: stp(0),
          11: add(4)[:1], 12: add(4)[1:], 13: add(5), 14: cvt(1, 0) + tag(1), 15: add(6)}
    for k, v in va.items(): fill[k] += v
    SEL, RA0, RA1, RB1, RD = 96, 100, 104, 108, 112
    fill[15] = [(f"ds_read_b128 {vr(SEL,4)}, {vL16} offset:{L_SEL}", "SEL")] + fill[15] + ["v_mov_b32 v117, -1", f"s_mov_b32 s{S_PC}, 0", "s_nop 2"] + add(7) + cvt(1, 1) + stp(1)
    run([(wo(k), fill[k]) for k in range(16)])
    stamp()
    if "nocomm" in opt:
        a(zero16(64)); fx(); a(zero16(80))
        if stamps:
            a(f"s_cmp_eq_u32 s{S_STEP}, {nsteps-1}")
            a(f"s_cbranch_scc1 {pfx}_end")
        a(f"s_add_u32 s{S_STEP}, s{S_STEP}, 1")
        a("s_nop 7")
        a(f"s_branch {pfx}_gA")
    def ldp(reg, tau): a(f"buffer_load_dwordx4 {vr(reg,4)}, {vPl}, {sr(S_WS,4)}, s{S_PLD+tau} offen sc1")
    d0 = geti("dz", 5); d1 = geti("da", 9); d2 = geti("db", 3); d3 = geti("dc", 3)
    a(zero16(64))
    fx()
    a(zero16(80))
    JD = zero16(80) if "nopd" not in opt else "s_nop 7"
    for _ in range(d0 - 2): a(JD)
    ldp(RA0, 0)
    for _ in range(d1 - d0): a(JD)
    ldp(RA1, 1)
    for _ in range(d2): a(zero16(80) if "nopd2" not in opt else "s_nop 7")
    ldp(RB1, 1)
    emit(("w", "SEL"))
    a.label(f"{pfx}_rc0")
    a("s_waitcnt vmcnt(2)")
    a(f"v_and_b32 {vT1}, 1, v{RA0}")
    a(f"v_cmp_ne_u32 vcc, s{S_TAG}, {vT1}")
    a(f"v_mfma_f32_16x16x32_bf16 {vr(RD,4)}, {vr(SEL,4)}, {vr(RA0,4)}, 0")
    a(f"s_cbranch_vccnz {pfx}_rf0")
    for _ in range(d3): a(zero16(80) if "nopd2" not in opt else "s_nop 7")
    def fin(reg, nm):
        a.label(f"{pfx}_rc{nm}")
        a("s_waitcnt vmcnt(1)")
        a(f"v_mfma_f32_16x16x32_bf16 v[16:19], {vr(SEL,4)}, {vr(reg,4)}, {vr(RD,4)}")
        a(f"v_and_b32 {vT1}, 1, v{reg}")
        a(f"v_cmp_ne_u32 vcc, s{S_TAG}, {vT1}")
        a(f"s_cbranch_vccnz {pfx}_rf{nm}")
    fin(RA1, "A")
    a.label(f"{pfx}_rok")
    stamp()
    if stamps: a(f"s_mov_b32 s{S_STAMP+28}, s{S_PC}")
    a("s_nop 2" if (stamps and tr0 < 0) else "s_nop 4")
    a("v_add_f32_dpp v16, v16, v16 row_ror:8 row_mask:0xf bank_mask:0xf")
    a("v_add_f32_dpp v17, v17, v17 row_ror:8 row_mask:0xf bank_mask:0xf")
    a("s_nop 0")
    a("v_add_f32_dpp v16, v16, v16 row_ror:4 row_mask:0xf bank_mask:0xf")
    a("v_add_f32_dpp v17, v17, v17 row_ror:4 row_mask:0xf bank_mask:0xf")
    a("v_cvt_pk_bf16_f32 v116, v16, v17")
    a(f"buffer_store_dword v116, {vMp}, {sr(S_WS,4)}, s{S_MWR} offen{st}")
    a(f"buffer_store_dword v117, {vMp}, {sr(S_WS,4)}, s{S_MPO} offen{st}")
    if stamps:
        a(f"s_mov_b32 s{S_STAMP+30}, s{S_STAMP+2*nst[0]}")
    stamp()
    if stamps:
        a(f"s_cmp_eq_u32 s{S_STEP}, {nsteps-1}")
        a(f"s_cbranch_scc1 {pfx}_end")
    g1 = geti("ga", 5); g2 = geti("gb", 3); g3 = geti("gc", 3)
    J = zero16(96) if "nopj" not in opt else "s_nop 7"
    a(J)
    a(f"s_mov_b32 s{S_MPO}, s{S_MWR}")
    a(f"s_sub_u32 s{S_MRD}, s{S_MWR}, s{S_OWN}")
    a(f"s_add_u32 s{S_MWR}, s{S_MWR}, 8192")
    a(f"s_cmp_ge_u32 s{S_MRD}, {hex(WS_MEM + 2*8192)}")
    a(f"s_cselect_b32 s{S_T0}, {3*8192}, 0")
    a(f"s_sub_u32 s{S_MWR}, s{S_MWR}, s{S_T0}")
    a(J)
    a(f"s_add_u32 s{S_STEP}, s{S_STEP}, 1")
    a(f"s_xor_b32 s{S_TAG}, s{S_TAG}, 1")
    if "mega" in opt:
        a(f"s_add_u32 s{S_T1}, s{S_STEP}, 2")
        a(f"s_min_u32 s{S_T1}, s{S_T1}, 64")
        kv_wait(a, f"s{S_T1}", pfx + "_kvw")
        g1 -= 1
    a(f"s_mov_b32 s{S_PC}, 0")
    for _ in range(g1 - 1): a(J)
    gather(FA)
    for _ in range(g2): a(J)
    gather(FB)
    for _ in range(g3): a(J)
    a(f"s_branch {pfx}_gA")
    def tmo(nm):
        a(f"s_add_u32 s{S_PC}, s{S_PC}, 1")
        a(f"s_cmp_ge_u32 s{S_PC}, s{S_PMAX}")
        a(f"s_cbranch_scc1 {pfx}_rt{nm}")
    a.label(f"{pfx}_rf0")
    tmo("0")
    ldp(RA0, 0); ldp(RA1, 1); ldp(RB1, 1)
    a(f"s_branch {pfx}_rc0")
    a.label(f"{pfx}_rt0")
    a(f"s_mov_b32 s{S_PMAX}, 1")
    a(f"s_branch {pfx}_rcA")
    a.label(f"{pfx}_rfA")
    ldp(RA1, 1)
    a(f"s_add_u32 s{S_PC}, s{S_PC}, 1")
    fin(RB1, "B")
    a(f"s_branch {pfx}_rok")
    a.label(f"{pfx}_rfB")
    ldp(RB1, 1)
    tmo("X")
    a(f"s_branch {pfx}_rcA")
    a.label(f"{pfx}_rtX")
    a(f"s_mov_b32 s{S_PMAX}, 1")
    a(f"s_branch {pfx}_rok")
    a.label(pfx + "_end")
    return nst[0]
```

```python
import sys
from common import *
import rec, pre, gemm
L_BOOT = 163840 - 64

def read_counts(a, vdst="v25", vaddr="v24"):
    a(f"global_load_dword {vdst}, {vaddr}, {sr(S_DBG,2)} sc1")
    a("s_waitcnt vmcnt(0)")

def emit_entry(a, opt):
    a("s_cmp_ge_u32 s2, 256")
    a("s_cbranch_scc1 L_exit")
    a("s_load_dwordx4 s[48:51], s[0:1], 112")
    a(f"s_getreg_b32 s{S_TEAM}, hwreg(HW_REG_XCC_ID)")
    a(f"s_and_b32 s{S_TEAM}, s{S_TEAM}, 7")
    if "fakexcc" in opt:
        a(f"s_lshr_b32 s{S_TEAM}, s2, 5")
        a("s_and_b32 s16, s2, 7")
        a("s_cmp_eq_u32 s16, 3")
        a(f"s_cselect_b32 s16, 5, s{S_TEAM}")
        a(f"s_mov_b32 s{S_TEAM}, s16")
    if "time" in opt: a("s_memrealtime s[92:93]")
    a("v_lshrrev_b32 v1, 6, v0")
    a("s_nop 0")
    a(f"v_readfirstlane_b32 s{S_W}, v1")
    a(f"s_lshl_b32 s16, s{S_TEAM}, 2")
    a("s_add_u32 s16, s16, 60")
    a(f"s_cmp_eq_u32 s{S_TEAM}, 0")
    a("s_cselect_b32 s16, 0, s16")
    a("s_waitcnt lgkmcnt(0)")
    a(f"s_mov_b32 s{S_DBG}, s48")
    a(f"s_mov_b32 s{S_DBG+1}, s49")
    srd(a, S_WS, 50, WS_SIZE)
    a("v_mov_b32 v2, s16"); a("v_mov_b32 v3, 1"); a(f"v_mov_b32 v5, {L_BOOT}")
    a(f"s_cmp_lg_u32 s{S_W}, 0")
    a("s_cbranch_scc1 L_norank")
    a("s_mov_b64 exec, 1")
    a(f"global_atomic_add v4, v2, v3, {sr(S_DBG,2)} sc0")
    a("s_waitcnt vmcnt(0)")
    a("ds_write_b32 v5, v4")
    a("s_waitcnt lgkmcnt(0)")
    a("s_mov_b64 exec, -1")
    a.label("L_norank")
    a("s_barrier")
    a("ds_read_b32 v4, v5")
    a("s_waitcnt lgkmcnt(0)")
    a(f"v_readfirstlane_b32 s{S_H}, v4")
    a("s_barrier")
    a(f"s_cmp_lt_u32 s{S_H}, 32")
    a("s_cbranch_scc1 L_role")
    a("v_and_b32 v24, 31, v0"); a("v_lshlrev_b32 v24, 2, v24")
    a("s_mov_b32 s17, 0")
    a.label("L_ov")
    read_counts(a)
    a("s_mov_b32 s18, 0")
    for x in range(8):
        a(f"v_readlane_b32 s{20+x}, v25, {0 if x == 0 else 15 + x}")
    a("s_nop 1")
    for x in range(8): a(f"s_add_u32 s18, s18, s{20+x}")
    a("s_cmp_ge_u32 s18, 256")
    a("s_cbranch_scc1 L_ovok")
    a("s_sleep 4")
    a("s_add_u32 s17, s17, 1")
    a("s_cmp_lt_u32 s17, 200000")
    a("s_cbranch_scc1 L_ov")
    a("s_branch L_exit")
    a.label("L_ovok")
    a(f"s_sub_u32 s18, s{S_H}, 32")
    for x in range(7):
        a(f"s_sub_u32 s19, s{20+x}, 32")
        a("s_max_i32 s19, s19, 0")
        a(f"s_cmp_gt_u32 s{S_TEAM}, {x}")
        a("s_cselect_b32 s19, s19, 0")
        a("s_add_u32 s18, s18, s19")
    for x in range(8):
        a(f"s_sub_u32 s19, 32, s{20+x}")
        a("s_max_i32 s19, s19, 0")
        a(f"s_mov_b32 s{S_TEAM}, {x}")
        a(f"s_add_u32 s{S_H}, s{20+x}, s18")
        a("s_cmp_lt_u32 s18, s19")
        a("s_cbranch_scc1 L_role")
        a("s_sub_u32 s18, s18, s19")
    a("s_branch L_exit")
    a.label("L_role")
    a(f"s_and_b32 s{S_H}, s{S_H}, 31")

def emit_mode(a, opt, slow_label, va="v24", vb="v25"):
    if "fakexcc" in opt or "slow" in opt:
        a(f"s_branch {slow_label}")
        return
    l = a.uid("md")
    a(f"v_mbcnt_lo_u32_b32 {va}, -1, 0")
    a(f"v_and_b32 {va}, 31, {va}"); a(f"v_lshlrev_b32 {va}, 2, {va}")
    a(f"s_add_u32 s50, s{S_TEAM}, 15")
    a(f"s_cmp_eq_u32 s{S_TEAM}, 0")
    a("s_cselect_b32 s50, 0, s50")
    a("s_mov_b32 s51, 0")
    a.label(l)
    read_counts(a, vb, va)
    a(f"v_readlane_b32 s48, {vb}, s50")
    a("s_nop 1")
    a("s_cmp_ge_u32 s48, 32")
    a(f"s_cbranch_scc1 {l}_ok")
    a("s_mov_b32 s48, 0")
    for x in range(8):
        a(f"v_readlane_b32 s49, {vb}, {0 if x == 0 else 15 + x}")
        a("s_nop 1")
        a("s_add_u32 s48, s48, s49")
    a("s_cmp_ge_u32 s48, 256")
    a(f"s_cbranch_scc1 {slow_label}")
    a("s_sleep 4")
    a("s_add_u32 s51, s51, 1")
    a("s_cmp_lt_u32 s51, 200000")
    a(f"s_cbranch_scc1 {l}")
    a(f"s_branch {slow_label}")
    a.label(l + "_ok")

def build(opt=()):
    a = Asm()
    hdr = open("cdna_kernels/" + KNAME + ".s.ref").read().split("\n") if "nohdr" not in opt else []
    for l in hdr:
        if l.startswith(";") and "@launch" not in l: a.raw(l)
        elif not l.startswith(";"): break
    a.raw("; @launch grid=(256,1,1) block=(256,1,1) lds=163840")
    a.raw('.amdgcn_target "amdgcn-amd-amdhsa--gfx950"')
    a.raw(".text")
    a.raw(f".globl {KNAME}_kernel")
    a.raw(".p2align 8")
    a.raw(f".type {KNAME}_kernel,@function")
    a.label(f"{KNAME}_kernel")
    emit_entry(a, opt)
    a(f"s_cmp_eq_u32 s{S_TEAM}, 0")
    a("s_cbranch_scc1 L_R")
    a(f"s_cmp_ge_u32 s{S_TEAM}, 4")
    a("s_cbranch_scc1 L_T")
    a(f"s_sub_u32 s16, s{S_TEAM}, 1")
    a("s_lshl_b32 s16, s16, 5")
    a(f"s_add_u32 s16, s16, s{S_H}")
    gemm.emit_gemm(a, opt)
    a("s_branch L_done")
    a.label("L_T")
    a(f"s_lshl_b32 s16, s{S_H}, 2")
    a(f"s_add_u32 s16, s16, s{S_TEAM}")
    a("s_sub_u32 s16, s16, 4")
    import post
    post.emit_post(a, opt)
    a("s_branch L_done")
    a.label("L_R")
    if "noR" not in opt:
        rec.emit_rec_mega(a, opt)
    a.label("L_done")
    if "time" in opt:
        a("s_memrealtime s[94:95]")
        a("s_waitcnt vmcnt(0) lgkmcnt(0)")
        a(f"s_cmp_lg_u32 s{S_W}, 0")
        a("s_cbranch_scc1 L_exit")
        a(f"s_lshl_b32 s48, s{S_TEAM}, 5")
        a(f"s_add_u32 s48, s48, s{S_H}")
        a("s_lshl_b32 s48, s48, 8")
        a(f"s_add_u32 s48, s48, {hex(WS_STAMP)}")
        a("v_mov_b32 v2, 0")
        a("s_mov_b64 exec, 1")
        for i in range(18):
            a(f"v_mov_b32 v3, s{84+i}")
            a(f"buffer_store_dword v3, v2, {sr(S_WS,4)}, s48 offen offset:{4*i}")
        a("s_mov_b64 exec, -1")
        a("v_mbcnt_lo_u32_b32 v2, -1, 0")
        a("v_lshlrev_b32 v2, 2, v2")
        a("s_mov_b64 exec, 0xffffffff")
        a(f"buffer_store_dword v143, v2, {sr(S_WS,4)}, s48 offen offset:128")
        a("s_waitcnt vmcnt(0)")
    a.label("L_exit")
    a("s_endpgm")
    a.raw('.section .rodata,"a"')
    a.raw(".p2align 6")
    a.raw(f".amdhsa_kernel {KNAME}_kernel")
    for l in ["next_free_vgpr 512", "next_free_sgpr 102", "accum_offset 256", "group_segment_fixed_size 0", "kernarg_size 128",
              "user_sgpr_count 2", "user_sgpr_kernarg_segment_ptr 1", "system_sgpr_workgroup_id_x 1", "float_denorm_mode_32 3"]:
        a.raw("  .amdhsa_" + l)
    a.raw(".end_amdhsa_kernel")
    return a.text()

if __name__ == "__main__":
    out = sys.argv[1]
    t = build(sys.argv[2:])
    open(out, "w").write(t)
    errs = check_hazards(t)
    for e in errs: print("HAZARD", e)
    print("lines", t.count("\n"), "bytes", len(t), "hazards", len(errs))
```

```python
from asmlib import *

KNAME = "adaLN_cond__memory_aug_recurrent_mem_tr__glu_gated_bilinear__prompt"

HSTR    = 65 * 16384
WS_KV   = 0x0000000
QSTR    = 65 * 8192
WS_QX   = 0x4000000
MSTR    = 65 * 4096
WS_KM   = 0x6000000
WS_PART = 0x6C00000
WS_MEM  = 0x6C80000
WS_STAMP= 0x6D00000
WS_H    = 0x7000000
WS_MOD  = 0x7200000
WS_FLAG = 0x7210000
WS_P1   = 0x7400000
WS_ACT  = 0x7800000
WS_H2   = 0x7C00000
D_CNT0, D_RTB = 0, 1
D_CNT1 = 16
D_MOD1, D_LN1 = 32, 40
D_INIT = 48
N_LN1 = 32
S_WS = 4
S_T  = 8
S_DBG = 12
S_H, S_W = 14, 15
S_TEAM = 3
S_CLM = 75
D_OVF = 24
WS_SIZE = 0x10000000

class VmQ:
    def __init__(self, a): self.a = a; self.q = []
    def issue(self, tag, n=1): self.q += [tag] * n
    def wait(self, tag):
        idx = max(i for i, t in enumerate(self.q) if t == tag)
        n = len(self.q) - 1 - idx
        assert n <= 63
        self.a(f"s_waitcnt vmcnt({n})")
        self.q = self.q[idx + 1:]
    def clone(self, a=None):
        o = VmQ(a or self.a); o.q = list(self.q); return o

def lane_expr(a, dst, src, terms, const=0, tmp="v15", sadd=None):
    first = True
    for (sr_, w, sl) in terms:
        a(f"v_bfe_u32 {tmp}, {src}, {sr_}, {w}")
        if first:
            a(f"v_lshlrev_b32 {dst}, {sl}, {tmp}"); first = False
        else:
            a(f"v_lshl_add_u32 {dst}, {tmp}, {sl}, {dst}")
    if const:
        a(f"v_add_u32 {dst}, {const}, {dst}")
    if sadd:
        a(f"v_add_u32 {dst}, {sadd}, {dst}")

def srd(a, d, ptr, nbytes):
    a(f"s_mov_b32 s{d}, s{ptr}")
    a(f"s_and_b32 s{d+1}, s{ptr+1}, 0xffff")
    a(f"s_mov_b32 s{d+2}, {hex(nbytes)}")
    a(f"s_mov_b32 s{d+3}, 0x00020000")

def sexpr(a, dst, terms, const=0, tmp=49):
    first = True
    for (reg, sr_, w, sl) in terms:
        t = dst if first else tmp
        a(f"s_bfe_u32 s{t}, s{reg}, {hex(sr_ | (w << 16))}")
        if sl: a(f"s_lshl_b32 s{t}, s{t}, {sl}")
        if not first: a(f"s_add_u32 s{dst}, s{dst}, s{t}")
        first = False
    if const: a(f"s_add_u32 s{dst}, s{dst}, {hex(const)}")

class LQ:
    def __init__(s): s.q = []
    def issue(s, tag): s.q.append(tag)
    def wait(s, tag):
        idx = max(i for i, t in enumerate(s.q) if t == tag)
        n = min(len(s.q) - 1 - idx, 15)
        s.q = s.q[idx + 1:]
        return f"s_waitcnt lgkmcnt({n})"

def dbg_arrive(a, idx, va="v24", vb="v25", soff=None):
    a(f"v_mov_b32 {va}, {('s%d' % soff) if soff is not None else 0}")
    a(f"v_mov_b32 {vb}, 1")
    a("s_mov_b64 exec, 1")
    a(f"global_atomic_add {va}, {vb}, {sr(S_DBG,2)} offset:{4*idx}")
    a("s_mov_b64 exec, -1")

def dbg_wait(a, idx, target, va="v24", vb="v25", st=48, sc=49, soff=None, limit=100000, sleep=8):
    l = a.uid("dw")
    a(f"s_cmp_lg_u32 s{S_W}, 0")
    a(f"s_cbranch_scc1 {l}_ok")
    a(f"v_mov_b32 {va}, {('s%d' % soff) if soff is not None else 0}")
    a(f"s_mov_b32 s{sc}, 0")
    a("s_mov_b64 exec, 1")
    a.label(l)
    a(f"global_load_dword {vb}, {va}, {sr(S_DBG,2)} offset:{4*idx} sc1")
    a("s_waitcnt vmcnt(0)")
    a(f"v_readfirstlane_b32 s{st}, {vb}")
    a(f"s_cmp_ge_u32 s{st}, {target}")
    a(f"s_cbranch_scc1 {l}_x")
    a(f"s_sleep {sleep}")
    a(f"s_add_u32 s{sc}, s{sc}, 1")
    a(f"s_cmp_lt_u32 s{sc}, {limit}")
    a(f"s_cbranch_scc1 {l}")
    a.label(l + "_x")
    a("s_mov_b64 exec, -1")
    a.label(l + "_ok")
    a("s_barrier")

def f32bits(x):
    import struct
    return hex(struct.unpack('<I', struct.pack('<f', x))[0])

def tstamp(a, opt, idx):
    if "time" in opt:
        a("s_memrealtime s[70:71]")
        a("s_waitcnt lgkmcnt(0)")
        a(f"v_writelane_b32 v143, s70, {idx}")

def claim(a):
    l = a.uid("cl")
    a(f"s_or_b32 s48, s{S_CLM}, s{S_W}")
    a(f"s_cbranch_scc1 {l}")
    a(f"s_lshl_b32 s48, s{S_TEAM}, 2")
    a("s_add_u32 s48, s48, 60")
    a(f"s_cmp_eq_u32 s{S_TEAM}, 0")
    a("s_cselect_b32 s48, 0, s48")
    a(f"s_lshl_b32 s49, 1, s{S_H}")
    a("v_mov_b32 v124, s48"); a("v_mov_b32 v125, s49")
    a("s_mov_b64 exec, 1")
    a(f"global_atomic_or v126, v124, v125, {sr(S_DBG,2)} sc0")
    a("s_mov_b64 exec, -1")
    a.label(l)

def verify_claim(a, nvm, slot):
    l = a.uid("vc")
    a(f"s_cmp_lg_u32 s{S_CLM}, 0")
    a(f"s_cbranch_scc1 {l}_done")
    a(f"v_mov_b32 v125, {slot}")
    a(f"s_cmp_lg_u32 s{S_W}, 0")
    a(f"s_cbranch_scc1 {l}_w")
    a(f"s_waitcnt vmcnt({nvm})")
    a("s_mov_b64 exec, 1")
    a("ds_write_b32 v125, v126")
    a("s_mov_b64 exec, -1")
    a("s_waitcnt lgkmcnt(0)")
    a.label(l + "_w")
    a("s_barrier")
    a("ds_read_b32 v124, v125")
    a("s_waitcnt lgkmcnt(0)")
    a("v_readfirstlane_b32 s48, v124")
    a(f"s_mov_b32 s{S_CLM}, 1")
    a("s_nop 2")
    a(f"s_bitcmp1_b32 s48, s{S_H}")
    a("s_cbranch_scc1 L_overflow")
    a.label(l + "_done")
```

```python
from common import *
S_GID = 16
def emit_gemm(a, opt=()):
    a.c("==== G role: s3 = team (1:K, 2:V, 3:Q), s14 = head ====")
    LE = lambda *x, **k: lane_expr(a, *x, tmp="v31", **k)
    S_OUT, S_OUT2, S_STR, S_HS, S_M0, S_SEG, S_FL, S_HT, S_DONE, S_PO = 17, 18, 19, 20, 21, 22, 23, 24, 25, 26
    a("s_load_dwordx2 s[32:33], s[0:1], 24")
    a("s_load_dwordx2 s[34:35], s[0:1], 32")
    a("s_load_dwordx2 s[36:37], s[0:1], 16")
    sexpr(a, S_FL, [(S_H, 0, 5, 7), (S_TEAM, 0, 2, 4)], WS_FLAG - 16)
    a("v_and_b32 v4, 63, v0")
    a("v_cmp_eq_u32 vcc, 0, v4")
    a("v_mov_b32 v3, 0x40000000")
    a("s_nop 0")
    a("v_cndmask_b32 v3, v3, 0, vcc")
    a("s_waitcnt lgkmcnt(0)")
    a(f"s_cmp_eq_u32 s{S_TEAM}, 2")
    a("s_cselect_b32 s32, s34, s32"); a("s_cselect_b32 s33, s35, s33")
    a(f"s_cmp_eq_u32 s{S_TEAM}, 3")
    a("s_cselect_b32 s32, s36, s32"); a("s_cselect_b32 s33, s37, s33")
    srd(a, S_T, 32, 4194304)
    LE("v28", "v0", [(4, 2, 5)])
    LE("v29", "v0", [(0, 4, 4)])
    a("v_xor_b32 v28, v28, v29")
    LE("v30", "v0", [(4, 2, 13)])
    a("v_add_u32 v5, v28, v30")
    a("v_xor_b32 v6, 128, v5")
    sexpr(a, 50, [(S_H, 0, 5, 8), (S_W, 0, 2, 20)])
    sexpr(a, 51, [(S_W, 0, 2, 15)])
    for i in range(32):
        a(f"s_add_u32 m0, s51, {i * 1024}")
        a(f"s_add_u32 s48, s50, {hex(4 * i * 8192)}")
        a(f"buffer_load_dwordx4 v{5 + ((i >> 1) & 1)}, {sr(S_T,4)}, s48 offen lds")
    claim(a)
    LE("v28", "v0", [(4, 2, 11), (2, 2, 8), (0, 1, 3)])
    LE("v29", "v0", [(6, 2, 6), (1, 1, 4)])
    LE("v30", "v0", [(2, 2, 5), (4, 1, 7)])
    a("v_xor_b32 v29, v29, v30")
    a("v_add_u32 v8, v28, v29")
    a("v_xor_b32 v9, 32, v8")
    a("v_add_u32 v10, 0x10000, v8")
    a("v_add_u32 v11, 0x10000, v9")
    a("s_waitcnt vmcnt(0)")
    a("s_barrier")
    W = lambda t, ks, off=0, n=4: ar((t * 16 + ks) * 4 + off, n)
    for ks in range(16):
        for t in range(2):
            for u in range(2):
                off = ((32 * ks + 4 * u) * 256) % 65536
                a(f"ds_read_b64_tr_b16 {W(t, ks, 2*u, 2)}, v{8 + t + 2 * (ks // 8)} offset:{off}")
    a(f"s_mul_i32 s48, s{S_H}, {HSTR}")
    a(f"s_mul_i32 s50, s{S_H}, {QSTR}")
    a(f"s_cmp_eq_u32 s{S_TEAM}, 1")
    a("s_cbranch_scc0 G_notk")
    sexpr(a, S_OUT, [(S_W, 1, 1, 12), (S_W, 0, 1, 10)], WS_KV)
    a(f"s_add_u32 s{S_OUT}, s{S_OUT}, s48")
    a(f"s_add_u32 s{S_OUT2}, s{S_OUT}, 8192")
    a(f"s_mov_b32 s{S_STR}, 16384")
    a("s_branch G_addr")
    a.label("G_notk")
    a(f"s_cmp_eq_u32 s{S_TEAM}, 2")
    a("s_cbranch_scc0 G_notv")
    sexpr(a, S_OUT, [(S_W, 0, 2, 12)], WS_KV + 2048)
    a(f"s_add_u32 s{S_OUT}, s{S_OUT}, s48")
    a(f"s_add_u32 s{S_OUT2}, s{S_OUT}, 1024")
    a(f"s_mov_b32 s{S_STR}, 16384")
    a("s_branch G_addr")
    a.label("G_notv")
    sexpr(a, S_OUT, [(S_W, 0, 2, 10)], WS_QX)
    a(f"s_add_u32 s{S_OUT}, s{S_OUT}, s50")
    a(f"s_add_u32 s{S_OUT2}, s{S_OUT}, 4096")
    a(f"s_mov_b32 s{S_STR}, 8192")
    a.label("G_addr")
    a(f"s_mul_i32 s{S_PO}, s{S_H}, {MSTR}")
    sexpr(a, 48, [(S_W, 0, 2, 10)], WS_KM); a(f"s_add_u32 s{S_PO}, s{S_PO}, s48")
    a(f"s_cmp_eq_u32 s{S_TEAM}, 1")
    a("s_cselect_b32 s48, 0, 0x40000000")
    LE("v7", "v0", [(0, 6, 4)])
    a("v_add_u32 v7, s48, v7")
    for i in range(4): a(f"v_mov_b32 v{12+i}, -1")
    LE("v1", "v0", [(0, 6, 4)])
    sexpr(a, S_HS, [(S_W, 0, 2, 13)], WS_H)
    sexpr(a, S_M0, [(S_W, 0, 2, 13)])
    a("s_waitcnt lgkmcnt(0)")
    verify_claim(a, 0, 163840 - 64)
    tstamp(a, opt, 16)
    dbg_wait(a, D_LN1, N_LN1, sleep=16)
    tstamp(a, opt, 17)
    def dma_list():
        L = []
        for half in range(2):
            for i in range(4):
                pre_ = [f"s_add_u32 m0, s{S_M0}, {half * 4096}", f"s_add_u32 s{S_HT}, s{S_HS}, {half * 4096}"] if i == 0 else []
                L.append(pre_ + [f"buffer_load_dwordx4 v1, {sr(S_WS,4)}, s{S_HT} offen offset:{1024*i} sc1 lds"])
        L[-1] += [f"s_add_u32 s{S_HS}, s{S_HS}, 32768", f"s_add_u32 s{S_M0}, s{S_M0}, 32768", f"s_and_b32 s{S_M0}, s{S_M0}, 0x1ffff"]
        return L
    for _ in range(3):
        for grp in dma_list():
            for x in grp: a(x)
    a(f"s_mov_b32 s{S_SEG}, 0")
    a(f"s_mov_b32 s{S_DONE}, 0")
    a("v_mov_b32 v2, v1")
    a("s_waitcnt vmcnt(16)")
    a(f"s_cmp_eq_u32 s{S_TEAM}, 2")
    a("s_cbranch_scc1 G_loopV")
    for var in ("K", "V"):
        a.raw(".p2align 6")
        a.label(f"G_loop{var}")
        a("s_barrier")
        lq = LQ()
        HB = lambda rt, ks: 32 + ((ks % 4) * 2 + rt) * 4
        def rd(ks):
            for rt in range(2):
                a(f"ds_read_b128 {vr(HB(rt, ks),4)}, v2 offset:{(rt * 16 + ks) * 1024}"); lq.issue(ks)
        for ks in range(3): rd(ks)
        a(f"s_cmp_lg_u32 s{S_W}, 0")
        a(f"s_cbranch_scc1 G_nf{var}")
        a(f"v_mov_b32 v4, s{S_DONE}")
        a(f"buffer_store_dword v4, v3, {sr(S_WS,4)}, s{S_FL} offen sc1")
        a.label(f"G_nf{var}")
        dl = dma_list()
        AC = lambda rt, t: 16 + (rt * 2 + t) * 4 if var == "K" else 16 + (t * 2 + rt) * 4
        for ks in range(16):
            a(lq.wait(ks))
            n = 0
            for rt in range(2):
                for t in range(2):
                    d = vr(AC(rt, t), 4)
                    c = d if ks else "0"
                    if var == "K": a(f"v_mfma_f32_16x16x32_bf16 {d}, {W(t, ks)}, {vr(HB(rt, ks),4)}, {c}")
                    else: a(f"v_mfma_f32_16x16x32_bf16 {d}, {vr(HB(rt, ks),4)}, {W(t, ks)}, {c}")
                    if n == 0 and ks + 3 < 16: rd(ks + 3)
                    if n == 2 and ks % 2 == 0:
                        for x in dl[ks // 2]: a(x)
                    if n == 2 and ks == 15 and var == "K":
                        a(f"buffer_store_dwordx4 v[12:15], v7, {sr(S_WS,4)}, s{S_PO} offen sc1")
                        a(f"s_add_u32 s{S_PO}, s{S_PO}, 4096")
                    n += 1
        a("v_add_u32 v2, 0x8000, v2")
        a("v_and_b32 v2, 0x1ffff, v2")
        a(f"s_mov_b32 s{S_DONE}, s{S_SEG}")
        a(f"s_add_u32 s{S_SEG}, s{S_SEG}, 1")
        a("s_nop 0")
        for i in range(4): a(f"v_cvt_pk_bf16_f32 v{64+i}, v{16+2*i}, v{17+2*i}")
        a(f"buffer_store_dwordx4 v[64:67], v1, {sr(S_WS,4)}, s{S_OUT} offen sc1")
        for i in range(4): a(f"v_cvt_pk_bf16_f32 v{68+i}, v{24+2*i}, v{25+2*i}")
        a(f"buffer_store_dwordx4 v[68:71], v1, {sr(S_WS,4)}, s{S_OUT2} offen sc1")
        a(f"s_add_u32 s{S_OUT}, s{S_OUT}, s{S_STR}")
        a(f"s_add_u32 s{S_OUT2}, s{S_OUT2}, s{S_STR}")
        a(f"s_waitcnt vmcnt({11 if var == 'K' else 10})")
        a(f"s_cmp_eq_u32 s{S_SEG}, {N_LN1//2-3}")
        a(f"s_cbranch_scc1 G_first{var}")
        a(f"s_cmp_eq_u32 s{S_SEG}, 2")
        a(f"s_cbranch_scc1 G_second{var}")
        a(f"s_cmp_lt_u32 s{S_SEG}, 64")
        a(f"s_cbranch_scc1 G_loop{var}")
        a("s_branch G_fin")
        a.label(f"G_first{var}")
        dbg_wait(a, D_INIT, 128, sleep=64)
        a(f"s_branch G_loop{var}")
        a.label(f"G_second{var}")
        a("s_waitcnt vmcnt(0)")
        a(f"s_mov_b32 s{S_DONE}, 2")
        tstamp(a, opt, 18)
        a(f"s_branch G_loop{var}")
    a.label("G_fin")
    a("s_waitcnt vmcnt(0)")
    a("s_barrier")
    a("v_mov_b32 v4, 64")
    a(f"buffer_store_dword v4, v3, {sr(S_WS,4)}, s{S_FL} offen sc1")
    a("s_waitcnt vmcnt(0)")
```

```python
from common import *
from pre import rnd1, rnd2, MASK, S_TID, xsum_g
import math

S_X, S_O = 20, 24
S_SEG, S_TAG, S_PC, S_PMAX, S_SC, S_L2E = 28, 29, 30, 31, 18, 19
S_P1S, S_P1L, S_P1S2 = 52, 53, 54
S_SLOT, S_PSLOT = 55, 56
S_H2B, S_H2O, S_ACTW, S_ACTR = 57, 58, 59, 60
S_KV, S_Q, S_KM, S_KMV, S_ROW, S_OUT, S_FLG, S_HAVE, S_X2R = 61, 62, 63, 64, 65, 66, 67, 68, 69
S_MKV, S_MQ, S_MODE = 72, 73, 74
vL16, vCol, vP, vKw, vKr, vHg, vHw, vHr, vOw, vZero, vQr, vVr, vEw, vEr, vEo = ["v%d" % i for i in range(1, 16)]
MC = 16
BIAS, SEL = 24, 32
vX2g = "v36"
XR = 37
T0, T1, T2 = 38, 39, 40
L_K, L_O, L_ST, L_E, L_KV, L_Q, L_H = 0, 4096, 12288, 16384, 24576, 40960, 49152
FS, RTS = 1088, 17408
WoF = lambda ct, ks, off=0, n=4: ar((ct * 4 + ks) * 4 + off, n)
GF = lambda m, ks, off=0, n=4: ar(128 + (m * 16 + ks) * 4 + off, n)
DF = lambda t, ks, off=0, n=4: vr(144 + (t * 14 + ks) * 4 + off, n)

def wave_sum(a, x, t):
    a("s_nop 1")
    for ror in (1, 2, 4, 8):
        a(f"v_add_f32_dpp v{x}, v{x}, v{x} row_ror:{ror} row_mask:0xf bank_mask:0xf")
        if ror < 8: a("s_nop 1")
    xsum_g(a, x, t)

def emit_post_addr(a):
    LE = lambda *x, **k: lane_expr(a, *x, tmp="v47", **k)
    WS = sr(S_WS, 4)
    LE(vL16, "v0", [(0, 6, 4)])
    LE(vCol, "v0", [(6, 2, 8), (2, 2, 6), (5, 1, 5), (0, 2, 3), (4, 1, 2)])
    LE(vP, "v0", [(0, 4, 15), (4, 2, 4)])
    LE(vKw, "v0", [(6, 2, 10), (0, 4, 5), (4, 2, 3)], L_K)
    LE(vKr, "v0", [(0, 6, 3)], L_K)
    LE(vHg, "v0", [(4, 2, 11), (6, 2, 8), (0, 4, 4)])
    LE("v48", "v0", [(6, 2, 2), (2, 2, 0)])
    a(f"v_mul_u32_u24 {vHw}, {FS}, v48")
    a("v_and_b32 v48, 3, v0"); a("v_mul_u32_u24 v48, 272, v48"); a(f"v_add_u32 {vHw}, {vHw}, v48")
    LE("v48", "v0", [(4, 2, 4)], L_H); a(f"v_add_u32 {vHw}, {vHw}, v48")
    a("v_bfe_u32 v48, v0, 4, 2"); a(f"v_mul_u32_u24 {vHr}, 272, v48")
    LE("v48", "v0", [(0, 4, 4)], L_H); a(f"v_add_u32 {vHr}, {vHr}, v48")
    LE(vOw, "v0", [(6, 1, 12), (7, 1, 11), (0, 6, 4)], L_O)
    a(f"v_mov_b32 {vZero}, 0")
    LE(vQr, "v0", [(6, 1, 12), (0, 6, 4)], L_Q)
    LE(vVr, "v0", [(7, 1, 13), (0, 6, 4)], L_KV + 2048)
    LE(vEw, "v0", [(6, 2, 11), (0, 6, 4)], L_E)
    LE(vEr, "v0", [(3, 1, 10), (1, 2, 8), (4, 4, 4), (0, 1, 3)], L_E)
    LE(vEo, "v0", [(4, 4, 10), (0, 4, 2)])
    LE(vX2g, "v0", [(4, 4, 11), (0, 4, 2)])
    a(f"s_sub_u32 s50, s{S_TEAM}, 4")
    sexpr(a, S_P1S, [(50, 0, 2, 20), (S_W, 0, 2, 13), (S_H, 0, 5, 8)], WS_P1)
    a(f"s_add_u32 s{S_P1S2}, s{S_P1S}, {16*32768}")
    sexpr(a, S_P1L, [(50, 0, 2, 20), (S_H, 0, 5, 15), (S_W, 0, 2, 13)], WS_P1)
    sexpr(a, S_H2B, [(50, 0, 2, 18)], WS_H2)
    sexpr(a, S_H2O, [(50, 0, 2, 18), (S_H, 0, 5, 11)], WS_H2)
    sexpr(a, S_X2R, [(50, 0, 2, 18), (S_H, 0, 1, 15), (S_H, 1, 4, 6)], WS_H2 + 1024)
    sexpr(a, S_ACTW, [(50, 0, 2, 19), (S_H, 0, 5, 11), (S_W, 1, 1, 10), (S_W, 0, 1, 3)], WS_ACT)
    a(f"s_and_b32 s48, s{S_H}, 1"); a(f"s_mul_i32 s48, s48, {56*1024}")
    a(f"s_mul_i32 s51, s{S_W}, {14*1024}"); a("s_add_u32 s48, s48, s51")
    sexpr(a, S_ACTR, [(50, 0, 2, 19)], WS_ACT); a(f"s_add_u32 s{S_ACTR}, s{S_ACTR}, s48")

def emit_post_weights(a, opt):
    LE = lambda *x, **k: lane_expr(a, *x, tmp="v47", **k)
    WS = sr(S_WS, 4)
    a.c("==== T role: team-buffer init + stationary weights ====")
    a("s_load_dwordx2 s[34:35], s[0:1], 40")
    a("s_load_dwordx4 s[36:39], s[0:1], 64")
    a("s_load_dwordx2 s[40:41], s[0:1], 80")
    emit_post_addr(a)
    import mega
    a(f"s_mov_b32 s{S_MODE}, 1")
    mega.emit_mode(a, opt, "T_init1", "v44", "v45")
    a(f"s_mov_b32 s{S_MODE}, 0")
    for mode, st in ((0, ""), (1, " sc1")):
        a.label(f"T_init{mode}")
        for i in range(2): a(f"v_mov_b32 v{48+i}, -1")
        for i in range(4): a(f"v_mov_b32 v{52+i}, 0")
        for half in range(2):
            a(f"s_add_u32 s48, s{S_P1L}, {half*4096}")
            for k in range(4):
                a(f"buffer_store_dwordx4 v[52:55], {vL16}, {WS}, s48 offen offset:{1024*k}{st}")
        for sl in range(3):
            a(f"s_add_u32 s48, s{S_H2O}, {sl*65536}")
            a(f"buffer_store_dword v48, {vCol}, {WS}, s48 offen{st}")
            a(f"buffer_store_dword v48, {vCol}, {WS}, s48 offen offset:1024{st}")
        a(f"s_cmp_ge_u32 s{S_H}, 28")
        a(f"s_cbranch_scc1 T_nopa{mode}")
        for sl in range(3):
            for rt in range(2):
                a(f"s_add_u32 s48, s{S_ACTW}, {sl*131072 + rt*56*1024}")
                a(f"buffer_store_dwordx2 v[48:49], {vL16}, {WS}, s48 offen{st}")
        a.label(f"T_nopa{mode}")
        if mode == 0: a("s_branch T_initd")
    a.label("T_initd")
    a("s_waitcnt lgkmcnt(0)")
    a("s_barrier")
    LE("v60", "v0", [(4, 2, 5)])
    LE("v61", "v0", [(0, 4, 4)])
    a("v_xor_b32 v60, v60, v61")
    LE("v61", "v0", [(4, 2, 10)])
    a("v_add_u32 v62, v60, v61")
    a("v_xor_b32 v63, 128, v62")
    LE("v64", "v0", [(6, 2, 15), (2, 4, 8), (1, 1, 4), (2, 3, 5), (0, 1, 3)])
    sexpr(a, 51, [(S_W, 0, 2, 15)])
    srd(a, S_T, 34, 4194304)
    sexpr(a, 50, [(S_H, 0, 5, 17), (S_W, 0, 2, 8)])
    for i in range(32):
        a(f"s_add_u32 m0, s51, {i * 1024}")
        a(f"s_add_u32 s48, s50, {4 * i * 1024}")
        a(f"buffer_load_dwordx4 v{62 + (i & 1)}, {sr(S_T,4)}, s48 offen lds")
    a("s_waitcnt vmcnt(32)")
    a("s_barrier")
    a(f"s_cmp_lg_u32 s{S_W}, 0")
    a("s_cbranch_scc1 T_noarr")
    dbg_arrive(a, D_INIT, "v44", "v45")
    a.label("T_noarr")
    a("s_waitcnt vmcnt(0)")
    for ct in range(8):
        a(f"v_xor_b32 v65, {32 * ct}, v64")
        for ks in range(4):
            for u in range(2):
                a(f"ds_read_b64_tr_b16 {WoF(ct, ks, 2*u, 2)}, v65 offset:{(32*ks + 16*u) * 256}")
    a("s_waitcnt lgkmcnt(0)")
    LE("v60", "v0", [(2, 4, 10)])
    LE("v61", "v0", [(0, 2, 4)])
    LE("v62", "v0", [(4, 1, 5)])
    a("v_xor_b32 v61, v61, v62")
    a("v_add_u32 v62, v60, v61")
    srd(a, S_T, 40, 1792 * 1024)
    a(f"s_mul_i32 s50, s{S_W}, {448*1024}")
    sexpr(a, 48, [(S_H, 1, 4, 6)]); a("s_add_u32 s50, s50, s48")
    for i in range(28):
        a(f"s_add_u32 m0, s51, {i * 1024}")
        a(f"s_add_u32 s48, s50, {16 * i * 1024}")
        a(f"buffer_load_dwordx4 v62, {sr(S_T,4)}, s48 offen lds")
    LE("v64", "v0", [(6, 2, 15), (2, 4, 6), (1, 1, 4), (4, 1, 5), (0, 1, 3)])
    a("v_xor_b32 v65, 32, v64")
    a("s_waitcnt vmcnt(0)")
    for t in range(2):
        for ks in range(14):
            for u in range(2):
                a(f"ds_read_b64_tr_b16 {DF(t, ks, 2*u, 2)}, v{64+t} offset:{(32*ks + 16*u) * 64}")
    a("s_waitcnt lgkmcnt(0)")
    a("s_barrier")
    a(f"s_cmp_ge_u32 s{S_H}, 28")
    a("s_cbranch_scc1 T_now")
    a("v_bfe_u32 v60, v0, 3, 3")
    a("v_mul_u32_u24 v60, 3584, v60")
    LE("v61", "v0", [(0, 3, 4)])
    LE("v62", "v0", [(4, 1, 5)])
    a("v_xor_b32 v61, v61, v62")
    a("v_add_u32 v62, v60, v61")
    a("v_xor_b32 v63, 64, v61")
    a("v_add_u32 v63, v60, v63")
    a(f"s_mul_i32 s50, s{S_W}, {128*3584}")
    a(f"s_lshl_b32 s48, s{S_H}, 7")
    a("s_add_u32 s50, s50, s48")
    sexpr(a, 51, [(S_W, 0, 2, 14)])
    for m in range(2):
        srd(a, S_T, 36 + 2 * m, 512 * 3584)
        for i in range(16):
            a(f"s_add_u32 m0, s51, {m * 65536 + i * 1024}")
            a(f"s_add_u32 s48, s50, {8 * i * 3584}")
            a(f"buffer_load_dwordx4 v{62 + (i & 1)}, {sr(S_T,4)}, s48 offen lds")
    LE("v60", "v0", [(4, 2, 10), (2, 2, 7), (0, 1, 3)])
    LE("v61", "v0", [(6, 2, 5), (1, 1, 4)])
    LE("v64", "v0", [(3, 1, 5), (4, 1, 6)])
    a("v_xor_b32 v61, v61, v64")
    a("v_add_u32 v64, v60, v61")
    a("v_add_u32 v65, 0x10000, v64")
    a("s_waitcnt vmcnt(0)")
    a("s_barrier")
    for m in range(2):
        for ks in range(16):
            for u in range(2):
                a(f"ds_read_b64_tr_b16 {GF(m, ks, 2*u, 2)}, v{64+m} offset:{(32*ks + 4*u) * 128}")
    a("s_waitcnt lgkmcnt(0)")
    a.label("T_now")
    a("s_barrier")

def emit_post_final(a, opt):
    LE = lambda *x, **k: lane_expr(a, *x, tmp="v47", **k)
    WS = sr(S_WS, 4)
    a("s_load_dwordx2 s[32:33], s[0:1], 0")
    a("s_load_dwordx2 s[42:43], s[0:1], 104")
    dbg_wait(a, D_INIT, 128, "v44", "v45", sleep=32)
    a(f"s_mov_b32 s48, {hex(WS_MOD + 2048)}")
    for i, k in enumerate((0, 2, 1)):
        a(f"buffer_load_dword v{56+i}, {vCol}, {WS}, s48 offen offset:{1024*k} sc1")
    LE("v60", "v0", [(0, 4, 2)])
    sexpr(a, 48, [(S_H, 1, 4, 6)], WS_MOD + 5 * 1024)
    a(f"buffer_load_dword v59, v60, {WS}, s48 offen sc1")
    a("s_waitcnt vmcnt(0) lgkmcnt(0)")
    for i in range(4):
        a(f"v_lshlrev_b32 v{MC+2*i}, 16, v{56+i}")
        a(f"v_and_b32 v{MC+2*i+1}, s{MASK}, v{56+i}")
    a(f"v_add_f32 v{MC+2}, 1.0, v{MC+2}"); a(f"v_add_f32 v{MC+3}, 1.0, v{MC+3}")
    rnd2(a, MC + 2, MC + 3, 47)
    srd(a, S_X, 32, 2048 * 1024)
    srd(a, S_O, 42, 2048 * 1024)
    a("v_and_b32 v60, 3, v0"); a("v_bfe_u32 v61, v0, 2, 2")
    a("v_mov_b32 v62, 0x3f80"); a("v_mov_b32 v63, 0x3f800000")
    a("v_cmp_eq_u32 vcc, 1, v60"); a("s_nop 1"); a("v_cndmask_b32 v62, v62, v63, vcc")
    a("v_cmp_gt_u32 vcc, 2, v60"); a("s_nop 1"); a("v_cndmask_b32 v62, 0, v62, vcc")
    for d in range(4):
        a(f"v_cmp_eq_u32 vcc, {d}, v61"); a("s_nop 1"); a(f"v_cndmask_b32 v{SEL+d}, 0, v62, vcc")
    LE("v60", "v0", [(6, 1, 4), (0, 4, 0)])
    LE("v61", "v0", [(4, 2, 2)])
    a(f"v_mov_b32 v63, {f32bits(-1e30)}")
    for t in range(2):
        for r in range(4):
            a(f"v_add_u32 v62, {16*t + r}, v61")
            a("v_cmp_gt_u32 vcc, v62, v60"); a("s_nop 1")
            a(f"v_cndmask_b32 v{BIAS+4*t+r}, 0, v63, vcc")
    a(f"s_sub_u32 s{S_SEG}, s{S_TEAM}, 4")
    a(f"s_mul_i32 s{S_KV}, s{S_H}, {HSTR}")
    sexpr(a, 48, [(S_SEG, 0, 2, 14), (S_W, 0, 2, 12)], WS_KV); a(f"s_add_u32 s{S_KV}, s{S_KV}, s48")
    a(f"s_mul_i32 s{S_Q}, s{S_H}, {QSTR}")
    sexpr(a, 48, [(S_SEG, 0, 2, 13), (S_W, 0, 2, 11)], WS_QX); a(f"s_add_u32 s{S_Q}, s{S_Q}, s48")
    sexpr(a, S_MKV, [(S_W, 0, 2, 12)], L_KV)
    sexpr(a, S_MQ, [(S_W, 0, 2, 11)], L_Q)
    a(f"s_mul_i32 s{S_KM}, s{S_H}, {MSTR}")
    a(f"s_lshl_b32 s48, s{S_SEG}, 12"); a(f"s_add_u32 s{S_KM}, s{S_KM}, s48")
    sexpr(a, 48, [(S_W, 1, 1, 11)], WS_KM); a(f"s_add_u32 s{S_KMV}, s{S_KM}, s48")
    sexpr(a, 48, [(S_W, 0, 2, 10)], WS_KM); a(f"s_add_u32 s{S_KM}, s{S_KM}, s48")
    sexpr(a, S_ROW, [(S_SEG, 0, 2, 15), (S_H, 0, 5, 10)])
    sexpr(a, S_OUT, [(S_SEG, 0, 2, 15), (S_H, 0, 1, 14), (S_H, 1, 4, 6)])
    sexpr(a, S_FLG, [(S_H, 0, 5, 7)], WS_FLAG)
    a(f"s_mov_b32 s{S_HAVE}, 0")
    a(f"s_mov_b32 s{S_TAG}, 1")
    a(f"s_mov_b32 s{S_SLOT}, 0")
    a(f"s_mov_b32 s{S_PSLOT}, 2")
    a(f"s_mov_b32 s{S_PMAX}, 100000")
    a(f"s_mov_b32 s{S_SC}, {f32bits(128 ** -0.5)}")
    a(f"s_mov_b32 s{S_L2E}, {f32bits(math.log2(math.e))}")

def poll(a, name, loads, check, sleep=3):
    a(f"s_mov_b32 s{S_PC}, 0")
    a.label(name)
    loads()
    check()
    a(f"s_cbranch_vccz {name}_ok")
    a(f"s_sleep {sleep}")
    a(f"s_add_u32 s{S_PC}, s{S_PC}, 1")
    a(f"s_cmp_lt_u32 s{S_PC}, s{S_PMAX}")
    a(f"s_cbranch_scc1 {name}")
    a(f"s_mov_b32 s{S_PMAX}, 1")
    a.label(name + "_ok")

def prefetch(a, name, segreg):
    WS = sr(S_WS, 4)
    a(f"s_cmp_ge_u32 s{segreg}, 64")
    a(f"s_cbranch_scc1 {name}_skip")
    a(f"s_cmp_gt_u32 s{S_HAVE}, s{segreg}")
    a(f"s_cbranch_scc1 {name}_fok")
    a(f"s_mov_b32 s{S_PC}, 0")
    a.label(name + "_fl")
    a("s_mov_b64 exec, 7")
    a(f"buffer_load_dword v45, {vL16}, {WS}, s{S_FLG} offen sc1")
    a("s_mov_b64 exec, -1")
    a("s_waitcnt vmcnt(0)")
    a(f"v_readlane_b32 s{S_HAVE}, v45, 0"); a("v_readlane_b32 s48, v45, 1"); a("v_readlane_b32 s49, v45, 2")
    a("s_nop 1")
    a(f"s_min_u32 s{S_HAVE}, s{S_HAVE}, s48"); a(f"s_min_u32 s{S_HAVE}, s{S_HAVE}, s49")
    a(f"s_cmp_gt_u32 s{S_HAVE}, s{segreg}")
    a(f"s_cbranch_scc1 {name}_fok")
    a("s_sleep 8")
    a(f"s_add_u32 s{S_PC}, s{S_PC}, 1")
    a(f"s_cmp_lt_u32 s{S_PC}, s{S_PMAX}")
    a(f"s_cbranch_scc1 {name}_fl")
    a(f"s_mov_b32 s{S_PMAX}, 1")
    a.label(name + "_fok")
    a(f"s_mov_b32 m0, s{S_MKV}"); a("s_nop 0")
    for i in range(4): a(f"buffer_load_dwordx4 {vL16}, {WS}, s{S_KV} offen offset:{1024*i} sc1 lds")
    a(f"s_mov_b32 m0, s{S_MQ}"); a("s_nop 0")
    for i in range(2): a(f"buffer_load_dwordx4 {vL16}, {WS}, s{S_Q} offen offset:{1024*i} sc1 lds")
    a(f"buffer_load_dword v{XR}, {vCol}, {sr(S_X,4)}, s{S_ROW} offen")
    a(f"s_add_u32 s{S_KV}, s{S_KV}, {4*16384}")
    a(f"s_add_u32 s{S_Q}, s{S_Q}, {4*8192}")
    a(f"s_add_u32 s{S_ROW}, s{S_ROW}, {4*32768}")
    a.label(name + "_skip")

def emit_post_loop(a, fast, pfx, opt):
    def geti(p, d):
        for o in opt:
            if o.startswith(p) and o[len(p):].isdigit(): return int(o[len(p):])
        return d
    st = "" if fast else " sc1"
    WS = sr(S_WS, 4)
    QF, KX, VX, KF, SS = 48, 64, 96, 64, 112
    prefetch(a, pfx + "_pf0", S_SEG)
    a("s_waitcnt vmcnt(0)")
    a("s_barrier")
    a.raw(".p2align 6")
    a.label(pfx + "_loop")
    tstamp(a, opt, 0)
    for ks in range(4):
        a(f"ds_read_b128 {vr(QF+4*ks,4)}, {vQr} offset:{1024*ks}")
        for t in range(2):
            i = t * 4 + ks
            a(f"ds_read_b128 {vr(KX+4*i,4)}, {vL16} offset:{L_KV + (i//2)*4096 + (i%2)*1024}")
    for ks in range(4):
        a(f"s_waitcnt lgkmcnt({9-3*ks})")
        for t in range(2):
            d = vr(SS + 4 * t, 4)
            a(f"v_mfma_f32_16x16x32_bf16 {d}, {vr(KX+4*(t*4+ks),4)}, {vr(QF+4*ks,4)}, {d if ks else vr(BIAS+4*t,4)}")
    for i in range(4):
        a(f"ds_read_b128 {vr(VX+4*i,4)}, {vVr} offset:{(i//2)*4096 + (i%2)*1024}")
    a("s_nop 3")
    def scale(regs):
        for i in range(0, len(regs), 2): rnd2(a, regs[i], regs[i+1], T2)
        for r in regs: a(f"v_mul_f32 v{r}, s{S_SC}, v{r}")
        for i in range(0, len(regs), 2): rnd2(a, regs[i], regs[i+1], T2)
    scale(list(range(SS, SS + 8)))
    a(f"v_max3_f32 v41, v{SS}, v{SS+1}, v{SS+2}"); a(f"v_max3_f32 v{T1}, v{SS+3}, v{SS+4}, v{SS+5}")
    a(f"v_max3_f32 v41, v41, v{SS+6}, v{SS+7}"); a(f"v_max_f32 v41, v41, v{T1}")
    tstamp(a, opt, 1)
    KMR, VMR = 124, 126
    def ld():
        a(f"buffer_load_dwordx2 {vr(KMR,2)}, {vL16}, {WS}, s{S_KM} offen sc1")
        a(f"buffer_load_dwordx2 {vr(VMR,2)}, {vL16}, {WS}, s{S_KMV} offen offset:8 sc1")
        a(f"buffer_load_dwordx2 {vr(VMR+2,2)}, {vL16}, {WS}, s{S_KMV} offen offset:1032 sc1")
        a("s_waitcnt vmcnt(0)")
    def ck():
        a(f"v_max3_u32 v{T0}, v{KMR}, v{VMR}, v{VMR+2}")
        a(f"v_cmp_eq_u32 vcc, -1, v{T0}")
        a(f"ds_write2st64_b32 {vKw}, v{KMR}, v{KMR+1} offset1:2")
    poll(a, pfx + "_km", ld, ck, sleep=geti("tk", 4))
    tstamp(a, opt, 2)
    a("s_waitcnt lgkmcnt(0)"); a("s_barrier")
    for ks in range(4):
        for u in range(2):
            a(f"ds_read_b64_tr_b16 {vr(KF+4*ks+2*u,2)}, {vKr} offset:{1024*ks+512*u}")
    PX, PM0, PM1, OC = 80, 84, 86, 48
    a(f"v_mov_b32 v{PM0+1}, 0"); a(f"v_mov_b32 v{PM1}, 0")
    for ks in range(4):
        a(f"s_waitcnt lgkmcnt({6-2*ks})")
        d = vr(SS + 8, 4)
        a(f"v_mfma_f32_16x16x32_bf16 {d}, {vr(KF+4*ks,4)}, {vr(QF+4*ks,4)}, {d if ks else 0}")
    a("s_nop 7")
    scale([SS + 8, SS + 9])
    a(f"v_max3_f32 v41, v41, v{SS+8}, v{SS+9}")
    xsum_g(a, 41, T1, "v_max_f32")
    a(f"v_mul_f32 v41, s{S_L2E}, v41")
    for r in range(10): a(f"v_fma_f32 v{SS+r}, v{SS+r}, s{S_L2E}, -v41")
    for r in range(10): a(f"v_exp_f32 v{SS+r}, v{SS+r}")
    a(f"v_add_f32 v41, v{SS}, v{SS+1}"); a(f"v_add_f32 v{T0}, v{SS+2}, v{SS+3}"); a(f"v_add_f32 v{T1}, v{SS+4}, v{SS+5}")
    a(f"v_add_f32 v{T2}, v{SS+6}, v{SS+7}"); a(f"v_add_f32 v41, v41, v{T0}"); a(f"v_add_f32 v{T1}, v{T1}, v{T2}")
    a(f"v_add_f32 v{T0}, v{SS+8}, v{SS+9}"); a(f"v_add_f32 v41, v41, v{T1}"); a(f"v_add_f32 v41, v41, v{T0}")
    xsum_g(a, 41, T1)
    a("v_rcp_f32 v42, v41")
    a("s_nop 0")
    for r in range(0, 10, 2): a(f"v_pk_mul_f32 {vr(SS+r,2)}, {vr(SS+r,2)}, v[42:43] op_sel_hi:[1,0]")
    for i in range(4): a(f"v_cvt_pk_bf16_f32 v{PX+i}, v{SS+2*i}, v{SS+2*i+1}")
    a(f"v_cvt_pk_bf16_f32 v{PM0}, v{SS+8}, v{SS+9}"); a(f"v_cvt_pk_bf16_f32 v{PM1+1}, v{SS+8}, v{SS+9}")
    for i in range(4):
        a(f"v_mfma_f32_16x16x32_bf16 {vr(OC+4*i,4)}, {vr(VX+4*i,4)}, {vr(PX,4)}, 0")
    for i in range(4):
        a(f"v_mfma_f32_16x16x16_bf16 {vr(OC+4*i,4)}, {vr(VMR+2*(i//2),2)}, {vr((PM0, PM1)[i%2],2)}, {vr(OC+4*i,4)}")
    for i in range(4): a(f"v_cvt_pk_bf16_f32 v{88+i}, v{OC+2*i}, v{OC+2*i+1}")
    a(f"ds_write_b128 {vOw}, v[88:91]")
    a("s_nop 0")
    for i in range(4, 8): a(f"v_cvt_pk_bf16_f32 v{88+i}, v{OC+2*i}, v{OC+2*i+1}")
    a(f"ds_write_b128 {vOw}, v[92:95] offset:1024")
    a("s_waitcnt lgkmcnt(0)"); a("s_barrier")
    OF = 48
    for i in range(8): a(f"ds_read_b128 {vr(OF+4*i,4)}, {vL16} offset:{L_O+1024*i}")
    tstamp(a, opt, 3)
    jobs = [(cq, rt) for rt in range(2) for cq in range(4)]
    def epi(n):
        cq, rt = jobs[n]; ac = 112 + (n % 2) * 8; g = 128 + (n % 2) * 4
        return [f"v_cvt_pk_bf16_f32 v{g+i}, v{ac+2*i}, v{ac+2*i+1}" for i in range(4)] + [f"v_and_or_b32 v{g}, v{g}, -2, s{S_TAG}",
                f"buffer_store_dwordx4 {vr(g,4)}, {vP}, {WS}, s{(S_P1S, S_P1S2)[rt]} offen offset:{64*cq}{st}"]
    for n, (cq, rt) in enumerate(jobs):
        ac = 112 + (n % 2) * 8
        e = epi(n - 1) if n else []
        k = 0
        for ks in range(4):
            if n == 0: a(f"s_waitcnt lgkmcnt({7-ks})")
            if n == 4 and ks == 0: a("s_waitcnt lgkmcnt(0)")
            for u in range(2):
                d = vr(ac + 4 * u, 4)
                a(f"v_mfma_f32_16x16x32_bf16 {d}, {WoF(2*cq+u, ks)}, {vr(OF+4*(rt*4+ks),4)}, {d if ks else 0}")
                k += 1
                if k >= 2:
                    for x in e[2*(k-2):2*(k-1)]: a(x)
    a("s_nop 7")
    for x in epi(7): a(x)
    tstamp(a, opt, 4)
    if geti("t1", 4): a(f"s_sleep {geti('t1', 4)}")
    R = 48
    def ld():
        for i in range(8):
            if i % 4 == 0: a(f"s_add_u32 s48, s{S_P1L}, {(i//4)*4096}")
            a(f"buffer_load_dwordx4 {vr(R+4*i,4)}, {vL16}, {WS}, s48 offen offset:{1024*(i%4)} sc1")
    def ck():
        for i in range(8):
            a(f"s_waitcnt vmcnt({7-i})")
            a(f"v_mfma_f32_16x16x32_bf16 v[112:115], {vr(SEL,4)}, {vr(R+4*i,4)}, {'v[112:115]' if i else 0}")
            a(f"v_xor_b32 v{T1 if i else T0}, s{S_TAG}, v{R+4*i}")
            if i: a(f"v_or_b32 v{T0}, v{T0}, v{T1}")
        a(f"v_and_b32 v{T0}, 1, v{T0}")
        a(f"v_cmp_ne_u32 vcc, 0, v{T0}")
        a(f"v_lshlrev_b32 v116, 16, v{XR}"); a(f"v_and_b32 v117, s{MASK}, v{XR}")
        a(f"s_lshl_b32 s48, s{S_W}, 3"); a("v_mov_b32 v43, s48")
    poll(a, pfx + "_r1", ld, ck, sleep=2)
    tstamp(a, opt, 5)
    rnd2(a, 112, 113, T0)
    a(f"v_mul_f32 v112, v{MC}, v112"); a(f"v_mul_f32 v113, v{MC+1}, v113")
    rnd2(a, 112, 113, T0)
    a("v_add_f32 v116, v116, v112"); a("v_add_f32 v117, v117, v113")
    rnd2(a, 116, 117, 118)
    a(f"s_lshl_b32 s49, s{S_SLOT}, 16"); a(f"s_add_u32 s50, s{S_H2O}, s49")
    a(f"buffer_store_dword v118, {vCol}, {WS}, s50 offen offset:1024{st}")
    a("v_add_f32 v120, v116, v117")
    wave_sum(a, 120, T1)
    a(f"v_mul_f32 v120, {f32bits(1/128)}, v120")
    a("v_sub_f32 v112, v116, v120"); a("v_sub_f32 v113, v117, v120")
    a("v_mul_f32 v121, v112, v112"); a("v_fmac_f32 v121, v113, v113")
    wave_sum(a, 121, T1)
    a(f"ds_write_b64 v43, v[120:121] offset:{L_ST}")
    a("s_waitcnt lgkmcnt(0)"); a("s_barrier")
    a(f"ds_read_b128 v[124:127], {vZero} offset:{L_ST}")
    a(f"ds_read_b128 v[128:131], {vZero} offset:{L_ST+16}")
    a("s_waitcnt lgkmcnt(0)")
    a("v_add_f32 v120, v124, v126"); a("v_add_f32 v121, v128, v130"); a("v_add_f32 v120, v120, v121")
    a("v_mul_f32 v120, 0.25, v120")
    a("v_add_f32 v122, v125, v127"); a("v_add_f32 v123, v129, v131"); a("v_add_f32 v122, v122, v123")
    for r in (124, 126, 128, 130): a(f"v_sub_f32 v{r}, v{r}, v120")
    a("v_mul_f32 v123, v124, v124")
    for r in (126, 128, 130): a(f"v_fmac_f32 v123, v{r}, v{r}")
    a(f"v_mul_f32 v122, {f32bits(1/512)}, v122")
    a("v_fmac_f32 v122, 0.25, v123")
    rnd1(a, 120); rnd1(a, 122)
    a(f"v_add_f32 v122, {f32bits(1e-5)}, v122"); rnd1(a, 122)
    a("v_sqrt_f32 v122, v122")
    a("v_sub_f32 v112, v116, v120"); a("v_sub_f32 v113, v117, v120")
    rnd1(a, 122)
    a("v_rcp_f32 v122, v122")
    rnd2(a, 112, 113, T0)
    a("v_mul_f32 v112, v112, v122"); a("v_mul_f32 v113, v113, v122")
    rnd2(a, 112, 113, T0)
    a(f"v_mul_f32 v112, v112, v{MC+2}"); a(f"v_mul_f32 v113, v113, v{MC+3}")
    rnd2(a, 112, 113, T0)
    a(f"v_add_f32 v112, v112, v{MC+4}"); a(f"v_add_f32 v113, v113, v{MC+5}")
    a(f"v_cvt_pk_bf16_f32 v{T0}, v112, v113")
    a(f"buffer_store_dword v{T0}, {vCol}, {WS}, s50 offen{st}")
    tstamp(a, opt, 6)
    a(f"s_lshl_b32 s48, s{S_PSLOT}, 16"); a(f"s_add_u32 s48, s{S_H2O}, s48")
    a("v_mov_b32 v42, -1"); a("v_mov_b32 v43, -1")
    a(f"buffer_store_dword v42, {vCol}, {WS}, s48 offen{st}")
    a(f"buffer_store_dword v42, {vCol}, {WS}, s48 offen offset:1024{st}")
    a(f"s_add_u32 s51, s{S_SEG}, 4")
    a(f"s_cmp_ge_u32 s{S_H}, 28")
    a(f"s_cbranch_scc1 {pfx}_noffn")
    HR = 48
    a(f"s_add_u32 s50, s{S_H2B}, s49")
    def ld():
        for i in range(8):
            a(f"s_add_u32 s48, s50, {i*8192}")
            a(f"buffer_load_dwordx4 {vr(HR+4*i,4)}, {vHg}, {WS}, s48 offen sc1")
    def ck():
        for i in range(8):
            a(f"s_waitcnt vmcnt({7-i})")
            a(f"ds_write_b128 {vHw}, {vr(HR+4*i,4)} offset:{(i//4)*RTS + (i%4)*64}")
            if i: a(f"v_max_u32 v{T0}, v{T0 if i > 1 else HR}, v{HR+4*i}")
        a(f"v_cmp_eq_u32 vcc, -1, v{T0}")
    if geti("t2", 2): a(f"s_sleep {geti('t2', 2)}")
    poll(a, pfx + "_h2", ld, ck, sleep=2)
    tstamp(a, opt, 7)
    a("s_waitcnt lgkmcnt(0)"); a("s_barrier")
    lq = LQ()
    HB = lambda rt, ks: 80 + ((ks % 4) * 2 + rt) * 4
    def rd(ks):
        for rt in range(2):
            a(f"ds_read_b128 {vr(HB(rt, ks),4)}, {vHr} offset:{rt*RTS + ks*FS}"); lq.issue(ks)
    for ks in range(3): rd(ks)
    prefetch(a, pfx + "_pf1", 51)
    for ks in range(16):
        a(lq.wait(ks))
        n = 0
        for rt in range(2):
            for m in range(2):
                d = vr(112 + (rt * 2 + m) * 4, 4)
                a(f"v_mfma_f32_16x16x32_bf16 {d}, {GF(m, ks)}, {vr(HB(rt, ks),4)}, {d if ks else 0}")
                if n == 0 and ks + 3 < 16: rd(ks + 3)
                n += 1
    a(f"s_lshl_b32 s48, s{S_SLOT}, 17"); a(f"s_add_u32 s48, s{S_ACTW}, s48"); a(f"s_add_u32 s50, s48, {56*1024}")
    a("s_nop 0")
    for rt in range(2):
        g0 = 112 + rt * 8; u0 = g0 + 4
        for j in (0, 2): rnd2(a, g0 + j, g0 + j + 1, T0)
        for j in (0, 2): rnd2(a, u0 + j, u0 + j + 1, T0)
        for j in range(4): a(f"v_mul_f32 v{g0+j}, v{g0+j}, v{u0+j}")
        a(f"v_cvt_pk_bf16_f32 v{128+2*rt}, v{g0}, v{g0+1}"); a(f"v_cvt_pk_bf16_f32 v{129+2*rt}, v{g0+2}, v{g0+3}")
        a(f"buffer_store_dwordx2 {vr(128+2*rt,2)}, {vL16}, {WS}, s{(48, 50)[rt]} offen{st}")
    a(f"s_lshl_b32 s48, s{S_PSLOT}, 17"); a(f"s_add_u32 s48, s{S_ACTW}, s48"); a(f"s_add_u32 s50, s48, {56*1024}")
    a(f"buffer_store_dwordx2 v[42:43], {vL16}, {WS}, s48 offen{st}")
    a(f"buffer_store_dwordx2 v[42:43], {vL16}, {WS}, s50 offen{st}")
    if geti("t3", 2): a(f"s_sleep {geti('t3', 2)}")
    a(f"s_branch {pfx}_E")
    a.label(pfx + "_noffn")
    prefetch(a, pfx + "_pf2", 51)
    a("s_sleep 32")
    a.label(pfx + "_E")
    tstamp(a, opt, 8)
    AR = 48
    a(f"s_lshl_b32 s50, s{S_SLOT}, 17"); a(f"s_add_u32 s50, s{S_ACTR}, s50")
    a(f"s_lshl_b32 s49, s{S_SLOT}, 16"); a(f"s_add_u32 s49, s{S_X2R}, s49")
    def ld():
        a(f"buffer_load_dword v41, {vX2g}, {WS}, s49 offen sc1")
        for i in range(14):
            if i % 4 == 0: a(f"s_add_u32 s48, s50, {(i//4)*4096}")
            a(f"buffer_load_dwordx4 {vr(AR+4*i,4)}, {vL16}, {WS}, s48 offen offset:{1024*(i%4)} sc1")
    def ck():
        for i in range(14):
            a(f"s_waitcnt vmcnt({13-i})")
            for t in range(2):
                d = vr(112 + 4 * t, 4)
                a(f"v_mfma_f32_16x16x32_bf16 {d}, {DF(t, i)}, {vr(AR+4*i,4)}, {d if i else 0}")
            a(f"v_max3_u32 v{T0}, v{T0 if i else 41}, v{AR+4*i}, v{AR+4*i+2}")
        a(f"v_cmp_eq_u32 vcc, -1, v{T0}")
        a(f"v_lshlrev_b32 v124, 16, v41"); a(f"v_and_b32 v125, s{MASK}, v41")
    poll(a, pfx + "_act", ld, ck, sleep=2)
    tstamp(a, opt, 9)
    a("s_nop 2")
    a(f"ds_write_b128 {vEw}, v[112:115]"); a(f"ds_write_b128 {vEw}, v[116:119] offset:1024")
    a("s_waitcnt lgkmcnt(0)"); a("s_barrier")
    for w in range(4): a(f"ds_read_b64 {vr(112+2*w,2)}, {vEr} offset:{2048*w}")
    a("s_waitcnt lgkmcnt(0)")
    a("v_add_f32 v112, v112, v114"); a("v_add_f32 v113, v113, v115"); a("v_add_f32 v116, v116, v118"); a("v_add_f32 v117, v117, v119")
    a("v_add_f32 v112, v112, v116"); a("v_add_f32 v113, v113, v117")
    rnd2(a, 112, 113, T0)
    a(f"v_mul_f32 v112, v{MC+6}, v112"); a(f"v_mul_f32 v113, v{MC+7}, v113")
    rnd2(a, 112, 113, T0)
    a("v_add_f32 v112, v124, v112"); a("v_add_f32 v113, v125, v113")
    a(f"v_cvt_pk_bf16_f32 v{T0}, v112, v113")
    a(f"buffer_store_dword v{T0}, {vEo}, {sr(S_O,4)}, s{S_OUT} offen")
    tstamp(a, opt, 10)
    a(f"s_add_u32 s{S_SEG}, s{S_SEG}, 4")
    a(f"s_add_u32 s{S_KM}, s{S_KM}, {4*4096}")
    a(f"s_add_u32 s{S_KMV}, s{S_KMV}, {4*4096}")
    a(f"s_add_u32 s{S_OUT}, s{S_OUT}, {4*32768}")
    a(f"s_xor_b32 s{S_TAG}, s{S_TAG}, 1")
    a(f"s_mov_b32 s{S_PSLOT}, s{S_SLOT}")
    a(f"s_add_u32 s{S_SLOT}, s{S_SLOT}, 1")
    a(f"s_cmp_ge_u32 s{S_SLOT}, 3")
    a(f"s_cselect_b32 s{S_SLOT}, 0, s{S_SLOT}")
    a(f"s_cmp_lt_u32 s{S_SEG}, 64")
    a(f"s_cbranch_scc1 {pfx}_loop")
    a("s_waitcnt vmcnt(0)")

def emit_post(a, opt):
    import mega, pre
    pre.emit_pre(a, opt)
    emit_post_weights(a, opt)
    if "time" in opt: a("s_memrealtime s[84:85]")
    emit_post_final(a, opt)
    if "time" in opt: a("s_memrealtime s[86:87]")
    a(f"s_cmp_lg_u32 s{S_MODE}, 0")
    a("s_cbranch_scc1 T_slow")
    emit_post_loop(a, True, "TF", opt)
    a("s_branch L_done")
    a.label("T_slow")
    emit_post_loop(a, False, "TS", opt)
```

```python
from common import *
import math
S_TID = 16
MASK = 17

def rnd2(a, x, y, p):
    a(f"v_cvt_pk_bf16_f32 v{p}, v{x}, v{y}")
    a(f"v_lshlrev_b32 v{x}, 16, v{p}")
    a(f"v_and_b32 v{y}, s{MASK}, v{p}")
def rnd1(a, x):
    a(f"v_cvt_pk_bf16_f32 v{x}, v{x}, v{x}")
    a(f"v_and_b32 v{x}, s{MASK}, v{x}")
def unpack(a, src, dst, n):
    for d in range(n):
        a(f"v_lshlrev_b32 v{dst+2*d}, 16, v{src+d}")
        a(f"v_and_b32 v{dst+2*d+1}, s{MASK}, v{src+d}")
def xsum_g(a, x, t, op="v_add_f32"):
    a(f"v_mov_b32 v{t}, v{x}"); a("s_nop 1")
    a(f"v_permlane32_swap_b32 v{x}, v{t}"); a(f"{op} v{x}, v{x}, v{t}")
    a(f"v_mov_b32 v{t}, v{x}"); a("s_nop 1")
    a(f"v_permlane16_swap_b32 v{x}, v{t}"); a(f"{op} v{x}, v{x}, v{t}")
def tree(a, regs):
    regs = list(regs)
    while len(regs) > 1:
        nxt = []
        for i in range(0, len(regs) - 1, 2):
            a(f"v_add_f32 v{regs[i]}, v{regs[i]}, v{regs[i+1]}"); nxt.append(regs[i])
        if len(regs) % 2: nxt.append(regs[-1])
        regs = nxt
    return regs[0]

def emit_pre(a, opt=()):
    a.c("==== prologue work of the post teams: mod + LN1 ; s16 = tid (0..127) ====")
    LE = lambda *x, **k: lane_expr(a, *x, tmp="v31", **k)
    tstamp(a, opt, 16)
    a("s_load_dwordx2 s[32:33], s[0:1], 0")
    a("s_load_dwordx4 s[36:39], s[0:1], 88")
    a(f"s_mov_b32 s{MASK}, 0xffff0000")
    LE("v1", "v0", [(0, 4, 10), (4, 2, 4), (6, 2, 8)])
    a(f"s_lshl_b32 s48, s{S_TID}, 14")
    a("s_waitcnt lgkmcnt(0)")
    srd(a, S_T, 32, 2048 * 1024)
    for i in range(4):
        a(f"buffer_load_dwordx4 {vr(32+4*i,4)}, v1, {sr(S_T,4)}, s48 offen offset:{64*i}")
    a(f"s_cmp_lt_u32 s{S_TID}, 96")
    a("s_cbranch_scc1 P_mod")
    claim(a)
    verify_claim(a, 0, 163840 - 64)
    a("s_waitcnt vmcnt(0)")
    a("s_branch P_nomod")
    a.label("P_mod")
    srd(a, 40, 36, 1024)
    srd(a, 44, 38, 512 * 6144)
    LE("v2", "v0", [(2, 6, 4)])
    a("buffer_load_dwordx4 v[4:7], v2, s[40:43], 0 offen")
    a("v_lshrrev_b32 v2, 2, v0")
    a("v_mul_u32_u24 v2, 49152, v2")
    a("v_and_b32 v3, 3, v0")
    a("v_lshl_add_u32 v2, v3, 4, v2")
    a(f"s_lshl_b32 s48, s{S_TID}, 6")
    for i in range(8):
        a(f"buffer_load_dwordx4 {vr(64+4*i,4)}, v2, s[44:47], s48 offen")
        if i < 7: a("s_add_u32 s48, s48, 6144")
    claim(a)
    a("s_waitcnt vmcnt(8)")
    tstamp(a, opt, 17)
    unpack(a, 4, 8, 4)
    a(f"s_mov_b32 s48, {f32bits(-math.log2(math.e))}")
    for j in range(8): a(f"v_mul_f32 v{16+j}, s48, v{8+j}")
    for j in range(8): a(f"v_exp_f32 v{16+j}, v{16+j}")
    for j in range(8): a(f"v_add_f32 v{16+j}, 1.0, v{16+j}")
    for j in range(8): a(f"v_rcp_f32 v{16+j}, v{16+j}")
    for j in range(8): a(f"v_mul_f32 v{8+j}, v{8+j}, v{16+j}")
    for j in range(0, 8, 2): rnd2(a, 8 + j, 9 + j, 31)
    for j in range(8): a(f"v_mov_b32 v{16+j}, 0")
    a("s_waitcnt vmcnt(0)")
    for i in range(8):
        for d in range(4):
            a(f"v_lshlrev_b32 v24, 16, v{64+4*i+d}")
            a(f"v_and_b32 v25, s{MASK}, v{64+4*i+d}")
            a(f"v_fmac_f32 v{16+2*d}, v{8+i}, v24")
            a(f"v_fmac_f32 v{17+2*d}, v{8+i}, v25")
    a("s_nop 1")
    for ror in (4, 8):
        for j in range(8):
            a(f"v_add_f32_dpp v{16+j}, v{16+j}, v{16+j} row_ror:{ror} row_mask:0xf bank_mask:0xf")
    LE("v2", "v0", [(4, 4, 7), (0, 2, 5)])
    a("ds_write_b128 v2, v[16:19] offset:1024")
    a("ds_write_b128 v2, v[20:23] offset:1040")
    a("s_waitcnt lgkmcnt(0)")
    a("s_barrier")
    verify_claim(a, 0, 163840 - 64)
    a(f"s_cmp_lg_u32 s{S_W}, 0")
    a("s_cbranch_scc1 P_nomod")
    LE("v2", "v0", [(0, 5, 2)])
    for p in range(16): a(f"ds_read_b32 v{64+p}, v2 offset:{1024+128*p}")
    a("s_waitcnt lgkmcnt(0)")
    r = tree(a, range(64, 80))
    a(f"v_cvt_pk_bf16_f32 v{r}, v{r}, v{r}")
    LE("v2", "v0", [(0, 5, 1), (5, 1, 30)])
    a(f"s_lshl_b32 s48, s{S_TID}, 6")
    a(f"s_add_u32 s48, s48, {hex(WS_MOD)}")
    a(f"buffer_store_short v{r}, v2, {sr(S_WS,4)}, s48 offen sc1")
    a(f"s_cmp_ge_u32 s{S_TID}, 32")
    a("s_cbranch_scc1 P_nomod")
    a("s_waitcnt vmcnt(0)")
    tstamp(a, opt, 18)
    dbg_arrive(a, D_MOD1)
    a.label("P_nomod")
    unpack(a, 32, 64, 16)
    LE("v2", "v0", [(0, 4, 4), (6, 2, 2)])
    LE("v3", "v0", [(0, 4, 4)])
    for j in range(16): a(f"v_add_f32 v{96+j}, v{64+2*j}, v{65+2*j}")
    r = tree(a, range(96, 112))
    xsum_g(a, r, 31)
    a(f"ds_write_b32 v2, v{r}")
    a("s_waitcnt lgkmcnt(0)"); a("s_barrier")
    a("ds_read_b128 v[4:7], v3")
    a("s_waitcnt lgkmcnt(0)")
    tree(a, range(4, 8))
    a(f"v_mul_f32 v8, {f32bits(1/512)}, v4")
    for j in range(32): a(f"v_sub_f32 v{96+j}, v{64+j}, v8")
    for j in range(32): a(f"v_mul_f32 v{96+j}, v{96+j}, v{96+j}")
    r = tree(a, range(96, 128))
    xsum_g(a, r, 31)
    a(f"ds_write_b32 v2, v{r} offset:256")
    a("s_waitcnt lgkmcnt(0)"); a("s_barrier")
    a("ds_read_b128 v[4:7], v3 offset:256")
    a("s_waitcnt lgkmcnt(0)")
    tree(a, range(4, 8))
    a(f"v_mul_f32 v9, {f32bits(1/512)}, v4")
    rnd1(a, 8); rnd1(a, 9)
    a(f"v_add_f32 v9, {f32bits(1e-5)}, v9"); rnd1(a, 9)
    a("v_sqrt_f32 v9, v9"); a("s_nop 0"); rnd1(a, 9)
    a("v_rcp_f32 v9, v9")
    for j in range(32): a(f"v_sub_f32 v{64+j}, v{64+j}, v8")
    for j in range(0, 32, 2): rnd2(a, 64 + j, 65 + j, 31)
    for j in range(32): a(f"v_mul_f32 v{64+j}, v{64+j}, v9")
    for j in range(0, 32, 2): rnd2(a, 64 + j, 65 + j, 31)
    tstamp(a, opt, 19)
    a(f"s_cmp_lt_u32 s{S_TID}, 32")
    a("s_cbranch_scc1 P_urg")
    dbg_wait(a, D_MOD1, 32, sleep=32)
    a("s_branch P_go")
    a.label("P_urg")
    import rec
    a("s_load_dwordx2 s[34:35], s[0:1], 8")
    a("s_waitcnt lgkmcnt(0)")
    rec.emit_rec_init(a, S_TID, 34)
    LE("v16", "v0", [(0, 2, 4)])
    a(f"s_lshl_b32 s48, s{S_TID}, 7"); a(f"s_add_u32 s48, s48, {hex(WS_FLAG)}")
    a("s_mov_b64 exec, 7")
    a(f"buffer_store_dword v24, v16, {sr(S_WS,4)}, s48 offen sc1")
    a("s_mov_b64 exec, -1")
    dbg_wait(a, D_MOD1, 32, sleep=8)
    a.label("P_go")
    tstamp(a, opt, 20)
    LE("v2", "v0", [(4, 2, 4), (6, 2, 8)])
    a(f"s_mov_b32 s48, {hex(WS_MOD)}")
    for i in range(4):
        a(f"buffer_load_dwordx4 {vr(32+4*i,4)}, v2, {sr(S_WS,4)}, s48 offen offset:{1024+64*i} sc1")
    for i in range(4):
        a(f"buffer_load_dwordx4 {vr(48+4*i,4)}, v2, {sr(S_WS,4)}, s48 offen offset:{64*i} sc1")
    a("s_waitcnt vmcnt(4)")
    unpack(a, 32, 96, 16)
    for j in range(32): a(f"v_add_f32 v{96+j}, 1.0, v{96+j}")
    for j in range(0, 32, 2): rnd2(a, 96 + j, 97 + j, 31)
    for j in range(32): a(f"v_mul_f32 v{64+j}, v{64+j}, v{96+j}")
    for j in range(0, 32, 2): rnd2(a, 64 + j, 65 + j, 31)
    a("s_waitcnt vmcnt(0)")
    unpack(a, 48, 96, 16)
    for j in range(32): a(f"v_add_f32 v{64+j}, v{64+j}, v{96+j}")
    for j in range(16): a(f"v_cvt_pk_bf16_f32 v{32+j}, v{64+2*j}, v{65+2*j}")
    tstamp(a, opt, 21)
    LE("v2", "v0", [(0, 6, 4), (6, 2, 12)])
    a(f"s_lshl_b32 s48, s{S_TID}, 14")
    a(f"s_add_u32 s48, s48, {hex(WS_H)}")
    for i in range(4):
        a(f"buffer_store_dwordx4 {vr(32+4*i,4)}, v2, {sr(S_WS,4)}, s48 offen offset:{1024*i} sc1")
    a(f"s_cmp_ge_u32 s{S_TID}, {N_LN1}")
    a("s_cbranch_scc1 P_done")
    a("s_waitcnt vmcnt(0)")
    a("s_barrier")
    a(f"s_cmp_lg_u32 s{S_W}, 0")
    a("s_cbranch_scc1 P_done")
    tstamp(a, opt, 22)
    dbg_arrive(a, D_LN1)
    a.label("P_done")
```

```python
from common import *
import math, struct

L_MEM = 0
L_KV  = 8192
L_QK  = 24576
L_OS  = 28672
L_SEL = 30720
L_JUNK= 31744
L_MISC= 32256
L_WO  = 32768

S_STEP = 16
S_PST = 17
S_PLD = 19
S_MRD, S_MWR, S_MPO = 22, 23, 24
S_KX, S_VX, S_KVM = 25, 26, 27
S_TAG, S_PMAX, S_PC = 28, 29, 30
S_SC = 31
S_PTR = 32
S_T0, S_T1, S_T2, S_T3 = 48, 49, 50, 51
S_OWN = 52
S_WOB = 53
S_WOL = 54
S_STAMP = 60

vVr = "v0"
vL16w, vL16, vXw, vXr, vOw, vWo, vPs, vMp, vIdx = ["v%d" % i for i in range(1, 10)]
vPl = vL16
vZ = "v[10:11]"
vT0, vT1 = "v12", "v13"
vFx = ["v28", "v29", "v30"]
SX0, SX1, SM = 16, 20, 24
vM = "v31"
FA, FB = 32, 120
F = [32 + 4 * i for i in range(8)]
ACC = {("q", 0): 64, ("q", 1): 68, ("k", 0): 72, ("k", 1): 76, ("v", 0): 80, ("v", 1): 84}
QF = [88 + 4 * i for i in range(4)]
KF = [104 + 4 * i for i in range(4)]
KXR = {(0, 0): 104, (1, 0): 108, (0, 1): 112, (1, 1): 116, (0, 2): 32, (1, 2): 36, (0, 3): 120, (1, 3): 124}
VX = [64, 72]
MI = {"q": 0, "k": 1, "v": 2}

def wreg(m, t, sig, off=0, n=8):
    idx = ((MI[m] * 2 + t) * 8 + sig) * 8 + off
    if idx < 256: return ar(idx, n)
    return vr(128 + idx - 256, n)

def smf(m, t, sig, own=FA):
    f = own + 4 * sig if sig < 2 else F[sig]
    return f"v_smfmac_f32_16x16x64_bf16 {vr(ACC[(m,t)],4)}, {vr(f,4)}, {wreg(m,t,sig)}, {vIdx}"

S_HAVE, S_FLG = 55, 56
S_SC2, S_OM = 58, 46
def emit_rec_init(a, sh, ptr):
    LE = lambda *x, **k: lane_expr(a, *x, tmp="v31", **k)
    WS = sr(S_WS, 4)
    srd(a, S_T, ptr, 8192)
    LE("v16", "v0", [(5, 1, 10), (4, 1, 6), (0, 2, 1)])
    sexpr(a, 48, [(sh, 0, 2, 11), (sh, 2, 3, 7), (S_W, 0, 2, 3)])
    a(f"buffer_load_ushort v17, v16, {sr(S_T,4)}, s48 offen")
    a(f"buffer_load_ushort v18, v16, {sr(S_T,4)}, s48 offen offset:32")
    LE("v20", "v0", [(0, 6, 4)])
    LE("v21", "v0", [(5, 1, 5), (0, 2, 3), (4, 1, 2), (2, 2, 30)])
    for i in range(4): a(f"v_mov_b32 v{24+i}, 0")
    a("v_mov_b32 v19, -1")
    sexpr(a, 48, [(sh, 0, 5, 13), (S_W, 0, 2, 10)], WS_PART)
    a(f"buffer_store_dwordx4 v[24:27], v20, {WS}, s48 offen sc1")
    a("s_add_u32 s48, s48, 4096")
    a(f"buffer_store_dwordx4 v[24:27], v20, {WS}, s48 offen sc1")
    sexpr(a, 50, [(sh, 2, 3, 10), (S_W, 0, 2, 8), (sh, 0, 2, 6)], WS_MEM)
    for sl in (1, 2):
        a(f"s_add_u32 s48, s50, {8192*sl}")
        a(f"buffer_store_dword v19, v21, {WS}, s48 offen sc1")
    a("s_waitcnt vmcnt(4)")
    a("v_lshl_or_b32 v17, v18, 16, v17")
    a(f"buffer_store_dword v17, v21, {WS}, s50 offen sc1")

def emit_rec_setup(a, pfx="R", own_init=True, opt=()):
    st = " sc1"
    LE = lambda *x, **k: lane_expr(a, *x, tmp="v31", **k)
    a.c("==== recurrence role: s14 = head, s15 = wave ====")
    q = VmQ(a)
    if own_init:
        emit_rec_init(a, S_H, S_PTR + 2)
        a("s_waitcnt vmcnt(0)")
        dbg_arrive(a, D_RTB)
        a("s_waitcnt vmcnt(0)")

    D = [32, 33]
    E = [36, 37, 38, 39]
    LE("v28", "v0", [(4, 2, 5)])
    LE("v29", "v0", [(0, 4, 4)])
    a("v_xor_b32 v28, v28, v29")
    LE("v30", "v0", [(4, 2, 13)])
    a(f"v_add_u32 v{D[0]}, v28, v30")
    a(f"v_xor_b32 v{D[1]}, 128, v{D[0]}")
    sexpr(a, S_T2, [(S_H, 0, 5, 8), (S_W, 0, 2, 18)])
    sexpr(a, S_T3, [(S_W, 0, 2, 13)], L_WO)
    sexpr(a, S_WOB, [(S_H, 0, 5, 17), (S_W, 0, 2, 15)])

    def dma_chunk(a, q, n):
        m, ch = divmod(n, 4)
        if ch == 0:
            srd(a, S_T, S_PTR + 4 + 2 * m, 4194304)
        for i in range(8):
            a(f"s_add_u32 m0, s{S_T3}, {ch * 32768 + i * 1024}")
            if m < 3:
                a(f"s_add_u32 s{S_T0}, s{S_T2}, {hex((128 * ch + 4 * i) * 8192)}")
                a(f"buffer_load_dwordx4 v{D[(i >> 2) & 1]}, {sr(S_T,4)}, s{S_T0} offen lds")
            else:
                a(f"s_add_u32 s{S_T0}, s{S_WOB}, {hex(4 * i * 1024 + ch * 256)}")
                a(f"buffer_load_dwordx4 v{E[(i & 1) + 2 * ((i >> 2) & 1)]}, {sr(S_T,4)}, s{S_T0} offen lds")
        q.issue(("d", n), 8)

    if "time" in opt: a("s_memrealtime s[76:77]")
    for n in range(4): dma_chunk(a, q, n)
    LE(vL16w, "v0", [(0, 6, 4), (6, 2, 11)])
    LE(vL16, "v0", [(0, 6, 4)])
    LE(vXw, "v0", [(6, 2, 10), (0, 4, 5), (4, 2, 3)], L_QK)
    LE(vXr, "v0", [(0, 6, 3)], L_QK)
    LE(vOw, "v0", [(6, 2, 9), (5, 1, 8), (2, 2, 6), (0, 1, 5), (4, 1, 4)], L_OS)
    LE("v16", "v0", [(5, 1, 8), (2, 2, 6), (0, 1, 5), (4, 1, 4)], L_JUNK)
    a("v_and_b32 v17, 2, v0")
    a("v_cmp_ne_u32 vcc, 0, v17")
    a("s_nop 1")
    a(f"v_cndmask_b32 {vOw}, {vOw}, v16, vcc")
    for r in (10, 11, 14, 15): a(f"v_mov_b32 v{r}, 0")
    LE(vWo, "v0", [(6, 2, 15), (0, 6, 4)], L_WO)
    LE(vPs, "v0", [(4, 2, 13), (2, 2, 10), (0, 2, 4)])
    LE(vMp, "v0", [(5, 1, 5), (0, 2, 3), (4, 1, 2), (2, 2, 30)])
    a(f"v_and_b32 v16, 1, v0")
    a(f"v_mul_u32_u24 {vIdx}, 0xaaaa, v16")
    a(f"v_add_u32 {vIdx}, 0x4444, {vIdx}")
    a("v_and_b32 v16, 3, v0")
    a("v_bfe_u32 v17, v0, 2, 2")
    a("v_mov_b32 v18, 0x3f80")
    a("v_mov_b32 v19, 0x3f800000")
    a("v_cmp_eq_u32 vcc, 1, v16")
    a("s_nop 1")
    a("v_cndmask_b32 v18, v18, v19, vcc")
    a("v_cmp_gt_u32 vcc, 2, v16")
    a("s_nop 1")
    a("v_cndmask_b32 v18, 0, v18, vcc")
    for d in range(4):
        a(f"v_cmp_eq_u32 vcc, {d}, v17")
        a("s_nop 1")
        a(f"v_cndmask_b32 v{20+d}, 0, v18, vcc")
    a(f"ds_write_b128 {vL16}, v[20:23] offset:{L_SEL}")
    for tau in range(2):
        a(f"s_add_u32 s{S_T0}, s{S_H}, {tau}")
        sexpr(a, S_PST + tau, [(S_T0, 0, 1, 15), (S_W, 0, 2, 16), (S_H, 1, 4, 6)], WS_PART + tau * 4096)
        sexpr(a, S_PLD + tau, [(S_H, 0, 5, 13), (S_W, 0, 2, 10)], WS_PART + tau * 4096)
    sexpr(a, S_OWN, [(S_H, 2, 3, 10), (S_W, 0, 2, 8), (S_H, 0, 2, 6)])
    a(f"s_mov_b32 s{S_MRD}, {hex(WS_MEM)}")
    a(f"s_add_u32 s{S_MPO}, s{S_OWN}, {hex(WS_MEM)}")
    a(f"s_add_u32 s{S_MWR}, s{S_OWN}, {hex(WS_MEM + 8192)}")
    a(f"s_mul_i32 s{S_T0}, s{S_H}, {HSTR}")
    sexpr(a, S_KX, [(S_W, 0, 2, 12)], WS_KV)
    a(f"s_add_u32 s{S_KX}, s{S_KX}, s{S_T0}")
    a(f"s_mul_i32 s{S_T0}, s{S_H}, {MSTR}")
    sexpr(a, S_KVM, [(S_W, 0, 2, 10)], WS_KM)
    a(f"s_add_u32 s{S_KVM}, s{S_KVM}, s{S_T0}")
    a(f"s_mov_b32 s{S_STEP}, 0")
    a(f"s_mov_b32 s{S_TAG}, 1")
    a(f"s_mov_b32 s{S_PMAX}, 20000")
    sc = (128 ** -0.5) * math.log2(math.e)
    a(f"s_mov_b32 s{S_SC}, {hex(struct.unpack('<I', struct.pack('<f', sc))[0])}")

    a(f"s_mov_b32 s{S_SC2}, s{S_SC}"); a(f"s_mov_b32 s{S_SC2+1}, s{S_SC}")
    a(f"s_mov_b32 s{S_OM}, 0x33333333"); a(f"s_mov_b32 s{S_OM+1}, 0x33333333")
    LE("v28", "v0", [(4, 1, 5)])
    LE("v29", "v0", [(0, 4, 4)])
    a("v_xor_b32 v28, v28, v29")
    LE("v30", "v0", [(4, 2, 10)])
    a(f"v_add_u32 v{E[0]}, v28, v30")
    a(f"v_xor_b32 v{E[1]}, 64, v{E[0]}")
    a(f"v_xor_b32 v{E[2]}, 128, v{E[0]}")
    a(f"v_xor_b32 v{E[3]}, 192, v{E[0]}")
    TR = [40, 41]
    LE("v28", "v0", [(2, 1, 12), (5, 1, 10), (3, 1, 9), (4, 1, 8), (0, 1, 3)])
    LE("v29", "v0", [(6, 2, 6), (1, 1, 4)])
    LE("v30", "v0", [(4, 1, 5), (3, 1, 6), (2, 1, 7)])
    a("v_xor_b32 v29, v29, v30")
    a(f"v_add_u32 v{TR[0]}, v28, v29")
    a(f"v_xor_b32 v{TR[1]}, 32, v{TR[0]}")

    done = pfx + "_wdone"
    for w in range(4):
        if w < 3:
            a(f"s_cmp_lg_u32 s{S_W}, {w}")
            a(f"s_cbranch_scc1 {pfx}_wl{w+1}")
        qq = q.clone()
        for n in range(13):
            if n < 12:
                qq.wait(("d", n))
            a("s_barrier")
            if "time" in opt and n in (0, 4, 8): a(f"s_memrealtime s[{78+n//2}:{79+n//2}]")
            if 0 < n and n + 3 < 16: dma_chunk(a, qq, n + 3)
            if n == 12: break
            m, ch = divmod(n, 4)
            mn = "qkv"[m]
            a(f"v_add_u32 v26, {L_WO + ch * 32768}, v{TR[0]}")
            a(f"v_add_u32 v27, {L_WO + ch * 32768}, v{TR[1]}")
            for k2 in range(2):
                sig = (2 * ch + k2) ^ (2 * w)
                for t in range(2):
                    for p in range(4):
                        off = (64 * k2 + 32 * (p % 2) + 8 * (p // 2)) * 256
                        a(f"ds_read_b64_tr_b16 {wreg(mn, t, sig, 2 * p, 2)}, v{26+t} offset:{off}")
            a("s_waitcnt lgkmcnt(0)")
        if w < 3:
            a(f"s_branch {done}")
            a.label(f"{pfx}_wl{w+1}")
    a.label(done)
    LE("v24", "v0", [(4, 1, 12), (5, 1, 11), (3, 1, 10), (2, 1, 8), (6, 2, 15), (1, 1, 4), (0, 1, 3),
                     (2, 1, 5), (3, 1, 6), (4, 1, 7)], L_WO)
    if not own_init: claim(a)
    a("s_waitcnt vmcnt(0)")
    a("s_barrier")
    for ks in range(2):
        for tau in range(2):
            a(f"s_add_u32 s{S_T0}, s{S_H}, {tau}")
            a(f"s_and_b32 s{S_T0}, s{S_T0}, 1")
            a(f"s_lshl_b32 s{S_T0}, s{S_T0}, 7")
            for b in range(4):
                a(f"s_or_b32 s{S_T1}, s{S_T0}, {32 * b}")
                a(f"v_xor_b32 v25, s{S_T1}, v24")
                base = 32 + (tau * 4 + b) * 8
                for p in range(4):
                    off = (64 * ks + 32 * (p // 2) + 2 * (p % 2)) * 256
                    a(f"ds_read_b64_tr_b16 {vr(base + 2 * p, 2)}, v25 offset:{off}")
        a("s_waitcnt lgkmcnt(0)")
        for i in range(16):
            a(f"ds_write_b128 {vWo}, {vr(32 + 4 * i, 4)} offset:{ks * 16384 + i * 1024}")
        a("s_waitcnt lgkmcnt(0)")
    if own_init: dbg_wait(a, D_RTB, 128, sleep=8)
    else: verify_claim(a, 0, L_MISC)

def kv_wait(a, need_sreg_or_imm, tag):
    l = a.uid(tag)
    need = need_sreg_or_imm
    a(f"s_cmp_ge_u32 s{S_HAVE}, {need}")
    a(f"s_cbranch_scc1 {l}_ok")
    a(f"s_mov_b32 s{S_PC}, 0")
    a.label(l)
    a(f"buffer_load_dword v119, {vMp}, {sr(S_WS,4)}, s{S_FLG} offen sc1")
    a("s_waitcnt vmcnt(0)")
    a(f"v_readlane_b32 s{S_HAVE}, v119, 0")
    a(f"v_readlane_b32 s{S_T0}, v119, 2")
    a("s_nop 1")
    a(f"s_min_u32 s{S_HAVE}, s{S_HAVE}, s{S_T0}")
    a(f"s_cmp_ge_u32 s{S_HAVE}, {need}")
    a(f"s_cbranch_scc1 {l}_ok")
    a("s_sleep 2")
    a(f"s_add_u32 s{S_PC}, s{S_PC}, 1")
    a(f"s_cmp_lt_u32 s{S_PC}, s{S_PMAX}")
    a(f"s_cbranch_scc1 {l}")
    a(f"s_mov_b32 s{S_PMAX}, 1")
    a.label(l + "_ok")

def emit_rec_mega(a, opt):
    import mega
    a(f"s_load_dwordx16 {sr(S_PTR,16)}, s[0:1], 0")
    a("s_waitcnt lgkmcnt(0)")
    emit_rec_setup(a, own_init=False, opt=opt)
    if "time" in opt: a("s_memrealtime s[84:85]")
    dbg_wait(a, D_LN1, N_LN1, sleep=16)
    sexpr(a, S_FLG, [(S_H, 0, 5, 7)], WS_FLAG)
    a(f"s_mov_b32 s{S_HAVE}, 0")
    kv_wait(a, 2, "kvw")
    if "time" in opt: a("s_memrealtime s[86:87]")
    mega.emit_mode(a, opt, "R_slow")
    ropt = list(opt) + ["mega", "nopj", "nopd", "da10", "dz6", "hb5", "oexec"]
    emit_rec(a, fast=True, pfx="RF", opt=ropt)
    a("s_branch L_done")
    a.label("R_slow")
    emit_rec(a, fast=False, pfx="RS", opt=ropt)

def emit_rec(a, fast=True, stamps=False, nsteps=64, pfx="R", warm=True, opt=()):
    st = "" if fast else " sc1"
    def geti(p, d):
        for o in opt:
            if o.startswith(p) and o[len(p):].isdigit(): return int(o[len(p):])
        return d
    nst = [0]
    tr0 = geti("tr", -1)
    slotno = [0]
    def stamp(force=False):
        if stamps and (tr0 < 0 or force):
            a(f"s_memtime {sr(S_STAMP + 2 * nst[0], 2)}"); nst[0] += 1
    if "mega" not in opt: emit_rec_setup(a, pfx)

    lq = LQ()
    rms = [o[3:] for o in opt if o.startswith("rm:")]
    def emit(x):
        txt = x if isinstance(x, str) else x[0]
        if isinstance(x, str) and any(r in txt for r in rms): return
        if x == "STAMP": stamp()
        elif isinstance(x, tuple):
            if x[0] == "w": a(lq.wait(x[1]))
            else:
                a(x[0]); lq.issue(x[1])
        else: a(x)
    def run(seq, count=True):
        for m, fill in seq:
            if m: a(m)
            if tr0 >= 0 and count and tr0 <= slotno[0] < tr0 + geti("tn", 13): stamp(True)
            if count: slotno[0] += 1
            for f in fill: emit(f)

    kvd = [f"buffer_load_dwordx4 {vL16}, {sr(S_WS,4)}, s{S_KX} offen offset:{1024*i} sc1 lds" for i in range(4)] + [f"s_add_u32 s{S_KX}, s{S_KX}, 16384"]
    zero16 = lambda r: f"v_mfma_f32_32x32x8_bf16 {vr(r,16)}, {vZ}, {vZ}, 0"
    zero4 = lambda r: f"v_mfma_f32_16x16x16_bf16 {vr(r,4)}, {vZ}, {vZ}, 0"
    def gather(own):
        a(f"buffer_load_dwordx4 {vr(own,4)}, {vL16w}, {sr(S_WS,4)}, s{S_MRD} offen sc1")
        a(f"buffer_load_dwordx4 {vr(own+4,4)}, {vL16w}, {sr(S_WS,4)}, s{S_MRD} offen offset:1024 sc1")
    def fx():
        for i in range(3): a(f"v_xor_b32 {vFx[i]}, {2048 * (i + 1)}, {vL16w}")
    sexpr(a, S_T0, [(S_W, 0, 2, 12)], L_KV)
    a(f"s_mov_b32 m0, s{S_T0}")
    lane_expr(a, "v24", "v0", [(0, 6, 4), (6, 2, 12)], L_KV + 2048, tmp="v31")
    a(f"v_mov_b32 {vVr}, v24")
    for x in kvd: a(x)
    if "nokv" in opt: kvd = ["s_nop 0"] * 5
    a(zero16(64)); a(zero16(80))
    fx()
    a(f"s_mov_b32 s{S_PC}, 0")
    if stamps or "nost" in opt or "time" in opt:
        a("s_memrealtime s[96:97]"); a("s_memtime s[98:99]")
    gather(FA); gather(FB)

    rdF = lambda sig: (f"ds_read_b128 {vr(F[sig],4)}, {vFx[sig//2-1]} offset:{L_MEM + (sig%2)*1024}", ("F", sig))
    rdKX = lambda t, ks: (f"ds_read_b128 {vr(KXR[(t,ks)],4)}, {vL16} offset:{L_KV + ((t*4+ks)//2)*4096 + (ks%2)*1024}", "KX")
    trQ = lambda ks, u: (f"ds_read_b64_tr_b16 {vr(QF[ks]+2*u,2)}, {vXr} offset:{1024*ks+512*u}", ("Q", ks))
    trK = lambda ks, u: (f"ds_read_b64_tr_b16 {vr(KF[ks]+2*u,2)}, {vXr} offset:{1024*ks+512*u}", ("K", ks))
    rdV = lambda t: (f"ds_read_b128 {vr(VX[t],4)}, {vVr} offset:{t*1024}", "V")
    def sx(t, ks):
        d = vr([SX0, SX1][t], 4)
        return f"v_mfma_f32_16x16x32_bf16 {d}, {vr(KXR[(t,ks)],4)}, {vr(QF[ks],4)}, {d if ks else 0}"
    def sm(ks):
        d = vr(SM, 4)
        return f"v_mfma_f32_16x16x32_bf16 {d}, {vr(QF[ks],4)}, {vr(QF[ks],4)}, {d if ks else 0}"
    kvm = [f"buffer_store_dwordx4 v[12:15], {vL16}, {sr(S_WS,4)}, s{S_KVM} offen{' sc1 nt' if 'kvmnt' in opt else (' sc0 sc1' if 'kvmsys' in opt else ' sc1')}", f"s_add_u32 s{S_KVM}, s{S_KVM}, 4096"]
    if "nokvm" in opt: kvm = ["s_nop 0"] + kvm[1:]

    def head(own, nm):
        lq.q = []
        a.label(f"{pfx}_g{nm}")
        if "nocomm" not in opt: a("s_waitcnt vmcnt(2)")
        a(f"v_max_u32 {vT1}, v{own}, v{own+4}")
        a(f"v_cmp_eq_u32 vcc, -1, {vT1}")
        emit((f"ds_write_b128 {vL16w}, {vr(own,4)} offset:{L_MEM}", "Fw"))
        emit((f"ds_write_b128 {vL16w}, {vr(own+4,4)} offset:{L_MEM+1024}", "Fw"))
        a(smf("q", 0, 0, own))
        if "nocomm" not in opt: a(f"s_cbranch_vccnz {pfx}_gf{nm}")
        a.label(f"{pfx}_gok{nm}")
        if stamps:
            a(f"s_memtime {sr(S_STAMP, 2)}")
            a(f"s_mov_b32 s{S_STAMP+29}, s{S_PC}")
        hm = [smf(m, t, sg, own) for sg in range(2) for m in "qkv" for t in range(2)][1:]
        hb = geti("hb", 4)
        hf = {k: [] for k in range(1, 12)}
        hf[hb] = [("w", "Fw"), "s_barrier", rdF(2)]; hf[hb + 1] = [rdF(3), rdF(4)]; hf[hb + 2] = [rdF(5), rdF(6)]; hf[hb + 3] = [rdF(7)]
        run([(m, hf[i + 1]) for i, m in enumerate(hm)], count=False)
    def gfail(own, nm, other):
        a.label(f"{pfx}_gf{nm}")
        gather(own)
        a(f"s_add_u32 s{S_PC}, s{S_PC}, 1")
        a(f"s_cmp_ge_u32 s{S_PC}, s{S_PMAX}")
        a(f"s_cbranch_scc1 {pfx}_gto{nm}")
        a("s_nop 0")
        a(zero4(64))
        a("s_nop 0")
        a(f"s_branch {pfx}_g{other}")
        a.label(f"{pfx}_gto{nm}")
        a(f"s_mov_b32 s{S_PMAX}, 1")
        a("s_waitcnt vmcnt(2)")
        a(f"s_branch {pfx}_gok{nm}")

    a(f"s_branch {pfx}_gA")
    gfail(FA, "A", "B"); gfail(FB, "B", "A")
    head(FB, "B")
    a(f"s_branch {pfx}_common")
    a.raw(".p2align 6")
    head(FA, "A")
    nst[0] = 1
    a.label(f"{pfx}_common")
    seq = []
    kx = [rdKX(t, ks) for ks in range(4) for t in range(2)]
    for x in [("w", ("F", 3)), "STAMP"]: emit(x)
    WB = [40, 48, 56, 104, 112, 32, 120, 96, 24]
    def rdWo(k, buf, half):
        T, ks = divmod(k, 2)
        return (f"ds_read_b128 {vr(buf + 4*half, 4)}, {vWo} offset:{ks*16384 + T*2048 + half*1024}", ("W", k))
    W = [rdWo(k, WB[k], h) for k in range(9) for h in range(2)]
    def post(acc, dst):
        return [f"v_add_f32 v{acc}, v{acc}, v{acc+1}", f"v_add_f32 v{acc+2}, v{acc+2}, v{acc+3}", f"v_cvt_pk_bf16_f32 v{dst}, v{acc}, v{acc+2}"]
    one = [f"v_mov_b32 v{28+i}, 0x3f803f80" for i in range(4)]
    pq0, pk0, pq1, pk1 = post(64, 16), post(72, 12), post(68, 17), post(76, 13)
    pv0, pv1 = post(80, 14), post(84, 15)
    tr = [trQ(ks, u) for ks in range(4) for u in range(2)]
    fl = {k: [] for k in range(12, 60)}
    fl[12] = [one[0]]
    fl[13] = [("w", ("F", 5)), one[1]]
    fl[14] = [one[2]]
    fl[15] = [("w", ("F", 7)), kx[0]]
    fl[16] = [kx[1], one[3]]
    fl[17] = [kx[2]]
    fl[18] = [kx[3]]
    fl[19] = ["s_waitcnt vmcnt(0)" if "nocomm" not in opt else "s_nop 0", kx[4]]
    fl[20] = [kx[5], pq0[0]]
    fl[21] = [kx[6], pq0[1]]
    fl[22] = [kx[7], pq0[2]]
    fl[23] = [rdV(0)]
    fl[24] = ["STAMP"]
    fl[25] = [pk0[0]]
    fl[26] = [("w", "KX"), pk0[1]]
    fl[27] = ["s_barrier", pk0[2]]
    fl[28] = [(f"ds_write2_b32 {vXw}, v16, v12 offset1:1", "Xw")]
    fl[29] = [rdV(1)]
    fl[30] = [kvd[0]]
    fl[31] = [pq1[0]]
    fl[32] = [pq1[1]]
    fl[33] = [pq1[2]]
    fl[34] = [kvd[1]]
    fl[35] = [("w", "V"), "STAMP"]
    fl[36] = []
    fl[37] = pk1
    fl[38] = [(f"ds_write2_b32 {vXw}, v17, v13 offset0:128 offset1:129", "Xw")]
    fl[39] = [kvd[2]]
    fl[40] = [W[0], "v_mov_b32 v77, 0"]
    fl[41] = [W[1], "v_mov_b32 v78, 0"]
    fl[42] = [kvd[3]]
    fl[43] = [("w", "Xw"), "s_barrier"]
    fl[44] = tr[0:2]
    fl[45] = tr[2:4]
    fl[46] = tr[4:6]
    fl[47] = tr[6:8] + [("w", ("Q", 0)), "STAMP"]
    fl[48] = [W[2], pv0[0]]
    fl[49] = [W[3], pv0[1]]
    fl[50] = [("w", ("Q", 1)), pv0[2]]
    fl[51] = [W[4], pv1[0]]
    fl[52] = [W[5], pv1[1]]
    fl[53] = [("w", ("Q", 3)), pv1[2]]
    fl[54] = kvm[:1]
    fl[55] = [W[6], f"s_cmp_eq_u32 s{S_STEP}, {nsteps-1}"]
    fl[56] = [W[7]] + ([f"s_cbranch_scc1 {pfx}_end"] if not stamps else [])
    fl[57] = [W[8], "v_max3_f32 v80, v16, v17, v18"]
    fl[58] = [W[9], kvd[4]]
    if "mega" in opt: fl[57] = [f"buffer_load_dword v12, {vMp}, {sr(S_WS,4)}, s{S_FLG} offen sc1", fl[57][1]]; fl[58] = [W[8], W[9], kvd[4]]
    fl[59] = [W[10], "v_max3_f32 v82, v19, v20, v21", "v_max3_f32 v80, v80, v22, v23", "v_max_f32 v80, v80, v82", W[11], W[12], kvm[-1], W[13], "STAMP"]
    ms = []
    for m, t in (("q", 0), ("k", 0), ("q", 1), ("k", 1)):
        ms += [smf(m, t, sig) for sig in range(2, 8)]
    ms += [smf("v", t, sig) for sig in range(2, 8) for t in range(2)]
    ms += [sx(0, 0), sx(1, 0), sm(0), sx(0, 1), sx(1, 1), sm(1), sx(0, 2), sx(0, 3), sx(1, 2), sx(1, 3), sm(2), sm(3)]
    run([(m, fl[12 + i]) for i, m in enumerate(ms)])
    ee = lambda r: f"v_exp_f32 v{r}, v{r}"
    for x in ["v_max3_f32 v80, v80, v26, v27", "v_mov_b32 v82, v80", W[14], W[15], "v_permlane32_swap_b32 v80, v82", "v_max_f32 v80, v80, v82",
              "v_mov_b32 v82, v80", "s_nop 1", "v_permlane16_swap_b32 v80, v82", "v_max_f32 v80, v80, v82", f"v_mul_f32 v80, s{S_SC}, v80"]:
        emit(x)
    for r in (26, 16, 18, 20, 22):
        a(f"v_pk_fma_f32 {vr(r,2)}, {vr(r,2)}, {sr(S_SC2,2)}, v[80:81] op_sel_hi:[1,1,0] neg_lo:[0,0,1] neg_hi:[0,0,1]")
    stamp()
    for x in [ee(26), ee(27), ee(16), "v_cvt_pk_bf16_f32 v76, v26, v27", "v_cvt_pk_bf16_f32 v79, v26, v27", ee(17)]:
        emit(x)
    run([("v_mfma_f32_16x16x16_bf16 v[84:87], v[28:29], v[76:77], 0", [ee(18), "v_cvt_pk_bf16_f32 v68, v16, v17"]),
         ("v_mfma_f32_16x16x16_bf16 v[88:91], v[14:15], v[76:77], 0", [ee(19), ee(20)]),
         ("v_mfma_f32_16x16x16_bf16 v[92:95], v[14:15], v[78:79], 0", [ee(21), "v_cvt_pk_bf16_f32 v69, v18, v19", ee(22), ee(23),
            "v_cvt_pk_bf16_f32 v70, v20, v21", "v_cvt_pk_bf16_f32 v71, v22, v23", W[16], "s_nop 0"]),
         ("v_mfma_f32_16x16x32_bf16 v[84:87], v[28:31], v[68:71], v[84:87]", [W[17]]),
         (f"v_mfma_f32_16x16x32_bf16 v[88:91], {vr(VX[0],4)}, v[68:71], v[88:91]", []),
         (f"v_mfma_f32_16x16x32_bf16 v[92:95], {vr(VX[1],4)}, v[68:71], v[92:95]", ["v_rcp_f32 v20, v84", "s_nop 2"])])
    for r in range(88, 92): a(f"v_mul_f32 v{r}, v20, v{r}")
    a("v_pk_mul_f32 v[92:93], v[92:93], v[20:21] op_sel_hi:[1,0]")
    a("v_pk_mul_f32 v[94:95], v[94:95], v[20:21] op_sel_hi:[1,0]")
    for i in range(4): a(f"v_cvt_pk_bf16_f32 v{16+i}, v{88+2*i}, v{89+2*i}")
    if "oexec" in opt: a(f"s_mov_b64 exec, {sr(S_OM,2)}")
    emit((f"ds_write_b128 {vOw}, v[16:19]", "Ow"))
    if "oexec" in opt: a("s_mov_b64 exec, -1")
    stamp()
    a(zero16(64))
    a(zero16(80))
    emit(("w", "Ow"))
    a("s_barrier")
    emit((f"ds_read_b128 v[16:19], {vL16} offset:{L_OS}", "O0"))
    emit((f"ds_read_b128 v[20:23], {vL16} offset:{L_OS+1024}", "O1"))
    a(zero16(80))
    emit(("w", "O1"))
    stamp()
    OA = [64 + 4 * T for T in range(8)]
    buf = {k: WB[k] for k in range(9)}
    for k in range(9, 16): buf[k] = WB[k - 9]
    def wo(k):
        T, ks = divmod(k, 2)
        return f"v_smfmac_f32_16x16x64_bf16 {vr(OA[T], 4)}, {vr(16 + 4*ks, 4)}, {vr(buf[k], 8)}, {vIdx}"
    def add(T):
        o = OA[T]; return [f"v_add_f32 v{o}, v{o}, v{o+1}", f"v_add_f32 v{o+2}, v{o+2}, v{o+3}"]
    G = [OA[0], OA[4]]
    def cvt(tau, bb):
        o0, o1 = OA[tau*4 + 2*bb], OA[tau*4 + 2*bb + 1]
        return [f"v_cvt_pk_bf16_f32 v{G[tau]+bb}, v{o0}, v{o1}", f"v_cvt_pk_bf16_f32 v{G[tau]+2+bb}, v{o0+2}, v{o1+2}"]
    tag = lambda tau: [f"v_and_or_b32 v{G[tau]}, v{G[tau]}, -2, s{S_TAG}"]
    stp = lambda tau: [f"buffer_store_dwordx4 {vr(G[tau],4)}, {vPs}, {sr(S_WS,4)}, s{S_PST+tau} offen{st}"]
    fill = {k: [] for k in range(16)}
    rest = [rdWo(k, buf[k], h) for k in range(9, 16) for h in range(2)]
    sched_rd = {0: 2, 1: 2, 2: 2, 3: 1, 4: 1, 5: 1, 6: 1, 7: 1, 8: 1, 9: 1, 10: 1}
    for k, n in sched_rd.items():
        for _ in range(n): fill[k].append(rest.pop(0))
    fill[8].append(("w", ("W", 11)))
    fill[11].append(("w", ("W", 13)))
    fill[13].append(("w", ("W", 15)))
    va = {3: add(0)[:1], 4: add(0)[1:], 5: add(1), 6: cvt(0, 0), 7: tag(0) + add(2)[:1], 8: add(2)[1:], 9: add(3) + cvt(0, 1), 10: stp(0),
          11: add(4)[:1], 12: add(4)[1:], 13: add(5), 14: cvt(1, 0) + tag(1), 15: add(6)}
    for k, v in va.items(): fill[k] += v
    SEL, RA0, RA1, RB1, RD = 96, 100, 104, 108, 112
    fill[15] = [(f"ds_read_b128 {vr(SEL,4)}, {vL16} offset:{L_SEL}", "SEL")] + fill[15] + ["v_mov_b32 v117, -1", f"s_mov_b32 s{S_PC}, 0", "s_nop 2"] + add(7) + cvt(1, 1) + stp(1)
    run([(wo(k), fill[k]) for k in range(16)])
    stamp()
    if "nocomm" in opt:
        a(zero16(64)); fx(); a(zero16(80))
        if stamps:
            a(f"s_cmp_eq_u32 s{S_STEP}, {nsteps-1}")
            a(f"s_cbranch_scc1 {pfx}_end")
        a(f"s_add_u32 s{S_STEP}, s{S_STEP}, 1")
        a("s_nop 7")
        a(f"s_branch {pfx}_gA")
    def ldp(reg, tau): a(f"buffer_load_dwordx4 {vr(reg,4)}, {vPl}, {sr(S_WS,4)}, s{S_PLD+tau} offen sc1")
    d0 = geti("dz", 5); d1 = geti("da", 9); d2 = geti("db", 3); d3 = geti("dc", 3)
    a(zero16(64))
    fx()
    a(zero16(80))
    JD = zero16(80) if "nopd" not in opt else "s_nop 7"
    for _ in range(d0 - 2): a(JD)
    ldp(RA0, 0)
    for _ in range(d1 - d0): a(JD)
    ldp(RA1, 1)
    for _ in range(d2): a(zero16(80) if "nopd2" not in opt else "s_nop 7")
    ldp(RB1, 1)
    emit(("w", "SEL"))
    a.label(f"{pfx}_rc0")
    a("s_waitcnt vmcnt(2)")
    a(f"v_and_b32 {vT1}, 1, v{RA0}")
    a(f"v_cmp_ne_u32 vcc, s{S_TAG}, {vT1}")
    a(f"v_mfma_f32_16x16x32_bf16 {vr(RD,4)}, {vr(SEL,4)}, {vr(RA0,4)}, 0")
    a(f"s_cbranch_vccnz {pfx}_rf0")
    for _ in range(d3): a(zero16(80) if "nopd2" not in opt else "s_nop 7")
    def fin(reg, nm):
        a.label(f"{pfx}_rc{nm}")
        a("s_waitcnt vmcnt(1)")
        a(f"v_mfma_f32_16x16x32_bf16 v[16:19], {vr(SEL,4)}, {vr(reg,4)}, {vr(RD,4)}")
        a(f"v_and_b32 {vT1}, 1, v{reg}")
        a(f"v_cmp_ne_u32 vcc, s{S_TAG}, {vT1}")
        a(f"s_cbranch_vccnz {pfx}_rf{nm}")
    fin(RA1, "A")
    a.label(f"{pfx}_rok")
    stamp()
    if stamps: a(f"s_mov_b32 s{S_STAMP+28}, s{S_PC}")
    a("s_nop 2" if (stamps and tr0 < 0) else "s_nop 4")
    a("v_add_f32_dpp v16, v16, v16 row_ror:8 row_mask:0xf bank_mask:0xf")
    a("v_add_f32_dpp v17, v17, v17 row_ror:8 row_mask:0xf bank_mask:0xf")
    a("s_nop 0")
    a("v_add_f32_dpp v16, v16, v16 row_ror:4 row_mask:0xf bank_mask:0xf")
    a("v_add_f32_dpp v17, v17, v17 row_ror:4 row_mask:0xf bank_mask:0xf")
    a("v_cvt_pk_bf16_f32 v116, v16, v17")
    a(f"buffer_store_dword v116, {vMp}, {sr(S_WS,4)}, s{S_MWR} offen{st}")
    a(f"buffer_store_dword v117, {vMp}, {sr(S_WS,4)}, s{S_MPO} offen{st}")
    if stamps:
        a(f"s_mov_b32 s{S_STAMP+30}, s{S_STAMP+2*nst[0]}")
    stamp()
    if stamps:
        a(f"s_cmp_eq_u32 s{S_STEP}, {nsteps-1}")
        a(f"s_cbranch_scc1 {pfx}_end")
    g1 = geti("ga", 5); g2 = geti("gb", 3); g3 = geti("gc", 3)
    J = zero16(96) if "nopj" not in opt else "s_nop 7"
    a(J)
    a(f"s_mov_b32 s{S_MPO}, s{S_MWR}")
    a(f"s_sub_u32 s{S_MRD}, s{S_MWR}, s{S_OWN}")
    a(f"s_add_u32 s{S_MWR}, s{S_MWR}, 8192")
    a(f"s_cmp_ge_u32 s{S_MRD}, {hex(WS_MEM + 2*8192)}")
    a(f"s_cselect_b32 s{S_T0}, {3*8192}, 0")
    a(f"s_sub_u32 s{S_MWR}, s{S_MWR}, s{S_T0}")
    a(J)
    a(f"s_add_u32 s{S_STEP}, s{S_STEP}, 1")
    a(f"s_xor_b32 s{S_TAG}, s{S_TAG}, 1")
    if "mega" in opt:
        a(f"v_readlane_b32 s{S_HAVE}, v12, 0")
        a(f"v_readlane_b32 s{S_T0}, v12, 2")
        a(f"s_add_u32 s{S_T1}, s{S_STEP}, 2")
        a(f"s_min_u32 s{S_T1}, s{S_T1}, 64")
        a(f"s_min_u32 s{S_HAVE}, s{S_HAVE}, s{S_T0}")
        kv_wait(a, f"s{S_T1}", pfx + "_kvw")
        g1 -= 1
    a(f"s_mov_b32 s{S_PC}, 0")
    for _ in range(g1 - 1): a(J)
    gather(FA)
    for _ in range(g2): a(J)
    gather(FB)
    for _ in range(g3): a(J)
    a(f"s_branch {pfx}_gA")
    def tmo(nm):
        a(f"s_add_u32 s{S_PC}, s{S_PC}, 1")
        a(f"s_cmp_ge_u32 s{S_PC}, s{S_PMAX}")
        a(f"s_cbranch_scc1 {pfx}_rt{nm}")
    a.label(f"{pfx}_rf0")
    tmo("0")
    ldp(RA0, 0); ldp(RA1, 1); ldp(RB1, 1)
    a(f"s_branch {pfx}_rc0")
    a.label(f"{pfx}_rt0")
    a(f"s_mov_b32 s{S_PMAX}, 1")
    a(f"s_branch {pfx}_rcA")
    a.label(f"{pfx}_rfA")
    ldp(RA1, 1)
    a(f"s_add_u32 s{S_PC}, s{S_PC}, 1")
    fin(RB1, "B")
    a(f"s_branch {pfx}_rok")
    a.label(f"{pfx}_rfB")
    ldp(RB1, 1)
    tmo("X")
    a(f"s_branch {pfx}_rcA")
    a.label(f"{pfx}_rtX")
    a(f"s_mov_b32 s{S_PMAX}, 1")
    a(f"s_branch {pfx}_rok")
    a.label(pfx + "_end")
    return nst[0]
```

```python
import sys
from common import *
import rec, pre, gemm
L_BOOT = 163840 - 64

def read_counts(a, vdst="v25", vaddr="v24"):
    a(f"global_load_dword {vdst}, {vaddr}, {sr(S_DBG,2)} sc1")
    a("s_waitcnt vmcnt(0)")

def sum_arrivals(a, vb, dst, tmp):
    a(f"v_readlane_b32 s{dst}, {vb}, {D_OVF}")
    for x in range(8):
        a(f"v_readlane_b32 s{tmp}, {vb}, {0 if x == 0 else 15 + x}")
        a("s_nop 1")
        a(f"s_bcnt1_i32_b32 s{tmp}, s{tmp}")
        a(f"s_add_u32 s{dst}, s{dst}, s{tmp}")

def emit_entry(a, opt):
    a("s_cmp_ge_u32 s2, 256")
    a("s_cbranch_scc1 L_exit")
    a("s_load_dwordx4 s[48:51], s[0:1], 112")
    a(f"s_getreg_b32 s{S_TEAM}, hwreg(HW_REG_XCC_ID)")
    a(f"s_and_b32 s{S_TEAM}, s{S_TEAM}, 7")
    if "fakexcc" in opt:
        a(f"s_lshr_b32 s{S_TEAM}, s2, 5")
        a("s_and_b32 s16, s2, 7")
        a("s_cmp_eq_u32 s16, 3")
        a(f"s_cselect_b32 s16, 5, s{S_TEAM}")
        a(f"s_mov_b32 s{S_TEAM}, s16")
    if "time" in opt: a("s_memrealtime s[92:93]")
    a("v_lshrrev_b32 v1, 6, v0")
    a(f"s_lshr_b32 s{S_H}, s2, 3")
    a(f"v_readfirstlane_b32 s{S_W}, v1")
    a(f"s_mov_b32 s{S_CLM}, 0")
    a("s_waitcnt lgkmcnt(0)")
    a(f"s_mov_b32 s{S_DBG}, s48")
    a(f"s_mov_b32 s{S_DBG+1}, s49")
    srd(a, S_WS, 50, WS_SIZE)
    a.label("L_role")

def emit_overflow(a):
    a.label("L_overflow")
    a("s_waitcnt vmcnt(0) lgkmcnt(0)")
    a("s_barrier")
    a("v_mov_b32 v2, 0"); a("v_mov_b32 v3, 1"); a("v_mov_b32 v5, 0")
    a(f"s_cmp_lg_u32 s{S_W}, 0")
    a("s_cbranch_scc1 L_ovw")
    a("s_mov_b64 exec, 1")
    a(f"global_atomic_add v4, v2, v3, {sr(S_DBG,2)} offset:{4*D_OVF} sc0")
    a("s_waitcnt vmcnt(0)")
    a("ds_write_b32 v5, v4")
    a("s_waitcnt lgkmcnt(0)")
    a("s_mov_b64 exec, -1")
    a.label("L_ovw")
    a("s_barrier")
    a("ds_read_b32 v4, v5")
    a("s_waitcnt lgkmcnt(0)")
    a("v_readfirstlane_b32 s18, v4")
    a("s_barrier")
    a("v_and_b32 v24, 31, v0"); a("v_lshlrev_b32 v24, 2, v24")
    a("s_mov_b32 s17, 0")
    a.label("L_ov")
    read_counts(a)
    sum_arrivals(a, "v25", 19, 20)
    a("s_cmp_ge_u32 s19, 256")
    a("s_cbranch_scc1 L_ovok")
    a("s_sleep 32")
    a("s_add_u32 s17, s17, 1")
    a("s_cmp_lt_u32 s17, 50000")
    a("s_cbranch_scc1 L_ov")
    a("s_branch L_exit")
    a.label("L_ovok")
    for x in range(8):
        a(f"v_readlane_b32 s20, v25, {0 if x == 0 else 15 + x}")
        a(f"s_mov_b32 s{S_TEAM}, {x}")
        a("s_nop 1")
        a("s_bcnt0_i32_b32 s19, s20")
        a("s_cmp_lt_u32 s18, s19")
        a("s_cbranch_scc1 L_ovf")
        a("s_sub_u32 s18, s18, s19")
    a("s_branch L_exit")
    a.label("L_ovf")
    a("s_cmp_eq_u32 s18, 0")
    a("s_cbranch_scc1 L_ovg")
    a("s_add_u32 s19, s20, 1")
    a("s_or_b32 s20, s20, s19")
    a("s_sub_u32 s18, s18, 1")
    a("s_branch L_ovf")
    a.label("L_ovg")
    a(f"s_ff0_i32_b32 s{S_H}, s20")
    a(f"s_and_b32 s{S_H}, s{S_H}, 31")
    a("s_branch L_role")

def emit_mode(a, opt, slow_label, va="v24", vb="v25"):
    if "fakexcc" in opt or "slow" in opt:
        a(f"s_branch {slow_label}")
        return
    l = a.uid("md")
    a(f"v_mbcnt_lo_u32_b32 {va}, -1, 0")
    a(f"v_and_b32 {va}, 31, {va}"); a(f"v_lshlrev_b32 {va}, 2, {va}")
    a(f"s_add_u32 s50, s{S_TEAM}, 15")
    a(f"s_cmp_eq_u32 s{S_TEAM}, 0")
    a("s_cselect_b32 s50, 0, s50")
    a("s_mov_b32 s51, 0")
    a.label(l)
    read_counts(a, vb, va)
    a(f"v_readlane_b32 s48, {vb}, s50")
    a("s_nop 1")
    a("s_cmp_eq_u32 s48, -1")
    a(f"s_cbranch_scc1 {l}_ok")
    sum_arrivals(a, vb, 48, 49)
    a("s_cmp_ge_u32 s48, 256")
    a(f"s_cbranch_scc1 {slow_label}")
    a("s_sleep 32")
    a("s_add_u32 s51, s51, 1")
    a("s_cmp_lt_u32 s51, 50000")
    a(f"s_cbranch_scc1 {l}")
    a(f"s_branch {slow_label}")
    a.label(l + "_ok")

def build(opt=()):
    a = Asm()
    hdr = open("cdna_kernels/" + KNAME + ".s.ref").read().split("\n") if "nohdr" not in opt else []
    for l in hdr:
        if l.startswith(";") and "@launch" not in l: a.raw(l)
        elif not l.startswith(";"): break
    a.raw("; @launch grid=(256,1,1) block=(256,1,1) lds=163840")
    a.raw('.amdgcn_target "amdgcn-amd-amdhsa--gfx950"')
    a.raw(".text")
    a.raw(f".globl {KNAME}_kernel")
    a.raw(".p2align 8")
    a.raw(f".type {KNAME}_kernel,@function")
    a.label(f"{KNAME}_kernel")
    emit_entry(a, opt)
    a(f"s_cmp_lg_u32 s{S_TEAM}, 0")
    a("s_cbranch_scc1 L_notR")
    rec.emit_rec_mega(a, opt)
    a("s_branch L_done")
    a.label("L_notR")
    a(f"s_cmp_ge_u32 s{S_TEAM}, 4")
    a("s_cbranch_scc1 L_T")
    gemm.emit_gemm(a, opt)
    a("s_branch L_done")
    emit_overflow(a)
    a.label("L_T")
    a(f"s_lshl_b32 s16, s{S_H}, 2")
    a(f"s_add_u32 s16, s16, s{S_TEAM}")
    a("s_sub_u32 s16, s16, 4")
    import post
    post.emit_post(a, opt)
    a.label("L_done")
    if "time" in opt:
        a("s_memrealtime s[94:95]")
        a("s_memtime s[100:101]")
        a("s_waitcnt vmcnt(0) lgkmcnt(0)")
        a(f"s_cmp_lg_u32 s{S_W}, 0")
        a("s_cbranch_scc1 L_exit")
        a(f"s_lshl_b32 s48, s{S_TEAM}, 5")
        a(f"s_add_u32 s48, s48, s{S_H}")
        a("s_lshl_b32 s48, s48, 8")
        a(f"s_add_u32 s48, s48, {hex(WS_STAMP)}")
        a("v_mov_b32 v2, 0")
        a("s_mov_b64 exec, 1")
        for i in range(18):
            a(f"v_mov_b32 v3, s{84+i}")
            a(f"buffer_store_dword v3, v2, {sr(S_WS,4)}, s48 offen offset:{4*i}")
        for i in range(8):
            a(f"v_mov_b32 v3, s{76+i}")
            a(f"buffer_store_dword v3, v2, {sr(S_WS,4)}, s48 offen offset:{80+4*i}")
        a("s_mov_b64 exec, -1")
        a("v_mbcnt_lo_u32_b32 v2, -1, 0")
        a("v_lshlrev_b32 v2, 2, v2")
        a("s_mov_b64 exec, 0xffffffff")
        a(f"buffer_store_dword v143, v2, {sr(S_WS,4)}, s48 offen offset:128")
        a("s_waitcnt vmcnt(0)")
    a.label("L_exit")
    a("s_endpgm")
    a.raw('.section .rodata,"a"')
    a.raw(".p2align 6")
    a.raw(f".amdhsa_kernel {KNAME}_kernel")
    for l in ["next_free_vgpr 512", "next_free_sgpr 102", "accum_offset 256", "group_segment_fixed_size 0", "kernarg_size 128",
              "user_sgpr_count 2", "user_sgpr_kernarg_segment_ptr 1", "system_sgpr_workgroup_id_x 1", "float_denorm_mode_32 3"]:
        a.raw("  .amdhsa_" + l)
    a.raw(".end_amdhsa_kernel")
    return a.text()

if __name__ == "__main__":
    out = sys.argv[1]
    t = build(sys.argv[2:])
    open(out, "w").write(t)
    errs = check_hazards(t)
    for e in errs: print("HAZARD", e)
    print("lines", t.count("\n"), "bytes", len(t), "hazards", len(errs))
```

```python
from asmlib import *

KNAME = "adaLN_cond__memory_aug_recurrent_mem_tr__glu_gated_bilinear__prompt"

HSTR    = 65 * 16384
WS_KV   = 0x0000000
QSTR    = 65 * 8192
WS_QX   = 0x4000000
MSTR    = 65 * 4096
WS_KM   = 0x6000000
WS_PART = 0x6C00000
WS_MEM  = 0x6C80000
WS_STAMP= 0x6D00000
WS_H    = 0x7000000
WS_MOD  = 0x7200000
WS_FLAG = 0x7210000
NT, T0_ = 5, 3
WS_P1   = 0x8000000
WS_ACT  = 0x7800000
WS_H2   = 0x7C00000
D_CNT0, D_RTB = 0, 1
D_CNT1 = 16
D_MOD1, D_LN1 = 32, 40
D_INIT = 48
N_LN1 = 32
S_WS = 4
S_T  = 8
S_DBG = 12
S_H, S_W = 14, 15
S_TEAM = 3
S_CLM = 75
D_OVF = 24
WS_SIZE = 0x10000000

class VmQ:
    def __init__(self, a): self.a = a; self.q = []
    def issue(self, tag, n=1): self.q += [tag] * n
    def wait(self, tag):
        idx = max(i for i, t in enumerate(self.q) if t == tag)
        n = len(self.q) - 1 - idx
        assert n <= 63
        self.a(f"s_waitcnt vmcnt({n})")
        self.q = self.q[idx + 1:]
    def clone(self, a=None):
        o = VmQ(a or self.a); o.q = list(self.q); return o

def lane_expr(a, dst, src, terms, const=0, tmp="v15", sadd=None):
    first = True
    for (sr_, w, sl) in terms:
        a(f"v_bfe_u32 {tmp}, {src}, {sr_}, {w}")
        if first:
            a(f"v_lshlrev_b32 {dst}, {sl}, {tmp}"); first = False
        else:
            a(f"v_lshl_add_u32 {dst}, {tmp}, {sl}, {dst}")
    if const:
        a(f"v_add_u32 {dst}, {const}, {dst}")
    if sadd:
        a(f"v_add_u32 {dst}, {sadd}, {dst}")

def srd(a, d, ptr, nbytes):
    a(f"s_mov_b32 s{d}, s{ptr}")
    a(f"s_and_b32 s{d+1}, s{ptr+1}, 0xffff")
    a(f"s_mov_b32 s{d+2}, {hex(nbytes)}")
    a(f"s_mov_b32 s{d+3}, 0x00020000")

def sexpr(a, dst, terms, const=0, tmp=49):
    first = True
    for (reg, sr_, w, sl) in terms:
        t = dst if first else tmp
        a(f"s_bfe_u32 s{t}, s{reg}, {hex(sr_ | (w << 16))}")
        if sl: a(f"s_lshl_b32 s{t}, s{t}, {sl}")
        if not first: a(f"s_add_u32 s{dst}, s{dst}, s{t}")
        first = False
    if const: a(f"s_add_u32 s{dst}, s{dst}, {hex(const)}")

class LQ:
    def __init__(s): s.q = []
    def issue(s, tag): s.q.append(tag)
    def wait(s, tag):
        if tag not in s.q: return ""
        idx = max(i for i, t in enumerate(s.q) if t == tag)
        n = min(len(s.q) - 1 - idx, 15)
        s.q = s.q[idx + 1:]
        return f"s_waitcnt lgkmcnt({n})"

def dbg_arrive(a, idx, va="v24", vb="v25", soff=None):
    a(f"v_mov_b32 {va}, {('s%d' % soff) if soff is not None else 0}")
    a(f"v_mov_b32 {vb}, 1")
    a("s_mov_b64 exec, 1")
    a(f"global_atomic_add {va}, {vb}, {sr(S_DBG,2)} offset:{4*idx}")
    a("s_mov_b64 exec, -1")

def dbg_wait(a, idx, target, va="v24", vb="v25", st=48, sc=49, soff=None, limit=100000, sleep=8):
    l = a.uid("dw")
    a(f"s_cmp_lg_u32 s{S_W}, 0")
    a(f"s_cbranch_scc1 {l}_ok")
    a(f"v_mov_b32 {va}, {('s%d' % soff) if soff is not None else 0}")
    a(f"s_mov_b32 s{sc}, 0")
    a("s_mov_b64 exec, 1")
    a.label(l)
    a(f"global_load_dword {vb}, {va}, {sr(S_DBG,2)} offset:{4*idx} sc1")
    a("s_waitcnt vmcnt(0)")
    a(f"v_readfirstlane_b32 s{st}, {vb}")
    a(f"s_cmp_ge_u32 s{st}, {target}")
    a(f"s_cbranch_scc1 {l}_x")
    a(f"s_sleep {sleep}")
    a(f"s_add_u32 s{sc}, s{sc}, 1")
    a(f"s_cmp_lt_u32 s{sc}, {limit}")
    a(f"s_cbranch_scc1 {l}")
    a.label(l + "_x")
    a("s_mov_b64 exec, -1")
    a.label(l + "_ok")
    a("s_barrier")

def f32bits(x):
    import struct
    return hex(struct.unpack('<I', struct.pack('<f', x))[0])

def tstamp(a, opt, idx):
    if "time" in opt and "dbgtime" not in opt:
        a("s_memrealtime s[70:71]")
        a("s_waitcnt lgkmcnt(0)")
        a(f"v_writelane_b32 v143, s70, {idx}")

def claim(a):
    l = a.uid("cl")
    a(f"s_or_b32 s48, s{S_CLM}, s{S_W}")
    a(f"s_cbranch_scc1 {l}")
    a(f"s_lshl_b32 s48, s{S_TEAM}, 2")
    a("s_add_u32 s48, s48, 60")
    a(f"s_cmp_eq_u32 s{S_TEAM}, 0")
    a("s_cselect_b32 s48, 0, s48")
    a(f"s_lshl_b32 s49, 1, s{S_H}")
    a("v_mov_b32 v124, s48"); a("v_mov_b32 v125, s49")
    a("s_mov_b64 exec, 1")
    a(f"global_atomic_or v126, v124, v125, {sr(S_DBG,2)} sc0")
    a("s_mov_b64 exec, -1")
    a.label(l)

def verify_claim(a, nvm, slot):
    l = a.uid("vc")
    a(f"s_cmp_lg_u32 s{S_CLM}, 0")
    a(f"s_cbranch_scc1 {l}_done")
    a(f"v_mov_b32 v125, {slot}")
    a(f"s_cmp_lg_u32 s{S_W}, 0")
    a(f"s_cbranch_scc1 {l}_w")
    a(f"s_waitcnt vmcnt({nvm})")
    a("s_mov_b64 exec, 1")
    a("ds_write_b32 v125, v126")
    a("s_mov_b64 exec, -1")
    a("s_waitcnt lgkmcnt(0)")
    a.label(l + "_w")
    a("s_barrier")
    a("ds_read_b32 v124, v125")
    a("s_waitcnt lgkmcnt(0)")
    a("v_readfirstlane_b32 s48, v124")
    a(f"s_mov_b32 s{S_CLM}, 1")
    a("s_nop 2")
    a(f"s_bitcmp1_b32 s48, s{S_H}")
    a("s_cbranch_scc1 L_overflow")
    a.label(l + "_done")

def wait_rec_loaded(a, first=0, va="v44", vb="v45", limit=12):
    l = a.uid("wr")
    a(f"s_cmp_lg_u32 s{S_W}, 0")
    a(f"s_cbranch_scc1 {l}_ok")
    for _ in range(first): a("s_sleep 64")
    a(f"v_mov_b32 {va}, 0")
    a("s_mov_b32 s49, 0")
    a("s_mov_b64 exec, 1")
    a.label(l)
    a(f"global_load_dword {vb}, {va}, {sr(S_DBG,2)} sc1")
    a("s_waitcnt vmcnt(0)")
    a(f"v_readfirstlane_b32 s48, {vb}")
    a("s_cmp_eq_u32 s48, -1")
    a(f"s_cbranch_scc1 {l}_x")
    a("s_sleep 48")
    a("s_add_u32 s49, s49, 1")
    a(f"s_cmp_lt_u32 s49, {limit}")
    a(f"s_cbranch_scc1 {l}")
    a.label(l + "_x")
    a("s_mov_b64 exec, -1")
    a.label(l + "_ok")
    a("s_barrier")
```

```python
from common import *
def emit_gemm(a, opt=()):
    a.c("==== G role: s3 = team (1: K+Q, 2: V), s14 = head ====")
    LE = lambda *x, **k: lane_expr(a, *x, tmp="v31", **k)
    WS = sr(S_WS, 4)
    def geti(p, d):
        for o in opt:
            if o.startswith(p) and o[len(p):].isdigit(): return int(o[len(p):])
        return d
    S_OUT, S_OUT2, S_QO, S_HS, S_M0, S_SEG, S_FL, S_HT, S_DONE, S_PO, S_QO2 = 17, 18, 19, 20, 21, 22, 23, 24, 25, 26, 27
    a("s_load_dwordx4 s[32:35], s[0:1], 24")
    a("s_load_dwordx2 s[36:37], s[0:1], 16")
    LE("v28", "v0", [(4, 2, 5)])
    LE("v29", "v0", [(0, 4, 4)])
    a("v_xor_b32 v28, v28, v29")
    LE("v30", "v0", [(4, 2, 13)])
    a("v_add_u32 v5, v28, v30")
    a("v_xor_b32 v6, 128, v5")
    sexpr(a, 50, [(S_H, 0, 5, 8), (S_W, 0, 2, 20)])
    sexpr(a, 51, [(S_W, 0, 2, 15)])
    a("s_waitcnt lgkmcnt(0)")
    a(f"s_cmp_eq_u32 s{S_TEAM}, 2")
    a("s_cselect_b32 s32, s34, s32"); a("s_cselect_b32 s33, s35, s33")
    def stage(ptr):
        srd(a, S_T, ptr, 4194304)
        for i in range(32):
            a(f"s_add_u32 m0, s51, {i * 1024}")
            a(f"s_add_u32 s48, s50, {hex(4 * i * 8192)}")
            a(f"buffer_load_dwordx4 v{5 + ((i >> 1) & 1)}, {sr(S_T,4)}, s48 offen lds")
    W = lambda m, t, ks, off=0, n=4: ar(m * 128 + (t * 16 + ks) * 4 + off, n)
    def frags(m):
        a("s_waitcnt vmcnt(0)")
        a("s_barrier")
        for ks in range(16):
            for t in range(2):
                for u in range(2):
                    off = ((32 * ks + 4 * u) * 256) % 65536
                    a(f"ds_read_b64_tr_b16 {W(m, t, ks, 2*u, 2)}, v{8 + t + 2 * (ks // 8)} offset:{off}")
        a("s_waitcnt lgkmcnt(0)")
    stage(32)
    claim(a)
    sexpr(a, S_FL, [(S_H, 0, 5, 7), (S_TEAM, 0, 2, 4)], WS_FLAG - 16)
    a("v_and_b32 v4, 63, v0")
    a("v_cmp_eq_u32 vcc, 0, v4")
    a("v_mov_b32 v3, 0x40000000")
    a("s_nop 0")
    a("v_cndmask_b32 v3, v3, 0, vcc")
    LE("v28", "v0", [(4, 2, 11), (2, 2, 8), (0, 1, 3)])
    LE("v29", "v0", [(6, 2, 6), (1, 1, 4)])
    LE("v30", "v0", [(2, 2, 5), (4, 1, 7)])
    a("v_xor_b32 v29, v29, v30")
    a("v_add_u32 v8, v28, v29")
    a("v_xor_b32 v9, 32, v8")
    a("v_add_u32 v10, 0x10000, v8")
    a("v_add_u32 v11, 0x10000, v9")
    frags(0)
    a("s_barrier")
    stage(36)
    a(f"s_mul_i32 s{S_OUT}, s{S_H}, {HSTR}")
    a(f"s_mul_i32 s{S_QO}, s{S_H}, {QSTR}")
    sexpr(a, 48, [(S_W, 0, 2, 10), (S_TEAM, 1, 1, 12)], WS_QX); a(f"s_add_u32 s{S_QO}, s{S_QO}, s48")
    a(f"s_mul_i32 s{S_PO}, s{S_H}, {MSTR}")
    sexpr(a, 48, [(S_W, 0, 2, 10)], WS_KM); a(f"s_add_u32 s{S_PO}, s{S_PO}, s48")
    for i in range(4): a(f"v_mov_b32 v{12+i}, -1")
    a(f"s_cmp_eq_u32 s{S_TEAM}, 2")
    a("s_cbranch_scc1 G_isv")
    sexpr(a, 48, [(S_W, 1, 1, 12), (S_W, 0, 1, 10)], WS_KV)
    a(f"s_add_u32 s{S_OUT}, s{S_OUT}, s48")
    a(f"s_add_u32 s{S_OUT2}, s{S_OUT}, 8192")
    a("s_branch G_addr")
    a.label("G_isv")
    sexpr(a, 48, [(S_W, 0, 2, 12)], WS_KV + 2048)
    a(f"s_add_u32 s{S_OUT}, s{S_OUT}, s48")
    a(f"s_add_u32 s{S_OUT2}, s{S_OUT}, 1024")
    a.label("G_addr")
    frags(1)
    LE("v1", "v0", [(0, 6, 4)])
    sexpr(a, S_HS, [(S_W, 0, 2, 13)], WS_H)
    sexpr(a, S_M0, [(S_W, 0, 2, 13)])
    verify_claim(a, 0, 163840 - 64)
    tstamp(a, opt, 16)
    dbg_wait(a, D_LN1, N_LN1, sleep=16)
    tstamp(a, opt, 17)
    def dma_list():
        L = []
        for half in range(2):
            for i in range(4):
                pre_ = [f"s_add_u32 m0, s{S_M0}, {half * 4096}", f"s_add_u32 s{S_HT}, s{S_HS}, {half * 4096}"] if i == 0 else []
                L.append(pre_ + [f"buffer_load_dwordx4 v1, {WS}, s{S_HT} offen offset:{1024*i} sc1 lds"])
        L[-1] += [f"s_add_u32 s{S_HS}, s{S_HS}, 32768", f"s_add_u32 s{S_M0}, s{S_M0}, 32768", f"s_and_b32 s{S_M0}, s{S_M0}, 0x1ffff"]
        return L
    for _ in range(3):
        for grp in dma_list():
            for x in grp: a(x)
    a(f"s_mov_b32 s{S_SEG}, 0")
    a(f"s_mov_b32 s{S_DONE}, 0")
    a("v_mov_b32 v2, v1")
    a("s_waitcnt vmcnt(16)")
    a(f"s_cmp_eq_u32 s{S_TEAM}, 2")
    a("s_cbranch_scc1 G_loopV")
    for var in ("K", "V"):
        a.raw(".p2align 6")
        a.label(f"G_loop{var}")
        a("s_barrier")
        lq = LQ()
        HB = lambda rt, ks: 32 + ((ks % 4) * 2 + rt) * 4
        def rd(ks):
            for rt in range(2):
                a(f"ds_read_b128 {vr(HB(rt, ks),4)}, v2 offset:{(rt * 16 + ks) * 1024}"); lq.issue(ks)
        for ks in range(3): rd(ks)
        a(f"s_cmp_lg_u32 s{S_W}, 0")
        a(f"s_cbranch_scc1 G_nf{var}")
        a(f"v_mov_b32 v4, s{S_DONE}")
        a(f"buffer_store_dword v4, v3, {WS}, s{S_FL} offen sc1")
        a.label(f"G_nf{var}")
        dl = dma_list()
        AC = lambda rt, t: 80 + ((rt * 2 + t) * 4 if var == "K" else (t * 2 + rt) * 4)
        qrt = 0 if var == "K" else 1
        gapn = geti("gg", 0)
        for ks in range(16):
            a(lq.wait(ks))
            ml = []
            for rt in range(2):
                for t in range(2):
                    d = vr(AC(rt, t), 4); c = d if ks else "0"
                    if var == "K": ml.append(f"v_mfma_f32_16x16x32_bf16 {d}, {W(0, t, ks)}, {vr(HB(rt, ks),4)}, {c}")
                    else: ml.append(f"v_mfma_f32_16x16x32_bf16 {d}, {vr(HB(rt, ks),4)}, {W(0, t, ks)}, {c}")
            for t in range(2):
                d = vr(96 + 4 * t, 4); c = d if ks else "0"
                ml.append(f"v_mfma_f32_16x16x32_bf16 {d}, {W(1, t, ks)}, {vr(HB(qrt, ks),4)}, {c}")
            for n, m in enumerate(ml):
                a(m)
                if n == 0 and ks + 3 < 16: rd(ks + 3)
                if n == 2 and ks % 2 == 0:
                    for x in dl[ks // 2]: a(x)
                if n == 2 and ks == 15:
                    if var == "K": a(f"buffer_store_dwordx4 v[12:15], v1, {WS}, s{S_PO} offen sc1")
                    a(f"s_add_u32 s{S_PO}, s{S_PO}, 4096")
                if gapn: a(f"s_nop {gapn}")
        a("v_add_u32 v2, 0x8000, v2")
        a("v_and_b32 v2, 0x1ffff, v2")
        a(f"s_mov_b32 s{S_DONE}, s{S_SEG}")
        a(f"s_add_u32 s{S_SEG}, s{S_SEG}, 1")
        a("s_nop 0")
        outs = [(S_OUT, 16384), (S_OUT2, 16384), (S_QO, 8192)]
        for k, (so, stride) in enumerate(outs):
            for i in range(4): a(f"v_cvt_pk_bf16_f32 v{64+4*k+i}, v{80+8*k+2*i}, v{81+8*k+2*i}")
            a(f"buffer_store_dwordx4 {vr(64+4*k,4)}, v1, {WS}, s{so} offen sc1")
            a(f"s_add_u32 s{so}, s{so}, {stride}")
        a(f"s_waitcnt vmcnt({12 if var == 'K' else 11})")
        D = geti("pd", 0)
        if D:
            a(f"s_cmp_lt_u32 s{S_SEG}, {D}")
            a(f"s_cselect_b32 s48, 1, s{S_W}")
            a("s_cmp_lg_u32 s48, 0")
            a(f"s_cbranch_scc1 G_np{var}")
            a(f"s_sub_u32 s49, s{S_PO}, {D*4096}")
            a("s_mov_b32 s50, 0")
            a.label(f"G_pp{var}")
            a(f"buffer_load_dword v4, v3, {WS}, s49 offen sc1")
            a("s_waitcnt vmcnt(0)")
            a("v_readfirstlane_b32 s48, v4")
            a("s_cmp_lg_u32 s48, -1")
            a(f"s_cbranch_scc1 G_np{var}")
            a("s_sleep 8")
            a("s_add_u32 s50, s50, 1")
            a("s_cmp_lt_u32 s50, 200")
            a(f"s_cbranch_scc1 G_pp{var}")
            a.label(f"G_np{var}")
        a(f"s_cmp_eq_u32 s{S_SEG}, {N_LN1//2-3}")
        a(f"s_cbranch_scc1 G_first{var}")
        a(f"s_cmp_eq_u32 s{S_SEG}, 2")
        a(f"s_cbranch_scc1 G_second{var}")
        a(f"s_cmp_lt_u32 s{S_SEG}, 64")
        a(f"s_cbranch_scc1 G_loop{var}")
        a("s_branch G_fin")
        a.label(f"G_first{var}")
        dbg_wait(a, D_INIT, 32 * NT, sleep=64)
        a(f"s_branch G_loop{var}")
        a.label(f"G_second{var}")
        a("s_waitcnt vmcnt(0)")
        a(f"s_mov_b32 s{S_DONE}, 2")
        tstamp(a, opt, 18)
        a(f"s_branch G_loop{var}")
    a.label("G_fin")
    a("s_waitcnt vmcnt(0)")
    a("s_barrier")
    a("v_mov_b32 v4, 64")
    a(f"buffer_store_dword v4, v3, {WS}, s{S_FL} offen sc1")
    a("s_waitcnt vmcnt(0)")
```

```python
from common import *
from pre import rnd1, rnd2, MASK, S_TID, xsum_g
import math

S_X, S_O = 20, 24
S_SEG, S_TAG, S_PC, S_PMAX, S_SC, S_L2E = 28, 29, 30, 31, 18, 19
S_P1S, S_P1L, S_P1S2 = 52, 53, 54
S_SLOT, S_PSLOT = 55, 56
S_H2B, S_H2O, S_ACTW, S_ACTR = 57, 58, 59, 60
S_KV, S_Q, S_KM, S_KMV, S_ROW, S_OUT, S_FLG, S_HAVE, S_X2R = 61, 62, 63, 64, 65, 66, 67, 68, 69
S_MKV, S_MQ, S_MODE = 72, 73, 74
vL16, vCol, vP, vKw, vKr, vHg, vHw, vHr, vOw, vZero, vQr, vVr, vEw, vEr, vEo = ["v%d" % i for i in range(1, 16)]
MC = 16
BIAS, SEL = 24, 32
vX2g = "v36"
XR = 37
T0, T1, T2 = 38, 39, 40
L_K, L_O, L_ST, L_E, L_KV, L_Q, L_H = 0, 4096, 12288, 16384, 24576, 40960, 49152
FS, RTS = 1088, 17408
WoF = lambda ct, ks, off=0, n=4: ar((ct * 4 + ks) * 4 + off, n)
GF = lambda m, ks, off=0, n=4: ar(128 + (m * 16 + ks) * 4 + off, n)
DF = lambda t, ks, off=0, n=4: vr(144 + (t * 14 + ks) * 4 + off, n)

def wave_sum(a, x, t):
    a("s_nop 1")
    for ror in (1, 2, 4, 8):
        a(f"v_add_f32_dpp v{x}, v{x}, v{x} row_ror:{ror} row_mask:0xf bank_mask:0xf")
        if ror < 8: a("s_nop 1")
    xsum_g(a, x, t)

def emit_post_addr(a):
    LE = lambda *x, **k: lane_expr(a, *x, tmp="v47", **k)
    WS = sr(S_WS, 4)
    LE(vL16, "v0", [(0, 6, 4)])
    LE(vCol, "v0", [(6, 2, 8), (2, 2, 6), (5, 1, 5), (0, 2, 3), (4, 1, 2)])
    LE(vP, "v0", [(0, 4, 15), (4, 2, 4)])
    LE(vKw, "v0", [(6, 2, 10), (0, 4, 5), (4, 2, 3)], L_K)
    LE(vKr, "v0", [(0, 6, 3)], L_K)
    LE(vHg, "v0", [(4, 2, 11), (6, 2, 8), (0, 4, 4)])
    LE("v48", "v0", [(6, 2, 2), (2, 2, 0)])
    a(f"v_mul_u32_u24 {vHw}, {FS}, v48")
    a("v_and_b32 v48, 3, v0"); a("v_mul_u32_u24 v48, 272, v48"); a(f"v_add_u32 {vHw}, {vHw}, v48")
    LE("v48", "v0", [(4, 2, 4)], L_H); a(f"v_add_u32 {vHw}, {vHw}, v48")
    a("v_bfe_u32 v48, v0, 4, 2"); a(f"v_mul_u32_u24 {vHr}, 272, v48")
    LE("v48", "v0", [(0, 4, 4)], L_H); a(f"v_add_u32 {vHr}, {vHr}, v48")
    LE(vOw, "v0", [(6, 1, 12), (7, 1, 11), (0, 6, 4)], L_O)
    a(f"v_mov_b32 {vZero}, 0")
    LE(vQr, "v0", [(6, 1, 12), (0, 6, 4)], L_Q)
    LE(vVr, "v0", [(7, 1, 13), (0, 6, 4)], L_KV + 2048)
    LE(vEw, "v0", [(6, 2, 11), (0, 6, 4)], L_E)
    LE(vEr, "v0", [(3, 1, 10), (1, 2, 8), (4, 4, 4), (0, 1, 3)], L_E)
    LE(vEo, "v0", [(4, 4, 10), (0, 4, 2)])
    LE(vX2g, "v0", [(4, 4, 11), (0, 4, 2)])
    a(f"s_sub_u32 s50, s{S_TEAM}, {T0_}")
    sexpr(a, S_P1S, [(50, 0, 3, 20), (S_W, 0, 2, 13), (S_H, 0, 5, 8)], WS_P1)
    a(f"s_add_u32 s{S_P1S2}, s{S_P1S}, {16*32768}")
    sexpr(a, S_P1L, [(50, 0, 3, 20), (S_H, 0, 5, 15), (S_W, 0, 2, 13)], WS_P1)
    sexpr(a, S_H2B, [(50, 0, 3, 18)], WS_H2)
    sexpr(a, S_H2O, [(50, 0, 3, 18), (S_H, 0, 5, 11)], WS_H2)
    sexpr(a, S_X2R, [(50, 0, 3, 18), (S_H, 0, 1, 15), (S_H, 1, 4, 6)], WS_H2 + 1024)
    sexpr(a, S_ACTW, [(50, 0, 3, 19), (S_H, 0, 5, 11), (S_W, 1, 1, 10), (S_W, 0, 1, 3)], WS_ACT)
    a(f"s_and_b32 s48, s{S_H}, 1"); a(f"s_mul_i32 s48, s48, {56*1024}")
    a(f"s_mul_i32 s51, s{S_W}, {14*1024}"); a("s_add_u32 s48, s48, s51")
    sexpr(a, S_ACTR, [(50, 0, 3, 19)], WS_ACT); a(f"s_add_u32 s{S_ACTR}, s{S_ACTR}, s48")

def emit_post_weights(a, opt):
    LE = lambda *x, **k: lane_expr(a, *x, tmp="v47", **k)
    WS = sr(S_WS, 4)
    a.c("==== T role: team-buffer init + stationary weights ====")
    a("s_load_dwordx2 s[34:35], s[0:1], 40")
    a("s_load_dwordx4 s[36:39], s[0:1], 64")
    a("s_load_dwordx2 s[40:41], s[0:1], 80")
    emit_post_addr(a)
    import mega
    a(f"s_mov_b32 s{S_MODE}, 1")
    mega.emit_mode(a, opt, "T_init1", "v44", "v45")
    a(f"s_mov_b32 s{S_MODE}, 0")
    for mode, st in ((0, ""), (1, " sc1")):
        a.label(f"T_init{mode}")
        for i in range(2): a(f"v_mov_b32 v{48+i}, -1")
        for i in range(4): a(f"v_mov_b32 v{52+i}, 0")
        for half in range(2):
            a(f"s_add_u32 s48, s{S_P1L}, {half*4096}")
            for k in range(4):
                a(f"buffer_store_dwordx4 v[52:55], {vL16}, {WS}, s48 offen offset:{1024*k}{st}")
        for sl in range(3):
            a(f"s_add_u32 s48, s{S_H2O}, {sl*65536}")
            a(f"buffer_store_dword v48, {vCol}, {WS}, s48 offen{st}")
            a(f"buffer_store_dword v48, {vCol}, {WS}, s48 offen offset:1024{st}")
        a(f"s_cmp_ge_u32 s{S_H}, 28")
        a(f"s_cbranch_scc1 T_nopa{mode}")
        for sl in range(3):
            for rt in range(2):
                a(f"s_add_u32 s48, s{S_ACTW}, {sl*131072 + rt*56*1024}")
                a(f"buffer_store_dwordx2 v[48:49], {vL16}, {WS}, s48 offen{st}")
        a.label(f"T_nopa{mode}")
        if mode == 0: a("s_branch T_initd")
    a.label("T_initd")
    a("s_waitcnt lgkmcnt(0)")
    a("s_barrier")
    LE("v60", "v0", [(4, 2, 5)])
    LE("v61", "v0", [(0, 4, 4)])
    a("v_xor_b32 v60, v60, v61")
    LE("v61", "v0", [(4, 2, 10)])
    a("v_add_u32 v62, v60, v61")
    a("v_xor_b32 v63, 128, v62")
    LE("v64", "v0", [(6, 2, 15), (2, 4, 8), (1, 1, 4), (2, 3, 5), (0, 1, 3)])
    sexpr(a, 51, [(S_W, 0, 2, 15)])
    srd(a, S_T, 34, 4194304)
    sexpr(a, 50, [(S_H, 0, 5, 17), (S_W, 0, 2, 8)])
    for i in range(32):
        a(f"s_add_u32 m0, s51, {i * 1024}")
        a(f"s_add_u32 s48, s50, {4 * i * 1024}")
        a(f"buffer_load_dwordx4 v{62 + (i & 1)}, {sr(S_T,4)}, s48 offen lds")
    a("s_waitcnt vmcnt(32)")
    a("s_barrier")
    a(f"s_cmp_lg_u32 s{S_W}, 0")
    a("s_cbranch_scc1 T_noarr")
    dbg_arrive(a, D_INIT, "v44", "v45")
    a.label("T_noarr")
    a("s_waitcnt vmcnt(0)")
    for ct in range(8):
        a(f"v_xor_b32 v65, {32 * ct}, v64")
        for ks in range(4):
            for u in range(2):
                a(f"ds_read_b64_tr_b16 {WoF(ct, ks, 2*u, 2)}, v65 offset:{(32*ks + 16*u) * 256}")
    a("s_waitcnt lgkmcnt(0)")
    LE("v60", "v0", [(2, 4, 10)])
    LE("v61", "v0", [(0, 2, 4)])
    LE("v62", "v0", [(4, 1, 5)])
    a("v_xor_b32 v61, v61, v62")
    a("v_add_u32 v62, v60, v61")
    srd(a, S_T, 40, 1792 * 1024)
    a(f"s_mul_i32 s50, s{S_W}, {448*1024}")
    sexpr(a, 48, [(S_H, 1, 4, 6)]); a("s_add_u32 s50, s50, s48")
    for i in range(28):
        a(f"s_add_u32 m0, s51, {i * 1024}")
        a(f"s_add_u32 s48, s50, {16 * i * 1024}")
        a(f"buffer_load_dwordx4 v62, {sr(S_T,4)}, s48 offen lds")
    LE("v64", "v0", [(6, 2, 15), (2, 4, 6), (1, 1, 4), (4, 1, 5), (0, 1, 3)])
    a("v_xor_b32 v65, 32, v64")
    a("s_waitcnt vmcnt(0)")
    for t in range(2):
        for ks in range(14):
            for u in range(2):
                a(f"ds_read_b64_tr_b16 {DF(t, ks, 2*u, 2)}, v{64+t} offset:{(32*ks + 16*u) * 64}")
    a("s_waitcnt lgkmcnt(0)")
    a("s_barrier")
    a(f"s_cmp_ge_u32 s{S_H}, 28")
    a("s_cbranch_scc1 T_now")
    a("v_bfe_u32 v60, v0, 3, 3")
    a("v_mul_u32_u24 v60, 3584, v60")
    LE("v61", "v0", [(0, 3, 4)])
    LE("v62", "v0", [(4, 1, 5)])
    a("v_xor_b32 v61, v61, v62")
    a("v_add_u32 v62, v60, v61")
    a("v_xor_b32 v63, 64, v61")
    a("v_add_u32 v63, v60, v63")
    a(f"s_mul_i32 s50, s{S_W}, {128*3584}")
    a(f"s_lshl_b32 s48, s{S_H}, 7")
    a("s_add_u32 s50, s50, s48")
    sexpr(a, 51, [(S_W, 0, 2, 14)])
    for m in range(2):
        srd(a, S_T, 36 + 2 * m, 512 * 3584)
        for i in range(16):
            a(f"s_add_u32 m0, s51, {m * 65536 + i * 1024}")
            a(f"s_add_u32 s48, s50, {8 * i * 3584}")
            a(f"buffer_load_dwordx4 v{62 + (i & 1)}, {sr(S_T,4)}, s48 offen lds")
    LE("v60", "v0", [(4, 2, 10), (2, 2, 7), (0, 1, 3)])
    LE("v61", "v0", [(6, 2, 5), (1, 1, 4)])
    LE("v64", "v0", [(3, 1, 5), (4, 1, 6)])
    a("v_xor_b32 v61, v61, v64")
    a("v_add_u32 v64, v60, v61")
    a("v_add_u32 v65, 0x10000, v64")
    a("s_waitcnt vmcnt(0)")
    a("s_barrier")
    for m in range(2):
        for ks in range(16):
            for u in range(2):
                a(f"ds_read_b64_tr_b16 {GF(m, ks, 2*u, 2)}, v{64+m} offset:{(32*ks + 4*u) * 128}")
    a("s_waitcnt lgkmcnt(0)")
    a.label("T_now")
    a("s_barrier")

def emit_post_final(a, opt):
    LE = lambda *x, **k: lane_expr(a, *x, tmp="v47", **k)
    WS = sr(S_WS, 4)
    a("s_load_dwordx2 s[32:33], s[0:1], 0")
    a("s_load_dwordx2 s[42:43], s[0:1], 104")
    dbg_wait(a, D_INIT, 32 * NT, "v44", "v45", sleep=32)
    a(f"s_mov_b32 s48, {hex(WS_MOD + 2048)}")
    for i, k in enumerate((0, 2, 1)):
        a(f"buffer_load_dword v{56+i}, {vCol}, {WS}, s48 offen offset:{1024*k} sc1")
    LE("v60", "v0", [(0, 4, 2)])
    sexpr(a, 48, [(S_H, 1, 4, 6)], WS_MOD + 5 * 1024)
    a(f"buffer_load_dword v59, v60, {WS}, s48 offen sc1")
    a("s_waitcnt vmcnt(0) lgkmcnt(0)")
    for i in range(4):
        a(f"v_lshlrev_b32 v{MC+2*i}, 16, v{56+i}")
        a(f"v_and_b32 v{MC+2*i+1}, s{MASK}, v{56+i}")
    a(f"v_add_f32 v{MC+2}, 1.0, v{MC+2}"); a(f"v_add_f32 v{MC+3}, 1.0, v{MC+3}")
    rnd2(a, MC + 2, MC + 3, 47)
    srd(a, S_X, 32, 2048 * 1024)
    srd(a, S_O, 42, 2048 * 1024)
    a("v_and_b32 v60, 3, v0"); a("v_bfe_u32 v61, v0, 2, 2")
    a("v_mov_b32 v62, 0x3f80"); a("v_mov_b32 v63, 0x3f800000")
    a("v_cmp_eq_u32 vcc, 1, v60"); a("s_nop 1"); a("v_cndmask_b32 v62, v62, v63, vcc")
    a("v_cmp_gt_u32 vcc, 2, v60"); a("s_nop 1"); a("v_cndmask_b32 v62, 0, v62, vcc")
    for d in range(4):
        a(f"v_cmp_eq_u32 vcc, {d}, v61"); a("s_nop 1"); a(f"v_cndmask_b32 v{SEL+d}, 0, v62, vcc")
    LE("v60", "v0", [(6, 1, 4), (0, 4, 0)])
    LE("v61", "v0", [(4, 2, 2)])
    a(f"v_mov_b32 v63, {f32bits(-1e30)}")
    for t in range(2):
        for r in range(4):
            a(f"v_add_u32 v62, {16*t + r}, v61")
            a("v_cmp_gt_u32 vcc, v62, v60"); a("s_nop 1")
            a(f"v_cndmask_b32 v{BIAS+4*t+r}, 0, v63, vcc")
    a(f"s_sub_u32 s{S_SEG}, s{S_TEAM}, {T0_}")
    a(f"s_mul_i32 s{S_KV}, s{S_H}, {HSTR}")
    sexpr(a, 48, [(S_SEG, 0, 3, 14), (S_W, 0, 2, 12)], WS_KV); a(f"s_add_u32 s{S_KV}, s{S_KV}, s48")
    a(f"s_mul_i32 s{S_Q}, s{S_H}, {QSTR}")
    sexpr(a, 48, [(S_SEG, 0, 3, 13), (S_W, 0, 2, 11)], WS_QX); a(f"s_add_u32 s{S_Q}, s{S_Q}, s48")
    sexpr(a, S_MKV, [(S_W, 0, 2, 12)], L_KV)
    sexpr(a, S_MQ, [(S_W, 0, 2, 11)], L_Q)
    a(f"s_mul_i32 s{S_KM}, s{S_H}, {MSTR}")
    a(f"s_lshl_b32 s48, s{S_SEG}, 12"); a(f"s_add_u32 s{S_KM}, s{S_KM}, s48")
    sexpr(a, 48, [(S_W, 1, 1, 11)], WS_KM); a(f"s_add_u32 s{S_KMV}, s{S_KM}, s48")
    sexpr(a, 48, [(S_W, 0, 2, 10)], WS_KM); a(f"s_add_u32 s{S_KM}, s{S_KM}, s48")
    sexpr(a, S_ROW, [(S_SEG, 0, 3, 15), (S_H, 0, 5, 10)])
    sexpr(a, S_OUT, [(S_SEG, 0, 3, 15), (S_H, 0, 1, 14), (S_H, 1, 4, 6)])
    sexpr(a, S_FLG, [(S_H, 0, 5, 7)], WS_FLAG)
    a(f"s_mov_b32 s{S_HAVE}, 0")
    a(f"s_mov_b32 s{S_TAG}, 1")
    a(f"s_mov_b32 s{S_SLOT}, 0")
    a(f"s_mov_b32 s{S_PSLOT}, 2")
    a(f"s_mov_b32 s{S_PMAX}, 100000")
    a(f"s_mov_b32 s{S_SC}, {f32bits(128 ** -0.5)}")
    a(f"s_mov_b32 s{S_L2E}, {f32bits(math.log2(math.e))}")

def poll(a, name, loads, check, sleep=3):
    a(f"s_mov_b32 s{S_PC}, 0")
    a.label(name)
    loads()
    check()
    a(f"s_cbranch_vccz {name}_ok")
    a(f"s_sleep {sleep}")
    a(f"s_add_u32 s{S_PC}, s{S_PC}, 1")
    a(f"s_cmp_lt_u32 s{S_PC}, s{S_PMAX}")
    a(f"s_cbranch_scc1 {name}")
    a(f"s_mov_b32 s{S_PMAX}, 1")
    a.label(name + "_ok")

def prefetch(a, name, segreg):
    WS = sr(S_WS, 4)
    a(f"s_cmp_ge_u32 s{segreg}, 64")
    a(f"s_cbranch_scc1 {name}_skip")
    a(f"s_cmp_gt_u32 s{S_HAVE}, s{segreg}")
    a(f"s_cbranch_scc1 {name}_fok")
    a(f"s_mov_b32 s{S_PC}, 0")
    a.label(name + "_fl")
    a("s_mov_b64 exec, 3")
    a(f"buffer_load_dword v45, {vL16}, {WS}, s{S_FLG} offen sc1")
    a("s_mov_b64 exec, -1")
    a("s_waitcnt vmcnt(0)")
    a(f"v_readlane_b32 s{S_HAVE}, v45, 0"); a("v_readlane_b32 s48, v45, 1")
    a("s_nop 1")
    a(f"s_min_u32 s{S_HAVE}, s{S_HAVE}, s48")
    a(f"s_cmp_gt_u32 s{S_HAVE}, s{segreg}")
    a(f"s_cbranch_scc1 {name}_fok")
    a("s_sleep 8")
    a(f"s_add_u32 s{S_PC}, s{S_PC}, 1")
    a(f"s_cmp_lt_u32 s{S_PC}, s{S_PMAX}")
    a(f"s_cbranch_scc1 {name}_fl")
    a(f"s_mov_b32 s{S_PMAX}, 1")
    a.label(name + "_fok")
    a(f"s_mov_b32 m0, s{S_MKV}"); a("s_nop 0")
    for i in range(4): a(f"buffer_load_dwordx4 {vL16}, {WS}, s{S_KV} offen offset:{1024*i} sc1 lds")
    a(f"s_mov_b32 m0, s{S_MQ}"); a("s_nop 0")
    for i in range(2): a(f"buffer_load_dwordx4 {vL16}, {WS}, s{S_Q} offen offset:{1024*i} sc1 lds")
    a(f"buffer_load_dword v{XR}, {vCol}, {sr(S_X,4)}, s{S_ROW} offen")
    a(f"s_add_u32 s{S_KV}, s{S_KV}, {NT*16384}")
    a(f"s_add_u32 s{S_Q}, s{S_Q}, {NT*8192}")
    a(f"s_add_u32 s{S_ROW}, s{S_ROW}, {NT*32768}")
    a.label(name + "_skip")

def emit_post_loop(a, fast, pfx, opt):
    def geti(p, d):
        for o in opt:
            if o.startswith(p) and o[len(p):].isdigit(): return int(o[len(p):])
        return d
    st = "" if fast else " sc1"
    WS = sr(S_WS, 4)
    QF, KX, VX, KF, SS = 48, 64, 96, 64, 112
    prefetch(a, pfx + "_pf0", S_SEG)
    a("s_waitcnt vmcnt(0)")
    a("s_barrier")
    a.raw(".p2align 6")
    a.label(pfx + "_loop")
    tstamp(a, opt, 0)
    for ks in range(4):
        a(f"ds_read_b128 {vr(QF+4*ks,4)}, {vQr} offset:{1024*ks}")
        for t in range(2):
            i = t * 4 + ks
            a(f"ds_read_b128 {vr(KX+4*i,4)}, {vL16} offset:{L_KV + (i//2)*4096 + (i%2)*1024}")
    for ks in range(4):
        a(f"s_waitcnt lgkmcnt({9-3*ks})")
        for t in range(2):
            d = vr(SS + 4 * t, 4)
            a(f"v_mfma_f32_16x16x32_bf16 {d}, {vr(KX+4*(t*4+ks),4)}, {vr(QF+4*ks,4)}, {d if ks else vr(BIAS+4*t,4)}")
    for i in range(4):
        a(f"ds_read_b128 {vr(VX+4*i,4)}, {vVr} offset:{(i//2)*4096 + (i%2)*1024}")
    a("s_nop 3")
    def scale(regs):
        for i in range(0, len(regs), 2): rnd2(a, regs[i], regs[i+1], T2)
        for r in regs: a(f"v_mul_f32 v{r}, s{S_SC}, v{r}")
        for i in range(0, len(regs), 2): rnd2(a, regs[i], regs[i+1], T2)
    scale(list(range(SS, SS + 8)))
    a(f"v_max3_f32 v41, v{SS}, v{SS+1}, v{SS+2}"); a(f"v_max3_f32 v{T1}, v{SS+3}, v{SS+4}, v{SS+5}")
    a(f"v_max3_f32 v41, v41, v{SS+6}, v{SS+7}"); a(f"v_max_f32 v41, v41, v{T1}")
    tstamp(a, opt, 1)
    KMR, VMR = 124, 128
    def ld():
        a(f"buffer_load_dwordx4 {vr(KMR,4)}, {vL16}, {WS}, s{S_KM} offen sc1")
        a(f"buffer_load_dwordx4 {vr(VMR,4)}, {vL16}, {WS}, s{S_KMV} offen sc1")
        a(f"buffer_load_dwordx4 {vr(VMR+4,4)}, {vL16}, {WS}, s{S_KMV} offen offset:1024 sc1")
        a("s_waitcnt vmcnt(0)")
    def ck():
        a(f"v_max3_u32 v{T0}, v{KMR}, v{VMR}, v{VMR+4}")
        a(f"v_cmp_eq_u32 vcc, -1, v{T0}")
        a(f"ds_write2st64_b32 {vKw}, v{KMR+1}, v{KMR+3} offset1:2")
    poll(a, pfx + "_km", ld, ck, sleep=geti("tk", 4))
    tstamp(a, opt, 2)
    a("s_waitcnt lgkmcnt(0)"); a("s_barrier")
    for ks in range(4):
        for u in range(2):
            a(f"ds_read_b64_tr_b16 {vr(KF+4*ks+2*u,2)}, {vKr} offset:{1024*ks+512*u}")
    PX, PM0, PM1, OC = 80, 84, 86, 48
    a(f"v_mov_b32 v{PM0+1}, 0")
    for ks in range(4):
        a(f"s_waitcnt lgkmcnt({6-2*ks})")
        d = vr(SS + 8, 4)
        a(f"v_mfma_f32_16x16x32_bf16 {d}, {vr(KF+4*ks,4)}, {vr(QF+4*ks,4)}, {d if ks else 0}")
    a("s_nop 7")
    scale([SS + 8, SS + 9])
    a(f"v_max3_f32 v41, v41, v{SS+8}, v{SS+9}")
    xsum_g(a, 41, T1, "v_max_f32")
    a(f"v_mul_f32 v41, s{S_L2E}, v41")
    for r in range(10): a(f"v_fma_f32 v{SS+r}, v{SS+r}, s{S_L2E}, -v41")
    for r in range(10): a(f"v_exp_f32 v{SS+r}, v{SS+r}")
    a(f"v_add_f32 v41, v{SS}, v{SS+1}"); a(f"v_add_f32 v{T0}, v{SS+2}, v{SS+3}"); a(f"v_add_f32 v{T1}, v{SS+4}, v{SS+5}")
    a(f"v_add_f32 v{T2}, v{SS+6}, v{SS+7}"); a(f"v_add_f32 v41, v41, v{T0}"); a(f"v_add_f32 v{T1}, v{T1}, v{T2}")
    a(f"v_add_f32 v{T0}, v{SS+8}, v{SS+9}"); a(f"v_add_f32 v41, v41, v{T1}"); a(f"v_add_f32 v41, v41, v{T0}")
    xsum_g(a, 41, T1)
    a("v_rcp_f32 v42, v41")
    a("s_nop 0")
    for r in range(0, 10, 2): a(f"v_pk_mul_f32 {vr(SS+r,2)}, {vr(SS+r,2)}, v[42:43] op_sel_hi:[1,0]")
    for i in range(4): a(f"v_cvt_pk_bf16_f32 v{PX+i}, v{SS+2*i}, v{SS+2*i+1}")
    a(f"v_cvt_pk_bf16_f32 v{PM0}, v{SS+8}, v{SS+9}"); a("s_nop 0")
    for i in range(4):
        a(f"v_mfma_f32_16x16x32_bf16 {vr(OC+4*i,4)}, {vr(VX+4*i,4)}, {vr(PX,4)}, 0")
    for i in range(4):
        a(f"v_mfma_f32_16x16x16_bf16 {vr(OC+4*i,4)}, {vr(VMR+2*i,2)}, {vr(PM0,2)}, {vr(OC+4*i,4)}")
    for i in range(4): a(f"v_cvt_pk_bf16_f32 v{88+i}, v{OC+2*i}, v{OC+2*i+1}")
    a(f"ds_write_b128 {vOw}, v[88:91]")
    a("s_nop 0")
    for i in range(4, 8): a(f"v_cvt_pk_bf16_f32 v{88+i}, v{OC+2*i}, v{OC+2*i+1}")
    a(f"ds_write_b128 {vOw}, v[92:95] offset:1024")
    a("s_waitcnt lgkmcnt(0)"); a("s_barrier")
    OF = 48
    for i in range(8): a(f"ds_read_b128 {vr(OF+4*i,4)}, {vL16} offset:{L_O+1024*i}")
    tstamp(a, opt, 3)
    jobs = [(cq, rt) for rt in range(2) for cq in range(4)]
    def epi(n):
        cq, rt = jobs[n]; ac = 112 + (n % 2) * 8; g = 128 + (n % 2) * 4
        return [f"v_cvt_pk_bf16_f32 v{g+i}, v{ac+2*i}, v{ac+2*i+1}" for i in range(4)] + [f"v_and_or_b32 v{g}, v{g}, -2, s{S_TAG}",
                f"buffer_store_dwordx4 {vr(g,4)}, {vP}, {WS}, s{(S_P1S, S_P1S2)[rt]} offen offset:{64*cq}{st}"]
    for n, (cq, rt) in enumerate(jobs):
        ac = 112 + (n % 2) * 8
        e = epi(n - 1) if n else []
        k = 0
        for ks in range(4):
            if n == 0: a(f"s_waitcnt lgkmcnt({7-ks})")
            if n == 4 and ks == 0: a("s_waitcnt lgkmcnt(0)")
            for u in range(2):
                d = vr(ac + 4 * u, 4)
                a(f"v_mfma_f32_16x16x32_bf16 {d}, {WoF(2*cq+u, ks)}, {vr(OF+4*(rt*4+ks),4)}, {d if ks else 0}")
                k += 1
                if k >= 2:
                    for x in e[2*(k-2):2*(k-1)]: a(x)
    a("s_nop 7")
    for x in epi(7): a(x)
    tstamp(a, opt, 4)
    if geti("t1", 4): a(f"s_sleep {geti('t1', 4)}")
    R = 48
    def ld():
        for i in range(8):
            if i % 4 == 0: a(f"s_add_u32 s48, s{S_P1L}, {(i//4)*4096}")
            a(f"buffer_load_dwordx4 {vr(R+4*i,4)}, {vL16}, {WS}, s48 offen offset:{1024*(i%4)} sc1")
    def ck():
        for i in range(8):
            a(f"s_waitcnt vmcnt({7-i})")
            a(f"v_mfma_f32_16x16x32_bf16 v[112:115], {vr(SEL,4)}, {vr(R+4*i,4)}, {'v[112:115]' if i else 0}")
            a(f"v_xor_b32 v{T1 if i else T0}, s{S_TAG}, v{R+4*i}")
            if i: a(f"v_or_b32 v{T0}, v{T0}, v{T1}")
        a(f"v_and_b32 v{T0}, 1, v{T0}")
        a(f"v_cmp_ne_u32 vcc, 0, v{T0}")
        a(f"v_lshlrev_b32 v116, 16, v{XR}"); a(f"v_and_b32 v117, s{MASK}, v{XR}")
        a(f"s_lshl_b32 s48, s{S_W}, 3"); a("v_mov_b32 v43, s48")
    poll(a, pfx + "_r1", ld, ck, sleep=2)
    tstamp(a, opt, 5)
    rnd2(a, 112, 113, T0)
    a(f"v_mul_f32 v112, v{MC}, v112"); a(f"v_mul_f32 v113, v{MC+1}, v113")
    rnd2(a, 112, 113, T0)
    a("v_add_f32 v116, v116, v112"); a("v_add_f32 v117, v117, v113")
    rnd2(a, 116, 117, 118)
    a(f"s_lshl_b32 s49, s{S_SLOT}, 16"); a(f"s_add_u32 s50, s{S_H2O}, s49")
    a(f"buffer_store_dword v118, {vCol}, {WS}, s50 offen offset:1024{st}")
    a("v_add_f32 v120, v116, v117")
    wave_sum(a, 120, T1)
    a(f"v_mul_f32 v120, {f32bits(1/128)}, v120")
    a("v_sub_f32 v112, v116, v120"); a("v_sub_f32 v113, v117, v120")
    a("v_mul_f32 v121, v112, v112"); a("v_fmac_f32 v121, v113, v113")
    wave_sum(a, 121, T1)
    a(f"ds_write_b64 v43, v[120:121] offset:{L_ST}")
    a("s_waitcnt lgkmcnt(0)"); a("s_barrier")
    a(f"ds_read_b128 v[124:127], {vZero} offset:{L_ST}")
    a(f"ds_read_b128 v[128:131], {vZero} offset:{L_ST+16}")
    a("s_waitcnt lgkmcnt(0)")
    a("v_add_f32 v120, v124, v126"); a("v_add_f32 v121, v128, v130"); a("v_add_f32 v120, v120, v121")
    a("v_mul_f32 v120, 0.25, v120")
    a("v_add_f32 v122, v125, v127"); a("v_add_f32 v123, v129, v131"); a("v_add_f32 v122, v122, v123")
    for r in (124, 126, 128, 130): a(f"v_sub_f32 v{r}, v{r}, v120")
    a("v_mul_f32 v123, v124, v124")
    for r in (126, 128, 130): a(f"v_fmac_f32 v123, v{r}, v{r}")
    a(f"v_mul_f32 v122, {f32bits(1/512)}, v122")
    a("v_fmac_f32 v122, 0.25, v123")
    rnd1(a, 120); rnd1(a, 122)
    a(f"v_add_f32 v122, {f32bits(1e-5)}, v122"); rnd1(a, 122)
    a("v_sqrt_f32 v122, v122")
    a("v_sub_f32 v112, v116, v120"); a("v_sub_f32 v113, v117, v120")
    rnd1(a, 122)
    a("v_rcp_f32 v122, v122")
    rnd2(a, 112, 113, T0)
    a("v_mul_f32 v112, v112, v122"); a("v_mul_f32 v113, v113, v122")
    rnd2(a, 112, 113, T0)
    a(f"v_mul_f32 v112, v112, v{MC+2}"); a(f"v_mul_f32 v113, v113, v{MC+3}")
    rnd2(a, 112, 113, T0)
    a(f"v_add_f32 v112, v112, v{MC+4}"); a(f"v_add_f32 v113, v113, v{MC+5}")
    a(f"v_cvt_pk_bf16_f32 v{T0}, v112, v113")
    a(f"buffer_store_dword v{T0}, {vCol}, {WS}, s50 offen{st}")
    tstamp(a, opt, 6)
    a(f"s_lshl_b32 s48, s{S_PSLOT}, 16"); a(f"s_add_u32 s48, s{S_H2O}, s48")
    a("v_mov_b32 v42, -1"); a("v_mov_b32 v43, -1")
    a(f"buffer_store_dword v42, {vCol}, {WS}, s48 offen{st}")
    a(f"buffer_store_dword v42, {vCol}, {WS}, s48 offen offset:1024{st}")
    a(f"s_add_u32 s51, s{S_SEG}, {NT}")
    a(f"s_cmp_ge_u32 s{S_H}, 28")
    a(f"s_cbranch_scc1 {pfx}_noffn")
    HR = 48
    a(f"s_add_u32 s50, s{S_H2B}, s49")
    def ld():
        for i in range(8):
            a(f"s_add_u32 s48, s50, {i*8192}")
            a(f"buffer_load_dwordx4 {vr(HR+4*i,4)}, {vHg}, {WS}, s48 offen sc1")
    def ck():
        for i in range(8):
            a(f"s_waitcnt vmcnt({7-i})")
            a(f"ds_write_b128 {vHw}, {vr(HR+4*i,4)} offset:{(i//4)*RTS + (i%4)*64}")
            if i: a(f"v_max_u32 v{T0}, v{T0 if i > 1 else HR}, v{HR+4*i}")
        a(f"v_cmp_eq_u32 vcc, -1, v{T0}")
    if geti("t2", 2): a(f"s_sleep {geti('t2', 2)}")
    poll(a, pfx + "_h2", ld, ck, sleep=2)
    tstamp(a, opt, 7)
    a("s_waitcnt lgkmcnt(0)"); a("s_barrier")
    lq = LQ()
    HB = lambda rt, ks: 80 + ((ks % 4) * 2 + rt) * 4
    def rd(ks):
        for rt in range(2):
            a(f"ds_read_b128 {vr(HB(rt, ks),4)}, {vHr} offset:{rt*RTS + ks*FS}"); lq.issue(ks)
    for ks in range(3): rd(ks)
    prefetch(a, pfx + "_pf1", 51)
    for ks in range(16):
        a(lq.wait(ks))
        n = 0
        for rt in range(2):
            for m in range(2):
                d = vr(112 + (rt * 2 + m) * 4, 4)
                a(f"v_mfma_f32_16x16x32_bf16 {d}, {GF(m, ks)}, {vr(HB(rt, ks),4)}, {d if ks else 0}")
                if n == 0 and ks + 3 < 16: rd(ks + 3)
                n += 1
    a(f"s_lshl_b32 s48, s{S_SLOT}, 17"); a(f"s_add_u32 s48, s{S_ACTW}, s48"); a(f"s_add_u32 s50, s48, {56*1024}")
    a("s_nop 0")
    for rt in range(2):
        g0 = 112 + rt * 8; u0 = g0 + 4
        for j in (0, 2): rnd2(a, g0 + j, g0 + j + 1, T0)
        for j in (0, 2): rnd2(a, u0 + j, u0 + j + 1, T0)
        for j in range(4): a(f"v_mul_f32 v{g0+j}, v{g0+j}, v{u0+j}")
        a(f"v_cvt_pk_bf16_f32 v{128+2*rt}, v{g0}, v{g0+1}"); a(f"v_cvt_pk_bf16_f32 v{129+2*rt}, v{g0+2}, v{g0+3}")
        a(f"buffer_store_dwordx2 {vr(128+2*rt,2)}, {vL16}, {WS}, s{(48, 50)[rt]} offen{st}")
    a(f"s_lshl_b32 s48, s{S_PSLOT}, 17"); a(f"s_add_u32 s48, s{S_ACTW}, s48"); a(f"s_add_u32 s50, s48, {56*1024}")
    a(f"buffer_store_dwordx2 v[42:43], {vL16}, {WS}, s48 offen{st}")
    a(f"buffer_store_dwordx2 v[42:43], {vL16}, {WS}, s50 offen{st}")
    if geti("t3", 2): a(f"s_sleep {geti('t3', 2)}")
    a(f"s_branch {pfx}_E")
    a.label(pfx + "_noffn")
    prefetch(a, pfx + "_pf2", 51)
    a("s_sleep 32")
    a.label(pfx + "_E")
    tstamp(a, opt, 8)
    AR = 48
    a(f"s_lshl_b32 s50, s{S_SLOT}, 17"); a(f"s_add_u32 s50, s{S_ACTR}, s50")
    a(f"s_lshl_b32 s49, s{S_SLOT}, 16"); a(f"s_add_u32 s49, s{S_X2R}, s49")
    def ld():
        a(f"buffer_load_dword v41, {vX2g}, {WS}, s49 offen sc1")
        for i in range(14):
            if i % 4 == 0: a(f"s_add_u32 s48, s50, {(i//4)*4096}")
            a(f"buffer_load_dwordx4 {vr(AR+4*i,4)}, {vL16}, {WS}, s48 offen offset:{1024*(i%4)} sc1")
    def ck():
        for i in range(14):
            a(f"s_waitcnt vmcnt({13-i})")
            for t in range(2):
                d = vr(112 + 4 * t, 4)
                a(f"v_mfma_f32_16x16x32_bf16 {d}, {DF(t, i)}, {vr(AR+4*i,4)}, {d if i else 0}")
            a(f"v_max3_u32 v{T0}, v{T0 if i else 41}, v{AR+4*i}, v{AR+4*i+2}")
        a(f"v_cmp_eq_u32 vcc, -1, v{T0}")
        a(f"v_lshlrev_b32 v124, 16, v41"); a(f"v_and_b32 v125, s{MASK}, v41")
    poll(a, pfx + "_act", ld, ck, sleep=2)
    tstamp(a, opt, 9)
    a("s_nop 2")
    a(f"ds_write_b128 {vEw}, v[112:115]"); a(f"ds_write_b128 {vEw}, v[116:119] offset:1024")
    a("s_waitcnt lgkmcnt(0)"); a("s_barrier")
    for w in range(4): a(f"ds_read_b64 {vr(112+2*w,2)}, {vEr} offset:{2048*w}")
    a("s_waitcnt lgkmcnt(0)")
    a("v_add_f32 v112, v112, v114"); a("v_add_f32 v113, v113, v115"); a("v_add_f32 v116, v116, v118"); a("v_add_f32 v117, v117, v119")
    a("v_add_f32 v112, v112, v116"); a("v_add_f32 v113, v113, v117")
    rnd2(a, 112, 113, T0)
    a(f"v_mul_f32 v112, v{MC+6}, v112"); a(f"v_mul_f32 v113, v{MC+7}, v113")
    rnd2(a, 112, 113, T0)
    a("v_add_f32 v112, v124, v112"); a("v_add_f32 v113, v125, v113")
    a(f"v_cvt_pk_bf16_f32 v{T0}, v112, v113")
    a(f"buffer_store_dword v{T0}, {vEo}, {sr(S_O,4)}, s{S_OUT} offen")
    tstamp(a, opt, 10)
    a(f"s_add_u32 s{S_SEG}, s{S_SEG}, {NT}")
    a(f"s_add_u32 s{S_KM}, s{S_KM}, {NT*4096}")
    a(f"s_add_u32 s{S_KMV}, s{S_KMV}, {NT*4096}")
    a(f"s_add_u32 s{S_OUT}, s{S_OUT}, {NT*32768}")
    a(f"s_xor_b32 s{S_TAG}, s{S_TAG}, 1")
    a(f"s_mov_b32 s{S_PSLOT}, s{S_SLOT}")
    a(f"s_add_u32 s{S_SLOT}, s{S_SLOT}, 1")
    a(f"s_cmp_ge_u32 s{S_SLOT}, 3")
    a(f"s_cselect_b32 s{S_SLOT}, 0, s{S_SLOT}")
    a(f"s_cmp_lt_u32 s{S_SEG}, 64")
    a(f"s_cbranch_scc1 {pfx}_loop")
    a("s_waitcnt vmcnt(0)")

def emit_post(a, opt):
    import mega, pre
    a(f"s_cmp_lt_u32 s{S_TID}, 32")
    a("s_cbranch_scc1 T_go")
    if "nowr" not in opt: wait_rec_loaded(a, first=5)
    a.label("T_go")
    pre.emit_pre(a, opt)
    a(f"s_cmp_ge_u32 s{S_TID}, 32")
    a("s_cbranch_scc1 T_go2")
    if "nowr" not in opt: wait_rec_loaded(a)
    a.label("T_go2")
    emit_post_weights(a, opt)
    if "time" in opt: a("s_memrealtime s[84:85]")
    emit_post_final(a, opt)
    if "time" in opt: a("s_memrealtime s[86:87]")
    a(f"s_cmp_lg_u32 s{S_MODE}, 0")
    a("s_cbranch_scc1 T_slow")
    emit_post_loop(a, True, "TF", opt)
    a("s_branch L_done")
    a.label("T_slow")
    emit_post_loop(a, False, "TS", opt)
```

```python
from common import *
import math
S_TID = 16
MASK = 17

def rnd2(a, x, y, p):
    a(f"v_cvt_pk_bf16_f32 v{p}, v{x}, v{y}")
    a(f"v_lshlrev_b32 v{x}, 16, v{p}")
    a(f"v_and_b32 v{y}, s{MASK}, v{p}")
def rnd1(a, x):
    a(f"v_cvt_pk_bf16_f32 v{x}, v{x}, v{x}")
    a(f"v_and_b32 v{x}, s{MASK}, v{x}")
def unpack(a, src, dst, n):
    for d in range(n):
        a(f"v_lshlrev_b32 v{dst+2*d}, 16, v{src+d}")
        a(f"v_and_b32 v{dst+2*d+1}, s{MASK}, v{src+d}")
def xsum_g(a, x, t, op="v_add_f32"):
    a(f"v_mov_b32 v{t}, v{x}"); a("s_nop 1")
    a(f"v_permlane32_swap_b32 v{x}, v{t}"); a(f"{op} v{x}, v{x}, v{t}")
    a(f"v_mov_b32 v{t}, v{x}"); a("s_nop 1")
    a(f"v_permlane16_swap_b32 v{x}, v{t}"); a(f"{op} v{x}, v{x}, v{t}")
def tree(a, regs):
    regs = list(regs)
    while len(regs) > 1:
        nxt = []
        for i in range(0, len(regs) - 1, 2):
            a(f"v_add_f32 v{regs[i]}, v{regs[i]}, v{regs[i+1]}"); nxt.append(regs[i])
        if len(regs) % 2: nxt.append(regs[-1])
        regs = nxt
    return regs[0]

def emit_pre(a, opt=()):
    a.c("==== prologue work of the post teams: mod + LN1 ; s16 = tid (0..127) ====")
    LE = lambda *x, **k: lane_expr(a, *x, tmp="v31", **k)
    tstamp(a, opt, 16)
    a("s_load_dwordx2 s[32:33], s[0:1], 0")
    a("s_load_dwordx4 s[36:39], s[0:1], 88")
    a(f"s_mov_b32 s{MASK}, 0xffff0000")
    LE("v1", "v0", [(0, 4, 10), (4, 2, 4), (6, 2, 8)])
    a(f"s_min_u32 s48, s{S_TID}, 127")
    a("s_lshl_b32 s48, s48, 14")
    a("s_waitcnt lgkmcnt(0)")
    srd(a, S_T, 32, 2048 * 1024)
    for i in range(4):
        a(f"buffer_load_dwordx4 {vr(32+4*i,4)}, v1, {sr(S_T,4)}, s48 offen offset:{64*i}")
    a(f"s_cmp_lt_u32 s{S_TID}, 96")
    a("s_cbranch_scc1 P_mod")
    claim(a)
    verify_claim(a, 0, 163840 - 64)
    a("s_waitcnt vmcnt(0)")
    a(f"s_cmp_ge_u32 s{S_TID}, 128")
    a("s_cbranch_scc1 P_done")
    a("s_branch P_nomod")
    a.label("P_mod")
    srd(a, 40, 36, 1024)
    srd(a, 44, 38, 512 * 6144)
    LE("v2", "v0", [(2, 6, 4)])
    a("buffer_load_dwordx4 v[4:7], v2, s[40:43], 0 offen")
    a("v_lshrrev_b32 v2, 2, v0")
    a("v_mul_u32_u24 v2, 49152, v2")
    a("v_and_b32 v3, 3, v0")
    a("v_lshl_add_u32 v2, v3, 4, v2")
    a(f"s_lshl_b32 s48, s{S_TID}, 6")
    for i in range(8):
        a(f"buffer_load_dwordx4 {vr(64+4*i,4)}, v2, s[44:47], s48 offen")
        if i < 7: a("s_add_u32 s48, s48, 6144")
    claim(a)
    a("s_waitcnt vmcnt(8)")
    tstamp(a, opt, 17)
    unpack(a, 4, 8, 4)
    a(f"s_mov_b32 s48, {f32bits(-math.log2(math.e))}")
    for j in range(8): a(f"v_mul_f32 v{16+j}, s48, v{8+j}")
    for j in range(8): a(f"v_exp_f32 v{16+j}, v{16+j}")
    for j in range(8): a(f"v_add_f32 v{16+j}, 1.0, v{16+j}")
    for j in range(8): a(f"v_rcp_f32 v{16+j}, v{16+j}")
    for j in range(8): a(f"v_mul_f32 v{8+j}, v{8+j}, v{16+j}")
    for j in range(0, 8, 2): rnd2(a, 8 + j, 9 + j, 31)
    for j in range(8): a(f"v_mov_b32 v{16+j}, 0")
    a("s_waitcnt vmcnt(0)")
    for i in range(8):
        for d in range(4):
            a(f"v_lshlrev_b32 v24, 16, v{64+4*i+d}")
            a(f"v_and_b32 v25, s{MASK}, v{64+4*i+d}")
            a(f"v_fmac_f32 v{16+2*d}, v{8+i}, v24")
            a(f"v_fmac_f32 v{17+2*d}, v{8+i}, v25")
    a("s_nop 1")
    for ror in (4, 8):
        for j in range(8):
            a(f"v_add_f32_dpp v{16+j}, v{16+j}, v{16+j} row_ror:{ror} row_mask:0xf bank_mask:0xf")
    LE("v2", "v0", [(4, 4, 7), (0, 2, 5)])
    a("ds_write_b128 v2, v[16:19] offset:1024")
    a("ds_write_b128 v2, v[20:23] offset:1040")
    a("s_waitcnt lgkmcnt(0)")
    a("s_barrier")
    verify_claim(a, 0, 163840 - 64)
    a(f"s_cmp_lg_u32 s{S_W}, 0")
    a("s_cbranch_scc1 P_nomod")
    LE("v2", "v0", [(0, 5, 2)])
    for p in range(16): a(f"ds_read_b32 v{64+p}, v2 offset:{1024+128*p}")
    a("s_waitcnt lgkmcnt(0)")
    r = tree(a, range(64, 80))
    a(f"v_cvt_pk_bf16_f32 v{r}, v{r}, v{r}")
    LE("v2", "v0", [(0, 5, 1), (5, 1, 30)])
    a(f"s_lshl_b32 s48, s{S_TID}, 6")
    a(f"s_add_u32 s48, s48, {hex(WS_MOD)}")
    a(f"buffer_store_short v{r}, v2, {sr(S_WS,4)}, s48 offen sc1")
    a(f"s_cmp_ge_u32 s{S_TID}, 32")
    a("s_cbranch_scc1 P_nomod")
    a("s_waitcnt vmcnt(0)")
    tstamp(a, opt, 18)
    dbg_arrive(a, D_MOD1)
    a.label("P_nomod")
    unpack(a, 32, 64, 16)
    LE("v2", "v0", [(0, 4, 4), (6, 2, 2)])
    LE("v3", "v0", [(0, 4, 4)])
    for j in range(16): a(f"v_add_f32 v{96+j}, v{64+2*j}, v{65+2*j}")
    r = tree(a, range(96, 112))
    xsum_g(a, r, 31)
    a(f"ds_write_b32 v2, v{r}")
    a("s_waitcnt lgkmcnt(0)"); a("s_barrier")
    a("ds_read_b128 v[4:7], v3")
    a("s_waitcnt lgkmcnt(0)")
    tree(a, range(4, 8))
    a(f"v_mul_f32 v8, {f32bits(1/512)}, v4")
    for j in range(32): a(f"v_sub_f32 v{96+j}, v{64+j}, v8")
    for j in range(32): a(f"v_mul_f32 v{96+j}, v{96+j}, v{96+j}")
    r = tree(a, range(96, 128))
    xsum_g(a, r, 31)
    a(f"ds_write_b32 v2, v{r} offset:256")
    a("s_waitcnt lgkmcnt(0)"); a("s_barrier")
    a("ds_read_b128 v[4:7], v3 offset:256")
    a("s_waitcnt lgkmcnt(0)")
    tree(a, range(4, 8))
    a(f"v_mul_f32 v9, {f32bits(1/512)}, v4")
    rnd1(a, 8); rnd1(a, 9)
    a(f"v_add_f32 v9, {f32bits(1e-5)}, v9"); rnd1(a, 9)
    a("v_sqrt_f32 v9, v9"); a("s_nop 0"); rnd1(a, 9)
    a("v_rcp_f32 v9, v9")
    for j in range(32): a(f"v_sub_f32 v{64+j}, v{64+j}, v8")
    for j in range(0, 32, 2): rnd2(a, 64 + j, 65 + j, 31)
    for j in range(32): a(f"v_mul_f32 v{64+j}, v{64+j}, v9")
    for j in range(0, 32, 2): rnd2(a, 64 + j, 65 + j, 31)
    tstamp(a, opt, 19)
    a(f"s_cmp_lt_u32 s{S_TID}, 32")
    a("s_cbranch_scc1 P_urg")
    dbg_wait(a, D_MOD1, 32, sleep=32)
    a("s_branch P_go")
    a.label("P_urg")
    import rec
    a("s_load_dwordx2 s[34:35], s[0:1], 8")
    a("s_waitcnt lgkmcnt(0)")
    rec.emit_rec_init(a, S_TID, 34)
    LE("v16", "v0", [(0, 2, 4)])
    a(f"s_lshl_b32 s48, s{S_TID}, 7"); a(f"s_add_u32 s48, s48, {hex(WS_FLAG)}")
    a("s_mov_b64 exec, 7")
    a(f"buffer_store_dword v24, v16, {sr(S_WS,4)}, s48 offen sc1")
    a("s_mov_b64 exec, -1")
    dbg_wait(a, D_MOD1, 32, sleep=8)
    a.label("P_go")
    tstamp(a, opt, 20)
    LE("v2", "v0", [(4, 2, 4), (6, 2, 8)])
    a(f"s_mov_b32 s48, {hex(WS_MOD)}")
    for i in range(4):
        a(f"buffer_load_dwordx4 {vr(32+4*i,4)}, v2, {sr(S_WS,4)}, s48 offen offset:{1024+64*i} sc1")
    for i in range(4):
        a(f"buffer_load_dwordx4 {vr(48+4*i,4)}, v2, {sr(S_WS,4)}, s48 offen offset:{64*i} sc1")
    a("s_waitcnt vmcnt(4)")
    unpack(a, 32, 96, 16)
    for j in range(32): a(f"v_add_f32 v{96+j}, 1.0, v{96+j}")
    for j in range(0, 32, 2): rnd2(a, 96 + j, 97 + j, 31)
    for j in range(32): a(f"v_mul_f32 v{64+j}, v{64+j}, v{96+j}")
    for j in range(0, 32, 2): rnd2(a, 64 + j, 65 + j, 31)
    a("s_waitcnt vmcnt(0)")
    unpack(a, 48, 96, 16)
    for j in range(32): a(f"v_add_f32 v{64+j}, v{64+j}, v{96+j}")
    for j in range(16): a(f"v_cvt_pk_bf16_f32 v{32+j}, v{64+2*j}, v{65+2*j}")
    tstamp(a, opt, 21)
    LE("v2", "v0", [(0, 6, 4), (6, 2, 12)])
    a(f"s_lshl_b32 s48, s{S_TID}, 14")
    a(f"s_add_u32 s48, s48, {hex(WS_H)}")
    for i in range(4):
        a(f"buffer_store_dwordx4 {vr(32+4*i,4)}, v2, {sr(S_WS,4)}, s48 offen offset:{1024*i} sc1")
    a(f"s_cmp_ge_u32 s{S_TID}, {N_LN1}")
    a("s_cbranch_scc1 P_done")
    a("s_waitcnt vmcnt(0)")
    a("s_barrier")
    a(f"s_cmp_lg_u32 s{S_W}, 0")
    a("s_cbranch_scc1 P_done")
    tstamp(a, opt, 22)
    dbg_arrive(a, D_LN1)
    a.label("P_done")
```

```python
from common import *
import math, struct

L_MEM = 0
L_KV  = 8192
L_QK  = 24576
L_OS  = 28672
L_SEL = 30720
L_JUNK= 31744
L_MISC= 32256
L_WO  = 32768

S_STEP = 16
S_PST = 17
S_PLD = 19
S_MRD, S_MWR, S_MPO = 22, 23, 24
S_KX, S_VX, S_KVM = 25, 26, 27
S_TAG, S_PMAX, S_PC = 28, 29, 30
S_SC = 31
S_PTR = 32
S_T0, S_T1, S_T2, S_T3 = 48, 49, 50, 51
S_OWN = 52
S_WOB = 53
S_WOL = 54
S_STAMP = 60

vVr = "v0"
vL16w, vL16, vXw, vXr, vOw, vWo, vPs, vMp, vIdx = ["v%d" % i for i in range(1, 10)]
vPl = vL16
vZ = "v[10:11]"
vT0, vT1 = "v12", "v13"
vFx = ["v28", "v29", "v30"]
SX0, SX1, SM = 16, 20, 24
vM = "v31"
FA, FB = 32, 120
F = [32 + 4 * i for i in range(8)]
ACC = {("q", 0): 64, ("q", 1): 68, ("k", 0): 72, ("k", 1): 76, ("v", 0): 80, ("v", 1): 84}
QF = [88 + 4 * i for i in range(4)]
KF = [104 + 4 * i for i in range(4)]
KXR = {(0, 0): 32, (1, 0): 24, (0, 1): 104, (1, 1): 108, (0, 2): 112, (1, 2): 116, (0, 3): 120, (1, 3): 124}
VX = [64, 72]
MI = {"q": 0, "k": 1, "v": 2}

def wreg(m, t, sig, off=0, n=8):
    idx = ((MI[m] * 2 + t) * 8 + sig) * 8 + off
    if idx < 256: return ar(idx, n)
    return vr(128 + idx - 256, n)

def smf(m, t, sig, own=FA):
    f = own + 4 * sig if sig < 2 else F[sig]
    return f"v_smfmac_f32_16x16x64_bf16 {vr(ACC[(m,t)],4)}, {vr(f,4)}, {wreg(m,t,sig)}, {vIdx}"

S_HAVE, S_FLG = 55, 56
S_SC2, S_OM = 58, 46
def emit_rec_init(a, sh, ptr):
    LE = lambda *x, **k: lane_expr(a, *x, tmp="v31", **k)
    WS = sr(S_WS, 4)
    srd(a, S_T, ptr, 8192)
    LE("v16", "v0", [(5, 1, 10), (4, 1, 6), (0, 2, 1)])
    sexpr(a, 48, [(sh, 1, 2, 11), (sh, 3, 2, 8), (S_W, 1, 1, 7), (sh, 0, 1, 4), (S_W, 0, 1, 3)])
    a(f"buffer_load_ushort v17, v16, {sr(S_T,4)}, s48 offen")
    a(f"buffer_load_ushort v18, v16, {sr(S_T,4)}, s48 offen offset:32")
    LE("v20", "v0", [(0, 6, 4)])
    LE("v21", "v0", [(5, 1, 5), (0, 2, 3), (4, 1, 2), (2, 2, 30)])
    for i in range(4): a(f"v_mov_b32 v{24+i}, 0")
    a("v_mov_b32 v19, -1")
    sexpr(a, 48, [(sh, 0, 5, 13), (S_W, 0, 2, 11)], WS_PART)
    a(f"buffer_store_dwordx4 v[24:27], v20, {WS}, s48 offen sc1")
    a(f"buffer_store_dwordx4 v[24:27], v20, {WS}, s48 offen offset:1024 sc1")
    sexpr(a, 50, [(sh, 3, 2, 11), (S_W, 1, 1, 10), (sh, 0, 1, 9), (S_W, 0, 1, 8), (sh, 1, 2, 6)], WS_MEM)
    for sl in (1, 2):
        a(f"s_add_u32 s48, s50, {8192*sl}")
        a(f"buffer_store_dword v19, v21, {WS}, s48 offen sc1")
    a("s_waitcnt vmcnt(4)")
    a("v_lshl_or_b32 v17, v18, 16, v17")
    a(f"buffer_store_dword v17, v21, {WS}, s50 offen sc1")

def emit_rec_setup(a, pfx="R", own_init=True, opt=()):
    st = " sc1"
    LE = lambda *x, **k: lane_expr(a, *x, tmp="v31", **k)
    a.c("==== recurrence role: s14 = head, s15 = wave ====")
    q = VmQ(a)
    if own_init:
        emit_rec_init(a, S_H, S_PTR + 2)
        a("s_waitcnt vmcnt(0)")
        dbg_arrive(a, D_RTB)
        a("s_waitcnt vmcnt(0)")

    D = [32, 33]
    E = [36, 37, 38, 39]
    LE("v28", "v0", [(4, 2, 5)])
    LE("v29", "v0", [(0, 4, 4)])
    a("v_xor_b32 v28, v28, v29")
    LE("v30", "v0", [(4, 2, 13)])
    a(f"v_add_u32 v{D[0]}, v28, v30")
    a(f"v_xor_b32 v{D[1]}, 128, v{D[0]}")
    sexpr(a, S_T2, [(S_H, 0, 5, 8), (S_W, 0, 2, 18)])
    sexpr(a, S_T3, [(S_W, 0, 2, 13)], L_WO)
    sexpr(a, S_WOB, [(S_H, 0, 5, 17), (S_W, 0, 2, 15)])

    def dma_chunk(a, q, n):
        m, ch = divmod(n, 4)
        if ch == 0:
            srd(a, S_T, S_PTR + 4 + 2 * m, 4194304)
        for i in range(8):
            a(f"s_add_u32 m0, s{S_T3}, {ch * 32768 + i * 1024}")
            if m < 3:
                a(f"s_add_u32 s{S_T0}, s{S_T2}, {hex((128 * ch + 4 * i) * 8192)}")
                a(f"buffer_load_dwordx4 v{D[(i >> 2) & 1]}, {sr(S_T,4)}, s{S_T0} offen lds")
            else:
                a(f"s_add_u32 s{S_T0}, s{S_WOB}, {hex(4 * i * 1024 + ch * 256)}")
                a(f"buffer_load_dwordx4 v{E[(i & 1) + 2 * ((i >> 2) & 1)]}, {sr(S_T,4)}, s{S_T0} offen lds")
        q.issue(("d", n), 8)

    if "time" in opt: a("s_memrealtime s[76:77]")
    for n in range(4): dma_chunk(a, q, n)
    LE(vL16w, "v0", [(0, 6, 4), (6, 2, 11)])
    LE(vL16, "v0", [(0, 6, 4)])
    LE(vXw, "v0", [(6, 2, 10), (0, 4, 5), (4, 2, 3)], L_QK)
    LE("v16", "v0", [(2, 2, 3)])
    a(f"v_xor_b32 {vXw}, {vXw}, v16")
    LE(vXr, "v0", [(0, 6, 3)], L_QK)
    LE("v16", "v0", [(4, 2, 3)])
    a(f"v_xor_b32 {vXr}, {vXr}, v16")
    LE(vOw, "v0", [(6, 2, 9), (5, 1, 8), (2, 2, 6), (0, 1, 5), (4, 1, 4)], L_OS)
    LE("v16", "v0", [(5, 1, 8), (2, 2, 6), (0, 1, 5), (4, 1, 4)], L_JUNK)
    a("v_and_b32 v17, 2, v0")
    a("v_cmp_ne_u32 vcc, 0, v17")
    a("s_nop 1")
    a(f"v_cndmask_b32 {vOw}, {vOw}, v16, vcc")
    for r in (10, 11, 14, 15): a(f"v_mov_b32 v{r}, 0")
    LE(vWo, "v0", [(6, 2, 15), (0, 6, 4)], L_WO)
    LE(vPs, "v0", [(4, 2, 14), (3, 1, 13), (2, 1, 11), (0, 2, 4)])
    LE(vMp, "v0", [(5, 1, 5), (0, 2, 3), (4, 1, 2), (2, 2, 30)])
    a(f"v_and_b32 v16, 1, v0")
    a(f"v_mul_u32_u24 {vIdx}, 0xaaaa, v16")
    a(f"v_add_u32 {vIdx}, 0x4444, {vIdx}")
    a("v_and_b32 v16, 3, v0")
    a("v_bfe_u32 v17, v0, 2, 2")
    a("v_mov_b32 v18, 0x3f80")
    a("v_mov_b32 v19, 0x3f800000")
    a("v_cmp_eq_u32 vcc, 1, v16")
    a("s_nop 1")
    a("v_cndmask_b32 v18, v18, v19, vcc")
    a("v_cmp_gt_u32 vcc, 2, v16")
    a("s_nop 1")
    a("v_cndmask_b32 v18, 0, v18, vcc")
    for d in range(4):
        a(f"v_cmp_eq_u32 vcc, {d}, v17")
        a("s_nop 1")
        a(f"v_cndmask_b32 v{20+d}, 0, v18, vcc")
    a(f"ds_write_b128 {vL16}, v[20:23] offset:{L_SEL}")
    for tau in range(2):
        sexpr(a, S_PST + tau, [(S_W, 0, 2, 16), (S_H, 0, 5, 6)], WS_PART + tau * 4096)
    sexpr(a, S_PLD, [(S_H, 0, 5, 13), (S_W, 0, 2, 11)], WS_PART)
    sexpr(a, S_OWN, [(S_H, 3, 2, 11), (S_W, 1, 1, 10), (S_H, 0, 1, 9), (S_W, 0, 1, 8), (S_H, 1, 2, 6)])
    a(f"s_mov_b32 s{S_MRD}, {hex(WS_MEM)}")
    a(f"s_add_u32 s{S_MPO}, s{S_OWN}, {hex(WS_MEM)}")
    a(f"s_add_u32 s{S_MWR}, s{S_OWN}, {hex(WS_MEM + 8192)}")
    a(f"s_mul_i32 s{S_T0}, s{S_H}, {HSTR}")
    sexpr(a, S_KX, [(S_W, 0, 2, 12)], WS_KV)
    a(f"s_add_u32 s{S_KX}, s{S_KX}, s{S_T0}")
    a(f"s_mul_i32 s{S_T0}, s{S_H}, {MSTR}")
    sexpr(a, S_KVM, [(S_W, 0, 2, 10)], WS_KM)
    a(f"s_add_u32 s{S_KVM}, s{S_KVM}, s{S_T0}")
    a(f"s_mov_b32 s{S_STEP}, 0")
    a(f"s_mov_b32 s{S_TAG}, 1")
    a(f"s_mov_b32 s{S_PMAX}, 20000")
    sc = (128 ** -0.5) * math.log2(math.e)
    a(f"s_mov_b32 s{S_SC}, {hex(struct.unpack('<I', struct.pack('<f', sc))[0])}")

    a(f"s_mov_b32 s{S_SC2}, s{S_SC}"); a(f"s_mov_b32 s{S_SC2+1}, s{S_SC}")
    a(f"s_mov_b32 s{S_OM}, 0x33333333"); a(f"s_mov_b32 s{S_OM+1}, 0x33333333")
    LE("v28", "v0", [(4, 1, 5)])
    LE("v29", "v0", [(0, 4, 4)])
    a("v_xor_b32 v28, v28, v29")
    LE("v30", "v0", [(4, 2, 10)])
    a(f"v_add_u32 v{E[0]}, v28, v30")
    a(f"v_xor_b32 v{E[1]}, 64, v{E[0]}")
    a(f"v_xor_b32 v{E[2]}, 128, v{E[0]}")
    a(f"v_xor_b32 v{E[3]}, 192, v{E[0]}")
    TR = [40, 41]
    LE("v28", "v0", [(2, 1, 12), (5, 1, 10), (3, 1, 9), (4, 1, 8), (0, 1, 3)])
    LE("v29", "v0", [(6, 2, 6), (1, 1, 4)])
    LE("v30", "v0", [(4, 1, 5), (3, 1, 6), (2, 1, 7)])
    a("v_xor_b32 v29, v29, v30")
    a(f"v_add_u32 v{TR[0]}, v28, v29")
    a(f"v_xor_b32 v{TR[1]}, 32, v{TR[0]}")

    done = pfx + "_wdone"
    for w in range(4):
        if w < 3:
            a(f"s_cmp_lg_u32 s{S_W}, {w}")
            a(f"s_cbranch_scc1 {pfx}_wl{w+1}")
        qq = q.clone()
        for n in range(13):
            if n < 12:
                qq.wait(("d", n))
            a("s_barrier")
            if "time" in opt and n in (0, 4, 8): a(f"s_memrealtime s[{78+n//2}:{79+n//2}]")
            if 0 < n and n + 3 < 16: dma_chunk(a, qq, n + 3)
            if n == 12: break
            m, ch = divmod(n, 4)
            mn = "qkv"[m]
            a(f"v_add_u32 v26, {L_WO + ch * 32768}, v{TR[0]}")
            a(f"v_add_u32 v27, {L_WO + ch * 32768}, v{TR[1]}")
            for k2 in range(2):
                sig = (2 * ch + k2) ^ (2 * w)
                for t in range(2):
                    for p in range(4):
                        off = (64 * k2 + 32 * (p % 2) + 8 * (p // 2)) * 256
                        a(f"ds_read_b64_tr_b16 {wreg(mn, t, sig, 2 * p, 2)}, v{26+t} offset:{off}")
            a("s_waitcnt lgkmcnt(0)")
        if w < 3:
            a(f"s_branch {done}")
            a.label(f"{pfx}_wl{w+1}")
    a.label(done)
    LE("v24", "v0", [(4, 1, 12), (5, 1, 11), (3, 1, 10), (2, 1, 8), (6, 2, 15), (1, 1, 4), (0, 1, 3),
                     (2, 1, 5), (3, 1, 6), (4, 1, 7)], L_WO)
    if not own_init: claim(a)
    a("s_waitcnt vmcnt(0)")
    a("s_barrier")
    for ks in range(2):
        for tau in range(2):
            for b in range(4):
                a(f"v_xor_b32 v25, {128 * tau + 32 * b}, v24")
                base = 32 + (tau * 4 + b) * 8
                for p in range(4):
                    off = (64 * ks + 32 * (p // 2) + 2 * (p % 2)) * 256
                    a(f"ds_read_b64_tr_b16 {vr(base + 2 * p, 2)}, v25 offset:{off}")
        a("s_waitcnt lgkmcnt(0)")
        for i in range(16):
            a(f"ds_write_b128 {vWo}, {vr(32 + 4 * i, 4)} offset:{ks * 16384 + i * 1024}")
        a("s_waitcnt lgkmcnt(0)")
    if own_init: dbg_wait(a, D_RTB, 128, sleep=8)
    else: verify_claim(a, 0, L_MISC)

def kv_wait(a, need_sreg_or_imm, tag):
    l = a.uid(tag)
    need = need_sreg_or_imm
    a(f"s_cmp_ge_u32 s{S_HAVE}, {need}")
    a(f"s_cbranch_scc1 {l}_ok")
    a(f"s_mov_b32 s{S_PC}, 0")
    a.label(l)
    a(f"buffer_load_dword v119, {vMp}, {sr(S_WS,4)}, s{S_FLG} offen sc1")
    a("s_waitcnt vmcnt(0)")
    a(f"v_readlane_b32 s{S_HAVE}, v119, 0")
    a(f"v_readlane_b32 s{S_T0}, v119, 2")
    a("s_nop 1")
    a(f"s_min_u32 s{S_HAVE}, s{S_HAVE}, s{S_T0}")
    a(f"s_cmp_ge_u32 s{S_HAVE}, {need}")
    a(f"s_cbranch_scc1 {l}_ok")
    a("s_sleep 2")
    a(f"s_add_u32 s{S_PC}, s{S_PC}, 1")
    a(f"s_cmp_lt_u32 s{S_PC}, s{S_PMAX}")
    a(f"s_cbranch_scc1 {l}")
    a(f"s_mov_b32 s{S_PMAX}, 1")
    a.label(l + "_ok")

def emit_rec_mega(a, opt):
    import mega
    a(f"s_load_dwordx16 {sr(S_PTR,16)}, s[0:1], 0")
    a("s_waitcnt lgkmcnt(0)")
    emit_rec_setup(a, own_init=False, opt=opt)
    if "time" in opt: a("s_memrealtime s[84:85]")
    dbg_wait(a, D_LN1, N_LN1, sleep=16)
    sexpr(a, S_FLG, [(S_H, 0, 5, 7)], WS_FLAG)
    a(f"s_mov_b32 s{S_HAVE}, 0")
    kv_wait(a, 2, "kvw")
    if "time" in opt: a("s_memrealtime s[86:87]")
    mega.emit_mode(a, opt, "R_slow")
    ropt = list(opt) + ["mega", "oexec", "ge5", "ga2", "gc3", "c111", "b15", "de5", "dl5", "db4"]
    emit_rec(a, fast=True, pfx="RF", opt=ropt)
    a("s_branch L_done")
    a.label("R_slow")
    emit_rec(a, fast=False, pfx="RS", opt=ropt)

def emit_rec(a, fast=True, stamps=False, nsteps=64, pfx="R", warm=True, opt=()):
    st = "" if fast else " sc1"
    def geti(p, d):
        for o in opt:
            if o.startswith(p) and o[len(p):].isdigit(): return int(o[len(p):])
        return d
    nst = [0]
    tr0 = geti("tr", -1)
    slotno = [0]
    def stamp(force=False):
        if stamps and (tr0 < 0 or force):
            a(f"s_memtime {sr(S_STAMP + 2 * nst[0], 2)}"); nst[0] += 1
    if "mega" not in opt: emit_rec_setup(a, pfx)

    lq = LQ()
    rms = [o[3:] for o in opt if o.startswith("rm:")]
    def emit(x):
        txt = x if isinstance(x, str) else x[0]
        if isinstance(x, str) and any(r in txt for r in rms): return
        if x == "STAMP": stamp()
        elif isinstance(x, tuple):
            if x[0] == "w":
                wt = lq.wait(x[1])
                if isinstance(x[1], tuple) and x[1][0] == "Fw": assert wt.endswith("(0)")
                a(wt)
            elif x[0] == "L": a.label(x[1])
            else:
                a(x[0]); lq.issue(x[1])
        else: a(x)
    def run(seq, count=True):
        for m, fill in seq:
            if m: a(m)
            if tr0 >= 0 and count and tr0 <= slotno[0] + 12 < tr0 + geti("tn", 13): stamp(True)
            if count: slotno[0] += 1
            for f in fill: emit(f)

    kvd = [f"buffer_load_dwordx4 {vL16}, {sr(S_WS,4)}, s{S_KX} offen offset:{1024*i} sc1 lds" for i in range(4)] + [f"s_add_u32 s{S_KX}, s{S_KX}, 16384"]
    zero16 = lambda r: f"v_mfma_f32_32x32x8_bf16 {vr(r,16)}, {vZ}, {vZ}, 0"
    zero4 = lambda r: f"v_mfma_f32_16x16x16_bf16 {vr(r,4)}, {vZ}, {vZ}, 0"
    def gather(sig):
        return f"buffer_load_dwordx4 {vr(F[sig],4)}, {vL16w}, {sr(S_WS,4)}, s{S_MRD} offen offset:{1024*sig} sc1"
    def fx():
        for i in range(3): a(f"v_xor_b32 {vFx[i]}, {2048 * (i + 1)}, {vL16w}")
    sexpr(a, S_T0, [(S_W, 0, 2, 12)], L_KV)
    a(f"s_mov_b32 m0, s{S_T0}")
    lane_expr(a, "v24", "v0", [(0, 6, 4), (6, 2, 12)], L_KV + 2048, tmp="v31")
    a(f"v_mov_b32 {vVr}, v24")
    for x in kvd: a(x)
    if "nokv" in opt: kvd = ["s_nop 0"] * 5
    a(zero16(64)); a(zero16(80))
    fx()
    a(f"s_mov_b32 s{S_PC}, 0")
    if stamps or "nost" in opt or "time" in opt:
        a("s_memrealtime s[96:97]"); a("s_memtime s[98:99]")
    if "rstat" in opt:
        for r in range(60, 64): a(f"s_mov_b32 s{r}, 0")
    a(gather(0)); a(gather(0)); a(gather(1))

    rdF = lambda sig: (f"ds_read_b128 {vr(F[sig],4)}, {vFx[sig//2-1]} offset:{L_MEM + (sig%2)*1024}", ("F", sig))
    rdKX = lambda t, ks: (f"ds_read_b128 {vr(KXR[(t,ks)],4)}, {vL16} offset:{L_KV + ((t*4+ks)//2)*4096 + (ks%2)*1024}", "KX")
    trQ = lambda ks, u: (f"ds_read_b64_tr_b16 {vr(QF[ks]+2*u,2)}, {vXr} offset:{1024*ks+512*u}", ("Q", ks))
    trK = lambda ks, u: (f"ds_read_b64_tr_b16 {vr(KF[ks]+2*u,2)}, {vXr} offset:{1024*ks+512*u}", ("K", ks))
    rdV = lambda t: (f"ds_read_b128 {vr(VX[t],4)}, {vVr} offset:{t*1024}", "V")
    def sx(t, ks):
        d = vr([SX0, SX1][t], 4)
        return f"v_mfma_f32_16x16x32_bf16 {d}, {vr(KXR[(t,ks)],4)}, {vr(QF[ks],4)}, {d if ks else 0}"
    def sm(ks):
        d = vr(SM, 4)
        return f"v_mfma_f32_16x16x32_bf16 {d}, {vr(QF[ks],4)}, {vr(QF[ks],4)}, {d if ks else 0}"
    kvm = [f"buffer_store_dwordx4 v[12:15], {vL16}, {sr(S_WS,4)}, s{S_KVM} offen{' sc1 nt' if 'kvmnt' in opt else (' sc0 sc1' if 'kvmsys' in opt else ' sc1')}", f"s_add_u32 s{S_KVM}, s{S_KVM}, 4096"]
    if "nokvm" in opt: kvm = ["s_nop 0"] + kvm[1:]

    nc = "nocomm" in opt
    def chk(sig):
        f = F[sig]
        return [f"v_max3_u32 {vT1}, v{f}, v{f+1}, v{f+2}", f"v_max_u32 {vT1}, {vT1}, v{f+3}", f"v_cmp_eq_u32 vcc, -1, {vT1}"]
    wrF = lambda sig: (f"ds_write_b128 {vL16w}, {vr(F[sig],4)} offset:{L_MEM + 1024*sig}", ("Fw", sig))
    def gfail(sig, first_wait, redo):
        a.label(f"{pfx}_gf{sig}")
        a(f"s_waitcnt vmcnt({first_wait})")
        a.label(f"{pfx}_gr{sig}")
        if "rstat" in opt: a(f"s_add_u32 s{61+sig}, s{61+sig}, 1")
        for x in chk(sig): a(x)
        a(f"s_add_u32 s{S_PC}, s{S_PC}, 1")
        a(f"s_cbranch_vccz {pfx}_gx{sig}")
        a(gather(sig))
        a(f"s_cmp_lt_u32 s{S_PC}, s{S_PMAX}")
        a("s_waitcnt vmcnt(0)")
        a(f"s_cbranch_scc1 {pfx}_gr{sig}")
        a(f"s_mov_b32 s{S_PMAX}, 1")
        a.label(f"{pfx}_gx{sig}")
        a(wrF(sig)[0])
        for x in redo: a(x)
        a(f"s_branch {pfx}_gok{sig}")

    a(f"s_branch {pfx}_gA")
    gfail(0, 1, [zero4(64), "s_nop 5", smf("q", 0, 0)])
    gfail(1, 0, [])
    a.raw(".p2align 6")
    a.label(f"{pfx}_gA")
    if not nc: a("s_waitcnt vmcnt(2)")
    for x in chk(0)[:2]: a(x)
    emit(wrF(0))
    a(chk(0)[2])
    a(smf("q", 0, 0))
    if not nc: a(f"s_cbranch_vccnz {pfx}_gf0")
    a.label(f"{pfx}_gok0")
    if stamps:
        a(f"s_memtime {sr(S_STAMP, 2)}")
        a(f"s_mov_b32 s{S_STAMP+29}, s{S_PC}")
    nst[0] = 1
    kx = {k: rdKX(*k) for k in KXR}
    WB = [40, 48, 56, 32, 104, 112, 120, 96, 24]
    def rdWo(k, buf, half):
        T, ks = divmod(k, 2)
        return (f"ds_read_b128 {vr(buf + 4*half, 4)}, {vWo} offset:{ks*16384 + T*2048 + half*1024}", ("W", k))
    W = [rdWo(k, WB[k], h) for k in range(9) for h in range(2)]
    def post(acc, dst):
        return [f"v_add_f32 v{acc}, v{acc}, v{acc+1}", f"v_add_f32 v{acc+2}, v{acc+2}, v{acc+3}", f"v_cvt_pk_bf16_f32 v{dst}, v{acc}, v{acc+2}"]
    one = [f"v_mov_b32 v{28+i}, 0x3f803f80" for i in range(4)]
    pq0, pk0, pq1, pk1 = post(64, 12), post(72, 13), post(68, 14), post(76, 15)
    pv0, pv1 = post(80, 12), post(84, 14)
    tr = [trQ(ks, u) for ks in range(4) for u in range(2)]
    QK = (("q", 0), ("k", 0), ("q", 1), ("k", 1))
    ms = [smf("k", 0, 0), smf("q", 1, 0), smf("k", 1, 0), smf("v", 0, 0), smf("v", 1, 0)]
    ms += [smf(m, t, sg) for sg in (2, 4, 6, 1) for m, t in QK]
    ms += [smf(m, t, sg) for m, t in QK for sg in (3, 5, 7)]
    ms += [smf("v", t, sg) for sg in (1, 2, 3, 4, 5, 6, 7) for t in range(2)]
    ms += [sx(0, 0), sx(1, 0), sm(0), sx(0, 1), sx(1, 1), sm(1), sx(0, 2), sx(0, 3), sx(1, 2), sx(1, 3), sm(2), sm(3)]
    fl = {k: [] for k in range(1, 60)}
    hb = geti("hb", 4); c1 = geti("c1", 10); b1 = geti("b1", 6)
    fl[1] = [gather(1)] if not nc else []
    fl[hb] += [("w", ("Fw", 0)), "s_barrier", rdF(2)]
    fl[5] += [rdF(4), rdF(6), zero4(20), kx[(0, 1)], kx[(1, 1)], zero4(20), ("w", ("F", 2)), "STAMP"]
    rest = [kx[(0, 2)], kx[(1, 2)], kx[(0, 3)], kx[(1, 3)], kx[(1, 0)], kx[(0, 0)]]
    for sl in range(6, c1):
        if len(rest) > 1: fl[sl] += [rest.pop(0)]
    fl[9] += [("w", ("F", 6))]
    fl[c1] += (["s_waitcnt vmcnt(1)"] if not nc else []) + chk(1)
    fl[c1 + 1] += [wrF(1)] + ([f"s_cbranch_vccnz {pfx}_gf1"] if not nc else []) + [("L", f"{pfx}_gok1")]
    for n, x in enumerate(rest): fl[c1 + 2 + n] += [x]
    fl[c1 + b1] += [("w", "KX"), "s_barrier"]
    x0 = c1 + b1 + 1
    fl[x0] += [rdF(3), rdF(5)]; fl[x0 + 1] += [rdF(7), one[3]]
    fl[x0 + 2] += (["s_waitcnt vmcnt(0)"] if not nc else []) + [kvd[0]]
    fl[x0 + 3] += [one[0]]
    fl[21] += [("w", ("F", 3))]
    fl[22] += [("w", ("F", 7)), one[1]]
    fl[23] += [kvd[1]]
    fl[24] += [one[2], "STAMP"]
    fl[26] += [pq0[0]]
    fl[27] += [pq0[1]]
    fl[28] += [pq0[2]]
    fl[29] += [rdV(0), pk0[0]]
    fl[30] += [pk0[1]]
    fl[31] += [pk0[2]]
    fl[32] += [rdV(1), pq1[0]]
    fl[33] += [pq1[1]]
    fl[34] += [pq1[2]]
    fl[35] += pk1
    fl[36] += [(f"ds_write2st64_b64 {vXw}, v[12:13], v[14:15] offset1:1", "Xw")]
    fl[37] += [("w", "V"), "v_mov_b32 v77, 0"]
    fl[38] += [kvd[2]]
    fl[39] += [W[0]]
    fl[40] += [W[1]]
    fl[41] += [("w", "Xw"), "s_barrier"]
    fl[42] += tr[0:2]
    fl[43] += tr[2:4]
    fl[44] += tr[4:6]
    fl[45] += tr[6:8]
    fl[46] += [kvd[3]]
    fl[47] += [("w", ("Q", 3)), "STAMP"]
    fl[48] += [W[2], pv0[0]]
    fl[49] += [W[3], pv0[1]]
    fl[50] += [W[4], pv0[2]]
    fl[51] += [W[5], pv1[0]]
    fl[52] += [W[6], pv1[1]]
    fl[53] += [W[7], pv1[2]]
    fl[54] += kvm[:1]
    fl[55] += [W[8], f"s_cmp_eq_u32 s{S_STEP}, {nsteps-1}"]
    fl[56] += [W[9]] + ([f"s_cbranch_scc1 {pfx}_end"] if not stamps else [])
    fl[57] += ([f"buffer_load_dword v15, {vMp}, {sr(S_WS,4)}, s{S_FLG} offen sc1"] if "mega" in opt else []) + ["v_max3_f32 v80, v16, v17, v18"]
    fl[58] += [W[10], kvd[4]]
    fl[59] += [W[11], "v_max3_f32 v82, v19, v20, v21", "v_max3_f32 v80, v80, v22, v23", "v_max_f32 v80, v80, v82", W[12], kvm[-1], W[13], "s_nop 0", "STAMP"]
    slotno[0] = -11
    run([(m, fl[1 + i]) for i, m in enumerate(ms)])
    ee = lambda r: f"v_exp_f32 v{r}, v{r}"
    for x in ["v_max3_f32 v80, v80, v26, v27", "v_mov_b32 v82, v80", W[14], W[15], "v_permlane32_swap_b32 v80, v82", "v_max_f32 v80, v80, v82",
              "v_mov_b32 v82, v80", "s_nop 1", "v_permlane16_swap_b32 v80, v82", "v_max_f32 v80, v80, v82", f"v_mul_f32 v80, s{S_SC}, v80"]:
        emit(x)
    for r in (26, 16, 18, 20, 22):
        a(f"v_pk_fma_f32 {vr(r,2)}, {vr(r,2)}, {sr(S_SC2,2)}, v[80:81] op_sel_hi:[1,1,0] neg_lo:[0,0,1] neg_hi:[0,0,1]")
    stamp()
    for x in [ee(26), ee(27), ee(16), "v_cvt_pk_bf16_f32 v76, v26, v27", ee(17), "s_nop 0"]:
        emit(x)
    run([("v_mfma_f32_16x16x16_bf16 v[84:87], v[28:29], v[76:77], 0", [ee(18), "v_cvt_pk_bf16_f32 v68, v16, v17"]),
         ("v_mfma_f32_16x16x16_bf16 v[88:91], v[12:13], v[76:77], 0", [ee(19), ee(20)]),
         ("v_mfma_f32_16x16x16_bf16 v[92:95], v[14:15], v[76:77], 0", [ee(21), "v_cvt_pk_bf16_f32 v69, v18, v19", ee(22), ee(23),
            "v_cvt_pk_bf16_f32 v70, v20, v21", "v_cvt_pk_bf16_f32 v71, v22, v23", W[16], "s_nop 0"]),
         ("v_mfma_f32_16x16x32_bf16 v[84:87], v[28:31], v[68:71], v[84:87]", [W[17]]),
         (f"v_mfma_f32_16x16x32_bf16 v[88:91], {vr(VX[0],4)}, v[68:71], v[88:91]", []),
         (f"v_mfma_f32_16x16x32_bf16 v[92:95], {vr(VX[1],4)}, v[68:71], v[92:95]", ["v_rcp_f32 v20, v84", "s_nop 2"])])
    for r in range(88, 92): a(f"v_mul_f32 v{r}, v20, v{r}")
    a("v_pk_mul_f32 v[92:93], v[92:93], v[20:21] op_sel_hi:[1,0]")
    a("v_pk_mul_f32 v[94:95], v[94:95], v[20:21] op_sel_hi:[1,0]")
    for i in range(4): a(f"v_cvt_pk_bf16_f32 v{16+i}, v{88+2*i}, v{89+2*i}")
    if "oexec" in opt: a(f"s_mov_b64 exec, {sr(S_OM,2)}")
    emit((f"ds_write_b128 {vOw}, v[16:19]", "Ow"))
    if "oexec" in opt: a("s_mov_b64 exec, -1")
    stamp()
    a(zero16(64))
    a(zero16(80))
    emit(("w", "Ow"))
    a("s_barrier")
    emit((f"ds_read_b128 v[16:19], {vL16} offset:{L_OS}", "O0"))
    emit((f"ds_read_b128 v[20:23], {vL16} offset:{L_OS+1024}", "O1"))
    a(zero16(80))
    emit(("w", "O1"))
    stamp()
    OA = [64 + 4 * T for T in range(8)]
    buf = {k: WB[k] for k in range(9)}
    for k in range(9, 16): buf[k] = WB[k - 9]
    def wo(k):
        T, ks = divmod(k, 2)
        return f"v_smfmac_f32_16x16x64_bf16 {vr(OA[T], 4)}, {vr(16 + 4*ks, 4)}, {vr(buf[k], 8)}, {vIdx}"
    def add(T):
        o = OA[T]; return [f"v_add_f32 v{o}, v{o}, v{o+1}", f"v_add_f32 v{o+2}, v{o+2}, v{o+3}"]
    G = [OA[0], OA[4]]
    def cvt(tau, bb):
        o0, o1 = OA[tau*4 + 2*bb], OA[tau*4 + 2*bb + 1]
        return [f"v_cvt_pk_bf16_f32 v{G[tau]+bb}, v{o0}, v{o1}", f"v_cvt_pk_bf16_f32 v{G[tau]+2+bb}, v{o0+2}, v{o1+2}"]
    tag = lambda tau: [f"v_and_or_b32 v{G[tau]}, v{G[tau]}, -2, s{S_TAG}"]
    stp = lambda tau: [f"buffer_store_dwordx4 {vr(G[tau],4)}, {vPs}, {sr(S_WS,4)}, s{S_PST+tau} offen{st}"]
    fill = {k: [] for k in range(16)}
    rest = [rdWo(k, buf[k], h) for k in range(9, 16) for h in range(2)]
    sched_rd = {0: 2, 1: 2, 2: 2, 3: 1, 4: 1, 5: 1, 6: 1, 7: 1, 8: 1, 9: 1, 10: 1}
    for k, n in sched_rd.items():
        for _ in range(n): fill[k].append(rest.pop(0))
    fill[8].append(("w", ("W", 11)))
    fill[11].append(("w", ("W", 13)))
    fill[13].append(("w", ("W", 15)))
    va = {3: add(0)[:1], 4: add(0)[1:], 5: add(1), 6: cvt(0, 0), 7: tag(0) + add(2)[:1], 8: add(2)[1:], 9: add(3) + cvt(0, 1), 10: stp(0),
          11: add(4)[:1], 12: add(4)[1:], 13: add(5), 14: cvt(1, 0) + tag(1), 15: add(6)}
    for k, v in va.items(): fill[k] += v
    SEL, RD = 96, 100
    RS = [(104, 108), (112, 120)]
    fill[15] = [(f"ds_read_b128 {vr(SEL,4)}, {vL16} offset:{L_SEL}", "SEL")] + fill[15] + ["v_mov_b32 v117, -1", f"s_mov_b32 s{S_PC}, 0", "s_nop 2"] + add(7) + cvt(1, 1) + stp(1)
    run([(wo(k), fill[k]) for k in range(16)])
    stamp()
    if "nocomm" in opt:
        a(zero16(64)); fx(); a(zero16(80))
        if stamps:
            a(f"s_cmp_eq_u32 s{S_STEP}, {nsteps-1}")
            a(f"s_cbranch_scc1 {pfx}_end")
        a(f"s_add_u32 s{S_STEP}, s{S_STEP}, 1")
        a("s_nop 7")
        a(f"s_branch {pfx}_gA")
    def ldp(st_):
        for n in range(2): a(f"buffer_load_dwordx4 {vr(RS[st_][n],4)}, {vPl}, {sr(S_WS,4)}, s{S_PLD} offen offset:{1024*n} sc1")
    de = geti("de", 4); dl = geti("dl", 6); d2 = geti("db", 3); d3 = geti("dc", 3)
    NOP = "s_nop 7"
    a(zero16(64))
    fx()
    a(zero16(80))
    a(f"s_cmp_lt_u32 s{S_W}, 2")
    for _ in range(de - 2): a(NOP)
    a(f"s_cbranch_scc1 {pfx}_re")
    for _ in range(dl): a(NOP)
    a.label(f"{pfx}_re")
    ldp(0)
    for _ in range(d2): a(zero16(80))
    ldp(1)
    emit(("w", "SEL"))
    for _ in range(d3): a(zero16(80))
    def fin(st_, nm):
        r0, r1 = RS[st_]
        a.label(f"{pfx}_rc{nm}")
        a("s_waitcnt vmcnt(3)")
        a(f"v_mfma_f32_16x16x32_bf16 {vr(RD,4)}, {vr(SEL,4)}, {vr(r0,4)}, 0")
        a(f"v_xor_b32 v118, s{S_TAG}, v{r0}")
        a("s_waitcnt vmcnt(2)")
        a(f"v_mfma_f32_16x16x32_bf16 v[16:19], {vr(SEL,4)}, {vr(r1,4)}, {vr(RD,4)}")
        a(f"v_xor_b32 {vT1}, s{S_TAG}, v{r1}")
        a(f"v_or_b32 {vT1}, {vT1}, v118")
        a(f"v_and_b32 {vT1}, 1, {vT1}")
        a(f"v_cmp_ne_u32 vcc, 0, {vT1}")
        a(f"s_cbranch_vccnz {pfx}_rf{nm}")
    fin(0, "A")
    a.label(f"{pfx}_rok")
    stamp()
    if stamps: a(f"s_mov_b32 s{S_STAMP+28}, s{S_PC}")
    a("s_nop 0" if (stamps and tr0 < 0) else "s_nop 2")
    a("v_add_f32_dpp v16, v16, v16 row_ror:8 row_mask:0xf bank_mask:0xf")
    a("v_add_f32_dpp v17, v17, v17 row_ror:8 row_mask:0xf bank_mask:0xf")
    a("s_nop 0")
    a("v_add_f32_dpp v16, v16, v16 row_ror:4 row_mask:0xf bank_mask:0xf")
    a("v_add_f32_dpp v17, v17, v17 row_ror:4 row_mask:0xf bank_mask:0xf")
    a("v_cvt_pk_bf16_f32 v116, v16, v17")
    a(f"buffer_store_dword v116, {vMp}, {sr(S_WS,4)}, s{S_MWR} offen{st}")
    a(f"buffer_store_dword v117, {vMp}, {sr(S_WS,4)}, s{S_MPO} offen{st}")
    if stamps:
        a(f"s_mov_b32 s{S_STAMP+30}, s{S_STAMP+2*nst[0]}")
    stamp()
    if stamps:
        a(f"s_cmp_eq_u32 s{S_STEP}, {nsteps-1}")
        a(f"s_cbranch_scc1 {pfx}_end")
    ge = geti("ge", 5); g1 = geti("ga", 0); g2 = geti("gb", 3); g3 = geti("gc", 3)
    a(f"s_mov_b32 s{S_MPO}, s{S_MWR}")
    a(f"s_sub_u32 s{S_MRD}, s{S_MWR}, s{S_OWN}")
    a(f"s_cmp_ge_u32 s{S_W}, 2")
    a(f"s_cbranch_scc1 {pfx}_gl")
    for _ in range(ge): a(NOP)
    a.label(f"{pfx}_gl")
    for _ in range(g1): a(NOP)
    a(gather(0))
    a(f"s_add_u32 s{S_MWR}, s{S_MWR}, 8192")
    a(f"s_cmp_ge_u32 s{S_MRD}, {hex(WS_MEM + 2*8192)}")
    a(f"s_cselect_b32 s{S_T0}, {3*8192}, 0")
    a(f"s_sub_u32 s{S_MWR}, s{S_MWR}, s{S_T0}")
    a(f"s_add_u32 s{S_STEP}, s{S_STEP}, 1")
    a(f"s_xor_b32 s{S_TAG}, s{S_TAG}, 1")
    if "mega" in opt:
        a(f"v_readlane_b32 s{S_HAVE}, v15, 0")
        a(f"v_readlane_b32 s{S_T0}, v15, 2")
        a(f"s_add_u32 s{S_T1}, s{S_STEP}, 2")
        a(f"s_min_u32 s{S_T1}, s{S_T1}, 64")
        a(f"s_min_u32 s{S_HAVE}, s{S_HAVE}, s{S_T0}")
        kv_wait(a, f"s{S_T1}", pfx + "_kvw")
        g2 -= 1
    a(f"s_mov_b32 s{S_PC}, 0")
    for _ in range(g2 - 1): a(NOP)
    a(gather(0))
    for _ in range(g3): a(NOP)
    a(gather(1))
    a(f"s_branch {pfx}_gA")
    a.label(f"{pfx}_rfA")
    if "rstat" in opt: a("s_add_u32 s60, s60, 1")
    ldp(0)
    a(f"s_add_u32 s{S_PC}, s{S_PC}, 1")
    fin(1, "B")
    a(f"s_branch {pfx}_rok")
    a.label(f"{pfx}_rfB")
    if "rstat" in opt: a("s_add_u32 s63, s63, 1")
    ldp(1)
    a(f"s_add_u32 s{S_PC}, s{S_PC}, 1")
    a(f"s_cmp_lt_u32 s{S_PC}, s{S_PMAX}")
    a(f"s_cbranch_scc1 {pfx}_rcA")
    a(f"s_mov_b32 s{S_PMAX}, 1")
    a(f"s_branch {pfx}_rok")
    a.label(pfx + "_end")
    return nst[0]
```

```python
import sys
from common import *
import rec, pre, gemm
L_BOOT = 163840 - 64

def read_counts(a, vdst="v25", vaddr="v24"):
    a(f"global_load_dword {vdst}, {vaddr}, {sr(S_DBG,2)} sc1")
    a("s_waitcnt vmcnt(0)")

def sum_arrivals(a, vb, dst, tmp):
    a(f"v_readlane_b32 s{dst}, {vb}, {D_OVF}")
    for x in range(8):
        a(f"v_readlane_b32 s{tmp}, {vb}, {0 if x == 0 else 15 + x}")
        a("s_nop 1")
        a(f"s_bcnt1_i32_b32 s{tmp}, s{tmp}")
        a(f"s_add_u32 s{dst}, s{dst}, s{tmp}")

def emit_entry(a, opt):
    a("s_cmp_ge_u32 s2, 256")
    a("s_cbranch_scc1 L_exit")
    a("s_load_dwordx4 s[48:51], s[0:1], 112")
    a(f"s_getreg_b32 s{S_TEAM}, hwreg(HW_REG_XCC_ID)")
    a(f"s_and_b32 s{S_TEAM}, s{S_TEAM}, 7")
    if "fakexcc" in opt:
        a(f"s_lshr_b32 s{S_TEAM}, s2, 5")
        a("s_and_b32 s16, s2, 7")
        a("s_cmp_eq_u32 s16, 3")
        a(f"s_cselect_b32 s16, 5, s{S_TEAM}")
        a(f"s_mov_b32 s{S_TEAM}, s16")
    if "time" in opt: a("s_memrealtime s[92:93]")
    a("v_lshrrev_b32 v1, 6, v0")
    a(f"s_lshr_b32 s{S_H}, s2, 3")
    a(f"v_readfirstlane_b32 s{S_W}, v1")
    a(f"s_mov_b32 s{S_CLM}, 0")
    a("s_waitcnt lgkmcnt(0)")
    a(f"s_mov_b32 s{S_DBG}, s48")
    a(f"s_mov_b32 s{S_DBG+1}, s49")
    srd(a, S_WS, 50, WS_SIZE)
    a.label("L_role")

def emit_overflow(a):
    a.label("L_overflow")
    a("s_waitcnt vmcnt(0) lgkmcnt(0)")
    a("s_barrier")
    a("v_mov_b32 v2, 0"); a("v_mov_b32 v3, 1"); a("v_mov_b32 v5, 0")
    a(f"s_cmp_lg_u32 s{S_W}, 0")
    a("s_cbranch_scc1 L_ovw")
    a("s_mov_b64 exec, 1")
    a(f"global_atomic_add v4, v2, v3, {sr(S_DBG,2)} offset:{4*D_OVF} sc0")
    a("s_waitcnt vmcnt(0)")
    a("ds_write_b32 v5, v4")
    a("s_waitcnt lgkmcnt(0)")
    a("s_mov_b64 exec, -1")
    a.label("L_ovw")
    a("s_barrier")
    a("ds_read_b32 v4, v5")
    a("s_waitcnt lgkmcnt(0)")
    a("v_readfirstlane_b32 s18, v4")
    a("s_barrier")
    a("v_and_b32 v24, 31, v0"); a("v_lshlrev_b32 v24, 2, v24")
    a("s_mov_b32 s17, 0")
    a.label("L_ov")
    read_counts(a)
    sum_arrivals(a, "v25", 19, 20)
    a("s_cmp_ge_u32 s19, 256")
    a("s_cbranch_scc1 L_ovok")
    a("s_sleep 32")
    a("s_add_u32 s17, s17, 1")
    a("s_cmp_lt_u32 s17, 50000")
    a("s_cbranch_scc1 L_ov")
    a("s_branch L_exit")
    a.label("L_ovok")
    for x in range(8):
        a(f"v_readlane_b32 s20, v25, {0 if x == 0 else 15 + x}")
        a(f"s_mov_b32 s{S_TEAM}, {x}")
        a("s_nop 1")
        a("s_bcnt0_i32_b32 s19, s20")
        a("s_cmp_lt_u32 s18, s19")
        a("s_cbranch_scc1 L_ovf")
        a("s_sub_u32 s18, s18, s19")
    a("s_branch L_exit")
    a.label("L_ovf")
    a("s_cmp_eq_u32 s18, 0")
    a("s_cbranch_scc1 L_ovg")
    a("s_add_u32 s19, s20, 1")
    a("s_or_b32 s20, s20, s19")
    a("s_sub_u32 s18, s18, 1")
    a("s_branch L_ovf")
    a.label("L_ovg")
    a(f"s_ff0_i32_b32 s{S_H}, s20")
    a(f"s_and_b32 s{S_H}, s{S_H}, 31")
    a("s_branch L_role")

def emit_mode(a, opt, slow_label, va="v24", vb="v25"):
    if "fakexcc" in opt or "slow" in opt:
        a(f"s_branch {slow_label}")
        return
    l = a.uid("md")
    a(f"v_mbcnt_lo_u32_b32 {va}, -1, 0")
    a(f"v_and_b32 {va}, 31, {va}"); a(f"v_lshlrev_b32 {va}, 2, {va}")
    a(f"s_add_u32 s50, s{S_TEAM}, 15")
    a(f"s_cmp_eq_u32 s{S_TEAM}, 0")
    a("s_cselect_b32 s50, 0, s50")
    a("s_mov_b32 s51, 0")
    a.label(l)
    read_counts(a, vb, va)
    a(f"v_readlane_b32 s48, {vb}, s50")
    a("s_nop 1")
    a("s_cmp_eq_u32 s48, -1")
    a(f"s_cbranch_scc1 {l}_ok")
    sum_arrivals(a, vb, 48, 49)
    a("s_cmp_ge_u32 s48, 256")
    a(f"s_cbranch_scc1 {slow_label}")
    a("s_sleep 32")
    a("s_add_u32 s51, s51, 1")
    a("s_cmp_lt_u32 s51, 50000")
    a(f"s_cbranch_scc1 {l}")
    a(f"s_branch {slow_label}")
    a.label(l + "_ok")

def build(opt=()):
    a = Asm()
    hdr = open("cdna_kernels/" + KNAME + ".s.ref").read().split("\n") if "nohdr" not in opt else []
    for l in hdr:
        if l.startswith(";") and "@launch" not in l: a.raw(l)
        elif not l.startswith(";"): break
    a.raw("; @launch grid=(256,1,1) block=(256,1,1) lds=163840")
    a.raw('.amdgcn_target "amdgcn-amd-amdhsa--gfx950"')
    a.raw(".text")
    a.raw(f".globl {KNAME}_kernel")
    a.raw(".p2align 8")
    a.raw(f".type {KNAME}_kernel,@function")
    a.label(f"{KNAME}_kernel")
    emit_entry(a, opt)
    a(f"s_cmp_lg_u32 s{S_TEAM}, 0")
    a("s_cbranch_scc1 L_notR")
    rec.emit_rec_mega(a, opt)
    a("s_branch L_done")
    a.label("L_notR")
    a(f"s_cmp_ge_u32 s{S_TEAM}, {T0_}")
    a("s_cbranch_scc1 L_T")
    for o in opt:
        if o.startswith("gdel"):
            for _ in range(int(o[4:])): a("s_sleep 32")
    gemm.emit_gemm(a, opt)
    a("s_branch L_done")
    emit_overflow(a)
    a.label("L_T")
    a(f"s_mul_i32 s16, s{S_H}, {NT}")
    a(f"s_add_u32 s16, s16, s{S_TEAM}")
    a(f"s_sub_u32 s16, s16, {T0_}")
    import post
    for o in opt:
        if o.startswith("tdel"):
            for _ in range(int(o[4:])): a("s_sleep 32")
    post.emit_post(a, opt)
    a.label("L_done")
    if "time" in opt:
        a("s_memrealtime s[94:95]")
        a("s_memtime s[100:101]")
        a("s_waitcnt vmcnt(0) lgkmcnt(0)")
        a(f"s_cmp_lg_u32 s{S_W}, 0")
        a("s_cbranch_scc1 L_exit")
        a(f"s_lshl_b32 s48, s{S_TEAM}, 5")
        a(f"s_add_u32 s48, s48, s{S_H}")
        a("s_lshl_b32 s48, s48, 8")
        a(f"s_add_u32 s48, s48, {hex(WS_STAMP)}")
        a("v_mov_b32 v2, 0")
        a("s_mov_b64 exec, 1")
        for i in range(18):
            a(f"v_mov_b32 v3, s{84+i}")
            a(f"buffer_store_dword v3, v2, {sr(S_WS,4)}, s48 offen offset:{4*i}")
        for i in range(8):
            a(f"v_mov_b32 v3, s{76+i}")
            a(f"buffer_store_dword v3, v2, {sr(S_WS,4)}, s48 offen offset:{80+4*i}")
        a("s_mov_b64 exec, -1")
        a("v_mbcnt_lo_u32_b32 v2, -1, 0")
        a("v_lshlrev_b32 v2, 2, v2")
        a("s_mov_b64 exec, 0xffffffff")
        a(f"buffer_store_dword v143, v2, {sr(S_WS,4)}, s48 offen offset:128")
        a("s_waitcnt vmcnt(0)")
    a.label("L_exit")
    a("s_endpgm")
    a.raw('.section .rodata,"a"')
    a.raw(".p2align 6")
    a.raw(f".amdhsa_kernel {KNAME}_kernel")
    for l in ["next_free_vgpr 512", "next_free_sgpr 102", "accum_offset 256", "group_segment_fixed_size 0", "kernarg_size 128",
              "user_sgpr_count 2", "user_sgpr_kernarg_segment_ptr 1", "system_sgpr_workgroup_id_x 1", "float_denorm_mode_32 3"]:
        a.raw("  .amdhsa_" + l)
    a.raw(".end_amdhsa_kernel")
    return a.text()

if __name__ == "__main__":
    out = sys.argv[1]
    t = build(sys.argv[2:])
    open(out, "w").write(t)
    errs = check_hazards(t)
    for e in errs: print("HAZARD", e)
    print("lines", t.count("\n"), "bytes", len(t), "hazards", len(errs))
```

```python
import sys
from common import *
import rec, pre, gemm
L_BOOT = 163840 - 64

def read_counts(a, vdst="v25", vaddr="v24"):
    a(f"global_load_dword {vdst}, {vaddr}, {sr(S_DBG,2)} sc1")
    a("s_waitcnt vmcnt(0)")

def sum_arrivals(a, vb, dst, tmp):
    a(f"v_readlane_b32 s{dst}, {vb}, {D_OVF}")
    for x in range(8):
        a(f"v_readlane_b32 s{tmp}, {vb}, {0 if x == 0 else 15 + x}")
        a("s_nop 1")
        a(f"s_bcnt1_i32_b32 s{tmp}, s{tmp}")
        a(f"s_add_u32 s{dst}, s{dst}, s{tmp}")

def emit_entry(a, opt):
    a("s_cmp_ge_u32 s2, 256")
    a("s_cbranch_scc1 L_exit")
    a("s_load_dwordx4 s[48:51], s[0:1], 112")
    a(f"s_getreg_b32 s{S_TEAM}, hwreg(HW_REG_XCC_ID)")
    a(f"s_and_b32 s{S_TEAM}, s{S_TEAM}, 7")
    if "fakexcc" in opt:
        a(f"s_lshr_b32 s{S_TEAM}, s2, 5")
        a("s_and_b32 s16, s2, 7")
        a("s_cmp_eq_u32 s16, 3")
        a(f"s_cselect_b32 s16, 5, s{S_TEAM}")
        a(f"s_mov_b32 s{S_TEAM}, s16")
    if "time" in opt: a("s_memrealtime s[92:93]")
    a("v_lshrrev_b32 v1, 6, v0")
    a(f"s_lshr_b32 s{S_H}, s2, 3")
    a(f"v_readfirstlane_b32 s{S_W}, v1")
    a(f"s_mov_b32 s{S_CLM}, 0")
    a("s_waitcnt lgkmcnt(0)")
    a(f"s_mov_b32 s{S_DBG}, s48")
    a(f"s_mov_b32 s{S_DBG+1}, s49")
    srd(a, S_WS, 50, WS_SIZE)
    a.label("L_role")

def emit_overflow(a):
    a.label("L_overflow")
    a("s_waitcnt vmcnt(0) lgkmcnt(0)")
    a("s_barrier")
    a("v_mov_b32 v2, 0"); a("v_mov_b32 v3, 1"); a("v_mov_b32 v5, 0")
    a(f"s_cmp_lg_u32 s{S_W}, 0")
    a("s_cbranch_scc1 L_ovw")
    a("s_mov_b64 exec, 1")
    a(f"global_atomic_add v4, v2, v3, {sr(S_DBG,2)} offset:{4*D_OVF} sc0")
    a("s_waitcnt vmcnt(0)")
    a("ds_write_b32 v5, v4")
    a("s_waitcnt lgkmcnt(0)")
    a("s_mov_b64 exec, -1")
    a.label("L_ovw")
    a("s_barrier")
    a("ds_read_b32 v4, v5")
    a("s_waitcnt lgkmcnt(0)")
    a("v_readfirstlane_b32 s18, v4")
    a("s_barrier")
    a("v_and_b32 v24, 31, v0"); a("v_lshlrev_b32 v24, 2, v24")
    a("s_mov_b32 s17, 0")
    a.label("L_ov")
    read_counts(a)
    sum_arrivals(a, "v25", 19, 20)
    a("s_cmp_ge_u32 s19, 256")
    a("s_cbranch_scc1 L_ovok")
    a("s_sleep 32")
    a("s_add_u32 s17, s17, 1")
    a("s_cmp_lt_u32 s17, 50000")
    a("s_cbranch_scc1 L_ov")
    a("s_branch L_exit")
    a.label("L_ovok")
    for x in range(8):
        a(f"v_readlane_b32 s20, v25, {0 if x == 0 else 15 + x}")
        a(f"s_mov_b32 s{S_TEAM}, {x}")
        a("s_nop 1")
        a("s_bcnt0_i32_b32 s19, s20")
        a("s_cmp_lt_u32 s18, s19")
        a("s_cbranch_scc1 L_ovf")
        a("s_sub_u32 s18, s18, s19")
    a("s_branch L_exit")
    a.label("L_ovf")
    a("s_cmp_eq_u32 s18, 0")
    a("s_cbranch_scc1 L_ovg")
    a("s_add_u32 s19, s20, 1")
    a("s_or_b32 s20, s20, s19")
    a("s_sub_u32 s18, s18, 1")
    a("s_branch L_ovf")
    a.label("L_ovg")
    a(f"s_ff0_i32_b32 s{S_H}, s20")
    a(f"s_and_b32 s{S_H}, s{S_H}, 31")
    a("s_branch L_role")

def emit_mode(a, opt, slow_label, va="v24", vb="v25"):
    if "fakexcc" in opt or "slow" in opt:
        a(f"s_branch {slow_label}")
        return
    l = a.uid("md")
    a(f"v_mbcnt_lo_u32_b32 {va}, -1, 0")
    a(f"v_and_b32 {va}, 31, {va}"); a(f"v_lshlrev_b32 {va}, 2, {va}")
    a(f"s_add_u32 s50, s{S_TEAM}, 15")
    a(f"s_cmp_eq_u32 s{S_TEAM}, 0")
    a("s_cselect_b32 s50, 0, s50")
    a("s_mov_b32 s51, 0")
    a.label(l)
    read_counts(a, vb, va)
    a(f"v_readlane_b32 s48, {vb}, s50")
    a("s_nop 1")
    a("s_cmp_eq_u32 s48, -1")
    a(f"s_cbranch_scc1 {l}_ok")
    sum_arrivals(a, vb, 48, 49)
    a("s_cmp_ge_u32 s48, 256")
    a(f"s_cbranch_scc1 {slow_label}")
    a("s_sleep 32")
    a("s_add_u32 s51, s51, 1")
    a("s_cmp_lt_u32 s51, 50000")
    a(f"s_cbranch_scc1 {l}")
    a(f"s_branch {slow_label}")
    a.label(l + "_ok")

def build(opt=()):
    a = Asm()
    hdr = open("cdna_kernels/" + KNAME + ".s.ref").read().split("\n") if "nohdr" not in opt else []
    for l in hdr:
        if l.startswith(";") and "@launch" not in l: a.raw(l)
        elif not l.startswith(";"): break
    a.raw("; @launch grid=(256,1,1) block=(256,1,1) lds=163840")
    a.raw('.amdgcn_target "amdgcn-amd-amdhsa--gfx950"')
    a.raw(".text")
    a.raw(f".globl {KNAME}_kernel")
    a.raw(".p2align 8")
    a.raw(f".type {KNAME}_kernel,@function")
    a.label(f"{KNAME}_kernel")
    emit_entry(a, opt)
    a(f"s_cmp_lg_u32 s{S_TEAM}, 0")
    a("s_cbranch_scc1 L_notR")
    rec.emit_rec_mega(a, opt)
    a("s_branch L_done")
    a.label("L_notR")
    a(f"s_cmp_ge_u32 s{S_TEAM}, {T0_}")
    a("s_cbranch_scc1 L_T")
    for o in opt:
        if o.startswith("gdel"):
            for _ in range(int(o[4:])): a("s_sleep 32")
    gemm.emit_gemm(a, opt)
    a("s_branch L_done")
    emit_overflow(a)
    a.label("L_T")
    a(f"s_mul_i32 s16, s{S_H}, {NT}")
    a(f"s_add_u32 s16, s16, s{S_TEAM}")
    a(f"s_sub_u32 s16, s16, {T0_}")
    import post
    for o in opt:
        if o.startswith("tdel"):
            for _ in range(int(o[4:])): a("s_sleep 32")
    post.emit_post(a, opt)
    a.label("L_done")
    if "time" in opt and "dbgtime" not in opt:
        a("s_memrealtime s[94:95]")
        a("s_memtime s[100:101]")
        a("s_waitcnt vmcnt(0) lgkmcnt(0)")
        a(f"s_cmp_lg_u32 s{S_W}, 0")
        a("s_cbranch_scc1 L_exit")
        a(f"s_lshl_b32 s48, s{S_TEAM}, 5")
        a(f"s_add_u32 s48, s48, s{S_H}")
        a("s_lshl_b32 s48, s48, 8")
        a(f"s_add_u32 s48, s48, {hex(WS_STAMP)}")
        a("v_mov_b32 v2, 0")
        a("s_mov_b64 exec, 1")
        for i in range(18):
            a(f"v_mov_b32 v3, s{84+i}")
            a(f"buffer_store_dword v3, v2, {sr(S_WS,4)}, s48 offen offset:{4*i}")
        for i in range(8):
            a(f"v_mov_b32 v3, s{76+i}")
            a(f"buffer_store_dword v3, v2, {sr(S_WS,4)}, s48 offen offset:{80+4*i}")
        a("s_mov_b64 exec, -1")
        a("v_mbcnt_lo_u32_b32 v2, -1, 0")
        a("v_lshlrev_b32 v2, 2, v2")
        a("s_mov_b64 exec, 0xffffffff")
        a(f"buffer_store_dword v143, v2, {sr(S_WS,4)}, s48 offen offset:128")
        a("s_waitcnt vmcnt(0)")
    if "dbgtime" in opt:
        a("s_memrealtime s[94:95]"); a("s_memtime s[100:101]")
        a("s_waitcnt vmcnt(0) lgkmcnt(0)")
        a(f"s_or_b32 s48, s{S_W}, s{S_H}")
        a("s_cbranch_scc1 L_exit")
        a("s_mov_b32 s50, 16")
        a(f"s_cmp_eq_u32 s{S_TEAM}, 0")
        a("s_cbranch_scc1 L_dt")
        a("s_mov_b32 s50, 40")
        a(f"s_cmp_lg_u32 s{S_TEAM}, 6")
        a("s_cbranch_scc1 L_exit")
        a.label("L_dt")
        a("v_mov_b32 v2, s50")
        a("s_mov_b64 exec, 1")
        a("s_sub_u32 s84, s84, s92"); a("s_sub_u32 s86, s86, s92"); a("s_sub_u32 s96, s94, s96"); a("s_sub_u32 s94, s94, s92"); a("s_sub_u32 s100, s100, s98")
        for i, r in enumerate((84, 86, 94, 96, 100)):
            a(f"v_mov_b32 v3, s{r}")
            a(f"global_store_dword v2, v3, {sr(S_DBG,2)} offset:{4*i}")
        a("s_waitcnt vmcnt(0)")
    a.label("L_exit")
    a("s_endpgm")
    a.raw('.section .rodata,"a"')
    a.raw(".p2align 6")
    a.raw(f".amdhsa_kernel {KNAME}_kernel")
    for l in ["next_free_vgpr 512", "next_free_sgpr 102", "accum_offset 256", "group_segment_fixed_size 0", "kernarg_size 128",
              "user_sgpr_count 2", "user_sgpr_kernarg_segment_ptr 1", "system_sgpr_workgroup_id_x 1", "float_denorm_mode_32 3"]:
        a.raw("  .amdhsa_" + l)
    a.raw(".end_amdhsa_kernel")
    return a.text()

if __name__ == "__main__":
    out = sys.argv[1]
    t = build(sys.argv[2:])
    open(out, "w").write(t)
    errs = check_hazards(t)
    for e in errs: print("HAZARD", e)
    print("lines", t.count("\n"), "bytes", len(t), "hazards", len(errs))
```

```python
from asmlib import *

KNAME = "adaLN_cond__memory_aug_recurrent_mem_tr__glu_gated_bilinear__prompt"

HSTR    = 65 * 16384
WS_KV   = 0x0000000
QSTR    = 65 * 8192
WS_QX   = 0x4000000
MSTR    = 65 * 4096
WS_KM   = 0x6000000
WS_PART = 0x6C00000
WS_MEM  = 0x6C80000
WS_STAMP= 0x6D00000
WS_H    = 0x7000000
WS_MOD  = 0x7200000
WS_FLAG = 0x7210000
NT, T0_ = 4, 4
WS_P1   = 0x8000000
WS_ACT  = 0x7800000
WS_H2   = 0x7C00000
D_CNT0, D_RTB = 0, 1
D_CNT1 = 16
D_MOD1, D_LN1 = 32, 40
D_INIT = 48
D_PRE = 56
N_LN1 = 32
D_MOD2 = 57
D_RW = 8
S_WS = 4
S_T  = 8
S_DBG = 12
S_H, S_W = 14, 15
S_TEAM = 3
S_CLM = 75
D_OVF = 24
WS_SIZE = 0x10000000

class VmQ:
    def __init__(self, a): self.a = a; self.q = []
    def issue(self, tag, n=1): self.q += [tag] * n
    def wait(self, tag):
        idx = max(i for i, t in enumerate(self.q) if t == tag)
        n = len(self.q) - 1 - idx
        assert n <= 63
        self.a(f"s_waitcnt vmcnt({n})")
        self.q = self.q[idx + 1:]
    def clone(self, a=None):
        o = VmQ(a or self.a); o.q = list(self.q); return o

def lane_expr(a, dst, src, terms, const=0, tmp="v15", sadd=None):
    first = True
    for (sr_, w, sl) in terms:
        a(f"v_bfe_u32 {tmp}, {src}, {sr_}, {w}")
        if first:
            a(f"v_lshlrev_b32 {dst}, {sl}, {tmp}"); first = False
        else:
            a(f"v_lshl_add_u32 {dst}, {tmp}, {sl}, {dst}")
    if const:
        a(f"v_add_u32 {dst}, {const}, {dst}")
    if sadd:
        a(f"v_add_u32 {dst}, {sadd}, {dst}")

def srd(a, d, ptr, nbytes):
    a(f"s_mov_b32 s{d}, s{ptr}")
    a(f"s_and_b32 s{d+1}, s{ptr+1}, 0xffff")
    a(f"s_mov_b32 s{d+2}, {hex(nbytes)}")
    a(f"s_mov_b32 s{d+3}, 0x00020000")

def sexpr(a, dst, terms, const=0, tmp=49):
    first = True
    for (reg, sr_, w, sl) in terms:
        t = dst if first else tmp
        a(f"s_bfe_u32 s{t}, s{reg}, {hex(sr_ | (w << 16))}")
        if sl: a(f"s_lshl_b32 s{t}, s{t}, {sl}")
        if not first: a(f"s_add_u32 s{dst}, s{dst}, s{t}")
        first = False
    if const: a(f"s_add_u32 s{dst}, s{dst}, {hex(const)}")

class LQ:
    def __init__(s): s.q = []
    def issue(s, tag): s.q.append(tag)
    def wait(s, tag):
        if tag not in s.q: return ""
        idx = max(i for i, t in enumerate(s.q) if t == tag)
        n = min(len(s.q) - 1 - idx, 15)
        s.q = s.q[idx + 1:]
        return f"s_waitcnt lgkmcnt({n})"

def dbg_arrive(a, idx, va="v24", vb="v25", soff=None):
    a(f"v_mov_b32 {va}, {('s%d' % soff) if soff is not None else 0}")
    a(f"v_mov_b32 {vb}, 1")
    a("s_mov_b64 exec, 1")
    a(f"global_atomic_add {va}, {vb}, {sr(S_DBG,2)} offset:{4*idx}")
    a("s_mov_b64 exec, -1")

def dbg_wait(a, idx, target, va="v24", vb="v25", st=48, sc=49, soff=None, limit=100000, sleep=8):
    l = a.uid("dw")
    a(f"s_cmp_lg_u32 s{S_W}, 0")
    a(f"s_cbranch_scc1 {l}_ok")
    a(f"v_mov_b32 {va}, {('s%d' % soff) if soff is not None else 0}")
    a(f"s_mov_b32 s{sc}, 0")
    a("s_mov_b64 exec, 1")
    a.label(l)
    a(f"global_load_dword {vb}, {va}, {sr(S_DBG,2)} offset:{4*idx} sc1")
    a("s_waitcnt vmcnt(0)")
    a(f"v_readfirstlane_b32 s{st}, {vb}")
    a(f"s_cmp_ge_u32 s{st}, {target}")
    a(f"s_cbranch_scc1 {l}_x")
    a(f"s_sleep {sleep}")
    a(f"s_add_u32 s{sc}, s{sc}, 1")
    a(f"s_cmp_lt_u32 s{sc}, {limit}")
    a(f"s_cbranch_scc1 {l}")
    a.label(l + "_x")
    a("s_mov_b64 exec, -1")
    a.label(l + "_ok")
    a("s_barrier")

def f32bits(x):
    import struct
    return hex(struct.unpack('<I', struct.pack('<f', x))[0])

def tstamp(a, opt, idx, reg="v143"):
    if "time" in opt and "dbgtime" not in opt and not ("nots" in opt and idx < 16):
        a("s_memrealtime s[70:71]")
        a("s_waitcnt lgkmcnt(0)")
        a(f"v_writelane_b32 {reg}, s70, {idx}")

def claim(a):
    l = a.uid("cl")
    a(f"s_or_b32 s48, s{S_CLM}, s{S_W}")
    a(f"s_cbranch_scc1 {l}")
    a(f"s_lshl_b32 s48, s{S_TEAM}, 2")
    a("s_add_u32 s48, s48, 60")
    a(f"s_cmp_eq_u32 s{S_TEAM}, 0")
    a("s_cselect_b32 s48, 0, s48")
    a(f"s_lshl_b32 s49, 1, s{S_H}")
    a("v_mov_b32 v124, s48"); a("v_mov_b32 v125, s49")
    a("s_mov_b64 exec, 1")
    a(f"global_atomic_or v126, v124, v125, {sr(S_DBG,2)} sc0")
    a("s_mov_b64 exec, -1")
    a.label(l)

def verify_claim(a, nvm, slot):
    l = a.uid("vc")
    a(f"s_cmp_lg_u32 s{S_CLM}, 0")
    a(f"s_cbranch_scc1 {l}_done")
    a(f"v_mov_b32 v125, {slot}")
    a(f"s_cmp_lg_u32 s{S_W}, 0")
    a(f"s_cbranch_scc1 {l}_w")
    a(f"s_waitcnt vmcnt({nvm})")
    a("s_mov_b64 exec, 1")
    a("ds_write_b32 v125, v126")
    a("s_mov_b64 exec, -1")
    a("s_waitcnt lgkmcnt(0)")
    a.label(l + "_w")
    a("s_barrier")
    a("ds_read_b32 v124, v125")
    a("s_waitcnt lgkmcnt(0)")
    a("v_readfirstlane_b32 s48, v124")
    a(f"s_mov_b32 s{S_CLM}, 1")
    a("s_nop 2")
    a(f"s_bitcmp1_b32 s48, s{S_H}")
    a("s_cbranch_scc1 L_overflow")
    a.label(l + "_done")

def wait_rec_loaded(a, first=0, va="v44", vb="v45", limit=12):
    l = a.uid("wr")
    a(f"s_cmp_lg_u32 s{S_W}, 0")
    a(f"s_cbranch_scc1 {l}_ok")
    for _ in range(first): a("s_sleep 64")
    a(f"v_mov_b32 {va}, 0")
    a("s_mov_b32 s49, 0")
    a("s_mov_b64 exec, 1")
    a.label(l)
    a(f"global_load_dword {vb}, {va}, {sr(S_DBG,2)} sc1")
    a("s_waitcnt vmcnt(0)")
    a(f"v_readfirstlane_b32 s48, {vb}")
    a("s_cmp_eq_u32 s48, -1")
    a(f"s_cbranch_scc1 {l}_x")
    a("s_sleep 48")
    a("s_add_u32 s49, s49, 1")
    a(f"s_cmp_lt_u32 s49, {limit}")
    a(f"s_cbranch_scc1 {l}")
    a.label(l + "_x")
    a("s_mov_b64 exec, -1")
    a.label(l + "_ok")
    a("s_barrier")
```

```python
from common import *
def emit_gemm(a, opt=()):
    a.c("==== G role: s3 = team (2: K, 3: V), s14 = head ====")
    LE = lambda *x, **k: lane_expr(a, *x, tmp="v31", **k)
    WS = sr(S_WS, 4)
    def geti(p, d):
        for o in opt:
            if o.startswith(p) and o[len(p):].isdigit(): return int(o[len(p):])
        return d
    S_OUT, S_OUT2, S_QO, S_HS, S_M0, S_SEG, S_FL, S_HT, S_DONE, S_PO, S_QO2 = 17, 18, 19, 20, 21, 22, 23, 24, 25, 26, 27
    a("s_load_dwordx4 s[32:35], s[0:1], 24")
    a("s_load_dwordx2 s[36:37], s[0:1], 16")
    LE("v28", "v0", [(4, 2, 5)])
    LE("v29", "v0", [(0, 4, 4)])
    a("v_xor_b32 v28, v28, v29")
    LE("v30", "v0", [(4, 2, 13)])
    a("v_add_u32 v5, v28, v30")
    a("v_xor_b32 v6, 128, v5")
    sexpr(a, 50, [(S_H, 0, 5, 8), (S_W, 0, 2, 20)])
    sexpr(a, 51, [(S_W, 0, 2, 15)])
    a("s_waitcnt lgkmcnt(0)")
    a(f"s_cmp_eq_u32 s{S_TEAM}, 3")
    a("s_cselect_b32 s32, s34, s32"); a("s_cselect_b32 s33, s35, s33")
    def stage(ptr):
        srd(a, S_T, ptr, 4194304)
        for i in range(32):
            a(f"s_add_u32 m0, s51, {i * 1024}")
            a(f"s_add_u32 s48, s50, {hex(4 * i * 8192)}")
            a(f"buffer_load_dwordx4 v{5 + ((i >> 1) & 1)}, {sr(S_T,4)}, s48 offen lds")
    W = lambda m, t, ks, off=0, n=4: ar(m * 128 + (t * 16 + ks) * 4 + off, n)
    def frags(m):
        a("s_waitcnt vmcnt(0)")
        a("s_barrier")
        for ks in range(16):
            for t in range(2):
                for u in range(2):
                    off = ((32 * ks + 4 * u) * 256) % 65536
                    a(f"ds_read_b64_tr_b16 {W(m, t, ks, 2*u, 2)}, v{8 + t + 2 * (ks // 8)} offset:{off}")
        a("s_waitcnt lgkmcnt(0)")
    stage(32)
    sexpr(a, S_FL, [(S_H, 0, 5, 7), (S_TEAM, 0, 1, 4)], WS_FLAG)
    a("v_and_b32 v4, 63, v0")
    a("v_cmp_eq_u32 vcc, 0, v4")
    a("v_mov_b32 v3, 0x40000000")
    a("s_nop 0")
    a("v_cndmask_b32 v3, v3, 0, vcc")
    LE("v28", "v0", [(4, 2, 11), (2, 2, 8), (0, 1, 3)])
    LE("v29", "v0", [(6, 2, 6), (1, 1, 4)])
    LE("v30", "v0", [(2, 2, 5), (4, 1, 7)])
    a("v_xor_b32 v29, v29, v30")
    a("v_add_u32 v8, v28, v29")
    a("v_xor_b32 v9, 32, v8")
    a("v_add_u32 v10, 0x10000, v8")
    a("v_add_u32 v11, 0x10000, v9")
    frags(0)
    a("s_barrier")
    stage(36)
    claim(a)
    a(f"s_mul_i32 s{S_OUT}, s{S_H}, {HSTR}")
    a(f"s_mul_i32 s{S_QO}, s{S_H}, {QSTR}")
    sexpr(a, 48, [(S_W, 0, 2, 10), (S_TEAM, 0, 1, 12)], WS_QX); a(f"s_add_u32 s{S_QO}, s{S_QO}, s48")
    a(f"s_mul_i32 s{S_PO}, s{S_H}, {MSTR}")
    sexpr(a, 48, [(S_W, 0, 2, 10)], WS_KM); a(f"s_add_u32 s{S_PO}, s{S_PO}, s48")
    for i in range(4): a(f"v_mov_b32 v{12+i}, -1")
    a(f"s_cmp_eq_u32 s{S_TEAM}, 3")
    a("s_cbranch_scc1 G_isv")
    sexpr(a, 48, [(S_W, 1, 1, 12), (S_W, 0, 1, 10)], WS_KV)
    a(f"s_add_u32 s{S_OUT}, s{S_OUT}, s48")
    a(f"s_add_u32 s{S_OUT2}, s{S_OUT}, 8192")
    a("s_branch G_addr")
    a.label("G_isv")
    sexpr(a, 48, [(S_W, 0, 2, 12)], WS_KV + 2048)
    a(f"s_add_u32 s{S_OUT}, s{S_OUT}, s48")
    a(f"s_add_u32 s{S_OUT2}, s{S_OUT}, 1024")
    a.label("G_addr")
    frags(1)
    LE("v1", "v0", [(0, 6, 4)])
    sexpr(a, S_HS, [(S_W, 0, 2, 13)], WS_H)
    sexpr(a, S_M0, [(S_W, 0, 2, 13)])
    verify_claim(a, 0, 163840 - 64)
    tstamp(a, opt, 16)
    dbg_wait(a, D_LN1, N_LN1, sleep=16)
    tstamp(a, opt, 17)
    def dma_list():
        L = []
        for half in range(2):
            for i in range(4):
                pre_ = [f"s_add_u32 m0, s{S_M0}, {half * 4096}", f"s_add_u32 s{S_HT}, s{S_HS}, {half * 4096}"] if i == 0 else []
                L.append(pre_ + [f"buffer_load_dwordx4 v1, {WS}, s{S_HT} offen offset:{1024*i} sc1 lds"])
        L[-1] += [f"s_add_u32 s{S_HS}, s{S_HS}, 32768", f"s_add_u32 s{S_M0}, s{S_M0}, 32768", f"s_and_b32 s{S_M0}, s{S_M0}, 0x1ffff"]
        return L
    for _ in range(3):
        for grp in dma_list():
            for x in grp: a(x)
    a(f"s_mov_b32 s{S_SEG}, 0")
    a(f"s_mov_b32 s{S_DONE}, 0")
    a("v_mov_b32 v2, v1")
    a("s_waitcnt vmcnt(16)")
    a(f"s_cmp_eq_u32 s{S_TEAM}, 3")
    a("s_cbranch_scc1 G_loopV")
    for var in ("K", "V"):
        a.raw(".p2align 6")
        a.label(f"G_loop{var}")
        a("s_barrier")
        lq = LQ()
        HB = lambda rt, ks: 32 + ((ks % 4) * 2 + rt) * 4
        def rd(ks):
            for rt in range(2):
                a(f"ds_read_b128 {vr(HB(rt, ks),4)}, v2 offset:{(rt * 16 + ks) * 1024}"); lq.issue(ks)
        for ks in range(3): rd(ks)
        a(f"s_cmp_lg_u32 s{S_W}, 0")
        a(f"s_cbranch_scc1 G_nf{var}")
        a(f"v_mov_b32 v4, s{S_DONE}")
        a(f"buffer_store_dword v4, v3, {WS}, s{S_FL} offen sc1")
        a.label(f"G_nf{var}")
        dl = dma_list()
        AC = lambda rt, t: 80 + ((rt * 2 + t) * 4 if var == "K" else (t * 2 + rt) * 4)
        qrt = 0 if var == "K" else 1
        gapn = geti("gg", 0)
        for ks in range(16):
            a(lq.wait(ks))
            ml = []
            for rt in range(2):
                for t in range(2):
                    d = vr(AC(rt, t), 4); c = d if ks else "0"
                    if var == "K": ml.append(f"v_mfma_f32_16x16x32_bf16 {d}, {W(0, t, ks)}, {vr(HB(rt, ks),4)}, {c}")
                    else: ml.append(f"v_mfma_f32_16x16x32_bf16 {d}, {vr(HB(rt, ks),4)}, {W(0, t, ks)}, {c}")
            for t in range(2):
                d = vr(96 + 4 * t, 4); c = d if ks else "0"
                ml.append(f"v_mfma_f32_16x16x32_bf16 {d}, {W(1, t, ks)}, {vr(HB(qrt, ks),4)}, {c}")
            for n, m in enumerate(ml):
                a(m)
                if n == 0 and ks + 3 < 16: rd(ks + 3)
                if n == 2 and ks % 2 == 0:
                    for x in dl[ks // 2]: a(x)
                if n == 2 and ks == 15:
                    if var == "K": a(f"buffer_store_dwordx4 v[12:15], v1, {WS}, s{S_PO} offen sc1")
                    a(f"s_add_u32 s{S_PO}, s{S_PO}, 4096")
                if gapn: a(f"s_nop {gapn}")
        a("v_add_u32 v2, 0x8000, v2")
        a("v_and_b32 v2, 0x1ffff, v2")
        a(f"s_mov_b32 s{S_DONE}, s{S_SEG}")
        a(f"s_add_u32 s{S_SEG}, s{S_SEG}, 1")
        a("s_nop 0")
        outs = [(S_OUT, 16384), (S_OUT2, 16384), (S_QO, 8192)]
        for k, (so, stride) in enumerate(outs):
            for i in range(4): a(f"v_cvt_pk_bf16_f32 v{64+4*k+i}, v{80+8*k+2*i}, v{81+8*k+2*i}")
            a(f"buffer_store_dwordx4 {vr(64+4*k,4)}, v1, {WS}, s{so} offen sc1")
            a(f"s_add_u32 s{so}, s{so}, {stride}")
        a(f"s_waitcnt vmcnt({12 if var == 'K' else 11})")
        D = geti("pd", 0)
        if D:
            a(f"s_cmp_lt_u32 s{S_SEG}, {D}")
            a(f"s_cselect_b32 s48, 1, s{S_W}")
            a("s_cmp_lg_u32 s48, 0")
            a(f"s_cbranch_scc1 G_np{var}")
            a(f"s_sub_u32 s49, s{S_PO}, {D*4096}")
            a("s_mov_b32 s50, 0")
            a.label(f"G_pp{var}")
            a(f"buffer_load_dword v4, v3, {WS}, s49 offen sc1")
            a("s_waitcnt vmcnt(0)")
            a("v_readfirstlane_b32 s48, v4")
            a("s_cmp_lg_u32 s48, -1")
            a(f"s_cbranch_scc1 G_np{var}")
            a("s_sleep 8")
            a("s_add_u32 s50, s50, 1")
            a("s_cmp_lt_u32 s50, 200")
            a(f"s_cbranch_scc1 G_pp{var}")
            a.label(f"G_np{var}")
        a(f"s_cmp_eq_u32 s{S_SEG}, {N_LN1//2-3}")
        a(f"s_cbranch_scc1 G_first{var}")
        a(f"s_cmp_eq_u32 s{S_SEG}, 2")
        a(f"s_cbranch_scc1 G_second{var}")
        a(f"s_cmp_lt_u32 s{S_SEG}, 64")
        a(f"s_cbranch_scc1 G_loop{var}")
        a("s_branch G_fin")
        a.label(f"G_first{var}")
        dbg_wait(a, D_PRE, 32, sleep=32)
        a(f"s_branch G_loop{var}")
        a.label(f"G_second{var}")
        a("s_waitcnt vmcnt(0)")
        a(f"s_mov_b32 s{S_DONE}, 2")
        tstamp(a, opt, 18)
        a(f"s_branch G_loop{var}")
    a.label("G_fin")
    a("s_waitcnt vmcnt(0)")
    a("s_barrier")
    a("v_mov_b32 v4, 64")
    a(f"buffer_store_dword v4, v3, {WS}, s{S_FL} offen sc1")
    a("s_waitcnt vmcnt(0)")
```

```python
from common import *
from pre import rnd1, rnd2, MASK, S_TID, xsum_g
import math
import common
def tstamp(a, opt, idx):
    if "midst" in opt and idx < 16 and "time" in opt:
        l = a.uid("ts")
        a("s_cselect_b32 s76, 1, 0")
        a(f"s_cmp_ge_u32 s{S_SEG}, 52"); a(f"s_cbranch_scc1 {l}")
        common.tstamp(a, opt, idx, "v47")
        a.label(l)
        a("s_cmp_lg_u32 s76, 0")
    else: common.tstamp(a, opt, idx, "v47")

S_X, S_O = 20, 24
S_SEG, S_TAG, S_PC, S_PMAX, S_SC, S_L2E = 28, 29, 30, 31, 18, 19
S_P1S, S_P1L, S_P1S2 = 52, 53, 54
S_SLOT, S_PSLOT = 55, 56
S_H2B, S_H2O, S_ACTW, S_ACTR = 57, 58, 59, 60
S_KV, S_Q, S_KM, S_KMV, S_ROW, S_OUT, S_FLG, S_HAVE, S_X2R = 61, 62, 63, 64, 65, 66, 67, 68, 69
S_MKV, S_MQ, S_MODE = 72, 73, 74
vL16, vCol, vP, vKw, vKr, vHg, vHw, vHr, vOw, vZero, vQr, vVr, vEw, vEr, vEo = ["v%d" % i for i in range(1, 16)]
MC = 16
BIAS, SEL = 24, 32
vX2g = "v36"
XR = 37
T0, T1, T2 = 38, 39, 40
L_O, L_ST, L_E, L_KV, L_Q, L_K, L_H = 0, 16384, 20480, 32768, 65536, 81920, 98304
FS, RTS = 1088, 17408
WoF = lambda ct, ks, off=0, n=4: ar((ct * 8 + ks) * 4 + off, n)
GF = lambda m, ks, off=0, n=4: ar(128 + (m * 16 + ks) * 4 + off, n)
DF = lambda t, ks, off=0, n=4: vr(144 + (t * 14 + ks) * 4 + off, n)

def wave_sum(a, x, t):
    a("s_nop 1")
    for ror in (1, 2, 4, 8):
        a(f"v_add_f32_dpp v{x}, v{x}, v{x} row_ror:{ror} row_mask:0xf bank_mask:0xf")
        if ror < 8: a("s_nop 1")
    xsum_g(a, x, t)

def emit_post_addr(a, opt=()):
    LE = lambda *x, **k: lane_expr(a, *x, tmp="v47", **k)
    WS = sr(S_WS, 4)
    LE(vL16, "v0", [(0, 6, 4)])
    LE(vCol, "v0", [(6, 2, 8), (2, 2, 6), (5, 1, 5), (0, 2, 3), (4, 1, 2)])
    LE(vP, "v0", [(0, 4, 14), (4, 2, 4)])
    LE(vKw, "v0", [(6, 2, 12), (0, 4, 5), (4, 2, 3)], L_K)
    LE("v48", "v0", [(2, 2, 3)]); a(f"v_xor_b32 {vKw}, {vKw}, v48")
    LE(vKr, "v0", [(6, 2, 12), (0, 6, 3)], L_K)
    LE("v48", "v0", [(4, 2, 3)]); a(f"v_xor_b32 {vKr}, {vKr}, v48")
    LE(vHg, "v0", [(4, 2, 11), (6, 2, 8), (0, 4, 4)])
    LE("v48", "v0", [(6, 2, 2), (2, 2, 0)])
    a(f"v_mul_u32_u24 {vHw}, {FS}, v48")
    a("v_and_b32 v48, 3, v0"); a("v_mul_u32_u24 v48, 272, v48"); a(f"v_add_u32 {vHw}, {vHw}, v48")
    LE("v48", "v0", [(4, 2, 4)], L_H); a(f"v_add_u32 {vHw}, {vHw}, v48")
    a("v_bfe_u32 v48, v0, 4, 2"); a(f"v_mul_u32_u24 {vHr}, 272, v48")
    LE("v48", "v0", [(0, 4, 4)], L_H); a(f"v_add_u32 {vHr}, {vHr}, v48")
    LE(vOw, "v0", [(6, 1, 13), (7, 1, 12), (0, 6, 4)], L_O)
    a(f"v_mov_b32 {vZero}, 0")
    LE(vQr, "v0", [(6, 2, 12), (0, 6, 4)], L_Q)
    LE(vVr, "v0", [(7, 1, 14), (0, 6, 4)], L_KV)
    LE(vEw, "v0", [(6, 2, 11), (0, 6, 4)], L_E)
    LE(vEr, "v0", [(3, 1, 10), (1, 2, 8), (4, 4, 4), (0, 1, 3)], L_E)
    LE(vEo, "v0", [(4, 4, 10), (0, 4, 2)])
    LE(vX2g, "v0", [(4, 4, 11), (0, 4, 2)])
    a(f"s_sub_u32 s50, s{S_TEAM}, {T0_}")
    sexpr(a, S_P1S, [(50, 0, 3, 20), (S_H, 0, 1, 13), (S_W, 1, 1, 12), (S_H, 1, 4, 8), (S_W, 0, 1, 7)], WS_P1)
    a(f"s_add_u32 s{S_P1S2}, s{S_P1S}, {16*16384}")
    sexpr(a, S_P1L, [(50, 0, 3, 20), (S_H, 0, 5, 14), (S_W, 0, 2, 12)], WS_P1)
    sexpr(a, S_H2B, [(50, 0, 3, 18)], WS_H2)
    sexpr(a, S_H2O, [(50, 0, 3, 18), (S_H, 0, 5, 11)], WS_H2)
    sexpr(a, S_X2R, [(50, 0, 3, 18), (S_H, 0, 1, 15), (S_H, 1, 4, 6)], WS_H2 + 1024)
    sexpr(a, S_ACTW, [(50, 0, 3, 19), (S_H, 0, 5, 11), (S_W, 1, 1, 10), (S_W, 0, 1, 3)], WS_ACT)
    a(f"s_and_b32 s48, s{S_H}, 1"); a(f"s_mul_i32 s48, s48, {56*1024}")
    a(f"s_mul_i32 s51, s{S_W}, {14*1024}"); a("s_add_u32 s48, s48, s51")
    sexpr(a, S_ACTR, [(50, 0, 3, 19)], WS_ACT); a(f"s_add_u32 s{S_ACTR}, s{S_ACTR}, s48")

def emit_post_weights(a, opt):
    LE = lambda *x, **k: lane_expr(a, *x, tmp="v47", **k)
    WS = sr(S_WS, 4)
    a.c("==== T role: team-buffer init + stationary weights ====")
    a("s_load_dwordx2 s[34:35], s[0:1], 40")
    a("s_load_dwordx4 s[36:39], s[0:1], 64")
    a("s_load_dwordx2 s[40:41], s[0:1], 80")
    emit_post_addr(a, opt)
    import mega
    a(f"s_mov_b32 s{S_MODE}, 1")
    mega.emit_mode(a, opt, "T_init1", "v44", "v45")
    a(f"s_mov_b32 s{S_MODE}, 0")
    for mode, st in ((0, ""), (1, " sc1")):
        a.label(f"T_init{mode}")
        for i in range(2): a(f"v_mov_b32 v{48+i}, -1")
        for i in range(4): a(f"v_mov_b32 v{52+i}, 0")
        for k in range(4):
            a(f"buffer_store_dwordx4 v[52:55], {vL16}, {WS}, s{S_P1L} offen offset:{1024*k}{st}")
        for sl in range(3):
            a(f"s_add_u32 s48, s{S_H2O}, {sl*65536}")
            a(f"buffer_store_dword v48, {vCol}, {WS}, s48 offen{st}")
            a(f"buffer_store_dword v48, {vCol}, {WS}, s48 offen offset:1024{st}")
        a(f"s_cmp_ge_u32 s{S_H}, 28")
        a(f"s_cbranch_scc1 T_nopa{mode}")
        for sl in range(3):
            for rt in range(2):
                a(f"s_add_u32 s48, s{S_ACTW}, {sl*131072 + rt*56*1024}")
                a(f"buffer_store_dwordx2 v[48:49], {vL16}, {WS}, s48 offen{st}")
        a.label(f"T_nopa{mode}")
        if mode == 0: a("s_branch T_initd")
    a.label("T_initd")
    a("s_waitcnt lgkmcnt(0)")
    a("s_barrier")
    LE("v60", "v0", [(3, 3, 10)])
    LE("v61", "v0", [(0, 3, 4)])
    LE("v62", "v0", [(4, 2, 5)])
    a("v_xor_b32 v61, v61, v62")
    a("v_add_u32 v62, v60, v61")
    LE("v64", "v0", [(6, 2, 15), (2, 4, 7), (1, 1, 4), (3, 2, 5), (0, 1, 3)])
    if "nowr" not in opt: wait_rec_loaded(a, first=4)
    tstamp(a, opt, 16)
    sexpr(a, 51, [(S_W, 0, 2, 15)])
    srd(a, S_T, 34, 4194304)
    sexpr(a, 50, [(S_H, 1, 4, 18), (S_H, 0, 1, 9), (S_W, 0, 2, 7)])
    for i in range(32):
        a(f"s_add_u32 m0, s51, {i * 1024}")
        a(f"s_add_u32 s48, s50, {8 * i * 1024}")
        a(f"buffer_load_dwordx4 v62, {sr(S_T,4)}, s48 offen lds")
    a("s_waitcnt vmcnt(32)")
    a("s_barrier")
    a(f"s_cmp_lg_u32 s{S_W}, 0")
    a("s_cbranch_scc1 T_noarr")
    dbg_arrive(a, D_INIT, "v44", "v45")
    a.label("T_noarr")
    a("s_waitcnt vmcnt(0)")
    tstamp(a, opt, 17)
    for ct in range(4):
        a(f"v_xor_b32 v65, {32 * ct}, v64")
        for ks in range(8):
            for u in range(2):
                a(f"ds_read_b64_tr_b16 {WoF(ct, ks, 2*u, 2)}, v65 offset:{(32*ks + 16*u) * 128}")
    a("s_waitcnt lgkmcnt(0)")
    tstamp(a, opt, 18)
    LE("v60", "v0", [(2, 4, 10)])
    LE("v61", "v0", [(0, 2, 4)])
    LE("v62", "v0", [(4, 1, 5)])
    a("v_xor_b32 v61, v61, v62")
    a("v_add_u32 v62, v60, v61")
    srd(a, S_T, 40, 1792 * 1024)
    a(f"s_mul_i32 s50, s{S_W}, {448*1024}")
    sexpr(a, 48, [(S_H, 1, 4, 6)]); a("s_add_u32 s50, s50, s48")
    for i in range(28):
        a(f"s_add_u32 m0, s51, {i * 1024}")
        a(f"s_add_u32 s48, s50, {16 * i * 1024}")
        a(f"buffer_load_dwordx4 v62, {sr(S_T,4)}, s48 offen lds")
    LE("v64", "v0", [(6, 2, 15), (2, 4, 6), (1, 1, 4), (4, 1, 5), (0, 1, 3)])
    a("v_xor_b32 v65, 32, v64")
    a("s_waitcnt vmcnt(0)")
    tstamp(a, opt, 19)
    for t in range(2):
        for ks in range(14):
            for u in range(2):
                a(f"ds_read_b64_tr_b16 {DF(t, ks, 2*u, 2)}, v{64+t} offset:{(32*ks + 16*u) * 64}")
    a("s_waitcnt lgkmcnt(0)")
    a("s_barrier")
    a(f"s_cmp_ge_u32 s{S_H}, 28")
    a("s_cbranch_scc1 T_now")
    tstamp(a, opt, 20)
    a("v_bfe_u32 v60, v0, 3, 3")
    a("v_mul_u32_u24 v60, 3584, v60")
    LE("v61", "v0", [(0, 3, 4)])
    LE("v62", "v0", [(4, 1, 5)])
    a("v_xor_b32 v61, v61, v62")
    a("v_add_u32 v62, v60, v61")
    a("v_xor_b32 v63, 64, v61")
    a("v_add_u32 v63, v60, v63")
    a(f"s_mul_i32 s50, s{S_W}, {128*3584}")
    a(f"s_lshl_b32 s48, s{S_H}, 7")
    a("s_add_u32 s50, s50, s48")
    sexpr(a, 51, [(S_W, 0, 2, 14)])
    for m in range(2):
        srd(a, S_T, 36 + 2 * m, 512 * 3584)
        for i in range(16):
            a(f"s_add_u32 m0, s51, {m * 65536 + i * 1024}")
            a(f"s_add_u32 s48, s50, {8 * i * 3584}")
            a(f"buffer_load_dwordx4 v{62 + (i & 1)}, {sr(S_T,4)}, s48 offen lds")
    LE("v60", "v0", [(4, 2, 10), (2, 2, 7), (0, 1, 3)])
    LE("v61", "v0", [(6, 2, 5), (1, 1, 4)])
    LE("v64", "v0", [(3, 1, 5), (4, 1, 6)])
    a("v_xor_b32 v61, v61, v64")
    a("v_add_u32 v64, v60, v61")
    a("v_add_u32 v65, 0x10000, v64")
    a("s_waitcnt vmcnt(0)")
    a("s_barrier")
    tstamp(a, opt, 21)
    for m in range(2):
        for ks in range(16):
            for u in range(2):
                a(f"ds_read_b64_tr_b16 {GF(m, ks, 2*u, 2)}, v{64+m} offset:{(32*ks + 4*u) * 128}")
    a("s_waitcnt lgkmcnt(0)")
    a.label("T_now")
    a("s_barrier")

def emit_post_final(a, opt):
    LE = lambda *x, **k: lane_expr(a, *x, tmp="v47", **k)
    WS = sr(S_WS, 4)
    a("s_load_dwordx2 s[32:33], s[0:1], 0")
    a("s_load_dwordx2 s[42:43], s[0:1], 104")
    dbg_wait(a, D_PRE, 32, "v44", "v45", sleep=32)
    dbg_wait(a, D_INIT, 32 * NT, "v44", "v45", sleep=32)
    a(f"s_mov_b32 s48, {hex(WS_MOD + 2048)}")
    for i, k in enumerate((0, 2, 1)):
        a(f"buffer_load_dword v{56+i}, {vCol}, {WS}, s48 offen offset:{1024*k} sc1")
    LE("v60", "v0", [(0, 4, 2)])
    sexpr(a, 48, [(S_H, 1, 4, 6)], WS_MOD + 5 * 1024)
    a(f"buffer_load_dword v59, v60, {WS}, s48 offen sc1")
    a("s_waitcnt vmcnt(0) lgkmcnt(0)")
    for i in range(4):
        a(f"v_lshlrev_b32 v{MC+2*i}, 16, v{56+i}")
        a(f"v_and_b32 v{MC+2*i+1}, s{MASK}, v{56+i}")
    a(f"v_add_f32 v{MC+2}, 1.0, v{MC+2}"); a(f"v_add_f32 v{MC+3}, 1.0, v{MC+3}")
    rnd2(a, MC + 2, MC + 3, 47)
    srd(a, S_X, 32, 2048 * 1024)
    srd(a, S_O, 42, 2048 * 1024)
    a("v_and_b32 v60, 3, v0"); a("v_bfe_u32 v61, v0, 2, 2")
    a("v_mov_b32 v62, 0x3f80"); a("v_mov_b32 v63, 0x3f800000")
    a("v_cmp_eq_u32 vcc, 1, v60"); a("s_nop 1"); a("v_cndmask_b32 v62, v62, v63, vcc")
    a("v_cmp_gt_u32 vcc, 2, v60"); a("s_nop 1"); a("v_cndmask_b32 v62, 0, v62, vcc")
    for d in range(4):
        a(f"v_cmp_eq_u32 vcc, {d}, v61"); a("s_nop 1"); a(f"v_cndmask_b32 v{SEL+d}, 0, v62, vcc")
    LE("v60", "v0", [(6, 1, 4), (0, 4, 0)])
    LE("v61", "v0", [(4, 2, 2)])
    a(f"v_mov_b32 v63, {f32bits(-1e30)}")
    for t in range(2):
        for r in range(4):
            a(f"v_add_u32 v62, {16*t + r}, v61")
            a("v_cmp_gt_u32 vcc, v62, v60"); a("s_nop 1")
            a(f"v_cndmask_b32 v{BIAS+4*t+r}, 0, v63, vcc")
    a(f"s_sub_u32 s{S_SEG}, s{S_TEAM}, {T0_}")
    sexpr(a, 50, [(S_H, 1, 4, 1), (S_W, 1, 1, 0)])
    a(f"s_mul_i32 s{S_KV}, s50, {HSTR}")
    sexpr(a, 48, [(S_SEG, 0, 3, 14), (S_W, 0, 1, 13)], WS_KV); a(f"s_add_u32 s{S_KV}, s{S_KV}, s48")
    a(f"s_mul_i32 s{S_Q}, s50, {QSTR}")
    sexpr(a, 48, [(S_SEG, 0, 3, 13), (S_W, 0, 1, 12)], WS_QX); a(f"s_add_u32 s{S_Q}, s{S_Q}, s48")
    sexpr(a, S_MKV, [(S_W, 0, 2, 13)], L_KV)
    sexpr(a, S_MQ, [(S_W, 0, 2, 12)], L_Q)
    a(f"s_mul_i32 s{S_KM}, s50, {MSTR}")
    sexpr(a, 48, [(S_SEG, 0, 3, 12)], WS_KM); a(f"s_add_u32 s{S_KM}, s{S_KM}, s48")
    sexpr(a, S_FLG, [(50, 0, 5, 7)], WS_FLAG)
    sexpr(a, S_ROW, [(S_SEG, 0, 3, 15), (S_H, 0, 5, 10)])
    sexpr(a, S_OUT, [(S_SEG, 0, 3, 15), (S_H, 0, 1, 14), (S_H, 1, 4, 6)])
    a(f"s_mov_b32 s{S_HAVE}, 0")
    a(f"s_mov_b32 s{S_TAG}, 1")
    a(f"s_mov_b32 s{S_SLOT}, 0")
    a(f"s_mov_b32 s{S_PSLOT}, 2")
    a(f"s_mov_b32 s{S_PMAX}, 100000")
    a(f"s_mov_b32 s{S_SC}, {f32bits(128 ** -0.5)}")
    a(f"s_mov_b32 s{S_L2E}, {f32bits(math.log2(math.e))}")

def poll(a, name, loads, check, sleep=3):
    a(f"s_mov_b32 s{S_PC}, 0")
    a.label(name)
    loads()
    check()
    a(f"s_cbranch_vccz {name}_ok")
    a(f"s_sleep {sleep}")
    a(f"s_add_u32 s{S_PC}, s{S_PC}, 1")
    a(f"s_cmp_lt_u32 s{S_PC}, s{S_PMAX}")
    a(f"s_cbranch_scc1 {name}")
    a(f"s_mov_b32 s{S_PMAX}, 1")
    a.label(name + "_ok")

def pf_list():
    WS = sr(S_WS, 4)
    L = []
    for half in range(2):
        for i in range(4):
            L.append(([f"s_add_u32 m0, s{S_MKV}, {half*4096}", f"s_add_u32 s48, s{S_KV}, {half*4096}"] if i == 0 else []) +
                     [f"buffer_load_dwordx4 {vL16}, {WS}, s48 offen offset:{1024*i} sc1 lds"])
    for i in range(4):
        L.append(([f"s_mov_b32 m0, s{S_MQ}", "s_nop 0"] if i == 0 else []) + [f"buffer_load_dwordx4 {vL16}, {WS}, s{S_Q} offen offset:{1024*i} sc1 lds"])
    L.append([f"buffer_load_dword v{XR}, {vCol}, {sr(S_X,4)}, s{S_ROW} offen", f"s_add_u32 s{S_KV}, s{S_KV}, {NT*16384}",
              f"s_add_u32 s{S_Q}, s{S_Q}, {NT*8192}", f"s_add_u32 s{S_ROW}, s{S_ROW}, {NT*32768}"])
    return L

def prefetch(a, name, segreg, body=True):
    WS = sr(S_WS, 4)
    a(f"s_cmp_ge_u32 s{segreg}, 64")
    a(f"s_cbranch_scc1 {name}_skip")
    a(f"s_cmp_gt_u32 s{S_HAVE}, s{segreg}")
    a(f"s_cbranch_scc1 {name}_fok")
    a(f"s_mov_b32 s{S_PC}, 0")
    a.label(name + "_fl")
    a("s_mov_b64 exec, 3")
    a(f"buffer_load_dword v45, {vL16}, {WS}, s{S_FLG} offen sc1")
    a("s_mov_b64 exec, -1")
    a("s_waitcnt vmcnt(0)")
    a(f"v_readlane_b32 s{S_HAVE}, v45, 0"); a("v_readlane_b32 s48, v45, 1")
    a("s_nop 1")
    a(f"s_min_u32 s{S_HAVE}, s{S_HAVE}, s48")
    a(f"s_cmp_gt_u32 s{S_HAVE}, s{segreg}")
    a(f"s_cbranch_scc1 {name}_fok")
    a("s_sleep 8")
    a(f"s_add_u32 s{S_PC}, s{S_PC}, 1")
    a(f"s_cmp_lt_u32 s{S_PC}, s{S_PMAX}")
    a(f"s_cbranch_scc1 {name}_fl")
    a(f"s_mov_b32 s{S_PMAX}, 1")
    a.label(name + "_fok")
    if not body: return
    for g in pf_list():
        for x in g: a(x)
    a.label(name + "_skip")

def emit_post_loop(a, fast, pfx, opt):
    def geti(p, d):
        for o in opt:
            if o.startswith(p) and o[len(p):].isdigit(): return int(o[len(p):])
        return d
    st = "" if fast else " sc1"
    WS = sr(S_WS, 4)
    QF, KX, VX, KF, SS, KMR = 48, 64, 64, 96, 112, 124
    prefetch(a, pfx + "_pf0", S_SEG)
    a("s_waitcnt vmcnt(0)")
    a("s_barrier")
    a.raw(".p2align 6")
    a.label(pfx + "_loop")
    tstamp(a, opt, 0)
    def ldkm():
        for i in range(4): a(f"buffer_load_dwordx4 {vr(KMR+4*i,4)}, {vL16}, {WS}, s{S_KM} offen offset:{1024*i} sc1")
    ldkm()
    for ks in range(4):
        a(f"ds_read_b128 {vr(QF+4*ks,4)}, {vQr} offset:{1024*ks}")
        for t in range(2):
            i = t * 4 + ks
            a(f"ds_read_b128 {vr(KX+4*i,4)}, {vVr} offset:{(i//2)*4096 + (i%2)*1024}")
    for ks in range(4):
        a(f"s_waitcnt lgkmcnt({9-3*ks})")
        for t in range(2):
            d = vr(SS + 4 * t, 4)
            a(f"v_mfma_f32_16x16x32_bf16 {d}, {vr(KX+4*(t*4+ks),4)}, {vr(QF+4*ks,4)}, {d if ks else vr(BIAS+4*t,4)}")
    for i in range(8):
        a(f"ds_read_b128 {vr(VX+4*i,4)}, {vVr} offset:{(i//2)*4096 + 2048 + (i%2)*1024}")
    def scale(regs):
        for i in range(0, len(regs), 2): rnd2(a, regs[i], regs[i+1], T2)
        for r in regs: a(f"v_mul_f32 v{r}, s{S_SC}, v{r}")
        for i in range(0, len(regs), 2): rnd2(a, regs[i], regs[i+1], T2)
    scale(list(range(SS, SS + 8)))
    MX, LX = 41, 46
    a(f"v_max3_f32 v{MX}, v{SS}, v{SS+1}, v{SS+2}"); a(f"v_max3_f32 v{T1}, v{SS+3}, v{SS+4}, v{SS+5}")
    a(f"v_max3_f32 v{MX}, v{MX}, v{SS+6}, v{SS+7}"); a(f"v_max_f32 v{MX}, v{MX}, v{T1}")
    xsum_g(a, MX, T1, "v_max_f32")
    a(f"v_mul_f32 v{T0}, s{S_L2E}, v{MX}")
    for r in range(8): a(f"v_fma_f32 v{SS+r}, v{SS+r}, s{S_L2E}, -v{T0}")
    for r in range(8): a(f"v_exp_f32 v{SS+r}, v{SS+r}")
    a(f"v_add_f32 v{LX}, v{SS}, v{SS+1}"); a(f"v_add_f32 v{T0}, v{SS+2}, v{SS+3}"); a(f"v_add_f32 v{T1}, v{SS+4}, v{SS+5}")
    a(f"v_add_f32 v{T2}, v{SS+6}, v{SS+7}"); a(f"v_add_f32 v{LX}, v{LX}, v{T0}"); a(f"v_add_f32 v{T1}, v{T1}, v{T2}")
    a(f"v_add_f32 v{LX}, v{LX}, v{T1}")
    PX, PM0, OC = 140, 44, 96
    a(f"v_mov_b32 v{PM0+1}, 0")
    tstamp(a, opt, 1)
    a(f"s_mov_b32 s{S_PC}, 0")
    a.label(pfx + "_km")
    a("s_waitcnt vmcnt(0)")
    a(f"v_max3_u32 v{T0}, v{KMR}, v{KMR+4}, v{KMR+8}")
    a(f"v_max_u32 v{T0}, v{T0}, v{KMR+12}")
    a(f"v_cmp_eq_u32 vcc, -1, v{T0}")
    for i in range(4): a(f"ds_write2st64_b32 {vKw}, v{KMR+4*i+1}, v{KMR+4*i+3} offset0:{4*i} offset1:{4*i+2}")
    a(f"s_cbranch_vccz {pfx}_km_ok")
    a(f"s_sleep {geti('tk', 3)}")
    ldkm()
    a(f"s_add_u32 s{S_PC}, s{S_PC}, 1")
    a(f"s_cmp_lt_u32 s{S_PC}, s{S_PMAX}")
    a(f"s_cbranch_scc1 {pfx}_km")
    a(f"s_mov_b32 s{S_PMAX}, 1")
    a("s_waitcnt vmcnt(0)")
    a.label(pfx + "_km_ok")
    tstamp(a, opt, 2)
    for ks in range(4):
        for u in range(2):
            a(f"ds_read_b64_tr_b16 {vr(KF+4*ks+2*u,2)}, {vKr} offset:{1024*ks+512*u}")
    for ks in range(4):
        a(f"s_waitcnt lgkmcnt({6-2*ks})")
        d = vr(SS + 8, 4)
        a(f"v_mfma_f32_16x16x32_bf16 {d}, {vr(KF+4*ks,4)}, {vr(QF+4*ks,4)}, {d if ks else 0}")
    a("s_nop 7")
    scale([SS + 8, SS + 9])
    a(f"v_max3_f32 v{T0}, v{MX}, v{SS+8}, v{SS+9}")
    xsum_g(a, T0, T1, "v_max_f32")
    a(f"v_mul_f32 v{T0}, s{S_L2E}, v{T0}")
    a(f"v_fma_f32 v{MX}, v{MX}, s{S_L2E}, -v{T0}")
    for r in (8, 9): a(f"v_fma_f32 v{SS+r}, v{SS+r}, s{S_L2E}, -v{T0}")
    a(f"v_exp_f32 v{MX}, v{MX}")
    for r in (8, 9): a(f"v_exp_f32 v{SS+r}, v{SS+r}")
    a(f"v_fma_f32 v{LX}, v{LX}, v{MX}, v{SS+8}")
    a(f"v_add_f32 v{LX}, v{LX}, v{SS+9}")
    xsum_g(a, LX, T1)
    a(f"v_rcp_f32 v{LX}, v{LX}")
    a("s_nop 0")
    a(f"v_mul_f32 v42, v{LX}, v{MX}")
    a(f"v_pk_mul_f32 {vr(SS+8,2)}, {vr(SS+8,2)}, {vr(LX,2)} op_sel_hi:[1,0]")
    for r in range(0, 8, 2): a(f"v_pk_mul_f32 {vr(SS+r,2)}, {vr(SS+r,2)}, v[42:43] op_sel_hi:[1,0]")
    a(f"v_cvt_pk_bf16_f32 v{PM0}, v{SS+8}, v{SS+9}")
    for i in range(4): a(f"v_cvt_pk_bf16_f32 v{PX+i}, v{SS+2*i}, v{SS+2*i+1}")
    oc = lambda i: (96 + 4 * i) if i < 4 else (48 + 4 * (i - 4))
    def pk(i2):
        b = oc(2 * i2)
        return [f"v_cvt_pk_bf16_f32 v{SS+4*(i2%2)+k}, v{b+2*k}, v{b+2*k+1}" for k in range(4)] + [f"ds_write_b128 {vOw}, {vr(SS+4*(i2%2),4)} offset:{1024*i2}"]
    for i in range(8):
        a(f"v_mfma_f32_16x16x16_bf16 {vr(oc(i),4)}, {vr(KMR+2*i,2)}, {vr(PM0,2)}, 0")
    for i in range(8):
        a(f"v_mfma_f32_16x16x32_bf16 {vr(oc(i),4)}, {vr(VX+4*i,4)}, {vr(PX,4)}, {vr(oc(i),4)}")
        if i in (3, 5, 7):
            for x in pk((i - 3) // 2): a(x)
    a("s_nop 3")
    for x in pk(3): a(x)
    a("s_waitcnt lgkmcnt(0)"); a("s_barrier")
    OF = 48
    for i in range(16): a(f"ds_read_b128 {vr(OF+4*i,4)}, {vL16} offset:{L_O+1024*i}")
    tstamp(a, opt, 3)
    jobs = [(cq, rt) for rt in range(2) for cq in range(2)]
    def epi(n):
        cq, rt = jobs[n]; ac = 112 + (n % 2) * 8; g = 128 + (n % 2) * 4
        return [f"v_cvt_pk_bf16_f32 v{g+i}, v{ac+2*i}, v{ac+2*i+1}" for i in range(4)] + [f"v_and_or_b32 v{g}, v{g}, -2, s{S_TAG}",
                f"buffer_store_dwordx4 {vr(g,4)}, {vP}, {WS}, s{(S_P1S, S_P1S2)[rt]} offen offset:{64*cq}{st}"]
    for n, (cq, rt) in enumerate(jobs):
        ac = 112 + (n % 2) * 8
        e = epi(n - 1) if n else []
        k = 0
        for ks in range(8):
            if n == 0: a(f"s_waitcnt lgkmcnt({15-ks})")
            if n == 2 and ks == 0: a("s_waitcnt lgkmcnt(0)")
            for u in range(2):
                d = vr(ac + 4 * u, 4)
                a(f"v_mfma_f32_16x16x32_bf16 {d}, {WoF(2*cq+u, ks)}, {vr(OF+4*(rt*8+ks),4)}, {d if ks else 0}")
                k += 1
                if k >= 2:
                    for x in e[2*(k-2):2*(k-1)]: a(x)
    a("s_nop 7")
    for x in epi(3): a(x)
    tstamp(a, opt, 4)
    if geti("t1", 3): a(f"s_sleep {geti('t1', 3)}")
    R = 48
    def ld():
        for i in range(4):
            a(f"buffer_load_dwordx4 {vr(R+4*i,4)}, {vL16}, {WS}, s{S_P1L} offen offset:{1024*i} sc1")
    def ck():
        for i in range(4):
            a(f"s_waitcnt vmcnt({3-i})")
            a(f"v_mfma_f32_16x16x32_bf16 v[112:115], {vr(SEL,4)}, {vr(R+4*i,4)}, {'v[112:115]' if i else 0}")
            a(f"v_xor_b32 v{T1 if i else T0}, s{S_TAG}, v{R+4*i}")
            if i: a(f"v_or_b32 v{T0}, v{T0}, v{T1}")
        a(f"v_and_b32 v{T0}, 1, v{T0}")
        a(f"v_cmp_ne_u32 vcc, 0, v{T0}")
        a(f"v_lshlrev_b32 v116, 16, v{XR}"); a(f"v_and_b32 v117, s{MASK}, v{XR}")
        a(f"s_lshl_b32 s48, s{S_W}, 3"); a("v_mov_b32 v43, s48")
    poll(a, pfx + "_r1", ld, ck, sleep=1)
    tstamp(a, opt, 5)
    rnd2(a, 112, 113, T0)
    a(f"v_mul_f32 v112, v{MC}, v112"); a(f"v_mul_f32 v113, v{MC+1}, v113")
    rnd2(a, 112, 113, T0)
    a("v_add_f32 v116, v116, v112"); a("v_add_f32 v117, v117, v113")
    rnd2(a, 116, 117, 118)
    a(f"s_lshl_b32 s49, s{S_SLOT}, 16"); a(f"s_add_u32 s50, s{S_H2O}, s49")
    a(f"buffer_store_dword v118, {vCol}, {WS}, s50 offen offset:1024{st}")
    a("v_add_f32 v120, v116, v117")
    wave_sum(a, 120, T1)
    a(f"v_mul_f32 v120, {f32bits(1/128)}, v120")
    a("v_sub_f32 v112, v116, v120"); a("v_sub_f32 v113, v117, v120")
    a("v_mul_f32 v121, v112, v112"); a("v_fmac_f32 v121, v113, v113")
    wave_sum(a, 121, T1)
    a(f"ds_write_b64 v43, v[120:121] offset:{L_ST}")
    a("s_waitcnt lgkmcnt(0)"); a("s_barrier")
    a(f"ds_read_b128 v[124:127], {vZero} offset:{L_ST}")
    a(f"ds_read_b128 v[128:131], {vZero} offset:{L_ST+16}")
    a("s_waitcnt lgkmcnt(0)")
    a("v_add_f32 v120, v124, v126"); a("v_add_f32 v121, v128, v130"); a("v_add_f32 v120, v120, v121")
    a("v_mul_f32 v120, 0.25, v120")
    a("v_add_f32 v122, v125, v127"); a("v_add_f32 v123, v129, v131"); a("v_add_f32 v122, v122, v123")
    for r in (124, 126, 128, 130): a(f"v_sub_f32 v{r}, v{r}, v120")
    a("v_mul_f32 v123, v124, v124")
    for r in (126, 128, 130): a(f"v_fmac_f32 v123, v{r}, v{r}")
    a(f"v_mul_f32 v122, {f32bits(1/512)}, v122")
    a("v_fmac_f32 v122, 0.25, v123")
    rnd1(a, 120); rnd1(a, 122)
    a(f"v_add_f32 v122, {f32bits(1e-5)}, v122"); rnd1(a, 122)
    a("v_sqrt_f32 v122, v122")
    a("v_sub_f32 v112, v116, v120"); a("v_sub_f32 v113, v117, v120")
    rnd1(a, 122)
    a("v_rcp_f32 v122, v122")
    rnd2(a, 112, 113, T0)
    a("v_mul_f32 v112, v112, v122"); a("v_mul_f32 v113, v113, v122")
    rnd2(a, 112, 113, T0)
    a(f"v_mul_f32 v112, v112, v{MC+2}"); a(f"v_mul_f32 v113, v113, v{MC+3}")
    rnd2(a, 112, 113, T0)
    a(f"v_add_f32 v112, v112, v{MC+4}"); a(f"v_add_f32 v113, v113, v{MC+5}")
    a(f"v_cvt_pk_bf16_f32 v{T0}, v112, v113")
    a(f"buffer_store_dword v{T0}, {vCol}, {WS}, s50 offen{st}")
    tstamp(a, opt, 6)
    a(f"s_lshl_b32 s48, s{S_PSLOT}, 16"); a(f"s_add_u32 s48, s{S_H2O}, s48")
    a("v_mov_b32 v42, -1"); a("v_mov_b32 v43, -1")
    a(f"buffer_store_dword v42, {vCol}, {WS}, s48 offen{st}")
    a(f"buffer_store_dword v42, {vCol}, {WS}, s48 offen offset:1024{st}")
    a(f"s_add_u32 s51, s{S_SEG}, {NT}")
    a(f"s_cmp_ge_u32 s{S_H}, 28")
    a(f"s_cbranch_scc1 {pfx}_noffn")
    HR = 48
    a(f"s_add_u32 s50, s{S_H2B}, s49")
    def ld():
        for i in range(8):
            a(f"s_add_u32 s48, s50, {i*8192}")
            a(f"buffer_load_dwordx4 {vr(HR+4*i,4)}, {vHg}, {WS}, s48 offen sc1")
    def ck():
        for i in range(8):
            a(f"s_waitcnt vmcnt({7-i})")
            a(f"ds_write_b128 {vHw}, {vr(HR+4*i,4)} offset:{(i//4)*RTS + (i%4)*64}")
            if i: a(f"v_max_u32 v{T0}, v{T0 if i > 1 else HR}, v{HR+4*i}")
        a(f"v_cmp_eq_u32 vcc, -1, v{T0}")
    if geti("t2", 2): a(f"s_sleep {geti('t2', 2)}")
    poll(a, pfx + "_h2", ld, ck, sleep=2)
    tstamp(a, opt, 7)
    a("s_waitcnt lgkmcnt(0)"); a("s_barrier")
    HB = lambda rt, ks: 80 + ((ks % 4) * 2 + rt) * 4
    lq0 = LQ()
    def rd(lq, ks):
        for rt in range(2):
            a(f"ds_read_b128 {vr(HB(rt, ks),4)}, {vHr} offset:{rt*RTS + ks*FS}"); lq.issue(ks)
    for ks in range(3): rd(lq0, ks)
    prefetch(a, pfx + "_pf1", 51, body=False)
    for withpf in (True, False):
        lq = LQ(); lq.q = list(lq0.q)
        pl = pf_list() if withpf else []
        for ks in range(16):
            a(lq.wait(ks))
            n = 0
            for rt in range(2):
                for m in range(2):
                    d = vr(112 + (rt * 2 + m) * 4, 4)
                    a(f"v_mfma_f32_16x16x32_bf16 {d}, {GF(m, ks)}, {vr(HB(rt, ks),4)}, {d if ks else 0}")
                    if n == 0 and ks + 3 < 16: rd(lq, ks + 3)
                    if n == 2 and pl:
                        for x in pl.pop(0): a(x)
                    n += 1
        if withpf:
            a(f"s_branch {pfx}_gud")
            a.label(pfx + "_pf1_skip")
    a.label(pfx + "_gud")
    a(f"s_lshl_b32 s48, s{S_SLOT}, 17"); a(f"s_add_u32 s48, s{S_ACTW}, s48"); a(f"s_add_u32 s50, s48, {56*1024}")
    a("s_nop 0")
    for rt in range(2):
        g0 = 112 + rt * 8; u0 = g0 + 4
        for j in (0, 2): rnd2(a, g0 + j, g0 + j + 1, T0)
        for j in (0, 2): rnd2(a, u0 + j, u0 + j + 1, T0)
        for j in range(4): a(f"v_mul_f32 v{g0+j}, v{g0+j}, v{u0+j}")
        a(f"v_cvt_pk_bf16_f32 v{128+2*rt}, v{g0}, v{g0+1}"); a(f"v_cvt_pk_bf16_f32 v{129+2*rt}, v{g0+2}, v{g0+3}")
        a(f"buffer_store_dwordx2 {vr(128+2*rt,2)}, {vL16}, {WS}, s{(48, 50)[rt]} offen{st}")
    a(f"s_lshl_b32 s48, s{S_PSLOT}, 17"); a(f"s_add_u32 s48, s{S_ACTW}, s48"); a(f"s_add_u32 s50, s48, {56*1024}")
    a(f"buffer_store_dwordx2 v[42:43], {vL16}, {WS}, s48 offen{st}")
    a(f"buffer_store_dwordx2 v[42:43], {vL16}, {WS}, s50 offen{st}")
    if geti("t3", 2): a(f"s_sleep {geti('t3', 2)}")
    a(f"s_branch {pfx}_E")
    a.label(pfx + "_noffn")
    prefetch(a, pfx + "_pf2", 51)
    a("s_sleep 32")
    a.label(pfx + "_E")
    tstamp(a, opt, 8)
    AR = 48
    a(f"s_lshl_b32 s50, s{S_SLOT}, 17"); a(f"s_add_u32 s50, s{S_ACTR}, s50")
    a(f"s_lshl_b32 s49, s{S_SLOT}, 16"); a(f"s_add_u32 s49, s{S_X2R}, s49")
    def ld():
        a(f"buffer_load_dword v41, {vX2g}, {WS}, s49 offen sc1")
        for i in range(14):
            if i % 4 == 0: a(f"s_add_u32 s48, s50, {(i//4)*4096}")
            a(f"buffer_load_dwordx4 {vr(AR+4*i,4)}, {vL16}, {WS}, s48 offen offset:{1024*(i%4)} sc1")
    def ck():
        for i in range(14):
            a(f"s_waitcnt vmcnt({13-i})")
            for t in range(2):
                d = vr(112 + 4 * t, 4)
                a(f"v_mfma_f32_16x16x32_bf16 {d}, {DF(t, i)}, {vr(AR+4*i,4)}, {d if i else 0}")
            a(f"v_max3_u32 v{T0}, v{T0 if i else 41}, v{AR+4*i}, v{AR+4*i+2}")
        a(f"v_cmp_eq_u32 vcc, -1, v{T0}")
        a(f"v_lshlrev_b32 v124, 16, v41"); a(f"v_and_b32 v125, s{MASK}, v41")
    poll(a, pfx + "_act", ld, ck, sleep=2)
    tstamp(a, opt, 9)
    a("s_nop 2")
    a(f"ds_write_b128 {vEw}, v[112:115]"); a(f"ds_write_b128 {vEw}, v[116:119] offset:1024")
    a("s_waitcnt lgkmcnt(0)"); a("s_barrier")
    for w in range(4): a(f"ds_read_b64 {vr(112+2*w,2)}, {vEr} offset:{2048*w}")
    a("s_waitcnt lgkmcnt(0)")
    a("v_add_f32 v112, v112, v114"); a("v_add_f32 v113, v113, v115"); a("v_add_f32 v116, v116, v118"); a("v_add_f32 v117, v117, v119")
    a("v_add_f32 v112, v112, v116"); a("v_add_f32 v113, v113, v117")
    rnd2(a, 112, 113, T0)
    a(f"v_mul_f32 v112, v{MC+6}, v112"); a(f"v_mul_f32 v113, v{MC+7}, v113")
    rnd2(a, 112, 113, T0)
    a("v_add_f32 v112, v124, v112"); a("v_add_f32 v113, v125, v113")
    a(f"v_cvt_pk_bf16_f32 v{T0}, v112, v113")
    a(f"buffer_store_dword v{T0}, {vEo}, {sr(S_O,4)}, s{S_OUT} offen")
    tstamp(a, opt, 10)
    a(f"s_add_u32 s{S_SEG}, s{S_SEG}, {NT}")
    a(f"s_add_u32 s{S_KM}, s{S_KM}, {NT*4096}")
    a(f"s_add_u32 s{S_OUT}, s{S_OUT}, {NT*32768}")
    a(f"s_xor_b32 s{S_TAG}, s{S_TAG}, 1")
    a(f"s_mov_b32 s{S_PSLOT}, s{S_SLOT}")
    a(f"s_add_u32 s{S_SLOT}, s{S_SLOT}, 1")
    a(f"s_cmp_ge_u32 s{S_SLOT}, 3")
    a(f"s_cselect_b32 s{S_SLOT}, 0, s{S_SLOT}")
    a(f"s_cmp_lt_u32 s{S_SEG}, 64")
    a(f"s_cbranch_scc1 {pfx}_loop")
    a("s_waitcnt vmcnt(0)")
    if "time" in opt: a("v_mov_b32 v143, v47")

def emit_post(a, opt):
    import mega, pre
    claim(a)
    verify_claim(a, 0, 163840 - 64)
    a(f"s_mov_b32 s{MASK}, 0xffff0000")
    emit_post_weights(a, opt)
    if "time" in opt: a("s_memrealtime s[84:85]")
    emit_post_final(a, opt)
    if "time" in opt: a("s_memrealtime s[86:87]")
    a(f"s_cmp_lg_u32 s{S_MODE}, 0")
    a("s_cbranch_scc1 T_slow")
    emit_post_loop(a, True, "TF", opt)
    a("s_branch L_done")
    a.label("T_slow")
    emit_post_loop(a, False, "TS", opt)
```

```python
from common import *
from common import tstamp as _ts
import math
S_TID = 16
MASK = 17

def rnd2(a, x, y, p):
    a(f"v_cvt_pk_bf16_f32 v{p}, v{x}, v{y}")
    a(f"v_lshlrev_b32 v{x}, 16, v{p}")
    a(f"v_and_b32 v{y}, s{MASK}, v{p}")
def rnd1(a, x):
    a(f"v_cvt_pk_bf16_f32 v{x}, v{x}, v{x}")
    a(f"v_and_b32 v{x}, s{MASK}, v{x}")
def unpack(a, src, dst, n):
    for d in range(n):
        a(f"v_lshlrev_b32 v{dst+2*d}, 16, v{src+d}")
        a(f"v_and_b32 v{dst+2*d+1}, s{MASK}, v{src+d}")
def xsum_g(a, x, t, op="v_add_f32"):
    a(f"v_mov_b32 v{t}, v{x}"); a("s_nop 1")
    a(f"v_permlane32_swap_b32 v{x}, v{t}"); a(f"{op} v{x}, v{x}, v{t}")
    a(f"v_mov_b32 v{t}, v{x}"); a("s_nop 1")
    a(f"v_permlane16_swap_b32 v{x}, v{t}"); a(f"{op} v{x}, v{x}, v{t}")
def tree(a, regs):
    regs = list(regs)
    while len(regs) > 1:
        nxt = []
        for i in range(0, len(regs) - 1, 2):
            a(f"v_add_f32 v{regs[i]}, v{regs[i]}, v{regs[i+1]}"); nxt.append(regs[i])
        if len(regs) % 2: nxt.append(regs[-1])
        regs = nxt
    return regs[0]

def emit_pre(a, opt=()):
    def tstamp(a, opt, idx):
        if idx == 22: return _ts(a, opt, idx)
    a.c("==== prologue work of the post teams: mod + LN1 ; s16 = tid (0..127) ====")
    LE = lambda *x, **k: lane_expr(a, *x, tmp="v31", **k)
    tstamp(a, opt, 16)
    a("s_load_dwordx2 s[32:33], s[0:1], 0")
    a("s_load_dwordx4 s[36:39], s[0:1], 88")
    a(f"s_mov_b32 s{MASK}, 0xffff0000")
    LE("v1", "v0", [(0, 4, 10), (4, 2, 4), (6, 2, 8)])
    a(f"s_lshl_b32 s48, s{S_TID}, 14")
    a("s_waitcnt lgkmcnt(0)")
    srd(a, S_T, 32, 2048 * 1024)
    for i in range(4):
        a(f"buffer_load_dwordx4 {vr(32+4*i,4)}, v1, {sr(S_T,4)}, s48 offen offset:{64*i}")
    a(f"s_cmp_lt_u32 s{S_TID}, 96")
    a("s_cbranch_scc1 P_mod")
    a("s_waitcnt vmcnt(0)")
    a("s_branch P_nomod")
    a.label("P_mod")
    srd(a, 40, 36, 1024)
    srd(a, 44, 38, 512 * 6144)
    LE("v2", "v0", [(2, 6, 4)])
    a("buffer_load_dwordx4 v[4:7], v2, s[40:43], 0 offen")
    a("v_lshrrev_b32 v2, 2, v0")
    a("v_mul_u32_u24 v2, 49152, v2")
    a("v_and_b32 v3, 3, v0")
    a("v_lshl_add_u32 v2, v3, 4, v2")
    a(f"s_lshl_b32 s48, s{S_TID}, 6")
    for i in range(8):
        a(f"buffer_load_dwordx4 {vr(64+4*i,4)}, v2, s[44:47], s48 offen")
        if i < 7: a("s_add_u32 s48, s48, 6144")
    claim(a)
    a("s_waitcnt vmcnt(8)")
    tstamp(a, opt, 17)
    unpack(a, 4, 8, 4)
    a(f"s_mov_b32 s48, {f32bits(-math.log2(math.e))}")
    for j in range(8): a(f"v_mul_f32 v{16+j}, s48, v{8+j}")
    for j in range(8): a(f"v_exp_f32 v{16+j}, v{16+j}")
    for j in range(8): a(f"v_add_f32 v{16+j}, 1.0, v{16+j}")
    for j in range(8): a(f"v_rcp_f32 v{16+j}, v{16+j}")
    for j in range(8): a(f"v_mul_f32 v{8+j}, v{8+j}, v{16+j}")
    for j in range(0, 8, 2): rnd2(a, 8 + j, 9 + j, 31)
    for j in range(8): a(f"v_mov_b32 v{16+j}, 0")
    a("s_waitcnt vmcnt(0)")
    for i in range(8):
        for d in range(4):
            a(f"v_lshlrev_b32 v24, 16, v{64+4*i+d}")
            a(f"v_and_b32 v25, s{MASK}, v{64+4*i+d}")
            a(f"v_fmac_f32 v{16+2*d}, v{8+i}, v24")
            a(f"v_fmac_f32 v{17+2*d}, v{8+i}, v25")
    a("s_nop 1")
    for ror in (4, 8):
        for j in range(8):
            a(f"v_add_f32_dpp v{16+j}, v{16+j}, v{16+j} row_ror:{ror} row_mask:0xf bank_mask:0xf")
    LE("v2", "v0", [(4, 4, 7), (0, 2, 5)])
    a("ds_write_b128 v2, v[16:19] offset:1024")
    a("ds_write_b128 v2, v[20:23] offset:1040")
    a("s_waitcnt lgkmcnt(0)")
    a("s_barrier")
    verify_claim(a, 0, 163840 - 64)
    a(f"s_cmp_lg_u32 s{S_W}, 0")
    a("s_cbranch_scc1 P_nomod")
    LE("v2", "v0", [(0, 5, 2)])
    for p in range(16): a(f"ds_read_b32 v{64+p}, v2 offset:{1024+128*p}")
    a("s_waitcnt lgkmcnt(0)")
    r = tree(a, range(64, 80))
    a(f"v_cvt_pk_bf16_f32 v{r}, v{r}, v{r}")
    LE("v2", "v0", [(0, 5, 1), (5, 1, 30)])
    a(f"s_lshl_b32 s48, s{S_TID}, 6")
    a(f"s_add_u32 s48, s48, {hex(WS_MOD)}")
    a(f"buffer_store_short v{r}, v2, {sr(S_WS,4)}, s48 offen sc1")
    a(f"s_cmp_ge_u32 s{S_TID}, 32")
    a("s_cbranch_scc1 P_nomod")
    a("s_waitcnt vmcnt(0)")
    tstamp(a, opt, 18)
    dbg_arrive(a, D_MOD1)
    a.label("P_nomod")
    unpack(a, 32, 64, 16)
    LE("v2", "v0", [(0, 4, 4), (6, 2, 2)])
    LE("v3", "v0", [(0, 4, 4)])
    for j in range(16): a(f"v_add_f32 v{96+j}, v{64+2*j}, v{65+2*j}")
    r = tree(a, range(96, 112))
    xsum_g(a, r, 31)
    a(f"ds_write_b32 v2, v{r}")
    a("s_waitcnt lgkmcnt(0)"); a("s_barrier")
    a("ds_read_b128 v[4:7], v3")
    a("s_waitcnt lgkmcnt(0)")
    tree(a, range(4, 8))
    a(f"v_mul_f32 v8, {f32bits(1/512)}, v4")
    for j in range(32): a(f"v_sub_f32 v{96+j}, v{64+j}, v8")
    for j in range(32): a(f"v_mul_f32 v{96+j}, v{96+j}, v{96+j}")
    r = tree(a, range(96, 128))
    xsum_g(a, r, 31)
    a(f"ds_write_b32 v2, v{r} offset:256")
    a("s_waitcnt lgkmcnt(0)"); a("s_barrier")
    a("ds_read_b128 v[4:7], v3 offset:256")
    a("s_waitcnt lgkmcnt(0)")
    tree(a, range(4, 8))
    a(f"v_mul_f32 v9, {f32bits(1/512)}, v4")
    rnd1(a, 8); rnd1(a, 9)
    a(f"v_add_f32 v9, {f32bits(1e-5)}, v9"); rnd1(a, 9)
    a("v_sqrt_f32 v9, v9"); a("s_nop 0"); rnd1(a, 9)
    a("v_rcp_f32 v9, v9")
    for j in range(32): a(f"v_sub_f32 v{64+j}, v{64+j}, v8")
    for j in range(0, 32, 2): rnd2(a, 64 + j, 65 + j, 31)
    for j in range(32): a(f"v_mul_f32 v{64+j}, v{64+j}, v9")
    for j in range(0, 32, 2): rnd2(a, 64 + j, 65 + j, 31)
    tstamp(a, opt, 19)
    a(f"s_cmp_ge_u32 s{S_TID}, 32")
    a("s_cbranch_scc1 P_go")
    import rec
    a("s_load_dwordx2 s[34:35], s[0:1], 8")
    a("s_waitcnt lgkmcnt(0)")
    rec.emit_rec_init(a, S_TID, 34)
    LE("v16", "v0", [(0, 2, 4)])
    a(f"s_lshl_b32 s48, s{S_TID}, 7"); a(f"s_add_u32 s48, s48, {hex(WS_FLAG)}")
    a("s_mov_b64 exec, 7")
    a(f"buffer_store_dword v24, v16, {sr(S_WS,4)}, s48 offen sc1")
    a("s_mov_b64 exec, -1")
    dbg_wait(a, D_MOD1, 32, sleep=8)
    a.label("P_go")
    tstamp(a, opt, 20)
    LE("v2", "v0", [(4, 2, 4), (6, 2, 8)])
    a(f"s_mov_b32 s48, {hex(WS_MOD)}")
    for i in range(4):
        a(f"buffer_load_dwordx4 {vr(32+4*i,4)}, v2, {sr(S_WS,4)}, s48 offen offset:{1024+64*i} sc1")
    for i in range(4):
        a(f"buffer_load_dwordx4 {vr(48+4*i,4)}, v2, {sr(S_WS,4)}, s48 offen offset:{64*i} sc1")
    a("s_waitcnt vmcnt(4)")
    unpack(a, 32, 96, 16)
    for j in range(32): a(f"v_add_f32 v{96+j}, 1.0, v{96+j}")
    for j in range(0, 32, 2): rnd2(a, 96 + j, 97 + j, 31)
    for j in range(32): a(f"v_mul_f32 v{64+j}, v{64+j}, v{96+j}")
    for j in range(0, 32, 2): rnd2(a, 64 + j, 65 + j, 31)
    a("s_waitcnt vmcnt(0)")
    unpack(a, 48, 96, 16)
    for j in range(32): a(f"v_add_f32 v{64+j}, v{64+j}, v{96+j}")
    for j in range(16): a(f"v_cvt_pk_bf16_f32 v{32+j}, v{64+2*j}, v{65+2*j}")
    tstamp(a, opt, 21)
    LE("v2", "v0", [(0, 6, 4), (6, 2, 12)])
    a(f"s_lshl_b32 s48, s{S_TID}, 14")
    a(f"s_add_u32 s48, s48, {hex(WS_H)}")
    for i in range(4):
        a(f"buffer_store_dwordx4 {vr(32+4*i,4)}, v2, {sr(S_WS,4)}, s48 offen offset:{1024*i} sc1")
    a(f"s_cmp_ge_u32 s{S_TID}, {N_LN1}")
    a("s_cbranch_scc1 P_done")
    a("s_waitcnt vmcnt(0)")
    a("s_barrier")
    a(f"s_cmp_lg_u32 s{S_W}, 0")
    a("s_cbranch_scc1 P_done")
    tstamp(a, opt, 22)
    dbg_arrive(a, D_LN1)
    a.label("P_done")
```

```python
from common import *
import math, struct

L_MEM = 0
L_K   = 8192
L_V   = 16384
L_QK  = 24576
L_OS  = 28672
L_SEL = 30720
L_JUNK= 31744
L_MISC= 32256
L_WO  = 32768

S_STEP = 16
S_PST = 17
S_PLD = 19
S_MRD, S_MWR, S_MPO = 22, 23, 24
S_KX, S_VX, S_KVM = 25, 26, 27
S_TAG, S_PMAX, S_PC = 28, 29, 30
S_SC = 31
S_PTR = 32
S_T0, S_T1, S_T2, S_T3 = 48, 49, 50, 51
S_OWN = 52
S_WOB = 53
S_WOL = 54
S_STAMP = 60

vFl = "v0"
vL16w, vL16, vXw, vXr, vOw, vWo, vPs, vMp, vIdx = ["v%d" % i for i in range(1, 10)]
vPl = vL16
vZ = "v[10:11]"
vT0, vT1 = "v12", "v13"
vFx = ["v28", "v29", "v30"]
SX0, SX1, SM = 16, 20, 24
vM = "v31"
FA, FB = 32, 120
F = [32 + 4 * i for i in range(8)]
ACC = {("q", 0): 64, ("q", 1): 68, ("k", 0): 72, ("k", 1): 76, ("v", 0): 80, ("v", 1): 84}
QF = [88 + 4 * i for i in range(4)]
KF = [104 + 4 * i for i in range(4)]
KXR = {(0, 0): 32, (1, 0): 24, (0, 1): 104, (1, 1): 108, (0, 2): 112, (1, 2): 116, (0, 3): 120, (1, 3): 124}
VX = [64, 72]
MI = {"q": 0, "k": 1, "v": 2}

def wreg(m, t, sig, off=0, n=8):
    idx = ((MI[m] * 2 + t) * 8 + sig) * 8 + off
    if idx < 256: return ar(idx, n)
    return vr(128 + idx - 256, n)

def smf(m, t, sig, own=FA):
    f = own + 4 * sig if sig < 2 else F[sig]
    return f"v_smfmac_f32_16x16x64_bf16 {vr(ACC[(m,t)],4)}, {vr(f,4)}, {wreg(m,t,sig)}, {vIdx}"

S_HAVE, S_FLG, S_KVC = 55, 56, 26
S_SC2, S_OM = 58, 46
def emit_rec_init(a, sh, ptr):
    LE = lambda *x, **k: lane_expr(a, *x, tmp="v31", **k)
    WS = sr(S_WS, 4)
    srd(a, S_T, ptr, 8192)
    LE("v16", "v0", [(5, 1, 10), (4, 1, 6), (0, 2, 1)])
    sexpr(a, 48, [(sh, 1, 2, 11), (sh, 3, 2, 8), (S_W, 1, 1, 7), (sh, 0, 1, 4), (S_W, 0, 1, 3)])
    a(f"buffer_load_ushort v17, v16, {sr(S_T,4)}, s48 offen")
    a(f"buffer_load_ushort v18, v16, {sr(S_T,4)}, s48 offen offset:32")
    LE("v20", "v0", [(0, 6, 4)])
    LE("v21", "v0", [(5, 1, 5), (0, 2, 3), (4, 1, 2), (2, 2, 30)])
    for i in range(4): a(f"v_mov_b32 v{24+i}, 0")
    a("v_mov_b32 v19, -1")
    sexpr(a, 48, [(sh, 0, 5, 13), (S_W, 0, 2, 11)], WS_PART)
    a(f"buffer_store_dwordx4 v[24:27], v20, {WS}, s48 offen sc1")
    a(f"buffer_store_dwordx4 v[24:27], v20, {WS}, s48 offen offset:1024 sc1")
    sexpr(a, 50, [(sh, 3, 2, 11), (S_W, 1, 1, 10), (sh, 0, 1, 9), (S_W, 0, 1, 8), (sh, 1, 2, 6)], WS_MEM)
    for sl in (1, 2):
        a(f"s_add_u32 s48, s50, {8192*sl}")
        a(f"buffer_store_dword v19, v21, {WS}, s48 offen sc1")
    a("s_waitcnt vmcnt(4)")
    a("v_lshl_or_b32 v17, v18, 16, v17")
    a(f"buffer_store_dword v17, v21, {WS}, s50 offen sc1")

def emit_rec_setup(a, pfx="R", own_init=True, opt=()):
    st = " sc1"
    LE = lambda *x, **k: lane_expr(a, *x, tmp="v31", **k)
    a.c("==== recurrence role: s14 = head, s15 = wave ====")
    q = VmQ(a)
    if own_init:
        emit_rec_init(a, S_H, S_PTR + 2)
        a("s_waitcnt vmcnt(0)")
        dbg_arrive(a, D_RTB)
        a("s_waitcnt vmcnt(0)")

    D = [32, 33]
    E = [36, 37, 38, 39]
    LE("v28", "v0", [(4, 2, 5)])
    LE("v29", "v0", [(0, 4, 4)])
    a("v_xor_b32 v28, v28, v29")
    LE("v30", "v0", [(4, 2, 13)])
    a(f"v_add_u32 v{D[0]}, v28, v30")
    a(f"v_xor_b32 v{D[1]}, 128, v{D[0]}")
    sexpr(a, S_T2, [(S_H, 0, 5, 8), (S_W, 0, 2, 18)])
    sexpr(a, S_T3, [(S_W, 0, 2, 13)], L_WO)
    sexpr(a, S_WOB, [(S_H, 0, 5, 17), (S_W, 0, 2, 15)])

    def dma_chunk(a, q, n):
        m, ch = divmod(n, 4)
        if ch == 0:
            srd(a, S_T, S_PTR + 4 + 2 * m, 4194304)
        for i in range(8):
            a(f"s_add_u32 m0, s{S_T3}, {ch * 32768 + i * 1024}")
            if m < 3:
                a(f"s_add_u32 s{S_T0}, s{S_T2}, {hex((128 * ch + 4 * i) * 8192)}")
                a(f"buffer_load_dwordx4 v{D[(i >> 2) & 1]}, {sr(S_T,4)}, s{S_T0} offen lds")
            else:
                a(f"s_add_u32 s{S_T0}, s{S_WOB}, {hex(4 * i * 1024 + ch * 256)}")
                a(f"buffer_load_dwordx4 v{E[(i & 1) + 2 * ((i >> 2) & 1)]}, {sr(S_T,4)}, s{S_T0} offen lds")
        q.issue(("d", n), 8)

    if "time" in opt: a("s_memrealtime s[76:77]")
    for n in range(4): dma_chunk(a, q, n)
    LE(vL16w, "v0", [(0, 6, 4), (6, 2, 11)])
    LE(vL16, "v0", [(0, 6, 4)])
    LE(vXw, "v0", [(6, 2, 10), (0, 4, 5), (4, 2, 3)], L_QK)
    LE("v16", "v0", [(2, 2, 3)])
    a(f"v_xor_b32 {vXw}, {vXw}, v16")
    LE(vXr, "v0", [(0, 6, 3)], L_QK)
    LE("v16", "v0", [(4, 2, 3)])
    a(f"v_xor_b32 {vXr}, {vXr}, v16")
    LE(vOw, "v0", [(6, 2, 9), (5, 1, 8), (2, 2, 6), (0, 1, 5), (4, 1, 4)], L_OS)
    LE("v16", "v0", [(5, 1, 8), (2, 2, 6), (0, 1, 5), (4, 1, 4)], L_JUNK)
    a("v_and_b32 v17, 2, v0")
    a("v_cmp_ne_u32 vcc, 0, v17")
    a("s_nop 1")
    a(f"v_cndmask_b32 {vOw}, {vOw}, v16, vcc")
    for r in (10, 11, 14, 15): a(f"v_mov_b32 v{r}, 0")
    LE(vWo, "v0", [(6, 2, 15), (0, 6, 4)], L_WO)
    LE(vPs, "v0", [(4, 2, 14), (3, 1, 13), (2, 1, 11), (0, 2, 4)])
    LE(vMp, "v0", [(5, 1, 5), (0, 2, 3), (4, 1, 2), (2, 2, 30)])
    a(f"v_and_b32 v16, 1, v0")
    a(f"v_mul_u32_u24 {vIdx}, 0xaaaa, v16")
    a(f"v_add_u32 {vIdx}, 0x4444, {vIdx}")
    a("v_and_b32 v16, 3, v0")
    a("v_bfe_u32 v17, v0, 2, 2")
    a("v_mov_b32 v18, 0x3f80")
    a("v_mov_b32 v19, 0x3f800000")
    a("v_cmp_eq_u32 vcc, 1, v16")
    a("s_nop 1")
    a("v_cndmask_b32 v18, v18, v19, vcc")
    a("v_cmp_gt_u32 vcc, 2, v16")
    a("s_nop 1")
    a("v_cndmask_b32 v18, 0, v18, vcc")
    for d in range(4):
        a(f"v_cmp_eq_u32 vcc, {d}, v17")
        a("s_nop 1")
        a(f"v_cndmask_b32 v{20+d}, 0, v18, vcc")
    a(f"ds_write_b128 {vL16}, v[20:23] offset:{L_SEL}")
    for tau in range(2):
        sexpr(a, S_PST + tau, [(S_W, 0, 2, 16), (S_H, 0, 5, 6)], WS_PART + tau * 4096)
    sexpr(a, S_PLD, [(S_H, 0, 5, 13), (S_W, 0, 2, 11)], WS_PART)
    sexpr(a, S_OWN, [(S_H, 3, 2, 11), (S_W, 1, 1, 10), (S_H, 0, 1, 9), (S_W, 0, 1, 8), (S_H, 1, 2, 6)])
    a(f"s_mov_b32 s{S_MRD}, {hex(WS_MEM)}")
    a(f"s_add_u32 s{S_MPO}, s{S_OWN}, {hex(WS_MEM)}")
    a(f"s_add_u32 s{S_MWR}, s{S_OWN}, {hex(WS_MEM + 8192)}")
    a(f"s_mul_i32 s{S_T0}, s{S_H}, {HSTR}")
    sexpr(a, S_KX, [(S_W, 0, 2, 12)], WS_KV)
    a(f"s_add_u32 s{S_KX}, s{S_KX}, s{S_T0}")
    a(f"s_mul_i32 s{S_T0}, s{S_H}, {MSTR}")
    sexpr(a, S_KVM, [(S_W, 0, 2, 10)], WS_KM)
    a(f"s_add_u32 s{S_KVM}, s{S_KVM}, s{S_T0}")
    a(f"s_mov_b32 s{S_STEP}, 0")
    a(f"s_mov_b32 s{S_TAG}, 1")
    a(f"s_mov_b32 s{S_PMAX}, 20000")
    sc = (128 ** -0.5) * math.log2(math.e)
    a(f"s_mov_b32 s{S_SC}, {hex(struct.unpack('<I', struct.pack('<f', sc))[0])}")

    a(f"s_mov_b32 s{S_SC2}, s{S_SC}"); a(f"s_mov_b32 s{S_SC2+1}, s{S_SC}")
    a(f"s_mov_b32 s{S_OM}, 0x33333333"); a(f"s_mov_b32 s{S_OM+1}, 0x33333333")
    LE("v28", "v0", [(4, 1, 5)])
    LE("v29", "v0", [(0, 4, 4)])
    a("v_xor_b32 v28, v28, v29")
    LE("v30", "v0", [(4, 2, 10)])
    a(f"v_add_u32 v{E[0]}, v28, v30")
    a(f"v_xor_b32 v{E[1]}, 64, v{E[0]}")
    a(f"v_xor_b32 v{E[2]}, 128, v{E[0]}")
    a(f"v_xor_b32 v{E[3]}, 192, v{E[0]}")
    TR = [40, 41]
    LE("v28", "v0", [(2, 1, 12), (5, 1, 10), (3, 1, 9), (4, 1, 8), (0, 1, 3)])
    LE("v29", "v0", [(6, 2, 6), (1, 1, 4)])
    LE("v30", "v0", [(4, 1, 5), (3, 1, 6), (2, 1, 7)])
    a("v_xor_b32 v29, v29, v30")
    a(f"v_add_u32 v{TR[0]}, v28, v29")
    a(f"v_xor_b32 v{TR[1]}, 32, v{TR[0]}")

    done = pfx + "_wdone"
    for w in range(4):
        if w < 3:
            a(f"s_cmp_lg_u32 s{S_W}, {w}")
            a(f"s_cbranch_scc1 {pfx}_wl{w+1}")
        qq = q.clone()
        for n in range(13):
            if n < 12:
                qq.wait(("d", n))
            a("s_barrier")
            if "time" in opt and n in (0, 4, 8): a(f"s_memrealtime s[{78+n//2}:{79+n//2}]")
            if 0 < n and n + 3 < 16: dma_chunk(a, qq, n + 3)
            if n == 12: break
            m, ch = divmod(n, 4)
            mn = "qkv"[m]
            a(f"v_add_u32 v26, {L_WO + ch * 32768}, v{TR[0]}")
            a(f"v_add_u32 v27, {L_WO + ch * 32768}, v{TR[1]}")
            for k2 in range(2):
                sig = (2 * ch + k2) ^ (2 * w)
                for t in range(2):
                    for p in range(4):
                        off = (64 * k2 + 32 * (p % 2) + 8 * (p // 2)) * 256
                        a(f"ds_read_b64_tr_b16 {wreg(mn, t, sig, 2 * p, 2)}, v{26+t} offset:{off}")
            a("s_waitcnt lgkmcnt(0)")
        if w < 3:
            a(f"s_branch {done}")
            a.label(f"{pfx}_wl{w+1}")
    a.label(done)
    LE("v24", "v0", [(4, 1, 12), (5, 1, 11), (3, 1, 10), (2, 1, 8), (6, 2, 15), (1, 1, 4), (0, 1, 3),
                     (2, 1, 5), (3, 1, 6), (4, 1, 7)], L_WO)
    if not own_init: claim(a)
    a("s_waitcnt vmcnt(0)")
    a("s_barrier")
    for ks in range(2):
        for tau in range(2):
            for b in range(4):
                a(f"v_xor_b32 v25, {128 * tau + 32 * b}, v24")
                base = 32 + (tau * 4 + b) * 8
                for p in range(4):
                    off = (64 * ks + 32 * (p // 2) + 2 * (p % 2)) * 256
                    a(f"ds_read_b64_tr_b16 {vr(base + 2 * p, 2)}, v25 offset:{off}")
        a("s_waitcnt lgkmcnt(0)")
        for i in range(16):
            a(f"ds_write_b128 {vWo}, {vr(32 + 4 * i, 4)} offset:{ks * 16384 + i * 1024}")
        a("s_waitcnt lgkmcnt(0)")
    if own_init: dbg_wait(a, D_RTB, 128, sleep=8)
    else: verify_claim(a, 0, L_MISC)

def kv_wait(a, need_sreg_or_imm, tag):
    l = a.uid(tag)
    need = need_sreg_or_imm
    a(f"s_cmp_ge_u32 s{S_HAVE}, {need}")
    a(f"s_cbranch_scc1 {l}_ok")
    a(f"s_mov_b32 s{S_PC}, 0")
    a.label(l)
    a(f"buffer_load_dword v119, {vMp}, {sr(S_WS,4)}, s{S_FLG} offen sc1")
    a("s_waitcnt vmcnt(0)")
    a(f"v_readlane_b32 s{S_HAVE}, v119, 0")
    a(f"v_readlane_b32 s{S_T0}, v119, 2")
    a("s_nop 1")
    a(f"s_min_u32 s{S_HAVE}, s{S_HAVE}, s{S_T0}")
    a(f"s_cmp_ge_u32 s{S_HAVE}, {need}")
    a(f"s_cbranch_scc1 {l}_ok")
    a("s_sleep 2")
    a(f"s_add_u32 s{S_PC}, s{S_PC}, 1")
    a(f"s_cmp_lt_u32 s{S_PC}, s{S_PMAX}")
    a(f"s_cbranch_scc1 {l}")
    a(f"s_mov_b32 s{S_PMAX}, 1")
    a.label(l + "_ok")

def emit_rec_mega(a, opt):
    import mega
    a(f"s_load_dwordx16 {sr(S_PTR,16)}, s[0:1], 0")
    a("s_waitcnt lgkmcnt(0)")
    emit_rec_setup(a, own_init=False, opt=opt)
    if "time" in opt: a("s_memrealtime s[84:85]")
    dbg_wait(a, D_LN1, N_LN1, sleep=16)
    sexpr(a, S_FLG, [(S_H, 0, 5, 7)], WS_FLAG)
    a(f"s_mov_b32 s{S_HAVE}, 0")
    kv_wait(a, 2, "kvw")
    if "time" in opt: a("s_memrealtime s[86:87]")
    mega.emit_mode(a, opt, "R_slow")
    ropt = list(opt) + ["mega", "oexec", "ge5", "ga2", "gc3", "c111", "b15", "de5", "dl5", "db4"]
    emit_rec(a, fast=True, pfx="RF", opt=ropt)
    a("s_branch L_done")
    a.label("R_slow")
    emit_rec(a, fast=False, pfx="RS", opt=ropt)

def emit_rec(a, fast=True, stamps=False, nsteps=64, pfx="R", warm=True, opt=()):
    st = "" if fast else " sc1"
    def geti(p, d):
        for o in opt:
            if o.startswith(p) and o[len(p):].isdigit(): return int(o[len(p):])
        return d
    nst = [0]
    tr0 = geti("tr", -1)
    slotno = [0]
    def stamp(force=False):
        if stamps and (tr0 < 0 or force):
            a(f"s_memtime {sr(S_STAMP + 2 * nst[0], 2)}"); nst[0] += 1
    if "mega" not in opt: emit_rec_setup(a, pfx)

    lq = LQ()
    rms = [o[3:] for o in opt if o.startswith("rm:")]
    def emit(x):
        txt = x if isinstance(x, str) else x[0]
        if isinstance(x, str) and any(r in txt for r in rms): return
        if x == "STAMP": stamp()
        elif isinstance(x, tuple):
            if x[0] == "w":
                wt = lq.wait(x[1])
                if isinstance(x[1], tuple) and x[1][0] == "Fw": assert wt.endswith("(0)")
                a(wt)
            elif x[0] == "L": a.label(x[1])
            else:
                a(x[0]); lq.issue(x[1])
        else: a(x)
    def run(seq, count=True):
        for m, fill in seq:
            if m: a(m)
            if tr0 >= 0 and count and tr0 <= slotno[0] + 12 < tr0 + geti("tn", 13): stamp(True)
            if count: slotno[0] += 1
            for f in fill: emit(f)

    kvd = [f"buffer_load_dwordx4 {vL16}, {sr(S_WS,4)}, s{S_KX} offen offset:{1024*i} sc1 lds" for i in range(4)] + [f"s_add_u32 s{S_KX}, s{S_KX}, 16384"]
    zero16 = lambda r: f"v_mfma_f32_32x32x8_bf16 {vr(r,16)}, {vZ}, {vZ}, 0"
    zero4 = lambda r: f"v_mfma_f32_16x16x16_bf16 {vr(r,4)}, {vZ}, {vZ}, 0"
    def gather(sig):
        return f"buffer_load_dwordx4 {vr(F[sig],4)}, {vL16w}, {sr(S_WS,4)}, s{S_MRD} offen offset:{1024*sig} sc1"
    def fx():
        for i in range(3): a(f"v_xor_b32 {vFx[i]}, {2048 * (i + 1)}, {vL16w}")
    S_MK, S_MV = S_T2, S_T3
    sexpr(a, S_MK, [(S_W, 0, 2, 11)], L_K)
    sexpr(a, S_MV, [(S_W, 0, 2, 11)], L_V - 2048)
    mk, mv = f"s_mov_b32 m0, s{S_MK}", f"s_mov_b32 m0, s{S_MV}"
    for x in [mk, "s_nop 0"] + kvd[:2] + [mv, "s_nop 0"] + kvd[2:] + [mk]: a(x)
    a(f"s_sub_u32 s{S_KVM}, s{S_KVM}, 4096")
    a(f"s_add_u32 s{S_T0}, s{S_KVM}, {65*4096}")
    a(f"s_mov_b32 s{S_KVC}, s{S_T0}")
    if "nokv" in opt: kvd = ["s_nop 0"] * 5
    a(zero16(64)); a(zero16(80))
    fx()
    a(f"s_mov_b32 s{S_PC}, 0")
    if stamps or "nost" in opt or "time" in opt:
        a("s_memrealtime s[96:97]"); a("s_memtime s[98:99]")
    if "rstat" in opt:
        for r in range(60, 64): a(f"s_mov_b32 s{r}, 0")
    a(gather(0)); a(gather(0)); a(gather(1))

    rdF = lambda sig: (f"ds_read_b128 {vr(F[sig],4)}, {vFx[sig//2-1]} offset:{L_MEM + (sig%2)*1024}", ("F", sig))
    rdKX = lambda t, ks: (f"ds_read_b128 {vr(KXR[(t,ks)],4)}, {vL16} offset:{L_K + (t*4+ks)*1024}", "KX")
    trQ = lambda ks, u: (f"ds_read_b64_tr_b16 {vr(QF[ks]+2*u,2)}, {vXr} offset:{1024*ks+512*u}", ("Q", ks))
    trK = lambda ks, u: (f"ds_read_b64_tr_b16 {vr(KF[ks]+2*u,2)}, {vXr} offset:{1024*ks+512*u}", ("K", ks))
    rdV = lambda t: (f"ds_read_b128 {vr(VX[t],4)}, {vL16w} offset:{L_V + t*1024}", "V")
    def sx(t, ks):
        d = vr([SX0, SX1][t], 4)
        return f"v_mfma_f32_16x16x32_bf16 {d}, {vr(KXR[(t,ks)],4)}, {vr(QF[ks],4)}, {d if ks else 0}"
    def sm(ks):
        d = vr(SM, 4)
        return f"v_mfma_f32_16x16x32_bf16 {d}, {vr(QF[ks],4)}, {vr(QF[ks],4)}, {d if ks else 0}"
    kvm = [f"buffer_store_dwordx4 v[12:15], {vL16}, {sr(S_WS,4)}, s{S_KVC} offen sc1", f"s_add_u32 s{S_KVM}, s{S_KVM}, 4096", f"s_mov_b32 s{S_KVC}, s{S_KVM}"]
    if "nokvm" in opt: kvm[0] = "s_nop 0"

    nc = "nocomm" in opt
    def chk(sig):
        f = F[sig]
        return [f"v_max3_u32 v16, v{f}, v{f+1}, v{f+2}", f"v_max_u32 v16, v16, v{f+3}", f"v_cmp_eq_u32 vcc, -1, v16"]
    wrF = lambda sig: (f"ds_write_b128 {vL16w}, {vr(F[sig],4)} offset:{L_MEM + 1024*sig}", ("Fw", sig))
    def gfail(sig, first_wait, redo):
        a.label(f"{pfx}_gf{sig}")
        a(f"s_waitcnt vmcnt({first_wait})")
        a.label(f"{pfx}_gr{sig}")
        if "rstat" in opt: a(f"s_add_u32 s{61+sig}, s{61+sig}, 1")
        for x in chk(sig): a(x)
        a(f"s_add_u32 s{S_PC}, s{S_PC}, 1")
        a(f"s_cbranch_vccz {pfx}_gx{sig}")
        a(gather(sig))
        a(f"s_cmp_lt_u32 s{S_PC}, s{S_PMAX}")
        a("s_waitcnt vmcnt(0)")
        a(f"s_cbranch_scc1 {pfx}_gr{sig}")
        a(f"s_mov_b32 s{S_PMAX}, 1")
        a.label(f"{pfx}_gx{sig}")
        a(wrF(sig)[0])
        for x in redo: a(x)
        a(f"s_branch {pfx}_gok{sig}")

    a(f"s_branch {pfx}_gA")
    gfail(0, 1, [zero4(64), "s_nop 5", smf("q", 0, 0)])
    gfail(1, 0, [])
    a.raw(".p2align 6")
    a.label(f"{pfx}_gA")
    if not nc: a("s_waitcnt vmcnt(2)")
    for x in chk(0)[:2]: a(x)
    emit(wrF(0))
    a(chk(0)[2])
    a(smf("q", 0, 0))
    if not nc: a(f"s_cbranch_vccnz {pfx}_gf0")
    a.label(f"{pfx}_gok0")
    if stamps:
        a(f"s_memtime {sr(S_STAMP, 2)}")
        a(f"s_mov_b32 s{S_STAMP+29}, s{S_PC}")
    nst[0] = 1
    kx = {k: rdKX(*k) for k in KXR}
    WB = [40, 48, 56, 32, 104, 112, 120, 96, 24]
    def rdWo(k, buf, half):
        T, ks = divmod(k, 2)
        return (f"ds_read_b128 {vr(buf + 4*half, 4)}, {vWo} offset:{ks*16384 + T*2048 + half*1024}", ("W", k))
    W = [rdWo(k, WB[k], h) for k in range(9) for h in range(2)]
    def post(acc, dst):
        return [f"v_add_f32 v{acc}, v{acc}, v{acc+1}", f"v_add_f32 v{acc+2}, v{acc+2}, v{acc+3}", f"v_cvt_pk_bf16_f32 v{dst}, v{acc}, v{acc+2}"]
    one = [f"v_mov_b32 v{28+i}, 0x3f803f80" for i in range(4)]
    pq0, pk0, pq1, pk1 = post(64, 12), post(72, 13), post(68, 14), post(76, 15)
    pv0, pv1 = post(80, 12), post(84, 14)
    tr = [trQ(ks, u) for ks in range(4) for u in range(2)]
    QK = (("q", 0), ("k", 0), ("q", 1), ("k", 1))
    ms = [smf("k", 0, 0), smf("q", 1, 0), smf("k", 1, 0), smf("v", 0, 0), smf("v", 1, 0)]
    ms += [smf(m, t, sg) for sg in (2, 4, 6, 1) for m, t in QK]
    ms += [smf(m, t, sg) for m, t in QK for sg in (3, 5, 7)]
    ms += [smf("v", t, sg) for sg in (1, 2, 3, 4, 5, 6, 7) for t in range(2)]
    ms += [sx(0, 0), sx(1, 0), sm(0), sx(0, 1), sx(1, 1), sm(1), sx(0, 2), sx(0, 3), sx(1, 2), sx(1, 3), sm(2), sm(3)]
    fl = {k: [] for k in range(1, 60)}
    hb = geti("hb", 4); c1 = geti("c1", 10); b1 = geti("b1", 6)
    fl[1] = [gather(1)] if not nc else []
    fl[hb] += [("w", ("Fw", 0)), "s_barrier", rdF(2)]
    fl[5] += [rdF(4), rdF(6), zero4(20), kx[(0, 1)], kx[(1, 1)], zero4(20), ("w", ("F", 2)), "STAMP"]
    rest = [kx[(0, 2)], kx[(1, 2)], kx[(0, 3)], kx[(1, 3)], kx[(1, 0)], kx[(0, 0)]]
    for sl in range(6, c1):
        if len(rest) > 1: fl[sl] += [rest.pop(0)]
    fl[9] += [("w", ("F", 6))]
    fl[c1] += (["s_waitcnt vmcnt(1)"] if not nc else []) + chk(1)
    fl[c1 + 1] += [wrF(1)] + ([f"s_cbranch_vccnz {pfx}_gf1"] if not nc else []) + [("L", f"{pfx}_gok1")]
    for n, x in enumerate(rest): fl[c1 + 2 + n] += [x]
    fl[c1 + b1] += [("w", "KX"), "s_barrier"]
    x0 = c1 + b1 + 1
    fl[x0] += [rdF(3), rdF(5)]; fl[x0 + 1] += [rdF(7), one[3]]
    fl[x0 + 2] += (["s_waitcnt vmcnt(0)"] if not nc else []) + [kvd[0]]
    fl[x0 + 3] += [one[0]]
    fl[21] += [("w", ("F", 3))]
    fl[22] += [("w", ("F", 7)), one[1]]
    fl[23] += [kvd[1]]
    fl[24] += [mv, one[2], "STAMP"]
    fl[25] += kvm[:1]
    fl[26] += kvm[1:2]
    fl[27] += kvm[2:3]
    if "mega" in opt and "nofl" not in opt: fl[30] += [f"buffer_load_dword {vFl}, {vMp}, {sr(S_WS,4)}, s{S_FLG} offen sc1"]
    fl[26] += [pq0[0]]
    fl[27] += [pq0[1]]
    fl[28] += [pq0[2]]
    fl[29] += [rdV(0), pk0[0]]
    fl[30] += [pk0[1]]
    fl[31] += [pk0[2]]
    fl[32] += [rdV(1), pq1[0]]
    fl[33] += [pq1[1]]
    fl[34] += [pq1[2]]
    fl[35] += pk1
    fl[36] += [(f"ds_write2st64_b64 {vXw}, v[12:13], v[14:15] offset1:1", "Xw")]
    fl[37] += [("w", "V"), "v_mov_b32 v77, 0"]
    fl[38] += [kvd[2]]
    fl[39] += [W[0]]
    fl[40] += [kvd[3]]
    fl[41] += [("w", "Xw"), "s_barrier"]
    fl[42] += tr[0:2]
    fl[43] += tr[2:4]
    fl[44] += tr[4:6]
    fl[45] += tr[6:8]
    fl[46] += [W[1]]
    fl[47] += [("w", ("Q", 3)), "STAMP"]
    fl[48] += [W[2], pv0[0]]
    fl[49] += [W[3], pv0[1]]
    fl[50] += [W[4], pv0[2]]
    fl[51] += [W[5], pv1[0]]
    fl[52] += [W[6], pv1[1]]
    fl[53] += [W[7], pv1[2]]
    fl[54] += [mk, f"s_cmp_eq_u32 s{S_STEP}, {nsteps-1}"] + ([f"s_cbranch_scc1 {pfx}_endk"] if not stamps else [])
    fl[55] += [W[8]]
    fl[56] += [W[9]]
    fl[57] += [W[10], "v_max3_f32 v80, v16, v17, v18"]
    fl[58] += [W[11], kvd[4]]
    fl[59] += [W[12], "v_max3_f32 v82, v19, v20, v21", "v_max3_f32 v80, v80, v22, v23", "v_max_f32 v80, v80, v82", W[13], "s_nop 2", "STAMP"]
    slotno[0] = -11
    run([(m, fl[1 + i]) for i, m in enumerate(ms)])
    ee = lambda r: f"v_exp_f32 v{r}, v{r}"
    for x in ["v_max3_f32 v80, v80, v26, v27", "v_mov_b32 v82, v80", W[14], W[15], "v_permlane32_swap_b32 v80, v82", "v_max_f32 v80, v80, v82",
              "v_mov_b32 v82, v80", "s_nop 1", "v_permlane16_swap_b32 v80, v82", "v_max_f32 v80, v80, v82", f"v_mul_f32 v80, s{S_SC}, v80"]:
        emit(x)
    for r in (26, 16, 18, 20, 22):
        a(f"v_pk_fma_f32 {vr(r,2)}, {vr(r,2)}, {sr(S_SC2,2)}, v[80:81] op_sel_hi:[1,1,0] neg_lo:[0,0,1] neg_hi:[0,0,1]")
    stamp()
    for x in [ee(26), ee(27), ee(16), "v_cvt_pk_bf16_f32 v76, v26, v27", ee(17), "s_nop 0"]:
        emit(x)
    run([("v_mfma_f32_16x16x16_bf16 v[84:87], v[28:29], v[76:77], 0", [ee(18), "v_cvt_pk_bf16_f32 v68, v16, v17"]),
         ("v_mfma_f32_16x16x16_bf16 v[88:91], v[12:13], v[76:77], 0", [ee(19), ee(20)]),
         ("v_mfma_f32_16x16x16_bf16 v[92:95], v[14:15], v[76:77], 0", [ee(21), "v_cvt_pk_bf16_f32 v69, v18, v19", ee(22), ee(23),
            "v_cvt_pk_bf16_f32 v70, v20, v21", "v_cvt_pk_bf16_f32 v71, v22, v23", W[16], "s_nop 0"]),
         ("v_mfma_f32_16x16x32_bf16 v[84:87], v[28:31], v[68:71], v[84:87]", [W[17]]),
         (f"v_mfma_f32_16x16x32_bf16 v[88:91], {vr(VX[0],4)}, v[68:71], v[88:91]", []),
         (f"v_mfma_f32_16x16x32_bf16 v[92:95], {vr(VX[1],4)}, v[68:71], v[92:95]", ["v_rcp_f32 v20, v84", "s_nop 2"])])
    for r in range(88, 92): a(f"v_mul_f32 v{r}, v20, v{r}")
    a("v_pk_mul_f32 v[92:93], v[92:93], v[20:21] op_sel_hi:[1,0]")
    a("v_pk_mul_f32 v[94:95], v[94:95], v[20:21] op_sel_hi:[1,0]")
    for i in range(4): a(f"v_cvt_pk_bf16_f32 v{16+i}, v{88+2*i}, v{89+2*i}")
    if "oexec" in opt: a(f"s_mov_b64 exec, {sr(S_OM,2)}")
    emit((f"ds_write_b128 {vOw}, v[16:19]", "Ow"))
    if "oexec" in opt: a("s_mov_b64 exec, -1")
    stamp()
    a(zero16(64))
    a(zero16(80))
    emit(("w", "Ow"))
    a("s_barrier")
    emit((f"ds_read_b128 v[16:19], {vL16} offset:{L_OS}", "O0"))
    emit((f"ds_read_b128 v[20:23], {vL16} offset:{L_OS+1024}", "O1"))
    a(zero16(80))
    emit(("w", "O1"))
    stamp()
    OA = [64 + 4 * T for T in range(8)]
    buf = {k: WB[k] for k in range(9)}
    for k in range(9, 16): buf[k] = WB[k - 9]
    def wo(k):
        T, ks = divmod(k, 2)
        return f"v_smfmac_f32_16x16x64_bf16 {vr(OA[T], 4)}, {vr(16 + 4*ks, 4)}, {vr(buf[k], 8)}, {vIdx}"
    def add(T):
        o = OA[T]; return [f"v_add_f32 v{o}, v{o}, v{o+1}", f"v_add_f32 v{o+2}, v{o+2}, v{o+3}"]
    G = [OA[0], OA[4]]
    def cvt(tau, bb):
        o0, o1 = OA[tau*4 + 2*bb], OA[tau*4 + 2*bb + 1]
        return [f"v_cvt_pk_bf16_f32 v{G[tau]+bb}, v{o0}, v{o1}", f"v_cvt_pk_bf16_f32 v{G[tau]+2+bb}, v{o0+2}, v{o1+2}"]
    tag = lambda tau: [f"v_and_or_b32 v{G[tau]}, v{G[tau]}, -2, s{S_TAG}"]
    stp = lambda tau: [f"buffer_store_dwordx4 {vr(G[tau],4)}, {vPs}, {sr(S_WS,4)}, s{S_PST+tau} offen{st}"]
    fill = {k: [] for k in range(16)}
    rest = [rdWo(k, buf[k], h) for k in range(9, 16) for h in range(2)]
    if "wo2" in opt:
        sched_rd = {0: 2, 1: 1, 2: 1, 3: 1, 4: 1, 5: 1, 6: 1, 7: 1, 8: 0, 9: 0, 10: 1, 11: 2, 12: 2}
        waits = {8: 10, 10: 12, 12: 13, 13: 14, 14: 15}
        va = {3: add(0)[:1], 4: add(0)[1:], 5: add(1), 6: cvt(0, 0), 7: tag(0) + add(2)[:1], 8: add(2)[1:], 9: add(3) + cvt(0, 1) + stp(0),
              11: add(4)[:1], 12: add(4)[1:], 13: add(5), 14: cvt(1, 0) + tag(1), 15: add(6)}
    else:
        sched_rd = {0: 2, 1: 2, 2: 2, 3: 1, 4: 1, 5: 1, 6: 1, 7: 1, 8: 1, 9: 1, 10: 1}
        waits = {8: 11, 11: 13, 13: 15}
        va = {3: add(0)[:1], 4: add(0)[1:], 5: add(1), 6: cvt(0, 0), 7: tag(0) + add(2)[:1], 8: add(2)[1:], 9: add(3) + cvt(0, 1), 10: stp(0),
              11: add(4)[:1], 12: add(4)[1:], 13: add(5), 14: cvt(1, 0) + tag(1), 15: add(6)}
    for k, n in sched_rd.items():
        for _ in range(n): fill[k].append(rest.pop(0))
    assert not rest
    for k, fr in waits.items(): fill[k].append(("w", ("W", fr)))
    for k, v in va.items(): fill[k] += v
    SEL, RD = 96, 100
    RS = [(104, 108), (112, 120)]
    fill[15] = [(f"ds_read_b128 {vr(SEL,4)}, {vL16} offset:{L_SEL}", "SEL")] + fill[15] + ["v_mov_b32 v117, -1", f"s_mov_b32 s{S_PC}, 0", "s_nop 2"] + add(7) + cvt(1, 1) + stp(1)
    run([(wo(k), fill[k]) for k in range(16)])
    stamp()
    if "nocomm" in opt:
        a(zero16(64)); fx(); a(zero16(80))
        if stamps:
            a(f"s_cmp_eq_u32 s{S_STEP}, {nsteps-1}")
            a(f"s_cbranch_scc1 {pfx}_end")
        a(f"s_add_u32 s{S_STEP}, s{S_STEP}, 1")
        a("s_nop 7")
        a(f"s_branch {pfx}_gA")
    def ldp(st_):
        for n in range(2): a(f"buffer_load_dwordx4 {vr(RS[st_][n],4)}, {vPl}, {sr(S_WS,4)}, s{S_PLD} offen offset:{1024*n} sc1")
    de = geti("de", 4); dl = geti("dl", 6); d2 = geti("db", 3); d3 = geti("dc", 3)
    NOP = "s_nop 7"
    a(zero16(64))
    fx()
    a(zero16(80))
    a(f"s_cmp_lt_u32 s{S_W}, 2")
    for _ in range(de - 2): a(NOP)
    a(f"s_cbranch_scc1 {pfx}_re")
    for _ in range(dl): a(NOP)
    a.label(f"{pfx}_re")
    ldp(0)
    for _ in range(d2): a(zero16(80))
    ldp(1)
    emit(("w", "SEL"))
    for _ in range(d3): a(zero16(80))
    def fin(st_, nm):
        r0, r1 = RS[st_]
        a.label(f"{pfx}_rc{nm}")
        a("s_waitcnt vmcnt(3)")
        a(f"v_mfma_f32_16x16x32_bf16 {vr(RD,4)}, {vr(SEL,4)}, {vr(r0,4)}, 0")
        a(f"v_xor_b32 v118, s{S_TAG}, v{r0}")
        a("s_waitcnt vmcnt(2)")
        a(f"v_mfma_f32_16x16x32_bf16 v[16:19], {vr(SEL,4)}, {vr(r1,4)}, {vr(RD,4)}")
        a(f"v_xor_b32 v119, s{S_TAG}, v{r1}")
        a(f"v_or_b32 v119, v119, v118")
        a(f"v_and_b32 v119, 1, v119")
        a(f"v_cmp_ne_u32 vcc, 0, v119")
        a(f"s_cbranch_vccnz {pfx}_rf{nm}")
    fin(0, "A")
    a.label(f"{pfx}_rok")
    stamp()
    if stamps: a(f"s_mov_b32 s{S_STAMP+28}, s{S_PC}")
    a("s_nop 0" if (stamps and tr0 < 0) else "s_nop 2")
    a("v_add_f32_dpp v16, v16, v16 row_ror:8 row_mask:0xf bank_mask:0xf")
    a("v_add_f32_dpp v17, v17, v17 row_ror:8 row_mask:0xf bank_mask:0xf")
    a("s_nop 0")
    a("v_add_f32_dpp v16, v16, v16 row_ror:4 row_mask:0xf bank_mask:0xf")
    a("v_add_f32_dpp v17, v17, v17 row_ror:4 row_mask:0xf bank_mask:0xf")
    a("v_cvt_pk_bf16_f32 v116, v16, v17")
    a(f"buffer_store_dword v116, {vMp}, {sr(S_WS,4)}, s{S_MWR} offen{st}")
    a(f"buffer_store_dword v117, {vMp}, {sr(S_WS,4)}, s{S_MPO} offen{st}")
    if stamps:
        a(f"s_mov_b32 s{S_STAMP+30}, s{S_STAMP+2*nst[0]}")
    stamp()
    if stamps:
        a(f"s_cmp_eq_u32 s{S_STEP}, {nsteps-1}")
        a(f"s_cbranch_scc1 {pfx}_end")
    ge = geti("ge", 5); g1 = geti("ga", 0); g2 = geti("gb", 3); g3 = geti("gc", 3)
    a(f"s_mov_b32 s{S_MPO}, s{S_MWR}")
    a(f"s_sub_u32 s{S_MRD}, s{S_MWR}, s{S_OWN}")
    a(f"s_cmp_ge_u32 s{S_W}, 2")
    a(f"s_cbranch_scc1 {pfx}_gl")
    for _ in range(ge): a(NOP)
    a.label(f"{pfx}_gl")
    for _ in range(g1): a(NOP)
    a(gather(0))
    if "stept" in opt:
        a("s_memrealtime s[70:71]")
        a(f"s_lshl_b32 s72, s{S_STEP}, 2"); a(f"s_add_u32 s72, s72, {L_JUNK}")
        a("v_mov_b32 v118, s72")
        a("s_waitcnt lgkmcnt(0)")
        a("v_mov_b32 v119, s70")
        a("ds_write_b32 v118, v119")
        g2 -= 1
    a(f"s_add_u32 s{S_MWR}, s{S_MWR}, 8192")
    a(f"s_cmp_ge_u32 s{S_MRD}, {hex(WS_MEM + 2*8192)}")
    a(f"s_cselect_b32 s{S_T0}, {3*8192}, 0")
    a(f"s_sub_u32 s{S_MWR}, s{S_MWR}, s{S_T0}")
    a(f"s_add_u32 s{S_STEP}, s{S_STEP}, 1")
    a(f"s_xor_b32 s{S_TAG}, s{S_TAG}, 1")
    if "mega" in opt:
        if "nofl" not in opt:
            a(f"v_readlane_b32 s{S_HAVE}, {vFl}, 0")
            a(f"v_readlane_b32 s{S_T0}, {vFl}, 2")
        a(f"s_add_u32 s{S_T1}, s{S_STEP}, 2")
        a(f"s_min_u32 s{S_T1}, s{S_T1}, 64")
        if "nofl" not in opt: a(f"s_min_u32 s{S_HAVE}, s{S_HAVE}, s{S_T0}")
        kv_wait(a, f"s{S_T1}", pfx + "_kvw")
        g2 -= 1
    a(f"s_mov_b32 s{S_PC}, 0")
    for _ in range(g2 - 1): a(NOP)
    a(gather(0))
    for _ in range(g3): a(NOP)
    a(gather(1))
    a(f"s_branch {pfx}_gA")
    a.label(f"{pfx}_rfA")
    if "rstat" in opt: a("s_add_u32 s60, s60, 1")
    ldp(0)
    a(f"s_add_u32 s{S_PC}, s{S_PC}, 1")
    fin(1, "B")
    a(f"s_branch {pfx}_rok")
    a.label(f"{pfx}_rfB")
    if "rstat" in opt: a("s_add_u32 s63, s63, 1")
    ldp(1)
    a(f"s_add_u32 s{S_PC}, s{S_PC}, 1")
    a(f"s_cmp_lt_u32 s{S_PC}, s{S_PMAX}")
    a(f"s_cbranch_scc1 {pfx}_rcA")
    a(f"s_mov_b32 s{S_PMAX}, 1")
    a(f"s_branch {pfx}_rok")
    a.label(pfx + "_endk")
    a.label(pfx + "_end")
    a(kvm[0])
    if "stept" in opt:
        a(f"v_lshrrev_b32 v118, 2, {vL16}")
        a(f"ds_read_b32 v119, v118 offset:{L_JUNK}")
        a(f"s_lshl_b32 s72, s{S_H}, 8"); a(f"s_add_u32 s72, s72, {hex(WS_STAMP + 0x20000)}")
        a("s_waitcnt lgkmcnt(0)")
        a(f"buffer_store_dword v119, v118, {sr(S_WS,4)}, s72 offen")
    return nst[0]
```

```python
import sys
from common import *
import rec, pre, gemm
L_BOOT = 163840 - 64

def read_counts(a, vdst="v25", vaddr="v24"):
    a(f"global_load_dword {vdst}, {vaddr}, {sr(S_DBG,2)} sc1")
    a("s_waitcnt vmcnt(0)")

def sum_arrivals(a, vb, dst, tmp):
    a(f"v_readlane_b32 s{dst}, {vb}, {D_OVF}")
    for x in range(8):
        a(f"v_readlane_b32 s{tmp}, {vb}, {0 if x == 0 else 15 + x}")
        a("s_nop 1")
        a(f"s_bcnt1_i32_b32 s{tmp}, s{tmp}")
        a(f"s_add_u32 s{dst}, s{dst}, s{tmp}")

def emit_entry(a, opt):
    a("s_cmp_ge_u32 s2, 256")
    a("s_cbranch_scc1 L_exit")
    a("s_load_dwordx4 s[48:51], s[0:1], 112")
    a(f"s_getreg_b32 s{S_TEAM}, hwreg(HW_REG_XCC_ID)")
    a(f"s_and_b32 s{S_TEAM}, s{S_TEAM}, 7")
    for o in opt:
        if o.startswith("map"):
            word = sum(int(c) << (4 * i) for i, c in enumerate(o[3:]))
            a(f"s_lshl_b32 s16, s{S_TEAM}, 2")
            a(f"s_lshr_b32 s{S_TEAM}, {hex(word)}, s16")
            a(f"s_and_b32 s{S_TEAM}, s{S_TEAM}, 7")
    if "fakexcc" in opt:
        a(f"s_lshr_b32 s{S_TEAM}, s2, 5")
        a("s_and_b32 s16, s2, 7")
        a("s_cmp_eq_u32 s16, 3")
        a(f"s_cselect_b32 s16, 5, s{S_TEAM}")
        a(f"s_mov_b32 s{S_TEAM}, s16")
    if "time" in opt: a("s_memrealtime s[92:93]")
    a("v_lshrrev_b32 v1, 6, v0")
    a(f"s_lshr_b32 s{S_H}, s2, 3")
    a(f"v_readfirstlane_b32 s{S_W}, v1")
    a(f"s_mov_b32 s{S_CLM}, 0")
    a("s_waitcnt lgkmcnt(0)")
    a(f"s_mov_b32 s{S_DBG}, s48")
    a(f"s_mov_b32 s{S_DBG+1}, s49")
    srd(a, S_WS, 50, WS_SIZE)
    if "cpf" in opt:
        a("s_getpc_b64 s[16:17]")
        a("s_and_b32 s16, s16, 0xffffff00")
        a(f"s_lshl_b32 s18, s{S_H}, 12"); a(f"s_lshl_b32 s19, s{S_W}, 10"); a("s_add_u32 s18, s18, s19")
        a("v_and_b32 v123, 7, v0"); a("v_lshlrev_b32 v123, 7, v123"); a("v_add_u32 v123, s18, v123")
        a("v_min_u32 v123, CODE_BYTES, v123")
        a("s_mov_b64 exec, 0xff")
        a("global_load_dword v122, v123, s[16:17]")
        a("s_mov_b64 exec, -1")
    a.label("L_role")

def emit_overflow(a):
    a.label("L_overflow")
    a("s_waitcnt vmcnt(0) lgkmcnt(0)")
    a("s_barrier")
    a("v_mov_b32 v2, 0"); a("v_mov_b32 v3, 1"); a("v_mov_b32 v5, 0")
    a(f"s_cmp_lg_u32 s{S_W}, 0")
    a("s_cbranch_scc1 L_ovw")
    a("s_mov_b64 exec, 1")
    a(f"global_atomic_add v4, v2, v3, {sr(S_DBG,2)} offset:{4*D_OVF} sc0")
    a("s_waitcnt vmcnt(0)")
    a("ds_write_b32 v5, v4")
    a("s_waitcnt lgkmcnt(0)")
    a("s_mov_b64 exec, -1")
    a.label("L_ovw")
    a("s_barrier")
    a("ds_read_b32 v4, v5")
    a("s_waitcnt lgkmcnt(0)")
    a("v_readfirstlane_b32 s18, v4")
    a("s_barrier")
    a("v_and_b32 v24, 31, v0"); a("v_lshlrev_b32 v24, 2, v24")
    a("s_mov_b32 s17, 0")
    a.label("L_ov")
    read_counts(a)
    sum_arrivals(a, "v25", 19, 20)
    a("s_cmp_ge_u32 s19, 256")
    a("s_cbranch_scc1 L_ovok")
    a("s_sleep 32")
    a("s_add_u32 s17, s17, 1")
    a("s_cmp_lt_u32 s17, 50000")
    a("s_cbranch_scc1 L_ov")
    a("s_branch L_exit")
    a.label("L_ovok")
    for x in range(8):
        a(f"v_readlane_b32 s20, v25, {0 if x == 0 else 15 + x}")
        a(f"s_mov_b32 s{S_TEAM}, {x}")
        a("s_nop 1")
        a("s_bcnt0_i32_b32 s19, s20")
        a("s_cmp_lt_u32 s18, s19")
        a("s_cbranch_scc1 L_ovf")
        a("s_sub_u32 s18, s18, s19")
    a("s_branch L_exit")
    a.label("L_ovf")
    a("s_cmp_eq_u32 s18, 0")
    a("s_cbranch_scc1 L_ovg")
    a("s_add_u32 s19, s20, 1")
    a("s_or_b32 s20, s20, s19")
    a("s_sub_u32 s18, s18, 1")
    a("s_branch L_ovf")
    a.label("L_ovg")
    a(f"s_ff0_i32_b32 s{S_H}, s20")
    a(f"s_and_b32 s{S_H}, s{S_H}, 31")
    a("s_branch L_role")

def emit_mode(a, opt, slow_label, va="v24", vb="v25"):
    if "fakexcc" in opt or "slow" in opt:
        a(f"s_branch {slow_label}")
        return
    l = a.uid("md")
    a(f"v_mbcnt_lo_u32_b32 {va}, -1, 0")
    a(f"v_and_b32 {va}, 31, {va}"); a(f"v_lshlrev_b32 {va}, 2, {va}")
    a(f"s_add_u32 s50, s{S_TEAM}, 15")
    a(f"s_cmp_eq_u32 s{S_TEAM}, 0")
    a("s_cselect_b32 s50, 0, s50")
    a("s_mov_b32 s51, 0")
    a.label(l)
    read_counts(a, vb, va)
    a(f"v_readlane_b32 s48, {vb}, s50")
    a("s_nop 1")
    a("s_cmp_eq_u32 s48, -1")
    a(f"s_cbranch_scc1 {l}_ok")
    sum_arrivals(a, vb, 48, 49)
    a("s_cmp_ge_u32 s48, 256")
    a(f"s_cbranch_scc1 {slow_label}")
    a("s_sleep 32")
    a("s_add_u32 s51, s51, 1")
    a("s_cmp_lt_u32 s51, 50000")
    a(f"s_cbranch_scc1 {l}")
    a(f"s_branch {slow_label}")
    a.label(l + "_ok")

def build(opt=()):
    a = Asm()
    hdr = open("cdna_kernels/" + KNAME + ".s.ref").read().split("\n") if "nohdr" not in opt else []
    for l in hdr:
        if l.startswith(";") and "@launch" not in l: a.raw(l)
        elif not l.startswith(";"): break
    a.raw("; @launch grid=(256,1,1) block=(256,1,1) lds=163840")
    a.raw('.amdgcn_target "amdgcn-amd-amdhsa--gfx950"')
    a.raw(".text")
    a.raw(f".globl {KNAME}_kernel")
    a.raw(".p2align 8")
    a.raw(f".type {KNAME}_kernel,@function")
    a.label(f"{KNAME}_kernel")
    emit_entry(a, opt)
    a(f"s_cmp_lg_u32 s{S_TEAM}, 0")
    a("s_cbranch_scc1 L_notR")
    rec.emit_rec_mega(a, opt)
    a("s_branch L_done")
    a.label("L_notR")
    a(f"s_cmp_ge_u32 s{S_TEAM}, {T0_}")
    a("s_cbranch_scc1 L_T")
    a(f"s_cmp_eq_u32 s{S_TEAM}, 1")
    a("s_cbranch_scc1 L_P")
    gemm.emit_gemm(a, opt)
    a("s_branch L_done")
    emit_overflow(a)
    a.label("L_P")
    a(f"s_mov_b32 s16, s{S_H}")
    a.label("L_Ploop")
    pre.emit_pre(a, opt)
    a("s_add_u32 s16, s16, 32")
    a("s_cmp_lt_u32 s16, 128")
    a("s_barrier")
    a("s_cbranch_scc1 L_Ploop")
    a("s_waitcnt vmcnt(0)")
    a("s_barrier")
    a(f"s_cmp_lg_u32 s{S_W}, 0")
    a("s_cbranch_scc1 L_done")
    dbg_arrive(a, D_PRE)
    a("s_branch L_done")
    a.label("L_T")
    import post
    post.emit_post(a, opt)
    a.label("L_done")
    if "time" in opt and "dbgtime" not in opt:
        a("s_memrealtime s[94:95]")
        a("s_memtime s[100:101]")
        a("s_waitcnt vmcnt(0) lgkmcnt(0)")
        a(f"s_cmp_lg_u32 s{S_W}, 0")
        a("s_cbranch_scc1 L_exit")
        a(f"s_lshl_b32 s48, s{S_TEAM}, 5")
        a(f"s_add_u32 s48, s48, s{S_H}")
        a("s_lshl_b32 s48, s48, 8")
        a(f"s_add_u32 s48, s48, {hex(WS_STAMP)}")
        a("v_mov_b32 v2, 0")
        a("s_mov_b64 exec, 1")
        for i in range(18):
            a(f"v_mov_b32 v3, s{84+i}")
            a(f"buffer_store_dword v3, v2, {sr(S_WS,4)}, s48 offen offset:{4*i}")
        for i in range(8):
            a(f"v_mov_b32 v3, s{76+i}")
            a(f"buffer_store_dword v3, v2, {sr(S_WS,4)}, s48 offen offset:{80+4*i}")
        a("s_mov_b64 exec, -1")
        a("v_mbcnt_lo_u32_b32 v2, -1, 0")
        a("v_lshlrev_b32 v2, 2, v2")
        a("s_mov_b64 exec, 0xffffffff")
        a(f"buffer_store_dword v143, v2, {sr(S_WS,4)}, s48 offen offset:128")
        a("s_waitcnt vmcnt(0)")
    if "dbgtime" in opt:
        a("s_memrealtime s[94:95]"); a("s_memtime s[100:101]")
        a("s_waitcnt vmcnt(0) lgkmcnt(0)")
        a(f"s_or_b32 s48, s{S_W}, s{S_H}")
        a("s_cbranch_scc1 L_exit")
        a("s_mov_b32 s50, 16")
        a(f"s_cmp_eq_u32 s{S_TEAM}, 0")
        a("s_cbranch_scc1 L_dt")
        a("s_mov_b32 s50, 40")
        a(f"s_cmp_lg_u32 s{S_TEAM}, 6")
        a("s_cbranch_scc1 L_exit")
        a.label("L_dt")
        a("v_mov_b32 v2, s50")
        a("s_mov_b64 exec, 1")
        a("s_sub_u32 s84, s84, s92"); a("s_sub_u32 s86, s86, s92"); a("s_sub_u32 s96, s94, s96"); a("s_sub_u32 s94, s94, s92"); a("s_sub_u32 s100, s100, s98")
        for i, r in enumerate((84, 86, 94, 96, 100)):
            a(f"v_mov_b32 v3, s{r}")
            a(f"global_store_dword v2, v3, {sr(S_DBG,2)} offset:{4*i}")
        a("s_waitcnt vmcnt(0)")
    a.label("L_exit")
    a("s_endpgm")
    a.label("L_codeend")
    a.raw(f".set CODE_BYTES, L_codeend - {KNAME}_kernel - 4")
    a.raw('.section .rodata,"a"')
    a.raw(".p2align 6")
    a.raw(f".amdhsa_kernel {KNAME}_kernel")
    for l in ["next_free_vgpr 512", "next_free_sgpr 102", "accum_offset 256", "group_segment_fixed_size 0", "kernarg_size 128",
              "user_sgpr_count 2", "user_sgpr_kernarg_segment_ptr 1", "system_sgpr_workgroup_id_x 1", "float_denorm_mode_32 3"]:
        a.raw("  .amdhsa_" + l)
    a.raw(".end_amdhsa_kernel")
    return a.text()

if __name__ == "__main__":
    out = sys.argv[1]
    t = build(sys.argv[2:])
    open(out, "w").write(t)
    errs = check_hazards(t)
    for e in errs: print("HAZARD", e)
    print("lines", t.count("\n"), "bytes", len(t), "hazards", len(errs))
```

```python
from common import *
import math, struct

L_MEM = 0
L_K   = 8192
L_V   = 16384
L_QK  = 24576
L_OS  = 28672
L_SEL = 30720
L_JUNK= 31744
L_MISC= 32256
L_WO  = 32768

S_STEP = 16
S_PST = 17
S_PLD = 19
S_MRD, S_MWR, S_MPO = 22, 23, 24
S_KX, S_VX, S_KVM = 25, 26, 27
S_TAG, S_PMAX, S_PC = 28, 29, 30
S_SC = 31
S_PTR = 32
S_T0, S_T1, S_T2, S_T3 = 48, 49, 50, 51
S_OWN = 52
S_WOB = 53
S_WOL = 54
S_STAMP = 60

vFl = "v0"
vL16w, vL16, vXw, vXr, vOw, vWo, vPs, vMp, vIdx = ["v%d" % i for i in range(1, 10)]
vPl = vL16
vZ = "v[10:11]"
vT0, vT1 = "v12", "v13"
vFx = ["v28", "v29", "v30"]
SX0, SX1, SM = 16, 20, 24
vM = "v31"
FA, FB = 32, 120
F = [32 + 4 * i for i in range(8)]
ACC = {("q", 0): 64, ("q", 1): 68, ("k", 0): 72, ("k", 1): 76, ("v", 0): 80, ("v", 1): 84}
QF = [88 + 4 * i for i in range(4)]
KF = [104 + 4 * i for i in range(4)]
KXR = {(0, 0): 32, (1, 0): 24, (0, 1): 104, (1, 1): 108, (0, 2): 112, (1, 2): 116, (0, 3): 120, (1, 3): 124}
VX = [64, 72]
MI = {"q": 0, "k": 1, "v": 2}

def wreg(m, t, sig, off=0, n=8):
    idx = ((MI[m] * 2 + t) * 8 + sig) * 8 + off
    if idx < 256: return ar(idx, n)
    return vr(128 + idx - 256, n)

def smf(m, t, sig, own=FA):
    f = own + 4 * sig if sig < 2 else F[sig]
    return f"v_smfmac_f32_16x16x64_bf16 {vr(ACC[(m,t)],4)}, {vr(f,4)}, {wreg(m,t,sig)}, {vIdx}"

S_HAVE, S_FLG, S_KVC = 55, 56, 26
S_SC2, S_OM = 58, 46
def emit_rec_init(a, sh, ptr):
    LE = lambda *x, **k: lane_expr(a, *x, tmp="v31", **k)
    WS = sr(S_WS, 4)
    srd(a, S_T, ptr, 8192)
    LE("v16", "v0", [(5, 1, 10), (4, 1, 6), (0, 2, 1)])
    sexpr(a, 48, [(sh, 1, 2, 11), (sh, 3, 2, 8), (S_W, 1, 1, 7), (sh, 0, 1, 4), (S_W, 0, 1, 3)])
    a(f"buffer_load_ushort v17, v16, {sr(S_T,4)}, s48 offen")
    a(f"buffer_load_ushort v18, v16, {sr(S_T,4)}, s48 offen offset:32")
    LE("v20", "v0", [(0, 6, 4)])
    LE("v21", "v0", [(5, 1, 5), (0, 2, 3), (4, 1, 2), (2, 2, 30)])
    for i in range(4): a(f"v_mov_b32 v{24+i}, 0")
    a("v_mov_b32 v19, -1")
    sexpr(a, 48, [(sh, 0, 5, 13), (S_W, 0, 2, 11)], WS_PART)
    a(f"buffer_store_dwordx4 v[24:27], v20, {WS}, s48 offen sc1")
    a(f"buffer_store_dwordx4 v[24:27], v20, {WS}, s48 offen offset:1024 sc1")
    sexpr(a, 50, [(sh, 3, 2, 11), (S_W, 1, 1, 10), (sh, 0, 1, 9), (S_W, 0, 1, 8), (sh, 1, 2, 6)], WS_MEM)
    for sl in (1, 2):
        a(f"s_add_u32 s48, s50, {8192*sl}")
        a(f"buffer_store_dword v19, v21, {WS}, s48 offen sc1")
    a("s_waitcnt vmcnt(4)")
    a("v_lshl_or_b32 v17, v18, 16, v17")
    a(f"buffer_store_dword v17, v21, {WS}, s50 offen sc1")

def emit_rec_setup(a, pfx="R", own_init=True, opt=()):
    st = " sc1"
    LE = lambda *x, **k: lane_expr(a, *x, tmp="v31", **k)
    a.c("==== recurrence role: s14 = head, s15 = wave ====")
    q = VmQ(a)
    if own_init:
        emit_rec_init(a, S_H, S_PTR + 2)
        a("s_waitcnt vmcnt(0)")
        dbg_arrive(a, D_RTB)
        a("s_waitcnt vmcnt(0)")

    D = [32, 33]
    E = [36, 37, 38, 39]
    LE("v28", "v0", [(4, 2, 5)])
    LE("v29", "v0", [(0, 4, 4)])
    a("v_xor_b32 v28, v28, v29")
    LE("v30", "v0", [(4, 2, 13)])
    a(f"v_add_u32 v{D[0]}, v28, v30")
    a(f"v_xor_b32 v{D[1]}, 128, v{D[0]}")
    sexpr(a, S_T2, [(S_H, 0, 5, 8), (S_W, 0, 2, 18)])
    sexpr(a, S_T3, [(S_W, 0, 2, 13)], L_WO)
    sexpr(a, S_WOB, [(S_H, 0, 5, 17), (S_W, 0, 2, 15)])

    def dma_chunk(a, q, n):
        m, ch = divmod(n, 4)
        if ch == 0:
            srd(a, S_T, S_PTR + 4 + 2 * m, 4194304)
        for i in range(8):
            a(f"s_add_u32 m0, s{S_T3}, {ch * 32768 + i * 1024}")
            if m < 3:
                a(f"s_add_u32 s{S_T0}, s{S_T2}, {hex((128 * ch + 4 * i) * 8192)}")
                a(f"buffer_load_dwordx4 v{D[(i >> 2) & 1]}, {sr(S_T,4)}, s{S_T0} offen lds")
            else:
                a(f"s_add_u32 s{S_T0}, s{S_WOB}, {hex(4 * i * 1024 + ch * 256)}")
                a(f"buffer_load_dwordx4 v{E[(i & 1) + 2 * ((i >> 2) & 1)]}, {sr(S_T,4)}, s{S_T0} offen lds")
        q.issue(("d", n), 8)

    if "time" in opt: a("s_memrealtime s[76:77]")
    for n in range(4): dma_chunk(a, q, n)
    LE(vL16w, "v0", [(0, 6, 4), (6, 2, 11)])
    LE(vL16, "v0", [(0, 6, 4)])
    LE(vXw, "v0", [(6, 2, 10), (0, 4, 5), (4, 2, 3)], L_QK)
    LE("v16", "v0", [(2, 2, 3)])
    a(f"v_xor_b32 {vXw}, {vXw}, v16")
    LE(vXr, "v0", [(0, 6, 3)], L_QK)
    LE("v16", "v0", [(4, 2, 3)])
    a(f"v_xor_b32 {vXr}, {vXr}, v16")
    LE(vOw, "v0", [(6, 2, 9), (5, 1, 8), (2, 2, 6), (0, 1, 5), (4, 1, 4)], L_OS)
    LE("v16", "v0", [(5, 1, 8), (2, 2, 6), (0, 1, 5), (4, 1, 4)], L_JUNK)
    a("v_and_b32 v17, 2, v0")
    a("v_cmp_ne_u32 vcc, 0, v17")
    a("s_nop 1")
    a(f"v_cndmask_b32 {vOw}, {vOw}, v16, vcc")
    for r in (10, 11, 14, 15): a(f"v_mov_b32 v{r}, 0")
    LE(vWo, "v0", [(6, 2, 15), (0, 6, 4)], L_WO)
    LE(vPs, "v0", [(4, 2, 14), (3, 1, 13), (2, 1, 11), (0, 2, 4)])
    LE(vMp, "v0", [(5, 1, 5), (0, 2, 3), (4, 1, 2), (2, 2, 30)])
    a(f"v_and_b32 v16, 1, v0")
    a(f"v_mul_u32_u24 {vIdx}, 0xaaaa, v16")
    a(f"v_add_u32 {vIdx}, 0x4444, {vIdx}")
    a("v_and_b32 v16, 3, v0")
    a("v_bfe_u32 v17, v0, 2, 2")
    a("v_mov_b32 v18, 0x3f80")
    a("v_mov_b32 v19, 0x3f800000")
    a("v_cmp_eq_u32 vcc, 1, v16")
    a("s_nop 1")
    a("v_cndmask_b32 v18, v18, v19, vcc")
    a("v_cmp_gt_u32 vcc, 2, v16")
    a("s_nop 1")
    a("v_cndmask_b32 v18, 0, v18, vcc")
    for d in range(4):
        a(f"v_cmp_eq_u32 vcc, {d}, v17")
        a("s_nop 1")
        a(f"v_cndmask_b32 v{20+d}, 0, v18, vcc")
    a(f"ds_write_b128 {vL16}, v[20:23] offset:{L_SEL}")
    for tau in range(2):
        sexpr(a, S_PST + tau, [(S_W, 0, 2, 16), (S_H, 0, 5, 6)], WS_PART + tau * 4096)
    sexpr(a, S_PLD, [(S_H, 0, 5, 13), (S_W, 0, 2, 11)], WS_PART)
    sexpr(a, S_OWN, [(S_H, 3, 2, 11), (S_W, 1, 1, 10), (S_H, 0, 1, 9), (S_W, 0, 1, 8), (S_H, 1, 2, 6)])
    a(f"s_mov_b32 s{S_MRD}, {hex(WS_MEM)}")
    a(f"s_add_u32 s{S_MPO}, s{S_OWN}, {hex(WS_MEM)}")
    a(f"s_add_u32 s{S_MWR}, s{S_OWN}, {hex(WS_MEM + 8192)}")
    a(f"s_mul_i32 s{S_T0}, s{S_H}, {HSTR}")
    sexpr(a, S_KX, [(S_W, 0, 2, 12)], WS_KV)
    a(f"s_add_u32 s{S_KX}, s{S_KX}, s{S_T0}")
    a(f"s_mul_i32 s{S_T0}, s{S_H}, {MSTR}")
    sexpr(a, S_KVM, [(S_W, 0, 2, 10)], WS_KM)
    a(f"s_add_u32 s{S_KVM}, s{S_KVM}, s{S_T0}")
    a(f"s_mov_b32 s{S_STEP}, 0")
    a(f"s_mov_b32 s{S_TAG}, 1")
    a(f"s_mov_b32 s{S_PMAX}, 20000")
    sc = (128 ** -0.5) * math.log2(math.e)
    a(f"s_mov_b32 s{S_SC}, {hex(struct.unpack('<I', struct.pack('<f', sc))[0])}")

    a(f"s_mov_b32 s{S_SC2}, s{S_SC}"); a(f"s_mov_b32 s{S_SC2+1}, s{S_SC}")
    a(f"s_mov_b32 s{S_OM}, 0x33333333"); a(f"s_mov_b32 s{S_OM+1}, 0x33333333")
    LE("v28", "v0", [(4, 1, 5)])
    LE("v29", "v0", [(0, 4, 4)])
    a("v_xor_b32 v28, v28, v29")
    LE("v30", "v0", [(4, 2, 10)])
    a(f"v_add_u32 v{E[0]}, v28, v30")
    a(f"v_xor_b32 v{E[1]}, 64, v{E[0]}")
    a(f"v_xor_b32 v{E[2]}, 128, v{E[0]}")
    a(f"v_xor_b32 v{E[3]}, 192, v{E[0]}")
    TR = [40, 41]
    LE("v28", "v0", [(2, 1, 12), (5, 1, 10), (3, 1, 9), (4, 1, 8), (0, 1, 3)])
    LE("v29", "v0", [(6, 2, 6), (1, 1, 4)])
    LE("v30", "v0", [(4, 1, 5), (3, 1, 6), (2, 1, 7)])
    a("v_xor_b32 v29, v29, v30")
    a(f"v_add_u32 v{TR[0]}, v28, v29")
    a(f"v_xor_b32 v{TR[1]}, 32, v{TR[0]}")

    done = pfx + "_wdone"
    for w in range(4):
        if w < 3:
            a(f"s_cmp_lg_u32 s{S_W}, {w}")
            a(f"s_cbranch_scc1 {pfx}_wl{w+1}")
        qq = q.clone()
        for n in range(13):
            if n < 12:
                qq.wait(("d", n))
            a("s_barrier")
            if "time" in opt and n in (0, 4, 8): a(f"s_memrealtime s[{78+n//2}:{79+n//2}]")
            if 0 < n and n + 3 < 16: dma_chunk(a, qq, n + 3)
            if n == 12: break
            m, ch = divmod(n, 4)
            mn = "qkv"[m]
            a(f"v_add_u32 v26, {L_WO + ch * 32768}, v{TR[0]}")
            a(f"v_add_u32 v27, {L_WO + ch * 32768}, v{TR[1]}")
            for k2 in range(2):
                sig = (2 * ch + k2) ^ (2 * w)
                for t in range(2):
                    for p in range(4):
                        off = (64 * k2 + 32 * (p % 2) + 8 * (p // 2)) * 256
                        a(f"ds_read_b64_tr_b16 {wreg(mn, t, sig, 2 * p, 2)}, v{26+t} offset:{off}")
            a("s_waitcnt lgkmcnt(0)")
        if w < 3:
            a(f"s_branch {done}")
            a.label(f"{pfx}_wl{w+1}")
    a.label(done)
    LE("v24", "v0", [(4, 1, 12), (5, 1, 11), (3, 1, 10), (2, 1, 8), (6, 2, 15), (1, 1, 4), (0, 1, 3),
                     (2, 1, 5), (3, 1, 6), (4, 1, 7)], L_WO)
    if not own_init: claim(a)
    a("s_waitcnt vmcnt(0)")
    a("s_barrier")
    for ks in range(2):
        for tau in range(2):
            for b in range(4):
                a(f"v_xor_b32 v25, {128 * tau + 32 * b}, v24")
                base = 32 + (tau * 4 + b) * 8
                for p in range(4):
                    off = (64 * ks + 32 * (p // 2) + 2 * (p % 2)) * 256
                    a(f"ds_read_b64_tr_b16 {vr(base + 2 * p, 2)}, v25 offset:{off}")
        a("s_waitcnt lgkmcnt(0)")
        for i in range(16):
            a(f"ds_write_b128 {vWo}, {vr(32 + 4 * i, 4)} offset:{ks * 16384 + i * 1024}")
        a("s_waitcnt lgkmcnt(0)")
    if own_init: dbg_wait(a, D_RTB, 128, sleep=8)
    else: verify_claim(a, 0, L_MISC)

def kv_wait(a, need_sreg_or_imm, tag):
    l = a.uid(tag)
    need = need_sreg_or_imm
    a(f"s_cmp_ge_u32 s{S_HAVE}, {need}")
    a(f"s_cbranch_scc1 {l}_ok")
    a(f"s_mov_b32 s{S_PC}, 0")
    a.label(l)
    a(f"buffer_load_dword v119, {vMp}, {sr(S_WS,4)}, s{S_FLG} offen sc1")
    a("s_waitcnt vmcnt(0)")
    a(f"v_readlane_b32 s{S_HAVE}, v119, 0")
    a(f"v_readlane_b32 s{S_T0}, v119, 2")
    a("s_nop 1")
    a(f"s_min_u32 s{S_HAVE}, s{S_HAVE}, s{S_T0}")
    a(f"s_cmp_ge_u32 s{S_HAVE}, {need}")
    a(f"s_cbranch_scc1 {l}_ok")
    a("s_sleep 2")
    a(f"s_add_u32 s{S_PC}, s{S_PC}, 1")
    a(f"s_cmp_lt_u32 s{S_PC}, s{S_PMAX}")
    a(f"s_cbranch_scc1 {l}")
    a(f"s_mov_b32 s{S_PMAX}, 1")
    a.label(l + "_ok")

def emit_rec_mega(a, opt):
    import mega
    a(f"s_load_dwordx16 {sr(S_PTR,16)}, s[0:1], 0")
    a("s_waitcnt lgkmcnt(0)")
    emit_rec_setup(a, own_init=False, opt=opt)
    if "time" in opt: a("s_memrealtime s[84:85]")
    dbg_wait(a, D_LN1, N_LN1, sleep=16)
    sexpr(a, S_FLG, [(S_H, 0, 5, 7)], WS_FLAG)
    a(f"s_mov_b32 s{S_HAVE}, 0")
    kv_wait(a, 2, "kvw")
    if "time" in opt: a("s_memrealtime s[86:87]")
    mega.emit_mode(a, opt, "R_slow")
    ropt = list(opt) + ["mega", "oexec", "f1s", "ge5", "ga2", "gb4", "c112", "b15", "de5", "dl5", "db4", "dc2"]
    emit_rec(a, fast=True, pfx="RF", opt=ropt)
    a("s_branch L_done")
    a.label("R_slow")
    emit_rec(a, fast=False, pfx="RS", opt=ropt)

def emit_rec(a, fast=True, stamps=False, nsteps=64, pfx="R", warm=True, opt=()):
    st = "" if fast else " sc1"
    def geti(p, d):
        for o in opt:
            if o.startswith(p) and o[len(p):].isdigit(): return int(o[len(p):])
        return d
    nst = [0]
    tr0 = geti("tr", -1)
    slotno = [0]
    def stamp(force=False):
        if stamps and (tr0 < 0 or force):
            a(f"s_memtime {sr(S_STAMP + 2 * nst[0], 2)}"); nst[0] += 1
    if "mega" not in opt: emit_rec_setup(a, pfx)

    lq = LQ()
    rms = [o[3:] for o in opt if o.startswith("rm:")]
    def emit(x):
        txt = x if isinstance(x, str) else x[0]
        if isinstance(x, str) and any(r in txt for r in rms): return
        if x == "STAMP": stamp()
        elif isinstance(x, tuple):
            if x[0] == "w":
                wt = lq.wait(x[1])
                if isinstance(x[1], tuple) and x[1][0] == "Fw": assert wt.endswith("(0)")
                a(wt)
            elif x[0] == "L": a.label(x[1])
            else:
                a(x[0]); lq.issue(x[1])
        else: a(x)
    def run(seq, count=True):
        for m, fill in seq:
            if m: a(m)
            if tr0 >= 0 and count and tr0 <= slotno[0] + 12 < tr0 + geti("tn", 13): stamp(True)
            if count: slotno[0] += 1
            for f in fill: emit(f)

    kvd = [f"buffer_load_dwordx4 {vL16}, {sr(S_WS,4)}, s{S_KX} offen offset:{1024*i} sc1 lds" for i in range(4)] + [f"s_add_u32 s{S_KX}, s{S_KX}, 16384"]
    zero16 = lambda r: f"v_mfma_f32_32x32x8_bf16 {vr(r,16)}, {vZ}, {vZ}, 0"
    zero4 = lambda r: f"v_mfma_f32_16x16x16_bf16 {vr(r,4)}, {vZ}, {vZ}, 0"
    def gather(sig):
        return f"buffer_load_dwordx4 {vr(F[sig],4)}, {vL16w}, {sr(S_WS,4)}, s{S_MRD} offen offset:{1024*sig} sc1"
    def fx():
        for i in range(3): a(f"v_xor_b32 {vFx[i]}, {2048 * (i + 1)}, {vL16w}")
    S_MK, S_MV = S_T2, S_T3
    sexpr(a, S_MK, [(S_W, 0, 2, 11)], L_K)
    sexpr(a, S_MV, [(S_W, 0, 2, 11)], L_V - 2048)
    mk, mv = f"s_mov_b32 m0, s{S_MK}", f"s_mov_b32 m0, s{S_MV}"
    for x in [mk, "s_nop 0"] + kvd[:2] + [mv, "s_nop 0"] + kvd[2:] + [mk]: a(x)
    a(f"s_sub_u32 s{S_KVM}, s{S_KVM}, 4096")
    a(f"s_add_u32 s{S_T0}, s{S_KVM}, {65*4096}")
    a(f"s_mov_b32 s{S_KVC}, s{S_T0}")
    if "nokv" in opt: kvd = ["s_nop 0"] * 5
    a(zero16(64)); a(zero16(80))
    fx()
    a(f"s_mov_b32 s{S_PC}, 0")
    if stamps or "nost" in opt or "time" in opt:
        a("s_memrealtime s[96:97]"); a("s_memtime s[98:99]")
    if "rstat" in opt:
        for r in range(60, 64): a(f"s_mov_b32 s{r}, 0")
    a(gather(0)); a(gather(0))
    if "f1s" not in opt: a(gather(1))

    rdF = lambda sig: (f"ds_read_b128 {vr(F[sig],4)}, {vFx[sig//2-1]} offset:{L_MEM + (sig%2)*1024}", ("F", sig))
    rdKX = lambda t, ks: (f"ds_read_b128 {vr(KXR[(t,ks)],4)}, {vL16} offset:{L_K + (t*4+ks)*1024}", "KX")
    trQ = lambda ks, u: (f"ds_read_b64_tr_b16 {vr(QF[ks]+2*u,2)}, {vXr} offset:{1024*ks+512*u}", ("Q", ks))
    trK = lambda ks, u: (f"ds_read_b64_tr_b16 {vr(KF[ks]+2*u,2)}, {vXr} offset:{1024*ks+512*u}", ("K", ks))
    rdV = lambda t: (f"ds_read_b128 {vr(VX[t],4)}, {vL16w} offset:{L_V + t*1024}", "V")
    def sx(t, ks):
        d = vr([SX0, SX1][t], 4)
        return f"v_mfma_f32_16x16x32_bf16 {d}, {vr(KXR[(t,ks)],4)}, {vr(QF[ks],4)}, {d if ks else 0}"
    def sm(ks):
        d = vr(SM, 4)
        return f"v_mfma_f32_16x16x32_bf16 {d}, {vr(QF[ks],4)}, {vr(QF[ks],4)}, {d if ks else 0}"
    kvm = [f"buffer_store_dwordx4 v[12:15], {vL16}, {sr(S_WS,4)}, s{S_KVC} offen sc1", f"s_add_u32 s{S_KVM}, s{S_KVM}, 4096", f"s_mov_b32 s{S_KVC}, s{S_KVM}"]
    if "nokvm" in opt: kvm[0] = "s_nop 0"

    nc = "nocomm" in opt
    def chk(sig):
        f = F[sig]
        return [f"v_max3_u32 v16, v{f}, v{f+1}, v{f+2}", f"v_max_u32 v16, v16, v{f+3}", f"v_cmp_eq_u32 vcc, -1, v16"]
    wrF = lambda sig: (f"ds_write_b128 {vL16w}, {vr(F[sig],4)} offset:{L_MEM + 1024*sig}", ("Fw", sig))
    def gfail(sig, first_wait, redo):
        a.label(f"{pfx}_gf{sig}")
        a(f"s_waitcnt vmcnt({first_wait})")
        a.label(f"{pfx}_gr{sig}")
        if "rstat" in opt: a(f"s_add_u32 s{61+sig}, s{61+sig}, 1")
        for x in chk(sig): a(x)
        a(f"s_add_u32 s{S_PC}, s{S_PC}, 1")
        a(f"s_cbranch_vccz {pfx}_gx{sig}")
        a(gather(sig))
        a(f"s_cmp_lt_u32 s{S_PC}, s{S_PMAX}")
        a("s_waitcnt vmcnt(0)")
        a(f"s_cbranch_scc1 {pfx}_gr{sig}")
        a(f"s_mov_b32 s{S_PMAX}, 1")
        a.label(f"{pfx}_gx{sig}")
        a(wrF(sig)[0])
        for x in redo: a(x)
        a(f"s_branch {pfx}_gok{sig}")

    a(f"s_branch {pfx}_gA")
    gfail(0, 0 if "f1s" in opt else 1, [zero4(64), "s_nop 5", smf("q", 0, 0)])
    gfail(1, 0, [])
    a.raw(".p2align 6")
    a.label(f"{pfx}_gA")
    if not nc: a(f"s_waitcnt vmcnt({1 if 'f1s' in opt else 2})")
    for x in chk(0)[:2]: a(x)
    emit(wrF(0))
    a(chk(0)[2])
    a(smf("q", 0, 0))
    if not nc: a(f"s_cbranch_vccnz {pfx}_gf0")
    a.label(f"{pfx}_gok0")
    if stamps:
        a(f"s_memtime {sr(S_STAMP, 2)}")
        a(f"s_mov_b32 s{S_STAMP+29}, s{S_PC}")
    nst[0] = 1
    kx = {k: rdKX(*k) for k in KXR}
    WB = [40, 48, 56, 32, 104, 112, 120, 96, 24]
    def rdWo(k, buf, half):
        T, ks = divmod(k, 2)
        return (f"ds_read_b128 {vr(buf + 4*half, 4)}, {vWo} offset:{ks*16384 + T*2048 + half*1024}", ("W", k))
    W = [rdWo(k, WB[k], h) for k in range(9) for h in range(2)]
    def post(acc, dst):
        return [f"v_add_f32 v{acc}, v{acc}, v{acc+1}", f"v_add_f32 v{acc+2}, v{acc+2}, v{acc+3}", f"v_cvt_pk_bf16_f32 v{dst}, v{acc}, v{acc+2}"]
    one = [f"v_mov_b32 v{28+i}, 0x3f803f80" for i in range(4)]
    pq0, pk0, pq1, pk1 = post(64, 12), post(72, 13), post(68, 14), post(76, 15)
    pv0, pv1 = post(80, 12), post(84, 14)
    tr = [trQ(ks, u) for ks in range(4) for u in range(2)]
    QK = (("q", 0), ("k", 0), ("q", 1), ("k", 1))
    ms = [smf("k", 0, 0), smf("q", 1, 0), smf("k", 1, 0), smf("v", 0, 0), smf("v", 1, 0)]
    ms += [smf(m, t, sg) for sg in (2, 4, 6, 1) for m, t in QK]
    ms += [smf(m, t, sg) for m, t in QK for sg in (3, 5, 7)]
    ms += [smf("v", t, sg) for sg in (1, 2, 3, 4, 5, 6, 7) for t in range(2)]
    ms += [sx(0, 0), sx(1, 0), sm(0), sx(0, 1), sx(1, 1), sm(1), sx(0, 2), sx(0, 3), sx(1, 2), sx(1, 3), sm(2), sm(3)]
    fl = {k: [] for k in range(1, 60)}
    hb = geti("hb", 4); c1 = geti("c1", 10); b1 = geti("b1", 6)
    f1s = "f1s" in opt
    fl[geti("f1", 1)] = [gather(1)] if not nc else []
    fl[hb] += [("w", ("Fw", 0)), "s_barrier", rdF(2)]
    fl[5] += [rdF(4), rdF(6), zero4(20), kx[(0, 1)], kx[(1, 1)], zero4(20), ("w", ("F", 2)), "STAMP"]
    rest = [kx[(0, 2)], kx[(1, 2)], kx[(0, 3)], kx[(1, 3)], kx[(1, 0)], kx[(0, 0)]]
    for sl in range(6, c1):
        if len(rest) > 1: fl[sl] += [rest.pop(0)]
    fl[9] += [("w", ("F", 6))]
    if f1s:
        fl[c1] += (["s_waitcnt vmcnt(0)"] if not nc else []) + [wrF(1)]
        fl[c1 + 1] += [f"v_cmp_eq_u32 vcc, -1, v{F[1]}"]
        fl[c1 + 2] += ([f"s_cbranch_vccnz {pfx}_gf1"] if not nc else []) + [("L", f"{pfx}_gok1")]
    else:
        fl[c1] += (["s_waitcnt vmcnt(1)"] if not nc else []) + chk(1)
        fl[c1 + 1] += [wrF(1)] + ([f"s_cbranch_vccnz {pfx}_gf1"] if not nc else []) + [("L", f"{pfx}_gok1")]
    for n, x in enumerate(rest): fl[c1 + 2 + n] += [x]
    fl[c1 + b1] += [("w", "KX"), "s_barrier"]
    x0 = c1 + b1 + 1
    fl[x0] += [rdF(3), rdF(5)]; fl[x0 + 1] += [rdF(7), one[3]]
    fl[x0 + 2] += (["s_waitcnt vmcnt(0)"] if not (nc or f1s) else []) + [kvd[0]]
    fl[x0 + 3] += [one[0]]
    fl[21] += [("w", ("F", 3))]
    fl[22] += [("w", ("F", 7)), one[1]]
    fl[23] += [kvd[1]]
    fl[24] += [mv, one[2], "STAMP"]
    fl[25] += kvm[:1]
    fl[26] += kvm[1:2]
    fl[27] += kvm[2:3]
    if "mega" in opt and "nofl" not in opt: fl[30] += [f"buffer_load_dword {vFl}, {vMp}, {sr(S_WS,4)}, s{S_FLG} offen sc1"]
    fl[26] += [pq0[0]]
    fl[27] += [pq0[1]]
    fl[28] += [pq0[2]]
    fl[29] += [rdV(0), pk0[0]]
    fl[30] += [pk0[1]]
    fl[31] += [pk0[2]]
    fl[32] += [rdV(1), pq1[0]]
    fl[33] += [pq1[1]]
    fl[34] += [pq1[2]]
    fl[35] += pk1
    fl[36] += [(f"ds_write2st64_b64 {vXw}, v[12:13], v[14:15] offset1:1", "Xw")]
    fl[37] += [("w", "V"), "v_mov_b32 v77, 0"]
    fl[38] += [kvd[2]]
    fl[39] += [W[0]]
    fl[40] += [kvd[3]]
    fl[41] += [("w", "Xw"), "s_barrier"]
    fl[42] += tr[0:2]
    fl[43] += tr[2:4]
    fl[44] += tr[4:6]
    fl[45] += tr[6:8]
    fl[46] += [W[1]]
    fl[47] += [("w", ("Q", 3)), "STAMP"]
    fl[48] += [W[2], pv0[0]]
    fl[49] += [W[3], pv0[1]]
    fl[50] += [W[4], pv0[2]]
    fl[51] += [W[5], pv1[0]]
    fl[52] += [W[6], pv1[1]]
    fl[53] += [W[7], pv1[2]]
    fl[54] += [mk, f"s_cmp_eq_u32 s{S_STEP}, {nsteps-1}"] + ([f"s_cbranch_scc1 {pfx}_endk"] if not stamps else [])
    fl[55] += [W[8]]
    fl[56] += [W[9]]
    fl[57] += [W[10], "v_max3_f32 v80, v16, v17, v18"]
    fl[58] += [W[11], kvd[4]]
    fl[59] += [W[12], W[13], "s_nop 1", "v_max3_f32 v82, v19, v20, v21", "v_max3_f32 v80, v80, v22, v23", "v_max_f32 v80, v80, v82", "s_nop 0"]
    slotno[0] = -11
    run([(m, fl[1 + i]) for i, m in enumerate(ms)])
    ee = lambda r: f"v_exp_f32 v{r}, v{r}"
    for x in ["v_max3_f32 v80, v80, v26, v27", "v_mov_b32 v82, v80", W[14], W[15], "v_permlane32_swap_b32 v80, v82", "v_max_f32 v80, v80, v82",
              "v_mov_b32 v82, v80", "s_nop 1", "v_permlane16_swap_b32 v80, v82", "v_max_f32 v80, v80, v82", f"v_mul_f32 v80, s{S_SC}, v80"]:
        emit(x)
    for r in (26, 16, 18, 20, 22):
        a(f"v_pk_fma_f32 {vr(r,2)}, {vr(r,2)}, {sr(S_SC2,2)}, v[80:81] op_sel_hi:[1,1,0] neg_lo:[0,0,1] neg_hi:[0,0,1]")
    stamp()
    for x in [ee(26), ee(27), ee(16), "v_cvt_pk_bf16_f32 v76, v26, v27", ee(17), "s_nop 0"]:
        emit(x)
    run([("v_mfma_f32_16x16x16_bf16 v[84:87], v[28:29], v[76:77], 0", [ee(18), "v_cvt_pk_bf16_f32 v68, v16, v17"]),
         ("v_mfma_f32_16x16x16_bf16 v[88:91], v[12:13], v[76:77], 0", [ee(19), ee(20)]),
         ("v_mfma_f32_16x16x16_bf16 v[92:95], v[14:15], v[76:77], 0", [ee(21), "v_cvt_pk_bf16_f32 v69, v18, v19", ee(22), ee(23),
            "v_cvt_pk_bf16_f32 v70, v20, v21", "v_cvt_pk_bf16_f32 v71, v22, v23", W[16], "s_nop 0"]),
         ("v_mfma_f32_16x16x32_bf16 v[84:87], v[28:31], v[68:71], v[84:87]", [W[17]]),
         (f"v_mfma_f32_16x16x32_bf16 v[88:91], {vr(VX[0],4)}, v[68:71], v[88:91]", []),
         (f"v_mfma_f32_16x16x32_bf16 v[92:95], {vr(VX[1],4)}, v[68:71], v[92:95]", ["v_rcp_f32 v20, v84", "s_nop 2"])])
    for r in range(88, 92): a(f"v_mul_f32 v{r}, v20, v{r}")
    a("v_pk_mul_f32 v[92:93], v[92:93], v[20:21] op_sel_hi:[1,0]")
    a("v_pk_mul_f32 v[94:95], v[94:95], v[20:21] op_sel_hi:[1,0]")
    for i in range(4): a(f"v_cvt_pk_bf16_f32 v{16+i}, v{88+2*i}, v{89+2*i}")
    if "oexec" in opt: a(f"s_mov_b64 exec, {sr(S_OM,2)}")
    emit((f"ds_write_b128 {vOw}, v[16:19]", "Ow"))
    if "oexec" in opt: a("s_mov_b64 exec, -1")
    stamp()
    a(zero16(64))
    a(zero16(80))
    emit(("w", "Ow"))
    a("s_barrier")
    emit((f"ds_read_b128 v[16:19], {vL16} offset:{L_OS}", "O0"))
    emit((f"ds_read_b128 v[20:23], {vL16} offset:{L_OS+1024}", "O1"))
    a(zero16(80))
    emit(("w", "O1"))
    stamp()
    OA = [64 + 4 * T for T in range(8)]
    buf = {k: WB[k] for k in range(9)}
    for k in range(9, 16): buf[k] = WB[k - 9]
    def wo(k):
        T, ks = divmod(k, 2)
        return f"v_smfmac_f32_16x16x64_bf16 {vr(OA[T], 4)}, {vr(16 + 4*ks, 4)}, {vr(buf[k], 8)}, {vIdx}"
    def add(T):
        o = OA[T]; return [f"v_add_f32 v{o}, v{o}, v{o+1}", f"v_add_f32 v{o+2}, v{o+2}, v{o+3}"]
    G = [OA[0], OA[4]]
    def cvt(tau, bb):
        o0, o1 = OA[tau*4 + 2*bb], OA[tau*4 + 2*bb + 1]
        return [f"v_cvt_pk_bf16_f32 v{G[tau]+bb}, v{o0}, v{o1}", f"v_cvt_pk_bf16_f32 v{G[tau]+2+bb}, v{o0+2}, v{o1+2}"]
    tag = lambda tau: [f"v_and_or_b32 v{G[tau]}, v{G[tau]}, -2, s{S_TAG}"]
    stp = lambda tau: [f"buffer_store_dwordx4 {vr(G[tau],4)}, {vPs}, {sr(S_WS,4)}, s{S_PST+tau} offen{st}"]
    fill = {k: [] for k in range(16)}
    rest = [rdWo(k, buf[k], h) for k in range(9, 16) for h in range(2)]
    if "wo2" in opt:
        sched_rd = {0: 2, 1: 1, 2: 1, 3: 1, 4: 1, 5: 1, 6: 1, 7: 1, 8: 0, 9: 0, 10: 1, 11: 2, 12: 2}
        waits = {8: 10, 10: 12, 12: 13, 13: 14, 14: 15}
        va = {3: add(0)[:1], 4: add(0)[1:], 5: add(1), 6: cvt(0, 0), 7: tag(0) + add(2)[:1], 8: add(2)[1:], 9: add(3) + cvt(0, 1) + stp(0),
              11: add(4)[:1], 12: add(4)[1:], 13: add(5), 14: cvt(1, 0) + tag(1), 15: add(6)}
    else:
        sched_rd = {0: 2, 1: 2, 2: 2, 3: 1, 4: 1, 5: 1, 6: 1, 7: 1, 8: 1, 9: 1, 10: 1}
        waits = {8: 11, 11: 13, 13: 15}
        va = {3: add(0)[:1], 4: add(0)[1:], 5: add(1), 6: cvt(0, 0), 7: tag(0) + add(2)[:1], 8: add(2)[1:], 9: add(3) + cvt(0, 1), 10: stp(0),
              11: add(4)[:1], 12: add(4)[1:], 13: add(5), 14: cvt(1, 0) + tag(1), 15: add(6)}
    for k, n in sched_rd.items():
        for _ in range(n): fill[k].append(rest.pop(0))
    assert not rest
    for k, fr in waits.items(): fill[k].append(("w", ("W", fr)))
    for k, v in va.items(): fill[k] += v
    SEL, RD = 96, 100
    RS = [(104, 108), (112, 120)]
    fill[15] = [(f"ds_read_b128 {vr(SEL,4)}, {vL16} offset:{L_SEL}", "SEL")] + fill[15] + ["v_mov_b32 v117, -1", f"s_mov_b32 s{S_PC}, 0", "s_nop 2"] + add(7) + cvt(1, 1) + stp(1)
    run([(wo(k), fill[k]) for k in range(16)])
    stamp()
    if "nocomm" in opt:
        a(zero16(64)); fx(); a(zero16(80))
        if stamps:
            a(f"s_cmp_eq_u32 s{S_STEP}, {nsteps-1}")
            a(f"s_cbranch_scc1 {pfx}_end")
        a(f"s_add_u32 s{S_STEP}, s{S_STEP}, 1")
        a("s_nop 7")
        a(f"s_branch {pfx}_gA")
    def ldp(st_):
        for n in range(2): a(f"buffer_load_dwordx4 {vr(RS[st_][n],4)}, {vPl}, {sr(S_WS,4)}, s{S_PLD} offen offset:{1024*n} sc1")
    de = geti("de", 4); dl = geti("dl", 6); d2 = geti("db", 3); d3 = geti("dc", 3)
    NOP = "s_nop 7"
    a(zero16(64))
    fx()
    a(zero16(80))
    a(f"s_cmp_lt_u32 s{S_W}, 2")
    for _ in range(de - 2): a(NOP)
    a(f"s_cbranch_scc1 {pfx}_re")
    for _ in range(dl): a(NOP)
    a.label(f"{pfx}_re")
    ldp(0)
    for _ in range(d2): a(zero16(80))
    ldp(1)
    emit(("w", "SEL"))
    for _ in range(d3): a(zero16(80))
    def fin(st_, nm):
        r0, r1 = RS[st_]
        a.label(f"{pfx}_rc{nm}")
        if "spin" in opt and nm == "A":
            for k in range(geti("sn", 8)):
                a(f"s_getreg_b32 s{S_T0}, hwreg(HW_REG_IB_STS, 0, 4)")
                a(f"s_cmp_le_u32 s{S_T0}, {geti('sv', 3)}")
                a(zero4(92))
                a(f"s_cbranch_scc1 {pfx}_sp")
            a.label(f"{pfx}_sp")
        a("s_waitcnt vmcnt(3)")
        a(f"v_mfma_f32_16x16x32_bf16 {vr(RD,4)}, {vr(SEL,4)}, {vr(r0,4)}, 0")
        a(f"v_xor_b32 v118, s{S_TAG}, v{r0}")
        a("s_waitcnt vmcnt(2)")
        a(f"v_mfma_f32_16x16x32_bf16 v[16:19], {vr(SEL,4)}, {vr(r1,4)}, {vr(RD,4)}")
        a(f"v_xor_b32 v119, s{S_TAG}, v{r1}")
        a(f"v_or_b32 v119, v119, v118")
        a("s_nop 1")
        a(f"v_and_b32 v119, 1, v119")
        a("s_nop 0")
        a(f"v_cmp_ne_u32 vcc, 0, v119")
        a("s_nop 0")
        a("v_add_f32_dpp v16, v16, v16 row_ror:8 row_mask:0xf bank_mask:0xf")
        a("v_add_f32_dpp v17, v17, v17 row_ror:8 row_mask:0xf bank_mask:0xf")
        a("s_nop 0")
        a("v_add_f32_dpp v16, v16, v16 row_ror:4 row_mask:0xf bank_mask:0xf")
        a("v_add_f32_dpp v17, v17, v17 row_ror:4 row_mask:0xf bank_mask:0xf")
        a("v_cvt_pk_bf16_f32 v116, v16, v17")
        a(f"s_cbranch_vccnz {pfx}_rf{nm}")
    fin(0, "A")
    a.label(f"{pfx}_rok")
    stamp()
    if stamps: a(f"s_mov_b32 s{S_STAMP+28}, s{S_PC}")
    a(f"buffer_store_dword v116, {vMp}, {sr(S_WS,4)}, s{S_MWR} offen{st}")
    a(f"buffer_store_dword v117, {vMp}, {sr(S_WS,4)}, s{S_MPO} offen{st}")
    if stamps:
        a(f"s_mov_b32 s{S_STAMP+30}, s{S_STAMP+2*nst[0]}")
    stamp()
    if stamps:
        a(f"s_cmp_eq_u32 s{S_STEP}, {nsteps-1}")
        a(f"s_cbranch_scc1 {pfx}_end")
    ge = geti("ge", 5); g1 = geti("ga", 0); g2 = geti("gb", 3); g3 = geti("gc", 3)
    a(f"s_mov_b32 s{S_MPO}, s{S_MWR}")
    a(f"s_sub_u32 s{S_MRD}, s{S_MWR}, s{S_OWN}")
    a(f"s_cmp_ge_u32 s{S_W}, 2")
    a(f"s_cbranch_scc1 {pfx}_gl")
    for _ in range(ge): a(NOP)
    a.label(f"{pfx}_gl")
    for _ in range(g1): a(NOP)
    a(gather(0))
    if "stept" in opt:
        a("s_memrealtime s[70:71]")
        a(f"s_lshl_b32 s72, s{S_STEP}, 2"); a(f"s_add_u32 s72, s72, {L_JUNK}")
        a("v_mov_b32 v118, s72")
        a("s_waitcnt lgkmcnt(0)")
        a("v_mov_b32 v119, s70")
        a("ds_write_b32 v118, v119")
        g2 -= 1
    a(f"s_add_u32 s{S_MWR}, s{S_MWR}, 8192")
    a(f"s_cmp_ge_u32 s{S_MRD}, {hex(WS_MEM + 2*8192)}")
    a(f"s_cselect_b32 s{S_T0}, {3*8192}, 0")
    a(f"s_sub_u32 s{S_MWR}, s{S_MWR}, s{S_T0}")
    a(f"s_add_u32 s{S_STEP}, s{S_STEP}, 1")
    a(f"s_xor_b32 s{S_TAG}, s{S_TAG}, 1")
    if "mega" in opt:
        if "nofl" not in opt:
            a(f"v_readlane_b32 s{S_HAVE}, {vFl}, 0")
            a(f"v_readlane_b32 s{S_T0}, {vFl}, 2")
        a(f"s_add_u32 s{S_T1}, s{S_STEP}, 2")
        a(f"s_min_u32 s{S_T1}, s{S_T1}, 64")
        if "nofl" not in opt: a(f"s_min_u32 s{S_HAVE}, s{S_HAVE}, s{S_T0}")
        kv_wait(a, f"s{S_T1}", pfx + "_kvw")
        g2 -= 1
    a(f"s_mov_b32 s{S_PC}, 0")
    for _ in range(g2 - 1): a(NOP)
    a(gather(0))
    if "f1s" not in opt:
        for _ in range(g3): a(NOP)
        a(gather(1))
    for _ in range(geti("gw", 0)): a(zero16(96))
    a(f"s_branch {pfx}_gA")
    a.label(f"{pfx}_rfA")
    if "rstat" in opt: a("s_add_u32 s60, s60, 1")
    ldp(0)
    a(f"s_add_u32 s{S_PC}, s{S_PC}, 1")
    fin(1, "B")
    a(f"s_branch {pfx}_rok")
    a.label(f"{pfx}_rfB")
    if "rstat" in opt: a("s_add_u32 s63, s63, 1")
    ldp(1)
    a(f"s_add_u32 s{S_PC}, s{S_PC}, 1")
    a(f"s_cmp_lt_u32 s{S_PC}, s{S_PMAX}")
    a(f"s_cbranch_scc1 {pfx}_rcA")
    a(f"s_mov_b32 s{S_PMAX}, 1")
    a(f"s_branch {pfx}_rok")
    a.label(pfx + "_endk")
    a.label(pfx + "_end")
    a(kvm[0])
    if "stept" in opt:
        a(f"v_lshrrev_b32 v118, 2, {vL16}")
        a(f"ds_read_b32 v119, v118 offset:{L_JUNK}")
        a(f"s_lshl_b32 s72, s{S_H}, 8"); a(f"s_add_u32 s72, s72, {hex(WS_STAMP + 0x20000)}")
        a("s_waitcnt lgkmcnt(0)")
        a(f"buffer_store_dword v119, v118, {sr(S_WS,4)}, s72 offen")
    return nst[0]
```

```python
from common import *
from pre import rnd1, rnd2, MASK, S_TID, xsum_g
import math
import common
def tstamp(a, opt, idx):
    if "midst" in opt and idx < 16 and "time" in opt:
        l = a.uid("ts")
        a("s_cselect_b32 s76, 1, 0")
        a(f"s_cmp_ge_u32 s{S_SEG}, 52"); a(f"s_cbranch_scc1 {l}")
        common.tstamp(a, opt, idx, "v47")
        a.label(l)
        a("s_cmp_lg_u32 s76, 0")
    else: common.tstamp(a, opt, idx, "v47")

S_X, S_O = 20, 24
S_SEG, S_TAG, S_PC, S_PMAX, S_SC, S_L2E = 28, 29, 30, 31, 18, 19
S_P1S, S_P1L, S_P1S2 = 52, 53, 54
S_SLOT, S_PSLOT = 55, 56
S_H2B, S_H2O, S_ACTW, S_ACTR = 57, 58, 59, 60
S_KV, S_Q, S_KM, S_KMV, S_ROW, S_OUT, S_FLG, S_HAVE, S_X2R = 61, 62, 63, 64, 65, 66, 67, 68, 69
S_MKV, S_MQ, S_MODE = 72, 73, 74
vL16, vCol, vP, vKw, vKr, vHg, vHw, vHr, vOw, vZero, vQr, vVr, vEw, vEr, vEo = ["v%d" % i for i in range(1, 16)]
MC = 16
BIAS, SEL = 24, 32
vX2g = "v36"
XR = 37
T0, T1, T2 = 38, 39, 40
L_O, L_ST, L_E, L_KV, L_Q, L_K, L_H = 0, 16384, 20480, 32768, 65536, 81920, 98304
FS, RTS = 1088, 17408
WoF = lambda ct, ks, off=0, n=4: ar((ct * 8 + ks) * 4 + off, n)
GF = lambda m, ks, off=0, n=4: ar(128 + (m * 16 + ks) * 4 + off, n)
DF = lambda t, ks, off=0, n=4: vr(144 + (t * 14 + ks) * 4 + off, n)

def wave_sum(a, x, t):
    a("s_nop 1")
    for ror in (1, 2, 4, 8):
        a(f"v_add_f32_dpp v{x}, v{x}, v{x} row_ror:{ror} row_mask:0xf bank_mask:0xf")
        if ror < 8: a("s_nop 1")
    xsum_g(a, x, t)

def emit_post_addr(a, opt=()):
    LE = lambda *x, **k: lane_expr(a, *x, tmp="v47", **k)
    WS = sr(S_WS, 4)
    LE(vL16, "v0", [(0, 6, 4)])
    LE(vCol, "v0", [(6, 2, 8), (2, 2, 6), (5, 1, 5), (0, 2, 3), (4, 1, 2)])
    LE(vP, "v0", [(0, 4, 14), (4, 2, 4)])
    LE(vKw, "v0", [(6, 2, 12), (0, 4, 5), (4, 2, 3)], L_K)
    LE("v48", "v0", [(2, 2, 3)]); a(f"v_xor_b32 {vKw}, {vKw}, v48")
    LE(vKr, "v0", [(6, 2, 12), (0, 6, 3)], L_K)
    LE("v48", "v0", [(4, 2, 3)]); a(f"v_xor_b32 {vKr}, {vKr}, v48")
    LE(vHg, "v0", [(4, 2, 11), (6, 2, 8), (0, 4, 4)])
    LE("v48", "v0", [(6, 2, 2), (2, 2, 0)])
    a(f"v_mul_u32_u24 {vHw}, {FS}, v48")
    a("v_and_b32 v48, 3, v0"); a("v_mul_u32_u24 v48, 272, v48"); a(f"v_add_u32 {vHw}, {vHw}, v48")
    LE("v48", "v0", [(4, 2, 4)], L_H); a(f"v_add_u32 {vHw}, {vHw}, v48")
    a("v_bfe_u32 v48, v0, 4, 2"); a(f"v_mul_u32_u24 {vHr}, 272, v48")
    LE("v48", "v0", [(0, 4, 4)], L_H); a(f"v_add_u32 {vHr}, {vHr}, v48")
    LE(vOw, "v0", [(6, 1, 13), (7, 1, 12), (0, 6, 4)], L_O)
    a(f"v_mov_b32 {vZero}, 0")
    LE(vQr, "v0", [(6, 2, 12), (0, 6, 4)], L_Q)
    LE(vVr, "v0", [(7, 1, 14), (0, 6, 4)], L_KV)
    LE(vEw, "v0", [(6, 2, 11), (0, 6, 4)], L_E)
    LE(vEr, "v0", [(3, 1, 10), (1, 2, 8), (4, 4, 4), (0, 1, 3)], L_E)
    LE(vEo, "v0", [(4, 4, 10), (0, 4, 2)])
    LE(vX2g, "v0", [(4, 4, 11), (0, 4, 2)])
    a(f"s_sub_u32 s50, s{S_TEAM}, {T0_}")
    sexpr(a, S_P1S, [(50, 0, 3, 20), (S_H, 0, 1, 13), (S_W, 1, 1, 12), (S_H, 1, 4, 8), (S_W, 0, 1, 7)], WS_P1)
    a(f"s_add_u32 s{S_P1S2}, s{S_P1S}, {16*16384}")
    sexpr(a, S_P1L, [(50, 0, 3, 20), (S_H, 0, 5, 14), (S_W, 0, 2, 12)], WS_P1)
    sexpr(a, S_H2B, [(50, 0, 3, 18)], WS_H2)
    sexpr(a, S_H2O, [(50, 0, 3, 18), (S_H, 0, 5, 11)], WS_H2)
    sexpr(a, S_X2R, [(50, 0, 3, 18), (S_H, 0, 1, 15), (S_H, 1, 4, 6)], WS_H2 + 1024)
    sexpr(a, S_ACTW, [(50, 0, 3, 19), (S_H, 0, 5, 11), (S_W, 1, 1, 10), (S_W, 0, 1, 3)], WS_ACT)
    a(f"s_and_b32 s48, s{S_H}, 1"); a(f"s_mul_i32 s48, s48, {56*1024}")
    a(f"s_mul_i32 s51, s{S_W}, {14*1024}"); a("s_add_u32 s48, s48, s51")
    sexpr(a, S_ACTR, [(50, 0, 3, 19)], WS_ACT); a(f"s_add_u32 s{S_ACTR}, s{S_ACTR}, s48")

def emit_post_weights(a, opt):
    LE = lambda *x, **k: lane_expr(a, *x, tmp="v47", **k)
    WS = sr(S_WS, 4)
    def geti(p, d):
        for o in opt:
            if o.startswith(p) and o[len(p):].isdigit(): return int(o[len(p):])
        return d
    tw = max([int(o[2:]) for o in opt if o.startswith("tw") and o[2:].isdigit()] + [0])
    a.c("==== T role: team-buffer init + stationary weights ====")
    a("s_load_dwordx2 s[34:35], s[0:1], 40")
    a("s_load_dwordx4 s[36:39], s[0:1], 64")
    a("s_load_dwordx2 s[40:41], s[0:1], 80")
    emit_post_addr(a, opt)
    LE("v60", "v0", [(3, 3, 10)])
    LE("v61", "v0", [(0, 3, 4)])
    LE("v62", "v0", [(4, 2, 5)])
    a("v_xor_b32 v61, v61, v62")
    a("v_add_u32 v62, v60, v61")
    LE("v64", "v0", [(6, 2, 15), (2, 4, 7), (1, 1, 4), (3, 2, 5), (0, 1, 3)])
    a(f"s_cmp_lg_u32 s{S_CLM}, 0")
    a("s_cbranch_scc1 T_nw")
    for _ in range(geti("ts", 2)): a("s_sleep 80")
    dbg_wait(a, D_MOD1, 32, "v44", "v45", sleep=40, limit=8)
    a.label("T_nw")
    a("s_waitcnt lgkmcnt(0)")
    tstamp(a, opt, 16)
    sexpr(a, 51, [(S_W, 0, 2, 15)])
    srd(a, S_T, 34, 4194304)
    sexpr(a, 50, [(S_H, 1, 4, 18), (S_H, 0, 1, 9), (S_W, 0, 2, 7)])
    for i in range(32):
        a(f"s_add_u32 m0, s51, {i * 1024}")
        a(f"s_add_u32 s48, s50, {8 * i * 1024}")
        a(f"buffer_load_dwordx4 v62, {sr(S_T,4)}, s48 offen lds")
        if tw: a(f"s_waitcnt vmcnt({tw})")
    claim(a)
    a("s_waitcnt vmcnt(0)")
    tstamp(a, opt, 17)
    for ct in range(4):
        a(f"v_xor_b32 v65, {32 * ct}, v64")
        for ks in range(8):
            for u in range(2):
                a(f"ds_read_b64_tr_b16 {WoF(ct, ks, 2*u, 2)}, v65 offset:{(32*ks + 16*u) * 128}")
    a("s_waitcnt lgkmcnt(0)")
    tstamp(a, opt, 18)
    verify_claim(a, 0, 163840 - 64)
    LE("v60", "v0", [(2, 4, 10)])
    LE("v61", "v0", [(0, 2, 4)])
    LE("v62", "v0", [(4, 1, 5)])
    a("v_xor_b32 v61, v61, v62")
    a("v_add_u32 v62, v60, v61")
    srd(a, S_T, 40, 1792 * 1024)
    a(f"s_mul_i32 s50, s{S_W}, {448*1024}")
    sexpr(a, 48, [(S_H, 1, 4, 6)]); a("s_add_u32 s50, s50, s48")
    for i in range(28):
        a(f"s_add_u32 m0, s51, {i * 1024}")
        a(f"s_add_u32 s48, s50, {16 * i * 1024}")
        a(f"buffer_load_dwordx4 v62, {sr(S_T,4)}, s48 offen lds")
        if tw: a(f"s_waitcnt vmcnt({tw})")
    LE("v64", "v0", [(6, 2, 15), (2, 4, 6), (1, 1, 4), (4, 1, 5), (0, 1, 3)])
    a("v_xor_b32 v65, 32, v64")
    a("s_waitcnt vmcnt(0)")
    tstamp(a, opt, 19)
    for t in range(2):
        for ks in range(14):
            for u in range(2):
                a(f"ds_read_b64_tr_b16 {DF(t, ks, 2*u, 2)}, v{64+t} offset:{(32*ks + 16*u) * 64}")
    a("s_waitcnt lgkmcnt(0)")
    import mega
    a(f"v_mov_b32 v46, {163840 - 32}")
    a(f"s_cmp_lg_u32 s{S_W}, 0")
    a("s_cbranch_scc1 T_mdw")
    a(f"s_mov_b32 s{S_MODE}, 1")
    mega.emit_mode(a, opt, "T_md1", "v44", "v45")
    a(f"s_mov_b32 s{S_MODE}, 0")
    a.label("T_md1")
    a(f"v_mov_b32 v45, s{S_MODE}")
    a("ds_write_b32 v46, v45")
    a("s_waitcnt lgkmcnt(0)")
    a.label("T_mdw")
    a("s_barrier")
    a("ds_read_b32 v45, v46")
    a("s_waitcnt lgkmcnt(0)")
    a(f"v_readfirstlane_b32 s{S_MODE}, v45")
    a("s_nop 3")
    a(f"s_cmp_lg_u32 s{S_MODE}, 0")
    a("s_cbranch_scc1 T_init1")
    for mode, st in ((0, ""), (1, " sc1")):
        a.label(f"T_init{mode}")
        for i in range(2): a(f"v_mov_b32 v{48+i}, -1")
        for i in range(4): a(f"v_mov_b32 v{52+i}, 0")
        for k in range(4):
            a(f"buffer_store_dwordx4 v[52:55], {vL16}, {WS}, s{S_P1L} offen offset:{1024*k}{st}")
        for sl in range(3):
            a(f"s_add_u32 s48, s{S_H2O}, {sl*65536}")
            a(f"buffer_store_dword v48, {vCol}, {WS}, s48 offen{st}")
            a(f"buffer_store_dword v48, {vCol}, {WS}, s48 offen offset:1024{st}")
        a(f"s_cmp_ge_u32 s{S_H}, 28")
        a(f"s_cbranch_scc1 T_nopa{mode}")
        for sl in range(3):
            for rt in range(2):
                a(f"s_add_u32 s48, s{S_ACTW}, {sl*131072 + rt*56*1024}")
                a(f"buffer_store_dwordx2 v[48:49], {vL16}, {WS}, s48 offen{st}")
        a.label(f"T_nopa{mode}")
        if mode == 0: a("s_branch T_initd")
    a.label("T_initd")
    a(f"s_cmp_ge_u32 s{S_H}, 28")
    a("s_cbranch_scc1 T_now")
    tstamp(a, opt, 20)
    a("v_bfe_u32 v60, v0, 3, 3")
    a("v_mul_u32_u24 v60, 3584, v60")
    LE("v61", "v0", [(0, 3, 4)])
    LE("v62", "v0", [(4, 1, 5)])
    a("v_xor_b32 v61, v61, v62")
    a("v_add_u32 v62, v60, v61")
    a("v_xor_b32 v63, 64, v61")
    a("v_add_u32 v63, v60, v63")
    a(f"s_mul_i32 s50, s{S_W}, {128*3584}")
    a(f"s_lshl_b32 s48, s{S_H}, 7")
    a("s_add_u32 s50, s50, s48")
    sexpr(a, 51, [(S_W, 0, 2, 14)])
    for m in range(2):
        srd(a, S_T, 36 + 2 * m, 512 * 3584)
        for i in range(16):
            a(f"s_add_u32 m0, s51, {m * 65536 + i * 1024}")
            a(f"s_add_u32 s48, s50, {8 * i * 3584}")
            a(f"buffer_load_dwordx4 v{62 + (i & 1)}, {sr(S_T,4)}, s48 offen lds")
            if tw: a(f"s_waitcnt vmcnt({tw})")
    LE("v60", "v0", [(4, 2, 10), (2, 2, 7), (0, 1, 3)])
    LE("v61", "v0", [(6, 2, 5), (1, 1, 4)])
    LE("v64", "v0", [(3, 1, 5), (4, 1, 6)])
    a("v_xor_b32 v61, v61, v64")
    a("v_add_u32 v64, v60, v61")
    a("v_add_u32 v65, 0x10000, v64")
    a("s_waitcnt vmcnt(0)")
    a("s_barrier")
    tstamp(a, opt, 21)
    for m in range(2):
        for ks in range(16):
            for u in range(2):
                a(f"ds_read_b64_tr_b16 {GF(m, ks, 2*u, 2)}, v{64+m} offset:{(32*ks + 4*u) * 128}")
    a("s_waitcnt lgkmcnt(0)")
    a.label("T_now")
    a("s_waitcnt vmcnt(0)")
    a("s_barrier")
    a(f"s_cmp_lg_u32 s{S_W}, 0")
    a("s_cbranch_scc1 T_noarr")
    a(f"s_lshl_b32 s50, s{S_TEAM}, 2")
    dbg_arrive(a, D_INIT - T0_, "v44", "v45", soff=50)
    a.label("T_noarr")

def emit_post_final(a, opt):
    LE = lambda *x, **k: lane_expr(a, *x, tmp="v47", **k)
    WS = sr(S_WS, 4)
    a("s_load_dwordx2 s[32:33], s[0:1], 0")
    a("s_load_dwordx2 s[42:43], s[0:1], 104")
    dbg_wait(a, D_PRE, 32, "v44", "v45", sleep=32)
    a(f"s_mov_b32 s48, {hex(WS_MOD + 2048)}")
    for i, k in enumerate((0, 2, 1)):
        a(f"buffer_load_dword v{56+i}, {vCol}, {WS}, s48 offen offset:{1024*k} sc1")
    LE("v60", "v0", [(0, 4, 2)])
    sexpr(a, 48, [(S_H, 1, 4, 6)], WS_MOD + 5 * 1024)
    a(f"buffer_load_dword v59, v60, {WS}, s48 offen sc1")
    a("s_waitcnt vmcnt(0) lgkmcnt(0)")
    for i in range(4):
        a(f"v_lshlrev_b32 v{MC+2*i}, 16, v{56+i}")
        a(f"v_and_b32 v{MC+2*i+1}, s{MASK}, v{56+i}")
    a(f"v_add_f32 v{MC+2}, 1.0, v{MC+2}"); a(f"v_add_f32 v{MC+3}, 1.0, v{MC+3}")
    rnd2(a, MC + 2, MC + 3, 47)
    srd(a, S_X, 32, 2048 * 1024)
    srd(a, S_O, 42, 2048 * 1024)
    a("v_and_b32 v60, 3, v0"); a("v_bfe_u32 v61, v0, 2, 2")
    a("v_mov_b32 v62, 0x3f80"); a("v_mov_b32 v63, 0x3f800000")
    a("v_cmp_eq_u32 vcc, 1, v60"); a("s_nop 1"); a("v_cndmask_b32 v62, v62, v63, vcc")
    a("v_cmp_gt_u32 vcc, 2, v60"); a("s_nop 1"); a("v_cndmask_b32 v62, 0, v62, vcc")
    for d in range(4):
        a(f"v_cmp_eq_u32 vcc, {d}, v61"); a("s_nop 1"); a(f"v_cndmask_b32 v{SEL+d}, 0, v62, vcc")
    LE("v60", "v0", [(6, 1, 4), (0, 4, 0)])
    LE("v61", "v0", [(4, 2, 2)])
    a(f"v_mov_b32 v63, {f32bits(-1e30)}")
    for t in range(2):
        for r in range(4):
            a(f"v_add_u32 v62, {16*t + r}, v61")
            a("v_cmp_gt_u32 vcc, v62, v60"); a("s_nop 1")
            a(f"v_cndmask_b32 v{BIAS+4*t+r}, 0, v63, vcc")
    a(f"s_sub_u32 s{S_SEG}, s{S_TEAM}, {T0_}")
    sexpr(a, 50, [(S_H, 1, 4, 1), (S_W, 1, 1, 0)])
    a(f"s_mul_i32 s{S_KV}, s50, {HSTR}")
    sexpr(a, 48, [(S_SEG, 0, 3, 14), (S_W, 0, 1, 13)], WS_KV); a(f"s_add_u32 s{S_KV}, s{S_KV}, s48")
    a(f"s_mul_i32 s{S_Q}, s50, {QSTR}")
    sexpr(a, 48, [(S_SEG, 0, 3, 13), (S_W, 0, 1, 12)], WS_QX); a(f"s_add_u32 s{S_Q}, s{S_Q}, s48")
    sexpr(a, S_MKV, [(S_W, 0, 2, 13)], L_KV)
    sexpr(a, S_MQ, [(S_W, 0, 2, 12)], L_Q)
    a(f"s_mul_i32 s{S_KM}, s50, {MSTR}")
    sexpr(a, 48, [(S_SEG, 0, 3, 12)], WS_KM); a(f"s_add_u32 s{S_KM}, s{S_KM}, s48")
    sexpr(a, S_FLG, [(50, 0, 5, 7)], WS_FLAG)
    sexpr(a, S_ROW, [(S_SEG, 0, 3, 15), (S_H, 0, 5, 10)])
    sexpr(a, S_OUT, [(S_SEG, 0, 3, 15), (S_H, 0, 1, 14), (S_H, 1, 4, 6)])
    a(f"s_mov_b32 s{S_HAVE}, 0")
    a(f"s_mov_b32 s{S_TAG}, 1")
    a(f"s_mov_b32 s{S_SLOT}, 0")
    a(f"s_mov_b32 s{S_PSLOT}, 2")
    a(f"s_mov_b32 s{S_PMAX}, 100000")
    a(f"s_mov_b32 s{S_SC}, {f32bits(128 ** -0.5)}")
    a(f"s_mov_b32 s{S_L2E}, {f32bits(math.log2(math.e))}")
    a(f"s_lshl_b32 s50, s{S_TEAM}, 2")
    dbg_wait(a, D_INIT - T0_, 32, "v44", "v45", soff=50, sleep=24)

def poll(a, name, loads, check, sleep=3):
    a(f"s_mov_b32 s{S_PC}, 0")
    a.label(name)
    loads()
    check()
    a(f"s_cbranch_vccz {name}_ok")
    a(f"s_sleep {sleep}")
    a(f"s_add_u32 s{S_PC}, s{S_PC}, 1")
    a(f"s_cmp_lt_u32 s{S_PC}, s{S_PMAX}")
    a(f"s_cbranch_scc1 {name}")
    a(f"s_mov_b32 s{S_PMAX}, 1")
    a.label(name + "_ok")

def pf_list():
    WS = sr(S_WS, 4)
    L = []
    for half in range(2):
        for i in range(4):
            L.append(([f"s_add_u32 m0, s{S_MKV}, {half*4096}", f"s_add_u32 s48, s{S_KV}, {half*4096}"] if i == 0 else []) +
                     [f"buffer_load_dwordx4 {vL16}, {WS}, s48 offen offset:{1024*i} sc1 lds"])
    for i in range(4):
        L.append(([f"s_mov_b32 m0, s{S_MQ}", "s_nop 0"] if i == 0 else []) + [f"buffer_load_dwordx4 {vL16}, {WS}, s{S_Q} offen offset:{1024*i} sc1 lds"])
    L.append([f"buffer_load_dword v{XR}, {vCol}, {sr(S_X,4)}, s{S_ROW} offen", f"s_add_u32 s{S_KV}, s{S_KV}, {NT*16384}",
              f"s_add_u32 s{S_Q}, s{S_Q}, {NT*8192}", f"s_add_u32 s{S_ROW}, s{S_ROW}, {NT*32768}"])
    return L

def prefetch(a, name, segreg, body=True):
    WS = sr(S_WS, 4)
    a(f"s_cmp_ge_u32 s{segreg}, 64")
    a(f"s_cbranch_scc1 {name}_skip")
    a(f"s_cmp_gt_u32 s{S_HAVE}, s{segreg}")
    a(f"s_cbranch_scc1 {name}_fok")
    a(f"s_mov_b32 s{S_PC}, 0")
    a.label(name + "_fl")
    a("s_mov_b64 exec, 3")
    a(f"buffer_load_dword v45, {vL16}, {WS}, s{S_FLG} offen sc1")
    a("s_mov_b64 exec, -1")
    a("s_waitcnt vmcnt(0)")
    a(f"v_readlane_b32 s{S_HAVE}, v45, 0"); a("v_readlane_b32 s48, v45, 1")
    a("s_nop 1")
    a(f"s_min_u32 s{S_HAVE}, s{S_HAVE}, s48")
    a(f"s_cmp_gt_u32 s{S_HAVE}, s{segreg}")
    a(f"s_cbranch_scc1 {name}_fok")
    a("s_sleep 8")
    a(f"s_add_u32 s{S_PC}, s{S_PC}, 1")
    a(f"s_cmp_lt_u32 s{S_PC}, s{S_PMAX}")
    a(f"s_cbranch_scc1 {name}_fl")
    a(f"s_mov_b32 s{S_PMAX}, 1")
    a.label(name + "_fok")
    if not body: return
    for g in pf_list():
        for x in g: a(x)
    a.label(name + "_skip")

def emit_post_loop(a, fast, pfx, opt):
    def geti(p, d):
        for o in opt:
            if o.startswith(p) and o[len(p):].isdigit(): return int(o[len(p):])
        return d
    st = "" if fast else " sc1"
    WS = sr(S_WS, 4)
    QF, KX, VX, KF, SS, KMR = 48, 64, 64, 96, 112, 124
    prefetch(a, pfx + "_pf0", S_SEG)
    a("s_waitcnt vmcnt(0)")
    a("s_barrier")
    a.raw(".p2align 6")
    a.label(pfx + "_loop")
    tstamp(a, opt, 0)
    def ldkm():
        for i in range(4): a(f"buffer_load_dwordx4 {vr(KMR+4*i,4)}, {vL16}, {WS}, s{S_KM} offen offset:{1024*i} sc1")
    ldkm()
    for ks in range(4):
        a(f"ds_read_b128 {vr(QF+4*ks,4)}, {vQr} offset:{1024*ks}")
        for t in range(2):
            i = t * 4 + ks
            a(f"ds_read_b128 {vr(KX+4*i,4)}, {vVr} offset:{(i//2)*4096 + (i%2)*1024}")
    for ks in range(4):
        a(f"s_waitcnt lgkmcnt({9-3*ks})")
        for t in range(2):
            d = vr(SS + 4 * t, 4)
            a(f"v_mfma_f32_16x16x32_bf16 {d}, {vr(KX+4*(t*4+ks),4)}, {vr(QF+4*ks,4)}, {d if ks else vr(BIAS+4*t,4)}")
    for i in range(8):
        a(f"ds_read_b128 {vr(VX+4*i,4)}, {vVr} offset:{(i//2)*4096 + 2048 + (i%2)*1024}")
    def scale(regs):
        for i in range(0, len(regs), 2): rnd2(a, regs[i], regs[i+1], T2)
        for r in regs: a(f"v_mul_f32 v{r}, s{S_SC}, v{r}")
        for i in range(0, len(regs), 2): rnd2(a, regs[i], regs[i+1], T2)
    scale(list(range(SS, SS + 8)))
    MX, LX = 41, 46
    a(f"v_max3_f32 v{MX}, v{SS}, v{SS+1}, v{SS+2}"); a(f"v_max3_f32 v{T1}, v{SS+3}, v{SS+4}, v{SS+5}")
    a(f"v_max3_f32 v{MX}, v{MX}, v{SS+6}, v{SS+7}"); a(f"v_max_f32 v{MX}, v{MX}, v{T1}")
    xsum_g(a, MX, T1, "v_max_f32")
    a(f"v_mul_f32 v{T0}, s{S_L2E}, v{MX}")
    for r in range(8): a(f"v_fma_f32 v{SS+r}, v{SS+r}, s{S_L2E}, -v{T0}")
    for r in range(8): a(f"v_exp_f32 v{SS+r}, v{SS+r}")
    a(f"v_add_f32 v{LX}, v{SS}, v{SS+1}"); a(f"v_add_f32 v{T0}, v{SS+2}, v{SS+3}"); a(f"v_add_f32 v{T1}, v{SS+4}, v{SS+5}")
    a(f"v_add_f32 v{T2}, v{SS+6}, v{SS+7}"); a(f"v_add_f32 v{LX}, v{LX}, v{T0}"); a(f"v_add_f32 v{T1}, v{T1}, v{T2}")
    a(f"v_add_f32 v{LX}, v{LX}, v{T1}")
    PX, PM0, OC = 140, 44, 96
    a(f"v_mov_b32 v{PM0+1}, 0")
    tstamp(a, opt, 1)
    a(f"s_mov_b32 s{S_PC}, 0")
    a.label(pfx + "_km")
    a("s_waitcnt vmcnt(0)")
    a(f"v_max3_u32 v{T0}, v{KMR}, v{KMR+4}, v{KMR+8}")
    a(f"v_max_u32 v{T0}, v{T0}, v{KMR+12}")
    a(f"v_cmp_eq_u32 vcc, -1, v{T0}")
    for i in range(4): a(f"ds_write2st64_b32 {vKw}, v{KMR+4*i+1}, v{KMR+4*i+3} offset0:{4*i} offset1:{4*i+2}")
    a(f"s_cbranch_vccz {pfx}_km_ok")
    a(f"s_sleep {geti('tk', 3)}")
    ldkm()
    a(f"s_add_u32 s{S_PC}, s{S_PC}, 1")
    a(f"s_cmp_lt_u32 s{S_PC}, s{S_PMAX}")
    a(f"s_cbranch_scc1 {pfx}_km")
    a(f"s_mov_b32 s{S_PMAX}, 1")
    a("s_waitcnt vmcnt(0)")
    a.label(pfx + "_km_ok")
    tstamp(a, opt, 2)
    for ks in range(4):
        for u in range(2):
            a(f"ds_read_b64_tr_b16 {vr(KF+4*ks+2*u,2)}, {vKr} offset:{1024*ks+512*u}")
    for ks in range(4):
        a(f"s_waitcnt lgkmcnt({6-2*ks})")
        d = vr(SS + 8, 4)
        a(f"v_mfma_f32_16x16x32_bf16 {d}, {vr(KF+4*ks,4)}, {vr(QF+4*ks,4)}, {d if ks else 0}")
    a("s_nop 7")
    scale([SS + 8, SS + 9])
    a(f"v_max3_f32 v{T0}, v{MX}, v{SS+8}, v{SS+9}")
    xsum_g(a, T0, T1, "v_max_f32")
    a(f"v_mul_f32 v{T0}, s{S_L2E}, v{T0}")
    a(f"v_fma_f32 v{MX}, v{MX}, s{S_L2E}, -v{T0}")
    for r in (8, 9): a(f"v_fma_f32 v{SS+r}, v{SS+r}, s{S_L2E}, -v{T0}")
    a(f"v_exp_f32 v{MX}, v{MX}")
    for r in (8, 9): a(f"v_exp_f32 v{SS+r}, v{SS+r}")
    a(f"v_fma_f32 v{LX}, v{LX}, v{MX}, v{SS+8}")
    a(f"v_add_f32 v{LX}, v{LX}, v{SS+9}")
    xsum_g(a, LX, T1)
    a(f"v_rcp_f32 v{LX}, v{LX}")
    a("s_nop 0")
    a(f"v_mul_f32 v42, v{LX}, v{MX}")
    a(f"v_pk_mul_f32 {vr(SS+8,2)}, {vr(SS+8,2)}, {vr(LX,2)} op_sel_hi:[1,0]")
    for r in range(0, 8, 2): a(f"v_pk_mul_f32 {vr(SS+r,2)}, {vr(SS+r,2)}, v[42:43] op_sel_hi:[1,0]")
    a(f"v_cvt_pk_bf16_f32 v{PM0}, v{SS+8}, v{SS+9}")
    for i in range(4): a(f"v_cvt_pk_bf16_f32 v{PX+i}, v{SS+2*i}, v{SS+2*i+1}")
    oc = lambda i: (96 + 4 * i) if i < 4 else (48 + 4 * (i - 4))
    def pk(i2):
        b = oc(2 * i2)
        return [f"v_cvt_pk_bf16_f32 v{SS+4*(i2%2)+k}, v{b+2*k}, v{b+2*k+1}" for k in range(4)] + [f"ds_write_b128 {vOw}, {vr(SS+4*(i2%2),4)} offset:{1024*i2}"]
    for i in range(8):
        a(f"v_mfma_f32_16x16x16_bf16 {vr(oc(i),4)}, {vr(KMR+2*i,2)}, {vr(PM0,2)}, 0")
    for i in range(8):
        a(f"v_mfma_f32_16x16x32_bf16 {vr(oc(i),4)}, {vr(VX+4*i,4)}, {vr(PX,4)}, {vr(oc(i),4)}")
        if i in (3, 5, 7):
            for x in pk((i - 3) // 2): a(x)
    a("s_nop 3")
    for x in pk(3): a(x)
    a("s_waitcnt lgkmcnt(0)"); a("s_barrier")
    OF = 48
    for i in range(16): a(f"ds_read_b128 {vr(OF+4*i,4)}, {vL16} offset:{L_O+1024*i}")
    tstamp(a, opt, 3)
    jobs = [(cq, rt) for rt in range(2) for cq in range(2)]
    def epi(n):
        cq, rt = jobs[n]; ac = 112 + (n % 2) * 8; g = 128 + (n % 2) * 4
        return [f"v_cvt_pk_bf16_f32 v{g+i}, v{ac+2*i}, v{ac+2*i+1}" for i in range(4)] + [f"v_and_or_b32 v{g}, v{g}, -2, s{S_TAG}",
                f"buffer_store_dwordx4 {vr(g,4)}, {vP}, {WS}, s{(S_P1S, S_P1S2)[rt]} offen offset:{64*cq}{st}"]
    for n, (cq, rt) in enumerate(jobs):
        ac = 112 + (n % 2) * 8
        e = epi(n - 1) if n else []
        k = 0
        for ks in range(8):
            if n == 0: a(f"s_waitcnt lgkmcnt({15-ks})")
            if n == 2 and ks == 0: a("s_waitcnt lgkmcnt(0)")
            for u in range(2):
                d = vr(ac + 4 * u, 4)
                a(f"v_mfma_f32_16x16x32_bf16 {d}, {WoF(2*cq+u, ks)}, {vr(OF+4*(rt*8+ks),4)}, {d if ks else 0}")
                k += 1
                if k >= 2:
                    for x in e[2*(k-2):2*(k-1)]: a(x)
    a("s_nop 7")
    for x in epi(3): a(x)
    tstamp(a, opt, 4)
    if geti("t1", 3): a(f"s_sleep {geti('t1', 3)}")
    R = 48
    def ld():
        for i in range(4):
            a(f"buffer_load_dwordx4 {vr(R+4*i,4)}, {vL16}, {WS}, s{S_P1L} offen offset:{1024*i} sc1")
    def ck():
        for i in range(4):
            a(f"s_waitcnt vmcnt({3-i})")
            a(f"v_mfma_f32_16x16x32_bf16 v[112:115], {vr(SEL,4)}, {vr(R+4*i,4)}, {'v[112:115]' if i else 0}")
            a(f"v_xor_b32 v{T1 if i else T0}, s{S_TAG}, v{R+4*i}")
            if i: a(f"v_or_b32 v{T0}, v{T0}, v{T1}")
        a(f"v_and_b32 v{T0}, 1, v{T0}")
        a(f"v_cmp_ne_u32 vcc, 0, v{T0}")
        a(f"v_lshlrev_b32 v116, 16, v{XR}"); a(f"v_and_b32 v117, s{MASK}, v{XR}")
        a(f"s_lshl_b32 s48, s{S_W}, 3"); a("v_mov_b32 v43, s48")
    poll(a, pfx + "_r1", ld, ck, sleep=1)
    tstamp(a, opt, 5)
    rnd2(a, 112, 113, T0)
    a(f"v_mul_f32 v112, v{MC}, v112"); a(f"v_mul_f32 v113, v{MC+1}, v113")
    rnd2(a, 112, 113, T0)
    a("v_add_f32 v116, v116, v112"); a("v_add_f32 v117, v117, v113")
    rnd2(a, 116, 117, 118)
    a(f"s_lshl_b32 s49, s{S_SLOT}, 16"); a(f"s_add_u32 s50, s{S_H2O}, s49")
    a(f"buffer_store_dword v118, {vCol}, {WS}, s50 offen offset:1024{st}")
    a("v_add_f32 v120, v116, v117")
    wave_sum(a, 120, T1)
    a(f"v_mul_f32 v120, {f32bits(1/128)}, v120")
    a("v_sub_f32 v112, v116, v120"); a("v_sub_f32 v113, v117, v120")
    a("v_mul_f32 v121, v112, v112"); a("v_fmac_f32 v121, v113, v113")
    wave_sum(a, 121, T1)
    a(f"ds_write_b64 v43, v[120:121] offset:{L_ST}")
    a("s_waitcnt lgkmcnt(0)"); a("s_barrier")
    a(f"ds_read_b128 v[124:127], {vZero} offset:{L_ST}")
    a(f"ds_read_b128 v[128:131], {vZero} offset:{L_ST+16}")
    a("s_waitcnt lgkmcnt(0)")
    a("v_add_f32 v120, v124, v126"); a("v_add_f32 v121, v128, v130"); a("v_add_f32 v120, v120, v121")
    a("v_mul_f32 v120, 0.25, v120")
    a("v_add_f32 v122, v125, v127"); a("v_add_f32 v123, v129, v131"); a("v_add_f32 v122, v122, v123")
    for r in (124, 126, 128, 130): a(f"v_sub_f32 v{r}, v{r}, v120")
    a("v_mul_f32 v123, v124, v124")
    for r in (126, 128, 130): a(f"v_fmac_f32 v123, v{r}, v{r}")
    a(f"v_mul_f32 v122, {f32bits(1/512)}, v122")
    a("v_fmac_f32 v122, 0.25, v123")
    rnd1(a, 120); rnd1(a, 122)
    a(f"v_add_f32 v122, {f32bits(1e-5)}, v122"); rnd1(a, 122)
    a("v_sqrt_f32 v122, v122")
    a("v_sub_f32 v112, v116, v120"); a("v_sub_f32 v113, v117, v120")
    rnd1(a, 122)
    a("v_rcp_f32 v122, v122")
    rnd2(a, 112, 113, T0)
    a("v_mul_f32 v112, v112, v122"); a("v_mul_f32 v113, v113, v122")
    rnd2(a, 112, 113, T0)
    a(f"v_mul_f32 v112, v112, v{MC+2}"); a(f"v_mul_f32 v113, v113, v{MC+3}")
    rnd2(a, 112, 113, T0)
    a(f"v_add_f32 v112, v112, v{MC+4}"); a(f"v_add_f32 v113, v113, v{MC+5}")
    a(f"v_cvt_pk_bf16_f32 v{T0}, v112, v113")
    a(f"buffer_store_dword v{T0}, {vCol}, {WS}, s50 offen{st}")
    tstamp(a, opt, 6)
    a(f"s_lshl_b32 s48, s{S_PSLOT}, 16"); a(f"s_add_u32 s48, s{S_H2O}, s48")
    a("v_mov_b32 v42, -1"); a("v_mov_b32 v43, -1")
    a(f"buffer_store_dword v42, {vCol}, {WS}, s48 offen{st}")
    a(f"buffer_store_dword v42, {vCol}, {WS}, s48 offen offset:1024{st}")
    a(f"s_add_u32 s51, s{S_SEG}, {NT}")
    a(f"s_cmp_ge_u32 s{S_H}, 28")
    a(f"s_cbranch_scc1 {pfx}_noffn")
    HR = 48
    a(f"s_add_u32 s50, s{S_H2B}, s49")
    def ld():
        for i in range(8):
            a(f"s_add_u32 s48, s50, {i*8192}")
            a(f"buffer_load_dwordx4 {vr(HR+4*i,4)}, {vHg}, {WS}, s48 offen sc1")
    def ck():
        for i in range(8):
            a(f"s_waitcnt vmcnt({7-i})")
            a(f"ds_write_b128 {vHw}, {vr(HR+4*i,4)} offset:{(i//4)*RTS + (i%4)*64}")
            if i: a(f"v_max_u32 v{T0}, v{T0 if i > 1 else HR}, v{HR+4*i}")
        a(f"v_cmp_eq_u32 vcc, -1, v{T0}")
    if geti("t2", 2): a(f"s_sleep {geti('t2', 2)}")
    poll(a, pfx + "_h2", ld, ck, sleep=2)
    tstamp(a, opt, 7)
    a("s_waitcnt lgkmcnt(0)"); a("s_barrier")
    HB = lambda rt, ks: 80 + ((ks % 4) * 2 + rt) * 4
    lq0 = LQ()
    def rd(lq, ks):
        for rt in range(2):
            a(f"ds_read_b128 {vr(HB(rt, ks),4)}, {vHr} offset:{rt*RTS + ks*FS}"); lq.issue(ks)
    for ks in range(3): rd(lq0, ks)
    prefetch(a, pfx + "_pf1", 51, body=False)
    for withpf in (True, False):
        lq = LQ(); lq.q = list(lq0.q)
        pl = pf_list() if withpf else []
        for ks in range(16):
            a(lq.wait(ks))
            n = 0
            for rt in range(2):
                for m in range(2):
                    d = vr(112 + (rt * 2 + m) * 4, 4)
                    a(f"v_mfma_f32_16x16x32_bf16 {d}, {GF(m, ks)}, {vr(HB(rt, ks),4)}, {d if ks else 0}")
                    if n == 0 and ks + 3 < 16: rd(lq, ks + 3)
                    if n == 2 and pl:
                        for x in pl.pop(0): a(x)
                    n += 1
        if withpf:
            a(f"s_branch {pfx}_gud")
            a.label(pfx + "_pf1_skip")
    a.label(pfx + "_gud")
    a(f"s_lshl_b32 s48, s{S_SLOT}, 17"); a(f"s_add_u32 s48, s{S_ACTW}, s48"); a(f"s_add_u32 s50, s48, {56*1024}")
    a("s_nop 0")
    for rt in range(2):
        g0 = 112 + rt * 8; u0 = g0 + 4
        for j in (0, 2): rnd2(a, g0 + j, g0 + j + 1, T0)
        for j in (0, 2): rnd2(a, u0 + j, u0 + j + 1, T0)
        for j in range(4): a(f"v_mul_f32 v{g0+j}, v{g0+j}, v{u0+j}")
        a(f"v_cvt_pk_bf16_f32 v{128+2*rt}, v{g0}, v{g0+1}"); a(f"v_cvt_pk_bf16_f32 v{129+2*rt}, v{g0+2}, v{g0+3}")
        a(f"buffer_store_dwordx2 {vr(128+2*rt,2)}, {vL16}, {WS}, s{(48, 50)[rt]} offen{st}")
    a(f"s_lshl_b32 s48, s{S_PSLOT}, 17"); a(f"s_add_u32 s48, s{S_ACTW}, s48"); a(f"s_add_u32 s50, s48, {56*1024}")
    a(f"buffer_store_dwordx2 v[42:43], {vL16}, {WS}, s48 offen{st}")
    a(f"buffer_store_dwordx2 v[42:43], {vL16}, {WS}, s50 offen{st}")
    if geti("t3", 2): a(f"s_sleep {geti('t3', 2)}")
    a(f"s_branch {pfx}_E")
    a.label(pfx + "_noffn")
    prefetch(a, pfx + "_pf2", 51)
    a("s_sleep 32")
    a.label(pfx + "_E")
    tstamp(a, opt, 8)
    AR = 48
    a(f"s_lshl_b32 s50, s{S_SLOT}, 17"); a(f"s_add_u32 s50, s{S_ACTR}, s50")
    a(f"s_lshl_b32 s49, s{S_SLOT}, 16"); a(f"s_add_u32 s49, s{S_X2R}, s49")
    def ld():
        a(f"buffer_load_dword v41, {vX2g}, {WS}, s49 offen sc1")
        for i in range(14):
            if i % 4 == 0: a(f"s_add_u32 s48, s50, {(i//4)*4096}")
            a(f"buffer_load_dwordx4 {vr(AR+4*i,4)}, {vL16}, {WS}, s48 offen offset:{1024*(i%4)} sc1")
    def ck():
        for i in range(14):
            a(f"s_waitcnt vmcnt({13-i})")
            for t in range(2):
                d = vr(112 + 4 * t, 4)
                a(f"v_mfma_f32_16x16x32_bf16 {d}, {DF(t, i)}, {vr(AR+4*i,4)}, {d if i else 0}")
            a(f"v_max3_u32 v{T0}, v{T0 if i else 41}, v{AR+4*i}, v{AR+4*i+2}")
        a(f"v_cmp_eq_u32 vcc, -1, v{T0}")
        a(f"v_lshlrev_b32 v124, 16, v41"); a(f"v_and_b32 v125, s{MASK}, v41")
    poll(a, pfx + "_act", ld, ck, sleep=2)
    tstamp(a, opt, 9)
    a("s_nop 2")
    a(f"ds_write_b128 {vEw}, v[112:115]"); a(f"ds_write_b128 {vEw}, v[116:119] offset:1024")
    a("s_waitcnt lgkmcnt(0)"); a("s_barrier")
    for w in range(4): a(f"ds_read_b64 {vr(112+2*w,2)}, {vEr} offset:{2048*w}")
    a("s_waitcnt lgkmcnt(0)")
    a("v_add_f32 v112, v112, v114"); a("v_add_f32 v113, v113, v115"); a("v_add_f32 v116, v116, v118"); a("v_add_f32 v117, v117, v119")
    a("v_add_f32 v112, v112, v116"); a("v_add_f32 v113, v113, v117")
    rnd2(a, 112, 113, T0)
    a(f"v_mul_f32 v112, v{MC+6}, v112"); a(f"v_mul_f32 v113, v{MC+7}, v113")
    rnd2(a, 112, 113, T0)
    a("v_add_f32 v112, v124, v112"); a("v_add_f32 v113, v125, v113")
    a(f"v_cvt_pk_bf16_f32 v{T0}, v112, v113")
    a(f"buffer_store_dword v{T0}, {vEo}, {sr(S_O,4)}, s{S_OUT} offen")
    tstamp(a, opt, 10)
    a(f"s_add_u32 s{S_SEG}, s{S_SEG}, {NT}")
    a(f"s_add_u32 s{S_KM}, s{S_KM}, {NT*4096}")
    a(f"s_add_u32 s{S_OUT}, s{S_OUT}, {NT*32768}")
    a(f"s_xor_b32 s{S_TAG}, s{S_TAG}, 1")
    a(f"s_mov_b32 s{S_PSLOT}, s{S_SLOT}")
    a(f"s_add_u32 s{S_SLOT}, s{S_SLOT}, 1")
    a(f"s_cmp_ge_u32 s{S_SLOT}, 3")
    a(f"s_cselect_b32 s{S_SLOT}, 0, s{S_SLOT}")
    a(f"s_cmp_lt_u32 s{S_SEG}, 64")
    a(f"s_cbranch_scc1 {pfx}_loop")
    a("s_waitcnt vmcnt(0)")
    if "time" in opt: a("v_mov_b32 v143, v47")

def emit_post(a, opt):
    import mega, pre
    a(f"s_mov_b32 s{MASK}, 0xffff0000")
    emit_post_weights(a, opt)
    if "time" in opt: a("s_memrealtime s[84:85]")
    emit_post_final(a, opt)
    if "time" in opt: a("s_memrealtime s[86:87]")
    a(f"s_cmp_lg_u32 s{S_MODE}, 0")
    a("s_cbranch_scc1 T_slow")
    emit_post_loop(a, True, "TF", opt)
    a("s_branch L_done")
    a.label("T_slow")
    emit_post_loop(a, False, "TS", opt)
```

```python
from common import *
import math, struct

L_MEM = 0
L_K   = 8192
L_V   = 16384
L_QK  = 24576
L_OS  = 28672
L_SEL = 30720
L_JUNK= 31744
L_MISC= 32256
L_WO  = 32768

S_STEP = 16
S_PST = 17
S_PLD = 19
S_MRD, S_MWR, S_MPO = 22, 23, 24
S_KX, S_VX, S_KVM = 25, 26, 27
S_TAG, S_PMAX, S_PC = 28, 29, 30
S_SC = 31
S_PTR = 32
S_T0, S_T1, S_T2, S_T3 = 48, 49, 50, 51
S_OWN = 52
S_WOB = 53
S_WOL = 54
S_STAMP = 60

vFl = "v0"
vL16w, vL16, vXw, vXr, vOw, vWo, vPs, vMp, vIdx = ["v%d" % i for i in range(1, 10)]
vPl = vL16
vZ = "v[10:11]"
vT0, vT1 = "v12", "v13"
vFx = ["v28", "v29", "v30"]
SX0, SX1, SM = 16, 20, 24
vM = "v31"
FA, FB = 32, 120
F = [32 + 4 * i for i in range(8)]
ACC = {("q", 0): 64, ("q", 1): 68, ("k", 0): 72, ("k", 1): 76, ("v", 0): 80, ("v", 1): 84}
QF = [88 + 4 * i for i in range(4)]
KF = [104 + 4 * i for i in range(4)]
KXR = {(0, 0): 32, (1, 0): 24, (0, 1): 104, (1, 1): 108, (0, 2): 112, (1, 2): 116, (0, 3): 120, (1, 3): 124}
VX = [64, 72]
MI = {"q": 0, "k": 1, "v": 2}

def wreg(m, t, sig, off=0, n=8):
    idx = ((MI[m] * 2 + t) * 8 + sig) * 8 + off
    if idx < 256: return ar(idx, n)
    return vr(128 + idx - 256, n)

def smf(m, t, sig, own=FA):
    f = own + 4 * sig if sig < 2 else F[sig]
    return f"v_smfmac_f32_16x16x64_bf16 {vr(ACC[(m,t)],4)}, {vr(f,4)}, {wreg(m,t,sig)}, {vIdx}"

S_HAVE, S_FLG, S_KVC = 55, 56, 26
S_SC2, S_OM = 58, 46
def emit_rec_init(a, sh, ptr):
    LE = lambda *x, **k: lane_expr(a, *x, tmp="v31", **k)
    WS = sr(S_WS, 4)
    srd(a, S_T, ptr, 8192)
    LE("v16", "v0", [(5, 1, 10), (4, 1, 6), (0, 2, 1)])
    sexpr(a, 48, [(sh, 1, 2, 11), (sh, 3, 2, 8), (S_W, 1, 1, 7), (sh, 0, 1, 4), (S_W, 0, 1, 3)])
    a(f"buffer_load_ushort v17, v16, {sr(S_T,4)}, s48 offen")
    a(f"buffer_load_ushort v18, v16, {sr(S_T,4)}, s48 offen offset:32")
    LE("v20", "v0", [(0, 6, 4)])
    LE("v21", "v0", [(5, 1, 5), (0, 2, 3), (4, 1, 2), (2, 2, 30)])
    for i in range(4): a(f"v_mov_b32 v{24+i}, 0")
    a("v_mov_b32 v19, -1")
    sexpr(a, 48, [(sh, 0, 5, 13), (S_W, 0, 2, 11)], WS_PART)
    a(f"buffer_store_dwordx4 v[24:27], v20, {WS}, s48 offen sc1")
    a(f"buffer_store_dwordx4 v[24:27], v20, {WS}, s48 offen offset:1024 sc1")
    sexpr(a, 50, [(sh, 3, 2, 11), (S_W, 1, 1, 10), (sh, 0, 1, 9), (S_W, 0, 1, 8), (sh, 1, 2, 6)], WS_MEM)
    for sl in (1, 2):
        a(f"s_add_u32 s48, s50, {8192*sl}")
        a(f"buffer_store_dword v19, v21, {WS}, s48 offen sc1")
    a("s_waitcnt vmcnt(4)")
    a("v_lshl_or_b32 v17, v18, 16, v17")
    a(f"buffer_store_dword v17, v21, {WS}, s50 offen sc1")

def emit_rec_setup(a, pfx="R", own_init=True, opt=()):
    st = " sc1"
    LE = lambda *x, **k: lane_expr(a, *x, tmp="v31", **k)
    a.c("==== recurrence role: s14 = head, s15 = wave ====")
    q = VmQ(a)
    if own_init:
        emit_rec_init(a, S_H, S_PTR + 2)
        a("s_waitcnt vmcnt(0)")
        dbg_arrive(a, D_RTB)
        a("s_waitcnt vmcnt(0)")

    D = [32, 33]
    E = [36, 37, 38, 39]
    LE("v28", "v0", [(4, 2, 5)])
    LE("v29", "v0", [(0, 4, 4)])
    a("v_xor_b32 v28, v28, v29")
    LE("v30", "v0", [(4, 2, 13)])
    a(f"v_add_u32 v{D[0]}, v28, v30")
    a(f"v_xor_b32 v{D[1]}, 128, v{D[0]}")
    sexpr(a, S_T2, [(S_H, 0, 5, 8), (S_W, 0, 2, 18)])
    sexpr(a, S_T3, [(S_W, 0, 2, 13)], L_WO)
    sexpr(a, S_WOB, [(S_H, 0, 5, 17), (S_W, 0, 2, 15)])

    def dma_chunk(a, q, n):
        m, ch = divmod(n, 4)
        if ch == 0:
            srd(a, S_T, S_PTR + 4 + 2 * m, 4194304)
        for i in range(8):
            a(f"s_add_u32 m0, s{S_T3}, {ch * 32768 + i * 1024}")
            if m < 3:
                a(f"s_add_u32 s{S_T0}, s{S_T2}, {hex((128 * ch + 4 * i) * 8192)}")
                a(f"buffer_load_dwordx4 v{D[(i >> 2) & 1]}, {sr(S_T,4)}, s{S_T0} offen lds")
            else:
                a(f"s_add_u32 s{S_T0}, s{S_WOB}, {hex(4 * i * 1024 + ch * 256)}")
                a(f"buffer_load_dwordx4 v{E[(i & 1) + 2 * ((i >> 2) & 1)]}, {sr(S_T,4)}, s{S_T0} offen lds")
        q.issue(("d", n), 8)

    if "time" in opt: a("s_memrealtime s[76:77]")
    for n in range(4): dma_chunk(a, q, n)
    LE(vL16w, "v0", [(0, 6, 4), (6, 2, 11)])
    LE(vL16, "v0", [(0, 6, 4)])
    LE(vXw, "v0", [(6, 2, 10), (0, 4, 5), (4, 2, 3)], L_QK)
    LE("v16", "v0", [(2, 2, 3)])
    a(f"v_xor_b32 {vXw}, {vXw}, v16")
    LE(vXr, "v0", [(0, 6, 3)], L_QK)
    LE("v16", "v0", [(4, 2, 3)])
    a(f"v_xor_b32 {vXr}, {vXr}, v16")
    LE(vOw, "v0", [(6, 2, 9), (5, 1, 8), (2, 2, 6), (0, 1, 5), (4, 1, 4)], L_OS)
    LE("v16", "v0", [(5, 1, 8), (2, 2, 6), (0, 1, 5), (4, 1, 4)], L_JUNK)
    a("v_and_b32 v17, 2, v0")
    a("v_cmp_ne_u32 vcc, 0, v17")
    a("s_nop 1")
    a(f"v_cndmask_b32 {vOw}, {vOw}, v16, vcc")
    for r in (10, 11, 14, 15): a(f"v_mov_b32 v{r}, 0")
    LE(vWo, "v0", [(6, 2, 15), (0, 6, 4)], L_WO)
    LE(vPs, "v0", [(4, 2, 14), (3, 1, 13), (2, 1, 11), (0, 2, 4)])
    LE(vMp, "v0", [(5, 1, 5), (0, 2, 3), (4, 1, 2), (2, 2, 30)])
    a(f"v_and_b32 v16, 1, v0")
    a(f"v_mul_u32_u24 {vIdx}, 0xaaaa, v16")
    a(f"v_add_u32 {vIdx}, 0x4444, {vIdx}")
    a("v_and_b32 v16, 3, v0")
    a("v_bfe_u32 v17, v0, 2, 2")
    a("v_mov_b32 v18, 0x3f80")
    a("v_mov_b32 v19, 0x3f800000")
    a("v_cmp_eq_u32 vcc, 1, v16")
    a("s_nop 1")
    a("v_cndmask_b32 v18, v18, v19, vcc")
    a("v_cmp_gt_u32 vcc, 2, v16")
    a("s_nop 1")
    a("v_cndmask_b32 v18, 0, v18, vcc")
    for d in range(4):
        a(f"v_cmp_eq_u32 vcc, {d}, v17")
        a("s_nop 1")
        a(f"v_cndmask_b32 v{20+d}, 0, v18, vcc")
    a(f"ds_write_b128 {vL16}, v[20:23] offset:{L_SEL}")
    for tau in range(2):
        sexpr(a, S_PST + tau, [(S_W, 0, 2, 16), (S_H, 0, 5, 6)], WS_PART + tau * 4096)
    sexpr(a, S_PLD, [(S_H, 0, 5, 13), (S_W, 0, 2, 11)], WS_PART)
    sexpr(a, S_OWN, [(S_H, 3, 2, 11), (S_W, 1, 1, 10), (S_H, 0, 1, 9), (S_W, 0, 1, 8), (S_H, 1, 2, 6)])
    a(f"s_mov_b32 s{S_MRD}, {hex(WS_MEM)}")
    a(f"s_add_u32 s{S_MPO}, s{S_OWN}, {hex(WS_MEM)}")
    a(f"s_add_u32 s{S_MWR}, s{S_OWN}, {hex(WS_MEM + 8192)}")
    a(f"s_mul_i32 s{S_T0}, s{S_H}, {HSTR}")
    sexpr(a, S_KX, [(S_W, 0, 2, 12)], WS_KV)
    a(f"s_add_u32 s{S_KX}, s{S_KX}, s{S_T0}")
    a(f"s_mul_i32 s{S_T0}, s{S_H}, {MSTR}")
    sexpr(a, S_KVM, [(S_W, 0, 2, 10)], WS_KM)
    a(f"s_add_u32 s{S_KVM}, s{S_KVM}, s{S_T0}")
    a(f"s_mov_b32 s{S_STEP}, 0")
    a(f"s_mov_b32 s{S_TAG}, 1")
    a(f"s_mov_b32 s{S_PMAX}, 20000")
    sc = (128 ** -0.5) * math.log2(math.e)
    a(f"s_mov_b32 s{S_SC}, {hex(struct.unpack('<I', struct.pack('<f', sc))[0])}")

    a(f"s_mov_b32 s{S_SC2}, s{S_SC}"); a(f"s_mov_b32 s{S_SC2+1}, s{S_SC}")
    a(f"s_mov_b32 s{S_OM}, 0x33333333"); a(f"s_mov_b32 s{S_OM+1}, 0x33333333")
    LE("v28", "v0", [(4, 1, 5)])
    LE("v29", "v0", [(0, 4, 4)])
    a("v_xor_b32 v28, v28, v29")
    LE("v30", "v0", [(4, 2, 10)])
    a(f"v_add_u32 v{E[0]}, v28, v30")
    a(f"v_xor_b32 v{E[1]}, 64, v{E[0]}")
    a(f"v_xor_b32 v{E[2]}, 128, v{E[0]}")
    a(f"v_xor_b32 v{E[3]}, 192, v{E[0]}")
    TR = [40, 41]
    LE("v28", "v0", [(2, 1, 12), (5, 1, 10), (3, 1, 9), (4, 1, 8), (0, 1, 3)])
    LE("v29", "v0", [(6, 2, 6), (1, 1, 4)])
    LE("v30", "v0", [(4, 1, 5), (3, 1, 6), (2, 1, 7)])
    a("v_xor_b32 v29, v29, v30")
    a(f"v_add_u32 v{TR[0]}, v28, v29")
    a(f"v_xor_b32 v{TR[1]}, 32, v{TR[0]}")

    done = pfx + "_wdone"
    for w in range(4):
        if w < 3:
            a(f"s_cmp_lg_u32 s{S_W}, {w}")
            a(f"s_cbranch_scc1 {pfx}_wl{w+1}")
        qq = q.clone()
        for n in range(13):
            if n < 12:
                qq.wait(("d", n))
            a("s_barrier")
            if "time" in opt and n in (0, 4, 8): a(f"s_memrealtime s[{78+n//2}:{79+n//2}]")
            if 0 < n and n + 3 < 16: dma_chunk(a, qq, n + 3)
            if not own_init and n == max([int(o[2:]) for o in opt if o.startswith("cn")] + [0] or [0]) + 6 and w == 0:
                claim(a)
            if not own_init and n == 11:
                a(f"v_lshrrev_b32 v122, 2, {vL16}")
            if not own_init and n == 12 and w == 0:
                a(f"s_mov_b32 exec_lo, 1"); a(f"s_mov_b32 exec_hi, {1 << (D_LN1 - 32)}")
                a(f"global_load_dword v123, v122, {sr(S_DBG,2)} sc1")
                a("s_mov_b64 exec, -1")
                a("s_waitcnt vmcnt(0)")
                a(f"ds_write_b32 v122, v123 offset:{L_JUNK}")
                a("s_waitcnt lgkmcnt(0)")
            if n == 12: break
            m, ch = divmod(n, 4)
            mn = "qkv"[m]
            a(f"v_add_u32 v26, {L_WO + ch * 32768}, v{TR[0]}")
            a(f"v_add_u32 v27, {L_WO + ch * 32768}, v{TR[1]}")
            for k2 in range(2):
                sig = (2 * ch + k2) ^ (2 * w)
                for t in range(2):
                    for p in range(4):
                        off = (64 * k2 + 32 * (p % 2) + 8 * (p // 2)) * 256
                        a(f"ds_read_b64_tr_b16 {wreg(mn, t, sig, 2 * p, 2)}, v{26+t} offset:{off}")
            a("s_waitcnt lgkmcnt(0)")
        if w < 3:
            a(f"s_branch {done}")
            a.label(f"{pfx}_wl{w+1}")
    a.label(done)
    LE("v24", "v0", [(4, 1, 12), (5, 1, 11), (3, 1, 10), (2, 1, 8), (6, 2, 15), (1, 1, 4), (0, 1, 3),
                     (2, 1, 5), (3, 1, 6), (4, 1, 7)], L_WO)
    a("s_waitcnt vmcnt(0)")
    if not own_init:
        sexpr(a, S_FLG, [(S_H, 0, 5, 7)], WS_FLAG)
    a("s_barrier")
    if not own_init:
        a(f"buffer_load_dword v119, {vMp}, {sr(S_WS,4)}, s{S_FLG} offen sc1")
        a(f"ds_read_b32 v123, v122 offset:{L_JUNK}")
    for ks in range(2):
        for tau in range(2):
            for b in range(4):
                a(f"v_xor_b32 v25, {128 * tau + 32 * b}, v24")
                base = 32 + (tau * 4 + b) * 8
                for p in range(4):
                    off = (64 * ks + 32 * (p // 2) + 2 * (p % 2)) * 256
                    a(f"ds_read_b64_tr_b16 {vr(base + 2 * p, 2)}, v25 offset:{off}")
        a("s_waitcnt lgkmcnt(0)")
        for i in range(16):
            a(f"ds_write_b128 {vWo}, {vr(32 + 4 * i, 4)} offset:{ks * 16384 + i * 1024}")
        a("s_waitcnt lgkmcnt(0)")
    if own_init: dbg_wait(a, D_RTB, 128, sleep=8)
    else: verify_claim(a, 1, L_MISC)

def kv_wait(a, need_sreg_or_imm, tag):
    l = a.uid(tag)
    need = need_sreg_or_imm
    a(f"s_cmp_ge_u32 s{S_HAVE}, {need}")
    a(f"s_cbranch_scc1 {l}_ok")
    a(f"s_mov_b32 s{S_PC}, 0")
    a.label(l)
    a(f"buffer_load_dword v119, {vMp}, {sr(S_WS,4)}, s{S_FLG} offen sc1")
    a("s_waitcnt vmcnt(0)")
    a(f"v_readlane_b32 s{S_HAVE}, v119, 0")
    a(f"v_readlane_b32 s{S_T0}, v119, 2")
    a("s_nop 1")
    a(f"s_min_u32 s{S_HAVE}, s{S_HAVE}, s{S_T0}")
    a(f"s_cmp_ge_u32 s{S_HAVE}, {need}")
    a(f"s_cbranch_scc1 {l}_ok")
    a("s_sleep 2")
    a(f"s_add_u32 s{S_PC}, s{S_PC}, 1")
    a(f"s_cmp_lt_u32 s{S_PC}, s{S_PMAX}")
    a(f"s_cbranch_scc1 {l}")
    a(f"s_mov_b32 s{S_PMAX}, 1")
    a.label(l + "_ok")

def emit_rec_mega(a, opt):
    import mega
    a(f"s_load_dwordx16 {sr(S_PTR,16)}, s[0:1], 0")
    a("s_waitcnt lgkmcnt(0)")
    emit_rec_setup(a, own_init=False, opt=opt)
    if "time" in opt: a("s_memrealtime s[84:85]")
    a(f"v_readlane_b32 s{S_T2}, v123, {D_LN1}")
    a(f"v_readlane_b32 s{S_T3}, v123, 0")
    a("s_waitcnt vmcnt(0)")
    a(f"v_readlane_b32 s{S_HAVE}, v119, 0")
    a(f"v_readlane_b32 s{S_T0}, v119, 2")
    a("s_nop 1")
    a(f"s_min_u32 s{S_HAVE}, s{S_HAVE}, s{S_T0}")
    a(f"s_mov_b32 s57, s{S_T3}")
    a(f"s_cmp_ge_u32 s{S_T2}, {N_LN1}")
    a("s_cbranch_scc1 R_lnok")
    a(f"s_mov_b32 s{S_HAVE}, 0")
    a(f"s_mov_b32 s{S_PC}, 0")
    a.label("R_lnw")
    a(f"global_load_dword v123, v122, {sr(S_DBG,2)} sc1")
    a("s_waitcnt vmcnt(0)")
    a(f"v_readlane_b32 s{S_T2}, v123, {D_LN1}")
    a("s_nop 1")
    a(f"s_cmp_ge_u32 s{S_T2}, {N_LN1}")
    a("s_cbranch_scc1 R_lnok")
    a("s_sleep 32")
    a(f"s_add_u32 s{S_PC}, s{S_PC}, 1")
    a(f"s_cmp_lt_u32 s{S_PC}, s{S_PMAX}")
    a("s_cbranch_scc1 R_lnw")
    a.label("R_lnok")
    kv_wait(a, 2, "kvw")
    if "time" in opt: a("s_memrealtime s[86:87]")
    if "fakexcc" not in opt and "slow" not in opt:
        a("s_cmp_eq_u32 s57, -1")
        a("s_cbranch_scc1 R_fast")
    mega.emit_mode(a, opt, "R_slow")
    a.label("R_fast")
    ropt = list(opt) + ["mega", "oexec", "f1s", "ge5", "ga2", "gb4", "c112", "b15", "de5", "dl5", "db4", "dc2", "o01"]
    emit_rec(a, fast=True, pfx="RF", opt=ropt)
    a("s_branch L_done")
    a.label("R_slow")
    emit_rec(a, fast=False, pfx="RS", opt=ropt)

def emit_rec(a, fast=True, stamps=False, nsteps=64, pfx="R", warm=True, opt=()):
    st = "" if fast else " sc1"
    def geti(p, d):
        for o in opt:
            if o.startswith(p) and o[len(p):].isdigit(): return int(o[len(p):])
        return d
    nst = [0]
    tr0 = geti("tr", -1)
    slotno = [0]
    def stamp(force=False):
        if stamps and (tr0 < 0 or force):
            a(f"s_memtime {sr(S_STAMP + 2 * nst[0], 2)}"); nst[0] += 1
    if "mega" not in opt: emit_rec_setup(a, pfx)

    lq = LQ()
    rms = [o[3:] for o in opt if o.startswith("rm:")]
    def emit(x):
        txt = x if isinstance(x, str) else x[0]
        if isinstance(x, str) and any(r in txt for r in rms): return
        if x == "STAMP": stamp()
        elif isinstance(x, tuple):
            if x[0] == "w":
                wt = lq.wait(x[1])
                if isinstance(x[1], tuple) and x[1][0] == "Fw": assert wt.endswith("(0)")
                a(wt)
            elif x[0] == "L": a.label(x[1])
            else:
                a(x[0]); lq.issue(x[1])
        else: a(x)
    def run(seq, count=True):
        for m, fill in seq:
            if m: a(m)
            if tr0 >= 0 and count and tr0 <= slotno[0] + 12 < tr0 + geti("tn", 13): stamp(True)
            if count: slotno[0] += 1
            for f in fill: emit(f)

    kvd = [f"buffer_load_dwordx4 {vL16}, {sr(S_WS,4)}, s{S_KX} offen offset:{1024*i} sc1 lds" for i in range(4)] + [f"s_add_u32 s{S_KX}, s{S_KX}, 16384"]
    zero16 = lambda r: f"v_mfma_f32_32x32x8_bf16 {vr(r,16)}, {vZ}, {vZ}, 0"
    zero4 = lambda r: f"v_mfma_f32_16x16x16_bf16 {vr(r,4)}, {vZ}, {vZ}, 0"
    def gather(sig):
        return f"buffer_load_dwordx4 {vr(F[sig],4)}, {vL16w}, {sr(S_WS,4)}, s{S_MRD} offen offset:{1024*sig} sc1"
    def fx():
        for i in range(3): a(f"v_xor_b32 {vFx[i]}, {2048 * (i + 1)}, {vL16w}")
    S_MK, S_MV = S_T2, S_T3
    sexpr(a, S_MK, [(S_W, 0, 2, 11)], L_K)
    sexpr(a, S_MV, [(S_W, 0, 2, 11)], L_V - 2048)
    mk, mv = f"s_mov_b32 m0, s{S_MK}", f"s_mov_b32 m0, s{S_MV}"
    for x in [mk, "s_nop 0"] + kvd[:2] + [mv, "s_nop 0"] + kvd[2:] + [mk]: a(x)
    a(f"s_sub_u32 s{S_KVM}, s{S_KVM}, 4096")
    a(f"s_add_u32 s{S_T0}, s{S_KVM}, {65*4096}")
    a(f"s_mov_b32 s{S_KVC}, s{S_T0}")
    if "nokv" in opt: kvd = ["s_nop 0"] * 5
    a(zero16(64)); a(zero16(80))
    fx()
    a(f"s_mov_b32 s{S_PC}, 0")
    if stamps or "nost" in opt or "time" in opt:
        a("s_memrealtime s[96:97]"); a("s_memtime s[98:99]")
    if "rstat" in opt:
        for r in range(60, 64): a(f"s_mov_b32 s{r}, 0")
    for sl in (1, 2):
        a(f"s_add_u32 s{S_T0}, s{S_MRD}, {8192*sl}")
        for n in range(2): a(f"buffer_load_dwordx4 v[96:99], {vL16w}, {sr(S_WS,4)}, s{S_T0} offen offset:{1024*n} sc1")
    for n in range(2): a(f"buffer_load_dwordx4 v[96:99], {vPl}, {sr(S_WS,4)}, s{S_PLD} offen offset:{1024*n} sc1")
    a(gather(1))
    a(gather(0)); a(gather(0))
    if "f1s" not in opt: a(gather(1))

    rdF = lambda sig: (f"ds_read_b128 {vr(F[sig],4)}, {vFx[sig//2-1]} offset:{L_MEM + (sig%2)*1024}", ("F", sig))
    rdKX = lambda t, ks: (f"ds_read_b128 {vr(KXR[(t,ks)],4)}, {vL16} offset:{L_K + (t*4+ks)*1024}", "KX")
    trQ = lambda ks, u: (f"ds_read_b64_tr_b16 {vr(QF[ks]+2*u,2)}, {vXr} offset:{1024*ks+512*u}", ("Q", ks))
    trK = lambda ks, u: (f"ds_read_b64_tr_b16 {vr(KF[ks]+2*u,2)}, {vXr} offset:{1024*ks+512*u}", ("K", ks))
    rdV = lambda t: (f"ds_read_b128 {vr(VX[t],4)}, {vL16w} offset:{L_V + t*1024}", "V")
    def sx(t, ks):
        d = vr([SX0, SX1][t], 4)
        return f"v_mfma_f32_16x16x32_bf16 {d}, {vr(KXR[(t,ks)],4)}, {vr(QF[ks],4)}, {d if ks else 0}"
    def sm(ks):
        d = vr(SM, 4)
        return f"v_mfma_f32_16x16x32_bf16 {d}, {vr(QF[ks],4)}, {vr(QF[ks],4)}, {d if ks else 0}"
    kvm = [f"buffer_store_dwordx4 v[12:15], {vL16}, {sr(S_WS,4)}, s{S_KVC} offen sc1", f"s_add_u32 s{S_KVM}, s{S_KVM}, 4096", f"s_mov_b32 s{S_KVC}, s{S_KVM}"]
    if "nokvm" in opt: kvm[0] = "s_nop 0"

    nc = "nocomm" in opt
    def chk(sig):
        f = F[sig]
        return [f"v_max3_u32 v16, v{f}, v{f+1}, v{f+2}", f"v_max_u32 v16, v16, v{f+3}", f"v_cmp_eq_u32 vcc, -1, v16"]
    wrF = lambda sig: (f"ds_write_b128 {vL16w}, {vr(F[sig],4)} offset:{L_MEM + 1024*sig}", ("Fw", sig))
    def gfail(sig, first_wait, redo):
        a.label(f"{pfx}_gf{sig}")
        a(f"s_waitcnt vmcnt({first_wait})")
        a.label(f"{pfx}_gr{sig}")
        if "rstat" in opt: a(f"s_add_u32 s{61+sig}, s{61+sig}, 1")
        for x in chk(sig): a(x)
        a(f"s_add_u32 s{S_PC}, s{S_PC}, 1")
        a(f"s_cbranch_vccz {pfx}_gx{sig}")
        a(gather(sig))
        a(f"s_cmp_lt_u32 s{S_PC}, s{S_PMAX}")
        a("s_waitcnt vmcnt(0)")
        a(f"s_cbranch_scc1 {pfx}_gr{sig}")
        a(f"s_mov_b32 s{S_PMAX}, 1")
        a.label(f"{pfx}_gx{sig}")
        a(wrF(sig)[0])
        for x in redo: a(x)
        a(f"s_branch {pfx}_gok{sig}")

    a(f"s_branch {pfx}_gA")
    gfail(0, 0 if "f1s" in opt else 1, [zero4(64), "s_nop 5", smf("q", 0, 0)])
    gfail(1, 0, [])
    a.raw(".p2align 6")
    a.label(f"{pfx}_gA")
    if not nc: a(f"s_waitcnt vmcnt({1 if 'f1s' in opt else 2})")
    for x in chk(0)[:2]: a(x)
    emit(wrF(0))
    a(chk(0)[2])
    a(smf("q", 0, 0))
    if not nc: a(f"s_cbranch_vccnz {pfx}_gf0")
    a.label(f"{pfx}_gok0")
    if stamps:
        a(f"s_memtime {sr(S_STAMP, 2)}")
        a(f"s_mov_b32 s{S_STAMP+29}, s{S_PC}")
    nst[0] = 1
    kx = {k: rdKX(*k) for k in KXR}
    WB = [40, 48, 56, 32, 104, 112, 120, 96, 24]
    def rdWo(k, buf, half):
        T, ks = divmod(k, 2)
        return (f"ds_read_b128 {vr(buf + 4*half, 4)}, {vWo} offset:{ks*16384 + T*2048 + half*1024}", ("W", k))
    W = [rdWo(k, WB[k], h) for k in range(9) for h in range(2)]
    def post(acc, dst):
        return [f"v_add_f32 v{acc}, v{acc}, v{acc+1}", f"v_add_f32 v{acc+2}, v{acc+2}, v{acc+3}", f"v_cvt_pk_bf16_f32 v{dst}, v{acc}, v{acc+2}"]
    one = [f"v_mov_b32 v{28+i}, 0x3f803f80" for i in range(4)]
    pq0, pk0, pq1, pk1 = post(64, 12), post(72, 13), post(68, 14), post(76, 15)
    pv0, pv1 = post(80, 12), post(84, 14)
    tr = [trQ(ks, u) for ks in range(4) for u in range(2)]
    QK = (("q", 0), ("k", 0), ("q", 1), ("k", 1))
    ms = [smf("k", 0, 0), smf("q", 1, 0), smf("k", 1, 0), smf("v", 0, 0), smf("v", 1, 0)]
    ms += [smf(m, t, sg) for sg in (2, 4, 6, 1) for m, t in QK]
    ms += [smf(m, t, sg) for m, t in QK for sg in (3, 5, 7)]
    ms += [smf("v", t, sg) for sg in (1, 2, 3, 4, 5, 6, 7) for t in range(2)]
    ms += [sx(0, 0), sx(1, 0), sm(0), sx(0, 1), sx(1, 1), sm(1), sx(0, 2), sx(0, 3), sx(1, 2), sx(1, 3), sm(2), sm(3)]
    fl = {k: [] for k in range(1, 60)}
    hb = geti("hb", 4); c1 = geti("c1", 10); b1 = geti("b1", 6)
    f1s = "f1s" in opt
    fl[geti("f1", 1)] = [gather(1)] if not nc else []
    fl[hb] += [("w", ("Fw", 0)), "s_barrier", rdF(2)]
    fl[5] += [rdF(4), rdF(6), zero4(20), kx[(0, 1)], kx[(1, 1)], zero4(20), ("w", ("F", 2)), "STAMP"]
    rest = [kx[(0, 2)], kx[(1, 2)], kx[(0, 3)], kx[(1, 3)], kx[(1, 0)], kx[(0, 0)]]
    for sl in range(6, c1):
        if len(rest) > 1: fl[sl] += [rest.pop(0)]
    fl[9] += [("w", ("F", 6))]
    if f1s:
        fl[c1] += (["s_waitcnt vmcnt(0)"] if not nc else []) + [wrF(1)]
        fl[c1 + 1] += [f"v_cmp_eq_u32 vcc, -1, v{F[1]}"]
        fl[c1 + 2] += ([f"s_cbranch_vccnz {pfx}_gf1"] if not nc else []) + [("L", f"{pfx}_gok1")]
    else:
        fl[c1] += (["s_waitcnt vmcnt(1)"] if not nc else []) + chk(1)
        fl[c1 + 1] += [wrF(1)] + ([f"s_cbranch_vccnz {pfx}_gf1"] if not nc else []) + [("L", f"{pfx}_gok1")]
    for n, x in enumerate(rest): fl[c1 + 2 + n] += [x]
    fl[c1 + b1] += [("w", "KX"), "s_barrier"]
    x0 = c1 + b1 + 1
    fl[x0] += [rdF(3), rdF(5)]; fl[x0 + 1] += [rdF(7), one[3]]
    fl[x0 + 2] += (["s_waitcnt vmcnt(0)"] if not (nc or f1s) else []) + [kvd[0]]
    fl[x0 + 3] += [one[0]]
    fl[21] += [("w", ("F", 3))]
    fl[22] += [("w", ("F", 7)), one[1]]
    fl[23] += [kvd[1]]
    fl[24] += [mv, one[2], "STAMP"]
    fl[25] += kvm[:1]
    fl[26] += kvm[1:2]
    fl[27] += kvm[2:3]
    if "mega" in opt and "nofl" not in opt: fl[30] += [f"buffer_load_dword {vFl}, {vMp}, {sr(S_WS,4)}, s{S_FLG} offen sc1"]
    fl[26] += [pq0[0]]
    fl[27] += [pq0[1]]
    fl[28] += [pq0[2]]
    fl[29] += [rdV(0), pk0[0]]
    fl[30] += [pk0[1]]
    fl[31] += [pk0[2]]
    fl[32] += [rdV(1), pq1[0]]
    fl[33] += [pq1[1]]
    fl[34] += [pq1[2]]
    fl[35] += pk1
    fl[36] += [(f"ds_write2st64_b64 {vXw}, v[12:13], v[14:15] offset1:1", "Xw")]
    fl[37] += [("w", "V"), "v_mov_b32 v77, 0"]
    fl[38] += [kvd[2]]
    fl[39] += [W[0]]
    fl[40] += [kvd[3]]
    fl[41] += [("w", "Xw"), "s_barrier"]
    fl[42] += tr[0:2]
    fl[43] += tr[2:4]
    fl[44] += tr[4:6]
    fl[45] += tr[6:8]
    fl[46] += [W[1]]
    fl[47] += [("w", ("Q", 3)), "STAMP"]
    fl[48] += [W[2], pv0[0]]
    fl[49] += [W[3], pv0[1]]
    fl[50] += [W[4], pv0[2]]
    fl[51] += [W[5], pv1[0]]
    fl[52] += [W[6], pv1[1]]
    fl[53] += [W[7], pv1[2]]
    fl[54] += [mk, f"s_cmp_eq_u32 s{S_STEP}, {nsteps-1}"] + ([f"s_cbranch_scc1 {pfx}_endk"] if not stamps else [])
    fl[55] += [W[8]]
    fl[56] += [W[9]]
    fl[57] += [W[10], "v_max3_f32 v80, v16, v17, v18"]
    fl[58] += [W[11], kvd[4]]
    fl[59] += [W[12], W[13], "s_nop 1", "v_max3_f32 v82, v19, v20, v21", "v_max3_f32 v80, v80, v22, v23", "v_max_f32 v80, v80, v82", "s_nop 0"]
    slotno[0] = -11
    run([(m, fl[1 + i]) for i, m in enumerate(ms)])
    ee = lambda r: f"v_exp_f32 v{r}, v{r}"
    for x in ["v_max3_f32 v80, v80, v26, v27", "v_mov_b32 v82, v80", W[14], W[15], "v_permlane32_swap_b32 v80, v82", "v_max_f32 v80, v80, v82",
              "v_mov_b32 v82, v80", "s_nop 1", "v_permlane16_swap_b32 v80, v82", "v_max_f32 v80, v80, v82", f"v_mul_f32 v80, s{S_SC}, v80"]:
        emit(x)
    for r in (26, 16, 18, 20, 22):
        a(f"v_pk_fma_f32 {vr(r,2)}, {vr(r,2)}, {sr(S_SC2,2)}, v[80:81] op_sel_hi:[1,1,0] neg_lo:[0,0,1] neg_hi:[0,0,1]")
    stamp()
    for x in [ee(26), ee(27), ee(16), "v_cvt_pk_bf16_f32 v76, v26, v27", ee(17), "s_nop 0"]:
        emit(x)
    run([("v_mfma_f32_16x16x16_bf16 v[84:87], v[28:29], v[76:77], 0", [ee(18), "v_cvt_pk_bf16_f32 v68, v16, v17"]),
         ("v_mfma_f32_16x16x16_bf16 v[88:91], v[12:13], v[76:77], 0", [ee(19), ee(20)]),
         ("v_mfma_f32_16x16x16_bf16 v[92:95], v[14:15], v[76:77], 0", [ee(21), "v_cvt_pk_bf16_f32 v69, v18, v19", ee(22), ee(23),
            "v_cvt_pk_bf16_f32 v70, v20, v21", "v_cvt_pk_bf16_f32 v71, v22, v23", W[16], "s_nop 0"]),
         ("v_mfma_f32_16x16x32_bf16 v[84:87], v[28:31], v[68:71], v[84:87]", [W[17]]),
         (f"v_mfma_f32_16x16x32_bf16 v[88:91], {vr(VX[0],4)}, v[68:71], v[88:91]", []),
         (f"v_mfma_f32_16x16x32_bf16 v[92:95], {vr(VX[1],4)}, v[68:71], v[92:95]", ["v_rcp_f32 v20, v84", "s_nop 2"])])
    for r in range(88, 92): a(f"v_mul_f32 v{r}, v20, v{r}")
    a("v_pk_mul_f32 v[92:93], v[92:93], v[20:21] op_sel_hi:[1,0]")
    a("v_pk_mul_f32 v[94:95], v[94:95], v[20:21] op_sel_hi:[1,0]")
    for i in range(4): a(f"v_cvt_pk_bf16_f32 v{16+i}, v{88+2*i}, v{89+2*i}")
    if "oexec" in opt: a(f"s_mov_b64 exec, {sr(S_OM,2)}")
    emit((f"ds_write_b128 {vOw}, v[16:19]", "Ow"))
    if "oexec" in opt: a("s_mov_b64 exec, -1")
    stamp()
    a(zero16(64))
    if "z2" not in opt: a(zero16(80))
    for _ in range(geti("xa", 0)): a(zero4(84) if "z2" in opt else zero4(76))
    emit(("w", "Ow"))
    a("s_barrier")
    emit((f"ds_read_b128 v[16:19], {vL16} offset:{L_OS}", "O0"))
    emit((f"ds_read_b128 v[20:23], {vL16} offset:{L_OS+1024}", "O1"))
    if "z3" not in opt: a(zero16(80))
    for _ in range(geti("xb", 0)): a("v_mfma_f32_16x16x16_bf16 v[76:79], v[10:11], v[10:11], 0")
    emit(("w", "O0" if "o01" in opt else "O1"))
    stamp()
    OA = [64 + 4 * T for T in range(8)]
    buf = {k: WB[k] for k in range(9)}
    for k in range(9, 16): buf[k] = WB[k - 9]
    def wo(k):
        T, ks = divmod(k, 2)
        return f"v_smfmac_f32_16x16x64_bf16 {vr(OA[T], 4)}, {vr(16 + 4*ks, 4)}, {vr(buf[k], 8)}, {vIdx}"
    def add(T):
        o = OA[T]; return [f"v_add_f32 v{o}, v{o}, v{o+1}", f"v_add_f32 v{o+2}, v{o+2}, v{o+3}"]
    G = [OA[0], OA[4]]
    def cvt(tau, bb):
        o0, o1 = OA[tau*4 + 2*bb], OA[tau*4 + 2*bb + 1]
        return [f"v_cvt_pk_bf16_f32 v{G[tau]+bb}, v{o0}, v{o1}", f"v_cvt_pk_bf16_f32 v{G[tau]+2+bb}, v{o0+2}, v{o1+2}"]
    tag = lambda tau: [f"v_and_or_b32 v{G[tau]}, v{G[tau]}, -2, s{S_TAG}"]
    stp = lambda tau: [f"buffer_store_dwordx4 {vr(G[tau],4)}, {vPs}, {sr(S_WS,4)}, s{S_PST+tau} offen{st}"]
    fill = {k: [] for k in range(16)}
    if "o01" in opt: fill[0].append(("w", "O1"))
    rest = [rdWo(k, buf[k], h) for k in range(9, 16) for h in range(2)]
    if "wo2" in opt:
        sched_rd = {0: 2, 1: 1, 2: 1, 3: 1, 4: 1, 5: 1, 6: 1, 7: 1, 8: 0, 9: 0, 10: 1, 11: 2, 12: 2}
        waits = {8: 10, 10: 12, 12: 13, 13: 14, 14: 15}
        va = {3: add(0)[:1], 4: add(0)[1:], 5: add(1), 6: cvt(0, 0), 7: tag(0) + add(2)[:1], 8: add(2)[1:], 9: add(3) + cvt(0, 1) + stp(0),
              11: add(4)[:1], 12: add(4)[1:], 13: add(5), 14: cvt(1, 0) + tag(1), 15: add(6)}
    else:
        sched_rd = {0: 2, 1: 2, 2: 2, 3: 1, 4: 1, 5: 1, 6: 1, 7: 1, 8: 1, 9: 1, 10: 1}
        waits = {8: 11, 11: 13, 13: 15}
        va = {3: add(0)[:1], 4: add(0)[1:], 5: add(1), 6: cvt(0, 0), 7: tag(0) + add(2)[:1], 8: add(2)[1:], 9: add(3) + cvt(0, 1), 10: stp(0),
              11: add(4)[:1], 12: add(4)[1:], 13: add(5), 14: cvt(1, 0) + tag(1), 15: add(6)}
    for k, n in sched_rd.items():
        for _ in range(n): fill[k].append(rest.pop(0))
    assert not rest
    for k, fr in waits.items(): fill[k].append(("w", ("W", fr)))
    for k, v in va.items(): fill[k] += v
    SEL, RD = 96, 100
    RS = [(104, 108), (112, 120)]
    fill[15] = [(f"ds_read_b128 {vr(SEL,4)}, {vL16} offset:{L_SEL}", "SEL")] + fill[15] + ["v_mov_b32 v117, -1", f"s_mov_b32 s{S_PC}, 0", "s_nop 2"] + add(7) + cvt(1, 1) + stp(1)
    run([(wo(k), fill[k]) for k in range(16)])
    stamp()
    if "nocomm" in opt:
        a(zero16(64)); fx(); a(zero16(80))
        if stamps:
            a(f"s_cmp_eq_u32 s{S_STEP}, {nsteps-1}")
            a(f"s_cbranch_scc1 {pfx}_end")
        a(f"s_add_u32 s{S_STEP}, s{S_STEP}, 1")
        a("s_nop 7")
        a(f"s_branch {pfx}_gA")
    def ldp(st_):
        for n in range(2): a(f"buffer_load_dwordx4 {vr(RS[st_][n],4)}, {vPl}, {sr(S_WS,4)}, s{S_PLD} offen offset:{1024*n} sc1")
    de = geti("de", 4); dl = geti("dl", 6); d2 = geti("db", 3); d3 = geti("dc", 3)
    NOP = "s_nop 7"
    a(zero16(64))
    fx()
    a(zero16(80))
    a(f"s_cmp_lt_u32 s{S_W}, 2")
    for _ in range(de - 2): a(NOP)
    a(f"s_cbranch_scc1 {pfx}_re")
    for _ in range(dl): a(NOP)
    a.label(f"{pfx}_re")
    ldp(0)
    for _ in range(d2): a(zero16(80))
    ldp(1)
    emit(("w", "SEL"))
    for _ in range(d3): a(zero16(80))
    def fin(st_, nm):
        r0, r1 = RS[st_]
        a.label(f"{pfx}_rc{nm}")
        if "spin" in opt and nm == "A":
            for k in range(geti("sn", 8)):
                a(f"s_getreg_b32 s{S_T0}, hwreg(HW_REG_IB_STS, 0, 4)")
                a(f"s_cmp_le_u32 s{S_T0}, {geti('sv', 3)}")
                a(zero4(92))
                a(f"s_cbranch_scc1 {pfx}_sp")
            a.label(f"{pfx}_sp")
        a("s_waitcnt vmcnt(3)")
        a(f"v_mfma_f32_16x16x32_bf16 {vr(RD,4)}, {vr(SEL,4)}, {vr(r0,4)}, 0")
        a(f"v_xor_b32 v118, s{S_TAG}, v{r0}")
        a("s_waitcnt vmcnt(2)")
        a(f"v_mfma_f32_16x16x32_bf16 v[16:19], {vr(SEL,4)}, {vr(r1,4)}, {vr(RD,4)}")
        a(f"v_xor_b32 v119, s{S_TAG}, v{r1}")
        a(f"v_or_b32 v119, v119, v118")
        a("s_nop 1")
        a(f"v_and_b32 v119, 1, v119")
        a("s_nop 0")
        a(f"v_cmp_ne_u32 vcc, 0, v119")
        a("s_nop 0")
        a("v_add_f32_dpp v16, v16, v16 row_ror:8 row_mask:0xf bank_mask:0xf")
        a("v_add_f32_dpp v17, v17, v17 row_ror:8 row_mask:0xf bank_mask:0xf")
        a("s_nop 0")
        a("v_add_f32_dpp v16, v16, v16 row_ror:4 row_mask:0xf bank_mask:0xf")
        a("v_add_f32_dpp v17, v17, v17 row_ror:4 row_mask:0xf bank_mask:0xf")
        a("v_cvt_pk_bf16_f32 v116, v16, v17")
        a(f"s_cbranch_vccnz {pfx}_rf{nm}")
    fin(0, "A")
    a.label(f"{pfx}_rok")
    stamp()
    if stamps: a(f"s_mov_b32 s{S_STAMP+28}, s{S_PC}")
    a(f"buffer_store_dword v116, {vMp}, {sr(S_WS,4)}, s{S_MWR} offen{st}")
    a(f"buffer_store_dword v117, {vMp}, {sr(S_WS,4)}, s{S_MPO} offen{st}")
    if stamps:
        a(f"s_mov_b32 s{S_STAMP+30}, s{S_STAMP+2*nst[0]}")
    stamp()
    if stamps:
        a(f"s_cmp_eq_u32 s{S_STEP}, {nsteps-1}")
        a(f"s_cbranch_scc1 {pfx}_end")
    ge = geti("ge", 5); g1 = geti("ga", 0); g2 = geti("gb", 3); g3 = geti("gc", 3)
    a(f"s_mov_b32 s{S_MPO}, s{S_MWR}")
    a(f"s_sub_u32 s{S_MRD}, s{S_MWR}, s{S_OWN}")
    a(f"s_cmp_ge_u32 s{S_W}, 2")
    a(f"s_cbranch_scc1 {pfx}_gl")
    for _ in range(ge): a(NOP)
    a.label(f"{pfx}_gl")
    for _ in range(g1): a(NOP)
    a(gather(0))
    if "stept" in opt:
        a("s_memrealtime s[70:71]")
        a(f"s_lshl_b32 s72, s{S_STEP}, 2"); a(f"s_add_u32 s72, s72, {L_JUNK}")
        a("v_mov_b32 v118, s72")
        a("s_waitcnt lgkmcnt(0)")
        a("v_mov_b32 v119, s70")
        a("ds_write_b32 v118, v119")
        g2 -= 1
    a(f"s_add_u32 s{S_MWR}, s{S_MWR}, 8192")
    a(f"s_cmp_ge_u32 s{S_MRD}, {hex(WS_MEM + 2*8192)}")
    a(f"s_cselect_b32 s{S_T0}, {3*8192}, 0")
    a(f"s_sub_u32 s{S_MWR}, s{S_MWR}, s{S_T0}")
    a(f"s_add_u32 s{S_STEP}, s{S_STEP}, 1")
    a(f"s_xor_b32 s{S_TAG}, s{S_TAG}, 1")
    if "mega" in opt:
        if "nofl" not in opt:
            a(f"v_readlane_b32 s{S_HAVE}, {vFl}, 0")
            a(f"v_readlane_b32 s{S_T0}, {vFl}, 2")
        a(f"s_add_u32 s{S_T1}, s{S_STEP}, 2")
        a(f"s_min_u32 s{S_T1}, s{S_T1}, 64")
        if "nofl" not in opt: a(f"s_min_u32 s{S_HAVE}, s{S_HAVE}, s{S_T0}")
        kv_wait(a, f"s{S_T1}", pfx + "_kvw")
        g2 -= 1
    a(f"s_mov_b32 s{S_PC}, 0")
    for _ in range(g2 - 1): a(NOP)
    a(gather(0))
    if "f1s" not in opt:
        for _ in range(g3): a(NOP)
        a(gather(1))
    for _ in range(geti("gw", 0)): a(zero16(96))
    a(f"s_branch {pfx}_gA")
    a.label(f"{pfx}_rfA")
    if "rstat" in opt: a("s_add_u32 s60, s60, 1")
    ldp(0)
    a(f"s_add_u32 s{S_PC}, s{S_PC}, 1")
    fin(1, "B")
    a(f"s_branch {pfx}_rok")
    a.label(f"{pfx}_rfB")
    if "rstat" in opt: a("s_add_u32 s63, s63, 1")
    ldp(1)
    a(f"s_add_u32 s{S_PC}, s{S_PC}, 1")
    a(f"s_cmp_lt_u32 s{S_PC}, s{S_PMAX}")
    a(f"s_cbranch_scc1 {pfx}_rcA")
    a(f"s_mov_b32 s{S_PMAX}, 1")
    a(f"s_branch {pfx}_rok")
    a.label(pfx + "_endk")
    a.label(pfx + "_end")
    a(kvm[0])
    if "stept" in opt:
        a(f"v_lshrrev_b32 v118, 2, {vL16}")
        a(f"ds_read_b32 v119, v118 offset:{L_JUNK}")
        a(f"s_lshl_b32 s72, s{S_H}, 8"); a(f"s_add_u32 s72, s72, {hex(WS_STAMP + 0x20000)}")
        a("s_waitcnt lgkmcnt(0)")
        a(f"buffer_store_dword v119, v118, {sr(S_WS,4)}, s72 offen")
    return nst[0]
```

```python
import sys
from common import *
import rec, pre, gemm
L_BOOT = 163840 - 64

def read_counts(a, vdst="v25", vaddr="v24"):
    a(f"global_load_dword {vdst}, {vaddr}, {sr(S_DBG,2)} sc1")
    a("s_waitcnt vmcnt(0)")

def sum_arrivals(a, vb, dst, tmp):
    a(f"v_readlane_b32 s{dst}, {vb}, {D_OVF}")
    for x in range(8):
        a(f"v_readlane_b32 s{tmp}, {vb}, {0 if x == 0 else 15 + x}")
        a("s_nop 1")
        a(f"s_bcnt1_i32_b32 s{tmp}, s{tmp}")
        a(f"s_add_u32 s{dst}, s{dst}, s{tmp}")

def emit_entry(a, opt):
    a("s_cmp_ge_u32 s2, 256")
    a("s_cbranch_scc1 L_exit")
    a("s_load_dwordx4 s[48:51], s[0:1], 112")
    a(f"s_getreg_b32 s{S_TEAM}, hwreg(HW_REG_XCC_ID)")
    a(f"s_and_b32 s{S_TEAM}, s{S_TEAM}, 7")
    for o in opt:
        if o.startswith("map"):
            word = sum(int(c) << (4 * i) for i, c in enumerate(o[3:]))
            a(f"s_lshl_b32 s16, s{S_TEAM}, 2")
            a(f"s_lshr_b32 s{S_TEAM}, {hex(word)}, s16")
            a(f"s_and_b32 s{S_TEAM}, s{S_TEAM}, 7")
    if "fakexcc" in opt:
        a(f"s_lshr_b32 s{S_TEAM}, s2, 5")
        a("s_and_b32 s16, s2, 7")
        a("s_cmp_eq_u32 s16, 3")
        a(f"s_cselect_b32 s16, 5, s{S_TEAM}")
        a(f"s_mov_b32 s{S_TEAM}, s16")
    if "time" in opt: a("s_memrealtime s[92:93]")
    a("v_lshrrev_b32 v1, 6, v0")
    a(f"s_lshr_b32 s{S_H}, s2, 3")
    a(f"v_readfirstlane_b32 s{S_W}, v1")
    a(f"s_mov_b32 s{S_CLM}, 0")
    a("s_waitcnt lgkmcnt(0)")
    a(f"s_mov_b32 s{S_DBG}, s48")
    a(f"s_mov_b32 s{S_DBG+1}, s49")
    srd(a, S_WS, 50, WS_SIZE)
    if "cpf" in opt:
        a("s_getpc_b64 s[16:17]")
        a("s_and_b32 s16, s16, 0xffffff00")
        a(f"s_lshl_b32 s18, s{S_H}, 12"); a(f"s_lshl_b32 s19, s{S_W}, 10"); a("s_add_u32 s18, s18, s19")
        a("v_and_b32 v123, 7, v0"); a("v_lshlrev_b32 v123, 7, v123"); a("v_add_u32 v123, s18, v123")
        a("v_min_u32 v123, CODE_BYTES, v123")
        a("s_mov_b64 exec, 0xff")
        a("global_load_dword v122, v123, s[16:17]")
        a("s_mov_b64 exec, -1")
    a.label("L_role")

def emit_overflow(a):
    a.label("L_overflow")
    a("s_waitcnt vmcnt(0) lgkmcnt(0)")
    a("s_barrier")
    a("v_mov_b32 v2, 0"); a("v_mov_b32 v3, 1"); a("v_mov_b32 v5, 0")
    a(f"s_cmp_lg_u32 s{S_W}, 0")
    a("s_cbranch_scc1 L_ovw")
    a("s_mov_b64 exec, 1")
    a(f"global_atomic_add v4, v2, v3, {sr(S_DBG,2)} offset:{4*D_OVF} sc0")
    a("s_waitcnt vmcnt(0)")
    a("ds_write_b32 v5, v4")
    a("s_waitcnt lgkmcnt(0)")
    a("s_mov_b64 exec, -1")
    a.label("L_ovw")
    a("s_barrier")
    a("ds_read_b32 v4, v5")
    a("s_waitcnt lgkmcnt(0)")
    a("v_readfirstlane_b32 s18, v4")
    a("s_barrier")
    a("v_and_b32 v24, 31, v0"); a("v_lshlrev_b32 v24, 2, v24")
    a("s_mov_b32 s17, 0")
    a.label("L_ov")
    read_counts(a)
    sum_arrivals(a, "v25", 19, 20)
    a("s_cmp_ge_u32 s19, 256")
    a("s_cbranch_scc1 L_ovok")
    a("s_sleep 32")
    a("s_add_u32 s17, s17, 1")
    a("s_cmp_lt_u32 s17, 50000")
    a("s_cbranch_scc1 L_ov")
    a("s_branch L_exit")
    a.label("L_ovok")
    for x in range(8):
        a(f"v_readlane_b32 s20, v25, {0 if x == 0 else 15 + x}")
        a(f"s_mov_b32 s{S_TEAM}, {x}")
        a("s_nop 1")
        a("s_bcnt0_i32_b32 s19, s20")
        a("s_cmp_lt_u32 s18, s19")
        a("s_cbranch_scc1 L_ovf")
        a("s_sub_u32 s18, s18, s19")
    a("s_branch L_exit")
    a.label("L_ovf")
    a("s_cmp_eq_u32 s18, 0")
    a("s_cbranch_scc1 L_ovg")
    a("s_add_u32 s19, s20, 1")
    a("s_or_b32 s20, s20, s19")
    a("s_sub_u32 s18, s18, 1")
    a("s_branch L_ovf")
    a.label("L_ovg")
    a(f"s_ff0_i32_b32 s{S_H}, s20")
    a(f"s_and_b32 s{S_H}, s{S_H}, 31")
    a("s_branch L_role")

def emit_mode(a, opt, slow_label, va="v24", vb="v25"):
    if "fakexcc" in opt or "slow" in opt:
        a(f"s_branch {slow_label}")
        return
    l = a.uid("md")
    a(f"v_mbcnt_lo_u32_b32 {va}, -1, 0")
    a(f"v_and_b32 {va}, 31, {va}"); a(f"v_lshlrev_b32 {va}, 2, {va}")
    a(f"s_add_u32 s50, s{S_TEAM}, 15")
    a(f"s_cmp_eq_u32 s{S_TEAM}, 0")
    a("s_cselect_b32 s50, 0, s50")
    a("s_mov_b32 s51, 0")
    a.label(l)
    read_counts(a, vb, va)
    a(f"v_readlane_b32 s48, {vb}, s50")
    a("s_nop 1")
    a("s_cmp_eq_u32 s48, -1")
    a(f"s_cbranch_scc1 {l}_ok")
    sum_arrivals(a, vb, 48, 49)
    a("s_cmp_ge_u32 s48, 256")
    a(f"s_cbranch_scc1 {slow_label}")
    a("s_sleep 32")
    a("s_add_u32 s51, s51, 1")
    a("s_cmp_lt_u32 s51, 50000")
    a(f"s_cbranch_scc1 {l}")
    a(f"s_branch {slow_label}")
    a.label(l + "_ok")

def build(opt=()):
    a = Asm()
    hdr = open("cdna_kernels/" + KNAME + ".s.ref").read().split("\n") if "nohdr" not in opt else []
    for l in hdr:
        if l.startswith(";") and "@launch" not in l: a.raw(l)
        elif not l.startswith(";"): break
    a.raw("; @launch grid=(256,1,1) block=(256,1,1) lds=163840")
    a.raw('.amdgcn_target "amdgcn-amd-amdhsa--gfx950"')
    a.raw(".text")
    a.raw(f".globl {KNAME}_kernel")
    a.raw(".p2align 8")
    a.raw(f".type {KNAME}_kernel,@function")
    a.label(f"{KNAME}_kernel")
    emit_entry(a, opt)
    a(f"s_cmp_lg_u32 s{S_TEAM}, 0")
    a("s_cbranch_scc1 L_notR")
    rec.emit_rec_mega(a, opt)
    a("s_branch L_done")
    a.label("L_notR")
    a(f"s_cmp_ge_u32 s{S_TEAM}, {T0_}")
    a("s_cbranch_scc1 L_T")
    a(f"s_cmp_eq_u32 s{S_TEAM}, 1")
    a("s_cbranch_scc1 L_P")
    gemm.emit_gemm(a, opt)
    a("s_branch L_done")
    emit_overflow(a)
    a.label("L_P")
    a(f"s_mov_b32 s16, s{S_H}")
    a.label("L_Ploop")
    pre.emit_pre(a, opt)
    if "w3" in opt:
        a("s_cmp_ge_u32 s16, 32")
        a("s_cbranch_scc1 L_Pnw")
        dbg_wait(a, D_RW, 32, sleep=40, limit=12)
        a.label("L_Pnw")
    a("s_add_u32 s16, s16, 32")
    a("s_cmp_lt_u32 s16, 128")
    a("s_barrier")
    a("s_cbranch_scc1 L_Ploop")
    a("s_waitcnt vmcnt(0)")
    a("s_barrier")
    a(f"s_cmp_lg_u32 s{S_W}, 0")
    a("s_cbranch_scc1 L_done")
    dbg_arrive(a, D_PRE)
    a("s_branch L_done")
    a.label("L_T")
    import post
    post.emit_post(a, opt)
    a.label("L_done")
    if "time" in opt and "dbgtime" not in opt:
        a("s_memrealtime s[94:95]")
        a("s_memtime s[100:101]")
        a("s_waitcnt vmcnt(0) lgkmcnt(0)")
        a(f"s_cmp_lg_u32 s{S_W}, 0")
        a("s_cbranch_scc1 L_exit")
        a(f"s_lshl_b32 s48, s{S_TEAM}, 5")
        a(f"s_add_u32 s48, s48, s{S_H}")
        a("s_lshl_b32 s48, s48, 8")
        a(f"s_add_u32 s48, s48, {hex(WS_STAMP)}")
        a("v_mov_b32 v2, 0")
        a("s_mov_b64 exec, 1")
        for i in range(18):
            a(f"v_mov_b32 v3, s{84+i}")
            a(f"buffer_store_dword v3, v2, {sr(S_WS,4)}, s48 offen offset:{4*i}")
        for i in range(8):
            a(f"v_mov_b32 v3, s{76+i}")
            a(f"buffer_store_dword v3, v2, {sr(S_WS,4)}, s48 offen offset:{80+4*i}")
        a("s_mov_b64 exec, -1")
        a("v_mbcnt_lo_u32_b32 v2, -1, 0")
        a("v_lshlrev_b32 v2, 2, v2")
        a("s_mov_b64 exec, 0xffffffff")
        a(f"buffer_store_dword v143, v2, {sr(S_WS,4)}, s48 offen offset:128")
        a("s_waitcnt vmcnt(0)")
    if "dbgtime" in opt:
        a("s_memrealtime s[94:95]"); a("s_memtime s[100:101]")
        a("s_waitcnt vmcnt(0) lgkmcnt(0)")
        a(f"s_or_b32 s48, s{S_W}, s{S_H}")
        a("s_cbranch_scc1 L_exit")
        a("s_mov_b32 s50, 16")
        a(f"s_cmp_eq_u32 s{S_TEAM}, 0")
        a("s_cbranch_scc1 L_dt")
        a("s_mov_b32 s50, 40")
        a(f"s_cmp_lg_u32 s{S_TEAM}, 6")
        a("s_cbranch_scc1 L_exit")
        a.label("L_dt")
        a("v_mov_b32 v2, s50")
        a("s_mov_b64 exec, 1")
        a("s_sub_u32 s84, s84, s92"); a("s_sub_u32 s86, s86, s92"); a("s_sub_u32 s96, s94, s96"); a("s_sub_u32 s94, s94, s92"); a("s_sub_u32 s100, s100, s98")
        for i, r in enumerate((84, 86, 94, 96, 100)):
            a(f"v_mov_b32 v3, s{r}")
            a(f"global_store_dword v2, v3, {sr(S_DBG,2)} offset:{4*i}")
        a("s_waitcnt vmcnt(0)")
    a.label("L_exit")
    a("s_endpgm")
    a.label("L_codeend")
    a.raw(f".set CODE_BYTES, L_codeend - {KNAME}_kernel - 4")
    a.raw('.section .rodata,"a"')
    a.raw(".p2align 6")
    a.raw(f".amdhsa_kernel {KNAME}_kernel")
    for l in ["next_free_vgpr 512", "next_free_sgpr 102", "accum_offset 256", "group_segment_fixed_size 0", "kernarg_size 128",
              "user_sgpr_count 2", "user_sgpr_kernarg_segment_ptr 1", "system_sgpr_workgroup_id_x 1", "float_denorm_mode_32 3"]:
        a.raw("  .amdhsa_" + l)
    a.raw(".end_amdhsa_kernel")
    return a.text()

if __name__ == "__main__":
    out = sys.argv[1]
    t = build(sys.argv[2:])
    open(out, "w").write(t)
    errs = check_hazards(t)
    for e in errs: print("HAZARD", e)
    print("lines", t.count("\n"), "bytes", len(t), "hazards", len(errs))
```

```python
from common import *
from pre import rnd1, rnd2, MASK, S_TID, xsum_g
import math
import common
def tstamp(a, opt, idx):
    if "midst" in opt and idx < 16 and "time" in opt:
        l = a.uid("ts")
        a("s_cselect_b32 s80, 1, 0")
        a(f"s_cmp_ge_u32 s{S_SEG}, 52"); a(f"s_cbranch_scc1 {l}")
        common.tstamp(a, opt, idx, "v47")
        a.label(l)
        a("s_cmp_lg_u32 s80, 0")
    else: common.tstamp(a, opt, idx, "v47")

S_X, S_O = 20, 24
S_SEG, S_TAG, S_PC, S_PMAX, S_SC, S_L2E = 28, 29, 30, 31, 18, 19
S_P1S, S_P1L, S_P1S2 = 52, 53, 54
S_SLOT, S_PSLOT = 55, 56
S_H2B, S_H2O, S_ACTW, S_ACTR = 57, 58, 59, 60
S_KV, S_Q, S_KM, S_KMV, S_ROW, S_OUT, S_FLG, S_HAVE, S_X2R = 61, 62, 63, 64, 65, 66, 67, 68, 69
S_MKV, S_MQ, S_MODE = 72, 73, 74
S_LIM = 64
vL16, vCol, vP, vKw, vKr, vHg, vHw, vHr, vOw, vZero, vQr, vVr, vEw, vEr, vEo = ["v%d" % i for i in range(1, 16)]
MC = 16
BIAS, SEL = 24, 32
vX2g = "v36"
XR = 37
T0, T1, T2 = 38, 39, 40
L_O, L_ST, L_E, L_KV, L_Q, L_K, L_H = 0, 16384, 20480, 32768, 65536, 81920, 98304
FS, RTS = 1088, 17408
WoF = lambda ct, ks, off=0, n=4: ar((ct * 8 + ks) * 4 + off, n)
GF = lambda m, ks, off=0, n=4: ar(128 + (m * 16 + ks) * 4 + off, n)
DF = lambda t, ks, off=0, n=4: vr(144 + (t * 14 + ks) * 4 + off, n)

def wave_sum(a, x, t):
    a("s_nop 1")
    for ror in (1, 2, 4, 8):
        a(f"v_add_f32_dpp v{x}, v{x}, v{x} row_ror:{ror} row_mask:0xf bank_mask:0xf")
        if ror < 8: a("s_nop 1")
    xsum_g(a, x, t)

def emit_post_addr(a, opt=()):
    LE = lambda *x, **k: lane_expr(a, *x, tmp="v47", **k)
    WS = sr(S_WS, 4)
    LE(vL16, "v0", [(0, 6, 4)])
    LE(vCol, "v0", [(6, 2, 8), (2, 2, 6), (5, 1, 5), (0, 2, 3), (4, 1, 2)])
    LE(vP, "v0", [(0, 4, 14), (4, 2, 4)])
    LE(vKw, "v0", [(6, 2, 12), (0, 4, 5), (4, 2, 3)], L_K)
    LE("v48", "v0", [(2, 2, 3)]); a(f"v_xor_b32 {vKw}, {vKw}, v48")
    LE(vKr, "v0", [(6, 2, 12), (0, 6, 3)], L_K)
    LE("v48", "v0", [(4, 2, 3)]); a(f"v_xor_b32 {vKr}, {vKr}, v48")
    LE(vHg, "v0", [(4, 2, 11), (6, 2, 8), (0, 4, 4)])
    LE("v48", "v0", [(6, 2, 2), (2, 2, 0)])
    a(f"v_mul_u32_u24 {vHw}, {FS}, v48")
    a("v_and_b32 v48, 3, v0"); a("v_mul_u32_u24 v48, 272, v48"); a(f"v_add_u32 {vHw}, {vHw}, v48")
    LE("v48", "v0", [(4, 2, 4)], L_H); a(f"v_add_u32 {vHw}, {vHw}, v48")
    a("v_bfe_u32 v48, v0, 4, 2"); a(f"v_mul_u32_u24 {vHr}, 272, v48")
    LE("v48", "v0", [(0, 4, 4)], L_H); a(f"v_add_u32 {vHr}, {vHr}, v48")
    LE(vOw, "v0", [(6, 1, 13), (7, 1, 12), (0, 6, 4)], L_O)
    a(f"v_mov_b32 {vZero}, 0")
    LE(vQr, "v0", [(6, 2, 12), (0, 6, 4)], L_Q)
    LE(vVr, "v0", [(7, 1, 14), (0, 6, 4)], L_KV)
    LE(vEw, "v0", [(6, 2, 11), (0, 6, 4)], L_E)
    LE(vEr, "v0", [(3, 1, 10), (1, 2, 8), (4, 4, 4), (0, 1, 3)], L_E)
    LE(vEo, "v0", [(4, 4, 10), (0, 4, 2)])
    LE(vX2g, "v0", [(4, 4, 11), (0, 4, 2)])
    a(f"s_sub_u32 s50, s{S_TEAM}, {T0_}")
    sexpr(a, S_P1S, [(50, 0, 3, 20), (S_H, 0, 1, 13), (S_W, 1, 1, 12), (S_H, 1, 4, 8), (S_W, 0, 1, 7)], WS_P1)
    a(f"s_add_u32 s{S_P1S2}, s{S_P1S}, {16*16384}")
    sexpr(a, S_P1L, [(50, 0, 3, 20), (S_H, 0, 5, 14), (S_W, 0, 2, 12)], WS_P1)
    sexpr(a, S_H2B, [(50, 0, 3, 18)], WS_H2)
    sexpr(a, S_H2O, [(50, 0, 3, 18), (S_H, 0, 5, 11)], WS_H2)
    sexpr(a, S_X2R, [(50, 0, 3, 18), (S_H, 0, 1, 15), (S_H, 1, 4, 6)], WS_H2 + 1024)
    sexpr(a, S_ACTW, [(50, 0, 3, 19), (S_H, 0, 5, 11), (S_W, 1, 1, 10), (S_W, 0, 1, 3)], WS_ACT)
    a(f"s_and_b32 s48, s{S_H}, 1"); a(f"s_mul_i32 s48, s48, {56*1024}")
    a(f"s_mul_i32 s51, s{S_W}, {14*1024}"); a("s_add_u32 s48, s48, s51")
    sexpr(a, S_ACTR, [(50, 0, 3, 19)], WS_ACT); a(f"s_add_u32 s{S_ACTR}, s{S_ACTR}, s48")

def emit_post_weights(a, opt):
    LE = lambda *x, **k: lane_expr(a, *x, tmp="v47", **k)
    WS = sr(S_WS, 4)
    def geti(p, d):
        for o in opt:
            if o.startswith(p) and o[len(p):].isdigit(): return int(o[len(p):])
        return d
    import mega
    a.c("==== T role: team-buffer init + stationary weights ====")
    a("s_load_dwordx2 s[34:35], s[0:1], 40")
    a("s_load_dwordx4 s[36:39], s[0:1], 64")
    a("s_load_dwordx2 s[40:41], s[0:1], 80")
    emit_post_addr(a, opt)
    LE("v60", "v0", [(3, 3, 10)]); LE("v61", "v0", [(0, 3, 4)]); LE("v62", "v0", [(4, 2, 5)])
    a("v_xor_b32 v62, v61, v62"); a("v_add_u32 v66, v60, v62")
    LE("v67", "v0", [(6, 2, 15), (2, 4, 7), (1, 1, 4), (3, 2, 5), (0, 1, 3)])
    LE("v60", "v0", [(2, 4, 10)]); LE("v62", "v0", [(0, 2, 4)]); LE("v63", "v0", [(4, 1, 5)])
    a("v_xor_b32 v62, v62, v63"); a("v_add_u32 v68, v60, v62")
    LE("v69", "v0", [(6, 2, 15), (2, 4, 6), (1, 1, 4), (4, 1, 5), (0, 1, 3)])
    a("v_xor_b32 v70, 32, v69")
    a("v_bfe_u32 v60, v0, 3, 3"); a("v_mul_u32_u24 v60, 3584, v60")
    a("v_xor_b32 v62, v61, v63"); a("v_add_u32 v71, v60, v62")
    a("v_xor_b32 v62, 64, v62"); a("v_add_u32 v72, v60, v62")
    LE("v60", "v0", [(4, 2, 10), (2, 2, 7), (0, 1, 3)]); LE("v62", "v0", [(6, 2, 5), (1, 1, 4)]); LE("v63", "v0", [(3, 1, 5), (4, 1, 6)])
    a("v_xor_b32 v62, v62, v63"); a("v_add_u32 v73, v60, v62"); a("v_add_u32 v74, 0x10000, v73")
    S_LB, S_WOS, S_DNS, S_GUS = 76, 77, 78, 79
    sexpr(a, S_LB, [(S_W, 0, 2, 15)])
    sexpr(a, S_WOS, [(S_H, 1, 4, 18), (S_H, 0, 1, 9), (S_W, 0, 2, 7)])
    a(f"s_mul_i32 s{S_DNS}, s{S_W}, {448*1024}"); sexpr(a, 48, [(S_H, 1, 4, 6)]); a(f"s_add_u32 s{S_DNS}, s{S_DNS}, s48")
    a(f"s_mul_i32 s{S_GUS}, s{S_W}, {128*3584}"); a(f"s_min_u32 s48, s{S_H}, 27"); a("s_lshl_b32 s48, s48, 7"); a(f"s_add_u32 s{S_GUS}, s{S_GUS}, s48")
    a(f"s_cmp_lg_u32 s{S_CLM}, 0")
    a("s_cbranch_scc1 T_nw")
    for _ in range(geti("ts", 2)): a("s_sleep 64")
    claim(a)
    verify_claim(a, 0, 163840 - 64)
    dbg_wait(a, D_MOD1, 32, "v44", "v45", sleep=40, limit=8)
    a.label("T_nw")
    a("s_waitcnt lgkmcnt(0)")
    tstamp(a, opt, 16)
    q = VmQ(a)
    def batch(tag, ptr, nbytes, sbase, voff, half, idxs, rowbytes):
        srd(a, S_T, ptr, nbytes)
        for n, i in enumerate(idxs):
            a(f"s_add_u32 m0, s{S_LB}, {half * 16384 + n * 1024}")
            a(f"s_add_u32 s48, s{sbase}, {i * rowbytes}")
            a(f"buffer_load_dwordx4 v{voff(i)}, {sr(S_T,4)}, s48 offen lds")
        q.issue(tag, len(idxs))
    wo = lambda h: batch(("wo", h), 34, 4194304, S_WOS, lambda i: 66, h, range(16 * h, 16 * h + 16), 8 * 1024)
    dn = lambda h: batch(("dn", h), 40, 1792 * 1024, S_DNS, lambda i: 68, h, range(16 * h, min(16 * h + 16, 28)), 16 * 1024)
    gu = lambda m: batch(("gu", m), 36 + 2 * m, 512 * 3584, S_GUS, lambda i: 71 + (i & 1), m, range(16), 8 * 3584)
    wo(0); wo(1)
    for h in range(2):
        q.wait(("wo", h))
        for ct in range(4):
            a(f"v_xor_b32 v65, {32 * ct}, v67")
            for ks in range(4 * h, 4 * h + 4):
                for u in range(2):
                    a(f"ds_read_b64_tr_b16 {WoF(ct, ks, 2*u, 2)}, v65 offset:{(32*ks + 16*u) * 128}")
        a("s_waitcnt lgkmcnt(0)")
        dn(h)
    tstamp(a, opt, 17)
    for h in range(2):
        q.wait(("dn", h))
        for t in range(2):
            for ks in range(8 * h, min(8 * h + 8, 14)):
                for u in range(2):
                    a(f"ds_read_b64_tr_b16 {DF(t, ks, 2*u, 2)}, v{69+t} offset:{(32*ks + 16*u) * 64}")
        a("s_waitcnt lgkmcnt(0)")
        gu(h)
    tstamp(a, opt, 18)
    a(f"v_mov_b32 v46, {163840 - 32}")
    a(f"s_cmp_lg_u32 s{S_W}, 0")
    a("s_cbranch_scc1 T_mdw")
    a(f"s_mov_b32 s{S_MODE}, 1")
    mega.emit_mode(a, opt, "T_md1", "v44", "v45")
    a(f"s_mov_b32 s{S_MODE}, 0")
    a.label("T_md1")
    a(f"v_mov_b32 v45, s{S_MODE}")
    a("ds_write_b32 v46, v45")
    a.label("T_mdw")
    a("s_waitcnt vmcnt(0) lgkmcnt(0)")
    a("s_barrier")
    tstamp(a, opt, 19)
    a("ds_read_b32 v45, v46")
    a("s_waitcnt lgkmcnt(0)")
    a(f"v_readfirstlane_b32 s{S_MODE}, v45")
    a("s_nop 3")
    a(f"s_cmp_lg_u32 s{S_MODE}, 0")
    a("s_cbranch_scc1 T_init1")
    for mode, st in ((0, ""), (1, " sc1")):
        a.label(f"T_init{mode}")
        for i in range(2): a(f"v_mov_b32 v{48+i}, -1")
        for i in range(4): a(f"v_mov_b32 v{52+i}, 0")
        for k in range(4):
            a(f"buffer_store_dwordx4 v[52:55], {vL16}, {WS}, s{S_P1L} offen offset:{1024*k}{st}")
        for sl in range(3):
            a(f"s_add_u32 s48, s{S_H2O}, {sl*65536}")
            a(f"buffer_store_dword v48, {vCol}, {WS}, s48 offen{st}")
            a(f"buffer_store_dword v48, {vCol}, {WS}, s48 offen offset:1024{st}")
        a(f"s_cmp_ge_u32 s{S_H}, 28")
        a(f"s_cbranch_scc1 T_nopa{mode}")
        for sl in range(3):
            for rt in range(2):
                a(f"s_add_u32 s48, s{S_ACTW}, {sl*131072 + rt*56*1024}")
                a(f"buffer_store_dwordx2 v[48:49], {vL16}, {WS}, s48 offen{st}")
        a.label(f"T_nopa{mode}")
        if mode == 0: a("s_branch T_initd")
    a.label("T_initd")
    for m in range(2):
        for ks in range(16):
            for u in range(2):
                off = ((ks // 4) % 2) * 32768 + m * 16384 + (32 * (ks % 4) + 4 * u) * 128
                a(f"ds_read_b64_tr_b16 {GF(m, ks, 2*u, 2)}, v{73 + ks // 8} offset:{off}")
    a("s_waitcnt vmcnt(0) lgkmcnt(0)")
    a("s_barrier")
    a(f"s_cmp_lg_u32 s{S_W}, 0")
    a("s_cbranch_scc1 T_noarr")
    a(f"s_lshl_b32 s50, s{S_TEAM}, 2")
    dbg_arrive(a, D_INIT - T0_, "v44", "v45", soff=50)
    a.label("T_noarr")

def emit_post_final(a, opt):
    LE = lambda *x, **k: lane_expr(a, *x, tmp="v47", **k)
    WS = sr(S_WS, 4)
    a("s_load_dwordx2 s[32:33], s[0:1], 0")
    a("s_load_dwordx2 s[42:43], s[0:1], 104")
    dbg_wait(a, D_MOD2, 32, "v44", "v45", sleep=32)
    a(f"s_mov_b32 s48, {hex(WS_MOD + 2048)}")
    for i, k in enumerate((0, 2, 1)):
        a(f"buffer_load_dword v{56+i}, {vCol}, {WS}, s48 offen offset:{1024*k} sc1")
    LE("v60", "v0", [(0, 4, 2)])
    sexpr(a, 48, [(S_H, 1, 4, 6)], WS_MOD + 5 * 1024)
    a(f"buffer_load_dword v59, v60, {WS}, s48 offen sc1")
    a("s_waitcnt vmcnt(0) lgkmcnt(0)")
    for i in range(4):
        a(f"v_lshlrev_b32 v{MC+2*i}, 16, v{56+i}")
        a(f"v_and_b32 v{MC+2*i+1}, s{MASK}, v{56+i}")
    a(f"v_add_f32 v{MC+2}, 1.0, v{MC+2}"); a(f"v_add_f32 v{MC+3}, 1.0, v{MC+3}")
    rnd2(a, MC + 2, MC + 3, 47)
    srd(a, S_X, 32, 2048 * 1024)
    srd(a, S_O, 42, 2048 * 1024)
    a("v_and_b32 v60, 3, v0"); a("v_bfe_u32 v61, v0, 2, 2")
    a("v_mov_b32 v62, 0x3f80"); a("v_mov_b32 v63, 0x3f800000")
    a("v_cmp_eq_u32 vcc, 1, v60"); a("s_nop 1"); a("v_cndmask_b32 v62, v62, v63, vcc")
    a("v_cmp_gt_u32 vcc, 2, v60"); a("s_nop 1"); a("v_cndmask_b32 v62, 0, v62, vcc")
    for d in range(4):
        a(f"v_cmp_eq_u32 vcc, {d}, v61"); a("s_nop 1"); a(f"v_cndmask_b32 v{SEL+d}, 0, v62, vcc")
    LE("v60", "v0", [(6, 1, 4), (0, 4, 0)])
    LE("v61", "v0", [(4, 2, 2)])
    a(f"v_mov_b32 v63, {f32bits(-1e30)}")
    for t in range(2):
        for r in range(4):
            a(f"v_add_u32 v62, {16*t + r}, v61")
            a("v_cmp_gt_u32 vcc, v62, v60"); a("s_nop 1")
            a(f"v_cndmask_b32 v{BIAS+4*t+r}, 0, v63, vcc")
    a(f"s_sub_u32 s{S_SEG}, s{S_TEAM}, {T0_}")
    a(f"s_mov_b32 s{S_LIM}, {62 if 'g2t' in opt else 64}")
    if "g2t" in opt:
        a(f"s_add_u32 s48, s{S_TEAM}, 60")
        a(f"s_cmp_lt_u32 s{S_TEAM}, {T0_}")
        a(f"s_cselect_b32 s{S_SEG}, s48, s{S_SEG}")
        a(f"s_cselect_b32 s{S_LIM}, 64, s{S_LIM}")
    sexpr(a, 50, [(S_H, 1, 4, 1), (S_W, 1, 1, 0)])
    a(f"s_mul_i32 s{S_KV}, s50, {HSTR}")
    sexpr(a, 48, [(S_SEG, 0, 6, 14), (S_W, 0, 1, 13)], WS_KV); a(f"s_add_u32 s{S_KV}, s{S_KV}, s48")
    a(f"s_mul_i32 s{S_Q}, s50, {QSTR}")
    sexpr(a, 48, [(S_SEG, 0, 6, 13), (S_W, 0, 1, 12)], WS_QX); a(f"s_add_u32 s{S_Q}, s{S_Q}, s48")
    sexpr(a, S_MKV, [(S_W, 0, 2, 13)], L_KV)
    sexpr(a, S_MQ, [(S_W, 0, 2, 12)], L_Q)
    a(f"s_mul_i32 s{S_KM}, s50, {MSTR}")
    sexpr(a, 48, [(S_SEG, 0, 6, 12)], WS_KM); a(f"s_add_u32 s{S_KM}, s{S_KM}, s48")
    sexpr(a, S_FLG, [(50, 0, 5, 7)], WS_FLAG)
    sexpr(a, S_ROW, [(S_SEG, 0, 6, 15), (S_H, 0, 5, 10)])
    sexpr(a, S_OUT, [(S_SEG, 0, 6, 15), (S_H, 0, 1, 14), (S_H, 1, 4, 6)])
    a(f"s_mov_b32 s{S_HAVE}, 0")
    a(f"s_mov_b32 s{S_TAG}, 1")
    a(f"s_mov_b32 s{S_SLOT}, 0")
    a(f"s_mov_b32 s{S_PSLOT}, 2")
    a(f"s_mov_b32 s{S_PMAX}, 100000")
    a(f"s_mov_b32 s{S_SC}, {f32bits(128 ** -0.5)}")
    a(f"s_mov_b32 s{S_L2E}, {f32bits(math.log2(math.e))}")
    a(f"s_lshl_b32 s50, s{S_TEAM}, 2")
    dbg_wait(a, D_INIT - T0_, 32, "v44", "v45", soff=50, sleep=24)

def poll(a, name, loads, check, sleep=3):
    a(f"s_mov_b32 s{S_PC}, 0")
    a.label(name)
    loads()
    check()
    a(f"s_cbranch_vccz {name}_ok")
    a(f"s_sleep {sleep}")
    a(f"s_add_u32 s{S_PC}, s{S_PC}, 1")
    a(f"s_cmp_lt_u32 s{S_PC}, s{S_PMAX}")
    a(f"s_cbranch_scc1 {name}")
    a(f"s_mov_b32 s{S_PMAX}, 1")
    a.label(name + "_ok")

def pf_list():
    WS = sr(S_WS, 4)
    L = []
    for half in range(2):
        for i in range(4):
            L.append(([f"s_add_u32 m0, s{S_MKV}, {half*4096}", f"s_add_u32 s48, s{S_KV}, {half*4096}"] if i == 0 else []) +
                     [f"buffer_load_dwordx4 {vL16}, {WS}, s48 offen offset:{1024*i} sc1 lds"])
    for i in range(4):
        L.append(([f"s_mov_b32 m0, s{S_MQ}", "s_nop 0"] if i == 0 else []) + [f"buffer_load_dwordx4 {vL16}, {WS}, s{S_Q} offen offset:{1024*i} sc1 lds"])
    L.append([f"buffer_load_dword v{XR}, {vCol}, {sr(S_X,4)}, s{S_ROW} offen", f"s_add_u32 s{S_KV}, s{S_KV}, {NT*16384}",
              f"s_add_u32 s{S_Q}, s{S_Q}, {NT*8192}", f"s_add_u32 s{S_ROW}, s{S_ROW}, {NT*32768}"])
    return L

def prefetch(a, name, segreg, body=True):
    WS = sr(S_WS, 4)
    a(f"s_cmp_ge_u32 s{segreg}, s{S_LIM}")
    a(f"s_cbranch_scc1 {name}_skip")
    a(f"s_cmp_gt_u32 s{S_HAVE}, s{segreg}")
    a(f"s_cbranch_scc1 {name}_fok")
    a(f"s_mov_b32 s{S_PC}, 0")
    a.label(name + "_fl")
    a("s_mov_b64 exec, 3")
    a(f"buffer_load_dword v45, {vL16}, {WS}, s{S_FLG} offen sc1")
    a("s_mov_b64 exec, -1")
    a("s_waitcnt vmcnt(0)")
    a(f"v_readlane_b32 s{S_HAVE}, v45, 0"); a("v_readlane_b32 s48, v45, 1")
    a("s_nop 1")
    a(f"s_min_u32 s{S_HAVE}, s{S_HAVE}, s48")
    a(f"s_cmp_gt_u32 s{S_HAVE}, s{segreg}")
    a(f"s_cbranch_scc1 {name}_fok")
    a("s_sleep 8")
    a(f"s_add_u32 s{S_PC}, s{S_PC}, 1")
    a(f"s_cmp_lt_u32 s{S_PC}, s{S_PMAX}")
    a(f"s_cbranch_scc1 {name}_fl")
    a(f"s_mov_b32 s{S_PMAX}, 1")
    a.label(name + "_fok")
    if not body: return
    for g in pf_list():
        for x in g: a(x)
    a.label(name + "_skip")

def emit_post_loop(a, fast, pfx, opt):
    def geti(p, d):
        for o in opt:
            if o.startswith(p) and o[len(p):].isdigit(): return int(o[len(p):])
        return d
    st = "" if fast else " sc1"
    WS = sr(S_WS, 4)
    QF, KX, VX, KF, SS, KMR = 48, 64, 64, 96, 112, 124
    prefetch(a, pfx + "_pf0", S_SEG)
    if "g2t" in opt:
        a(f"s_cmp_ge_u32 s{S_TEAM}, {T0_}")
        a(f"s_cselect_b32 s48, 1, s{S_W}")
        a("s_cmp_lg_u32 s48, 0")
        a(f"s_cbranch_scc1 {pfx}_lw_ok")
        a(f"s_sub_u32 s49, s{S_KM}, {2*4096}")
        a(f"s_mov_b32 s{S_PC}, 0")
        a("s_mov_b64 exec, 1")
        a.label(pfx + "_lw")
        a(f"buffer_load_dword v45, {vL16}, {WS}, s49 offen sc1")
        a("s_waitcnt vmcnt(0)")
        a("v_readfirstlane_b32 s48, v45")
        a("s_cmp_lg_u32 s48, -1")
        a(f"s_cbranch_scc1 {pfx}_lw_x")
        a("s_sleep 16")
        a(f"s_add_u32 s{S_PC}, s{S_PC}, 1")
        a(f"s_cmp_lt_u32 s{S_PC}, 20000")
        a(f"s_cbranch_scc1 {pfx}_lw")
        a.label(pfx + "_lw_x")
        a("s_mov_b64 exec, -1")
        a.label(pfx + "_lw_ok")
    a("s_waitcnt vmcnt(0)")
    a("s_barrier")
    a.raw(".p2align 6")
    a.label(pfx + "_loop")
    tstamp(a, opt, 0)
    def ldkm():
        for i in range(4): a(f"buffer_load_dwordx4 {vr(KMR+4*i,4)}, {vL16}, {WS}, s{S_KM} offen offset:{1024*i} sc1")
    if "wbl" in opt:
        a(f"s_cmp_lt_u32 s{S_SEG}, {64-NT}")
        a(f"s_cselect_b32 s48, 1, s{S_W}")
        a(f"s_or_b32 s48, s48, s{S_H}")
        a(f"s_cbranch_scc1 {pfx}_nwb")
        a("buffer_wbl2 sc1")
        a.label(pfx + "_nwb")
    ldkm()
    for ks in range(4):
        a(f"ds_read_b128 {vr(QF+4*ks,4)}, {vQr} offset:{1024*ks}")
        for t in range(2):
            i = t * 4 + ks
            a(f"ds_read_b128 {vr(KX+4*i,4)}, {vVr} offset:{(i//2)*4096 + (i%2)*1024}")
    for ks in range(4):
        a(f"s_waitcnt lgkmcnt({9-3*ks})")
        for t in range(2):
            d = vr(SS + 4 * t, 4)
            a(f"v_mfma_f32_16x16x32_bf16 {d}, {vr(KX+4*(t*4+ks),4)}, {vr(QF+4*ks,4)}, {d if ks else vr(BIAS+4*t,4)}")
    for i in range(8):
        a(f"ds_read_b128 {vr(VX+4*i,4)}, {vVr} offset:{(i//2)*4096 + 2048 + (i%2)*1024}")
    def scale(regs):
        for i in range(0, len(regs), 2): rnd2(a, regs[i], regs[i+1], T2)
        for r in regs: a(f"v_mul_f32 v{r}, s{S_SC}, v{r}")
        for i in range(0, len(regs), 2): rnd2(a, regs[i], regs[i+1], T2)
    scale(list(range(SS, SS + 8)))
    MX, LX = 41, 46
    a(f"v_max3_f32 v{MX}, v{SS}, v{SS+1}, v{SS+2}"); a(f"v_max3_f32 v{T1}, v{SS+3}, v{SS+4}, v{SS+5}")
    a(f"v_max3_f32 v{MX}, v{MX}, v{SS+6}, v{SS+7}"); a(f"v_max_f32 v{MX}, v{MX}, v{T1}")
    xsum_g(a, MX, T1, "v_max_f32")
    a(f"v_mul_f32 v{T0}, s{S_L2E}, v{MX}")
    for r in range(8): a(f"v_fma_f32 v{SS+r}, v{SS+r}, s{S_L2E}, -v{T0}")
    for r in range(8): a(f"v_exp_f32 v{SS+r}, v{SS+r}")
    a(f"v_add_f32 v{LX}, v{SS}, v{SS+1}"); a(f"v_add_f32 v{T0}, v{SS+2}, v{SS+3}"); a(f"v_add_f32 v{T1}, v{SS+4}, v{SS+5}")
    a(f"v_add_f32 v{T2}, v{SS+6}, v{SS+7}"); a(f"v_add_f32 v{LX}, v{LX}, v{T0}"); a(f"v_add_f32 v{T1}, v{T1}, v{T2}")
    a(f"v_add_f32 v{LX}, v{LX}, v{T1}")
    PX, PM0, OC = 140, 44, 96
    a(f"v_mov_b32 v{PM0+1}, 0")
    tstamp(a, opt, 1)
    a(f"s_mov_b32 s{S_PC}, 0")
    a.label(pfx + "_km")
    a("s_waitcnt vmcnt(0)")
    a(f"v_max3_u32 v{T0}, v{KMR}, v{KMR+4}, v{KMR+8}")
    a(f"v_max_u32 v{T0}, v{T0}, v{KMR+12}")
    a(f"v_cmp_eq_u32 vcc, -1, v{T0}")
    for i in range(4): a(f"ds_write2st64_b32 {vKw}, v{KMR+4*i+1}, v{KMR+4*i+3} offset0:{4*i} offset1:{4*i+2}")
    a(f"s_cbranch_vccz {pfx}_km_ok")
    a(f"s_sleep {geti('tk', 3)}")
    ldkm()
    a(f"s_add_u32 s{S_PC}, s{S_PC}, 1")
    a(f"s_cmp_lt_u32 s{S_PC}, s{S_PMAX}")
    a(f"s_cbranch_scc1 {pfx}_km")
    a(f"s_mov_b32 s{S_PMAX}, 1")
    a("s_waitcnt vmcnt(0)")
    a.label(pfx + "_km_ok")
    tstamp(a, opt, 2)
    for ks in range(4):
        for u in range(2):
            a(f"ds_read_b64_tr_b16 {vr(KF+4*ks+2*u,2)}, {vKr} offset:{1024*ks+512*u}")
    for ks in range(4):
        a(f"s_waitcnt lgkmcnt({6-2*ks})")
        d = vr(SS + 8, 4)
        a(f"v_mfma_f32_16x16x32_bf16 {d}, {vr(KF+4*ks,4)}, {vr(QF+4*ks,4)}, {d if ks else 0}")
    a("s_nop 7")
    scale([SS + 8, SS + 9])
    a(f"v_max3_f32 v{T0}, v{MX}, v{SS+8}, v{SS+9}")
    xsum_g(a, T0, T1, "v_max_f32")
    a(f"v_mul_f32 v{T0}, s{S_L2E}, v{T0}")
    a(f"v_fma_f32 v{MX}, v{MX}, s{S_L2E}, -v{T0}")
    for r in (8, 9): a(f"v_fma_f32 v{SS+r}, v{SS+r}, s{S_L2E}, -v{T0}")
    a(f"v_exp_f32 v{MX}, v{MX}")
    for r in (8, 9): a(f"v_exp_f32 v{SS+r}, v{SS+r}")
    a(f"v_fma_f32 v{LX}, v{LX}, v{MX}, v{SS+8}")
    a(f"v_add_f32 v{LX}, v{LX}, v{SS+9}")
    xsum_g(a, LX, T1)
    a(f"v_rcp_f32 v{LX}, v{LX}")
    a("s_nop 0")
    a(f"v_mul_f32 v42, v{LX}, v{MX}")
    a(f"v_pk_mul_f32 {vr(SS+8,2)}, {vr(SS+8,2)}, {vr(LX,2)} op_sel_hi:[1,0]")
    for r in range(0, 8, 2): a(f"v_pk_mul_f32 {vr(SS+r,2)}, {vr(SS+r,2)}, v[42:43] op_sel_hi:[1,0]")
    a(f"v_cvt_pk_bf16_f32 v{PM0}, v{SS+8}, v{SS+9}")
    for i in range(4): a(f"v_cvt_pk_bf16_f32 v{PX+i}, v{SS+2*i}, v{SS+2*i+1}")
    oc = lambda i: (96 + 4 * i) if i < 4 else (48 + 4 * (i - 4))
    def pk(i2):
        b = oc(2 * i2)
        return [f"v_cvt_pk_bf16_f32 v{SS+4*(i2%2)+k}, v{b+2*k}, v{b+2*k+1}" for k in range(4)] + [f"ds_write_b128 {vOw}, {vr(SS+4*(i2%2),4)} offset:{1024*i2}"]
    for i in range(8):
        a(f"v_mfma_f32_16x16x16_bf16 {vr(oc(i),4)}, {vr(KMR+2*i,2)}, {vr(PM0,2)}, 0")
    for i in range(8):
        a(f"v_mfma_f32_16x16x32_bf16 {vr(oc(i),4)}, {vr(VX+4*i,4)}, {vr(PX,4)}, {vr(oc(i),4)}")
        if i in (3, 5, 7):
            for x in pk((i - 3) // 2): a(x)
    a("s_nop 3")
    for x in pk(3): a(x)
    a("s_waitcnt lgkmcnt(0)"); a("s_barrier")
    OF = 48
    for i in range(16): a(f"ds_read_b128 {vr(OF+4*i,4)}, {vL16} offset:{L_O+1024*i}")
    tstamp(a, opt, 3)
    jobs = [(cq, rt) for rt in range(2) for cq in range(2)]
    def epi(n):
        cq, rt = jobs[n]; ac = 112 + (n % 2) * 8; g = 128 + (n % 2) * 4
        return [f"v_cvt_pk_bf16_f32 v{g+i}, v{ac+2*i}, v{ac+2*i+1}" for i in range(4)] + [f"v_and_or_b32 v{g}, v{g}, -2, s{S_TAG}",
                f"buffer_store_dwordx4 {vr(g,4)}, {vP}, {WS}, s{(S_P1S, S_P1S2)[rt]} offen offset:{64*cq}{st}"]
    for n, (cq, rt) in enumerate(jobs):
        ac = 112 + (n % 2) * 8
        e = epi(n - 1) if n else []
        k = 0
        for ks in range(8):
            if n == 0: a(f"s_waitcnt lgkmcnt({15-ks})")
            if n == 2 and ks == 0: a("s_waitcnt lgkmcnt(0)")
            for u in range(2):
                d = vr(ac + 4 * u, 4)
                a(f"v_mfma_f32_16x16x32_bf16 {d}, {WoF(2*cq+u, ks)}, {vr(OF+4*(rt*8+ks),4)}, {d if ks else 0}")
                k += 1
                if k >= 2:
                    for x in e[2*(k-2):2*(k-1)]: a(x)
    a("s_nop 7")
    for x in epi(3): a(x)
    tstamp(a, opt, 4)
    if geti("t1", 3): a(f"s_sleep {geti('t1', 3)}")
    R = 48
    def ld():
        for i in range(4):
            a(f"buffer_load_dwordx4 {vr(R+4*i,4)}, {vL16}, {WS}, s{S_P1L} offen offset:{1024*i} sc1")
    def ck():
        for i in range(4):
            a(f"s_waitcnt vmcnt({3-i})")
            a(f"v_mfma_f32_16x16x32_bf16 v[112:115], {vr(SEL,4)}, {vr(R+4*i,4)}, {'v[112:115]' if i else 0}")
            a(f"v_xor_b32 v{T1 if i else T0}, s{S_TAG}, v{R+4*i}")
            if i: a(f"v_or_b32 v{T0}, v{T0}, v{T1}")
        a(f"v_and_b32 v{T0}, 1, v{T0}")
        a(f"v_cmp_ne_u32 vcc, 0, v{T0}")
        a(f"v_lshlrev_b32 v116, 16, v{XR}"); a(f"v_and_b32 v117, s{MASK}, v{XR}")
        a(f"s_lshl_b32 s48, s{S_W}, 3"); a("v_mov_b32 v43, s48")
    poll(a, pfx + "_r1", ld, ck, sleep=1)
    tstamp(a, opt, 5)
    rnd2(a, 112, 113, T0)
    a(f"v_mul_f32 v112, v{MC}, v112"); a(f"v_mul_f32 v113, v{MC+1}, v113")
    rnd2(a, 112, 113, T0)
    a("v_add_f32 v116, v116, v112"); a("v_add_f32 v117, v117, v113")
    rnd2(a, 116, 117, 118)
    a(f"s_lshl_b32 s49, s{S_SLOT}, 16"); a(f"s_add_u32 s50, s{S_H2O}, s49")
    a(f"buffer_store_dword v118, {vCol}, {WS}, s50 offen offset:1024{st}")
    a("v_add_f32 v120, v116, v117")
    wave_sum(a, 120, T1)
    a(f"v_mul_f32 v120, {f32bits(1/128)}, v120")
    a("v_sub_f32 v112, v116, v120"); a("v_sub_f32 v113, v117, v120")
    a("v_mul_f32 v121, v112, v112"); a("v_fmac_f32 v121, v113, v113")
    wave_sum(a, 121, T1)
    a(f"ds_write_b64 v43, v[120:121] offset:{L_ST}")
    a("s_waitcnt lgkmcnt(0)"); a("s_barrier")
    a(f"ds_read_b128 v[124:127], {vZero} offset:{L_ST}")
    a(f"ds_read_b128 v[128:131], {vZero} offset:{L_ST+16}")
    a("s_waitcnt lgkmcnt(0)")
    a("v_add_f32 v120, v124, v126"); a("v_add_f32 v121, v128, v130"); a("v_add_f32 v120, v120, v121")
    a("v_mul_f32 v120, 0.25, v120")
    a("v_add_f32 v122, v125, v127"); a("v_add_f32 v123, v129, v131"); a("v_add_f32 v122, v122, v123")
    for r in (124, 126, 128, 130): a(f"v_sub_f32 v{r}, v{r}, v120")
    a("v_mul_f32 v123, v124, v124")
    for r in (126, 128, 130): a(f"v_fmac_f32 v123, v{r}, v{r}")
    a(f"v_mul_f32 v122, {f32bits(1/512)}, v122")
    a("v_fmac_f32 v122, 0.25, v123")
    rnd1(a, 120); rnd1(a, 122)
    a(f"v_add_f32 v122, {f32bits(1e-5)}, v122"); rnd1(a, 122)
    a("v_sqrt_f32 v122, v122")
    a("v_sub_f32 v112, v116, v120"); a("v_sub_f32 v113, v117, v120")
    rnd1(a, 122)
    a("v_rcp_f32 v122, v122")
    rnd2(a, 112, 113, T0)
    a("v_mul_f32 v112, v112, v122"); a("v_mul_f32 v113, v113, v122")
    rnd2(a, 112, 113, T0)
    a(f"v_mul_f32 v112, v112, v{MC+2}"); a(f"v_mul_f32 v113, v113, v{MC+3}")
    rnd2(a, 112, 113, T0)
    a(f"v_add_f32 v112, v112, v{MC+4}"); a(f"v_add_f32 v113, v113, v{MC+5}")
    a(f"v_cvt_pk_bf16_f32 v{T0}, v112, v113")
    a(f"buffer_store_dword v{T0}, {vCol}, {WS}, s50 offen{st}")
    tstamp(a, opt, 6)
    a(f"s_lshl_b32 s48, s{S_PSLOT}, 16"); a(f"s_add_u32 s48, s{S_H2O}, s48")
    a("v_mov_b32 v42, -1"); a("v_mov_b32 v43, -1")
    a(f"buffer_store_dword v42, {vCol}, {WS}, s48 offen{st}")
    a(f"buffer_store_dword v42, {vCol}, {WS}, s48 offen offset:1024{st}")
    a(f"s_add_u32 s51, s{S_SEG}, {NT}")
    a(f"s_cmp_ge_u32 s{S_H}, 28")
    a(f"s_cbranch_scc1 {pfx}_noffn")
    HR = 48
    a(f"s_add_u32 s50, s{S_H2B}, s49")
    def ld():
        for i in range(8):
            a(f"s_add_u32 s48, s50, {i*8192}")
            a(f"buffer_load_dwordx4 {vr(HR+4*i,4)}, {vHg}, {WS}, s48 offen sc1")
    def ck():
        for i in range(8):
            a(f"s_waitcnt vmcnt({7-i})")
            a(f"ds_write_b128 {vHw}, {vr(HR+4*i,4)} offset:{(i//4)*RTS + (i%4)*64}")
            if i: a(f"v_max_u32 v{T0}, v{T0 if i > 1 else HR}, v{HR+4*i}")
        a(f"v_cmp_eq_u32 vcc, -1, v{T0}")
    if geti("t2", 2): a(f"s_sleep {geti('t2', 2)}")
    poll(a, pfx + "_h2", ld, ck, sleep=2)
    tstamp(a, opt, 7)
    a("s_waitcnt lgkmcnt(0)"); a("s_barrier")
    HB = lambda rt, ks: 80 + ((ks % 4) * 2 + rt) * 4
    lq0 = LQ()
    def rd(lq, ks):
        for rt in range(2):
            a(f"ds_read_b128 {vr(HB(rt, ks),4)}, {vHr} offset:{rt*RTS + ks*FS}"); lq.issue(ks)
    for ks in range(3): rd(lq0, ks)
    prefetch(a, pfx + "_pf1", 51, body=False)
    for withpf in (True, False):
        lq = LQ(); lq.q = list(lq0.q)
        pl = pf_list() if withpf else []
        for ks in range(16):
            a(lq.wait(ks))
            n = 0
            for rt in range(2):
                for m in range(2):
                    d = vr(112 + (rt * 2 + m) * 4, 4)
                    a(f"v_mfma_f32_16x16x32_bf16 {d}, {GF(m, ks)}, {vr(HB(rt, ks),4)}, {d if ks else 0}")
                    if n == 0 and ks + 3 < 16: rd(lq, ks + 3)
                    if n == 2 and pl:
                        for x in pl.pop(0): a(x)
                    n += 1
        if withpf:
            a(f"s_branch {pfx}_gud")
            a.label(pfx + "_pf1_skip")
    a.label(pfx + "_gud")
    a(f"s_lshl_b32 s48, s{S_SLOT}, 17"); a(f"s_add_u32 s48, s{S_ACTW}, s48"); a(f"s_add_u32 s50, s48, {56*1024}")
    a("s_nop 0")
    for rt in range(2):
        g0 = 112 + rt * 8; u0 = g0 + 4
        for j in (0, 2): rnd2(a, g0 + j, g0 + j + 1, T0)
        for j in (0, 2): rnd2(a, u0 + j, u0 + j + 1, T0)
        for j in range(4): a(f"v_mul_f32 v{g0+j}, v{g0+j}, v{u0+j}")
        a(f"v_cvt_pk_bf16_f32 v{128+2*rt}, v{g0}, v{g0+1}"); a(f"v_cvt_pk_bf16_f32 v{129+2*rt}, v{g0+2}, v{g0+3}")
        a(f"buffer_store_dwordx2 {vr(128+2*rt,2)}, {vL16}, {WS}, s{(48, 50)[rt]} offen{st}")
    a(f"s_lshl_b32 s48, s{S_PSLOT}, 17"); a(f"s_add_u32 s48, s{S_ACTW}, s48"); a(f"s_add_u32 s50, s48, {56*1024}")
    a(f"buffer_store_dwordx2 v[42:43], {vL16}, {WS}, s48 offen{st}")
    a(f"buffer_store_dwordx2 v[42:43], {vL16}, {WS}, s50 offen{st}")
    if geti("t3", 2): a(f"s_sleep {geti('t3', 2)}")
    a(f"s_branch {pfx}_E")
    a.label(pfx + "_noffn")
    prefetch(a, pfx + "_pf2", 51)
    a("s_sleep 32")
    a.label(pfx + "_E")
    tstamp(a, opt, 8)
    AR = 48
    a(f"s_lshl_b32 s50, s{S_SLOT}, 17"); a(f"s_add_u32 s50, s{S_ACTR}, s50")
    a(f"s_lshl_b32 s49, s{S_SLOT}, 16"); a(f"s_add_u32 s49, s{S_X2R}, s49")
    def ld():
        a(f"buffer_load_dword v41, {vX2g}, {WS}, s49 offen sc1")
        for i in range(14):
            if i % 4 == 0: a(f"s_add_u32 s48, s50, {(i//4)*4096}")
            a(f"buffer_load_dwordx4 {vr(AR+4*i,4)}, {vL16}, {WS}, s48 offen offset:{1024*(i%4)} sc1")
    def ck():
        for i in range(14):
            a(f"s_waitcnt vmcnt({13-i})")
            for t in range(2):
                d = vr(112 + 4 * t, 4)
                a(f"v_mfma_f32_16x16x32_bf16 {d}, {DF(t, i)}, {vr(AR+4*i,4)}, {d if i else 0}")
            a(f"v_max3_u32 v{T0}, v{T0 if i else 41}, v{AR+4*i}, v{AR+4*i+2}")
        a(f"v_cmp_eq_u32 vcc, -1, v{T0}")
        a(f"v_lshlrev_b32 v124, 16, v41"); a(f"v_and_b32 v125, s{MASK}, v41")
    poll(a, pfx + "_act", ld, ck, sleep=2)
    tstamp(a, opt, 9)
    a("s_nop 2")
    a(f"ds_write_b128 {vEw}, v[112:115]"); a(f"ds_write_b128 {vEw}, v[116:119] offset:1024")
    a("s_waitcnt lgkmcnt(0)"); a("s_barrier")
    for w in range(4): a(f"ds_read_b64 {vr(112+2*w,2)}, {vEr} offset:{2048*w}")
    a("s_waitcnt lgkmcnt(0)")
    a("v_add_f32 v112, v112, v114"); a("v_add_f32 v113, v113, v115"); a("v_add_f32 v116, v116, v118"); a("v_add_f32 v117, v117, v119")
    a("v_add_f32 v112, v112, v116"); a("v_add_f32 v113, v113, v117")
    rnd2(a, 112, 113, T0)
    a(f"v_mul_f32 v112, v{MC+6}, v112"); a(f"v_mul_f32 v113, v{MC+7}, v113")
    rnd2(a, 112, 113, T0)
    a("v_add_f32 v112, v124, v112"); a("v_add_f32 v113, v125, v113")
    a(f"v_cvt_pk_bf16_f32 v{T0}, v112, v113")
    a(f"buffer_store_dword v{T0}, {vEo}, {sr(S_O,4)}, s{S_OUT} offen{' sc1' if 'osc1' in opt else (' nt' if 'ont' in opt else '')}")
    tstamp(a, opt, 10)
    a(f"s_add_u32 s{S_SEG}, s{S_SEG}, {NT}")
    a(f"s_add_u32 s{S_KM}, s{S_KM}, {NT*4096}")
    a(f"s_add_u32 s{S_OUT}, s{S_OUT}, {NT*32768}")
    a(f"s_xor_b32 s{S_TAG}, s{S_TAG}, 1")
    a(f"s_mov_b32 s{S_PSLOT}, s{S_SLOT}")
    a(f"s_add_u32 s{S_SLOT}, s{S_SLOT}, 1")
    a(f"s_cmp_ge_u32 s{S_SLOT}, 3")
    a(f"s_cselect_b32 s{S_SLOT}, 0, s{S_SLOT}")
    a(f"s_cmp_lt_u32 s{S_SEG}, s{S_LIM}")
    a(f"s_cbranch_scc1 {pfx}_loop")
    a("s_waitcnt vmcnt(0)")
    if "time" in opt: a("v_mov_b32 v143, v47")

def emit_post(a, opt):
    import mega, pre
    a(f"s_mov_b32 s{MASK}, 0xffff0000")
    emit_post_weights(a, opt)
    if "time" in opt: a("s_memrealtime s[84:85]")
    emit_post_final(a, opt)
    if "time" in opt: a("s_memrealtime s[86:87]")
    a(f"s_cmp_lg_u32 s{S_MODE}, 0")
    a("s_cbranch_scc1 T_slow")
    emit_post_loop(a, True, "TF", opt)
    a("s_branch L_done")
    a.label("T_slow")
    emit_post_loop(a, False, "TS", opt)
```

```python
from common import *
from common import tstamp as _ts
import math
S_TID = 16
MASK = 17

def rnd2(a, x, y, p):
    a(f"v_cvt_pk_bf16_f32 v{p}, v{x}, v{y}")
    a(f"v_lshlrev_b32 v{x}, 16, v{p}")
    a(f"v_and_b32 v{y}, s{MASK}, v{p}")
def rnd1(a, x):
    a(f"v_cvt_pk_bf16_f32 v{x}, v{x}, v{x}")
    a(f"v_and_b32 v{x}, s{MASK}, v{x}")
def unpack(a, src, dst, n):
    for d in range(n):
        a(f"v_lshlrev_b32 v{dst+2*d}, 16, v{src+d}")
        a(f"v_and_b32 v{dst+2*d+1}, s{MASK}, v{src+d}")
def xsum_g(a, x, t, op="v_add_f32"):
    a(f"v_mov_b32 v{t}, v{x}"); a("s_nop 1")
    a(f"v_permlane32_swap_b32 v{x}, v{t}"); a(f"{op} v{x}, v{x}, v{t}")
    a(f"v_mov_b32 v{t}, v{x}"); a("s_nop 1")
    a(f"v_permlane16_swap_b32 v{x}, v{t}"); a(f"{op} v{x}, v{x}, v{t}")
def tree(a, regs):
    regs = list(regs)
    while len(regs) > 1:
        nxt = []
        for i in range(0, len(regs) - 1, 2):
            a(f"v_add_f32 v{regs[i]}, v{regs[i]}, v{regs[i+1]}"); nxt.append(regs[i])
        if len(regs) % 2: nxt.append(regs[-1])
        regs = nxt
    return regs[0]

def emit_pre(a, opt=()):
    def tstamp(a, opt, idx):
        if idx == 22: return _ts(a, opt, idx)
    a.c("==== prologue work of the post teams: mod + LN1 ; s16 = tid (0..127) ====")
    LE = lambda *x, **k: lane_expr(a, *x, tmp="v31", **k)
    tstamp(a, opt, 16)
    a("s_load_dwordx2 s[32:33], s[0:1], 0")
    a("s_load_dwordx4 s[36:39], s[0:1], 88")
    a(f"s_mov_b32 s{MASK}, 0xffff0000")
    LE("v1", "v0", [(0, 4, 10), (4, 2, 4), (6, 2, 8)])
    a(f"s_lshl_b32 s48, s{S_TID}, 14")
    a("s_waitcnt lgkmcnt(0)")
    srd(a, S_T, 32, 2048 * 1024)
    for i in range(4):
        a(f"buffer_load_dwordx4 {vr(32+4*i,4)}, v1, {sr(S_T,4)}, s48 offen offset:{64*i}")
    a(f"s_cmp_lt_u32 s{S_TID}, 96")
    a("s_cbranch_scc1 P_mod")
    a("s_waitcnt vmcnt(0)")
    a("s_branch P_nomod")
    a.label("P_mod")
    srd(a, 40, 36, 1024)
    srd(a, 44, 38, 512 * 6144)
    LE("v2", "v0", [(2, 6, 4)])
    a("buffer_load_dwordx4 v[4:7], v2, s[40:43], 0 offen")
    a("v_lshrrev_b32 v2, 2, v0")
    a("v_mul_u32_u24 v2, 49152, v2")
    a("v_and_b32 v3, 3, v0")
    a("v_lshl_add_u32 v2, v3, 4, v2")
    a(f"s_lshl_b32 s48, s{S_TID}, 6")
    for i in range(8):
        a(f"buffer_load_dwordx4 {vr(64+4*i,4)}, v2, s[44:47], s48 offen")
        if i < 7: a("s_add_u32 s48, s48, 6144")
    claim(a)
    a("s_waitcnt vmcnt(8)")
    tstamp(a, opt, 17)
    unpack(a, 4, 8, 4)
    a(f"s_mov_b32 s48, {f32bits(-math.log2(math.e))}")
    for j in range(8): a(f"v_mul_f32 v{16+j}, s48, v{8+j}")
    for j in range(8): a(f"v_exp_f32 v{16+j}, v{16+j}")
    for j in range(8): a(f"v_add_f32 v{16+j}, 1.0, v{16+j}")
    for j in range(8): a(f"v_rcp_f32 v{16+j}, v{16+j}")
    for j in range(8): a(f"v_mul_f32 v{8+j}, v{8+j}, v{16+j}")
    for j in range(0, 8, 2): rnd2(a, 8 + j, 9 + j, 31)
    for j in range(8): a(f"v_mov_b32 v{16+j}, 0")
    a("s_waitcnt vmcnt(0)")
    for i in range(8):
        for d in range(4):
            a(f"v_lshlrev_b32 v24, 16, v{64+4*i+d}")
            a(f"v_and_b32 v25, s{MASK}, v{64+4*i+d}")
            a(f"v_fmac_f32 v{16+2*d}, v{8+i}, v24")
            a(f"v_fmac_f32 v{17+2*d}, v{8+i}, v25")
    a("s_nop 1")
    for ror in (4, 8):
        for j in range(8):
            a(f"v_add_f32_dpp v{16+j}, v{16+j}, v{16+j} row_ror:{ror} row_mask:0xf bank_mask:0xf")
    LE("v2", "v0", [(4, 4, 7), (0, 2, 5)])
    a("ds_write_b128 v2, v[16:19] offset:1024")
    a("ds_write_b128 v2, v[20:23] offset:1040")
    a("s_waitcnt lgkmcnt(0)")
    a("s_barrier")
    verify_claim(a, 0, 163840 - 64)
    a(f"s_cmp_lg_u32 s{S_W}, 0")
    a("s_cbranch_scc1 P_nomod")
    LE("v2", "v0", [(0, 5, 2)])
    for p in range(16): a(f"ds_read_b32 v{64+p}, v2 offset:{1024+128*p}")
    a("s_waitcnt lgkmcnt(0)")
    r = tree(a, range(64, 80))
    a(f"v_cvt_pk_bf16_f32 v{r}, v{r}, v{r}")
    LE("v2", "v0", [(0, 5, 1), (5, 1, 30)])
    a(f"s_lshl_b32 s48, s{S_TID}, 6")
    a(f"s_add_u32 s48, s48, {hex(WS_MOD)}")
    a(f"buffer_store_short v{r}, v2, {sr(S_WS,4)}, s48 offen sc1")
    a(f"s_bitcmp1_b32 s{S_TID}, 5")
    a("s_cbranch_scc1 P_nomod")
    a("s_waitcnt vmcnt(0)")
    tstamp(a, opt, 18)
    a(f"s_cmp_lt_u32 s{S_TID}, 32")
    a(f"s_cselect_b32 s48, {D_MOD1}, {D_MOD2}")
    a("s_lshl_b32 s48, s48, 2")
    dbg_arrive(a, 0, soff=48)
    a.label("P_nomod")
    unpack(a, 32, 64, 16)
    LE("v2", "v0", [(0, 4, 4), (6, 2, 2)])
    LE("v3", "v0", [(0, 4, 4)])
    for j in range(16): a(f"v_add_f32 v{96+j}, v{64+2*j}, v{65+2*j}")
    r = tree(a, range(96, 112))
    xsum_g(a, r, 31)
    a(f"ds_write_b32 v2, v{r}")
    a("s_waitcnt lgkmcnt(0)"); a("s_barrier")
    a("ds_read_b128 v[4:7], v3")
    a("s_waitcnt lgkmcnt(0)")
    tree(a, range(4, 8))
    a(f"v_mul_f32 v8, {f32bits(1/512)}, v4")
    for j in range(32): a(f"v_sub_f32 v{96+j}, v{64+j}, v8")
    for j in range(32): a(f"v_mul_f32 v{96+j}, v{96+j}, v{96+j}")
    r = tree(a, range(96, 128))
    xsum_g(a, r, 31)
    a(f"ds_write_b32 v2, v{r} offset:256")
    a("s_waitcnt lgkmcnt(0)"); a("s_barrier")
    a("ds_read_b128 v[4:7], v3 offset:256")
    a("s_waitcnt lgkmcnt(0)")
    tree(a, range(4, 8))
    a(f"v_mul_f32 v9, {f32bits(1/512)}, v4")
    rnd1(a, 8); rnd1(a, 9)
    a(f"v_add_f32 v9, {f32bits(1e-5)}, v9"); rnd1(a, 9)
    a("v_sqrt_f32 v9, v9"); a("s_nop 0"); rnd1(a, 9)
    a("v_rcp_f32 v9, v9")
    for j in range(32): a(f"v_sub_f32 v{64+j}, v{64+j}, v8")
    for j in range(0, 32, 2): rnd2(a, 64 + j, 65 + j, 31)
    for j in range(32): a(f"v_mul_f32 v{64+j}, v{64+j}, v9")
    for j in range(0, 32, 2): rnd2(a, 64 + j, 65 + j, 31)
    tstamp(a, opt, 19)
    a(f"s_cmp_ge_u32 s{S_TID}, 32")
    a("s_cbranch_scc1 P_go")
    import rec
    a("s_load_dwordx2 s[34:35], s[0:1], 8")
    a("s_waitcnt lgkmcnt(0)")
    rec.emit_rec_init(a, S_TID, 34)
    LE("v16", "v0", [(0, 2, 4)])
    a(f"s_lshl_b32 s48, s{S_TID}, 7"); a(f"s_add_u32 s48, s48, {hex(WS_FLAG)}")
    a("s_mov_b64 exec, 7")
    a(f"buffer_store_dword v24, v16, {sr(S_WS,4)}, s48 offen sc1")
    a("s_mov_b64 exec, -1")
    dbg_wait(a, D_MOD1, 32, sleep=8)
    a.label("P_go")
    tstamp(a, opt, 20)
    LE("v2", "v0", [(4, 2, 4), (6, 2, 8)])
    a(f"s_mov_b32 s48, {hex(WS_MOD)}")
    for i in range(4):
        a(f"buffer_load_dwordx4 {vr(32+4*i,4)}, v2, {sr(S_WS,4)}, s48 offen offset:{1024+64*i} sc1")
    for i in range(4):
        a(f"buffer_load_dwordx4 {vr(48+4*i,4)}, v2, {sr(S_WS,4)}, s48 offen offset:{64*i} sc1")
    a("s_waitcnt vmcnt(4)")
    unpack(a, 32, 96, 16)
    for j in range(32): a(f"v_add_f32 v{96+j}, 1.0, v{96+j}")
    for j in range(0, 32, 2): rnd2(a, 96 + j, 97 + j, 31)
    for j in range(32): a(f"v_mul_f32 v{64+j}, v{64+j}, v{96+j}")
    for j in range(0, 32, 2): rnd2(a, 64 + j, 65 + j, 31)
    a("s_waitcnt vmcnt(0)")
    unpack(a, 48, 96, 16)
    for j in range(32): a(f"v_add_f32 v{64+j}, v{64+j}, v{96+j}")
    for j in range(16): a(f"v_cvt_pk_bf16_f32 v{32+j}, v{64+2*j}, v{65+2*j}")
    tstamp(a, opt, 21)
    LE("v2", "v0", [(0, 6, 4), (6, 2, 12)])
    a(f"s_lshl_b32 s48, s{S_TID}, 14")
    a(f"s_add_u32 s48, s48, {hex(WS_H)}")
    for i in range(4):
        a(f"buffer_store_dwordx4 {vr(32+4*i,4)}, v2, {sr(S_WS,4)}, s48 offen offset:{1024*i} sc1")
    a(f"s_cmp_ge_u32 s{S_TID}, {N_LN1}")
    a("s_cbranch_scc1 P_done")
    a("s_waitcnt vmcnt(0)")
    a("s_barrier")
    a(f"s_cmp_lg_u32 s{S_W}, 0")
    a("s_cbranch_scc1 P_done")
    tstamp(a, opt, 22)
    dbg_arrive(a, D_LN1)
    a.label("P_done")
```

```python
from common import *
import math, struct

L_MEM = 0
L_K   = 8192
L_V   = 16384
L_QK  = 24576
L_OS  = 28672
L_SEL = 30720
L_JUNK= 31744
L_MISC= 32256
L_WO  = 32768

S_STEP = 16
S_PST = 17
S_PLD = 19
S_MRD, S_MWR, S_MPO = 22, 23, 24
S_KX, S_VX, S_KVM = 25, 26, 27
S_TAG, S_PMAX, S_PC = 28, 29, 30
S_SC = 31
S_PTR = 32
S_T0, S_T1, S_T2, S_T3 = 48, 49, 50, 51
S_OWN = 52
S_WOB = 53
S_WOL = 54
S_STAMP = 60

vFl = "v0"
vL16w, vL16, vXw, vXr, vOw, vWo, vPs, vMp, vIdx = ["v%d" % i for i in range(1, 10)]
vPl = vL16
vZ = "v[10:11]"
vT0, vT1 = "v12", "v13"
vFx = ["v28", "v29", "v30"]
SX0, SX1, SM = 16, 20, 24
vM = "v31"
FA, FB = 32, 120
F = [32 + 4 * i for i in range(8)]
ACC = {("q", 0): 64, ("q", 1): 68, ("k", 0): 72, ("k", 1): 76, ("v", 0): 80, ("v", 1): 84}
QF = [88 + 4 * i for i in range(4)]
KF = [104 + 4 * i for i in range(4)]
KXR = {(0, 0): 32, (1, 0): 24, (0, 1): 104, (1, 1): 108, (0, 2): 112, (1, 2): 116, (0, 3): 120, (1, 3): 124}
VX = [64, 72]
MI = {"q": 0, "k": 1, "v": 2}

def wreg(m, t, sig, off=0, n=8):
    idx = ((MI[m] * 2 + t) * 8 + sig) * 8 + off
    if idx < 256: return ar(idx, n)
    return vr(128 + idx - 256, n)

def smf(m, t, sig, own=FA):
    f = own + 4 * sig if sig < 2 else F[sig]
    return f"v_smfmac_f32_16x16x64_bf16 {vr(ACC[(m,t)],4)}, {vr(f,4)}, {wreg(m,t,sig)}, {vIdx}"

S_HAVE, S_FLG, S_KVC = 55, 56, 26
S_SC2, S_OM = 58, 46
def emit_rec_init(a, sh, ptr):
    LE = lambda *x, **k: lane_expr(a, *x, tmp="v31", **k)
    WS = sr(S_WS, 4)
    srd(a, S_T, ptr, 8192)
    LE("v16", "v0", [(5, 1, 10), (4, 1, 6), (0, 2, 1)])
    sexpr(a, 48, [(sh, 1, 2, 11), (sh, 3, 2, 8), (S_W, 1, 1, 7), (sh, 0, 1, 4), (S_W, 0, 1, 3)])
    a(f"buffer_load_ushort v17, v16, {sr(S_T,4)}, s48 offen")
    a(f"buffer_load_ushort v18, v16, {sr(S_T,4)}, s48 offen offset:32")
    LE("v20", "v0", [(0, 6, 4)])
    LE("v21", "v0", [(5, 1, 5), (0, 2, 3), (4, 1, 2), (2, 2, 30)])
    for i in range(4): a(f"v_mov_b32 v{24+i}, 0")
    a("v_mov_b32 v19, -1")
    sexpr(a, 48, [(sh, 0, 5, 13), (S_W, 0, 2, 11)], WS_PART)
    a(f"buffer_store_dwordx4 v[24:27], v20, {WS}, s48 offen sc1")
    a(f"buffer_store_dwordx4 v[24:27], v20, {WS}, s48 offen offset:1024 sc1")
    sexpr(a, 50, [(sh, 3, 2, 11), (S_W, 1, 1, 10), (sh, 0, 1, 9), (S_W, 0, 1, 8), (sh, 1, 2, 6)], WS_MEM)
    for sl in (1, 2):
        a(f"s_add_u32 s48, s50, {8192*sl}")
        a(f"buffer_store_dword v19, v21, {WS}, s48 offen sc1")
    a("s_waitcnt vmcnt(4)")
    a("v_lshl_or_b32 v17, v18, 16, v17")
    a(f"buffer_store_dword v17, v21, {WS}, s50 offen sc1")

def emit_rec_setup(a, pfx="R", own_init=True, opt=()):
    st = " sc1"
    LE = lambda *x, **k: lane_expr(a, *x, tmp="v31", **k)
    a.c("==== recurrence role: s14 = head, s15 = wave ====")
    q = VmQ(a)
    if own_init:
        emit_rec_init(a, S_H, S_PTR + 2)
        a("s_waitcnt vmcnt(0)")
        dbg_arrive(a, D_RTB)
        a("s_waitcnt vmcnt(0)")

    D = [32, 33]
    E = [36, 37, 38, 39]
    LE("v28", "v0", [(4, 2, 5)])
    LE("v29", "v0", [(0, 4, 4)])
    a("v_xor_b32 v28, v28, v29")
    LE("v30", "v0", [(4, 2, 13)])
    a(f"v_add_u32 v{D[0]}, v28, v30")
    a(f"v_xor_b32 v{D[1]}, 128, v{D[0]}")
    sexpr(a, S_T2, [(S_H, 0, 5, 8), (S_W, 0, 2, 18)])
    sexpr(a, S_T3, [(S_W, 0, 2, 13)], L_WO)
    sexpr(a, S_WOB, [(S_H, 0, 5, 17), (S_W, 0, 2, 15)])

    def dma_chunk(a, q, n):
        m, ch = divmod(n, 4)
        if ch == 0:
            srd(a, S_T, S_PTR + 4 + 2 * m, 4194304)
        for i in range(8):
            a(f"s_add_u32 m0, s{S_T3}, {ch * 32768 + i * 1024}")
            if m < 3:
                a(f"s_add_u32 s{S_T0}, s{S_T2}, {hex((128 * ch + 4 * i) * 8192)}")
                a(f"buffer_load_dwordx4 v{D[(i >> 2) & 1]}, {sr(S_T,4)}, s{S_T0} offen lds")
            else:
                a(f"s_add_u32 s{S_T0}, s{S_WOB}, {hex(4 * i * 1024 + ch * 256)}")
                a(f"buffer_load_dwordx4 v{E[(i & 1) + 2 * ((i >> 2) & 1)]}, {sr(S_T,4)}, s{S_T0} offen lds")
        q.issue(("d", n), 8)

    if "time" in opt: a("s_memrealtime s[76:77]")
    for n in range(4): dma_chunk(a, q, n)
    LE(vL16w, "v0", [(0, 6, 4), (6, 2, 11)])
    LE(vL16, "v0", [(0, 6, 4)])
    LE(vXw, "v0", [(6, 2, 10), (0, 4, 5), (4, 2, 3)], L_QK)
    LE("v16", "v0", [(2, 2, 3)])
    a(f"v_xor_b32 {vXw}, {vXw}, v16")
    LE(vXr, "v0", [(0, 6, 3)], L_QK)
    LE("v16", "v0", [(4, 2, 3)])
    a(f"v_xor_b32 {vXr}, {vXr}, v16")
    LE(vOw, "v0", [(6, 2, 9), (5, 1, 8), (2, 2, 6), (0, 1, 5), (4, 1, 4)], L_OS)
    LE("v16", "v0", [(5, 1, 8), (2, 2, 6), (0, 1, 5), (4, 1, 4)], L_JUNK)
    a("v_and_b32 v17, 2, v0")
    a("v_cmp_ne_u32 vcc, 0, v17")
    a("s_nop 1")
    a(f"v_cndmask_b32 {vOw}, {vOw}, v16, vcc")
    for r in (10, 11, 14, 15): a(f"v_mov_b32 v{r}, 0")
    LE(vWo, "v0", [(6, 2, 15), (0, 6, 4)], L_WO)
    LE(vPs, "v0", [(4, 2, 14), (3, 1, 13), (2, 1, 11), (0, 2, 4)])
    LE(vMp, "v0", [(5, 1, 5), (0, 2, 3), (4, 1, 2), (2, 2, 30)])
    a(f"v_and_b32 v16, 1, v0")
    a(f"v_mul_u32_u24 {vIdx}, 0xaaaa, v16")
    a(f"v_add_u32 {vIdx}, 0x4444, {vIdx}")
    a("v_and_b32 v16, 3, v0")
    a("v_bfe_u32 v17, v0, 2, 2")
    a("v_mov_b32 v18, 0x3f80")
    a("v_mov_b32 v19, 0x3f800000")
    a("v_cmp_eq_u32 vcc, 1, v16")
    a("s_nop 1")
    a("v_cndmask_b32 v18, v18, v19, vcc")
    a("v_cmp_gt_u32 vcc, 2, v16")
    a("s_nop 1")
    a("v_cndmask_b32 v18, 0, v18, vcc")
    for d in range(4):
        a(f"v_cmp_eq_u32 vcc, {d}, v17")
        a("s_nop 1")
        a(f"v_cndmask_b32 v{20+d}, 0, v18, vcc")
    a(f"ds_write_b128 {vL16}, v[20:23] offset:{L_SEL}")
    for tau in range(2):
        sexpr(a, S_PST + tau, [(S_W, 0, 2, 16), (S_H, 0, 5, 6)], WS_PART + tau * 4096)
    sexpr(a, S_PLD, [(S_H, 0, 5, 13), (S_W, 0, 2, 11)], WS_PART)
    sexpr(a, S_OWN, [(S_H, 3, 2, 11), (S_W, 1, 1, 10), (S_H, 0, 1, 9), (S_W, 0, 1, 8), (S_H, 1, 2, 6)])
    a(f"s_mov_b32 s{S_MRD}, {hex(WS_MEM)}")
    a(f"s_add_u32 s{S_MPO}, s{S_OWN}, {hex(WS_MEM)}")
    a(f"s_add_u32 s{S_MWR}, s{S_OWN}, {hex(WS_MEM + 8192)}")
    a(f"s_mul_i32 s{S_T0}, s{S_H}, {HSTR}")
    sexpr(a, S_KX, [(S_W, 0, 2, 12)], WS_KV)
    a(f"s_add_u32 s{S_KX}, s{S_KX}, s{S_T0}")
    a(f"s_mul_i32 s{S_T0}, s{S_H}, {MSTR}")
    sexpr(a, S_KVM, [(S_W, 0, 2, 10)], WS_KM)
    a(f"s_add_u32 s{S_KVM}, s{S_KVM}, s{S_T0}")
    a(f"s_mov_b32 s{S_STEP}, 0")
    a(f"s_mov_b32 s{S_TAG}, 1")
    a(f"s_mov_b32 s{S_PMAX}, 20000")
    sc = (128 ** -0.5) * math.log2(math.e)
    a(f"s_mov_b32 s{S_SC}, {hex(struct.unpack('<I', struct.pack('<f', sc))[0])}")

    a(f"s_mov_b32 s{S_SC2}, s{S_SC}"); a(f"s_mov_b32 s{S_SC2+1}, s{S_SC}")
    a(f"s_mov_b32 s{S_OM}, 0x33333333"); a(f"s_mov_b32 s{S_OM+1}, 0x33333333")
    LE("v28", "v0", [(4, 1, 5)])
    LE("v29", "v0", [(0, 4, 4)])
    a("v_xor_b32 v28, v28, v29")
    LE("v30", "v0", [(4, 2, 10)])
    a(f"v_add_u32 v{E[0]}, v28, v30")
    a(f"v_xor_b32 v{E[1]}, 64, v{E[0]}")
    a(f"v_xor_b32 v{E[2]}, 128, v{E[0]}")
    a(f"v_xor_b32 v{E[3]}, 192, v{E[0]}")
    TR = [40, 41]
    LE("v28", "v0", [(2, 1, 12), (5, 1, 10), (3, 1, 9), (4, 1, 8), (0, 1, 3)])
    LE("v29", "v0", [(6, 2, 6), (1, 1, 4)])
    LE("v30", "v0", [(4, 1, 5), (3, 1, 6), (2, 1, 7)])
    a("v_xor_b32 v29, v29, v30")
    a(f"v_add_u32 v{TR[0]}, v28, v29")
    a(f"v_xor_b32 v{TR[1]}, 32, v{TR[0]}")

    done = pfx + "_wdone"
    for w in range(4):
        if w < 3:
            a(f"s_cmp_lg_u32 s{S_W}, {w}")
            a(f"s_cbranch_scc1 {pfx}_wl{w+1}")
        qq = q.clone()
        for n in range(13):
            if n < 12:
                qq.wait(("d", n))
            a("s_barrier")
            if "time" in opt and n in (0, 4, 8): a(f"s_memrealtime s[{78+n//2}:{79+n//2}]")
            if 0 < n and n + 3 < 16: dma_chunk(a, qq, n + 3)
            if not own_init and n == max([int(o[2:]) for o in opt if o.startswith("cn")] + [0] or [0]) + 6 and w == 0:
                claim(a)
            if not own_init and n == 11:
                a(f"v_lshrrev_b32 v122, 2, {vL16}")
            if not own_init and n == 12 and w == 0:
                a(f"s_mov_b32 exec_lo, 1"); a(f"s_mov_b32 exec_hi, {1 << (D_LN1 - 32)}")
                a(f"global_load_dword v123, v122, {sr(S_DBG,2)} sc1")
                a("s_mov_b64 exec, -1")
                a("s_waitcnt vmcnt(0)")
                a(f"ds_write_b32 v122, v123 offset:{L_JUNK}")
                a("s_waitcnt lgkmcnt(0)")
            if n == 12: break
            m, ch = divmod(n, 4)
            mn = "qkv"[m]
            a(f"v_add_u32 v26, {L_WO + ch * 32768}, v{TR[0]}")
            a(f"v_add_u32 v27, {L_WO + ch * 32768}, v{TR[1]}")
            for k2 in range(2):
                sig = (2 * ch + k2) ^ (2 * w)
                for t in range(2):
                    for p in range(4):
                        off = (64 * k2 + 32 * (p % 2) + 8 * (p // 2)) * 256
                        a(f"ds_read_b64_tr_b16 {wreg(mn, t, sig, 2 * p, 2)}, v{26+t} offset:{off}")
            a("s_waitcnt lgkmcnt(0)")
        if w < 3:
            a(f"s_branch {done}")
            a.label(f"{pfx}_wl{w+1}")
    a.label(done)
    LE("v24", "v0", [(4, 1, 12), (5, 1, 11), (3, 1, 10), (2, 1, 8), (6, 2, 15), (1, 1, 4), (0, 1, 3),
                     (2, 1, 5), (3, 1, 6), (4, 1, 7)], L_WO)
    a("s_waitcnt vmcnt(0)")
    if not own_init:
        sexpr(a, S_FLG, [(S_H, 0, 5, 7)], WS_FLAG)
    a("s_barrier")
    if not own_init:
        a(f"buffer_load_dword v119, {vMp}, {sr(S_WS,4)}, s{S_FLG} offen sc1")
        a(f"ds_read_b32 v123, v122 offset:{L_JUNK}")
    for ks in range(2):
        for tau in range(2):
            for b in range(4):
                a(f"v_xor_b32 v25, {128 * tau + 32 * b}, v24")
                base = 32 + (tau * 4 + b) * 8
                for p in range(4):
                    off = (64 * ks + 32 * (p // 2) + 2 * (p % 2)) * 256
                    a(f"ds_read_b64_tr_b16 {vr(base + 2 * p, 2)}, v25 offset:{off}")
        a("s_waitcnt lgkmcnt(0)")
        for i in range(16):
            a(f"ds_write_b128 {vWo}, {vr(32 + 4 * i, 4)} offset:{ks * 16384 + i * 1024}")
        a("s_waitcnt lgkmcnt(0)")
    if own_init: dbg_wait(a, D_RTB, 128, sleep=8)
    else: verify_claim(a, 1, L_MISC)

def kv_wait(a, need_sreg_or_imm, tag):
    l = a.uid(tag)
    need = need_sreg_or_imm
    a(f"s_cmp_ge_u32 s{S_HAVE}, {need}")
    a(f"s_cbranch_scc1 {l}_ok")
    a(f"s_mov_b32 s{S_PC}, 0")
    a.label(l)
    a(f"buffer_load_dword v119, {vMp}, {sr(S_WS,4)}, s{S_FLG} offen sc1")
    a("s_waitcnt vmcnt(0)")
    a(f"v_readlane_b32 s{S_HAVE}, v119, 0")
    a(f"v_readlane_b32 s{S_T0}, v119, 2")
    a("s_nop 1")
    a(f"s_min_u32 s{S_HAVE}, s{S_HAVE}, s{S_T0}")
    a(f"s_cmp_ge_u32 s{S_HAVE}, {need}")
    a(f"s_cbranch_scc1 {l}_ok")
    a("s_sleep 2")
    a(f"s_add_u32 s{S_PC}, s{S_PC}, 1")
    a(f"s_cmp_lt_u32 s{S_PC}, s{S_PMAX}")
    a(f"s_cbranch_scc1 {l}")
    a(f"s_mov_b32 s{S_PMAX}, 1")
    a.label(l + "_ok")

def emit_rec_mega(a, opt):
    import mega
    a(f"s_load_dwordx16 {sr(S_PTR,16)}, s[0:1], 0")
    a("s_waitcnt lgkmcnt(0)")
    emit_rec_setup(a, own_init=False, opt=opt)
    if "time" in opt: a("s_memrealtime s[84:85]")
    a(f"v_readlane_b32 s{S_T2}, v123, {D_LN1}")
    a(f"v_readlane_b32 s{S_T3}, v123, 0")
    a("s_waitcnt vmcnt(0)")
    a(f"v_readlane_b32 s{S_HAVE}, v119, 0")
    a(f"v_readlane_b32 s{S_T0}, v119, 2")
    a("s_nop 1")
    a(f"s_min_u32 s{S_HAVE}, s{S_HAVE}, s{S_T0}")
    a(f"s_mov_b32 s57, s{S_T3}")
    a(f"s_cmp_ge_u32 s{S_T2}, {N_LN1}")
    a("s_cbranch_scc1 R_lnok")
    a(f"s_mov_b32 s{S_HAVE}, 0")
    a(f"s_mov_b32 s{S_PC}, 0")
    a.label("R_lnw")
    a(f"global_load_dword v123, v122, {sr(S_DBG,2)} sc1")
    a("s_waitcnt vmcnt(0)")
    a(f"v_readlane_b32 s{S_T2}, v123, {D_LN1}")
    a("s_nop 1")
    a(f"s_cmp_ge_u32 s{S_T2}, {N_LN1}")
    a("s_cbranch_scc1 R_lnok")
    a("s_sleep 32")
    a(f"s_add_u32 s{S_PC}, s{S_PC}, 1")
    a(f"s_cmp_lt_u32 s{S_PC}, s{S_PMAX}")
    a("s_cbranch_scc1 R_lnw")
    a.label("R_lnok")
    kv_wait(a, 2, "kvw")
    if "time" in opt: a("s_memrealtime s[86:87]")
    if "fakexcc" not in opt and "slow" not in opt:
        a("s_cmp_eq_u32 s57, -1")
        a("s_cbranch_scc1 R_fast")
    mega.emit_mode(a, opt, "R_slow")
    a.label("R_fast")
    ropt = list(opt) + ["mega", "oexec", "f1s", "ge5", "ga2", "gb4", "c112", "b15", "de5", "dl5", "db4", "dc2", "o01"]
    emit_rec(a, fast=True, pfx="RF", opt=ropt)
    a("s_branch L_done")
    a.label("R_slow")
    emit_rec(a, fast=False, pfx="RS", opt=ropt)

def emit_rec(a, fast=True, stamps=False, nsteps=64, pfx="R", warm=True, opt=()):
    st = "" if fast else " sc1"
    def geti(p, d):
        for o in opt:
            if o.startswith(p) and o[len(p):].isdigit(): return int(o[len(p):])
        return d
    nst = [0]
    tr0 = geti("tr", -1)
    slotno = [0]
    def stamp(force=False):
        if stamps and (tr0 < 0 or force):
            a(f"s_memtime {sr(S_STAMP + 2 * nst[0], 2)}"); nst[0] += 1
    if "mega" not in opt: emit_rec_setup(a, pfx)

    lq = LQ()
    rms = [o[3:] for o in opt if o.startswith("rm:")]
    def emit(x):
        txt = x if isinstance(x, str) else x[0]
        if isinstance(x, str) and any(r in txt for r in rms): return
        if x == "STAMP": stamp()
        elif isinstance(x, tuple):
            if x[0] == "w":
                wt = lq.wait(x[1])
                if isinstance(x[1], tuple) and x[1][0] == "Fw": assert wt.endswith("(0)")
                a(wt)
            elif x[0] == "L": a.label(x[1])
            else:
                a(x[0]); lq.issue(x[1])
        else: a(x)
    def run(seq, count=True):
        for m, fill in seq:
            if m: a(m)
            if tr0 >= 0 and count and tr0 <= slotno[0] + 12 < tr0 + geti("tn", 13): stamp(True)
            if count: slotno[0] += 1
            for f in fill: emit(f)

    kvd = [f"buffer_load_dwordx4 {vL16}, {sr(S_WS,4)}, s{S_KX} offen offset:{1024*i} sc1 lds" for i in range(4)] + [f"s_add_u32 s{S_KX}, s{S_KX}, 16384"]
    zero16 = lambda r: f"v_mfma_f32_32x32x8_bf16 {vr(r,16)}, {vZ}, {vZ}, 0"
    zero4 = lambda r: f"v_mfma_f32_16x16x16_bf16 {vr(r,4)}, {vZ}, {vZ}, 0"
    def gather(sig):
        return f"buffer_load_dwordx4 {vr(F[sig],4)}, {vL16w}, {sr(S_WS,4)}, s{S_MRD} offen offset:{1024*sig} sc1"
    def fx():
        for i in range(3): a(f"v_xor_b32 {vFx[i]}, {2048 * (i + 1)}, {vL16w}")
    S_MK, S_MV = S_T2, S_T3
    sexpr(a, S_MK, [(S_W, 0, 2, 11)], L_K)
    sexpr(a, S_MV, [(S_W, 0, 2, 11)], L_V - 2048)
    mk, mv = f"s_mov_b32 m0, s{S_MK}", f"s_mov_b32 m0, s{S_MV}"
    for x in [mk, "s_nop 0"] + kvd[:2] + [mv, "s_nop 0"] + kvd[2:] + [mk]: a(x)
    a(f"s_sub_u32 s{S_KVM}, s{S_KVM}, 4096")
    a(f"s_add_u32 s{S_T0}, s{S_KVM}, {65*4096}")
    a(f"s_mov_b32 s{S_KVC}, s{S_T0}")
    if "nokv" in opt: kvd = ["s_nop 0"] * 5
    a(zero16(64)); a(zero16(80))
    fx()
    a(f"s_mov_b32 s{S_PC}, 0")
    if stamps or "nost" in opt or "time" in opt:
        a("s_memrealtime s[96:97]"); a("s_memtime s[98:99]")
    if "rstat" in opt:
        for r in range(60, 64): a(f"s_mov_b32 s{r}, 0")
    for sl in (1, 2):
        a(f"s_add_u32 s{S_T0}, s{S_MRD}, {8192*sl}")
        for n in range(2): a(f"buffer_load_dwordx4 v[96:99], {vL16w}, {sr(S_WS,4)}, s{S_T0} offen offset:{1024*n} sc1")
    for n in range(2): a(f"buffer_load_dwordx4 v[96:99], {vPl}, {sr(S_WS,4)}, s{S_PLD} offen offset:{1024*n} sc1")
    a(gather(1))
    a(gather(0)); a(gather(0))
    if "f1s" not in opt: a(gather(1))

    rdF = lambda sig: (f"ds_read_b128 {vr(F[sig],4)}, {vFx[sig//2-1]} offset:{L_MEM + (sig%2)*1024}", ("F", sig))
    rdKX = lambda t, ks: (f"ds_read_b128 {vr(KXR[(t,ks)],4)}, {vL16} offset:{L_K + (t*4+ks)*1024}", "KX")
    trQ = lambda ks, u: (f"ds_read_b64_tr_b16 {vr(QF[ks]+2*u,2)}, {vXr} offset:{1024*ks+512*u}", ("Q", ks))
    trK = lambda ks, u: (f"ds_read_b64_tr_b16 {vr(KF[ks]+2*u,2)}, {vXr} offset:{1024*ks+512*u}", ("K", ks))
    rdV = lambda t: (f"ds_read_b128 {vr(VX[t],4)}, {vL16w} offset:{L_V + t*1024}", "V")
    def sx(t, ks):
        d = vr([SX0, SX1][t], 4)
        return f"v_mfma_f32_16x16x32_bf16 {d}, {vr(KXR[(t,ks)],4)}, {vr(QF[ks],4)}, {d if ks else 0}"
    def sm(ks):
        d = vr(SM, 4)
        return f"v_mfma_f32_16x16x32_bf16 {d}, {vr(QF[ks],4)}, {vr(QF[ks],4)}, {d if ks else 0}"
    kvm = [f"buffer_store_dwordx4 v[12:15], {vL16}, {sr(S_WS,4)}, s{S_KVC} offen sc1", f"s_add_u32 s{S_KVM}, s{S_KVM}, 4096", f"s_mov_b32 s{S_KVC}, s{S_KVM}"]
    if "nokvm" in opt: kvm[0] = "s_nop 0"

    nc = "nocomm" in opt
    def chk(sig):
        f = F[sig]
        return [f"v_max3_u32 v16, v{f}, v{f+1}, v{f+2}", f"v_max_u32 v16, v16, v{f+3}", f"v_cmp_eq_u32 vcc, -1, v16"]
    wrF = lambda sig: (f"ds_write_b128 {vL16w}, {vr(F[sig],4)} offset:{L_MEM + 1024*sig}", ("Fw", sig))
    def gfail(sig, first_wait, redo):
        a.label(f"{pfx}_gf{sig}")
        a(f"s_waitcnt vmcnt({first_wait})")
        a.label(f"{pfx}_gr{sig}")
        if "rstat" in opt: a(f"s_add_u32 s{61+sig}, s{61+sig}, 1")
        for x in chk(sig): a(x)
        a(f"s_add_u32 s{S_PC}, s{S_PC}, 1")
        a(f"s_cbranch_vccz {pfx}_gx{sig}")
        a(gather(sig))
        a(f"s_cmp_lt_u32 s{S_PC}, s{S_PMAX}")
        a("s_waitcnt vmcnt(0)")
        a(f"s_cbranch_scc1 {pfx}_gr{sig}")
        a(f"s_mov_b32 s{S_PMAX}, 1")
        a.label(f"{pfx}_gx{sig}")
        a(wrF(sig)[0])
        for x in redo: a(x)
        a(f"s_branch {pfx}_gok{sig}")

    a(f"s_branch {pfx}_gA")
    gfail(0, 0 if "f1s" in opt else 1, [zero4(64), "s_nop 5", smf("q", 0, 0)])
    gfail(1, 0, [])
    a.raw(".p2align 6")
    a.label(f"{pfx}_gA")
    if not nc: a(f"s_waitcnt vmcnt({1 if 'f1s' in opt else 2})")
    for x in chk(0)[:2]: a(x)
    emit(wrF(0))
    a(chk(0)[2])
    a(smf("q", 0, 0))
    if not nc: a(f"s_cbranch_vccnz {pfx}_gf0")
    a.label(f"{pfx}_gok0")
    if stamps:
        a(f"s_memtime {sr(S_STAMP, 2)}")
        a(f"s_mov_b32 s{S_STAMP+29}, s{S_PC}")
    nst[0] = 1
    kx = {k: rdKX(*k) for k in KXR}
    WB = [40, 48, 56, 32, 104, 112, 120, 96, 24]
    def rdWo(k, buf, half):
        T, ks = divmod(k, 2)
        return (f"ds_read_b128 {vr(buf + 4*half, 4)}, {vWo} offset:{ks*16384 + T*2048 + half*1024}", ("W", k))
    W = [rdWo(k, WB[k], h) for k in range(9) for h in range(2)]
    def post(acc, dst):
        return [f"v_add_f32 v{acc}, v{acc}, v{acc+1}", f"v_add_f32 v{acc+2}, v{acc+2}, v{acc+3}", f"v_cvt_pk_bf16_f32 v{dst}, v{acc}, v{acc+2}"]
    one = [f"v_mov_b32 v{28+i}, 0x3f803f80" for i in range(4)]
    pq0, pk0, pq1, pk1 = post(64, 12), post(72, 13), post(68, 14), post(76, 15)
    pv0, pv1 = post(80, 12), post(84, 14)
    tr = [trQ(ks, u) for ks in range(4) for u in range(2)]
    QK = (("q", 0), ("k", 0), ("q", 1), ("k", 1))
    ms = [smf("k", 0, 0), smf("q", 1, 0), smf("k", 1, 0), smf("v", 0, 0), smf("v", 1, 0)]
    ms += [smf(m, t, sg) for sg in (2, 4, 6, 1) for m, t in QK]
    ms += [smf(m, t, sg) for m, t in QK for sg in (3, 5, 7)]
    ms += [smf("v", t, sg) for sg in (1, 2, 3, 4, 5, 6, 7) for t in range(2)]
    ms += [sx(0, 0), sx(1, 0), sm(0), sx(0, 1), sx(1, 1), sm(1), sx(0, 2), sx(0, 3), sx(1, 2), sx(1, 3), sm(2), sm(3)]
    fl = {k: [] for k in range(1, 60)}
    hb = geti("hb", 4); c1 = geti("c1", 10); b1 = geti("b1", 6)
    f1s = "f1s" in opt
    fl[geti("f1", 1)] = [gather(1)] if not nc else []
    fl[hb] += [("w", ("Fw", 0)), "s_barrier", rdF(2)]
    fl[5] += [rdF(4), rdF(6), zero4(20), kx[(0, 1)], kx[(1, 1)], zero4(20), ("w", ("F", 2)), "STAMP"]
    rest = [kx[(0, 2)], kx[(1, 2)], kx[(0, 3)], kx[(1, 3)], kx[(1, 0)], kx[(0, 0)]]
    for sl in range(6, c1):
        if len(rest) > 1: fl[sl] += [rest.pop(0)]
    fl[9] += [("w", ("F", 6))]
    if f1s:
        fl[c1] += (["s_waitcnt vmcnt(0)"] if not nc else []) + [wrF(1)]
        fl[c1 + 1] += [f"v_cmp_eq_u32 vcc, -1, v{F[1]}"]
        fl[c1 + 2] += ([f"s_cbranch_vccnz {pfx}_gf1"] if not nc else []) + [("L", f"{pfx}_gok1")]
    else:
        fl[c1] += (["s_waitcnt vmcnt(1)"] if not nc else []) + chk(1)
        fl[c1 + 1] += [wrF(1)] + ([f"s_cbranch_vccnz {pfx}_gf1"] if not nc else []) + [("L", f"{pfx}_gok1")]
    for n, x in enumerate(rest): fl[c1 + 2 + n] += [x]
    fl[c1 + b1] += [("w", "KX"), "s_barrier"]
    x0 = c1 + b1 + 1
    fl[x0] += [rdF(3), rdF(5)]; fl[x0 + 1] += [rdF(7), one[3]]
    if not stamps:
        fl[x0 - 3] += [f"s_cmp_eq_u32 s{S_STEP}, {nsteps-1}"]
        fl[x0 + 1] = [rdF(7), f"s_cbranch_scc1 {pfx}_last"]; fl[x0 + 4] += [one[3]]
    last_ms = [m for m in ms[x0 + 1:47] if "v[64:67]" not in m.split(",")[0] and "v[68:71]" not in m.split(",")[0]]
    fl[x0 + 2] += (["s_waitcnt vmcnt(0)"] if not (nc or f1s) else []) + [kvd[0]]
    fl[x0 + 3] += [one[0]]
    fl[21] += [("w", ("F", 3))]
    fl[22] += [("w", ("F", 7)), one[1]]
    fl[23] += [kvd[1]]
    fl[24] += [mv, one[2], "STAMP"]
    fl[25] += kvm[:1]
    fl[26] += kvm[1:2]
    fl[27] += kvm[2:3]
    if "mega" in opt and "nofl" not in opt: fl[30] += [f"buffer_load_dword {vFl}, {vMp}, {sr(S_WS,4)}, s{S_FLG} offen sc1"]
    fl[26] += [pq0[0]]
    fl[27] += [pq0[1]]
    fl[28] += [pq0[2]]
    fl[29] += [rdV(0), pk0[0]]
    fl[30] += [pk0[1]]
    fl[31] += [pk0[2]]
    fl[32] += [rdV(1), pq1[0]]
    fl[33] += [pq1[1]]
    fl[34] += [pq1[2]]
    fl[35] += pk1
    fl[36] += [(f"ds_write2st64_b64 {vXw}, v[12:13], v[14:15] offset1:1", "Xw")]
    fl[37] += [("w", "V"), "v_mov_b32 v77, 0"]
    fl[38] += [kvd[2]]
    fl[39] += [W[0]]
    fl[40] += [kvd[3]]
    fl[41] += [("w", "Xw"), "s_barrier"]
    fl[42] += tr[0:2]
    fl[43] += tr[2:4]
    fl[44] += tr[4:6]
    fl[45] += tr[6:8]
    fl[46] += [W[1]]
    fl[47] += [("w", ("Q", 3)), "STAMP"]
    fl[48] += [W[2], pv0[0]]
    fl[49] += [W[3], pv0[1]]
    fl[50] += [W[4], pv0[2]]
    fl[51] += [W[5], pv1[0]]
    fl[52] += [W[6], pv1[1]]
    fl[53] += [W[7], pv1[2]]
    fl[54] += [mk]
    fl[55] += [W[8]]
    fl[56] += [W[9]]
    fl[57] += [W[10], "v_max3_f32 v80, v16, v17, v18"]
    fl[58] += [W[11], kvd[4]]
    fl[59] += [W[12], W[13], "s_nop 1", "v_max3_f32 v82, v19, v20, v21", "v_max3_f32 v80, v80, v22, v23", "v_max_f32 v80, v80, v82", "s_nop 0"]
    slotno[0] = -11
    run([(m, fl[1 + i]) for i, m in enumerate(ms)])
    ee = lambda r: f"v_exp_f32 v{r}, v{r}"
    for x in ["v_max3_f32 v80, v80, v26, v27", "v_mov_b32 v82, v80", W[14], W[15], "v_permlane32_swap_b32 v80, v82", "v_max_f32 v80, v80, v82",
              "v_mov_b32 v82, v80", "s_nop 1", "v_permlane16_swap_b32 v80, v82", "v_max_f32 v80, v80, v82", f"v_mul_f32 v80, s{S_SC}, v80"]:
        emit(x)
    for r in (26, 16, 18, 20, 22):
        a(f"v_pk_fma_f32 {vr(r,2)}, {vr(r,2)}, {sr(S_SC2,2)}, v[80:81] op_sel_hi:[1,1,0] neg_lo:[0,0,1] neg_hi:[0,0,1]")
    stamp()
    for x in [ee(26), ee(27), ee(16), "v_cvt_pk_bf16_f32 v76, v26, v27", ee(17), "s_nop 0"]:
        emit(x)
    run([("v_mfma_f32_16x16x16_bf16 v[84:87], v[28:29], v[76:77], 0", [ee(18), "v_cvt_pk_bf16_f32 v68, v16, v17"]),
         ("v_mfma_f32_16x16x16_bf16 v[88:91], v[12:13], v[76:77], 0", [ee(19), ee(20)]),
         ("v_mfma_f32_16x16x16_bf16 v[92:95], v[14:15], v[76:77], 0", [ee(21), "v_cvt_pk_bf16_f32 v69, v18, v19", ee(22), ee(23),
            "v_cvt_pk_bf16_f32 v70, v20, v21", "v_cvt_pk_bf16_f32 v71, v22, v23", W[16], "s_nop 0"]),
         ("v_mfma_f32_16x16x32_bf16 v[84:87], v[28:31], v[68:71], v[84:87]", [W[17]]),
         (f"v_mfma_f32_16x16x32_bf16 v[88:91], {vr(VX[0],4)}, v[68:71], v[88:91]", []),
         (f"v_mfma_f32_16x16x32_bf16 v[92:95], {vr(VX[1],4)}, v[68:71], v[92:95]", ["v_rcp_f32 v20, v84", "s_nop 2"])])
    for r in range(88, 92): a(f"v_mul_f32 v{r}, v20, v{r}")
    a("v_pk_mul_f32 v[92:93], v[92:93], v[20:21] op_sel_hi:[1,0]")
    a("v_pk_mul_f32 v[94:95], v[94:95], v[20:21] op_sel_hi:[1,0]")
    for i in range(4): a(f"v_cvt_pk_bf16_f32 v{16+i}, v{88+2*i}, v{89+2*i}")
    if "oexec" in opt: a(f"s_mov_b64 exec, {sr(S_OM,2)}")
    emit((f"ds_write_b128 {vOw}, v[16:19]", "Ow"))
    if "oexec" in opt: a("s_mov_b64 exec, -1")
    stamp()
    a(zero16(64))
    if "z2" not in opt: a(zero16(80))
    for _ in range(geti("xa", 0)): a(zero4(84) if "z2" in opt else zero4(76))
    emit(("w", "Ow"))
    a("s_barrier")
    emit((f"ds_read_b128 v[16:19], {vL16} offset:{L_OS}", "O0"))
    emit((f"ds_read_b128 v[20:23], {vL16} offset:{L_OS+1024}", "O1"))
    if "z3" not in opt: a(zero16(80))
    for _ in range(geti("xb", 0)): a("v_mfma_f32_16x16x16_bf16 v[76:79], v[10:11], v[10:11], 0")
    emit(("w", "O0" if "o01" in opt else "O1"))
    stamp()
    OA = [64 + 4 * T for T in range(8)]
    buf = {k: WB[k] for k in range(9)}
    for k in range(9, 16): buf[k] = WB[k - 9]
    def wo(k):
        T, ks = divmod(k, 2)
        return f"v_smfmac_f32_16x16x64_bf16 {vr(OA[T], 4)}, {vr(16 + 4*ks, 4)}, {vr(buf[k], 8)}, {vIdx}"
    def add(T):
        o = OA[T]; return [f"v_add_f32 v{o}, v{o}, v{o+1}", f"v_add_f32 v{o+2}, v{o+2}, v{o+3}"]
    G = [OA[0], OA[4]]
    def cvt(tau, bb):
        o0, o1 = OA[tau*4 + 2*bb], OA[tau*4 + 2*bb + 1]
        return [f"v_cvt_pk_bf16_f32 v{G[tau]+bb}, v{o0}, v{o1}", f"v_cvt_pk_bf16_f32 v{G[tau]+2+bb}, v{o0+2}, v{o1+2}"]
    tag = lambda tau: [f"v_and_or_b32 v{G[tau]}, v{G[tau]}, -2, s{S_TAG}"]
    stp = lambda tau: [f"buffer_store_dwordx4 {vr(G[tau],4)}, {vPs}, {sr(S_WS,4)}, s{S_PST+tau} offen{st}"]
    fill = {k: [] for k in range(16)}
    if "o01" in opt: fill[0].append(("w", "O1"))
    rest = [rdWo(k, buf[k], h) for k in range(9, 16) for h in range(2)]
    if "wo2" in opt:
        sched_rd = {0: 2, 1: 1, 2: 1, 3: 1, 4: 1, 5: 1, 6: 1, 7: 1, 8: 0, 9: 0, 10: 1, 11: 2, 12: 2}
        waits = {8: 10, 10: 12, 12: 13, 13: 14, 14: 15}
        va = {3: add(0)[:1], 4: add(0)[1:], 5: add(1), 6: cvt(0, 0), 7: tag(0) + add(2)[:1], 8: add(2)[1:], 9: add(3) + cvt(0, 1) + stp(0),
              11: add(4)[:1], 12: add(4)[1:], 13: add(5), 14: cvt(1, 0) + tag(1), 15: add(6)}
    else:
        sched_rd = {0: 2, 1: 2, 2: 2, 3: 1, 4: 1, 5: 1, 6: 1, 7: 1, 8: 1, 9: 1, 10: 1}
        waits = {8: 11, 11: 13, 13: 15}
        va = {3: add(0)[:1], 4: add(0)[1:], 5: add(1), 6: cvt(0, 0), 7: tag(0) + add(2)[:1], 8: add(2)[1:], 9: add(3) + cvt(0, 1), 10: stp(0),
              11: add(4)[:1], 12: add(4)[1:], 13: add(5), 14: cvt(1, 0) + tag(1), 15: add(6)}
    for k, n in sched_rd.items():
        for _ in range(n): fill[k].append(rest.pop(0))
    assert not rest
    for k, fr in waits.items(): fill[k].append(("w", ("W", fr)))
    for k, v in va.items(): fill[k] += v
    SEL, RD = 96, 100
    RS = [(104, 108), (112, 120)]
    fill[15] = [(f"ds_read_b128 {vr(SEL,4)}, {vL16} offset:{L_SEL}", "SEL")] + fill[15] + ["v_mov_b32 v117, -1", f"s_mov_b32 s{S_PC}, 0", "s_nop 2"] + add(7) + cvt(1, 1) + stp(1)
    run([(wo(k), fill[k]) for k in range(16)])
    stamp()
    if "nocomm" in opt:
        a(zero16(64)); fx(); a(zero16(80))
        if stamps:
            a(f"s_cmp_eq_u32 s{S_STEP}, {nsteps-1}")
            a(f"s_cbranch_scc1 {pfx}_end")
        a(f"s_add_u32 s{S_STEP}, s{S_STEP}, 1")
        a("s_nop 7")
        a(f"s_branch {pfx}_gA")
    def ldp(st_):
        for n in range(2): a(f"buffer_load_dwordx4 {vr(RS[st_][n],4)}, {vPl}, {sr(S_WS,4)}, s{S_PLD} offen offset:{1024*n} sc1")
    de = geti("de", 4); dl = geti("dl", 6); d2 = geti("db", 3); d3 = geti("dc", 3)
    NOP = "s_nop 7"
    a(zero16(64))
    fx()
    a(zero16(80))
    a(f"s_cmp_lt_u32 s{S_W}, 2")
    for _ in range(de - 2): a(NOP)
    a(f"s_cbranch_scc1 {pfx}_re")
    for _ in range(dl): a(NOP)
    a.label(f"{pfx}_re")
    ldp(0)
    for _ in range(d2): a(zero16(80))
    ldp(1)
    emit(("w", "SEL"))
    for _ in range(d3): a(zero16(80))
    def fin(st_, nm):
        r0, r1 = RS[st_]
        a.label(f"{pfx}_rc{nm}")
        if "spin" in opt and nm == "A":
            for k in range(geti("sn", 8)):
                a(f"s_getreg_b32 s{S_T0}, hwreg(HW_REG_IB_STS, 0, 4)")
                a(f"s_cmp_le_u32 s{S_T0}, {geti('sv', 3)}")
                a(zero4(92))
                a(f"s_cbranch_scc1 {pfx}_sp")
            a.label(f"{pfx}_sp")
        a("s_waitcnt vmcnt(3)")
        a(f"v_mfma_f32_16x16x32_bf16 {vr(RD,4)}, {vr(SEL,4)}, {vr(r0,4)}, 0")
        a(f"v_xor_b32 v118, s{S_TAG}, v{r0}")
        a("s_waitcnt vmcnt(2)")
        a(f"v_mfma_f32_16x16x32_bf16 v[16:19], {vr(SEL,4)}, {vr(r1,4)}, {vr(RD,4)}")
        a(f"v_xor_b32 v119, s{S_TAG}, v{r1}")
        a(f"v_or_b32 v119, v119, v118")
        a("s_nop 1")
        a(f"v_and_b32 v119, 1, v119")
        a("s_nop 0")
        a(f"v_cmp_ne_u32 vcc, 0, v119")
        a("s_nop 0")
        a("v_add_f32_dpp v16, v16, v16 row_ror:8 row_mask:0xf bank_mask:0xf")
        a("v_add_f32_dpp v17, v17, v17 row_ror:8 row_mask:0xf bank_mask:0xf")
        a("s_nop 0")
        a("v_add_f32_dpp v16, v16, v16 row_ror:4 row_mask:0xf bank_mask:0xf")
        a("v_add_f32_dpp v17, v17, v17 row_ror:4 row_mask:0xf bank_mask:0xf")
        a("v_cvt_pk_bf16_f32 v116, v16, v17")
        a(f"s_cbranch_vccnz {pfx}_rf{nm}")
    fin(0, "A")
    a.label(f"{pfx}_rok")
    stamp()
    if stamps: a(f"s_mov_b32 s{S_STAMP+28}, s{S_PC}")
    a(f"buffer_store_dword v116, {vMp}, {sr(S_WS,4)}, s{S_MWR} offen{st}")
    a(f"buffer_store_dword v117, {vMp}, {sr(S_WS,4)}, s{S_MPO} offen{st}")
    if stamps:
        a(f"s_mov_b32 s{S_STAMP+30}, s{S_STAMP+2*nst[0]}")
    stamp()
    if stamps:
        a(f"s_cmp_eq_u32 s{S_STEP}, {nsteps-1}")
        a(f"s_cbranch_scc1 {pfx}_end")
    ge = geti("ge", 5); g1 = geti("ga", 0); g2 = geti("gb", 3); g3 = geti("gc", 3)
    a(f"s_mov_b32 s{S_MPO}, s{S_MWR}")
    a(f"s_sub_u32 s{S_MRD}, s{S_MWR}, s{S_OWN}")
    a(f"s_cmp_ge_u32 s{S_W}, 2")
    a(f"s_cbranch_scc1 {pfx}_gl")
    for _ in range(ge): a(NOP)
    a.label(f"{pfx}_gl")
    for _ in range(g1): a(NOP)
    a(gather(0))
    if "stept" in opt:
        a("s_memrealtime s[70:71]")
        a(f"s_lshl_b32 s72, s{S_STEP}, 2"); a(f"s_add_u32 s72, s72, {L_JUNK}")
        a("v_mov_b32 v118, s72")
        a("s_waitcnt lgkmcnt(0)")
        a("v_mov_b32 v119, s70")
        a("ds_write_b32 v118, v119")
        g2 -= 1
    a(f"s_add_u32 s{S_MWR}, s{S_MWR}, 8192")
    a(f"s_cmp_ge_u32 s{S_MRD}, {hex(WS_MEM + 2*8192)}")
    a(f"s_cselect_b32 s{S_T0}, {3*8192}, 0")
    a(f"s_sub_u32 s{S_MWR}, s{S_MWR}, s{S_T0}")
    a(f"s_add_u32 s{S_STEP}, s{S_STEP}, 1")
    a(f"s_xor_b32 s{S_TAG}, s{S_TAG}, 1")
    if "mega" in opt:
        if "nofl" not in opt:
            a(f"v_readlane_b32 s{S_HAVE}, {vFl}, 0")
            a(f"v_readlane_b32 s{S_T0}, {vFl}, 2")
        a(f"s_add_u32 s{S_T1}, s{S_STEP}, 2")
        a(f"s_min_u32 s{S_T1}, s{S_T1}, 64")
        if "nofl" not in opt: a(f"s_min_u32 s{S_HAVE}, s{S_HAVE}, s{S_T0}")
        kv_wait(a, f"s{S_T1}", pfx + "_kvw")
        g2 -= 1
    a(f"s_mov_b32 s{S_PC}, 0")
    for _ in range(g2 - 1): a(NOP)
    a(gather(0))
    if "f1s" not in opt:
        for _ in range(g3): a(NOP)
        a(gather(1))
    for _ in range(geti("gw", 0)): a(zero16(96))
    a(f"s_branch {pfx}_gA")
    a.label(f"{pfx}_rfA")
    if "rstat" in opt: a("s_add_u32 s60, s60, 1")
    ldp(0)
    a(f"s_add_u32 s{S_PC}, s{S_PC}, 1")
    fin(1, "B")
    a(f"s_branch {pfx}_rok")
    a.label(f"{pfx}_rfB")
    if "rstat" in opt: a("s_add_u32 s63, s63, 1")
    ldp(1)
    a(f"s_add_u32 s{S_PC}, s{S_PC}, 1")
    a(f"s_cmp_lt_u32 s{S_PC}, s{S_PMAX}")
    a(f"s_cbranch_scc1 {pfx}_rcA")
    a(f"s_mov_b32 s{S_PMAX}, 1")
    a(f"s_branch {pfx}_rok")
    if not stamps:
        a.label(pfx + "_last")
        for x in kvm: a(x)
        early = [m for m in last_ms if any(f", {vr(F[sg],4)}," in m for sg in (1, 2, 4, 6))]
        late = [m for m in last_ms if m not in early]
        for m in early: a(m)
        a("s_waitcnt lgkmcnt(0)")
        for m in late: a(m)
        for x in pk0 + pk1: a(x)
        a("s_nop 1")
        for x in pv0 + pv1: a(x)
    a.label(pfx + "_end")
    a(kvm[0])
    if "stept" in opt:
        a(f"v_lshrrev_b32 v118, 2, {vL16}")
        a(f"ds_read_b32 v119, v118 offset:{L_JUNK}")
        a(f"s_lshl_b32 s72, s{S_H}, 8"); a(f"s_add_u32 s72, s72, {hex(WS_STAMP + 0x20000)}")
        a("s_waitcnt lgkmcnt(0)")
        a(f"buffer_store_dword v119, v118, {sr(S_WS,4)}, s72 offen")
    return nst[0]
```

```python
import sys
from common import *
import rec, pre, gemm
L_BOOT = 163840 - 64

def read_counts(a, vdst="v25", vaddr="v24"):
    a(f"global_load_dword {vdst}, {vaddr}, {sr(S_DBG,2)} sc1")
    a("s_waitcnt vmcnt(0)")

def sum_arrivals(a, vb, dst, tmp):
    a(f"v_readlane_b32 s{dst}, {vb}, {D_OVF}")
    for x in range(8):
        a(f"v_readlane_b32 s{tmp}, {vb}, {0 if x == 0 else 15 + x}")
        a("s_nop 1")
        a(f"s_bcnt1_i32_b32 s{tmp}, s{tmp}")
        a(f"s_add_u32 s{dst}, s{dst}, s{tmp}")

def emit_entry(a, opt):
    a("s_cmp_ge_u32 s2, 256")
    a("s_cbranch_scc1 L_exit")
    a("s_load_dwordx4 s[48:51], s[0:1], 112")
    a(f"s_getreg_b32 s{S_TEAM}, hwreg(HW_REG_XCC_ID)")
    a(f"s_and_b32 s{S_TEAM}, s{S_TEAM}, 7")
    for o in opt:
        if o.startswith("map"):
            word = sum(int(c) << (4 * i) for i, c in enumerate(o[3:]))
            a(f"s_lshl_b32 s16, s{S_TEAM}, 2")
            a(f"s_lshr_b32 s{S_TEAM}, {hex(word)}, s16")
            a(f"s_and_b32 s{S_TEAM}, s{S_TEAM}, 7")
    if "fakexcc" in opt:
        a(f"s_lshr_b32 s{S_TEAM}, s2, 5")
        a("s_and_b32 s16, s2, 7")
        a("s_cmp_eq_u32 s16, 3")
        a(f"s_cselect_b32 s16, 5, s{S_TEAM}")
        a(f"s_mov_b32 s{S_TEAM}, s16")
    if "time" in opt: a("s_memrealtime s[92:93]")
    a("v_lshrrev_b32 v1, 6, v0")
    a(f"s_lshr_b32 s{S_H}, s2, 3")
    a(f"v_readfirstlane_b32 s{S_W}, v1")
    a(f"s_mov_b32 s{S_CLM}, 0")
    a("s_waitcnt lgkmcnt(0)")
    a(f"s_mov_b32 s{S_DBG}, s48")
    a(f"s_mov_b32 s{S_DBG+1}, s49")
    srd(a, S_WS, 50, WS_SIZE)
    if "cpf" in opt:
        a("s_getpc_b64 s[16:17]")
        a("s_and_b32 s16, s16, 0xffffff00")
        a(f"s_lshl_b32 s18, s{S_H}, 12"); a(f"s_lshl_b32 s19, s{S_W}, 10"); a("s_add_u32 s18, s18, s19")
        a("v_and_b32 v123, 7, v0"); a("v_lshlrev_b32 v123, 7, v123"); a("v_add_u32 v123, s18, v123")
        a("v_min_u32 v123, CODE_BYTES, v123")
        a("s_mov_b64 exec, 0xff")
        a("global_load_dword v122, v123, s[16:17]")
        a("s_mov_b64 exec, -1")
    a.label("L_role")

def emit_overflow(a):
    a.label("L_overflow")
    a("s_waitcnt vmcnt(0) lgkmcnt(0)")
    a("s_barrier")
    a("v_mov_b32 v2, 0"); a("v_mov_b32 v3, 1"); a("v_mov_b32 v5, 0")
    a(f"s_cmp_lg_u32 s{S_W}, 0")
    a("s_cbranch_scc1 L_ovw")
    a("s_mov_b64 exec, 1")
    a(f"global_atomic_add v4, v2, v3, {sr(S_DBG,2)} offset:{4*D_OVF} sc0")
    a("s_waitcnt vmcnt(0)")
    a("ds_write_b32 v5, v4")
    a("s_waitcnt lgkmcnt(0)")
    a("s_mov_b64 exec, -1")
    a.label("L_ovw")
    a("s_barrier")
    a("ds_read_b32 v4, v5")
    a("s_waitcnt lgkmcnt(0)")
    a("v_readfirstlane_b32 s18, v4")
    a("s_barrier")
    a("v_and_b32 v24, 31, v0"); a("v_lshlrev_b32 v24, 2, v24")
    a("s_mov_b32 s17, 0")
    a.label("L_ov")
    read_counts(a)
    sum_arrivals(a, "v25", 19, 20)
    a("s_cmp_ge_u32 s19, 256")
    a("s_cbranch_scc1 L_ovok")
    a("s_sleep 32")
    a("s_add_u32 s17, s17, 1")
    a("s_cmp_lt_u32 s17, 50000")
    a("s_cbranch_scc1 L_ov")
    a("s_branch L_exit")
    a.label("L_ovok")
    for x in range(8):
        a(f"v_readlane_b32 s20, v25, {0 if x == 0 else 15 + x}")
        a(f"s_mov_b32 s{S_TEAM}, {x}")
        a("s_nop 1")
        a("s_bcnt0_i32_b32 s19, s20")
        a("s_cmp_lt_u32 s18, s19")
        a("s_cbranch_scc1 L_ovf")
        a("s_sub_u32 s18, s18, s19")
    a("s_branch L_exit")
    a.label("L_ovf")
    a("s_cmp_eq_u32 s18, 0")
    a("s_cbranch_scc1 L_ovg")
    a("s_add_u32 s19, s20, 1")
    a("s_or_b32 s20, s20, s19")
    a("s_sub_u32 s18, s18, 1")
    a("s_branch L_ovf")
    a.label("L_ovg")
    a(f"s_ff0_i32_b32 s{S_H}, s20")
    a(f"s_and_b32 s{S_H}, s{S_H}, 31")
    a("s_branch L_role")

def emit_mode(a, opt, slow_label, va="v24", vb="v25"):
    if "fakexcc" in opt or "slow" in opt:
        a(f"s_branch {slow_label}")
        return
    l = a.uid("md")
    a(f"v_mbcnt_lo_u32_b32 {va}, -1, 0")
    a(f"v_and_b32 {va}, 31, {va}"); a(f"v_lshlrev_b32 {va}, 2, {va}")
    a(f"s_add_u32 s50, s{S_TEAM}, 15")
    a(f"s_cmp_eq_u32 s{S_TEAM}, 0")
    a("s_cselect_b32 s50, 0, s50")
    a("s_mov_b32 s51, 0")
    a.label(l)
    read_counts(a, vb, va)
    a(f"v_readlane_b32 s48, {vb}, s50")
    a("s_nop 1")
    a("s_cmp_eq_u32 s48, -1")
    a(f"s_cbranch_scc1 {l}_ok")
    sum_arrivals(a, vb, 48, 49)
    a("s_cmp_ge_u32 s48, 256")
    a(f"s_cbranch_scc1 {slow_label}")
    a("s_sleep 32")
    a("s_add_u32 s51, s51, 1")
    a("s_cmp_lt_u32 s51, 50000")
    a(f"s_cbranch_scc1 {l}")
    a(f"s_branch {slow_label}")
    a.label(l + "_ok")

def build(opt=()):
    opt = list(opt)
    if not any(o.startswith("map") for o in opt): opt.append("map42106357")
    a = Asm()
    hdr = open("cdna_kernels/" + KNAME + ".s.ref").read().split("\n") if "nohdr" not in opt else []
    for l in hdr:
        if l.startswith(";") and "@launch" not in l: a.raw(l)
        elif not l.startswith(";"): break
    a.raw("; @launch grid=(256,1,1) block=(256,1,1) lds=163840")
    a.raw('.amdgcn_target "amdgcn-amd-amdhsa--gfx950"')
    a.raw(".text")
    a.raw(f".globl {KNAME}_kernel")
    a.raw(".p2align 8")
    a.raw(f".type {KNAME}_kernel,@function")
    a.label(f"{KNAME}_kernel")
    emit_entry(a, opt)
    a(f"s_cmp_lg_u32 s{S_TEAM}, 0")
    a("s_cbranch_scc1 L_notR")
    rec.emit_rec_mega(a, opt)
    a("s_branch L_done")
    a.label("L_notR")
    a(f"s_cmp_ge_u32 s{S_TEAM}, {T0_}")
    a("s_cbranch_scc1 L_T")
    a(f"s_cmp_eq_u32 s{S_TEAM}, 1")
    a("s_cbranch_scc1 L_P")
    gemm.emit_gemm(a, opt)
    if "g2t" in opt:
        if "time" in opt: a("s_memrealtime s[88:89]")
        a("s_barrier")
        a("s_branch L_T")
    else: a("s_branch L_done")
    emit_overflow(a)
    a.label("L_P")
    a(f"s_mov_b32 s16, s{S_H}")
    a.label("L_Ploop")
    pre.emit_pre(a, opt)
    if "w3" in opt:
        a("s_cmp_ge_u32 s16, 32")
        a("s_cbranch_scc1 L_Pnw")
        dbg_wait(a, D_RW, 32, sleep=40, limit=12)
        a.label("L_Pnw")
    a("s_add_u32 s16, s16, 32")
    a("s_cmp_lt_u32 s16, 128")
    a("s_barrier")
    a("s_cbranch_scc1 L_Ploop")
    a("s_waitcnt vmcnt(0)")
    a("s_barrier")
    a(f"s_cmp_lg_u32 s{S_W}, 0")
    a("s_cbranch_scc1 L_done")
    dbg_arrive(a, D_PRE)
    a("s_branch L_done")
    a.label("L_T")
    import post
    post.emit_post(a, opt)
    a.label("L_done")
    if "wbe" in opt:
        a(f"s_or_b32 s48, s{S_W}, s{S_H}")
        a("s_cbranch_scc1 L_nowb")
        a("buffer_wbl2 sc1")
        a.label("L_nowb")
    if "time" in opt and "dbgtime" not in opt:
        a("s_memrealtime s[94:95]")
        a("s_memtime s[100:101]")
        a("s_waitcnt vmcnt(0) lgkmcnt(0)")
        a(f"s_cmp_lg_u32 s{S_W}, 0")
        a("s_cbranch_scc1 L_exit")
        a(f"s_lshl_b32 s48, s{S_TEAM}, 5")
        a(f"s_add_u32 s48, s48, s{S_H}")
        a("s_lshl_b32 s48, s48, 8")
        a(f"s_add_u32 s48, s48, {hex(WS_STAMP)}")
        a("v_mov_b32 v2, 0")
        a("s_mov_b64 exec, 1")
        for i in range(18):
            a(f"v_mov_b32 v3, s{84+i}")
            a(f"buffer_store_dword v3, v2, {sr(S_WS,4)}, s48 offen offset:{4*i}")
        for i in range(8):
            a(f"v_mov_b32 v3, s{76+i}")
            a(f"buffer_store_dword v3, v2, {sr(S_WS,4)}, s48 offen offset:{80+4*i}")
        a("s_mov_b64 exec, -1")
        a("v_mbcnt_lo_u32_b32 v2, -1, 0")
        a("v_lshlrev_b32 v2, 2, v2")
        a("s_mov_b64 exec, 0xffffffff")
        a(f"buffer_store_dword v143, v2, {sr(S_WS,4)}, s48 offen offset:128")
        a("s_waitcnt vmcnt(0)")
    if "dbgtime" in opt:
        a("s_memrealtime s[94:95]"); a("s_memtime s[100:101]")
        a("s_waitcnt vmcnt(0) lgkmcnt(0)")
        a(f"s_or_b32 s48, s{S_W}, s{S_H}")
        a("s_cbranch_scc1 L_exit")
        a("s_mov_b32 s50, 16")
        a(f"s_cmp_eq_u32 s{S_TEAM}, 0")
        a("s_cbranch_scc1 L_dt")
        a("s_mov_b32 s50, 40")
        a(f"s_cmp_lg_u32 s{S_TEAM}, 6")
        a("s_cbranch_scc1 L_exit")
        a.label("L_dt")
        a("v_mov_b32 v2, s50")
        a("s_mov_b64 exec, 1")
        a("s_sub_u32 s84, s84, s92"); a("s_sub_u32 s86, s86, s92"); a("s_sub_u32 s96, s94, s96"); a("s_sub_u32 s94, s94, s92"); a("s_sub_u32 s100, s100, s98")
        for i, r in enumerate((84, 86, 94, 96, 100)):
            a(f"v_mov_b32 v3, s{r}")
            a(f"global_store_dword v2, v3, {sr(S_DBG,2)} offset:{4*i}")
        a("s_waitcnt vmcnt(0)")
    a.label("L_exit")
    a("s_endpgm")
    a.label("L_codeend")
    a.raw(f".set CODE_BYTES, L_codeend - {KNAME}_kernel - 4")
    a.raw('.section .rodata,"a"')
    a.raw(".p2align 6")
    a.raw(f".amdhsa_kernel {KNAME}_kernel")
    for l in ["next_free_vgpr 512", "next_free_sgpr 102", "accum_offset 256", "group_segment_fixed_size 0", "kernarg_size 128",
              "user_sgpr_count 2", "user_sgpr_kernarg_segment_ptr 1", "system_sgpr_workgroup_id_x 1", "float_denorm_mode_32 3"]:
        a.raw("  .amdhsa_" + l)
    a.raw(".end_amdhsa_kernel")
    return a.text()

if __name__ == "__main__":
    out = sys.argv[1]
    t = build(sys.argv[2:])
    open(out, "w").write(t)
    errs = check_hazards(t)
    for e in errs: print("HAZARD", e)
    print("lines", t.count("\n"), "bytes", len(t), "hazards", len(errs))
```

```python
from common import *
from pre import rnd1, rnd2, MASK, S_TID, xsum_g
import math
import common
def tstamp(a, opt, idx):
    if "midst" in opt and idx < 16 and "time" in opt:
        l = a.uid("ts")
        a("s_cselect_b32 s80, 1, 0")
        a(f"s_cmp_ge_u32 s{S_SEG}, 52"); a(f"s_cbranch_scc1 {l}")
        common.tstamp(a, opt, idx, "v47")
        a.label(l)
        a("s_cmp_lg_u32 s80, 0")
    else: common.tstamp(a, opt, idx, "v47")

S_X, S_O = 20, 24
S_SEG, S_TAG, S_PC, S_PMAX, S_SC, S_L2E = 28, 29, 30, 31, 18, 19
S_P1S, S_P1L, S_P1S2 = 52, 53, 54
S_SLOT, S_PSLOT = 55, 56
S_H2B, S_H2O, S_ACTW, S_ACTR = 57, 58, 59, 60
S_KV, S_Q, S_KM, S_KMV, S_ROW, S_OUT, S_FLG, S_HAVE, S_X2R = 61, 62, 63, 64, 65, 66, 67, 68, 69
S_MKV, S_MQ, S_MODE = 72, 73, 74
S_LIM = 64
vL16, vCol, vP, vKw, vKr, vHg, vHw, vHr, vOw, vZero, vQr, vVr, vEw, vEr, vEo = ["v%d" % i for i in range(1, 16)]
MC = 16
BIAS, SEL = 24, 32
vX2g = "v36"
XR = 37
T0, T1, T2 = 38, 39, 40
L_O, L_ST, L_E, L_KV, L_Q, L_K, L_H = 0, 16384, 20480, 32768, 65536, 81920, 98304
FS, RTS = 1088, 17408
WoF = lambda ct, ks, off=0, n=4: ar((ct * 8 + ks) * 4 + off, n)
GF = lambda m, ks, off=0, n=4: ar(128 + (m * 16 + ks) * 4 + off, n)
DF = lambda t, ks, off=0, n=4: vr(144 + (t * 14 + ks) * 4 + off, n)

def wave_sum(a, x, t):
    a("s_nop 1")
    for ror in (1, 2, 4, 8):
        a(f"v_add_f32_dpp v{x}, v{x}, v{x} row_ror:{ror} row_mask:0xf bank_mask:0xf")
        if ror < 8: a("s_nop 1")
    xsum_g(a, x, t)

def emit_post_addr(a, opt=()):
    LE = lambda *x, **k: lane_expr(a, *x, tmp="v47", **k)
    WS = sr(S_WS, 4)
    LE(vL16, "v0", [(0, 6, 4)])
    LE(vCol, "v0", [(6, 2, 8), (2, 2, 6), (5, 1, 5), (0, 2, 3), (4, 1, 2)])
    LE(vP, "v0", [(0, 4, 14), (4, 2, 4)])
    LE(vKw, "v0", [(6, 2, 12), (0, 4, 5), (4, 2, 3)], L_K)
    LE("v48", "v0", [(2, 2, 3)]); a(f"v_xor_b32 {vKw}, {vKw}, v48")
    LE(vKr, "v0", [(6, 2, 12), (0, 6, 3)], L_K)
    LE("v48", "v0", [(4, 2, 3)]); a(f"v_xor_b32 {vKr}, {vKr}, v48")
    LE(vHg, "v0", [(4, 2, 11), (6, 2, 8), (0, 4, 4)])
    LE("v48", "v0", [(6, 2, 2), (2, 2, 0)])
    a(f"v_mul_u32_u24 {vHw}, {FS}, v48")
    a("v_and_b32 v48, 3, v0"); a("v_mul_u32_u24 v48, 272, v48"); a(f"v_add_u32 {vHw}, {vHw}, v48")
    LE("v48", "v0", [(4, 2, 4)], L_H); a(f"v_add_u32 {vHw}, {vHw}, v48")
    a("v_bfe_u32 v48, v0, 4, 2"); a(f"v_mul_u32_u24 {vHr}, 272, v48")
    LE("v48", "v0", [(0, 4, 4)], L_H); a(f"v_add_u32 {vHr}, {vHr}, v48")
    LE(vOw, "v0", [(6, 1, 13), (7, 1, 12), (0, 6, 4)], L_O)
    a(f"v_mov_b32 {vZero}, 0")
    LE(vQr, "v0", [(6, 2, 12), (0, 6, 4)], L_Q)
    LE(vVr, "v0", [(7, 1, 14), (0, 6, 4)], L_KV)
    LE(vEw, "v0", [(6, 2, 11), (0, 6, 4)], L_E)
    LE(vEr, "v0", [(3, 1, 10), (1, 2, 8), (4, 4, 4), (0, 1, 3)], L_E)
    LE(vEo, "v0", [(4, 4, 10), (0, 4, 2)])
    LE(vX2g, "v0", [(4, 4, 11), (0, 4, 2)])
    a(f"s_sub_u32 s50, s{S_TEAM}, {T0_}")
    sexpr(a, S_P1S, [(50, 0, 3, 20), (S_H, 0, 1, 13), (S_W, 1, 1, 12), (S_H, 1, 4, 8), (S_W, 0, 1, 7)], WS_P1)
    a(f"s_add_u32 s{S_P1S2}, s{S_P1S}, {16*16384}")
    sexpr(a, S_P1L, [(50, 0, 3, 20), (S_H, 0, 5, 14), (S_W, 0, 2, 12)], WS_P1)
    sexpr(a, S_H2B, [(50, 0, 3, 18)], WS_H2)
    sexpr(a, S_H2O, [(50, 0, 3, 18), (S_H, 0, 5, 11)], WS_H2)
    sexpr(a, S_X2R, [(50, 0, 3, 18), (S_H, 0, 1, 15), (S_H, 1, 4, 6)], WS_H2 + 1024)
    sexpr(a, S_ACTW, [(50, 0, 3, 19), (S_H, 0, 5, 11), (S_W, 1, 1, 10), (S_W, 0, 1, 3)], WS_ACT)
    a(f"s_and_b32 s48, s{S_H}, 1"); a(f"s_mul_i32 s48, s48, {56*1024}")
    a(f"s_mul_i32 s51, s{S_W}, {14*1024}"); a("s_add_u32 s48, s48, s51")
    sexpr(a, S_ACTR, [(50, 0, 3, 19)], WS_ACT); a(f"s_add_u32 s{S_ACTR}, s{S_ACTR}, s48")

def emit_post_weights(a, opt):
    LE = lambda *x, **k: lane_expr(a, *x, tmp="v47", **k)
    WS = sr(S_WS, 4)
    def geti(p, d):
        for o in opt:
            if o.startswith(p) and o[len(p):].isdigit(): return int(o[len(p):])
        return d
    import mega
    a.c("==== T role: team-buffer init + stationary weights ====")
    a("s_load_dwordx2 s[34:35], s[0:1], 40")
    a("s_load_dwordx4 s[36:39], s[0:1], 64")
    a("s_load_dwordx2 s[40:41], s[0:1], 80")
    emit_post_addr(a, opt)
    LE("v60", "v0", [(3, 3, 10)]); LE("v61", "v0", [(0, 3, 4)]); LE("v62", "v0", [(4, 2, 5)])
    a("v_xor_b32 v62, v61, v62"); a("v_add_u32 v66, v60, v62")
    LE("v67", "v0", [(6, 2, 15), (2, 4, 7), (1, 1, 4), (3, 2, 5), (0, 1, 3)])
    LE("v60", "v0", [(2, 4, 10)]); LE("v62", "v0", [(0, 2, 4)]); LE("v63", "v0", [(4, 1, 5)])
    a("v_xor_b32 v62, v62, v63"); a("v_add_u32 v68, v60, v62")
    LE("v69", "v0", [(6, 2, 15), (2, 4, 6), (1, 1, 4), (4, 1, 5), (0, 1, 3)])
    a("v_xor_b32 v70, 32, v69")
    a("v_bfe_u32 v60, v0, 3, 3"); a("v_mul_u32_u24 v60, 3584, v60")
    a("v_xor_b32 v62, v61, v63"); a("v_add_u32 v71, v60, v62")
    a("v_xor_b32 v62, 64, v62"); a("v_add_u32 v72, v60, v62")
    LE("v60", "v0", [(4, 2, 10), (2, 2, 7), (0, 1, 3)]); LE("v62", "v0", [(6, 2, 5), (1, 1, 4)]); LE("v63", "v0", [(3, 1, 5), (4, 1, 6)])
    a("v_xor_b32 v62, v62, v63"); a("v_add_u32 v73, v60, v62"); a("v_add_u32 v74, 0x10000, v73")
    S_LB, S_WOS, S_DNS, S_GUS = 76, 77, 78, 79
    sexpr(a, S_LB, [(S_W, 0, 2, 15)])
    sexpr(a, S_WOS, [(S_H, 1, 4, 18), (S_H, 0, 1, 9), (S_W, 0, 2, 7)])
    a(f"s_mul_i32 s{S_DNS}, s{S_W}, {448*1024}"); sexpr(a, 48, [(S_H, 1, 4, 6)]); a(f"s_add_u32 s{S_DNS}, s{S_DNS}, s48")
    a(f"s_mul_i32 s{S_GUS}, s{S_W}, {128*3584}"); a(f"s_min_u32 s48, s{S_H}, 27"); a("s_lshl_b32 s48, s48, 7"); a(f"s_add_u32 s{S_GUS}, s{S_GUS}, s48")
    a(f"s_cmp_lg_u32 s{S_CLM}, 0")
    a("s_cbranch_scc1 T_nw")
    for _ in range(geti("ts", 2)): a("s_sleep 64")
    claim(a)
    verify_claim(a, 0, 163840 - 64)
    dbg_wait(a, D_MOD1, 32, "v44", "v45", sleep=40, limit=8)
    a.label("T_nw")
    a("s_waitcnt lgkmcnt(0)")
    tstamp(a, opt, 16)
    q = VmQ(a)
    def batch(tag, ptr, nbytes, sbase, voff, half, idxs, rowbytes):
        srd(a, S_T, ptr, nbytes)
        for n, i in enumerate(idxs):
            a(f"s_add_u32 m0, s{S_LB}, {half * 16384 + n * 1024}")
            a(f"s_add_u32 s48, s{sbase}, {i * rowbytes}")
            a(f"buffer_load_dwordx4 v{voff(i)}, {sr(S_T,4)}, s48 offen lds")
        q.issue(tag, len(idxs))
    wo = lambda h: batch(("wo", h), 34, 4194304, S_WOS, lambda i: 66, h, range(16 * h, 16 * h + 16), 8 * 1024)
    dn = lambda h: batch(("dn", h), 40, 1792 * 1024, S_DNS, lambda i: 68, h, range(16 * h, min(16 * h + 16, 28)), 16 * 1024)
    gu = lambda m: batch(("gu", m), 36 + 2 * m, 512 * 3584, S_GUS, lambda i: 71 + (i & 1), m, range(16), 8 * 3584)
    wo(0); wo(1)
    for h in range(2):
        q.wait(("wo", h))
        for ct in range(4):
            a(f"v_xor_b32 v65, {32 * ct}, v67")
            for ks in range(4 * h, 4 * h + 4):
                for u in range(2):
                    a(f"ds_read_b64_tr_b16 {WoF(ct, ks, 2*u, 2)}, v65 offset:{(32*ks + 16*u) * 128}")
        a("s_waitcnt lgkmcnt(0)")
        dn(h)
    tstamp(a, opt, 17)
    for h in range(2):
        q.wait(("dn", h))
        for t in range(2):
            for ks in range(8 * h, min(8 * h + 8, 14)):
                for u in range(2):
                    a(f"ds_read_b64_tr_b16 {DF(t, ks, 2*u, 2)}, v{69+t} offset:{(32*ks + 16*u) * 64}")
        a("s_waitcnt lgkmcnt(0)")
        gu(h)
    tstamp(a, opt, 18)
    a(f"v_mov_b32 v46, {163840 - 32}")
    a(f"s_cmp_lg_u32 s{S_W}, 0")
    a("s_cbranch_scc1 T_mdw")
    a(f"s_mov_b32 s{S_MODE}, 1")
    mega.emit_mode(a, opt, "T_md1", "v44", "v45")
    a(f"s_mov_b32 s{S_MODE}, 0")
    a.label("T_md1")
    a(f"v_mov_b32 v45, s{S_MODE}")
    a("ds_write_b32 v46, v45")
    a.label("T_mdw")
    a("s_waitcnt vmcnt(0) lgkmcnt(0)")
    a("s_barrier")
    tstamp(a, opt, 19)
    a("ds_read_b32 v45, v46")
    a("s_waitcnt lgkmcnt(0)")
    a(f"v_readfirstlane_b32 s{S_MODE}, v45")
    a("s_nop 3")
    a(f"s_cmp_lg_u32 s{S_MODE}, 0")
    a("s_cbranch_scc1 T_init1")
    for mode, st in ((0, ""), (1, " sc1")):
        a.label(f"T_init{mode}")
        for i in range(2): a(f"v_mov_b32 v{48+i}, -1")
        for i in range(4): a(f"v_mov_b32 v{52+i}, 0")
        for k in range(4):
            a(f"buffer_store_dwordx4 v[52:55], {vL16}, {WS}, s{S_P1L} offen offset:{1024*k}{st}")
        for sl in range(3):
            a(f"s_add_u32 s48, s{S_H2O}, {sl*65536}")
            a(f"buffer_store_dword v48, {vCol}, {WS}, s48 offen{st}")
            a(f"buffer_store_dword v48, {vCol}, {WS}, s48 offen offset:1024{st}")
        a(f"s_cmp_ge_u32 s{S_H}, 28")
        a(f"s_cbranch_scc1 T_nopa{mode}")
        for sl in range(3):
            for rt in range(2):
                a(f"s_add_u32 s48, s{S_ACTW}, {sl*131072 + rt*56*1024}")
                a(f"buffer_store_dwordx2 v[48:49], {vL16}, {WS}, s48 offen{st}")
        a.label(f"T_nopa{mode}")
        if mode == 0: a("s_branch T_initd")
    a.label("T_initd")
    for m in range(2):
        for ks in range(16):
            for u in range(2):
                off = ((ks // 4) % 2) * 32768 + m * 16384 + (32 * (ks % 4) + 4 * u) * 128
                a(f"ds_read_b64_tr_b16 {GF(m, ks, 2*u, 2)}, v{73 + ks // 8} offset:{off}")
    a("s_waitcnt vmcnt(0) lgkmcnt(0)")
    a("s_barrier")
    a(f"s_cmp_lg_u32 s{S_W}, 0")
    a("s_cbranch_scc1 T_noarr")
    a(f"s_lshl_b32 s50, s{S_TEAM}, 2")
    dbg_arrive(a, D_INIT - T0_, "v44", "v45", soff=50)
    a.label("T_noarr")

def emit_post_final(a, opt):
    LE = lambda *x, **k: lane_expr(a, *x, tmp="v47", **k)
    WS = sr(S_WS, 4)
    a("s_load_dwordx2 s[32:33], s[0:1], 0")
    a("s_load_dwordx2 s[42:43], s[0:1], 104")
    dbg_wait(a, D_MOD2, 32, "v44", "v45", sleep=32)
    a(f"s_mov_b32 s48, {hex(WS_MOD + 2048)}")
    for i, k in enumerate((0, 2, 1)):
        a(f"buffer_load_dword v{56+i}, {vCol}, {WS}, s48 offen offset:{1024*k} sc1")
    LE("v60", "v0", [(0, 4, 2)])
    sexpr(a, 48, [(S_H, 1, 4, 6)], WS_MOD + 5 * 1024)
    a(f"buffer_load_dword v59, v60, {WS}, s48 offen sc1")
    a("s_waitcnt vmcnt(0) lgkmcnt(0)")
    for i in range(4):
        a(f"v_lshlrev_b32 v{MC+2*i}, 16, v{56+i}")
        a(f"v_and_b32 v{MC+2*i+1}, s{MASK}, v{56+i}")
    a(f"v_add_f32 v{MC+2}, 1.0, v{MC+2}"); a(f"v_add_f32 v{MC+3}, 1.0, v{MC+3}")
    rnd2(a, MC + 2, MC + 3, 47)
    srd(a, S_X, 32, 2048 * 1024)
    srd(a, S_O, 42, 2048 * 1024)
    a("v_and_b32 v60, 3, v0"); a("v_bfe_u32 v61, v0, 2, 2")
    a("v_mov_b32 v62, 0x3f80"); a("v_mov_b32 v63, 0x3f800000")
    a("v_cmp_eq_u32 vcc, 1, v60"); a("s_nop 1"); a("v_cndmask_b32 v62, v62, v63, vcc")
    a("v_cmp_gt_u32 vcc, 2, v60"); a("s_nop 1"); a("v_cndmask_b32 v62, 0, v62, vcc")
    for d in range(4):
        a(f"v_cmp_eq_u32 vcc, {d}, v61"); a("s_nop 1"); a(f"v_cndmask_b32 v{SEL+d}, 0, v62, vcc")
    LE("v60", "v0", [(6, 1, 4), (0, 4, 0)])
    LE("v61", "v0", [(4, 2, 2)])
    a(f"v_mov_b32 v63, {f32bits(-1e30)}")
    for t in range(2):
        for r in range(4):
            a(f"v_add_u32 v62, {16*t + r}, v61")
            a("v_cmp_gt_u32 vcc, v62, v60"); a("s_nop 1")
            a(f"v_cndmask_b32 v{BIAS+4*t+r}, 0, v63, vcc")
    a(f"s_sub_u32 s{S_SEG}, s{S_TEAM}, {T0_}")
    a(f"s_mov_b32 s{S_LIM}, {62 if 'g2t' in opt else 64}")
    if "g2t" in opt:
        a(f"s_add_u32 s48, s{S_TEAM}, 60")
        a(f"s_cmp_lt_u32 s{S_TEAM}, {T0_}")
        a(f"s_cselect_b32 s{S_SEG}, s48, s{S_SEG}")
        a(f"s_cselect_b32 s{S_LIM}, 64, s{S_LIM}")
    sexpr(a, 50, [(S_H, 1, 4, 1), (S_W, 1, 1, 0)])
    a(f"s_mul_i32 s{S_KV}, s50, {HSTR}")
    sexpr(a, 48, [(S_SEG, 0, 6, 14), (S_W, 0, 1, 13)], WS_KV); a(f"s_add_u32 s{S_KV}, s{S_KV}, s48")
    a(f"s_mul_i32 s{S_Q}, s50, {QSTR}")
    sexpr(a, 48, [(S_SEG, 0, 6, 13), (S_W, 0, 1, 12)], WS_QX); a(f"s_add_u32 s{S_Q}, s{S_Q}, s48")
    sexpr(a, S_MKV, [(S_W, 0, 2, 13)], L_KV)
    sexpr(a, S_MQ, [(S_W, 0, 2, 12)], L_Q)
    a(f"s_mul_i32 s{S_KM}, s50, {MSTR}")
    sexpr(a, 48, [(S_SEG, 0, 6, 12)], WS_KM); a(f"s_add_u32 s{S_KM}, s{S_KM}, s48")
    sexpr(a, S_FLG, [(50, 0, 5, 7)], WS_FLAG)
    sexpr(a, S_ROW, [(S_SEG, 0, 6, 15), (S_H, 0, 5, 10)])
    sexpr(a, S_OUT, [(S_SEG, 0, 6, 15), (S_H, 0, 1, 14), (S_H, 1, 4, 6)])
    a(f"s_mov_b32 s{S_HAVE}, 0")
    a(f"s_mov_b32 s{S_TAG}, 1")
    a(f"s_mov_b32 s{S_SLOT}, 0")
    a(f"s_mov_b32 s{S_PSLOT}, 2")
    a(f"s_mov_b32 s{S_PMAX}, 100000")
    a(f"s_mov_b32 s{S_SC}, {f32bits(128 ** -0.5)}")
    a(f"s_mov_b32 s{S_L2E}, {f32bits(math.log2(math.e))}")
    a(f"s_lshl_b32 s50, s{S_TEAM}, 2")
    dbg_wait(a, D_INIT - T0_, 32, "v44", "v45", soff=50, sleep=24)

def poll(a, name, loads, check, sleep=3):
    a(f"s_mov_b32 s{S_PC}, 0")
    a.label(name)
    loads()
    check()
    a(f"s_cbranch_vccz {name}_ok")
    a(f"s_sleep {sleep}")
    a(f"s_add_u32 s{S_PC}, s{S_PC}, 1")
    a(f"s_cmp_lt_u32 s{S_PC}, s{S_PMAX}")
    a(f"s_cbranch_scc1 {name}")
    a(f"s_mov_b32 s{S_PMAX}, 1")
    a.label(name + "_ok")

def pf_list():
    WS = sr(S_WS, 4)
    L = []
    for half in range(2):
        for i in range(4):
            L.append(([f"s_add_u32 m0, s{S_MKV}, {half*4096}", f"s_add_u32 s48, s{S_KV}, {half*4096}"] if i == 0 else []) +
                     [f"buffer_load_dwordx4 {vL16}, {WS}, s48 offen offset:{1024*i} sc1 lds"])
    for i in range(4):
        L.append(([f"s_mov_b32 m0, s{S_MQ}", "s_nop 0"] if i == 0 else []) + [f"buffer_load_dwordx4 {vL16}, {WS}, s{S_Q} offen offset:{1024*i} sc1 lds"])
    L.append([f"buffer_load_dword v{XR}, {vCol}, {sr(S_X,4)}, s{S_ROW} offen", f"s_add_u32 s{S_KV}, s{S_KV}, {NT*16384}",
              f"s_add_u32 s{S_Q}, s{S_Q}, {NT*8192}", f"s_add_u32 s{S_ROW}, s{S_ROW}, {NT*32768}"])
    return L

def prefetch(a, name, segreg, body=True):
    WS = sr(S_WS, 4)
    a(f"s_cmp_ge_u32 s{segreg}, s{S_LIM}")
    a(f"s_cbranch_scc1 {name}_skip")
    a(f"s_cmp_gt_u32 s{S_HAVE}, s{segreg}")
    a(f"s_cbranch_scc1 {name}_fok")
    a(f"s_mov_b32 s{S_PC}, 0")
    a.label(name + "_fl")
    a("s_mov_b64 exec, 3")
    a(f"buffer_load_dword v45, {vL16}, {WS}, s{S_FLG} offen sc1")
    a("s_mov_b64 exec, -1")
    a("s_waitcnt vmcnt(0)")
    a(f"v_readlane_b32 s{S_HAVE}, v45, 0"); a("v_readlane_b32 s48, v45, 1")
    a("s_nop 1")
    a(f"s_min_u32 s{S_HAVE}, s{S_HAVE}, s48")
    a(f"s_cmp_gt_u32 s{S_HAVE}, s{segreg}")
    a(f"s_cbranch_scc1 {name}_fok")
    a("s_sleep 8")
    a(f"s_add_u32 s{S_PC}, s{S_PC}, 1")
    a(f"s_cmp_lt_u32 s{S_PC}, s{S_PMAX}")
    a(f"s_cbranch_scc1 {name}_fl")
    a(f"s_mov_b32 s{S_PMAX}, 1")
    a.label(name + "_fok")
    if not body: return
    for g in pf_list():
        for x in g: a(x)
    a.label(name + "_skip")

def emit_post_loop(a, fast, pfx, opt):
    def geti(p, d):
        for o in opt:
            if o.startswith(p) and o[len(p):].isdigit(): return int(o[len(p):])
        return d
    st = "" if fast else " sc1"
    WS = sr(S_WS, 4)
    QF, KX, VX, KF, SS, KMR = 48, 64, 64, 96, 112, 124
    prefetch(a, pfx + "_pf0", S_SEG)
    if "g2t" in opt:
        a(f"s_cmp_ge_u32 s{S_TEAM}, {T0_}")
        a(f"s_cselect_b32 s48, 1, s{S_W}")
        a("s_cmp_lg_u32 s48, 0")
        a(f"s_cbranch_scc1 {pfx}_lw_ok")
        a(f"s_sub_u32 s49, s{S_KM}, {2*4096}")
        a(f"s_mov_b32 s{S_PC}, 0")
        a("s_mov_b64 exec, 1")
        a.label(pfx + "_lw")
        a(f"buffer_load_dword v45, {vL16}, {WS}, s49 offen sc1")
        a("s_waitcnt vmcnt(0)")
        a("v_readfirstlane_b32 s48, v45")
        a("s_cmp_lg_u32 s48, -1")
        a(f"s_cbranch_scc1 {pfx}_lw_x")
        a("s_sleep 16")
        a(f"s_add_u32 s{S_PC}, s{S_PC}, 1")
        a(f"s_cmp_lt_u32 s{S_PC}, 20000")
        a(f"s_cbranch_scc1 {pfx}_lw")
        a.label(pfx + "_lw_x")
        a("s_mov_b64 exec, -1")
        a.label(pfx + "_lw_ok")
    a("s_waitcnt vmcnt(0)")
    a("s_barrier")
    a.raw(".p2align 6")
    a.label(pfx + "_loop")
    tstamp(a, opt, 0)
    def ldkm():
        for i in range(4): a(f"buffer_load_dwordx4 {vr(KMR+4*i,4)}, {vL16}, {WS}, s{S_KM} offen offset:{1024*i} sc1")
    if "wbl" in opt:
        a(f"s_cmp_lt_u32 s{S_SEG}, {64-NT}")
        a(f"s_cselect_b32 s48, 1, s{S_W}")
        a(f"s_or_b32 s48, s48, s{S_H}")
        a(f"s_cbranch_scc1 {pfx}_nwb")
        a("buffer_wbl2 sc1")
        a.label(pfx + "_nwb")
    ldkm()
    for ks in range(4):
        a(f"ds_read_b128 {vr(QF+4*ks,4)}, {vQr} offset:{1024*ks}")
        for t in range(2):
            i = t * 4 + ks
            a(f"ds_read_b128 {vr(KX+4*i,4)}, {vVr} offset:{(i//2)*4096 + (i%2)*1024}")
    for ks in range(4):
        a(f"s_waitcnt lgkmcnt({9-3*ks})")
        for t in range(2):
            d = vr(SS + 4 * t, 4)
            a(f"v_mfma_f32_16x16x32_bf16 {d}, {vr(KX+4*(t*4+ks),4)}, {vr(QF+4*ks,4)}, {d if ks else vr(BIAS+4*t,4)}")
    for i in range(8):
        a(f"ds_read_b128 {vr(VX+4*i,4)}, {vVr} offset:{(i//2)*4096 + 2048 + (i%2)*1024}")
    def scale(regs):
        for i in range(0, len(regs), 2): rnd2(a, regs[i], regs[i+1], T2)
        for r in regs: a(f"v_mul_f32 v{r}, s{S_SC}, v{r}")
        for i in range(0, len(regs), 2): rnd2(a, regs[i], regs[i+1], T2)
    scale(list(range(SS, SS + 8)))
    MX, LX = 41, 46
    a(f"v_max3_f32 v{MX}, v{SS}, v{SS+1}, v{SS+2}"); a(f"v_max3_f32 v{T1}, v{SS+3}, v{SS+4}, v{SS+5}")
    a(f"v_max3_f32 v{MX}, v{MX}, v{SS+6}, v{SS+7}"); a(f"v_max_f32 v{MX}, v{MX}, v{T1}")
    xsum_g(a, MX, T1, "v_max_f32")
    a(f"v_mul_f32 v{T0}, s{S_L2E}, v{MX}")
    for r in range(8): a(f"v_fma_f32 v{SS+r}, v{SS+r}, s{S_L2E}, -v{T0}")
    for r in range(8): a(f"v_exp_f32 v{SS+r}, v{SS+r}")
    a(f"v_add_f32 v{LX}, v{SS}, v{SS+1}"); a(f"v_add_f32 v{T0}, v{SS+2}, v{SS+3}"); a(f"v_add_f32 v{T1}, v{SS+4}, v{SS+5}")
    a(f"v_add_f32 v{T2}, v{SS+6}, v{SS+7}"); a(f"v_add_f32 v{LX}, v{LX}, v{T0}"); a(f"v_add_f32 v{T1}, v{T1}, v{T2}")
    a(f"v_add_f32 v{LX}, v{LX}, v{T1}")
    PX, PM0, OC = 140, 44, 96
    a(f"v_mov_b32 v{PM0+1}, 0")
    tstamp(a, opt, 1)
    a(f"s_mov_b32 s{S_PC}, 0")
    a.label(pfx + "_km")
    a("s_waitcnt vmcnt(0)")
    a(f"v_max3_u32 v{T0}, v{KMR}, v{KMR+4}, v{KMR+8}")
    a(f"v_max_u32 v{T0}, v{T0}, v{KMR+12}")
    a(f"v_cmp_eq_u32 vcc, -1, v{T0}")
    for i in range(4): a(f"ds_write2st64_b32 {vKw}, v{KMR+4*i+1}, v{KMR+4*i+3} offset0:{4*i} offset1:{4*i+2}")
    a(f"s_cbranch_vccz {pfx}_km_ok")
    if "lp" in opt:
        a(f"v_lshlrev_b32 v{T1}, 6, {vL16}")
        a("s_mov_b64 exec, 15")
        a.label(pfx + "_kl")
        a(f"s_sleep {geti('tk', 3)}")
        a(f"buffer_load_dword v{T0}, v{T1}, {WS}, s{S_KM} offen offset:1008 sc1")
        a(f"s_add_u32 s{S_PC}, s{S_PC}, 1")
        a("s_waitcnt vmcnt(0)")
        a(f"v_cmp_eq_u32 vcc, -1, v{T0}")
        a(f"s_cbranch_vccz {pfx}_kl_x")
        a(f"s_cmp_lt_u32 s{S_PC}, s{S_PMAX}")
        a(f"s_cbranch_scc1 {pfx}_kl")
        a.label(pfx + "_kl_x")
        a("s_mov_b64 exec, -1")
    else:
        a(f"s_sleep {geti('tk', 3)}")
    ldkm()
    a(f"s_add_u32 s{S_PC}, s{S_PC}, 1")
    a(f"s_cmp_lt_u32 s{S_PC}, s{S_PMAX}")
    a(f"s_cbranch_scc1 {pfx}_km")
    a(f"s_mov_b32 s{S_PMAX}, 1")
    a("s_waitcnt vmcnt(0)")
    a.label(pfx + "_km_ok")
    tstamp(a, opt, 2)
    for ks in range(4):
        for u in range(2):
            a(f"ds_read_b64_tr_b16 {vr(KF+4*ks+2*u,2)}, {vKr} offset:{1024*ks+512*u}")
    for ks in range(4):
        a(f"s_waitcnt lgkmcnt({6-2*ks})")
        d = vr(SS + 8, 4)
        a(f"v_mfma_f32_16x16x32_bf16 {d}, {vr(KF+4*ks,4)}, {vr(QF+4*ks,4)}, {d if ks else 0}")
    a("s_nop 7")
    scale([SS + 8, SS + 9])
    a(f"v_max3_f32 v{T0}, v{MX}, v{SS+8}, v{SS+9}")
    xsum_g(a, T0, T1, "v_max_f32")
    a(f"v_mul_f32 v{T0}, s{S_L2E}, v{T0}")
    a(f"v_fma_f32 v{MX}, v{MX}, s{S_L2E}, -v{T0}")
    for r in (8, 9): a(f"v_fma_f32 v{SS+r}, v{SS+r}, s{S_L2E}, -v{T0}")
    a(f"v_exp_f32 v{MX}, v{MX}")
    for r in (8, 9): a(f"v_exp_f32 v{SS+r}, v{SS+r}")
    a(f"v_fma_f32 v{LX}, v{LX}, v{MX}, v{SS+8}")
    a(f"v_add_f32 v{LX}, v{LX}, v{SS+9}")
    xsum_g(a, LX, T1)
    a(f"v_rcp_f32 v{LX}, v{LX}")
    a("s_nop 0")
    a(f"v_mul_f32 v42, v{LX}, v{MX}")
    a(f"v_pk_mul_f32 {vr(SS+8,2)}, {vr(SS+8,2)}, {vr(LX,2)} op_sel_hi:[1,0]")
    for r in range(0, 8, 2): a(f"v_pk_mul_f32 {vr(SS+r,2)}, {vr(SS+r,2)}, v[42:43] op_sel_hi:[1,0]")
    a(f"v_cvt_pk_bf16_f32 v{PM0}, v{SS+8}, v{SS+9}")
    for i in range(4): a(f"v_cvt_pk_bf16_f32 v{PX+i}, v{SS+2*i}, v{SS+2*i+1}")
    oc = lambda i: (96 + 4 * i) if i < 4 else (48 + 4 * (i - 4))
    def pk(i2):
        b = oc(2 * i2)
        return [f"v_cvt_pk_bf16_f32 v{SS+4*(i2%2)+k}, v{b+2*k}, v{b+2*k+1}" for k in range(4)] + [f"ds_write_b128 {vOw}, {vr(SS+4*(i2%2),4)} offset:{1024*i2}"]
    for i in range(8):
        a(f"v_mfma_f32_16x16x16_bf16 {vr(oc(i),4)}, {vr(KMR+2*i,2)}, {vr(PM0,2)}, 0")
    for i in range(8):
        a(f"v_mfma_f32_16x16x32_bf16 {vr(oc(i),4)}, {vr(VX+4*i,4)}, {vr(PX,4)}, {vr(oc(i),4)}")
        if i in (3, 5, 7):
            for x in pk((i - 3) // 2): a(x)
    a("s_nop 3")
    for x in pk(3): a(x)
    a("s_waitcnt lgkmcnt(0)"); a("s_barrier")
    OF = 48
    for i in range(16): a(f"ds_read_b128 {vr(OF+4*i,4)}, {vL16} offset:{L_O+1024*i}")
    tstamp(a, opt, 3)
    jobs = [(cq, rt) for rt in range(2) for cq in range(2)]
    def epi(n):
        cq, rt = jobs[n]; ac = 112 + (n % 2) * 8; g = 128 + (n % 2) * 4
        return [f"v_cvt_pk_bf16_f32 v{g+i}, v{ac+2*i}, v{ac+2*i+1}" for i in range(4)] + [f"v_and_or_b32 v{g}, v{g}, -2, s{S_TAG}",
                f"buffer_store_dwordx4 {vr(g,4)}, {vP}, {WS}, s{(S_P1S, S_P1S2)[rt]} offen offset:{64*cq}{st}"]
    for n, (cq, rt) in enumerate(jobs):
        ac = 112 + (n % 2) * 8
        e = epi(n - 1) if n else []
        k = 0
        for ks in range(8):
            if n == 0: a(f"s_waitcnt lgkmcnt({15-ks})")
            if n == 2 and ks == 0: a("s_waitcnt lgkmcnt(0)")
            for u in range(2):
                d = vr(ac + 4 * u, 4)
                a(f"v_mfma_f32_16x16x32_bf16 {d}, {WoF(2*cq+u, ks)}, {vr(OF+4*(rt*8+ks),4)}, {d if ks else 0}")
                k += 1
                if k >= 2:
                    for x in e[2*(k-2):2*(k-1)]: a(x)
    a("s_nop 7")
    for x in epi(3): a(x)
    tstamp(a, opt, 4)
    if geti("t1", 3): a(f"s_sleep {geti('t1', 3)}")
    R = 48
    def ld():
        for i in range(4):
            a(f"buffer_load_dwordx4 {vr(R+4*i,4)}, {vL16}, {WS}, s{S_P1L} offen offset:{1024*i} sc1")
    def ck():
        for i in range(4):
            a(f"s_waitcnt vmcnt({3-i})")
            a(f"v_mfma_f32_16x16x32_bf16 v[112:115], {vr(SEL,4)}, {vr(R+4*i,4)}, {'v[112:115]' if i else 0}")
            a(f"v_xor_b32 v{T1 if i else T0}, s{S_TAG}, v{R+4*i}")
            if i: a(f"v_or_b32 v{T0}, v{T0}, v{T1}")
        a(f"v_and_b32 v{T0}, 1, v{T0}")
        a(f"v_cmp_ne_u32 vcc, 0, v{T0}")
        a(f"v_lshlrev_b32 v116, 16, v{XR}"); a(f"v_and_b32 v117, s{MASK}, v{XR}")
        a(f"s_lshl_b32 s48, s{S_W}, 3"); a("v_mov_b32 v43, s48")
    poll(a, pfx + "_r1", ld, ck, sleep=1)
    tstamp(a, opt, 5)
    rnd2(a, 112, 113, T0)
    a(f"v_mul_f32 v112, v{MC}, v112"); a(f"v_mul_f32 v113, v{MC+1}, v113")
    rnd2(a, 112, 113, T0)
    a("v_add_f32 v116, v116, v112"); a("v_add_f32 v117, v117, v113")
    rnd2(a, 116, 117, 118)
    a(f"s_lshl_b32 s49, s{S_SLOT}, 16"); a(f"s_add_u32 s50, s{S_H2O}, s49")
    a(f"buffer_store_dword v118, {vCol}, {WS}, s50 offen offset:1024{st}")
    a("v_add_f32 v120, v116, v117")
    wave_sum(a, 120, T1)
    a(f"v_mul_f32 v120, {f32bits(1/128)}, v120")
    a("v_sub_f32 v112, v116, v120"); a("v_sub_f32 v113, v117, v120")
    a("v_mul_f32 v121, v112, v112"); a("v_fmac_f32 v121, v113, v113")
    wave_sum(a, 121, T1)
    a(f"ds_write_b64 v43, v[120:121] offset:{L_ST}")
    a("s_waitcnt lgkmcnt(0)"); a("s_barrier")
    a(f"ds_read_b128 v[124:127], {vZero} offset:{L_ST}")
    a(f"ds_read_b128 v[128:131], {vZero} offset:{L_ST+16}")
    a("s_waitcnt lgkmcnt(0)")
    a("v_add_f32 v120, v124, v126"); a("v_add_f32 v121, v128, v130"); a("v_add_f32 v120, v120, v121")
    a("v_mul_f32 v120, 0.25, v120")
    a("v_add_f32 v122, v125, v127"); a("v_add_f32 v123, v129, v131"); a("v_add_f32 v122, v122, v123")
    for r in (124, 126, 128, 130): a(f"v_sub_f32 v{r}, v{r}, v120")
    a("v_mul_f32 v123, v124, v124")
    for r in (126, 128, 130): a(f"v_fmac_f32 v123, v{r}, v{r}")
    a(f"v_mul_f32 v122, {f32bits(1/512)}, v122")
    a("v_fmac_f32 v122, 0.25, v123")
    rnd1(a, 120); rnd1(a, 122)
    a(f"v_add_f32 v122, {f32bits(1e-5)}, v122"); rnd1(a, 122)
    a("v_sqrt_f32 v122, v122")
    a("v_sub_f32 v112, v116, v120"); a("v_sub_f32 v113, v117, v120")
    rnd1(a, 122)
    a("v_rcp_f32 v122, v122")
    rnd2(a, 112, 113, T0)
    a("v_mul_f32 v112, v112, v122"); a("v_mul_f32 v113, v113, v122")
    rnd2(a, 112, 113, T0)
    a(f"v_mul_f32 v112, v112, v{MC+2}"); a(f"v_mul_f32 v113, v113, v{MC+3}")
    rnd2(a, 112, 113, T0)
    a(f"v_add_f32 v112, v112, v{MC+4}"); a(f"v_add_f32 v113, v113, v{MC+5}")
    a(f"v_cvt_pk_bf16_f32 v{T0}, v112, v113")
    a(f"buffer_store_dword v{T0}, {vCol}, {WS}, s50 offen{st}")
    tstamp(a, opt, 6)
    a(f"s_lshl_b32 s48, s{S_PSLOT}, 16"); a(f"s_add_u32 s48, s{S_H2O}, s48")
    a("v_mov_b32 v42, -1"); a("v_mov_b32 v43, -1")
    a(f"buffer_store_dword v42, {vCol}, {WS}, s48 offen{st}")
    a(f"buffer_store_dword v42, {vCol}, {WS}, s48 offen offset:1024{st}")
    a(f"s_add_u32 s51, s{S_SEG}, {NT}")
    a(f"s_cmp_ge_u32 s{S_H}, 28")
    a(f"s_cbranch_scc1 {pfx}_noffn")
    HR = 48
    a(f"s_add_u32 s50, s{S_H2B}, s49")
    def ld():
        for i in range(8):
            a(f"s_add_u32 s48, s50, {i*8192}")
            a(f"buffer_load_dwordx4 {vr(HR+4*i,4)}, {vHg}, {WS}, s48 offen sc1")
    def ck():
        for i in range(8):
            a(f"s_waitcnt vmcnt({7-i})")
            a(f"ds_write_b128 {vHw}, {vr(HR+4*i,4)} offset:{(i//4)*RTS + (i%4)*64}")
            if i: a(f"v_max_u32 v{T0}, v{T0 if i > 1 else HR}, v{HR+4*i}")
        a(f"v_cmp_eq_u32 vcc, -1, v{T0}")
    if geti("t2", 2): a(f"s_sleep {geti('t2', 2)}")
    poll(a, pfx + "_h2", ld, ck, sleep=2)
    tstamp(a, opt, 7)
    a("s_waitcnt lgkmcnt(0)"); a("s_barrier")
    HB = lambda rt, ks: 80 + ((ks % 4) * 2 + rt) * 4
    lq0 = LQ()
    def rd(lq, ks):
        for rt in range(2):
            a(f"ds_read_b128 {vr(HB(rt, ks),4)}, {vHr} offset:{rt*RTS + ks*FS}"); lq.issue(ks)
    for ks in range(3): rd(lq0, ks)
    prefetch(a, pfx + "_pf1", 51, body=False)
    for withpf in (True, False):
        lq = LQ(); lq.q = list(lq0.q)
        pl = pf_list() if withpf else []
        for ks in range(16):
            a(lq.wait(ks))
            n = 0
            for rt in range(2):
                for m in range(2):
                    d = vr(112 + (rt * 2 + m) * 4, 4)
                    a(f"v_mfma_f32_16x16x32_bf16 {d}, {GF(m, ks)}, {vr(HB(rt, ks),4)}, {d if ks else 0}")
                    if n == 0 and ks + 3 < 16: rd(lq, ks + 3)
                    if n == 2 and pl:
                        for x in pl.pop(0): a(x)
                    n += 1
        if withpf:
            a(f"s_branch {pfx}_gud")
            a.label(pfx + "_pf1_skip")
    a.label(pfx + "_gud")
    a(f"s_lshl_b32 s48, s{S_SLOT}, 17"); a(f"s_add_u32 s48, s{S_ACTW}, s48"); a(f"s_add_u32 s50, s48, {56*1024}")
    a("s_nop 0")
    for rt in range(2):
        g0 = 112 + rt * 8; u0 = g0 + 4
        for j in (0, 2): rnd2(a, g0 + j, g0 + j + 1, T0)
        for j in (0, 2): rnd2(a, u0 + j, u0 + j + 1, T0)
        for j in range(4): a(f"v_mul_f32 v{g0+j}, v{g0+j}, v{u0+j}")
        a(f"v_cvt_pk_bf16_f32 v{128+2*rt}, v{g0}, v{g0+1}"); a(f"v_cvt_pk_bf16_f32 v{129+2*rt}, v{g0+2}, v{g0+3}")
        a(f"buffer_store_dwordx2 {vr(128+2*rt,2)}, {vL16}, {WS}, s{(48, 50)[rt]} offen{st}")
    a(f"s_lshl_b32 s48, s{S_PSLOT}, 17"); a(f"s_add_u32 s48, s{S_ACTW}, s48"); a(f"s_add_u32 s50, s48, {56*1024}")
    a(f"buffer_store_dwordx2 v[42:43], {vL16}, {WS}, s48 offen{st}")
    a(f"buffer_store_dwordx2 v[42:43], {vL16}, {WS}, s50 offen{st}")
    if geti("t3", 2): a(f"s_sleep {geti('t3', 2)}")
    a(f"s_branch {pfx}_E")
    a.label(pfx + "_noffn")
    prefetch(a, pfx + "_pf2", 51)
    a("s_sleep 32")
    a.label(pfx + "_E")
    tstamp(a, opt, 8)
    AR = 48
    a(f"s_lshl_b32 s50, s{S_SLOT}, 17"); a(f"s_add_u32 s50, s{S_ACTR}, s50")
    a(f"s_lshl_b32 s49, s{S_SLOT}, 16"); a(f"s_add_u32 s49, s{S_X2R}, s49")
    def ld():
        a(f"buffer_load_dword v41, {vX2g}, {WS}, s49 offen sc1")
        for i in range(14):
            if i % 4 == 0: a(f"s_add_u32 s48, s50, {(i//4)*4096}")
            a(f"buffer_load_dwordx4 {vr(AR+4*i,4)}, {vL16}, {WS}, s48 offen offset:{1024*(i%4)} sc1")
    def ck():
        for i in range(14):
            a(f"s_waitcnt vmcnt({13-i})")
            for t in range(2):
                d = vr(112 + 4 * t, 4)
                a(f"v_mfma_f32_16x16x32_bf16 {d}, {DF(t, i)}, {vr(AR+4*i,4)}, {d if i else 0}")
            a(f"v_max3_u32 v{T0}, v{T0 if i else 41}, v{AR+4*i}, v{AR+4*i+2}")
        a(f"v_cmp_eq_u32 vcc, -1, v{T0}")
        a(f"v_lshlrev_b32 v124, 16, v41"); a(f"v_and_b32 v125, s{MASK}, v41")
    poll(a, pfx + "_act", ld, ck, sleep=2)
    tstamp(a, opt, 9)
    a("s_nop 2")
    a(f"ds_write_b128 {vEw}, v[112:115]"); a(f"ds_write_b128 {vEw}, v[116:119] offset:1024")
    a("s_waitcnt lgkmcnt(0)"); a("s_barrier")
    for w in range(4): a(f"ds_read_b64 {vr(112+2*w,2)}, {vEr} offset:{2048*w}")
    a("s_waitcnt lgkmcnt(0)")
    a("v_add_f32 v112, v112, v114"); a("v_add_f32 v113, v113, v115"); a("v_add_f32 v116, v116, v118"); a("v_add_f32 v117, v117, v119")
    a("v_add_f32 v112, v112, v116"); a("v_add_f32 v113, v113, v117")
    rnd2(a, 112, 113, T0)
    a(f"v_mul_f32 v112, v{MC+6}, v112"); a(f"v_mul_f32 v113, v{MC+7}, v113")
    rnd2(a, 112, 113, T0)
    a("v_add_f32 v112, v124, v112"); a("v_add_f32 v113, v125, v113")
    a(f"v_cvt_pk_bf16_f32 v{T0}, v112, v113")
    a(f"buffer_store_dword v{T0}, {vEo}, {sr(S_O,4)}, s{S_OUT} offen{' sc1' if 'osc1' in opt else (' nt' if 'ont' in opt else '')}")
    tstamp(a, opt, 10)
    a(f"s_add_u32 s{S_SEG}, s{S_SEG}, {NT}")
    a(f"s_add_u32 s{S_KM}, s{S_KM}, {NT*4096}")
    a(f"s_add_u32 s{S_OUT}, s{S_OUT}, {NT*32768}")
    a(f"s_xor_b32 s{S_TAG}, s{S_TAG}, 1")
    a(f"s_mov_b32 s{S_PSLOT}, s{S_SLOT}")
    a(f"s_add_u32 s{S_SLOT}, s{S_SLOT}, 1")
    a(f"s_cmp_ge_u32 s{S_SLOT}, 3")
    a(f"s_cselect_b32 s{S_SLOT}, 0, s{S_SLOT}")
    a(f"s_cmp_lt_u32 s{S_SEG}, s{S_LIM}")
    a(f"s_cbranch_scc1 {pfx}_loop")
    a("s_waitcnt vmcnt(0)")
    if "time" in opt: a("v_mov_b32 v143, v47")

def emit_post(a, opt):
    import mega, pre
    a(f"s_mov_b32 s{MASK}, 0xffff0000")
    emit_post_weights(a, opt)
    if "time" in opt: a("s_memrealtime s[84:85]")
    emit_post_final(a, opt)
    if "time" in opt: a("s_memrealtime s[86:87]")
    a(f"s_cmp_lg_u32 s{S_MODE}, 0")
    a("s_cbranch_scc1 T_slow")
    emit_post_loop(a, True, "TF", opt)
    a("s_branch L_done")
    a.label("T_slow")
    emit_post_loop(a, False, "TS", opt)
```

```python
from common import *
def emit_gemm(a, opt=()):
    a.c("==== G role: s3 = team (2: K, 3: V), s14 = head ====")
    LE = lambda *x, **k: lane_expr(a, *x, tmp="v31", **k)
    WS = sr(S_WS, 4)
    def geti(p, d):
        for o in opt:
            if o.startswith(p) and o[len(p):].isdigit(): return int(o[len(p):])
        return d
    S_OUT, S_OUT2, S_QO, S_HS, S_M0, S_SEG, S_FL, S_HT, S_DONE, S_PO, S_QO2 = 17, 18, 19, 20, 21, 22, 23, 24, 25, 26, 27
    a("s_load_dwordx4 s[32:35], s[0:1], 24")
    a("s_load_dwordx2 s[36:37], s[0:1], 16")
    LE("v28", "v0", [(4, 2, 5)])
    LE("v29", "v0", [(0, 4, 4)])
    a("v_xor_b32 v28, v28, v29")
    LE("v30", "v0", [(4, 2, 13)])
    a("v_add_u32 v5, v28, v30")
    a("v_xor_b32 v6, 128, v5")
    sexpr(a, 50, [(S_H, 0, 5, 8), (S_W, 0, 2, 20)])
    sexpr(a, 51, [(S_W, 0, 2, 15)])
    a("s_waitcnt lgkmcnt(0)")
    a(f"s_cmp_eq_u32 s{S_TEAM}, 3")
    a("s_cselect_b32 s32, s34, s32"); a("s_cselect_b32 s33, s35, s33")
    def stage(ptr):
        srd(a, S_T, ptr, 4194304)
        for i in range(32):
            a(f"s_add_u32 m0, s51, {i * 1024}")
            a(f"s_add_u32 s48, s50, {hex(4 * i * 8192)}")
            a(f"buffer_load_dwordx4 v{5 + ((i >> 1) & 1)}, {sr(S_T,4)}, s48 offen lds")
    W = lambda m, t, ks, off=0, n=4: ar(m * 128 + (t * 16 + ks) * 4 + off, n)
    def frags(m):
        a("s_waitcnt vmcnt(0)")
        a("s_barrier")
        for ks in range(16):
            for t in range(2):
                for u in range(2):
                    off = ((32 * ks + 4 * u) * 256) % 65536
                    a(f"ds_read_b64_tr_b16 {W(m, t, ks, 2*u, 2)}, v{8 + t + 2 * (ks // 8)} offset:{off}")
        a("s_waitcnt lgkmcnt(0)")
    stage(32)
    sexpr(a, S_FL, [(S_H, 0, 5, 7), (S_TEAM, 0, 1, 4)], WS_FLAG)
    a("v_and_b32 v4, 63, v0")
    a("v_cmp_eq_u32 vcc, 0, v4")
    a("v_mov_b32 v3, 0x40000000")
    a("s_nop 0")
    a("v_cndmask_b32 v3, v3, 0, vcc")
    LE("v28", "v0", [(4, 2, 11), (2, 2, 8), (0, 1, 3)])
    LE("v29", "v0", [(6, 2, 6), (1, 1, 4)])
    LE("v30", "v0", [(2, 2, 5), (4, 1, 7)])
    a("v_xor_b32 v29, v29, v30")
    a("v_add_u32 v8, v28, v29")
    a("v_xor_b32 v9, 32, v8")
    a("v_add_u32 v10, 0x10000, v8")
    a("v_add_u32 v11, 0x10000, v9")
    frags(0)
    a("s_barrier")
    stage(36)
    claim(a)
    a(f"s_mul_i32 s{S_OUT}, s{S_H}, {HSTR}")
    a(f"s_mul_i32 s{S_QO}, s{S_H}, {QSTR}")
    sexpr(a, 48, [(S_W, 0, 2, 10), (S_TEAM, 0, 1, 12)], WS_QX); a(f"s_add_u32 s{S_QO}, s{S_QO}, s48")
    a(f"s_mul_i32 s{S_PO}, s{S_H}, {MSTR}")
    sexpr(a, 48, [(S_W, 0, 2, 10)], WS_KM); a(f"s_add_u32 s{S_PO}, s{S_PO}, s48")
    for i in range(4): a(f"v_mov_b32 v{12+i}, -1")
    a(f"s_cmp_eq_u32 s{S_TEAM}, 3")
    a("s_cbranch_scc1 G_isv")
    sexpr(a, 48, [(S_W, 1, 1, 12), (S_W, 0, 1, 10)], WS_KV)
    a(f"s_add_u32 s{S_OUT}, s{S_OUT}, s48")
    a(f"s_add_u32 s{S_OUT2}, s{S_OUT}, 8192")
    a("s_branch G_addr")
    a.label("G_isv")
    sexpr(a, 48, [(S_W, 0, 2, 12)], WS_KV + 2048)
    a(f"s_add_u32 s{S_OUT}, s{S_OUT}, s48")
    a(f"s_add_u32 s{S_OUT2}, s{S_OUT}, 1024")
    a.label("G_addr")
    for so, stride in ((S_OUT, 16384), (S_OUT2, 16384), (S_QO, 8192), (S_PO, 4096)):
        a(f"s_sub_u32 s{so}, s{so}, {stride}")
    frags(1)
    LE("v1", "v0", [(0, 6, 4)])
    sexpr(a, S_HS, [(S_W, 0, 2, 13)], WS_H)
    sexpr(a, S_M0, [(S_W, 0, 2, 13)])
    verify_claim(a, 0, 163840 - 64)
    tstamp(a, opt, 16)
    dbg_wait(a, D_LN1, N_LN1, sleep=16)
    tstamp(a, opt, 17)
    def dma_list():
        L = []
        for half in range(2):
            for i in range(4):
                pre_ = [f"s_add_u32 m0, s{S_M0}, {half * 4096}", f"s_add_u32 s{S_HT}, s{S_HS}, {half * 4096}"] if i == 0 else []
                L.append(pre_ + [f"buffer_load_dwordx4 v1, {WS}, s{S_HT} offen offset:{1024*i} sc1 lds"])
        L[-1] += [f"s_add_u32 s{S_HS}, s{S_HS}, 32768", f"s_add_u32 s{S_M0}, s{S_M0}, 32768", f"s_and_b32 s{S_M0}, s{S_M0}, 0x1ffff"]
        return L
    for _ in range(3):
        for grp in dma_list():
            for x in grp: a(x)
    a(f"s_mov_b32 s{S_SEG}, 0")
    a(f"s_mov_b32 s{S_DONE}, 0")
    a("v_mov_b32 v2, v1")
    a("v_add_u32 v16, 0x8000, v1")
    a("v_mov_b32 v7, 0x40000000")
    a(f"s_cmp_eq_u32 s{S_W}, 0")
    a("s_cselect_b32 s48, 0, 0x40000000")
    a("v_or_b32 v17, s48, v3")
    a("s_waitcnt vmcnt(8)")
    a("s_barrier")
    HB = lambda rt, ks: 32 + ((ks % 4) * 2 + rt) * 4
    def rd(lq, ks):
        base = "v2" if ks < 16 else "v16"
        for rt in range(2):
            a(f"ds_read_b128 {vr(HB(rt, ks),4)}, {base} offset:{(rt * 16 + ks % 16) * 1024}"); lq.issue(ks % 16)
    lq0 = LQ()
    for ks in range(3): rd(lq0, ks)
    a(f"s_cmp_eq_u32 s{S_TEAM}, 3")
    a("s_cbranch_scc1 G_loopV")
    outs = [(S_OUT, 16384), (S_OUT2, 16384), (S_QO, 8192)]
    for var in ("K", "V"):
        def pend(voff):
            L = [[f"buffer_store_dwordx4 {vr(64+4*k,4)}, {voff}, {WS}, s{so} offen sc1"] for k, (so, stride) in enumerate(outs)]
            if var == "K": L.append([f"buffer_store_dwordx4 v[12:15], {voff}, {WS}, s{S_PO} offen sc1"])
            return L
        adv = [f"s_add_u32 s{so}, s{so}, {stride}" for so, stride in outs] + [f"s_add_u32 s{S_PO}, s{S_PO}, 4096"]
        a.raw(".p2align 6")
        a.label(f"G_loop{var}")
        lq = LQ(); lq.q = list(lq0.q)
        fillers = [["s_barrier", f"v_mov_b32 v4, s{S_DONE}"], [f"buffer_store_dword v4, v17, {WS}, s{S_FL} offen sc1"]] + pend("v7") + dma_list()
        AC = lambda rt, t: 80 + ((rt * 2 + t) * 4 if var == "K" else (t * 2 + rt) * 4)
        qrt = 0 if var == "K" else 1
        for ks in range(16):
            a(lq.wait(ks))
            ml = []
            for rt in range(2):
                for t in range(2):
                    d = vr(AC(rt, t), 4); c = d if ks else "0"
                    if var == "K": ml.append(f"v_mfma_f32_16x16x32_bf16 {d}, {W(0, t, ks)}, {vr(HB(rt, ks),4)}, {c}")
                    else: ml.append(f"v_mfma_f32_16x16x32_bf16 {d}, {vr(HB(rt, ks),4)}, {W(0, t, ks)}, {c}")
            for t in range(2):
                d = vr(96 + 4 * t, 4); c = d if ks else "0"
                ml.append(f"v_mfma_f32_16x16x32_bf16 {d}, {W(1, t, ks)}, {vr(HB(qrt, ks),4)}, {c}")
            for n, m in enumerate(ml):
                a(m)
                if n == 0: rd(lq, ks + 3)
                if (n == 3 or (n == 1 and ks == 0)) and fillers:
                    for x in fillers.pop(0): a(x)
        assert not fillers
        a("v_mov_b32 v2, v16")
        a("v_add_u32 v16, 0x8000, v16")
        a("v_and_b32 v16, 0x1ffff, v16")
        a("v_mov_b32 v7, v1")
        for x in adv: a(x)
        for k in range(3):
            for i in range(4): a(f"v_cvt_pk_bf16_f32 v{64+4*k+i}, v{80+8*k+2*i}, v{81+8*k+2*i}")
        a(f"s_max_u32 s{S_DONE}, s{S_DONE}, s{S_SEG}")
        a(f"s_add_u32 s{S_SEG}, s{S_SEG}, 1")
        a("s_waitcnt vmcnt(8)")
        a(f"s_cmp_eq_u32 s{S_SEG}, {N_LN1//2-3}")
        a(f"s_cbranch_scc1 G_first{var}")
        a(f"s_cmp_eq_u32 s{S_SEG}, 2")
        a(f"s_cbranch_scc1 G_second{var}")
        a(f"s_cmp_lt_u32 s{S_SEG}, 64")
        a(f"s_cbranch_scc1 G_loop{var}")
        for g in pend("v1"): a(g[0])
        a("s_branch G_fin")
        a.label(f"G_first{var}")
        dbg_wait(a, D_PRE, 32, sleep=32)
        a(f"s_branch G_loop{var}")
        a.label(f"G_second{var}")
        for g in pend("v1"): a(g[0])
        a("v_mov_b32 v7, 0x40000000")
        a("s_waitcnt vmcnt(0)")
        a(f"s_mov_b32 s{S_DONE}, 2")
        tstamp(a, opt, 18)
        a(f"s_branch G_loop{var}")
    a.label("G_fin")
    a("s_waitcnt vmcnt(0) lgkmcnt(0)")
    a("s_barrier")
    a("v_mov_b32 v4, 64")
    a(f"buffer_store_dword v4, v3, {WS}, s{S_FL} offen sc1")
    a("s_waitcnt vmcnt(0)")
```

```python
from common import *
from pre import rnd1, rnd2, MASK, S_TID, xsum_g
import math
import common
def tstamp(a, opt, idx):
    if "midst" in opt and idx < 16 and "time" in opt:
        l = a.uid("ts")
        a("s_cselect_b32 s80, 1, 0")
        a(f"s_cmp_ge_u32 s{S_SEG}, 52"); a(f"s_cbranch_scc1 {l}")
        common.tstamp(a, opt, idx, "v47")
        a.label(l)
        a("s_cmp_lg_u32 s80, 0")
    else: common.tstamp(a, opt, idx, "v47")

S_X, S_O = 20, 24
S_SEG, S_TAG, S_PC, S_PMAX, S_SC, S_L2E = 28, 29, 30, 31, 18, 19
S_P1S, S_P1L, S_P1S2 = 52, 53, 54
S_SLOT, S_PSLOT = 55, 56
S_H2B, S_H2O, S_ACTW, S_ACTR = 57, 58, 59, 60
S_KV, S_Q, S_KM, S_KMV, S_ROW, S_OUT, S_FLG, S_HAVE, S_X2R = 61, 62, 63, 64, 65, 66, 67, 68, 69
S_MKV, S_MQ, S_MODE = 72, 73, 74
S_LIM = 64
S_STR, S_NXT, S_KMB, S_OUTB, S_KVE, S_QE, S_RWE = 76, 77, 78, 79, 81, 82, 83
XS = 48
vL16, vCol, vP, vKw, vKr, vHg, vHw, vHr, vOw, vZero, vQr, vVr, vEw, vEr, vEo = ["v%d" % i for i in range(1, 16)]
MC = 16
BIAS, SEL = 24, 32
vX2g = "v36"
XR = 37
T0, T1, T2 = 38, 39, 40
L_O, L_ST, L_E, L_KV, L_Q, L_K, L_H = 0, 16384, 20480, 32768, 65536, 81920, 98304
FS, RTS = 1088, 17408
WoF = lambda ct, ks, off=0, n=4: ar((ct * 8 + ks) * 4 + off, n)
GF = lambda m, ks, off=0, n=4: ar(128 + (m * 16 + ks) * 4 + off, n)
DF = lambda t, ks, off=0, n=4: vr(144 + (t * 14 + ks) * 4 + off, n)

def wave_sum(a, x, t):
    a("s_nop 1")
    for ror in (1, 2, 4, 8):
        a(f"v_add_f32_dpp v{x}, v{x}, v{x} row_ror:{ror} row_mask:0xf bank_mask:0xf")
        if ror < 8: a("s_nop 1")
    xsum_g(a, x, t)

def emit_post_addr(a, opt=()):
    LE = lambda *x, **k: lane_expr(a, *x, tmp="v47", **k)
    WS = sr(S_WS, 4)
    LE(vL16, "v0", [(0, 6, 4)])
    LE(vCol, "v0", [(6, 2, 8), (2, 2, 6), (5, 1, 5), (0, 2, 3), (4, 1, 2)])
    LE(vP, "v0", [(0, 4, 14), (4, 2, 4)])
    LE(vKw, "v0", [(6, 2, 12), (0, 4, 5), (4, 2, 3)], L_K)
    LE("v48", "v0", [(2, 2, 3)]); a(f"v_xor_b32 {vKw}, {vKw}, v48")
    LE(vKr, "v0", [(6, 2, 12), (0, 6, 3)], L_K)
    LE("v48", "v0", [(4, 2, 3)]); a(f"v_xor_b32 {vKr}, {vKr}, v48")
    LE(vHg, "v0", [(4, 2, 11), (6, 2, 8), (0, 4, 4)])
    LE("v48", "v0", [(6, 2, 2), (2, 2, 0)])
    a(f"v_mul_u32_u24 {vHw}, {FS}, v48")
    a("v_and_b32 v48, 3, v0"); a("v_mul_u32_u24 v48, 272, v48"); a(f"v_add_u32 {vHw}, {vHw}, v48")
    LE("v48", "v0", [(4, 2, 4)], L_H); a(f"v_add_u32 {vHw}, {vHw}, v48")
    a("v_bfe_u32 v48, v0, 4, 2"); a(f"v_mul_u32_u24 {vHr}, 272, v48")
    LE("v48", "v0", [(0, 4, 4)], L_H); a(f"v_add_u32 {vHr}, {vHr}, v48")
    LE(vOw, "v0", [(6, 1, 13), (7, 1, 12), (0, 6, 4)], L_O)
    a(f"v_mov_b32 {vZero}, 0")
    LE(vQr, "v0", [(6, 2, 12), (0, 6, 4)], L_Q)
    LE(vVr, "v0", [(7, 1, 14), (0, 6, 4)], L_KV)
    LE(vEw, "v0", [(6, 2, 11), (0, 6, 4)], L_E)
    LE(vEr, "v0", [(3, 1, 10), (1, 2, 8), (4, 4, 4), (0, 1, 3)], L_E)
    LE(vEo, "v0", [(4, 4, 10), (0, 4, 2)])
    LE(vX2g, "v0", [(4, 4, 11), (0, 4, 2)])
    a(f"s_sub_u32 s50, s{S_TEAM}, {T0_}")
    sexpr(a, S_P1S, [(50, 0, 3, 20), (S_H, 0, 1, 13), (S_W, 1, 1, 12), (S_H, 1, 4, 8), (S_W, 0, 1, 7)], WS_P1)
    a(f"s_add_u32 s{S_P1S2}, s{S_P1S}, {16*16384}")
    sexpr(a, S_P1L, [(50, 0, 3, 20), (S_H, 0, 5, 14), (S_W, 0, 2, 12)], WS_P1)
    sexpr(a, S_H2B, [(50, 0, 3, 18)], WS_H2)
    sexpr(a, S_H2O, [(50, 0, 3, 18), (S_H, 0, 5, 11)], WS_H2)
    sexpr(a, S_X2R, [(50, 0, 3, 18), (S_H, 0, 1, 15), (S_H, 1, 4, 6)], WS_H2 + 1024)
    sexpr(a, S_ACTW, [(50, 0, 3, 19), (S_H, 0, 5, 11), (S_W, 1, 1, 10), (S_W, 0, 1, 3)], WS_ACT)
    a(f"s_and_b32 s48, s{S_H}, 1"); a(f"s_mul_i32 s48, s48, {56*1024}")
    a(f"s_mul_i32 s51, s{S_W}, {14*1024}"); a("s_add_u32 s48, s48, s51")
    sexpr(a, S_ACTR, [(50, 0, 3, 19)], WS_ACT); a(f"s_add_u32 s{S_ACTR}, s{S_ACTR}, s48")

def emit_post_weights(a, opt):
    LE = lambda *x, **k: lane_expr(a, *x, tmp="v47", **k)
    WS = sr(S_WS, 4)
    def geti(p, d):
        for o in opt:
            if o.startswith(p) and o[len(p):].isdigit(): return int(o[len(p):])
        return d
    import mega
    a.c("==== T role: team-buffer init + stationary weights ====")
    a("s_load_dwordx2 s[34:35], s[0:1], 40")
    a("s_load_dwordx4 s[36:39], s[0:1], 64")
    a("s_load_dwordx2 s[40:41], s[0:1], 80")
    emit_post_addr(a, opt)
    LE("v60", "v0", [(3, 3, 10)]); LE("v61", "v0", [(0, 3, 4)]); LE("v62", "v0", [(4, 2, 5)])
    a("v_xor_b32 v62, v61, v62"); a("v_add_u32 v66, v60, v62")
    LE("v67", "v0", [(6, 2, 15), (2, 4, 7), (1, 1, 4), (3, 2, 5), (0, 1, 3)])
    LE("v60", "v0", [(2, 4, 10)]); LE("v62", "v0", [(0, 2, 4)]); LE("v63", "v0", [(4, 1, 5)])
    a("v_xor_b32 v62, v62, v63"); a("v_add_u32 v68, v60, v62")
    LE("v69", "v0", [(6, 2, 15), (2, 4, 6), (1, 1, 4), (4, 1, 5), (0, 1, 3)])
    a("v_xor_b32 v70, 32, v69")
    a("v_bfe_u32 v60, v0, 3, 3"); a("v_mul_u32_u24 v60, 3584, v60")
    a("v_xor_b32 v62, v61, v63"); a("v_add_u32 v71, v60, v62")
    a("v_xor_b32 v62, 64, v62"); a("v_add_u32 v72, v60, v62")
    LE("v60", "v0", [(4, 2, 10), (2, 2, 7), (0, 1, 3)]); LE("v62", "v0", [(6, 2, 5), (1, 1, 4)]); LE("v63", "v0", [(3, 1, 5), (4, 1, 6)])
    a("v_xor_b32 v62, v62, v63"); a("v_add_u32 v73, v60, v62"); a("v_add_u32 v74, 0x10000, v73")
    S_LB, S_WOS, S_DNS, S_GUS = 76, 77, 78, 79
    sexpr(a, S_LB, [(S_W, 0, 2, 15)])
    sexpr(a, S_WOS, [(S_H, 1, 4, 18), (S_H, 0, 1, 9), (S_W, 0, 2, 7)])
    a(f"s_mul_i32 s{S_DNS}, s{S_W}, {448*1024}"); sexpr(a, 48, [(S_H, 1, 4, 6)]); a(f"s_add_u32 s{S_DNS}, s{S_DNS}, s48")
    a(f"s_mul_i32 s{S_GUS}, s{S_W}, {128*3584}"); a(f"s_min_u32 s48, s{S_H}, 27"); a("s_lshl_b32 s48, s48, 7"); a(f"s_add_u32 s{S_GUS}, s{S_GUS}, s48")
    a(f"s_cmp_lg_u32 s{S_CLM}, 0")
    a("s_cbranch_scc1 T_nw")
    for _ in range(geti("ts", 2)): a("s_sleep 64")
    claim(a)
    verify_claim(a, 0, 163840 - 64)
    dbg_wait(a, D_MOD1, 32, "v44", "v45", sleep=40, limit=8)
    a.label("T_nw")
    a("s_waitcnt lgkmcnt(0)")
    tstamp(a, opt, 16)
    q = VmQ(a)
    def batch(tag, ptr, nbytes, sbase, voff, half, idxs, rowbytes):
        srd(a, S_T, ptr, nbytes)
        for n, i in enumerate(idxs):
            a(f"s_add_u32 m0, s{S_LB}, {half * 16384 + n * 1024}")
            a(f"s_add_u32 s48, s{sbase}, {i * rowbytes}")
            a(f"buffer_load_dwordx4 v{voff(i)}, {sr(S_T,4)}, s48 offen lds")
        q.issue(tag, len(idxs))
    wo = lambda h: batch(("wo", h), 34, 4194304, S_WOS, lambda i: 66, h, range(16 * h, 16 * h + 16), 8 * 1024)
    dn = lambda h: batch(("dn", h), 40, 1792 * 1024, S_DNS, lambda i: 68, h, range(16 * h, min(16 * h + 16, 28)), 16 * 1024)
    gu = lambda m: batch(("gu", m), 36 + 2 * m, 512 * 3584, S_GUS, lambda i: 71 + (i & 1), m, range(16), 8 * 3584)
    wo(0); wo(1)
    for h in range(2):
        q.wait(("wo", h))
        for ct in range(4):
            a(f"v_xor_b32 v65, {32 * ct}, v67")
            for ks in range(4 * h, 4 * h + 4):
                for u in range(2):
                    a(f"ds_read_b64_tr_b16 {WoF(ct, ks, 2*u, 2)}, v65 offset:{(32*ks + 16*u) * 128}")
        a("s_waitcnt lgkmcnt(0)")
        dn(h)
    tstamp(a, opt, 17)
    for h in range(2):
        q.wait(("dn", h))
        for t in range(2):
            for ks in range(8 * h, min(8 * h + 8, 14)):
                for u in range(2):
                    a(f"ds_read_b64_tr_b16 {DF(t, ks, 2*u, 2)}, v{69+t} offset:{(32*ks + 16*u) * 64}")
        a("s_waitcnt lgkmcnt(0)")
        gu(h)
    tstamp(a, opt, 18)
    a(f"v_mov_b32 v46, {163840 - 32}")
    a(f"s_cmp_lg_u32 s{S_W}, 0")
    a("s_cbranch_scc1 T_mdw")
    a(f"s_mov_b32 s{S_MODE}, 1")
    mega.emit_mode(a, opt, "T_md1", "v44", "v45")
    a(f"s_mov_b32 s{S_MODE}, 0")
    a.label("T_md1")
    a(f"v_mov_b32 v45, s{S_MODE}")
    a("ds_write_b32 v46, v45")
    a.label("T_mdw")
    a("s_waitcnt vmcnt(0) lgkmcnt(0)")
    a("s_barrier")
    tstamp(a, opt, 19)
    a("ds_read_b32 v45, v46")
    a("s_waitcnt lgkmcnt(0)")
    a(f"v_readfirstlane_b32 s{S_MODE}, v45")
    a("s_nop 3")
    a(f"s_cmp_lg_u32 s{S_MODE}, 0")
    a("s_cbranch_scc1 T_init1")
    for mode, st in ((0, ""), (1, " sc1")):
        a.label(f"T_init{mode}")
        for i in range(2): a(f"v_mov_b32 v{48+i}, -1")
        for i in range(4): a(f"v_mov_b32 v{52+i}, 0")
        for k in range(4):
            a(f"buffer_store_dwordx4 v[52:55], {vL16}, {WS}, s{S_P1L} offen offset:{1024*k}{st}")
        for sl in range(3):
            a(f"s_add_u32 s48, s{S_H2O}, {sl*65536}")
            a(f"buffer_store_dword v48, {vCol}, {WS}, s48 offen{st}")
            a(f"buffer_store_dword v48, {vCol}, {WS}, s48 offen offset:1024{st}")
        a(f"s_cmp_ge_u32 s{S_H}, 28")
        a(f"s_cbranch_scc1 T_nopa{mode}")
        for sl in range(3):
            for rt in range(2):
                a(f"s_add_u32 s48, s{S_ACTW}, {sl*131072 + rt*56*1024}")
                a(f"buffer_store_dwordx2 v[48:49], {vL16}, {WS}, s48 offen{st}")
        a.label(f"T_nopa{mode}")
        if mode == 0: a("s_branch T_initd")
    a.label("T_initd")
    for m in range(2):
        for ks in range(16):
            for u in range(2):
                off = ((ks // 4) % 2) * 32768 + m * 16384 + (32 * (ks % 4) + 4 * u) * 128
                a(f"ds_read_b64_tr_b16 {GF(m, ks, 2*u, 2)}, v{73 + ks // 8} offset:{off}")
    a("s_waitcnt vmcnt(0) lgkmcnt(0)")
    a("s_barrier")
    a(f"s_cmp_lg_u32 s{S_W}, 0")
    a("s_cbranch_scc1 T_noarr")
    a(f"s_lshl_b32 s50, s{S_TEAM}, 2")
    dbg_arrive(a, D_INIT - T0_, "v44", "v45", soff=50)
    a.label("T_noarr")

def emit_post_final(a, opt):
    LE = lambda *x, **k: lane_expr(a, *x, tmp="v47", **k)
    WS = sr(S_WS, 4)
    a("s_load_dwordx2 s[32:33], s[0:1], 0")
    a("s_load_dwordx2 s[42:43], s[0:1], 104")
    dbg_wait(a, D_MOD2, 32, "v44", "v45", sleep=32)
    a(f"s_mov_b32 s48, {hex(WS_MOD + 2048)}")
    for i, k in enumerate((0, 2, 1)):
        a(f"buffer_load_dword v{56+i}, {vCol}, {WS}, s48 offen offset:{1024*k} sc1")
    LE("v60", "v0", [(0, 4, 2)])
    sexpr(a, 48, [(S_H, 1, 4, 6)], WS_MOD + 5 * 1024)
    a(f"buffer_load_dword v59, v60, {WS}, s48 offen sc1")
    a("s_waitcnt vmcnt(0) lgkmcnt(0)")
    for i in range(4):
        a(f"v_lshlrev_b32 v{MC+2*i}, 16, v{56+i}")
        a(f"v_and_b32 v{MC+2*i+1}, s{MASK}, v{56+i}")
    a(f"v_add_f32 v{MC+2}, 1.0, v{MC+2}"); a(f"v_add_f32 v{MC+3}, 1.0, v{MC+3}")
    rnd2(a, MC + 2, MC + 3, 47)
    srd(a, S_X, 32, 2048 * 1024)
    srd(a, S_O, 42, 2048 * 1024)
    a("v_and_b32 v60, 3, v0"); a("v_bfe_u32 v61, v0, 2, 2")
    a("v_mov_b32 v62, 0x3f80"); a("v_mov_b32 v63, 0x3f800000")
    a("v_cmp_eq_u32 vcc, 1, v60"); a("s_nop 1"); a("v_cndmask_b32 v62, v62, v63, vcc")
    a("v_cmp_gt_u32 vcc, 2, v60"); a("s_nop 1"); a("v_cndmask_b32 v62, 0, v62, vcc")
    for d in range(4):
        a(f"v_cmp_eq_u32 vcc, {d}, v61"); a("s_nop 1"); a(f"v_cndmask_b32 v{SEL+d}, 0, v62, vcc")
    LE("v60", "v0", [(6, 1, 4), (0, 4, 0)])
    LE("v61", "v0", [(4, 2, 2)])
    a(f"v_mov_b32 v63, {f32bits(-1e30)}")
    for t in range(2):
        for r in range(4):
            a(f"v_add_u32 v62, {16*t + r}, v61")
            a("v_cmp_gt_u32 vcc, v62, v60"); a("s_nop 1")
            a(f"v_cndmask_b32 v{BIAS+4*t+r}, 0, v63, vcc")
    a(f"s_sub_u32 s{S_SEG}, s{S_TEAM}, {T0_}")
    a(f"s_mov_b32 s{S_LIM}, 64")
    if "g2t" in opt:
        a(f"s_add_u32 s48, s{S_TEAM}, {XS + NT - 2}")
        a(f"s_cmp_lt_u32 s{S_TEAM}, {T0_}")
        a(f"s_cselect_b32 s{S_SEG}, s48, s{S_SEG}")
    sexpr(a, 50, [(S_H, 1, 4, 1), (S_W, 1, 1, 0)])
    a(f"s_mul_i32 s{S_KV}, s50, {HSTR}")
    sexpr(a, 48, [(S_W, 0, 1, 13)], WS_KV); a(f"s_add_u32 s{S_KV}, s{S_KV}, s48")
    a(f"s_mul_i32 s{S_Q}, s50, {QSTR}")
    sexpr(a, 48, [(S_W, 0, 1, 12)], WS_QX); a(f"s_add_u32 s{S_Q}, s{S_Q}, s48")
    sexpr(a, S_MKV, [(S_W, 0, 2, 13)], L_KV)
    sexpr(a, S_MQ, [(S_W, 0, 2, 12)], L_Q)
    a(f"s_mul_i32 s{S_KM}, s50, {MSTR}")
    a(f"s_add_u32 s{S_KMB}, s{S_KM}, {hex(WS_KM)}")
    sexpr(a, S_FLG, [(50, 0, 5, 7)], WS_FLAG)
    sexpr(a, S_ROW, [(S_H, 0, 5, 10)])
    sexpr(a, S_OUTB, [(S_H, 0, 1, 14), (S_H, 1, 4, 6)])
    seg_addrs(a)
    a(f"s_mov_b32 s{S_HAVE}, 0")
    a(f"s_mov_b32 s{S_TAG}, 1")
    a(f"s_mov_b32 s{S_SLOT}, 0")
    a(f"s_mov_b32 s{S_PSLOT}, 2")
    a(f"s_mov_b32 s{S_PMAX}, 100000")
    a(f"s_mov_b32 s{S_SC}, {f32bits(128 ** -0.5)}")
    a(f"s_mov_b32 s{S_L2E}, {f32bits(math.log2(math.e))}")
    a(f"s_lshl_b32 s50, s{S_TEAM}, 2")
    dbg_wait(a, D_INIT - T0_, 32, "v44", "v45", soff=50, sleep=24)

def poll(a, name, loads, check, sleep=3):
    a(f"s_mov_b32 s{S_PC}, 0")
    a.label(name)
    loads()
    check()
    a(f"s_cbranch_vccz {name}_ok")
    a(f"s_sleep {sleep}")
    a(f"s_add_u32 s{S_PC}, s{S_PC}, 1")
    a(f"s_cmp_lt_u32 s{S_PC}, s{S_PMAX}")
    a(f"s_cbranch_scc1 {name}")
    a(f"s_mov_b32 s{S_PMAX}, 1")
    a.label(name + "_ok")

def seg_addrs(a):
    a(f"s_lshl_b32 s48, s{S_SEG}, 12"); a(f"s_add_u32 s{S_KM}, s{S_KMB}, s48")
    a(f"s_lshl_b32 s48, s{S_SEG}, 15"); a(f"s_add_u32 s{S_OUT}, s{S_OUTB}, s48")

def pf_list():
    WS = sr(S_WS, 4)
    L = []
    for half in range(2):
        for i in range(4):
            L.append(([f"s_add_u32 m0, s{S_MKV}, {half*4096}", f"s_add_u32 s48, s{S_KVE}, {half*4096}"] if i == 0 else []) +
                     [f"buffer_load_dwordx4 {vL16}, {WS}, s48 offen offset:{1024*i} sc1 lds"])
    for i in range(4):
        L.append(([f"s_mov_b32 m0, s{S_MQ}", "s_nop 0"] if i == 0 else []) + [f"buffer_load_dwordx4 {vL16}, {WS}, s{S_QE} offen offset:{1024*i} sc1 lds"])
    L.append([f"buffer_load_dword v{XR}, {vCol}, {sr(S_X,4)}, s{S_RWE} offen"])
    return L

def prefetch(a, name, segreg, body=True):
    WS = sr(S_WS, 4)
    a(f"s_cmp_ge_u32 s{segreg}, s{S_LIM}")
    a(f"s_cbranch_scc1 {name}_skip")
    a(f"s_cmp_gt_u32 s{S_HAVE}, s{segreg}")
    a(f"s_cbranch_scc1 {name}_fok")
    a(f"s_mov_b32 s{S_PC}, 0")
    a.label(name + "_fl")
    a("s_mov_b64 exec, 3")
    a(f"buffer_load_dword v45, {vL16}, {WS}, s{S_FLG} offen sc1")
    a("s_mov_b64 exec, -1")
    a("s_waitcnt vmcnt(0)")
    a(f"v_readlane_b32 s{S_HAVE}, v45, 0"); a("v_readlane_b32 s48, v45, 1")
    a("s_nop 1")
    a(f"s_min_u32 s{S_HAVE}, s{S_HAVE}, s48")
    a(f"s_cmp_gt_u32 s{S_HAVE}, s{segreg}")
    a(f"s_cbranch_scc1 {name}_fok")
    a("s_sleep 8")
    a(f"s_add_u32 s{S_PC}, s{S_PC}, 1")
    a(f"s_cmp_lt_u32 s{S_PC}, s{S_PMAX}")
    a(f"s_cbranch_scc1 {name}_fl")
    a(f"s_mov_b32 s{S_PMAX}, 1")
    a.label(name + "_fok")
    a(f"s_lshl_b32 s48, s{segreg}, 14"); a(f"s_add_u32 s{S_KVE}, s{S_KV}, s48")
    a(f"s_lshl_b32 s48, s{segreg}, 13"); a(f"s_add_u32 s{S_QE}, s{S_Q}, s48")
    a(f"s_lshl_b32 s48, s{segreg}, 15"); a(f"s_add_u32 s{S_RWE}, s{S_ROW}, s48")
    if not body: return
    for g in pf_list():
        for x in g: a(x)
    a.label(name + "_skip")

def emit_post_loop(a, fast, pfx, opt):
    def geti(p, d):
        for o in opt:
            if o.startswith(p) and o[len(p):].isdigit(): return int(o[len(p):])
        return d
    st = "" if fast else " sc1"
    WS = sr(S_WS, 4)
    QF, KX, VX, KF, SS, KMR = 48, 64, 64, 96, 112, 124
    prefetch(a, pfx + "_pf0", S_SEG)
    if "g2t" in opt:
        a(f"s_cmp_ge_u32 s{S_TEAM}, {T0_}")
        a(f"s_cselect_b32 s48, 1, s{S_W}")
        a("s_cmp_lg_u32 s48, 0")
        a(f"s_cbranch_scc1 {pfx}_lw_ok")
        a(f"s_sub_u32 s49, s{S_KM}, {2*4096}")
        a(f"s_mov_b32 s{S_PC}, 0")
        a("s_mov_b64 exec, 1")
        a.label(pfx + "_lw")
        a(f"buffer_load_dword v45, {vL16}, {WS}, s49 offen sc1")
        a("s_waitcnt vmcnt(0)")
        a("v_readfirstlane_b32 s48, v45")
        a("s_cmp_lg_u32 s48, -1")
        a(f"s_cbranch_scc1 {pfx}_lw_x")
        a("s_sleep 16")
        a(f"s_add_u32 s{S_PC}, s{S_PC}, 1")
        a(f"s_cmp_lt_u32 s{S_PC}, 20000")
        a(f"s_cbranch_scc1 {pfx}_lw")
        a.label(pfx + "_lw_x")
        a("s_mov_b64 exec, -1")
        a.label(pfx + "_lw_ok")
    a("s_waitcnt vmcnt(0)")
    a("s_barrier")
    a.raw(".p2align 6")
    a.label(pfx + "_loop")
    tstamp(a, opt, 0)
    def ldkm():
        for i in range(4): a(f"buffer_load_dwordx4 {vr(KMR+4*i,4)}, {vL16}, {WS}, s{S_KM} offen offset:{1024*i} sc1")
    if "wbl" in opt:
        a(f"s_cmp_lt_u32 s{S_SEG}, {64-NT}")
        a(f"s_cselect_b32 s48, 1, s{S_W}")
        a(f"s_or_b32 s48, s48, s{S_H}")
        a(f"s_cbranch_scc1 {pfx}_nwb")
        a("buffer_wbl2 sc1")
        a.label(pfx + "_nwb")
    ldkm()
    for ks in range(4):
        a(f"ds_read_b128 {vr(QF+4*ks,4)}, {vQr} offset:{1024*ks}")
        for t in range(2):
            i = t * 4 + ks
            a(f"ds_read_b128 {vr(KX+4*i,4)}, {vVr} offset:{(i//2)*4096 + (i%2)*1024}")
    for ks in range(4):
        a(f"s_waitcnt lgkmcnt({9-3*ks})")
        for t in range(2):
            d = vr(SS + 4 * t, 4)
            a(f"v_mfma_f32_16x16x32_bf16 {d}, {vr(KX+4*(t*4+ks),4)}, {vr(QF+4*ks,4)}, {d if ks else vr(BIAS+4*t,4)}")
    for i in range(8):
        a(f"ds_read_b128 {vr(VX+4*i,4)}, {vVr} offset:{(i//2)*4096 + 2048 + (i%2)*1024}")
    def scale(regs):
        for i in range(0, len(regs), 2): rnd2(a, regs[i], regs[i+1], T2)
        for r in regs: a(f"v_mul_f32 v{r}, s{S_SC}, v{r}")
        for i in range(0, len(regs), 2): rnd2(a, regs[i], regs[i+1], T2)
    scale(list(range(SS, SS + 8)))
    MX, LX = 41, 46
    a(f"v_max3_f32 v{MX}, v{SS}, v{SS+1}, v{SS+2}"); a(f"v_max3_f32 v{T1}, v{SS+3}, v{SS+4}, v{SS+5}")
    a(f"v_max3_f32 v{MX}, v{MX}, v{SS+6}, v{SS+7}"); a(f"v_max_f32 v{MX}, v{MX}, v{T1}")
    xsum_g(a, MX, T1, "v_max_f32")
    a(f"v_mul_f32 v{T0}, s{S_L2E}, v{MX}")
    for r in range(8): a(f"v_fma_f32 v{SS+r}, v{SS+r}, s{S_L2E}, -v{T0}")
    for r in range(8): a(f"v_exp_f32 v{SS+r}, v{SS+r}")
    a(f"v_add_f32 v{LX}, v{SS}, v{SS+1}"); a(f"v_add_f32 v{T0}, v{SS+2}, v{SS+3}"); a(f"v_add_f32 v{T1}, v{SS+4}, v{SS+5}")
    a(f"v_add_f32 v{T2}, v{SS+6}, v{SS+7}"); a(f"v_add_f32 v{LX}, v{LX}, v{T0}"); a(f"v_add_f32 v{T1}, v{T1}, v{T2}")
    a(f"v_add_f32 v{LX}, v{LX}, v{T1}")
    PX, PM0, OC = 140, 44, 96
    a(f"v_mov_b32 v{PM0+1}, 0")
    tstamp(a, opt, 1)
    a(f"s_mov_b32 s{S_PC}, 0")
    a.label(pfx + "_km")
    a("s_waitcnt vmcnt(0)")
    a(f"v_max3_u32 v{T0}, v{KMR}, v{KMR+4}, v{KMR+8}")
    a(f"v_max_u32 v{T0}, v{T0}, v{KMR+12}")
    a(f"v_cmp_eq_u32 vcc, -1, v{T0}")
    for i in range(4): a(f"ds_write2st64_b32 {vKw}, v{KMR+4*i+1}, v{KMR+4*i+3} offset0:{4*i} offset1:{4*i+2}")
    a(f"s_cbranch_vccz {pfx}_km_ok")
    if "lp" in opt:
        a(f"v_lshlrev_b32 v{T1}, 6, {vL16}")
        a("s_mov_b64 exec, 15")
        a.label(pfx + "_kl")
        a(f"s_sleep {geti('tk', 3)}")
        a(f"buffer_load_dword v{T0}, v{T1}, {WS}, s{S_KM} offen offset:1008 sc1")
        a(f"s_add_u32 s{S_PC}, s{S_PC}, 1")
        a("s_waitcnt vmcnt(0)")
        a(f"v_cmp_eq_u32 vcc, -1, v{T0}")
        a(f"s_cbranch_vccz {pfx}_kl_x")
        a(f"s_cmp_lt_u32 s{S_PC}, s{S_PMAX}")
        a(f"s_cbranch_scc1 {pfx}_kl")
        a.label(pfx + "_kl_x")
        a("s_mov_b64 exec, -1")
    else:
        a(f"s_sleep {geti('tk', 3)}")
    ldkm()
    a(f"s_add_u32 s{S_PC}, s{S_PC}, 1")
    a(f"s_cmp_lt_u32 s{S_PC}, s{S_PMAX}")
    a(f"s_cbranch_scc1 {pfx}_km")
    a(f"s_mov_b32 s{S_PMAX}, 1")
    a("s_waitcnt vmcnt(0)")
    a.label(pfx + "_km_ok")
    tstamp(a, opt, 2)
    for ks in range(4):
        for u in range(2):
            a(f"ds_read_b64_tr_b16 {vr(KF+4*ks+2*u,2)}, {vKr} offset:{1024*ks+512*u}")
    for ks in range(4):
        a(f"s_waitcnt lgkmcnt({6-2*ks})")
        d = vr(SS + 8, 4)
        a(f"v_mfma_f32_16x16x32_bf16 {d}, {vr(KF+4*ks,4)}, {vr(QF+4*ks,4)}, {d if ks else 0}")
    a("s_nop 7")
    scale([SS + 8, SS + 9])
    a(f"v_max3_f32 v{T0}, v{MX}, v{SS+8}, v{SS+9}")
    xsum_g(a, T0, T1, "v_max_f32")
    a(f"v_mul_f32 v{T0}, s{S_L2E}, v{T0}")
    a(f"v_fma_f32 v{MX}, v{MX}, s{S_L2E}, -v{T0}")
    for r in (8, 9): a(f"v_fma_f32 v{SS+r}, v{SS+r}, s{S_L2E}, -v{T0}")
    a(f"v_exp_f32 v{MX}, v{MX}")
    for r in (8, 9): a(f"v_exp_f32 v{SS+r}, v{SS+r}")
    a(f"v_fma_f32 v{LX}, v{LX}, v{MX}, v{SS+8}")
    a(f"v_add_f32 v{LX}, v{LX}, v{SS+9}")
    xsum_g(a, LX, T1)
    a(f"v_rcp_f32 v{LX}, v{LX}")
    a("s_nop 0")
    a(f"v_mul_f32 v42, v{LX}, v{MX}")
    a(f"v_pk_mul_f32 {vr(SS+8,2)}, {vr(SS+8,2)}, {vr(LX,2)} op_sel_hi:[1,0]")
    for r in range(0, 8, 2): a(f"v_pk_mul_f32 {vr(SS+r,2)}, {vr(SS+r,2)}, v[42:43] op_sel_hi:[1,0]")
    a(f"v_cvt_pk_bf16_f32 v{PM0}, v{SS+8}, v{SS+9}")
    for i in range(4): a(f"v_cvt_pk_bf16_f32 v{PX+i}, v{SS+2*i}, v{SS+2*i+1}")
    oc = lambda i: (96 + 4 * i) if i < 4 else (48 + 4 * (i - 4))
    def pk(i2):
        b = oc(2 * i2)
        return [f"v_cvt_pk_bf16_f32 v{SS+4*(i2%2)+k}, v{b+2*k}, v{b+2*k+1}" for k in range(4)] + [f"ds_write_b128 {vOw}, {vr(SS+4*(i2%2),4)} offset:{1024*i2}"]
    for i in range(8):
        a(f"v_mfma_f32_16x16x16_bf16 {vr(oc(i),4)}, {vr(KMR+2*i,2)}, {vr(PM0,2)}, 0")
    for i in range(8):
        a(f"v_mfma_f32_16x16x32_bf16 {vr(oc(i),4)}, {vr(VX+4*i,4)}, {vr(PX,4)}, {vr(oc(i),4)}")
        if i in (3, 5, 7):
            for x in pk((i - 3) // 2): a(x)
    a("s_nop 3")
    for x in pk(3): a(x)
    a("s_waitcnt lgkmcnt(0)"); a("s_barrier")
    OF = 48
    for i in range(16): a(f"ds_read_b128 {vr(OF+4*i,4)}, {vL16} offset:{L_O+1024*i}")
    tstamp(a, opt, 3)
    jobs = [(cq, rt) for rt in range(2) for cq in range(2)]
    def epi(n):
        cq, rt = jobs[n]; ac = 112 + (n % 2) * 8; g = 128 + (n % 2) * 4
        return [f"v_cvt_pk_bf16_f32 v{g+i}, v{ac+2*i}, v{ac+2*i+1}" for i in range(4)] + [f"v_and_or_b32 v{g}, v{g}, -2, s{S_TAG}",
                f"buffer_store_dwordx4 {vr(g,4)}, {vP}, {WS}, s{(S_P1S, S_P1S2)[rt]} offen offset:{64*cq}{st}"]
    for n, (cq, rt) in enumerate(jobs):
        ac = 112 + (n % 2) * 8
        e = epi(n - 1) if n else []
        k = 0
        for ks in range(8):
            if n == 0: a(f"s_waitcnt lgkmcnt({15-ks})")
            if n == 2 and ks == 0: a("s_waitcnt lgkmcnt(0)")
            for u in range(2):
                d = vr(ac + 4 * u, 4)
                a(f"v_mfma_f32_16x16x32_bf16 {d}, {WoF(2*cq+u, ks)}, {vr(OF+4*(rt*8+ks),4)}, {d if ks else 0}")
                k += 1
                if k >= 2:
                    for x in e[2*(k-2):2*(k-1)]: a(x)
    a("s_nop 7")
    for x in epi(3): a(x)
    tstamp(a, opt, 4)
    if geti("t1", 3): a(f"s_sleep {geti('t1', 3)}")
    R = 48
    def ld():
        for i in range(4):
            a(f"buffer_load_dwordx4 {vr(R+4*i,4)}, {vL16}, {WS}, s{S_P1L} offen offset:{1024*i} sc1")
    def ck():
        for i in range(4):
            a(f"s_waitcnt vmcnt({3-i})")
            a(f"v_mfma_f32_16x16x32_bf16 v[112:115], {vr(SEL,4)}, {vr(R+4*i,4)}, {'v[112:115]' if i else 0}")
            a(f"v_xor_b32 v{T1 if i else T0}, s{S_TAG}, v{R+4*i}")
            if i: a(f"v_or_b32 v{T0}, v{T0}, v{T1}")
        a(f"v_and_b32 v{T0}, 1, v{T0}")
        a(f"v_cmp_ne_u32 vcc, 0, v{T0}")
        a(f"v_lshlrev_b32 v116, 16, v{XR}"); a(f"v_and_b32 v117, s{MASK}, v{XR}")
        a(f"s_lshl_b32 s48, s{S_W}, 3"); a("v_mov_b32 v43, s48")
    poll(a, pfx + "_r1", ld, ck, sleep=1)
    tstamp(a, opt, 5)
    rnd2(a, 112, 113, T0)
    a(f"v_mul_f32 v112, v{MC}, v112"); a(f"v_mul_f32 v113, v{MC+1}, v113")
    rnd2(a, 112, 113, T0)
    a("v_add_f32 v116, v116, v112"); a("v_add_f32 v117, v117, v113")
    rnd2(a, 116, 117, 118)
    a(f"s_lshl_b32 s49, s{S_SLOT}, 16"); a(f"s_add_u32 s50, s{S_H2O}, s49")
    a(f"buffer_store_dword v118, {vCol}, {WS}, s50 offen offset:1024{st}")
    a("v_add_f32 v120, v116, v117")
    wave_sum(a, 120, T1)
    a(f"v_mul_f32 v120, {f32bits(1/128)}, v120")
    a("v_sub_f32 v112, v116, v120"); a("v_sub_f32 v113, v117, v120")
    a("v_mul_f32 v121, v112, v112"); a("v_fmac_f32 v121, v113, v113")
    wave_sum(a, 121, T1)
    a(f"ds_write_b64 v43, v[120:121] offset:{L_ST}")
    a("s_waitcnt lgkmcnt(0)"); a("s_barrier")
    a(f"ds_read_b128 v[124:127], {vZero} offset:{L_ST}")
    a(f"ds_read_b128 v[128:131], {vZero} offset:{L_ST+16}")
    a("s_waitcnt lgkmcnt(0)")
    a("v_add_f32 v120, v124, v126"); a("v_add_f32 v121, v128, v130"); a("v_add_f32 v120, v120, v121")
    a("v_mul_f32 v120, 0.25, v120")
    a("v_add_f32 v122, v125, v127"); a("v_add_f32 v123, v129, v131"); a("v_add_f32 v122, v122, v123")
    for r in (124, 126, 128, 130): a(f"v_sub_f32 v{r}, v{r}, v120")
    a("v_mul_f32 v123, v124, v124")
    for r in (126, 128, 130): a(f"v_fmac_f32 v123, v{r}, v{r}")
    a(f"v_mul_f32 v122, {f32bits(1/512)}, v122")
    a("v_fmac_f32 v122, 0.25, v123")
    rnd1(a, 120); rnd1(a, 122)
    a(f"v_add_f32 v122, {f32bits(1e-5)}, v122"); rnd1(a, 122)
    a("v_sqrt_f32 v122, v122")
    a("v_sub_f32 v112, v116, v120"); a("v_sub_f32 v113, v117, v120")
    rnd1(a, 122)
    a("v_rcp_f32 v122, v122")
    rnd2(a, 112, 113, T0)
    a("v_mul_f32 v112, v112, v122"); a("v_mul_f32 v113, v113, v122")
    rnd2(a, 112, 113, T0)
    a(f"v_mul_f32 v112, v112, v{MC+2}"); a(f"v_mul_f32 v113, v113, v{MC+3}")
    rnd2(a, 112, 113, T0)
    a(f"v_add_f32 v112, v112, v{MC+4}"); a(f"v_add_f32 v113, v113, v{MC+5}")
    a(f"v_cvt_pk_bf16_f32 v{T0}, v112, v113")
    a(f"buffer_store_dword v{T0}, {vCol}, {WS}, s50 offen{st}")
    tstamp(a, opt, 6)
    a(f"s_lshl_b32 s48, s{S_PSLOT}, 16"); a(f"s_add_u32 s48, s{S_H2O}, s48")
    a("v_mov_b32 v42, -1"); a("v_mov_b32 v43, -1")
    a(f"buffer_store_dword v42, {vCol}, {WS}, s48 offen{st}")
    a(f"buffer_store_dword v42, {vCol}, {WS}, s48 offen offset:1024{st}")
    a(f"s_cmp_ge_u32 s{S_SEG}, {XS}")
    a(f"s_cselect_b32 s48, {NT + 2 if 'g2t' in opt else NT}, {NT}")
    a(f"s_add_u32 s{S_NXT}, s{S_SEG}, s48")
    a(f"s_cmp_ge_u32 s{S_H}, 28")
    a(f"s_cbranch_scc1 {pfx}_noffn")
    HR = 48
    a(f"s_add_u32 s50, s{S_H2B}, s49")
    def ld():
        for i in range(8):
            a(f"s_add_u32 s48, s50, {i*8192}")
            a(f"buffer_load_dwordx4 {vr(HR+4*i,4)}, {vHg}, {WS}, s48 offen sc1")
    def ck():
        for i in range(8):
            a(f"s_waitcnt vmcnt({7-i})")
            a(f"ds_write_b128 {vHw}, {vr(HR+4*i,4)} offset:{(i//4)*RTS + (i%4)*64}")
            if i: a(f"v_max_u32 v{T0}, v{T0 if i > 1 else HR}, v{HR+4*i}")
        a(f"v_cmp_eq_u32 vcc, -1, v{T0}")
    if geti("t2", 2): a(f"s_sleep {geti('t2', 2)}")
    poll(a, pfx + "_h2", ld, ck, sleep=2)
    tstamp(a, opt, 7)
    a("s_waitcnt lgkmcnt(0)"); a("s_barrier")
    HB = lambda rt, ks: 80 + ((ks % 4) * 2 + rt) * 4
    lq0 = LQ()
    def rd(lq, ks):
        for rt in range(2):
            a(f"ds_read_b128 {vr(HB(rt, ks),4)}, {vHr} offset:{rt*RTS + ks*FS}"); lq.issue(ks)
    for ks in range(3): rd(lq0, ks)
    prefetch(a, pfx + "_pf1", S_NXT, body=False)
    for withpf in (True, False):
        lq = LQ(); lq.q = list(lq0.q)
        pl = pf_list() if withpf else []
        for ks in range(16):
            a(lq.wait(ks))
            n = 0
            for rt in range(2):
                for m in range(2):
                    d = vr(112 + (rt * 2 + m) * 4, 4)
                    a(f"v_mfma_f32_16x16x32_bf16 {d}, {GF(m, ks)}, {vr(HB(rt, ks),4)}, {d if ks else 0}")
                    if n == 0 and ks + 3 < 16: rd(lq, ks + 3)
                    if n == 2 and pl:
                        for x in pl.pop(0): a(x)
                    n += 1
        if withpf:
            a(f"s_branch {pfx}_gud")
            a.label(pfx + "_pf1_skip")
    a.label(pfx + "_gud")
    a(f"s_lshl_b32 s48, s{S_SLOT}, 17"); a(f"s_add_u32 s48, s{S_ACTW}, s48"); a(f"s_add_u32 s50, s48, {56*1024}")
    a("s_nop 0")
    for rt in range(2):
        g0 = 112 + rt * 8; u0 = g0 + 4
        for j in (0, 2): rnd2(a, g0 + j, g0 + j + 1, T0)
        for j in (0, 2): rnd2(a, u0 + j, u0 + j + 1, T0)
        for j in range(4): a(f"v_mul_f32 v{g0+j}, v{g0+j}, v{u0+j}")
        a(f"v_cvt_pk_bf16_f32 v{128+2*rt}, v{g0}, v{g0+1}"); a(f"v_cvt_pk_bf16_f32 v{129+2*rt}, v{g0+2}, v{g0+3}")
        a(f"buffer_store_dwordx2 {vr(128+2*rt,2)}, {vL16}, {WS}, s{(48, 50)[rt]} offen{st}")
    a(f"s_lshl_b32 s48, s{S_PSLOT}, 17"); a(f"s_add_u32 s48, s{S_ACTW}, s48"); a(f"s_add_u32 s50, s48, {56*1024}")
    a(f"buffer_store_dwordx2 v[42:43], {vL16}, {WS}, s48 offen{st}")
    a(f"buffer_store_dwordx2 v[42:43], {vL16}, {WS}, s50 offen{st}")
    if geti("t3", 2): a(f"s_sleep {geti('t3', 2)}")
    a(f"s_branch {pfx}_E")
    a.label(pfx + "_noffn")
    prefetch(a, pfx + "_pf2", S_NXT)
    a("s_sleep 32")
    a.label(pfx + "_E")
    tstamp(a, opt, 8)
    AR = 48
    a(f"s_lshl_b32 s50, s{S_SLOT}, 17"); a(f"s_add_u32 s50, s{S_ACTR}, s50")
    a(f"s_lshl_b32 s49, s{S_SLOT}, 16"); a(f"s_add_u32 s49, s{S_X2R}, s49")
    def ld():
        a(f"buffer_load_dword v41, {vX2g}, {WS}, s49 offen sc1")
        for i in range(14):
            if i % 4 == 0: a(f"s_add_u32 s48, s50, {(i//4)*4096}")
            a(f"buffer_load_dwordx4 {vr(AR+4*i,4)}, {vL16}, {WS}, s48 offen offset:{1024*(i%4)} sc1")
    def ck():
        for i in range(14):
            a(f"s_waitcnt vmcnt({13-i})")
            for t in range(2):
                d = vr(112 + 4 * t, 4)
                a(f"v_mfma_f32_16x16x32_bf16 {d}, {DF(t, i)}, {vr(AR+4*i,4)}, {d if i else 0}")
            a(f"v_max3_u32 v{T0}, v{T0 if i else 41}, v{AR+4*i}, v{AR+4*i+2}")
        a(f"v_cmp_eq_u32 vcc, -1, v{T0}")
        a(f"v_lshlrev_b32 v124, 16, v41"); a(f"v_and_b32 v125, s{MASK}, v41")
    poll(a, pfx + "_act", ld, ck, sleep=2)
    tstamp(a, opt, 9)
    a("s_nop 2")
    a(f"ds_write_b128 {vEw}, v[112:115]"); a(f"ds_write_b128 {vEw}, v[116:119] offset:1024")
    a("s_waitcnt lgkmcnt(0)"); a("s_barrier")
    for w in range(4): a(f"ds_read_b64 {vr(112+2*w,2)}, {vEr} offset:{2048*w}")
    a("s_waitcnt lgkmcnt(0)")
    a("v_add_f32 v112, v112, v114"); a("v_add_f32 v113, v113, v115"); a("v_add_f32 v116, v116, v118"); a("v_add_f32 v117, v117, v119")
    a("v_add_f32 v112, v112, v116"); a("v_add_f32 v113, v113, v117")
    rnd2(a, 112, 113, T0)
    a(f"v_mul_f32 v112, v{MC+6}, v112"); a(f"v_mul_f32 v113, v{MC+7}, v113")
    rnd2(a, 112, 113, T0)
    a("v_add_f32 v112, v124, v112"); a("v_add_f32 v113, v125, v113")
    a(f"v_cvt_pk_bf16_f32 v{T0}, v112, v113")
    a(f"buffer_store_dword v{T0}, {vEo}, {sr(S_O,4)}, s{S_OUT} offen{' sc1' if 'osc1' in opt else (' nt' if 'ont' in opt else '')}")
    tstamp(a, opt, 10)
    a(f"s_mov_b32 s{S_SEG}, s{S_NXT}")
    seg_addrs(a)
    a(f"s_xor_b32 s{S_TAG}, s{S_TAG}, 1")
    a(f"s_mov_b32 s{S_PSLOT}, s{S_SLOT}")
    a(f"s_add_u32 s{S_SLOT}, s{S_SLOT}, 1")
    a(f"s_cmp_ge_u32 s{S_SLOT}, 3")
    a(f"s_cselect_b32 s{S_SLOT}, 0, s{S_SLOT}")
    a(f"s_cmp_lt_u32 s{S_SEG}, s{S_LIM}")
    a(f"s_cbranch_scc1 {pfx}_loop")
    a("s_waitcnt vmcnt(0)")
    if "time" in opt: a("v_mov_b32 v143, v47")

def emit_post(a, opt):
    import mega, pre
    a(f"s_mov_b32 s{MASK}, 0xffff0000")
    emit_post_weights(a, opt)
    if "time" in opt: a("s_memrealtime s[84:85]")
    emit_post_final(a, opt)
    if "time" in opt: a("s_memrealtime s[86:87]")
    a(f"s_cmp_lg_u32 s{S_MODE}, 0")
    a("s_cbranch_scc1 T_slow")
    emit_post_loop(a, True, "TF", opt)
    a("s_branch L_done")
    a.label("T_slow")
    emit_post_loop(a, False, "TS", opt)
```

```python
from common import *
def emit_gemm(a, opt=()):
    a.c("==== G role: s3 = team (2: K, 3: V), s14 = head ====")
    LE = lambda *x, **k: lane_expr(a, *x, tmp="v31", **k)
    WS = sr(S_WS, 4)
    def geti(p, d):
        for o in opt:
            if o.startswith(p) and o[len(p):].isdigit(): return int(o[len(p):])
        return d
    S_OUT, S_OUT2, S_QO, S_HS, S_M0, S_SEG, S_FL, S_HT, S_DONE, S_PO, S_QO2 = 17, 18, 19, 20, 21, 22, 23, 24, 25, 26, 27
    a("s_load_dwordx4 s[32:35], s[0:1], 24")
    a("s_load_dwordx2 s[36:37], s[0:1], 16")
    LE("v28", "v0", [(4, 2, 5)])
    LE("v29", "v0", [(0, 4, 4)])
    a("v_xor_b32 v28, v28, v29")
    LE("v30", "v0", [(4, 2, 13)])
    a("v_add_u32 v5, v28, v30")
    a("v_xor_b32 v6, 128, v5")
    sexpr(a, 50, [(S_H, 0, 5, 8), (S_W, 0, 2, 20)])
    sexpr(a, 51, [(S_W, 0, 2, 15)])
    a("s_waitcnt lgkmcnt(0)")
    a(f"s_cmp_eq_u32 s{S_TEAM}, 3")
    a("s_cselect_b32 s32, s34, s32"); a("s_cselect_b32 s33, s35, s33")
    def stage(ptr):
        l = a.uid("gs")
        srd(a, S_T, ptr, 4194304)
        a("s_mov_b32 m0, s51"); a("s_mov_b32 s48, s50")
        a("s_movk_i32 s16, 0x400"); a("s_mov_b32 s28, 0x8000"); a("s_mov_b32 s29, 8")
        a.label(l)
        for i in range(4):
            a(f"buffer_load_dwordx4 v{5 + ((i >> 1) & 1)}, {sr(S_T,4)}, s48 offen lds")
            a("s_add_u32 m0, m0, s16"); a("s_add_u32 s48, s48, s28")
        a("s_sub_u32 s29, s29, 1"); a("s_cmp_lg_u32 s29, 0"); a(f"s_cbranch_scc1 {l}")
    W = lambda m, t, ks, off=0, n=4: ar(m * 128 + (t * 16 + ks) * 4 + off, n)
    def frags(m):
        a("s_waitcnt vmcnt(0)")
        a("s_barrier")
        for ks in range(16):
            for t in range(2):
                for u in range(2):
                    off = ((32 * ks + 4 * u) * 256) % 65536
                    a(f"ds_read_b64_tr_b16 {W(m, t, ks, 2*u, 2)}, v{8 + t + 2 * (ks // 8)} offset:{off}")
        a("s_waitcnt lgkmcnt(0)")
    stage(32)
    sexpr(a, S_FL, [(S_H, 0, 5, 7), (S_TEAM, 0, 1, 4)], WS_FLAG)
    a("v_and_b32 v4, 63, v0")
    a("v_cmp_eq_u32 vcc, 0, v4")
    a("v_mov_b32 v3, 0x40000000")
    a("s_nop 0")
    a("v_cndmask_b32 v3, v3, 0, vcc")
    LE("v28", "v0", [(4, 2, 11), (2, 2, 8), (0, 1, 3)])
    LE("v29", "v0", [(6, 2, 6), (1, 1, 4)])
    LE("v30", "v0", [(2, 2, 5), (4, 1, 7)])
    a("v_xor_b32 v29, v29, v30")
    a("v_add_u32 v8, v28, v29")
    a("v_xor_b32 v9, 32, v8")
    a("v_add_u32 v10, 0x10000, v8")
    a("v_add_u32 v11, 0x10000, v9")
    frags(0)
    a("s_barrier")
    stage(36)
    claim(a)
    a(f"s_mul_i32 s{S_OUT}, s{S_H}, {HSTR}")
    a(f"s_mul_i32 s{S_QO}, s{S_H}, {QSTR}")
    sexpr(a, 48, [(S_W, 0, 2, 10), (S_TEAM, 0, 1, 12)], WS_QX); a(f"s_add_u32 s{S_QO}, s{S_QO}, s48")
    a(f"s_mul_i32 s{S_PO}, s{S_H}, {MSTR}")
    sexpr(a, 48, [(S_W, 0, 2, 10)], WS_KM); a(f"s_add_u32 s{S_PO}, s{S_PO}, s48")
    for i in range(4): a(f"v_mov_b32 v{12+i}, -1")
    a(f"s_cmp_eq_u32 s{S_TEAM}, 3")
    a("s_cbranch_scc1 G_isv")
    sexpr(a, 48, [(S_W, 1, 1, 12), (S_W, 0, 1, 10)], WS_KV)
    a(f"s_add_u32 s{S_OUT}, s{S_OUT}, s48")
    a(f"s_add_u32 s{S_OUT2}, s{S_OUT}, 8192")
    a("s_branch G_addr")
    a.label("G_isv")
    sexpr(a, 48, [(S_W, 0, 2, 12)], WS_KV + 2048)
    a(f"s_add_u32 s{S_OUT}, s{S_OUT}, s48")
    a(f"s_add_u32 s{S_OUT2}, s{S_OUT}, 1024")
    a.label("G_addr")
    for so, stride in ((S_OUT, 16384), (S_OUT2, 16384), (S_QO, 8192), (S_PO, 4096)):
        a(f"s_sub_u32 s{so}, s{so}, {stride}")
    frags(1)
    LE("v1", "v0", [(0, 6, 4)])
    sexpr(a, S_HS, [(S_W, 0, 2, 13)], WS_H)
    sexpr(a, S_M0, [(S_W, 0, 2, 13)])
    verify_claim(a, 0, 163840 - 64)
    tstamp(a, opt, 16)
    dbg_wait(a, D_LN1, N_LN1, sleep=16)
    tstamp(a, opt, 17)
    def dma_list():
        L = []
        for half in range(2):
            for i in range(4):
                pre_ = [f"s_add_u32 m0, s{S_M0}, {half * 4096}", f"s_add_u32 s{S_HT}, s{S_HS}, {half * 4096}"] if i == 0 else []
                L.append(pre_ + [f"buffer_load_dwordx4 v1, {WS}, s{S_HT} offen offset:{1024*i} sc1 lds"])
        L[-1] += [f"s_add_u32 s{S_HS}, s{S_HS}, 32768", f"s_add_u32 s{S_M0}, s{S_M0}, 32768", f"s_and_b32 s{S_M0}, s{S_M0}, 0x1ffff"]
        return L
    for _ in range(3):
        for grp in dma_list():
            for x in grp: a(x)
    a(f"s_mov_b32 s{S_SEG}, 0")
    a(f"s_mov_b32 s{S_DONE}, 0")
    a("v_mov_b32 v2, v1")
    a("v_add_u32 v16, 0x8000, v1")
    a("v_mov_b32 v7, 0x40000000")
    a(f"s_cmp_eq_u32 s{S_W}, 0")
    a("s_cselect_b32 s48, 0, 0x40000000")
    a("v_or_b32 v17, s48, v3")
    a("s_waitcnt vmcnt(8)")
    a("s_barrier")
    HB = lambda rt, ks: 32 + ((ks % 4) * 2 + rt) * 4
    def rd(lq, ks):
        base = "v2" if ks < 16 else "v16"
        for rt in range(2):
            a(f"ds_read_b128 {vr(HB(rt, ks),4)}, {base} offset:{(rt * 16 + ks % 16) * 1024}"); lq.issue(ks % 16)
    lq0 = LQ()
    for ks in range(3): rd(lq0, ks)
    a(f"s_cmp_eq_u32 s{S_TEAM}, 3")
    a("s_cbranch_scc1 G_loopV")
    outs = [(S_OUT, 16384), (S_OUT2, 16384), (S_QO, 8192)]
    for var in ("K", "V"):
        def pend(voff):
            L = [[f"buffer_store_dwordx4 {vr(64+4*k,4)}, {voff}, {WS}, s{so} offen sc1"] for k, (so, stride) in enumerate(outs)]
            if var == "K": L.append([f"buffer_store_dwordx4 v[12:15], {voff}, {WS}, s{S_PO} offen sc1"])
            return L
        adv = [f"s_add_u32 s{so}, s{so}, {stride}" for so, stride in outs] + [f"s_add_u32 s{S_PO}, s{S_PO}, 4096"]
        a.raw(".p2align 6")
        a.label(f"G_loop{var}")
        lq = LQ(); lq.q = list(lq0.q)
        fillers = [["s_barrier", f"v_mov_b32 v4, s{S_DONE}"], [f"buffer_store_dword v4, v17, {WS}, s{S_FL} offen sc1"]] + pend("v7") + dma_list()
        AC = lambda rt, t: 80 + ((rt * 2 + t) * 4 if var == "K" else (t * 2 + rt) * 4)
        qrt = 0 if var == "K" else 1
        for ks in range(16):
            a(lq.wait(ks))
            ml = []
            for rt in range(2):
                for t in range(2):
                    d = vr(AC(rt, t), 4); c = d if ks else "0"
                    if var == "K": ml.append(f"v_mfma_f32_16x16x32_bf16 {d}, {W(0, t, ks)}, {vr(HB(rt, ks),4)}, {c}")
                    else: ml.append(f"v_mfma_f32_16x16x32_bf16 {d}, {vr(HB(rt, ks),4)}, {W(0, t, ks)}, {c}")
            for t in range(2):
                d = vr(96 + 4 * t, 4); c = d if ks else "0"
                ml.append(f"v_mfma_f32_16x16x32_bf16 {d}, {W(1, t, ks)}, {vr(HB(qrt, ks),4)}, {c}")
            for n, m in enumerate(ml):
                a(m)
                if n == 0: rd(lq, ks + 3)
                if (n == 3 or (n == 1 and ks == 0)) and fillers:
                    for x in fillers.pop(0): a(x)
        assert not fillers
        a("v_mov_b32 v2, v16")
        a("v_add_u32 v16, 0x8000, v16")
        a("v_and_b32 v16, 0x1ffff, v16")
        a("v_mov_b32 v7, v1")
        for x in adv: a(x)
        for k in range(3):
            for i in range(4): a(f"v_cvt_pk_bf16_f32 v{64+4*k+i}, v{80+8*k+2*i}, v{81+8*k+2*i}")
        if "glag" in opt:
            a(f"s_max_i32 s48, s{S_SEG}, 1"); a("s_sub_u32 s48, s48, 1")
            a(f"s_max_u32 s{S_DONE}, s{S_DONE}, s48")
            a(f"s_add_u32 s{S_SEG}, s{S_SEG}, 1")
            a(f"s_waitcnt vmcnt({13 if var == 'K' else 12})")
        else:
            a(f"s_max_u32 s{S_DONE}, s{S_DONE}, s{S_SEG}")
            a(f"s_add_u32 s{S_SEG}, s{S_SEG}, 1")
            a("s_waitcnt vmcnt(8)")
        a(f"s_cmp_eq_u32 s{S_SEG}, {N_LN1//2-3}")
        a(f"s_cbranch_scc1 G_first{var}")
        a(f"s_cmp_eq_u32 s{S_SEG}, 2")
        a(f"s_cbranch_scc1 G_second{var}")
        a(f"s_cmp_lt_u32 s{S_SEG}, 64")
        a(f"s_cbranch_scc1 G_loop{var}")
        for g in pend("v1"): a(g[0])
        a("s_branch G_fin")
        a.label(f"G_first{var}")
        dbg_wait(a, D_PRE, 32, sleep=32)
        a(f"s_branch G_loop{var}")
        a.label(f"G_second{var}")
        for g in pend("v1"): a(g[0])
        a("v_mov_b32 v7, 0x40000000")
        a("s_waitcnt vmcnt(0)")
        a(f"s_mov_b32 s{S_DONE}, 2")
        tstamp(a, opt, 18)
        a(f"s_branch G_loop{var}")
    a.label("G_fin")
    a("s_waitcnt vmcnt(0) lgkmcnt(0)")
    a("s_barrier")
    a("v_mov_b32 v4, 64")
    a(f"buffer_store_dword v4, v3, {WS}, s{S_FL} offen sc1")
    a("s_waitcnt vmcnt(0)")
```

```python
from common import *
from pre import rnd1, rnd2, MASK, S_TID, xsum_g
import math
import common
def tstamp(a, opt, idx):
    if "midst" in opt and idx < 16 and "time" in opt:
        l = a.uid("ts")
        a("s_cselect_b32 s80, 1, 0")
        a(f"s_cmp_ge_u32 s{S_SEG}, 52"); a(f"s_cbranch_scc1 {l}")
        common.tstamp(a, opt, idx, "v47")
        a.label(l)
        a("s_cmp_lg_u32 s80, 0")
    else: common.tstamp(a, opt, idx, "v47")

S_X, S_O = 20, 24
S_SEG, S_TAG, S_PC, S_PMAX, S_SC, S_L2E = 28, 29, 30, 31, 18, 19
S_P1S, S_P1L, S_P1S2 = 52, 53, 54
S_SLOT, S_PSLOT = 55, 56
S_H2B, S_H2O, S_ACTW, S_ACTR = 57, 58, 59, 60
S_KV, S_Q, S_KM, S_KMV, S_ROW, S_OUT, S_FLG, S_HAVE, S_X2R = 61, 62, 63, 64, 65, 66, 67, 68, 69
S_MKV, S_MQ, S_MODE = 72, 73, 74
S_LIM = 64
S_STR, S_NXT, S_KMB, S_OUTB, S_KVE, S_QE, S_RWE = 76, 77, 78, 79, 81, 82, 83
XS = 48
def set_xs(opt):
    global XS
    XS = 48
    for o in opt:
        if o.startswith('xs') and o[2:].isdigit(): XS = int(o[2:])
vL16, vCol, vP, vKw, vKr, vHg, vHw, vHr, vOw, vZero, vQr, vVr, vEw, vEr, vEo = ["v%d" % i for i in range(1, 16)]
MC = 16
BIAS, SEL = 24, 32
vX2g = "v36"
XR = 37
T0, T1, T2 = 38, 39, 40
L_O, L_ST, L_E, L_KV, L_Q, L_K, L_H = 0, 16384, 20480, 32768, 65536, 81920, 98304
FS, RTS = 1088, 17408
WoF = lambda ct, ks, off=0, n=4: ar((ct * 8 + ks) * 4 + off, n)
GF = lambda m, ks, off=0, n=4: ar(128 + (m * 16 + ks) * 4 + off, n)
DF = lambda t, ks, off=0, n=4: vr(144 + (t * 14 + ks) * 4 + off, n)

def wave_sum(a, x, t):
    a("s_nop 1")
    for ror in (1, 2, 4, 8):
        a(f"v_add_f32_dpp v{x}, v{x}, v{x} row_ror:{ror} row_mask:0xf bank_mask:0xf")
        if ror < 8: a("s_nop 1")
    xsum_g(a, x, t)

def emit_post_addr(a, opt=()):
    LE = lambda *x, **k: lane_expr(a, *x, tmp="v47", **k)
    WS = sr(S_WS, 4)
    LE(vL16, "v0", [(0, 6, 4)])
    LE(vCol, "v0", [(6, 2, 8), (2, 2, 6), (5, 1, 5), (0, 2, 3), (4, 1, 2)])
    LE(vP, "v0", [(0, 4, 14), (4, 2, 4)])
    LE(vKw, "v0", [(6, 2, 12), (0, 4, 5), (4, 2, 3)], L_K)
    LE("v48", "v0", [(2, 2, 3)]); a(f"v_xor_b32 {vKw}, {vKw}, v48")
    LE(vKr, "v0", [(6, 2, 12), (0, 6, 3)], L_K)
    LE("v48", "v0", [(4, 2, 3)]); a(f"v_xor_b32 {vKr}, {vKr}, v48")
    LE(vHg, "v0", [(4, 2, 11), (6, 2, 8), (0, 4, 4)])
    LE("v48", "v0", [(6, 2, 2), (2, 2, 0)])
    a(f"v_mul_u32_u24 {vHw}, {FS}, v48")
    a("v_and_b32 v48, 3, v0"); a("v_mul_u32_u24 v48, 272, v48"); a(f"v_add_u32 {vHw}, {vHw}, v48")
    LE("v48", "v0", [(4, 2, 4)], L_H); a(f"v_add_u32 {vHw}, {vHw}, v48")
    a("v_bfe_u32 v48, v0, 4, 2"); a(f"v_mul_u32_u24 {vHr}, 272, v48")
    LE("v48", "v0", [(0, 4, 4)], L_H); a(f"v_add_u32 {vHr}, {vHr}, v48")
    LE(vOw, "v0", [(6, 1, 13), (7, 1, 12), (0, 6, 4)], L_O)
    a(f"v_mov_b32 {vZero}, 0")
    LE(vQr, "v0", [(6, 2, 12), (0, 6, 4)], L_Q)
    LE(vVr, "v0", [(7, 1, 14), (0, 6, 4)], L_KV)
    LE(vEw, "v0", [(6, 2, 11), (0, 6, 4)], L_E)
    LE(vEr, "v0", [(3, 1, 10), (1, 2, 8), (4, 4, 4), (0, 1, 3)], L_E)
    LE(vEo, "v0", [(4, 4, 10), (0, 4, 2)])
    LE(vX2g, "v0", [(4, 4, 11), (0, 4, 2)])
    a(f"s_sub_u32 s50, s{S_TEAM}, {T0_}")
    sexpr(a, S_P1S, [(50, 0, 3, 20), (S_H, 0, 1, 13), (S_W, 1, 1, 12), (S_H, 1, 4, 8), (S_W, 0, 1, 7)], WS_P1)
    a(f"s_add_u32 s{S_P1S2}, s{S_P1S}, {16*16384}")
    sexpr(a, S_P1L, [(50, 0, 3, 20), (S_H, 0, 5, 14), (S_W, 0, 2, 12)], WS_P1)
    sexpr(a, S_H2B, [(50, 0, 3, 18)], WS_H2)
    sexpr(a, S_H2O, [(50, 0, 3, 18), (S_H, 0, 5, 11)], WS_H2)
    sexpr(a, S_X2R, [(50, 0, 3, 18), (S_H, 0, 1, 15), (S_H, 1, 4, 6)], WS_H2 + 1024)
    sexpr(a, S_ACTW, [(50, 0, 3, 19), (S_H, 0, 5, 11), (S_W, 1, 1, 10), (S_W, 0, 1, 3)], WS_ACT)
    a(f"s_and_b32 s48, s{S_H}, 1"); a(f"s_mul_i32 s48, s48, {56*1024}")
    a(f"s_mul_i32 s51, s{S_W}, {14*1024}"); a("s_add_u32 s48, s48, s51")
    sexpr(a, S_ACTR, [(50, 0, 3, 19)], WS_ACT); a(f"s_add_u32 s{S_ACTR}, s{S_ACTR}, s48")

def emit_post_weights(a, opt):
    LE = lambda *x, **k: lane_expr(a, *x, tmp="v47", **k)
    WS = sr(S_WS, 4)
    def geti(p, d):
        for o in opt:
            if o.startswith(p) and o[len(p):].isdigit(): return int(o[len(p):])
        return d
    import mega
    a.c("==== T role: team-buffer init + stationary weights ====")
    a("s_load_dwordx2 s[34:35], s[0:1], 40")
    a("s_load_dwordx4 s[36:39], s[0:1], 64")
    a("s_load_dwordx2 s[40:41], s[0:1], 80")
    emit_post_addr(a, opt)
    LE("v60", "v0", [(3, 3, 10)]); LE("v61", "v0", [(0, 3, 4)]); LE("v62", "v0", [(4, 2, 5)])
    a("v_xor_b32 v62, v61, v62"); a("v_add_u32 v66, v60, v62")
    LE("v67", "v0", [(6, 2, 15), (2, 4, 7), (1, 1, 4), (3, 2, 5), (0, 1, 3)])
    LE("v60", "v0", [(2, 4, 10)]); LE("v62", "v0", [(0, 2, 4)]); LE("v63", "v0", [(4, 1, 5)])
    a("v_xor_b32 v62, v62, v63"); a("v_add_u32 v68, v60, v62")
    LE("v69", "v0", [(6, 2, 15), (2, 4, 6), (1, 1, 4), (4, 1, 5), (0, 1, 3)])
    a("v_xor_b32 v70, 32, v69")
    a("v_bfe_u32 v60, v0, 3, 3"); a("v_mul_u32_u24 v60, 3584, v60")
    a("v_xor_b32 v62, v61, v63"); a("v_add_u32 v71, v60, v62")
    a("v_xor_b32 v62, 64, v62"); a("v_add_u32 v72, v60, v62")
    LE("v60", "v0", [(4, 2, 10), (2, 2, 7), (0, 1, 3)]); LE("v62", "v0", [(6, 2, 5), (1, 1, 4)]); LE("v63", "v0", [(3, 1, 5), (4, 1, 6)])
    a("v_xor_b32 v62, v62, v63"); a("v_add_u32 v73, v60, v62"); a("v_add_u32 v74, 0x10000, v73")
    S_LB, S_WOS, S_DNS, S_GUS = 76, 77, 78, 79
    sexpr(a, S_LB, [(S_W, 0, 2, 15)])
    sexpr(a, S_WOS, [(S_H, 1, 4, 18), (S_H, 0, 1, 9), (S_W, 0, 2, 7)])
    a(f"s_mul_i32 s{S_DNS}, s{S_W}, {448*1024}"); sexpr(a, 48, [(S_H, 1, 4, 6)]); a(f"s_add_u32 s{S_DNS}, s{S_DNS}, s48")
    a(f"s_mul_i32 s{S_GUS}, s{S_W}, {128*3584}"); a(f"s_min_u32 s48, s{S_H}, 27"); a("s_lshl_b32 s48, s48, 7"); a(f"s_add_u32 s{S_GUS}, s{S_GUS}, s48")
    a(f"s_cmp_lg_u32 s{S_CLM}, 0")
    a("s_cbranch_scc1 T_nw")
    for _ in range(geti("ts", 2)): a("s_sleep 64")
    claim(a)
    verify_claim(a, 0, 163840 - 64)
    wl = geti("wl", 8)
    a(f"s_cmp_ge_u32 s{S_TEAM}, {wl}")
    a(f"s_cselect_b32 s50, {D_LN1}, {D_MOD1}")
    a("s_lshl_b32 s50, s50, 2")
    dbg_wait(a, 0, 32, "v44", "v45", soff=50, sleep=40, limit=10)
    for _ in range(geti("tx", 0)): a("s_sleep 32")
    a.label("T_nw")
    a("s_waitcnt lgkmcnt(0)")
    tstamp(a, opt, 16)
    q = VmQ(a)
    def batch(tag, ptr, nbytes, sbase, voff, half, idxs, rowbytes):
        srd(a, S_T, ptr, nbytes)
        for n, i in enumerate(idxs):
            a(f"s_add_u32 m0, s{S_LB}, {half * 16384 + n * 1024}")
            a(f"s_add_u32 s48, s{sbase}, {i * rowbytes}")
            a(f"buffer_load_dwordx4 v{voff(i)}, {sr(S_T,4)}, s48 offen lds")
            if geti("tw", 0): a(f"s_waitcnt vmcnt({geti('tw', 0)})")
        q.issue(tag, len(idxs))
    wo = lambda h: batch(("wo", h), 34, 4194304, S_WOS, lambda i: 66, h, range(16 * h, 16 * h + 16), 8 * 1024)
    dn = lambda h: batch(("dn", h), 40, 1792 * 1024, S_DNS, lambda i: 68, h, range(16 * h, min(16 * h + 16, 28)), 16 * 1024)
    gu = lambda m: batch(("gu", m), 36 + 2 * m, 512 * 3584, S_GUS, lambda i: 71 + (i & 1), m, range(16), 8 * 3584)
    wo(0); wo(1)
    for h in range(2):
        q.wait(("wo", h))
        for ct in range(4):
            a(f"v_xor_b32 v65, {32 * ct}, v67")
            for ks in range(4 * h, 4 * h + 4):
                for u in range(2):
                    a(f"ds_read_b64_tr_b16 {WoF(ct, ks, 2*u, 2)}, v65 offset:{(32*ks + 16*u) * 128}")
        a("s_waitcnt lgkmcnt(0)")
        dn(h)
    tstamp(a, opt, 17)
    for h in range(2):
        q.wait(("dn", h))
        for t in range(2):
            for ks in range(8 * h, min(8 * h + 8, 14)):
                for u in range(2):
                    a(f"ds_read_b64_tr_b16 {DF(t, ks, 2*u, 2)}, v{69+t} offset:{(32*ks + 16*u) * 64}")
        a("s_waitcnt lgkmcnt(0)")
        gu(h)
    tstamp(a, opt, 18)
    a(f"v_mov_b32 v46, {163840 - 32}")
    a(f"s_cmp_lg_u32 s{S_W}, 0")
    a("s_cbranch_scc1 T_mdw")
    a(f"s_mov_b32 s{S_MODE}, 1")
    mega.emit_mode(a, opt, "T_md1", "v44", "v45")
    a(f"s_mov_b32 s{S_MODE}, 0")
    a.label("T_md1")
    a(f"v_mov_b32 v45, s{S_MODE}")
    a("ds_write_b32 v46, v45")
    a.label("T_mdw")
    a("s_waitcnt vmcnt(0) lgkmcnt(0)")
    a("s_barrier")
    tstamp(a, opt, 19)
    a("ds_read_b32 v45, v46")
    a("s_waitcnt lgkmcnt(0)")
    a(f"v_readfirstlane_b32 s{S_MODE}, v45")
    a("s_nop 3")
    a(f"s_cmp_lg_u32 s{S_MODE}, 0")
    a("s_cbranch_scc1 T_init1")
    for mode, st in ((0, ""), (1, " sc1")):
        a.label(f"T_init{mode}")
        for i in range(2): a(f"v_mov_b32 v{48+i}, -1")
        for i in range(4): a(f"v_mov_b32 v{52+i}, 0")
        for k in range(4):
            a(f"buffer_store_dwordx4 v[52:55], {vL16}, {WS}, s{S_P1L} offen offset:{1024*k}{st}")
        for sl in range(3):
            a(f"s_add_u32 s48, s{S_H2O}, {sl*65536}")
            a(f"buffer_store_dword v48, {vCol}, {WS}, s48 offen{st}")
            a(f"buffer_store_dword v48, {vCol}, {WS}, s48 offen offset:1024{st}")
        a(f"s_cmp_ge_u32 s{S_H}, 28")
        a(f"s_cbranch_scc1 T_nopa{mode}")
        for sl in range(3):
            for rt in range(2):
                a(f"s_add_u32 s48, s{S_ACTW}, {sl*131072 + rt*56*1024}")
                a(f"buffer_store_dwordx2 v[48:49], {vL16}, {WS}, s48 offen{st}")
        a.label(f"T_nopa{mode}")
        if mode == 0: a("s_branch T_initd")
    a.label("T_initd")
    for m in range(2):
        for ks in range(16):
            for u in range(2):
                off = ((ks // 4) % 2) * 32768 + m * 16384 + (32 * (ks % 4) + 4 * u) * 128
                a(f"ds_read_b64_tr_b16 {GF(m, ks, 2*u, 2)}, v{73 + ks // 8} offset:{off}")
    a("s_waitcnt vmcnt(0) lgkmcnt(0)")
    a("s_barrier")
    a(f"s_cmp_lg_u32 s{S_W}, 0")
    a("s_cbranch_scc1 T_noarr")
    a(f"s_lshl_b32 s50, s{S_TEAM}, 2")
    dbg_arrive(a, D_INIT - T0_, "v44", "v45", soff=50)
    a.label("T_noarr")

def emit_post_final(a, opt):
    LE = lambda *x, **k: lane_expr(a, *x, tmp="v47", **k)
    WS = sr(S_WS, 4)
    a("s_load_dwordx2 s[32:33], s[0:1], 0")
    a("s_load_dwordx2 s[42:43], s[0:1], 104")
    dbg_wait(a, D_MOD2, 32, "v44", "v45", sleep=32)
    a(f"s_mov_b32 s48, {hex(WS_MOD + 2048)}")
    for i, k in enumerate((0, 2, 1)):
        a(f"buffer_load_dword v{56+i}, {vCol}, {WS}, s48 offen offset:{1024*k} sc1")
    LE("v60", "v0", [(0, 4, 2)])
    sexpr(a, 48, [(S_H, 1, 4, 6)], WS_MOD + 5 * 1024)
    a(f"buffer_load_dword v59, v60, {WS}, s48 offen sc1")
    a("s_waitcnt vmcnt(0) lgkmcnt(0)")
    for i in range(4):
        a(f"v_lshlrev_b32 v{MC+2*i}, 16, v{56+i}")
        a(f"v_and_b32 v{MC+2*i+1}, s{MASK}, v{56+i}")
    a(f"v_add_f32 v{MC+2}, 1.0, v{MC+2}"); a(f"v_add_f32 v{MC+3}, 1.0, v{MC+3}")
    rnd2(a, MC + 2, MC + 3, 47)
    srd(a, S_X, 32, 2048 * 1024)
    srd(a, S_O, 42, 2048 * 1024)
    a("v_and_b32 v60, 3, v0"); a("v_bfe_u32 v61, v0, 2, 2")
    a("v_mov_b32 v62, 0x3f80"); a("v_mov_b32 v63, 0x3f800000")
    a("v_cmp_eq_u32 vcc, 1, v60"); a("s_nop 1"); a("v_cndmask_b32 v62, v62, v63, vcc")
    a("v_cmp_gt_u32 vcc, 2, v60"); a("s_nop 1"); a("v_cndmask_b32 v62, 0, v62, vcc")
    for d in range(4):
        a(f"v_cmp_eq_u32 vcc, {d}, v61"); a("s_nop 1"); a(f"v_cndmask_b32 v{SEL+d}, 0, v62, vcc")
    LE("v60", "v0", [(6, 1, 4), (0, 4, 0)])
    LE("v61", "v0", [(4, 2, 2)])
    a(f"v_mov_b32 v63, {f32bits(-1e30)}")
    for t in range(2):
        for r in range(4):
            a(f"v_add_u32 v62, {16*t + r}, v61")
            a("v_cmp_gt_u32 vcc, v62, v60"); a("s_nop 1")
            a(f"v_cndmask_b32 v{BIAS+4*t+r}, 0, v63, vcc")
    a(f"s_sub_u32 s{S_SEG}, s{S_TEAM}, {T0_}")
    a(f"s_mov_b32 s{S_LIM}, 64")
    if "g2t" in opt:
        a(f"s_add_u32 s48, s{S_TEAM}, {XS + NT - 2}")
        a(f"s_cmp_lt_u32 s{S_TEAM}, {T0_}")
        a(f"s_cselect_b32 s{S_SEG}, s48, s{S_SEG}")
    sexpr(a, 50, [(S_H, 1, 4, 1), (S_W, 1, 1, 0)])
    a(f"s_mul_i32 s{S_KV}, s50, {HSTR}")
    sexpr(a, 48, [(S_W, 0, 1, 13)], WS_KV); a(f"s_add_u32 s{S_KV}, s{S_KV}, s48")
    a(f"s_mul_i32 s{S_Q}, s50, {QSTR}")
    sexpr(a, 48, [(S_W, 0, 1, 12)], WS_QX); a(f"s_add_u32 s{S_Q}, s{S_Q}, s48")
    sexpr(a, S_MKV, [(S_W, 0, 2, 13)], L_KV)
    sexpr(a, S_MQ, [(S_W, 0, 2, 12)], L_Q)
    a(f"s_mul_i32 s{S_KM}, s50, {MSTR}")
    a(f"s_add_u32 s{S_KMB}, s{S_KM}, {hex(WS_KM)}")
    sexpr(a, S_FLG, [(50, 0, 5, 7)], WS_FLAG)
    sexpr(a, S_ROW, [(S_H, 0, 5, 10)])
    sexpr(a, S_OUTB, [(S_H, 0, 1, 14), (S_H, 1, 4, 6)])
    seg_addrs(a)
    a(f"s_mov_b32 s{S_HAVE}, 0")
    a(f"s_mov_b32 s{S_TAG}, 1")
    a(f"s_mov_b32 s{S_SLOT}, 0")
    a(f"s_mov_b32 s{S_PSLOT}, 2")
    a(f"s_mov_b32 s{S_PMAX}, 100000")
    a(f"s_mov_b32 s{S_SC}, {f32bits(128 ** -0.5)}")
    a(f"s_mov_b32 s{S_L2E}, {f32bits(math.log2(math.e))}")
    a(f"s_lshl_b32 s50, s{S_TEAM}, 2")
    dbg_wait(a, D_INIT - T0_, 32, "v44", "v45", soff=50, sleep=24)

def poll(a, name, loads, check, sleep=3):
    a(f"s_mov_b32 s{S_PC}, 0")
    a.label(name)
    loads()
    check()
    a(f"s_cbranch_vccz {name}_ok")
    a(f"s_sleep {sleep}")
    a(f"s_add_u32 s{S_PC}, s{S_PC}, 1")
    a(f"s_cmp_lt_u32 s{S_PC}, s{S_PMAX}")
    a(f"s_cbranch_scc1 {name}")
    a(f"s_mov_b32 s{S_PMAX}, 1")
    a.label(name + "_ok")

def seg_addrs(a):
    a(f"s_lshl_b32 s48, s{S_SEG}, 12"); a(f"s_add_u32 s{S_KM}, s{S_KMB}, s48")
    a(f"s_lshl_b32 s48, s{S_SEG}, 15"); a(f"s_add_u32 s{S_OUT}, s{S_OUTB}, s48")

def pf_list():
    WS = sr(S_WS, 4)
    L = []
    for half in range(2):
        for i in range(4):
            L.append(([f"s_add_u32 m0, s{S_MKV}, {half*4096}", f"s_add_u32 s48, s{S_KVE}, {half*4096}"] if i == 0 else []) +
                     [f"buffer_load_dwordx4 {vL16}, {WS}, s48 offen offset:{1024*i} sc1 lds"])
    for i in range(4):
        L.append(([f"s_mov_b32 m0, s{S_MQ}", "s_nop 0"] if i == 0 else []) + [f"buffer_load_dwordx4 {vL16}, {WS}, s{S_QE} offen offset:{1024*i} sc1 lds"])
    L.append([f"buffer_load_dword v{XR}, {vCol}, {sr(S_X,4)}, s{S_RWE} offen"])
    return L

def prefetch(a, name, segreg, body=True):
    WS = sr(S_WS, 4)
    a(f"s_cmp_ge_u32 s{segreg}, s{S_LIM}")
    a(f"s_cbranch_scc1 {name}_skip")
    a(f"s_cmp_gt_u32 s{S_HAVE}, s{segreg}")
    a(f"s_cbranch_scc1 {name}_fok")
    a(f"s_mov_b32 s{S_PC}, 0")
    a.label(name + "_fl")
    a("s_mov_b64 exec, 3")
    a(f"buffer_load_dword v45, {vL16}, {WS}, s{S_FLG} offen sc1")
    a("s_mov_b64 exec, -1")
    a("s_waitcnt vmcnt(0)")
    a(f"v_readlane_b32 s{S_HAVE}, v45, 0"); a("v_readlane_b32 s48, v45, 1")
    a("s_nop 1")
    a(f"s_min_u32 s{S_HAVE}, s{S_HAVE}, s48")
    a(f"s_cmp_gt_u32 s{S_HAVE}, s{segreg}")
    a(f"s_cbranch_scc1 {name}_fok")
    a("s_sleep 8")
    a(f"s_add_u32 s{S_PC}, s{S_PC}, 1")
    a(f"s_cmp_lt_u32 s{S_PC}, s{S_PMAX}")
    a(f"s_cbranch_scc1 {name}_fl")
    a(f"s_mov_b32 s{S_PMAX}, 1")
    a.label(name + "_fok")
    a(f"s_lshl_b32 s48, s{segreg}, 14"); a(f"s_add_u32 s{S_KVE}, s{S_KV}, s48")
    a(f"s_lshl_b32 s48, s{segreg}, 13"); a(f"s_add_u32 s{S_QE}, s{S_Q}, s48")
    a(f"s_lshl_b32 s48, s{segreg}, 15"); a(f"s_add_u32 s{S_RWE}, s{S_ROW}, s48")
    if not body: return
    for g in pf_list():
        for x in g: a(x)
    a.label(name + "_skip")

def emit_post_loop(a, fast, pfx, opt):
    def geti(p, d):
        for o in opt:
            if o.startswith(p) and o[len(p):].isdigit(): return int(o[len(p):])
        return d
    st = "" if fast else " sc1"
    WS = sr(S_WS, 4)
    QF, KX, VX, KF, SS, KMR = 48, 64, 64, 96, 112, 124
    prefetch(a, pfx + "_pf0", S_SEG)
    if "g2t" in opt:
        a(f"s_cmp_ge_u32 s{S_TEAM}, {T0_}")
        a(f"s_cselect_b32 s48, 1, s{S_W}")
        a("s_cmp_lg_u32 s48, 0")
        a(f"s_cbranch_scc1 {pfx}_lw_ok")
        a(f"s_sub_u32 s49, s{S_KM}, {2*4096}")
        a(f"s_mov_b32 s{S_PC}, 0")
        a("s_mov_b64 exec, 1")
        a.label(pfx + "_lw")
        a(f"buffer_load_dword v45, {vL16}, {WS}, s49 offen sc1")
        a("s_waitcnt vmcnt(0)")
        a("v_readfirstlane_b32 s48, v45")
        a("s_cmp_lg_u32 s48, -1")
        a(f"s_cbranch_scc1 {pfx}_lw_x")
        a("s_sleep 16")
        a(f"s_add_u32 s{S_PC}, s{S_PC}, 1")
        a(f"s_cmp_lt_u32 s{S_PC}, 20000")
        a(f"s_cbranch_scc1 {pfx}_lw")
        a.label(pfx + "_lw_x")
        a("s_mov_b64 exec, -1")
        a.label(pfx + "_lw_ok")
    a("s_waitcnt vmcnt(0)")
    a("s_barrier")
    a.raw(".p2align 6")
    a.label(pfx + "_loop")
    tstamp(a, opt, 0)
    def ldkm():
        for i in range(4): a(f"buffer_load_dwordx4 {vr(KMR+4*i,4)}, {vL16}, {WS}, s{S_KM} offen offset:{1024*i} sc1")
    if "wbl" in opt:
        a(f"s_cmp_lt_u32 s{S_SEG}, {64-NT}")
        a(f"s_cselect_b32 s48, 1, s{S_W}")
        a(f"s_or_b32 s48, s48, s{S_H}")
        a(f"s_cbranch_scc1 {pfx}_nwb")
        a("buffer_wbl2 sc1")
        a.label(pfx + "_nwb")
    ldkm()
    for ks in range(4):
        a(f"ds_read_b128 {vr(QF+4*ks,4)}, {vQr} offset:{1024*ks}")
        for t in range(2):
            i = t * 4 + ks
            a(f"ds_read_b128 {vr(KX+4*i,4)}, {vVr} offset:{(i//2)*4096 + (i%2)*1024}")
    for ks in range(4):
        a(f"s_waitcnt lgkmcnt({9-3*ks})")
        for t in range(2):
            d = vr(SS + 4 * t, 4)
            a(f"v_mfma_f32_16x16x32_bf16 {d}, {vr(KX+4*(t*4+ks),4)}, {vr(QF+4*ks,4)}, {d if ks else vr(BIAS+4*t,4)}")
    for i in range(8):
        a(f"ds_read_b128 {vr(VX+4*i,4)}, {vVr} offset:{(i//2)*4096 + 2048 + (i%2)*1024}")
    def scale(regs):
        for i in range(0, len(regs), 2): rnd2(a, regs[i], regs[i+1], T2)
        for r in regs: a(f"v_mul_f32 v{r}, s{S_SC}, v{r}")
        for i in range(0, len(regs), 2): rnd2(a, regs[i], regs[i+1], T2)
    scale(list(range(SS, SS + 8)))
    MX, LX = 41, 46
    a(f"v_max3_f32 v{MX}, v{SS}, v{SS+1}, v{SS+2}"); a(f"v_max3_f32 v{T1}, v{SS+3}, v{SS+4}, v{SS+5}")
    a(f"v_max3_f32 v{MX}, v{MX}, v{SS+6}, v{SS+7}"); a(f"v_max_f32 v{MX}, v{MX}, v{T1}")
    xsum_g(a, MX, T1, "v_max_f32")
    a(f"v_mul_f32 v{T0}, s{S_L2E}, v{MX}")
    for r in range(8): a(f"v_fma_f32 v{SS+r}, v{SS+r}, s{S_L2E}, -v{T0}")
    for r in range(8): a(f"v_exp_f32 v{SS+r}, v{SS+r}")
    a(f"v_add_f32 v{LX}, v{SS}, v{SS+1}"); a(f"v_add_f32 v{T0}, v{SS+2}, v{SS+3}"); a(f"v_add_f32 v{T1}, v{SS+4}, v{SS+5}")
    a(f"v_add_f32 v{T2}, v{SS+6}, v{SS+7}"); a(f"v_add_f32 v{LX}, v{LX}, v{T0}"); a(f"v_add_f32 v{T1}, v{T1}, v{T2}")
    a(f"v_add_f32 v{LX}, v{LX}, v{T1}")
    PX, PM0, OC = 140, 44, 96
    a(f"v_mov_b32 v{PM0+1}, 0")
    tstamp(a, opt, 1)
    a(f"s_mov_b32 s{S_PC}, 0")
    a.label(pfx + "_km")
    a("s_waitcnt vmcnt(0)")
    a(f"v_max3_u32 v{T0}, v{KMR}, v{KMR+4}, v{KMR+8}")
    a(f"v_max_u32 v{T0}, v{T0}, v{KMR+12}")
    a(f"v_cmp_eq_u32 vcc, -1, v{T0}")
    for i in range(4): a(f"ds_write2st64_b32 {vKw}, v{KMR+4*i+1}, v{KMR+4*i+3} offset0:{4*i} offset1:{4*i+2}")
    a(f"s_cbranch_vccz {pfx}_km_ok")
    if "lp" in opt:
        a(f"v_lshlrev_b32 v{T1}, 6, {vL16}")
        a("s_mov_b64 exec, 15")
        a.label(pfx + "_kl")
        a(f"s_sleep {geti('tk', 3)}")
        a(f"buffer_load_dword v{T0}, v{T1}, {WS}, s{S_KM} offen offset:1008 sc1")
        a(f"s_add_u32 s{S_PC}, s{S_PC}, 1")
        a("s_waitcnt vmcnt(0)")
        a(f"v_cmp_eq_u32 vcc, -1, v{T0}")
        a(f"s_cbranch_vccz {pfx}_kl_x")
        a(f"s_cmp_lt_u32 s{S_PC}, s{S_PMAX}")
        a(f"s_cbranch_scc1 {pfx}_kl")
        a.label(pfx + "_kl_x")
        a("s_mov_b64 exec, -1")
    else:
        a(f"s_sleep {geti('tk', 3)}")
    ldkm()
    a(f"s_add_u32 s{S_PC}, s{S_PC}, 1")
    a(f"s_cmp_lt_u32 s{S_PC}, s{S_PMAX}")
    a(f"s_cbranch_scc1 {pfx}_km")
    a(f"s_mov_b32 s{S_PMAX}, 1")
    a("s_waitcnt vmcnt(0)")
    a.label(pfx + "_km_ok")
    tstamp(a, opt, 2)
    for ks in range(4):
        for u in range(2):
            a(f"ds_read_b64_tr_b16 {vr(KF+4*ks+2*u,2)}, {vKr} offset:{1024*ks+512*u}")
    for ks in range(4):
        a(f"s_waitcnt lgkmcnt({6-2*ks})")
        d = vr(SS + 8, 4)
        a(f"v_mfma_f32_16x16x32_bf16 {d}, {vr(KF+4*ks,4)}, {vr(QF+4*ks,4)}, {d if ks else 0}")
    a("s_nop 7")
    scale([SS + 8, SS + 9])
    a(f"v_max3_f32 v{T0}, v{MX}, v{SS+8}, v{SS+9}")
    xsum_g(a, T0, T1, "v_max_f32")
    a(f"v_mul_f32 v{T0}, s{S_L2E}, v{T0}")
    a(f"v_fma_f32 v{MX}, v{MX}, s{S_L2E}, -v{T0}")
    for r in (8, 9): a(f"v_fma_f32 v{SS+r}, v{SS+r}, s{S_L2E}, -v{T0}")
    a(f"v_exp_f32 v{MX}, v{MX}")
    for r in (8, 9): a(f"v_exp_f32 v{SS+r}, v{SS+r}")
    a(f"v_fma_f32 v{LX}, v{LX}, v{MX}, v{SS+8}")
    a(f"v_add_f32 v{LX}, v{LX}, v{SS+9}")
    xsum_g(a, LX, T1)
    a(f"v_rcp_f32 v{LX}, v{LX}")
    a("s_nop 0")
    a(f"v_mul_f32 v42, v{LX}, v{MX}")
    a(f"v_pk_mul_f32 {vr(SS+8,2)}, {vr(SS+8,2)}, {vr(LX,2)} op_sel_hi:[1,0]")
    for r in range(0, 8, 2): a(f"v_pk_mul_f32 {vr(SS+r,2)}, {vr(SS+r,2)}, v[42:43] op_sel_hi:[1,0]")
    a(f"v_cvt_pk_bf16_f32 v{PM0}, v{SS+8}, v{SS+9}")
    for i in range(4): a(f"v_cvt_pk_bf16_f32 v{PX+i}, v{SS+2*i}, v{SS+2*i+1}")
    oc = lambda i: (96 + 4 * i) if i < 4 else (48 + 4 * (i - 4))
    def pk(i2):
        b = oc(2 * i2)
        return [f"v_cvt_pk_bf16_f32 v{SS+4*(i2%2)+k}, v{b+2*k}, v{b+2*k+1}" for k in range(4)] + [f"ds_write_b128 {vOw}, {vr(SS+4*(i2%2),4)} offset:{1024*i2}"]
    for i in range(8):
        a(f"v_mfma_f32_16x16x16_bf16 {vr(oc(i),4)}, {vr(KMR+2*i,2)}, {vr(PM0,2)}, 0")
    for i in range(8):
        a(f"v_mfma_f32_16x16x32_bf16 {vr(oc(i),4)}, {vr(VX+4*i,4)}, {vr(PX,4)}, {vr(oc(i),4)}")
        if i in (3, 5, 7):
            for x in pk((i - 3) // 2): a(x)
    a("s_nop 3")
    for x in pk(3): a(x)
    a("s_waitcnt lgkmcnt(0)"); a("s_barrier")
    OF = 48
    for i in range(16): a(f"ds_read_b128 {vr(OF+4*i,4)}, {vL16} offset:{L_O+1024*i}")
    tstamp(a, opt, 3)
    jobs = [(cq, rt) for rt in range(2) for cq in range(2)]
    def epi(n):
        cq, rt = jobs[n]; ac = 112 + (n % 2) * 8; g = 128 + (n % 2) * 4
        return [f"v_cvt_pk_bf16_f32 v{g+i}, v{ac+2*i}, v{ac+2*i+1}" for i in range(4)] + [f"v_and_or_b32 v{g}, v{g}, -2, s{S_TAG}",
                f"buffer_store_dwordx4 {vr(g,4)}, {vP}, {WS}, s{(S_P1S, S_P1S2)[rt]} offen offset:{64*cq}{st}"]
    for n, (cq, rt) in enumerate(jobs):
        ac = 112 + (n % 2) * 8
        e = epi(n - 1) if n else []
        k = 0
        for ks in range(8):
            if n == 0: a(f"s_waitcnt lgkmcnt({15-ks})")
            if n == 2 and ks == 0: a("s_waitcnt lgkmcnt(0)")
            for u in range(2):
                d = vr(ac + 4 * u, 4)
                a(f"v_mfma_f32_16x16x32_bf16 {d}, {WoF(2*cq+u, ks)}, {vr(OF+4*(rt*8+ks),4)}, {d if ks else 0}")
                k += 1
                if k >= 2:
                    for x in e[2*(k-2):2*(k-1)]: a(x)
    a("s_nop 7")
    for x in epi(3): a(x)
    tstamp(a, opt, 4)
    if geti("t1", 3): a(f"s_sleep {geti('t1', 3)}")
    R = 48
    def ld():
        for i in range(4):
            a(f"buffer_load_dwordx4 {vr(R+4*i,4)}, {vL16}, {WS}, s{S_P1L} offen offset:{1024*i} sc1")
    def ck():
        for i in range(4):
            a(f"s_waitcnt vmcnt({3-i})")
            a(f"v_mfma_f32_16x16x32_bf16 v[112:115], {vr(SEL,4)}, {vr(R+4*i,4)}, {'v[112:115]' if i else 0}")
            a(f"v_xor_b32 v{T1 if i else T0}, s{S_TAG}, v{R+4*i}")
            if i: a(f"v_or_b32 v{T0}, v{T0}, v{T1}")
        a(f"v_and_b32 v{T0}, 1, v{T0}")
        a(f"v_cmp_ne_u32 vcc, 0, v{T0}")
        a(f"v_lshlrev_b32 v116, 16, v{XR}"); a(f"v_and_b32 v117, s{MASK}, v{XR}")
        a(f"s_lshl_b32 s48, s{S_W}, 3"); a("v_mov_b32 v43, s48")
    poll(a, pfx + "_r1", ld, ck, sleep=1)
    tstamp(a, opt, 5)
    rnd2(a, 112, 113, T0)
    a(f"v_mul_f32 v112, v{MC}, v112"); a(f"v_mul_f32 v113, v{MC+1}, v113")
    rnd2(a, 112, 113, T0)
    a("v_add_f32 v116, v116, v112"); a("v_add_f32 v117, v117, v113")
    rnd2(a, 116, 117, 118)
    a(f"s_lshl_b32 s49, s{S_SLOT}, 16"); a(f"s_add_u32 s50, s{S_H2O}, s49")
    a(f"buffer_store_dword v118, {vCol}, {WS}, s50 offen offset:1024{st}")
    a("v_add_f32 v120, v116, v117")
    wave_sum(a, 120, T1)
    a(f"v_mul_f32 v120, {f32bits(1/128)}, v120")
    a("v_sub_f32 v112, v116, v120"); a("v_sub_f32 v113, v117, v120")
    a("v_mul_f32 v121, v112, v112"); a("v_fmac_f32 v121, v113, v113")
    wave_sum(a, 121, T1)
    a(f"ds_write_b64 v43, v[120:121] offset:{L_ST}")
    a("s_waitcnt lgkmcnt(0)"); a("s_barrier")
    a(f"ds_read_b128 v[124:127], {vZero} offset:{L_ST}")
    a(f"ds_read_b128 v[128:131], {vZero} offset:{L_ST+16}")
    a("s_waitcnt lgkmcnt(0)")
    a("v_add_f32 v120, v124, v126"); a("v_add_f32 v121, v128, v130"); a("v_add_f32 v120, v120, v121")
    a("v_mul_f32 v120, 0.25, v120")
    a("v_add_f32 v122, v125, v127"); a("v_add_f32 v123, v129, v131"); a("v_add_f32 v122, v122, v123")
    for r in (124, 126, 128, 130): a(f"v_sub_f32 v{r}, v{r}, v120")
    a("v_mul_f32 v123, v124, v124")
    for r in (126, 128, 130): a(f"v_fmac_f32 v123, v{r}, v{r}")
    a(f"v_mul_f32 v122, {f32bits(1/512)}, v122")
    a("v_fmac_f32 v122, 0.25, v123")
    rnd1(a, 120); rnd1(a, 122)
    a(f"v_add_f32 v122, {f32bits(1e-5)}, v122"); rnd1(a, 122)
    a("v_sqrt_f32 v122, v122")
    a("v_sub_f32 v112, v116, v120"); a("v_sub_f32 v113, v117, v120")
    rnd1(a, 122)
    a("v_rcp_f32 v122, v122")
    rnd2(a, 112, 113, T0)
    a("v_mul_f32 v112, v112, v122"); a("v_mul_f32 v113, v113, v122")
    rnd2(a, 112, 113, T0)
    a(f"v_mul_f32 v112, v112, v{MC+2}"); a(f"v_mul_f32 v113, v113, v{MC+3}")
    rnd2(a, 112, 113, T0)
    a(f"v_add_f32 v112, v112, v{MC+4}"); a(f"v_add_f32 v113, v113, v{MC+5}")
    a(f"v_cvt_pk_bf16_f32 v{T0}, v112, v113")
    a(f"buffer_store_dword v{T0}, {vCol}, {WS}, s50 offen{st}")
    tstamp(a, opt, 6)
    a(f"s_lshl_b32 s48, s{S_PSLOT}, 16"); a(f"s_add_u32 s48, s{S_H2O}, s48")
    a("v_mov_b32 v42, -1"); a("v_mov_b32 v43, -1")
    a(f"buffer_store_dword v42, {vCol}, {WS}, s48 offen{st}")
    a(f"buffer_store_dword v42, {vCol}, {WS}, s48 offen offset:1024{st}")
    a(f"s_cmp_ge_u32 s{S_SEG}, {XS}")
    a(f"s_cselect_b32 s48, {NT + 2 if 'g2t' in opt else NT}, {NT}")
    a(f"s_add_u32 s{S_NXT}, s{S_SEG}, s48")
    a(f"s_cmp_ge_u32 s{S_H}, 28")
    a(f"s_cbranch_scc1 {pfx}_noffn")
    HR = 48
    a(f"s_add_u32 s50, s{S_H2B}, s49")
    def ld():
        for i in range(8):
            a(f"s_add_u32 s48, s50, {i*8192}")
            a(f"buffer_load_dwordx4 {vr(HR+4*i,4)}, {vHg}, {WS}, s48 offen sc1")
    def ck():
        for i in range(8):
            a(f"s_waitcnt vmcnt({7-i})")
            a(f"ds_write_b128 {vHw}, {vr(HR+4*i,4)} offset:{(i//4)*RTS + (i%4)*64}")
            if i: a(f"v_max_u32 v{T0}, v{T0 if i > 1 else HR}, v{HR+4*i}")
        a(f"v_cmp_eq_u32 vcc, -1, v{T0}")
    if geti("t2", 2): a(f"s_sleep {geti('t2', 2)}")
    poll(a, pfx + "_h2", ld, ck, sleep=2)
    tstamp(a, opt, 7)
    a("s_waitcnt lgkmcnt(0)"); a("s_barrier")
    HB = lambda rt, ks: 80 + ((ks % 4) * 2 + rt) * 4
    lq0 = LQ()
    def rd(lq, ks):
        for rt in range(2):
            a(f"ds_read_b128 {vr(HB(rt, ks),4)}, {vHr} offset:{rt*RTS + ks*FS}"); lq.issue(ks)
    for ks in range(3): rd(lq0, ks)
    prefetch(a, pfx + "_pf1", S_NXT, body=False)
    for withpf in (True, False):
        lq = LQ(); lq.q = list(lq0.q)
        pl = pf_list() if withpf else []
        for ks in range(16):
            a(lq.wait(ks))
            n = 0
            for rt in range(2):
                for m in range(2):
                    d = vr(112 + (rt * 2 + m) * 4, 4)
                    a(f"v_mfma_f32_16x16x32_bf16 {d}, {GF(m, ks)}, {vr(HB(rt, ks),4)}, {d if ks else 0}")
                    if n == 0 and ks + 3 < 16: rd(lq, ks + 3)
                    if n == 2 and pl:
                        for x in pl.pop(0): a(x)
                    n += 1
        if withpf:
            a(f"s_branch {pfx}_gud")
            a.label(pfx + "_pf1_skip")
    a.label(pfx + "_gud")
    a(f"s_lshl_b32 s48, s{S_SLOT}, 17"); a(f"s_add_u32 s48, s{S_ACTW}, s48"); a(f"s_add_u32 s50, s48, {56*1024}")
    a("s_nop 0")
    for rt in range(2):
        g0 = 112 + rt * 8; u0 = g0 + 4
        for j in (0, 2): rnd2(a, g0 + j, g0 + j + 1, T0)
        for j in (0, 2): rnd2(a, u0 + j, u0 + j + 1, T0)
        for j in range(4): a(f"v_mul_f32 v{g0+j}, v{g0+j}, v{u0+j}")
        a(f"v_cvt_pk_bf16_f32 v{128+2*rt}, v{g0}, v{g0+1}"); a(f"v_cvt_pk_bf16_f32 v{129+2*rt}, v{g0+2}, v{g0+3}")
        a(f"buffer_store_dwordx2 {vr(128+2*rt,2)}, {vL16}, {WS}, s{(48, 50)[rt]} offen{st}")
    a(f"s_lshl_b32 s48, s{S_PSLOT}, 17"); a(f"s_add_u32 s48, s{S_ACTW}, s48"); a(f"s_add_u32 s50, s48, {56*1024}")
    a(f"buffer_store_dwordx2 v[42:43], {vL16}, {WS}, s48 offen{st}")
    a(f"buffer_store_dwordx2 v[42:43], {vL16}, {WS}, s50 offen{st}")
    if geti("t3", 2): a(f"s_sleep {geti('t3', 2)}")
    a(f"s_branch {pfx}_E")
    a.label(pfx + "_noffn")
    prefetch(a, pfx + "_pf2", S_NXT)
    a("s_sleep 32")
    a.label(pfx + "_E")
    tstamp(a, opt, 8)
    AR = 48
    a(f"s_lshl_b32 s50, s{S_SLOT}, 17"); a(f"s_add_u32 s50, s{S_ACTR}, s50")
    a(f"s_lshl_b32 s49, s{S_SLOT}, 16"); a(f"s_add_u32 s49, s{S_X2R}, s49")
    def ld():
        a(f"buffer_load_dword v41, {vX2g}, {WS}, s49 offen sc1")
        for i in range(14):
            if i % 4 == 0: a(f"s_add_u32 s48, s50, {(i//4)*4096}")
            a(f"buffer_load_dwordx4 {vr(AR+4*i,4)}, {vL16}, {WS}, s48 offen offset:{1024*(i%4)} sc1")
    def ck():
        for i in range(14):
            a(f"s_waitcnt vmcnt({13-i})")
            for t in range(2):
                d = vr(112 + 4 * t, 4)
                a(f"v_mfma_f32_16x16x32_bf16 {d}, {DF(t, i)}, {vr(AR+4*i,4)}, {d if i else 0}")
            a(f"v_max3_u32 v{T0}, v{T0 if i else 41}, v{AR+4*i}, v{AR+4*i+2}")
        a(f"v_cmp_eq_u32 vcc, -1, v{T0}")
        a(f"v_lshlrev_b32 v124, 16, v41"); a(f"v_and_b32 v125, s{MASK}, v41")
    poll(a, pfx + "_act", ld, ck, sleep=2)
    tstamp(a, opt, 9)
    a("s_nop 2")
    a(f"ds_write_b128 {vEw}, v[112:115]"); a(f"ds_write_b128 {vEw}, v[116:119] offset:1024")
    a("s_waitcnt lgkmcnt(0)"); a("s_barrier")
    for w in range(4): a(f"ds_read_b64 {vr(112+2*w,2)}, {vEr} offset:{2048*w}")
    a("s_waitcnt lgkmcnt(0)")
    a("v_add_f32 v112, v112, v114"); a("v_add_f32 v113, v113, v115"); a("v_add_f32 v116, v116, v118"); a("v_add_f32 v117, v117, v119")
    a("v_add_f32 v112, v112, v116"); a("v_add_f32 v113, v113, v117")
    rnd2(a, 112, 113, T0)
    a(f"v_mul_f32 v112, v{MC+6}, v112"); a(f"v_mul_f32 v113, v{MC+7}, v113")
    rnd2(a, 112, 113, T0)
    a("v_add_f32 v112, v124, v112"); a("v_add_f32 v113, v125, v113")
    a(f"v_cvt_pk_bf16_f32 v{T0}, v112, v113")
    a(f"buffer_store_dword v{T0}, {vEo}, {sr(S_O,4)}, s{S_OUT} offen{' sc1' if 'osc1' in opt else (' nt' if 'ont' in opt else '')}")
    tstamp(a, opt, 10)
    a(f"s_mov_b32 s{S_SEG}, s{S_NXT}")
    seg_addrs(a)
    a(f"s_xor_b32 s{S_TAG}, s{S_TAG}, 1")
    a(f"s_mov_b32 s{S_PSLOT}, s{S_SLOT}")
    a(f"s_add_u32 s{S_SLOT}, s{S_SLOT}, 1")
    a(f"s_cmp_ge_u32 s{S_SLOT}, 3")
    a(f"s_cselect_b32 s{S_SLOT}, 0, s{S_SLOT}")
    a(f"s_cmp_lt_u32 s{S_SEG}, s{S_LIM}")
    a(f"s_cbranch_scc1 {pfx}_loop")
    a("s_waitcnt vmcnt(0)")
    if "time" in opt: a("v_mov_b32 v143, v47")

def emit_post(a, opt):
    import mega, pre
    set_xs(opt)
    a(f"s_mov_b32 s{MASK}, 0xffff0000")
    emit_post_weights(a, opt)
    if "time" in opt: a("s_memrealtime s[84:85]")
    emit_post_final(a, opt)
    if "time" in opt: a("s_memrealtime s[86:87]")
    a(f"s_cmp_lg_u32 s{S_MODE}, 0")
    a("s_cbranch_scc1 T_slow")
    emit_post_loop(a, True, "TF", opt)
    a("s_branch L_done")
    a.label("T_slow")
    emit_post_loop(a, False, "TS", opt)
```

```python
from common import *
from common import tstamp as _ts
import math
S_TID = 16
MASK = 17

def rnd2(a, x, y, p):
    a(f"v_cvt_pk_bf16_f32 v{p}, v{x}, v{y}")
    a(f"v_lshlrev_b32 v{x}, 16, v{p}")
    a(f"v_and_b32 v{y}, s{MASK}, v{p}")
def rnd1(a, x):
    a(f"v_cvt_pk_bf16_f32 v{x}, v{x}, v{x}")
    a(f"v_and_b32 v{x}, s{MASK}, v{x}")
def unpack(a, src, dst, n):
    for d in range(n):
        a(f"v_lshlrev_b32 v{dst+2*d}, 16, v{src+d}")
        a(f"v_and_b32 v{dst+2*d+1}, s{MASK}, v{src+d}")
def xsum_g(a, x, t, op="v_add_f32"):
    a(f"v_mov_b32 v{t}, v{x}"); a("s_nop 1")
    a(f"v_permlane32_swap_b32 v{x}, v{t}"); a(f"{op} v{x}, v{x}, v{t}")
    a(f"v_mov_b32 v{t}, v{x}"); a("s_nop 1")
    a(f"v_permlane16_swap_b32 v{x}, v{t}"); a(f"{op} v{x}, v{x}, v{t}")
def tree(a, regs):
    regs = list(regs)
    while len(regs) > 1:
        nxt = []
        for i in range(0, len(regs) - 1, 2):
            a(f"v_add_f32 v{regs[i]}, v{regs[i]}, v{regs[i+1]}"); nxt.append(regs[i])
        if len(regs) % 2: nxt.append(regs[-1])
        regs = nxt
    return regs[0]

def emit_pre(a, opt=()):
    def tstamp(a, opt, idx):
        if idx == 22: return _ts(a, opt, idx)
        if "pst" in opt:
            l = a.uid("pts")
            a(f"s_cmp_ge_u32 s{S_TID}, 32"); a(f"s_cbranch_scc1 {l}")
            _ts(a, opt, idx)
            a.label(l)
    a.c("==== prologue work of the post teams: mod + LN1 ; s16 = tid (0..127) ====")
    LE = lambda *x, **k: lane_expr(a, *x, tmp="v31", **k)
    tstamp(a, opt, 16)
    a("s_load_dwordx2 s[32:33], s[0:1], 0")
    a("s_load_dwordx4 s[36:39], s[0:1], 88")
    a(f"s_mov_b32 s{MASK}, 0xffff0000")
    LE("v1", "v0", [(0, 4, 10), (4, 2, 4), (6, 2, 8)])
    a(f"s_lshl_b32 s48, s{S_TID}, 14")
    a("s_waitcnt lgkmcnt(0)")
    srd(a, S_T, 32, 2048 * 1024)
    for i in range(4):
        a(f"buffer_load_dwordx4 {vr(32+4*i,4)}, v1, {sr(S_T,4)}, s48 offen offset:{64*i}")
    a(f"s_cmp_lt_u32 s{S_TID}, 96")
    a("s_cbranch_scc1 P_mod")
    a("s_waitcnt vmcnt(0)")
    a("s_branch P_nomod")
    a.label("P_mod")
    srd(a, 40, 36, 1024)
    srd(a, 44, 38, 512 * 6144)
    LE("v2", "v0", [(2, 6, 4)])
    a("buffer_load_dwordx4 v[4:7], v2, s[40:43], 0 offen")
    a("v_lshrrev_b32 v2, 2, v0")
    a("v_mul_u32_u24 v2, 49152, v2")
    a("v_and_b32 v3, 3, v0")
    a("v_lshl_add_u32 v2, v3, 4, v2")
    a(f"s_lshl_b32 s48, s{S_TID}, 6")
    for i in range(8):
        a(f"buffer_load_dwordx4 {vr(64+4*i,4)}, v2, s[44:47], s48 offen")
        if i < 7: a("s_add_u32 s48, s48, 6144")
    claim(a)
    a("s_waitcnt vmcnt(8)")
    tstamp(a, opt, 17)
    unpack(a, 4, 8, 4)
    a(f"s_mov_b32 s48, {f32bits(-math.log2(math.e))}")
    for j in range(8): a(f"v_mul_f32 v{16+j}, s48, v{8+j}")
    for j in range(8): a(f"v_exp_f32 v{16+j}, v{16+j}")
    for j in range(8): a(f"v_add_f32 v{16+j}, 1.0, v{16+j}")
    for j in range(8): a(f"v_rcp_f32 v{16+j}, v{16+j}")
    for j in range(8): a(f"v_mul_f32 v{8+j}, v{8+j}, v{16+j}")
    for j in range(0, 8, 2): rnd2(a, 8 + j, 9 + j, 31)
    for j in range(8): a(f"v_mov_b32 v{16+j}, 0")
    a("s_waitcnt vmcnt(0)")
    tstamp(a, opt, 23)
    for i in range(8):
        for d in range(4):
            a(f"v_lshlrev_b32 v24, 16, v{64+4*i+d}")
            a(f"v_and_b32 v25, s{MASK}, v{64+4*i+d}")
            a(f"v_fmac_f32 v{16+2*d}, v{8+i}, v24")
            a(f"v_fmac_f32 v{17+2*d}, v{8+i}, v25")
    a("s_nop 1")
    for ror in (4, 8):
        for j in range(8):
            a(f"v_add_f32_dpp v{16+j}, v{16+j}, v{16+j} row_ror:{ror} row_mask:0xf bank_mask:0xf")
    LE("v2", "v0", [(4, 4, 7), (0, 2, 5)])
    a("ds_write_b128 v2, v[16:19] offset:1024")
    a("ds_write_b128 v2, v[20:23] offset:1040")
    a("s_waitcnt lgkmcnt(0)")
    a("s_barrier")
    verify_claim(a, 0, 163840 - 64)
    a(f"s_cmp_lg_u32 s{S_W}, 0")
    a("s_cbranch_scc1 P_nomod")
    LE("v2", "v0", [(0, 5, 2)])
    for p in range(16): a(f"ds_read_b32 v{64+p}, v2 offset:{1024+128*p}")
    a("s_waitcnt lgkmcnt(0)")
    r = tree(a, range(64, 80))
    a(f"v_cvt_pk_bf16_f32 v{r}, v{r}, v{r}")
    LE("v2", "v0", [(0, 5, 1), (5, 1, 30)])
    a(f"s_lshl_b32 s48, s{S_TID}, 6")
    a(f"s_add_u32 s48, s48, {hex(WS_MOD)}")
    a(f"buffer_store_short v{r}, v2, {sr(S_WS,4)}, s48 offen sc1")
    a(f"s_bitcmp1_b32 s{S_TID}, 5")
    a("s_cbranch_scc1 P_nomod")
    a("s_waitcnt vmcnt(0)")
    tstamp(a, opt, 18)
    a(f"s_cmp_lt_u32 s{S_TID}, 32")
    a(f"s_cselect_b32 s48, {D_MOD1}, {D_MOD2}")
    a("s_lshl_b32 s48, s48, 2")
    dbg_arrive(a, 0, soff=48)
    a.label("P_nomod")
    unpack(a, 32, 64, 16)
    LE("v2", "v0", [(0, 4, 4), (6, 2, 2)])
    LE("v3", "v0", [(0, 4, 4)])
    for j in range(16): a(f"v_add_f32 v{96+j}, v{64+2*j}, v{65+2*j}")
    r = tree(a, range(96, 112))
    xsum_g(a, r, 31)
    a(f"ds_write_b32 v2, v{r}")
    a("s_waitcnt lgkmcnt(0)"); a("s_barrier")
    a("ds_read_b128 v[4:7], v3")
    a("s_waitcnt lgkmcnt(0)")
    tree(a, range(4, 8))
    a(f"v_mul_f32 v8, {f32bits(1/512)}, v4")
    for j in range(32): a(f"v_sub_f32 v{96+j}, v{64+j}, v8")
    for j in range(32): a(f"v_mul_f32 v{96+j}, v{96+j}, v{96+j}")
    r = tree(a, range(96, 128))
    xsum_g(a, r, 31)
    a(f"ds_write_b32 v2, v{r} offset:256")
    a("s_waitcnt lgkmcnt(0)"); a("s_barrier")
    a("ds_read_b128 v[4:7], v3 offset:256")
    a("s_waitcnt lgkmcnt(0)")
    tree(a, range(4, 8))
    a(f"v_mul_f32 v9, {f32bits(1/512)}, v4")
    rnd1(a, 8); rnd1(a, 9)
    a(f"v_add_f32 v9, {f32bits(1e-5)}, v9"); rnd1(a, 9)
    a("v_sqrt_f32 v9, v9"); a("s_nop 0"); rnd1(a, 9)
    a("v_rcp_f32 v9, v9")
    for j in range(32): a(f"v_sub_f32 v{64+j}, v{64+j}, v8")
    for j in range(0, 32, 2): rnd2(a, 64 + j, 65 + j, 31)
    for j in range(32): a(f"v_mul_f32 v{64+j}, v{64+j}, v9")
    for j in range(0, 32, 2): rnd2(a, 64 + j, 65 + j, 31)
    tstamp(a, opt, 19)
    a(f"s_cmp_ge_u32 s{S_TID}, 32")
    a("s_cbranch_scc1 P_go")
    import rec
    a("s_load_dwordx2 s[34:35], s[0:1], 8")
    a("s_waitcnt lgkmcnt(0)")
    rec.emit_rec_init(a, S_TID, 34)
    LE("v16", "v0", [(0, 2, 4)])
    a(f"s_lshl_b32 s48, s{S_TID}, 7"); a(f"s_add_u32 s48, s48, {hex(WS_FLAG)}")
    a("s_mov_b64 exec, 7")
    a(f"buffer_store_dword v24, v16, {sr(S_WS,4)}, s48 offen sc1")
    a("s_mov_b64 exec, -1")
    tstamp(a, opt, 24)
    dbg_wait(a, D_MOD1, 32, sleep=8)
    a.label("P_go")
    tstamp(a, opt, 20)
    LE("v2", "v0", [(4, 2, 4), (6, 2, 8)])
    a(f"s_mov_b32 s48, {hex(WS_MOD)}")
    for i in range(4):
        a(f"buffer_load_dwordx4 {vr(32+4*i,4)}, v2, {sr(S_WS,4)}, s48 offen offset:{1024+64*i} sc1")
    for i in range(4):
        a(f"buffer_load_dwordx4 {vr(48+4*i,4)}, v2, {sr(S_WS,4)}, s48 offen offset:{64*i} sc1")
    a("s_waitcnt vmcnt(4)")
    unpack(a, 32, 96, 16)
    for j in range(32): a(f"v_add_f32 v{96+j}, 1.0, v{96+j}")
    for j in range(0, 32, 2): rnd2(a, 96 + j, 97 + j, 31)
    for j in range(32): a(f"v_mul_f32 v{64+j}, v{64+j}, v{96+j}")
    for j in range(0, 32, 2): rnd2(a, 64 + j, 65 + j, 31)
    a("s_waitcnt vmcnt(0)")
    unpack(a, 48, 96, 16)
    for j in range(32): a(f"v_add_f32 v{64+j}, v{64+j}, v{96+j}")
    for j in range(16): a(f"v_cvt_pk_bf16_f32 v{32+j}, v{64+2*j}, v{65+2*j}")
    tstamp(a, opt, 21)
    LE("v2", "v0", [(0, 6, 4), (6, 2, 12)])
    a(f"s_lshl_b32 s48, s{S_TID}, 14")
    a(f"s_add_u32 s48, s48, {hex(WS_H)}")
    for i in range(4):
        a(f"buffer_store_dwordx4 {vr(32+4*i,4)}, v2, {sr(S_WS,4)}, s48 offen offset:{1024*i} sc1")
    a(f"s_cmp_ge_u32 s{S_TID}, {N_LN1}")
    a("s_cbranch_scc1 P_done")
    a("s_waitcnt vmcnt(0)")
    a("s_barrier")
    a(f"s_cmp_lg_u32 s{S_W}, 0")
    a("s_cbranch_scc1 P_done")
    tstamp(a, opt, 22)
    dbg_arrive(a, D_LN1)
    a.label("P_done")
```

```python
from common import *
import math, struct

L_MEM = 0
L_K   = 8192
L_V   = 16384
L_QK  = 24576
L_OS  = 28672
L_SEL = 30720
L_JUNK= 31744
L_MISC= 32256
L_WO  = 32768

S_STEP = 16
S_PST = 17
S_PLD = 19
S_MRD, S_MWR, S_MPO = 22, 23, 24
S_KX, S_VX, S_KVM = 25, 26, 27
S_TAG, S_PMAX, S_PC = 28, 29, 30
S_SC = 31
S_PTR = 32
S_T0, S_T1, S_T2, S_T3 = 48, 49, 50, 51
S_OWN = 52
S_WOB = 53
S_WOL = 54
S_STAMP = 60

vFl = "v0"
vL16w, vL16, vXw, vXr, vOw, vWo, vPs, vMp, vIdx = ["v%d" % i for i in range(1, 10)]
vPl = vL16
vZ = "v[10:11]"
vT0, vT1 = "v12", "v13"
vFx = ["v28", "v29", "v30"]
SX0, SX1, SM = 16, 20, 24
vM = "v31"
FA, FB = 32, 120
F = [32 + 4 * i for i in range(8)]
ACC = {("q", 0): 64, ("q", 1): 68, ("k", 0): 72, ("k", 1): 76, ("v", 0): 80, ("v", 1): 84}
QF = [88 + 4 * i for i in range(4)]
KF = [104 + 4 * i for i in range(4)]
KXR = {(0, 0): 32, (1, 0): 24, (0, 1): 104, (1, 1): 108, (0, 2): 112, (1, 2): 116, (0, 3): 120, (1, 3): 124}
VX = [64, 72]
MI = {"q": 0, "k": 1, "v": 2}

def wreg(m, t, sig, off=0, n=8):
    idx = ((MI[m] * 2 + t) * 8 + sig) * 8 + off
    if idx < 256: return ar(idx, n)
    return vr(128 + idx - 256, n)

def smf(m, t, sig, own=FA):
    f = own + 4 * sig if sig < 2 else F[sig]
    return f"v_smfmac_f32_16x16x64_bf16 {vr(ACC[(m,t)],4)}, {vr(f,4)}, {wreg(m,t,sig)}, {vIdx}"

S_HAVE, S_FLG, S_KVC = 55, 56, 26
S_SC2, S_OM = 58, 46
def emit_rec_init(a, sh, ptr):
    LE = lambda *x, **k: lane_expr(a, *x, tmp="v31", **k)
    WS = sr(S_WS, 4)
    srd(a, S_T, ptr, 8192)
    LE("v16", "v0", [(5, 1, 10), (4, 1, 6), (0, 2, 1)])
    sexpr(a, 48, [(sh, 1, 2, 11), (sh, 3, 2, 8), (S_W, 1, 1, 7), (sh, 0, 1, 4), (S_W, 0, 1, 3)])
    a(f"buffer_load_ushort v17, v16, {sr(S_T,4)}, s48 offen")
    a(f"buffer_load_ushort v18, v16, {sr(S_T,4)}, s48 offen offset:32")
    LE("v20", "v0", [(0, 6, 4)])
    LE("v21", "v0", [(5, 1, 5), (0, 2, 3), (4, 1, 2), (2, 2, 30)])
    for i in range(4): a(f"v_mov_b32 v{24+i}, 0")
    a("v_mov_b32 v19, -1")
    sexpr(a, 48, [(sh, 0, 5, 13), (S_W, 0, 2, 11)], WS_PART)
    a(f"buffer_store_dwordx4 v[24:27], v20, {WS}, s48 offen sc1")
    a(f"buffer_store_dwordx4 v[24:27], v20, {WS}, s48 offen offset:1024 sc1")
    sexpr(a, 50, [(sh, 3, 2, 11), (S_W, 1, 1, 10), (sh, 0, 1, 9), (S_W, 0, 1, 8), (sh, 1, 2, 6)], WS_MEM)
    for sl in (1, 2):
        a(f"s_add_u32 s48, s50, {8192*sl}")
        a(f"buffer_store_dword v19, v21, {WS}, s48 offen sc1")
    a("s_waitcnt vmcnt(4)")
    a("v_lshl_or_b32 v17, v18, 16, v17")
    a(f"buffer_store_dword v17, v21, {WS}, s50 offen sc1")

def emit_rec_setup(a, pfx="R", own_init=True, opt=(), inline=None):
    st = " sc1"
    LE = lambda *x, **k: lane_expr(a, *x, tmp="v31", **k)
    a.c("==== recurrence role: s14 = head, s15 = wave ====")
    q = VmQ(a)
    if own_init:
        emit_rec_init(a, S_H, S_PTR + 2)
        a("s_waitcnt vmcnt(0)")
        dbg_arrive(a, D_RTB)
        a("s_waitcnt vmcnt(0)")

    D = [32, 33]
    E = [36, 37, 38, 39]
    LE("v28", "v0", [(4, 2, 5)])
    LE("v29", "v0", [(0, 4, 4)])
    a("v_xor_b32 v28, v28, v29")
    LE("v30", "v0", [(4, 2, 13)])
    a(f"v_add_u32 v{D[0]}, v28, v30")
    a(f"v_xor_b32 v{D[1]}, 128, v{D[0]}")
    sexpr(a, S_T2, [(S_H, 0, 5, 8), (S_W, 0, 2, 18)])
    sexpr(a, S_T3, [(S_W, 0, 2, 13)], L_WO)

    def dma_chunk(a, q, n):
        m, ch = divmod(n, 4)
        if ch == 0:
            srd(a, S_T, S_PTR + 4 + 2 * m, 4194304)
        for i in range(8):
            a(f"s_add_u32 m0, s{S_T3}, {ch * 32768 + i * 1024}")
            if m < 3:
                a(f"s_add_u32 s{S_T0}, s{S_T2}, {hex((128 * ch + 4 * i) * 8192)}")
                a(f"buffer_load_dwordx4 v{D[(i >> 2) & 1]}, {sr(S_T,4)}, s{S_T0} offen lds")
            else:
                a(f"s_add_u32 s{S_T0}, s{S_WOB}, {hex(4 * i * 1024 + ch * 256)}")
                a(f"buffer_load_dwordx4 v{E[(i & 1) + 2 * ((i >> 2) & 1)]}, {sr(S_T,4)}, s{S_T0} offen lds")
        q.issue(("d", n), 8)

    if "time" in opt: a("s_memrealtime s[76:77]")
    srd(a, S_T, S_PTR + 4, 4194304)
    a(f"s_mov_b32 m0, s{S_T3}"); a(f"s_mov_b32 s{S_T0}, s{S_T2}")
    a("s_movk_i32 s16, 0x400"); a("s_mov_b32 s17, 0x8000"); a("s_mov_b32 s18, 4")
    a.label(pfx + "_d0")
    for i in range(8):
        a(f"buffer_load_dwordx4 v{D[(i >> 2) & 1]}, {sr(S_T,4)}, s{S_T0} offen lds")
        a("s_add_u32 m0, m0, s16"); a(f"s_add_u32 s{S_T0}, s{S_T0}, s17")
    a(f"s_add_u32 m0, m0, {32768 - 8192}"); a(f"s_add_u32 s{S_T0}, s{S_T0}, {hex(96 * 8192)}")
    a("s_sub_u32 s18, s18, 1"); a("s_cmp_lg_u32 s18, 0"); a(f"s_cbranch_scc1 {pfx}_d0")
    for n in range(4): q.issue(("d", n), 8)
    if inline:
        a(f"s_branch {pfx}_cont")
        inline()
        a.label(pfx + "_cont")
    sexpr(a, S_WOB, [(S_H, 0, 5, 17), (S_W, 0, 2, 15)])
    LE(vL16w, "v0", [(0, 6, 4), (6, 2, 11)])
    LE(vL16, "v0", [(0, 6, 4)])
    LE(vXw, "v0", [(6, 2, 10), (0, 4, 5), (4, 2, 3)], L_QK)
    LE("v16", "v0", [(2, 2, 3)])
    a(f"v_xor_b32 {vXw}, {vXw}, v16")
    LE(vXr, "v0", [(0, 6, 3)], L_QK)
    LE("v16", "v0", [(4, 2, 3)])
    a(f"v_xor_b32 {vXr}, {vXr}, v16")
    LE(vOw, "v0", [(6, 2, 9), (5, 1, 8), (2, 2, 6), (0, 1, 5), (4, 1, 4)], L_OS)
    LE("v16", "v0", [(5, 1, 8), (2, 2, 6), (0, 1, 5), (4, 1, 4)], L_JUNK)
    a("v_and_b32 v17, 2, v0")
    a("v_cmp_ne_u32 vcc, 0, v17")
    a("s_nop 1")
    a(f"v_cndmask_b32 {vOw}, {vOw}, v16, vcc")
    for r in (10, 11, 14, 15): a(f"v_mov_b32 v{r}, 0")
    LE(vWo, "v0", [(6, 2, 15), (0, 6, 4)], L_WO)
    LE(vPs, "v0", [(4, 2, 14), (3, 1, 13), (2, 1, 11), (0, 2, 4)])
    LE(vMp, "v0", [(5, 1, 5), (0, 2, 3), (4, 1, 2), (2, 2, 30)])
    a(f"v_and_b32 v16, 1, v0")
    a(f"v_mul_u32_u24 {vIdx}, 0xaaaa, v16")
    a(f"v_add_u32 {vIdx}, 0x4444, {vIdx}")
    a("v_and_b32 v16, 3, v0")
    a("v_bfe_u32 v17, v0, 2, 2")
    a("v_mov_b32 v18, 0x3f80")
    a("v_mov_b32 v19, 0x3f800000")
    a("v_cmp_eq_u32 vcc, 1, v16")
    a("s_nop 1")
    a("v_cndmask_b32 v18, v18, v19, vcc")
    a("v_cmp_gt_u32 vcc, 2, v16")
    a("s_nop 1")
    a("v_cndmask_b32 v18, 0, v18, vcc")
    for d in range(4):
        a(f"v_cmp_eq_u32 vcc, {d}, v17")
        a("s_nop 1")
        a(f"v_cndmask_b32 v{20+d}, 0, v18, vcc")
    a(f"ds_write_b128 {vL16}, v[20:23] offset:{L_SEL}")
    for tau in range(2):
        sexpr(a, S_PST + tau, [(S_W, 0, 2, 16), (S_H, 0, 5, 6)], WS_PART + tau * 4096)
    sexpr(a, S_PLD, [(S_H, 0, 5, 13), (S_W, 0, 2, 11)], WS_PART)
    sexpr(a, S_OWN, [(S_H, 3, 2, 11), (S_W, 1, 1, 10), (S_H, 0, 1, 9), (S_W, 0, 1, 8), (S_H, 1, 2, 6)])
    a(f"s_mov_b32 s{S_MRD}, {hex(WS_MEM)}")
    a(f"s_add_u32 s{S_MPO}, s{S_OWN}, {hex(WS_MEM)}")
    a(f"s_add_u32 s{S_MWR}, s{S_OWN}, {hex(WS_MEM + 8192)}")
    a(f"s_mul_i32 s{S_T0}, s{S_H}, {HSTR}")
    sexpr(a, S_KX, [(S_W, 0, 2, 12)], WS_KV)
    a(f"s_add_u32 s{S_KX}, s{S_KX}, s{S_T0}")
    a(f"s_mul_i32 s{S_T0}, s{S_H}, {MSTR}")
    sexpr(a, S_KVM, [(S_W, 0, 2, 10)], WS_KM)
    a(f"s_add_u32 s{S_KVM}, s{S_KVM}, s{S_T0}")
    a(f"s_mov_b32 s{S_STEP}, 0")
    a(f"s_mov_b32 s{S_TAG}, 1")
    a(f"s_mov_b32 s{S_PMAX}, 20000")
    sc = (128 ** -0.5) * math.log2(math.e)
    a(f"s_mov_b32 s{S_SC}, {hex(struct.unpack('<I', struct.pack('<f', sc))[0])}")

    a(f"s_mov_b32 s{S_SC2}, s{S_SC}"); a(f"s_mov_b32 s{S_SC2+1}, s{S_SC}")
    a(f"s_mov_b32 s{S_OM}, 0x33333333"); a(f"s_mov_b32 s{S_OM+1}, 0x33333333")
    LE("v28", "v0", [(4, 1, 5)])
    LE("v29", "v0", [(0, 4, 4)])
    a("v_xor_b32 v28, v28, v29")
    LE("v30", "v0", [(4, 2, 10)])
    a(f"v_add_u32 v{E[0]}, v28, v30")
    a(f"v_xor_b32 v{E[1]}, 64, v{E[0]}")
    a(f"v_xor_b32 v{E[2]}, 128, v{E[0]}")
    a(f"v_xor_b32 v{E[3]}, 192, v{E[0]}")
    TR = [40, 41]
    LE("v28", "v0", [(2, 1, 12), (5, 1, 10), (3, 1, 9), (4, 1, 8), (0, 1, 3)])
    LE("v29", "v0", [(6, 2, 6), (1, 1, 4)])
    LE("v30", "v0", [(4, 1, 5), (3, 1, 6), (2, 1, 7)])
    a("v_xor_b32 v29, v29, v30")
    a(f"v_add_u32 v{TR[0]}, v28, v29")
    a(f"v_xor_b32 v{TR[1]}, 32, v{TR[0]}")

    done = pfx + "_wdone"
    for w in range(4):
        if w < 3:
            a(f"s_cmp_lg_u32 s{S_W}, {w}")
            a(f"s_cbranch_scc1 {pfx}_wl{w+1}")
        qq = q.clone()
        for n in range(13):
            if n < 12:
                qq.wait(("d", n))
            a("s_barrier")
            if "time" in opt and n in (0, 4, 8): a(f"s_memrealtime s[{78+n//2}:{79+n//2}]")
            if 0 < n and n + 3 < 16: dma_chunk(a, qq, n + 3)
            if not own_init and n == max([int(o[2:]) for o in opt if o.startswith("cn")] + [0] or [0]) + 6 and w == 0:
                claim(a)
            if not own_init and n == 11:
                a(f"v_lshrrev_b32 v122, 2, {vL16}")
            if not own_init and n == 12 and w == 0:
                a(f"s_mov_b32 exec_lo, 1"); a(f"s_mov_b32 exec_hi, {1 << (D_LN1 - 32)}")
                a(f"global_load_dword v123, v122, {sr(S_DBG,2)} sc1")
                a("s_mov_b64 exec, -1")
                a("s_waitcnt vmcnt(0)")
                a(f"ds_write_b32 v122, v123 offset:{L_JUNK}")
                a("s_waitcnt lgkmcnt(0)")
            if n == 12: break
            m, ch = divmod(n, 4)
            mn = "qkv"[m]
            a(f"v_add_u32 v26, {L_WO + ch * 32768}, v{TR[0]}")
            a(f"v_add_u32 v27, {L_WO + ch * 32768}, v{TR[1]}")
            for k2 in range(2):
                sig = (2 * ch + k2) ^ (2 * w)
                for t in range(2):
                    for p in range(4):
                        off = (64 * k2 + 32 * (p % 2) + 8 * (p // 2)) * 256
                        a(f"ds_read_b64_tr_b16 {wreg(mn, t, sig, 2 * p, 2)}, v{26+t} offset:{off}")
            a("s_waitcnt lgkmcnt(0)")
        if w < 3:
            a(f"s_branch {done}")
            a.label(f"{pfx}_wl{w+1}")
    a.label(done)
    LE("v24", "v0", [(4, 1, 12), (5, 1, 11), (3, 1, 10), (2, 1, 8), (6, 2, 15), (1, 1, 4), (0, 1, 3),
                     (2, 1, 5), (3, 1, 6), (4, 1, 7)], L_WO)
    a("s_waitcnt vmcnt(0)")
    if not own_init:
        sexpr(a, S_FLG, [(S_H, 0, 5, 7)], WS_FLAG)
    a("s_barrier")
    if not own_init:
        a(f"buffer_load_dword v119, {vMp}, {sr(S_WS,4)}, s{S_FLG} offen sc1")
        a(f"ds_read_b32 v123, v122 offset:{L_JUNK}")
        if "cp2" in opt:
            a("s_getpc_b64 s[50:51]")
            a.label("R_pcref")
            a("s_add_u32 s50, s50, R_fast - R_pcref")
            a("s_addc_u32 s51, s51, 0")
            a(f"v_lshlrev_b32 v120, 3, {vL16}")
            a("global_load_dword v121, v120, s[50:51]")
    for ks in range(2):
        for tau in range(2):
            for b in range(4):
                a(f"v_xor_b32 v25, {128 * tau + 32 * b}, v24")
                base = 32 + (tau * 4 + b) * 8
                for p in range(4):
                    off = (64 * ks + 32 * (p // 2) + 2 * (p % 2)) * 256
                    a(f"ds_read_b64_tr_b16 {vr(base + 2 * p, 2)}, v25 offset:{off}")
        a("s_waitcnt lgkmcnt(0)")
        for i in range(16):
            a(f"ds_write_b128 {vWo}, {vr(32 + 4 * i, 4)} offset:{ks * 16384 + i * 1024}")
        a("s_waitcnt lgkmcnt(0)")
    if own_init: dbg_wait(a, D_RTB, 128, sleep=8)
    else: verify_claim(a, 2 if 'cp2' in opt else 1, L_MISC)

def kv_wait(a, need_sreg_or_imm, tag):
    l = a.uid(tag)
    need = need_sreg_or_imm
    a(f"s_cmp_ge_u32 s{S_HAVE}, {need}")
    a(f"s_cbranch_scc1 {l}_ok")
    a(f"s_mov_b32 s{S_PC}, 0")
    a.label(l)
    a(f"buffer_load_dword v119, {vMp}, {sr(S_WS,4)}, s{S_FLG} offen sc1")
    a("s_waitcnt vmcnt(0)")
    a(f"v_readlane_b32 s{S_HAVE}, v119, 0")
    a(f"v_readlane_b32 s{S_T0}, v119, 2")
    a("s_nop 1")
    a(f"s_min_u32 s{S_HAVE}, s{S_HAVE}, s{S_T0}")
    a(f"s_cmp_ge_u32 s{S_HAVE}, {need}")
    a(f"s_cbranch_scc1 {l}_ok")
    a("s_sleep 2")
    a(f"s_add_u32 s{S_PC}, s{S_PC}, 1")
    a(f"s_cmp_lt_u32 s{S_PC}, s{S_PMAX}")
    a(f"s_cbranch_scc1 {l}")
    a(f"s_mov_b32 s{S_PMAX}, 1")
    a.label(l + "_ok")

def emit_rec_mega(a, opt, inline=None):
    import mega
    a(f"s_load_dwordx16 {sr(S_PTR,16)}, s[0:1], 0")
    a("s_waitcnt lgkmcnt(0)")
    emit_rec_setup(a, own_init=False, opt=opt, inline=inline)
    if "time" in opt: a("s_memrealtime s[84:85]")
    a(f"v_readlane_b32 s{S_T2}, v123, {D_LN1}")
    a(f"v_readlane_b32 s{S_T3}, v123, 0")
    a("s_waitcnt vmcnt(0)")
    a(f"v_readlane_b32 s{S_HAVE}, v119, 0")
    a(f"v_readlane_b32 s{S_T0}, v119, 2")
    a("s_nop 1")
    a(f"s_min_u32 s{S_HAVE}, s{S_HAVE}, s{S_T0}")
    a(f"s_mov_b32 s57, s{S_T3}")
    a(f"s_cmp_ge_u32 s{S_T2}, {N_LN1}")
    a("s_cbranch_scc1 R_lnok")
    a(f"s_mov_b32 s{S_HAVE}, 0")
    a(f"s_mov_b32 s{S_PC}, 0")
    a.label("R_lnw")
    a(f"global_load_dword v123, v122, {sr(S_DBG,2)} sc1")
    a("s_waitcnt vmcnt(0)")
    a(f"v_readlane_b32 s{S_T2}, v123, {D_LN1}")
    a("s_nop 1")
    a(f"s_cmp_ge_u32 s{S_T2}, {N_LN1}")
    a("s_cbranch_scc1 R_lnok")
    a("s_sleep 32")
    a(f"s_add_u32 s{S_PC}, s{S_PC}, 1")
    a(f"s_cmp_lt_u32 s{S_PC}, s{S_PMAX}")
    a("s_cbranch_scc1 R_lnw")
    a.label("R_lnok")
    kv_wait(a, 2, "kvw")
    if "time" in opt: a("s_memrealtime s[86:87]")
    if "fakexcc" not in opt and "slow" not in opt:
        a("s_cmp_eq_u32 s57, -1")
        a("s_cbranch_scc1 R_fast")
    mega.emit_mode(a, opt, "R_slow")
    a.label("R_fast")
    ropt = list(opt) + ["mega", "oexec", "f1s", "ge5", "ga2", "gb4", "c112", "b15", "de5", "dl5", "db4", "dc2", "o01"]
    emit_rec(a, fast=True, pfx="RF", opt=ropt)
    a("s_branch L_done")
    a.label("R_slow")
    emit_rec(a, fast=False, pfx="RS", opt=ropt)

def emit_rec(a, fast=True, stamps=False, nsteps=64, pfx="R", warm=True, opt=()):
    st = "" if fast else " sc1"
    def geti(p, d):
        for o in opt:
            if o.startswith(p) and o[len(p):].isdigit(): return int(o[len(p):])
        return d
    nst = [0]
    tr0 = geti("tr", -1)
    slotno = [0]
    def stamp(force=False):
        if stamps and (tr0 < 0 or force):
            a(f"s_memtime {sr(S_STAMP + 2 * nst[0], 2)}"); nst[0] += 1
    if "mega" not in opt: emit_rec_setup(a, pfx)

    lq = LQ()
    rms = [o[3:] for o in opt if o.startswith("rm:")]
    def emit(x):
        txt = x if isinstance(x, str) else x[0]
        if isinstance(x, str) and any(r in txt for r in rms): return
        if x == "STAMP": stamp()
        elif isinstance(x, tuple):
            if x[0] == "w":
                wt = lq.wait(x[1])
                if isinstance(x[1], tuple) and x[1][0] == "Fw": assert wt.endswith("(0)")
                a(wt)
            elif x[0] == "L": a.label(x[1])
            else:
                a(x[0]); lq.issue(x[1])
        else: a(x)
    def run(seq, count=True):
        for m, fill in seq:
            if m: a(m)
            if tr0 >= 0 and count and tr0 <= slotno[0] + 12 < tr0 + geti("tn", 13): stamp(True)
            if count: slotno[0] += 1
            for f in fill: emit(f)

    kvd = [f"buffer_load_dwordx4 {vL16}, {sr(S_WS,4)}, s{S_KX} offen offset:{1024*i} sc1 lds" for i in range(4)] + [f"s_add_u32 s{S_KX}, s{S_KX}, 16384"]
    zero16 = lambda r: f"v_mfma_f32_32x32x8_bf16 {vr(r,16)}, {vZ}, {vZ}, 0"
    zero4 = lambda r: f"v_mfma_f32_16x16x16_bf16 {vr(r,4)}, {vZ}, {vZ}, 0"
    def gather(sig):
        return f"buffer_load_dwordx4 {vr(F[sig],4)}, {vL16w}, {sr(S_WS,4)}, s{S_MRD} offen offset:{1024*sig} sc1"
    def fx():
        for i in range(3): a(f"v_xor_b32 {vFx[i]}, {2048 * (i + 1)}, {vL16w}")
    S_MK, S_MV = S_T2, S_T3
    sexpr(a, S_MK, [(S_W, 0, 2, 11)], L_K)
    sexpr(a, S_MV, [(S_W, 0, 2, 11)], L_V - 2048)
    mk, mv = f"s_mov_b32 m0, s{S_MK}", f"s_mov_b32 m0, s{S_MV}"
    for x in [mk, "s_nop 0"] + kvd[:2] + [mv, "s_nop 0"] + kvd[2:] + [mk]: a(x)
    a(f"s_sub_u32 s{S_KVM}, s{S_KVM}, 4096")
    a(f"s_add_u32 s{S_T0}, s{S_KVM}, {65*4096}")
    a(f"s_mov_b32 s{S_KVC}, s{S_T0}")
    if "nokv" in opt: kvd = ["s_nop 0"] * 5
    a(zero16(64)); a(zero16(80))
    fx()
    a(f"s_mov_b32 s{S_PC}, 0")
    if stamps or "nost" in opt or "time" in opt:
        a("s_memrealtime s[96:97]"); a("s_memtime s[98:99]")
    if "rstat" in opt:
        for r in range(60, 64): a(f"s_mov_b32 s{r}, 0")
    for sl in (1, 2):
        a(f"s_add_u32 s{S_T0}, s{S_MRD}, {8192*sl}")
        for n in range(2): a(f"buffer_load_dwordx4 v[96:99], {vL16w}, {sr(S_WS,4)}, s{S_T0} offen offset:{1024*n} sc1")
    for n in range(2): a(f"buffer_load_dwordx4 v[96:99], {vPl}, {sr(S_WS,4)}, s{S_PLD} offen offset:{1024*n} sc1")
    a(gather(1))
    a(gather(0)); a(gather(0))
    if "f1s" not in opt: a(gather(1))

    rdF = lambda sig: (f"ds_read_b128 {vr(F[sig],4)}, {vFx[sig//2-1]} offset:{L_MEM + (sig%2)*1024}", ("F", sig))
    rdKX = lambda t, ks: (f"ds_read_b128 {vr(KXR[(t,ks)],4)}, {vL16} offset:{L_K + (t*4+ks)*1024}", "KX")
    trQ = lambda ks, u: (f"ds_read_b64_tr_b16 {vr(QF[ks]+2*u,2)}, {vXr} offset:{1024*ks+512*u}", ("Q", ks))
    trK = lambda ks, u: (f"ds_read_b64_tr_b16 {vr(KF[ks]+2*u,2)}, {vXr} offset:{1024*ks+512*u}", ("K", ks))
    rdV = lambda t: (f"ds_read_b128 {vr(VX[t],4)}, {vL16w} offset:{L_V + t*1024}", "V")
    def sx(t, ks):
        d = vr([SX0, SX1][t], 4)
        return f"v_mfma_f32_16x16x32_bf16 {d}, {vr(KXR[(t,ks)],4)}, {vr(QF[ks],4)}, {d if ks else 0}"
    def sm(ks):
        d = vr(SM, 4)
        return f"v_mfma_f32_16x16x32_bf16 {d}, {vr(QF[ks],4)}, {vr(QF[ks],4)}, {d if ks else 0}"
    kvm = [f"buffer_store_dwordx4 v[12:15], {vL16}, {sr(S_WS,4)}, s{S_KVC} offen sc1", f"s_add_u32 s{S_KVM}, s{S_KVM}, 4096", f"s_mov_b32 s{S_KVC}, s{S_KVM}"]
    if "nokvm" in opt: kvm[0] = "s_nop 0"

    nc = "nocomm" in opt
    def chk(sig):
        f = F[sig]
        return [f"v_max3_u32 v16, v{f}, v{f+1}, v{f+2}", f"v_max_u32 v16, v16, v{f+3}", f"v_cmp_eq_u32 vcc, -1, v16"]
    wrF = lambda sig: (f"ds_write_b128 {vL16w}, {vr(F[sig],4)} offset:{L_MEM + 1024*sig}", ("Fw", sig))
    def gfail(sig, first_wait, redo):
        a.label(f"{pfx}_gf{sig}")
        a(f"s_waitcnt vmcnt({first_wait})")
        a.label(f"{pfx}_gr{sig}")
        if "rstat" in opt: a(f"s_add_u32 s{61+sig}, s{61+sig}, 1")
        for x in chk(sig): a(x)
        a(f"s_add_u32 s{S_PC}, s{S_PC}, 1")
        a(f"s_cbranch_vccz {pfx}_gx{sig}")
        a(gather(sig))
        a(f"s_cmp_lt_u32 s{S_PC}, s{S_PMAX}")
        a("s_waitcnt vmcnt(0)")
        a(f"s_cbranch_scc1 {pfx}_gr{sig}")
        a(f"s_mov_b32 s{S_PMAX}, 1")
        a.label(f"{pfx}_gx{sig}")
        a(wrF(sig)[0])
        for x in redo: a(x)
        a(f"s_branch {pfx}_gok{sig}")

    a(f"s_branch {pfx}_gA")
    gfail(0, 0 if "f1s" in opt else 1, [zero4(64), "s_nop 5", smf("q", 0, 0)])
    gfail(1, 0, [])
    a.raw(".p2align 6")
    a.label(f"{pfx}_gA")
    if not nc: a(f"s_waitcnt vmcnt({1 if 'f1s' in opt else 2})")
    for x in chk(0)[:2]: a(x)
    emit(wrF(0))
    a(chk(0)[2])
    a(smf("q", 0, 0))
    if not nc: a(f"s_cbranch_vccnz {pfx}_gf0")
    a.label(f"{pfx}_gok0")
    if stamps:
        a(f"s_memtime {sr(S_STAMP, 2)}")
        a(f"s_mov_b32 s{S_STAMP+29}, s{S_PC}")
    nst[0] = 1
    kx = {k: rdKX(*k) for k in KXR}
    WB = [40, 48, 56, 32, 104, 112, 120, 96, 24]
    def rdWo(k, buf, half):
        T, ks = divmod(k, 2)
        return (f"ds_read_b128 {vr(buf + 4*half, 4)}, {vWo} offset:{ks*16384 + T*2048 + half*1024}", ("W", k))
    W = [rdWo(k, WB[k], h) for k in range(9) for h in range(2)]
    def post(acc, dst):
        return [f"v_add_f32 v{acc}, v{acc}, v{acc+1}", f"v_add_f32 v{acc+2}, v{acc+2}, v{acc+3}", f"v_cvt_pk_bf16_f32 v{dst}, v{acc}, v{acc+2}"]
    one = [f"v_mov_b32 v{28+i}, 0x3f803f80" for i in range(4)]
    pq0, pk0, pq1, pk1 = post(64, 12), post(72, 13), post(68, 14), post(76, 15)
    pv0, pv1 = post(80, 12), post(84, 14)
    tr = [trQ(ks, u) for ks in range(4) for u in range(2)]
    QK = (("q", 0), ("k", 0), ("q", 1), ("k", 1))
    ms = [smf("k", 0, 0), smf("q", 1, 0), smf("k", 1, 0), smf("v", 0, 0), smf("v", 1, 0)]
    ms += [smf(m, t, sg) for sg in (2, 4, 6, 1) for m, t in QK]
    ms += [smf(m, t, sg) for m, t in QK for sg in (3, 5, 7)]
    ms += [smf("v", t, sg) for sg in (1, 2, 3, 4, 5, 6, 7) for t in range(2)]
    ms += [sx(0, 0), sx(1, 0), sm(0), sx(0, 1), sx(1, 1), sm(1), sx(0, 2), sx(0, 3), sx(1, 2), sx(1, 3), sm(2), sm(3)]
    fl = {k: [] for k in range(1, 60)}
    hb = geti("hb", 4); c1 = geti("c1", 10); b1 = geti("b1", 6)
    f1s = "f1s" in opt
    fl[geti("f1", 1)] = [gather(1)] if not nc else []
    fl[hb] += [("w", ("Fw", 0)), "s_barrier", rdF(2)]
    fl[5] += [rdF(4), rdF(6), zero4(20), kx[(0, 1)], kx[(1, 1)], zero4(20), ("w", ("F", 2)), "STAMP"]
    rest = [kx[(0, 2)], kx[(1, 2)], kx[(0, 3)], kx[(1, 3)], kx[(1, 0)], kx[(0, 0)]]
    for sl in range(6, c1):
        if len(rest) > 1: fl[sl] += [rest.pop(0)]
    fl[9] += [("w", ("F", 6))]
    if f1s:
        fl[c1] += (["s_waitcnt vmcnt(0)"] if not nc else []) + [wrF(1)]
        fl[c1 + 1] += [f"v_cmp_eq_u32 vcc, -1, v{F[1]}"]
        fl[c1 + 2] += ([f"s_cbranch_vccnz {pfx}_gf1"] if not nc else []) + [("L", f"{pfx}_gok1")]
    else:
        fl[c1] += (["s_waitcnt vmcnt(1)"] if not nc else []) + chk(1)
        fl[c1 + 1] += [wrF(1)] + ([f"s_cbranch_vccnz {pfx}_gf1"] if not nc else []) + [("L", f"{pfx}_gok1")]
    for n, x in enumerate(rest): fl[c1 + 2 + n] += [x]
    fl[c1 + b1] += [("w", "KX"), "s_barrier"]
    x0 = c1 + b1 + 1
    fl[x0] += [rdF(3), rdF(5)]; fl[x0 + 1] += [rdF(7), one[3]]
    if not stamps:
        fl[x0 - 3] += [f"s_cmp_eq_u32 s{S_STEP}, {nsteps-1}"]
        fl[x0 + 1] = [rdF(7), f"s_cbranch_scc1 {pfx}_last"]; fl[x0 + 4] += [one[3]]
    last_ms = [m for m in ms[x0 + 1:47] if "v[64:67]" not in m.split(",")[0] and "v[68:71]" not in m.split(",")[0]]
    fl[x0 + 2] += (["s_waitcnt vmcnt(0)"] if not (nc or f1s) else []) + [kvd[0]]
    fl[x0 + 3] += [one[0]]
    fl[21] += [("w", ("F", 3))]
    fl[22] += [("w", ("F", 7)), one[1]]
    fl[23] += [kvd[1]]
    fl[24] += [mv, one[2], "STAMP"]
    fl[25] += kvm[:1]
    fl[26] += kvm[1:2]
    fl[27] += kvm[2:3]
    if "mega" in opt and "nofl" not in opt: fl[30] += [f"buffer_load_dword {vFl}, {vMp}, {sr(S_WS,4)}, s{S_FLG} offen sc1"]
    fl[26] += [pq0[0]]
    fl[27] += [pq0[1]]
    fl[28] += [pq0[2]]
    fl[29] += [rdV(0), pk0[0]]
    fl[30] += [pk0[1]]
    fl[31] += [pk0[2]]
    fl[32] += [rdV(1), pq1[0]]
    fl[33] += [pq1[1]]
    fl[34] += [pq1[2]]
    fl[35] += pk1
    fl[36] += [(f"ds_write2st64_b64 {vXw}, v[12:13], v[14:15] offset1:1", "Xw")]
    fl[37] += [("w", "V"), "v_mov_b32 v77, 0"]
    fl[38] += [kvd[2]]
    fl[39] += [W[0]]
    fl[40] += [kvd[3]]
    fl[41] += [("w", "Xw"), "s_barrier"]
    fl[42] += tr[0:2]
    fl[43] += tr[2:4]
    fl[44] += tr[4:6]
    fl[45] += tr[6:8]
    fl[46] += [W[1]]
    fl[47] += [("w", ("Q", 3)), "STAMP"]
    fl[48] += [W[2], pv0[0]]
    fl[49] += [W[3], pv0[1]]
    fl[50] += [W[4], pv0[2]]
    fl[51] += [W[5], pv1[0]]
    fl[52] += [W[6], pv1[1]]
    fl[53] += [W[7], pv1[2]]
    fl[54] += [mk]
    fl[55] += [W[8]]
    fl[56] += [W[9]]
    fl[57] += [W[10], "v_max3_f32 v80, v16, v17, v18"]
    fl[58] += [W[11], kvd[4]]
    fl[59] += [W[12], W[13], "s_nop 1", "v_max3_f32 v82, v19, v20, v21", "v_max3_f32 v80, v80, v22, v23", "v_max_f32 v80, v80, v82", "s_nop 0"]
    slotno[0] = -11
    run([(m, fl[1 + i]) for i, m in enumerate(ms)])
    ee = lambda r: f"v_exp_f32 v{r}, v{r}"
    for x in ["v_max3_f32 v80, v80, v26, v27", "v_mov_b32 v82, v80", W[14], W[15], "v_permlane32_swap_b32 v80, v82", "v_max_f32 v80, v80, v82",
              "v_mov_b32 v82, v80", "s_nop 1", "v_permlane16_swap_b32 v80, v82", "v_max_f32 v80, v80, v82", f"v_mul_f32 v80, s{S_SC}, v80"]:
        emit(x)
    for r in (26, 16, 18, 20, 22):
        a(f"v_pk_fma_f32 {vr(r,2)}, {vr(r,2)}, {sr(S_SC2,2)}, v[80:81] op_sel_hi:[1,1,0] neg_lo:[0,0,1] neg_hi:[0,0,1]")
    stamp()
    for x in [ee(26), ee(27), ee(16), "v_cvt_pk_bf16_f32 v76, v26, v27", ee(17), "s_nop 0"]:
        emit(x)
    run([("v_mfma_f32_16x16x16_bf16 v[84:87], v[28:29], v[76:77], 0", [ee(18), "v_cvt_pk_bf16_f32 v68, v16, v17"]),
         ("v_mfma_f32_16x16x16_bf16 v[88:91], v[12:13], v[76:77], 0", [ee(19), ee(20)]),
         ("v_mfma_f32_16x16x16_bf16 v[92:95], v[14:15], v[76:77], 0", [ee(21), "v_cvt_pk_bf16_f32 v69, v18, v19", ee(22), ee(23),
            "v_cvt_pk_bf16_f32 v70, v20, v21", "v_cvt_pk_bf16_f32 v71, v22, v23", W[16], "s_nop 0"]),
         ("v_mfma_f32_16x16x32_bf16 v[84:87], v[28:31], v[68:71], v[84:87]", [W[17]]),
         (f"v_mfma_f32_16x16x32_bf16 v[88:91], {vr(VX[0],4)}, v[68:71], v[88:91]", []),
         (f"v_mfma_f32_16x16x32_bf16 v[92:95], {vr(VX[1],4)}, v[68:71], v[92:95]", ["v_rcp_f32 v20, v84", "s_nop 2"])])
    for r in range(88, 92): a(f"v_mul_f32 v{r}, v20, v{r}")
    a("v_pk_mul_f32 v[92:93], v[92:93], v[20:21] op_sel_hi:[1,0]")
    a("v_pk_mul_f32 v[94:95], v[94:95], v[20:21] op_sel_hi:[1,0]")
    for i in range(4): a(f"v_cvt_pk_bf16_f32 v{16+i}, v{88+2*i}, v{89+2*i}")
    if "oexec" in opt: a(f"s_mov_b64 exec, {sr(S_OM,2)}")
    emit((f"ds_write_b128 {vOw}, v[16:19]", "Ow"))
    if "oexec" in opt: a("s_mov_b64 exec, -1")
    stamp()
    a(zero16(64))
    if "z2" not in opt: a(zero16(80))
    for _ in range(geti("xa", 0)): a(zero4(84) if "z2" in opt else zero4(76))
    emit(("w", "Ow"))
    a("s_barrier")
    emit((f"ds_read_b128 v[16:19], {vL16} offset:{L_OS}", "O0"))
    emit((f"ds_read_b128 v[20:23], {vL16} offset:{L_OS+1024}", "O1"))
    if "z3" not in opt: a(zero16(80))
    for _ in range(geti("xb", 0)): a("v_mfma_f32_16x16x16_bf16 v[76:79], v[10:11], v[10:11], 0")
    emit(("w", "O0" if "o01" in opt else "O1"))
    stamp()
    OA = [64 + 4 * T for T in range(8)]
    buf = {k: WB[k] for k in range(9)}
    for k in range(9, 16): buf[k] = WB[k - 9]
    def wo(k):
        T, ks = divmod(k, 2)
        return f"v_smfmac_f32_16x16x64_bf16 {vr(OA[T], 4)}, {vr(16 + 4*ks, 4)}, {vr(buf[k], 8)}, {vIdx}"
    def add(T):
        o = OA[T]; return [f"v_add_f32 v{o}, v{o}, v{o+1}", f"v_add_f32 v{o+2}, v{o+2}, v{o+3}"]
    G = [OA[0], OA[4]]
    def cvt(tau, bb):
        o0, o1 = OA[tau*4 + 2*bb], OA[tau*4 + 2*bb + 1]
        return [f"v_cvt_pk_bf16_f32 v{G[tau]+bb}, v{o0}, v{o1}", f"v_cvt_pk_bf16_f32 v{G[tau]+2+bb}, v{o0+2}, v{o1+2}"]
    tag = lambda tau: [f"v_and_or_b32 v{G[tau]}, v{G[tau]}, -2, s{S_TAG}"]
    stp = lambda tau: [f"buffer_store_dwordx4 {vr(G[tau],4)}, {vPs}, {sr(S_WS,4)}, s{S_PST+tau} offen{st}"]
    fill = {k: [] for k in range(16)}
    if "o01" in opt: fill[0].append(("w", "O1"))
    rest = [rdWo(k, buf[k], h) for k in range(9, 16) for h in range(2)]
    if "wo2" in opt:
        sched_rd = {0: 2, 1: 1, 2: 1, 3: 1, 4: 1, 5: 1, 6: 1, 7: 1, 8: 0, 9: 0, 10: 1, 11: 2, 12: 2}
        waits = {8: 10, 10: 12, 12: 13, 13: 14, 14: 15}
        va = {3: add(0)[:1], 4: add(0)[1:], 5: add(1), 6: cvt(0, 0), 7: tag(0) + add(2)[:1], 8: add(2)[1:], 9: add(3) + cvt(0, 1) + stp(0),
              11: add(4)[:1], 12: add(4)[1:], 13: add(5), 14: cvt(1, 0) + tag(1), 15: add(6)}
    else:
        sched_rd = {0: 2, 1: 2, 2: 2, 3: 1, 4: 1, 5: 1, 6: 1, 7: 1, 8: 1, 9: 1, 10: 1}
        waits = {8: 11, 11: 13, 13: 15}
        va = {3: add(0)[:1], 4: add(0)[1:], 5: add(1), 6: cvt(0, 0), 7: tag(0) + add(2)[:1], 8: add(2)[1:], 9: add(3) + cvt(0, 1), 10: stp(0),
              11: add(4)[:1], 12: add(4)[1:], 13: add(5), 14: cvt(1, 0) + tag(1), 15: add(6)}
    for k, n in sched_rd.items():
        for _ in range(n): fill[k].append(rest.pop(0))
    assert not rest
    for k, fr in waits.items(): fill[k].append(("w", ("W", fr)))
    for k, v in va.items(): fill[k] += v
    SEL, RD = 96, 100
    RS = [(104, 108), (112, 120)]
    fill[15] = [(f"ds_read_b128 {vr(SEL,4)}, {vL16} offset:{L_SEL}", "SEL")] + fill[15] + ["v_mov_b32 v117, -1", f"s_mov_b32 s{S_PC}, 0", "s_nop 2"] + add(7) + cvt(1, 1) + stp(1)
    run([(wo(k), fill[k]) for k in range(16)])
    stamp()
    if "nocomm" in opt:
        a(zero16(64)); fx(); a(zero16(80))
        if stamps:
            a(f"s_cmp_eq_u32 s{S_STEP}, {nsteps-1}")
            a(f"s_cbranch_scc1 {pfx}_end")
        a(f"s_add_u32 s{S_STEP}, s{S_STEP}, 1")
        a("s_nop 7")
        a(f"s_branch {pfx}_gA")
    def ldp(st_):
        for n in range(2): a(f"buffer_load_dwordx4 {vr(RS[st_][n],4)}, {vPl}, {sr(S_WS,4)}, s{S_PLD} offen offset:{1024*n} sc1")
    de = geti("de", 4); dl = geti("dl", 6); d2 = geti("db", 3); d3 = geti("dc", 3)
    NOP = "s_nop 7"
    a(zero16(64))
    fx()
    a(zero16(80))
    a(f"s_cmp_lt_u32 s{S_W}, 2")
    for _ in range(de - 2): a(NOP)
    a(f"s_cbranch_scc1 {pfx}_re")
    for _ in range(dl): a(NOP)
    a.label(f"{pfx}_re")
    ldp(0)
    for _ in range(d2): a(zero16(80))
    ldp(1)
    emit(("w", "SEL"))
    for _ in range(d3): a(zero16(80))
    def fin(st_, nm):
        r0, r1 = RS[st_]
        a.label(f"{pfx}_rc{nm}")
        if "spin" in opt and nm == "A":
            for k in range(geti("sn", 8)):
                a(f"s_getreg_b32 s{S_T0}, hwreg(HW_REG_IB_STS, 0, 4)")
                a(f"s_cmp_le_u32 s{S_T0}, {geti('sv', 3)}")
                a(zero4(92))
                a(f"s_cbranch_scc1 {pfx}_sp")
            a.label(f"{pfx}_sp")
        a("s_waitcnt vmcnt(3)")
        a(f"v_mfma_f32_16x16x32_bf16 {vr(RD,4)}, {vr(SEL,4)}, {vr(r0,4)}, 0")
        a(f"v_xor_b32 v118, s{S_TAG}, v{r0}")
        a("s_waitcnt vmcnt(2)")
        a(f"v_mfma_f32_16x16x32_bf16 v[16:19], {vr(SEL,4)}, {vr(r1,4)}, {vr(RD,4)}")
        a(f"v_xor_b32 v119, s{S_TAG}, v{r1}")
        a(f"v_or_b32 v119, v119, v118")
        a("s_nop 1")
        a(f"v_and_b32 v119, 1, v119")
        a("s_nop 0")
        a(f"v_cmp_ne_u32 vcc, 0, v119")
        a("s_nop 0")
        a("v_add_f32_dpp v16, v16, v16 row_ror:8 row_mask:0xf bank_mask:0xf")
        a("v_add_f32_dpp v17, v17, v17 row_ror:8 row_mask:0xf bank_mask:0xf")
        a("s_nop 0")
        a("v_add_f32_dpp v16, v16, v16 row_ror:4 row_mask:0xf bank_mask:0xf")
        a("v_add_f32_dpp v17, v17, v17 row_ror:4 row_mask:0xf bank_mask:0xf")
        a("v_cvt_pk_bf16_f32 v116, v16, v17")
        a(f"s_cbranch_vccnz {pfx}_rf{nm}")
    fin(0, "A")
    a.label(f"{pfx}_rok")
    stamp()
    if stamps: a(f"s_mov_b32 s{S_STAMP+28}, s{S_PC}")
    a(f"buffer_store_dword v116, {vMp}, {sr(S_WS,4)}, s{S_MWR} offen{st}")
    a(f"buffer_store_dword v117, {vMp}, {sr(S_WS,4)}, s{S_MPO} offen{st}")
    if stamps:
        a(f"s_mov_b32 s{S_STAMP+30}, s{S_STAMP+2*nst[0]}")
    stamp()
    if stamps:
        a(f"s_cmp_eq_u32 s{S_STEP}, {nsteps-1}")
        a(f"s_cbranch_scc1 {pfx}_end")
    ge = geti("ge", 5); g1 = geti("ga", 0); g2 = geti("gb", 3); g3 = geti("gc", 3)
    a(f"s_mov_b32 s{S_MPO}, s{S_MWR}")
    a(f"s_sub_u32 s{S_MRD}, s{S_MWR}, s{S_OWN}")
    a(f"s_cmp_ge_u32 s{S_W}, 2")
    a(f"s_cbranch_scc1 {pfx}_gl")
    for _ in range(ge): a(NOP)
    a.label(f"{pfx}_gl")
    for _ in range(g1): a(NOP)
    a(gather(0))
    if "stept" in opt:
        a("s_memrealtime s[70:71]")
        a(f"s_lshl_b32 s72, s{S_STEP}, 2"); a(f"s_add_u32 s72, s72, {L_JUNK}")
        a("v_mov_b32 v118, s72")
        a("s_waitcnt lgkmcnt(0)")
        a("v_mov_b32 v119, s70")
        a("ds_write_b32 v118, v119")
        g2 -= 1
    a(f"s_add_u32 s{S_MWR}, s{S_MWR}, 8192")
    a(f"s_cmp_ge_u32 s{S_MRD}, {hex(WS_MEM + 2*8192)}")
    a(f"s_cselect_b32 s{S_T0}, {3*8192}, 0")
    a(f"s_sub_u32 s{S_MWR}, s{S_MWR}, s{S_T0}")
    a(f"s_add_u32 s{S_STEP}, s{S_STEP}, 1")
    a(f"s_xor_b32 s{S_TAG}, s{S_TAG}, 1")
    if "mega" in opt:
        if "nofl" not in opt:
            a(f"v_readlane_b32 s{S_HAVE}, {vFl}, 0")
            a(f"v_readlane_b32 s{S_T0}, {vFl}, 2")
        a(f"s_add_u32 s{S_T1}, s{S_STEP}, 2")
        a(f"s_min_u32 s{S_T1}, s{S_T1}, 64")
        if "nofl" not in opt: a(f"s_min_u32 s{S_HAVE}, s{S_HAVE}, s{S_T0}")
        kv_wait(a, f"s{S_T1}", pfx + "_kvw")
        g2 -= 1
    a(f"s_mov_b32 s{S_PC}, 0")
    for _ in range(g2 - 1): a(NOP)
    a(gather(0))
    if "f1s" not in opt:
        for _ in range(g3): a(NOP)
        a(gather(1))
    for _ in range(geti("gw", 0)): a(zero16(96))
    a(f"s_branch {pfx}_gA")
    a.label(f"{pfx}_rfA")
    if "rstat" in opt: a("s_add_u32 s60, s60, 1")
    ldp(0)
    a(f"s_add_u32 s{S_PC}, s{S_PC}, 1")
    fin(1, "B")
    a(f"s_branch {pfx}_rok")
    a.label(f"{pfx}_rfB")
    if "rstat" in opt: a("s_add_u32 s63, s63, 1")
    ldp(1)
    a(f"s_add_u32 s{S_PC}, s{S_PC}, 1")
    a(f"s_cmp_lt_u32 s{S_PC}, s{S_PMAX}")
    a(f"s_cbranch_scc1 {pfx}_rcA")
    a(f"s_mov_b32 s{S_PMAX}, 1")
    a(f"s_branch {pfx}_rok")
    if not stamps:
        a.label(pfx + "_last")
        for x in kvm: a(x)
        early = [m for m in last_ms if any(f", {vr(F[sg],4)}," in m for sg in (1, 2, 4, 6))]
        late = [m for m in last_ms if m not in early]
        for m in early: a(m)
        a("s_waitcnt lgkmcnt(0)")
        for m in late: a(m)
        for x in pk0 + pk1: a(x)
        a("s_nop 1")
        for x in pv0 + pv1: a(x)
    a.label(pfx + "_end")
    a(kvm[0])
    if "stept" in opt:
        a(f"v_lshrrev_b32 v118, 2, {vL16}")
        a(f"ds_read_b32 v119, v118 offset:{L_JUNK}")
        a(f"s_lshl_b32 s72, s{S_H}, 8"); a(f"s_add_u32 s72, s72, {hex(WS_STAMP + 0x20000)}")
        a("s_waitcnt lgkmcnt(0)")
        a(f"buffer_store_dword v119, v118, {sr(S_WS,4)}, s72 offen")
    return nst[0]
```

```python
import sys
from common import *
import rec, pre, gemm
L_BOOT = 163840 - 64

def read_counts(a, vdst="v25", vaddr="v24"):
    a(f"global_load_dword {vdst}, {vaddr}, {sr(S_DBG,2)} sc1")
    a("s_waitcnt vmcnt(0)")

def sum_arrivals(a, vb, dst, tmp):
    a(f"v_readlane_b32 s{dst}, {vb}, {D_OVF}")
    for x in range(8):
        a(f"v_readlane_b32 s{tmp}, {vb}, {0 if x == 0 else 15 + x}")
        a("s_nop 1")
        a(f"s_bcnt1_i32_b32 s{tmp}, s{tmp}")
        a(f"s_add_u32 s{dst}, s{dst}, s{tmp}")

def emit_entry(a, opt):
    a("s_cmp_ge_u32 s2, 256")
    a("s_cbranch_scc1 L_exit")
    a("s_load_dwordx4 s[48:51], s[0:1], 112")
    a("s_load_dwordx16 s[32:47], s[0:1], 0")
    a(f"s_getreg_b32 s{S_TEAM}, hwreg(HW_REG_XCC_ID)")
    a(f"s_and_b32 s{S_TEAM}, s{S_TEAM}, 7")
    for o in opt:
        if o.startswith("map"):
            word = sum(int(c) << (4 * i) for i, c in enumerate(o[3:]))
            a(f"s_lshl_b32 s16, s{S_TEAM}, 2")
            a(f"s_lshr_b32 s{S_TEAM}, {hex(word)}, s16")
            a(f"s_and_b32 s{S_TEAM}, s{S_TEAM}, 7")
    if "fakexcc" in opt:
        a(f"s_lshr_b32 s{S_TEAM}, s2, 5")
        a("s_and_b32 s16, s2, 7")
        a("s_cmp_eq_u32 s16, 3")
        a(f"s_cselect_b32 s16, 5, s{S_TEAM}")
        a(f"s_mov_b32 s{S_TEAM}, s16")
    if "time" in opt: a("s_memrealtime s[92:93]")
    a("v_lshrrev_b32 v1, 6, v0")
    a(f"s_lshr_b32 s{S_H}, s2, 3")
    a(f"v_readfirstlane_b32 s{S_W}, v1")
    a(f"s_mov_b32 s{S_CLM}, 0")
    a("s_waitcnt lgkmcnt(0)")
    a(f"s_mov_b32 s{S_DBG}, s48")
    a(f"s_mov_b32 s{S_DBG+1}, s49")
    srd(a, S_WS, 50, WS_SIZE)
    if "cpf" in opt:
        a("s_getpc_b64 s[16:17]")
        a("s_and_b32 s16, s16, 0xffffff00")
        a(f"s_lshl_b32 s18, s{S_H}, 12"); a(f"s_lshl_b32 s19, s{S_W}, 10"); a("s_add_u32 s18, s18, s19")
        a("v_and_b32 v123, 7, v0"); a("v_lshlrev_b32 v123, 7, v123"); a("v_add_u32 v123, s18, v123")
        a("v_min_u32 v123, CODE_BYTES, v123")
        a("s_mov_b64 exec, 0xff")
        a("global_load_dword v122, v123, s[16:17]")
        a("s_mov_b64 exec, -1")
    a.label("L_role")

def emit_overflow(a):
    a.label("L_overflow")
    a("s_waitcnt vmcnt(0) lgkmcnt(0)")
    a("s_barrier")
    a("v_mov_b32 v2, 0"); a("v_mov_b32 v3, 1"); a("v_mov_b32 v5, 0")
    a(f"s_cmp_lg_u32 s{S_W}, 0")
    a("s_cbranch_scc1 L_ovw")
    a("s_mov_b64 exec, 1")
    a(f"global_atomic_add v4, v2, v3, {sr(S_DBG,2)} offset:{4*D_OVF} sc0")
    a("s_waitcnt vmcnt(0)")
    a("ds_write_b32 v5, v4")
    a("s_waitcnt lgkmcnt(0)")
    a("s_mov_b64 exec, -1")
    a.label("L_ovw")
    a("s_barrier")
    a("ds_read_b32 v4, v5")
    a("s_waitcnt lgkmcnt(0)")
    a("v_readfirstlane_b32 s18, v4")
    a("s_barrier")
    a("v_and_b32 v24, 31, v0"); a("v_lshlrev_b32 v24, 2, v24")
    a("s_mov_b32 s17, 0")
    a.label("L_ov")
    read_counts(a)
    sum_arrivals(a, "v25", 19, 20)
    a("s_cmp_ge_u32 s19, 256")
    a("s_cbranch_scc1 L_ovok")
    a("s_sleep 32")
    a("s_add_u32 s17, s17, 1")
    a("s_cmp_lt_u32 s17, 50000")
    a("s_cbranch_scc1 L_ov")
    a("s_branch L_exit")
    a.label("L_ovok")
    for x in range(8):
        a(f"v_readlane_b32 s20, v25, {0 if x == 0 else 15 + x}")
        a(f"s_mov_b32 s{S_TEAM}, {x}")
        a("s_nop 1")
        a("s_bcnt0_i32_b32 s19, s20")
        a("s_cmp_lt_u32 s18, s19")
        a("s_cbranch_scc1 L_ovf")
        a("s_sub_u32 s18, s18, s19")
    a("s_branch L_exit")
    a.label("L_ovf")
    a("s_cmp_eq_u32 s18, 0")
    a("s_cbranch_scc1 L_ovg")
    a("s_add_u32 s19, s20, 1")
    a("s_or_b32 s20, s20, s19")
    a("s_sub_u32 s18, s18, 1")
    a("s_branch L_ovf")
    a.label("L_ovg")
    a(f"s_ff0_i32_b32 s{S_H}, s20")
    a(f"s_and_b32 s{S_H}, s{S_H}, 31")
    a("s_branch L_role")

def emit_mode(a, opt, slow_label, va="v24", vb="v25"):
    if "fakexcc" in opt or "slow" in opt:
        a(f"s_branch {slow_label}")
        return
    l = a.uid("md")
    a(f"v_mbcnt_lo_u32_b32 {va}, -1, 0")
    a(f"v_and_b32 {va}, 31, {va}"); a(f"v_lshlrev_b32 {va}, 2, {va}")
    a(f"s_add_u32 s50, s{S_TEAM}, 15")
    a(f"s_cmp_eq_u32 s{S_TEAM}, 0")
    a("s_cselect_b32 s50, 0, s50")
    a("s_mov_b32 s51, 0")
    a.label(l)
    read_counts(a, vb, va)
    a(f"v_readlane_b32 s48, {vb}, s50")
    a("s_nop 1")
    a("s_cmp_eq_u32 s48, -1")
    a(f"s_cbranch_scc1 {l}_ok")
    sum_arrivals(a, vb, 48, 49)
    a("s_cmp_ge_u32 s48, 256")
    a(f"s_cbranch_scc1 {slow_label}")
    a("s_sleep 32")
    a("s_add_u32 s51, s51, 1")
    a("s_cmp_lt_u32 s51, 50000")
    a(f"s_cbranch_scc1 {l}")
    a(f"s_branch {slow_label}")
    a.label(l + "_ok")

def build(opt=()):
    opt = list(opt)
    if not any(o.startswith("map") for o in opt): opt.append("map62105347")
    a = Asm()
    hdr = open("cdna_kernels/" + KNAME + ".s.ref").read().split("\n") if "nohdr" not in opt else []
    for l in hdr:
        if l.startswith(";") and "@launch" not in l: a.raw(l)
        elif not l.startswith(";"): break
    a.raw("; @launch grid=(256,1,1) block=(256,1,1) lds=163840")
    a.raw('.amdgcn_target "amdgcn-amd-amdhsa--gfx950"')
    a.raw(".text")
    a.raw(f".globl {KNAME}_kernel")
    a.raw(".p2align 8")
    a.raw(f".type {KNAME}_kernel,@function")
    a.label(f"{KNAME}_kernel")
    emit_entry(a, opt)
    a(f"s_cmp_eq_u32 s{S_TEAM}, 1")
    a("s_cbranch_scc1 L_P")
    a(f"s_cmp_ge_u32 s{S_TEAM}, {T0_}")
    a("s_cbranch_scc1 L_T")
    a(f"s_cmp_ge_u32 s{S_TEAM}, 2")
    a("s_cbranch_scc1 L_G")
    def p_role():
        a.label("L_P")
        a(f"s_mov_b32 s16, s{S_H}")
        a.label("L_Ploop")
        pre.emit_pre(a, opt)
        a("s_add_u32 s16, s16, 32")
        a("s_cmp_lt_u32 s16, 128")
        a("s_barrier")
        a("s_cbranch_scc1 L_Ploop")
        a("s_waitcnt vmcnt(0)")
        a("s_barrier")
        a(f"s_cmp_lg_u32 s{S_W}, 0")
        a("s_cbranch_scc1 L_done")
        dbg_arrive(a, D_PRE)
        a("s_branch L_done")
    rec.emit_rec_mega(a, opt, p_role)
    a("s_branch L_done")
    a.label("L_G")
    for o in opt:
        if o.startswith("gdel"): a(f"s_sleep {int(o[4:])}")
    gemm.emit_gemm(a, opt)
    if "g2t" in opt:
        if "time" in opt: a("s_memrealtime s[88:89]")
        a("s_barrier")
        a("s_branch L_T")
    else: a("s_branch L_done")
    emit_overflow(a)
    a.label("L_T")
    import post
    post.emit_post(a, opt)
    a.label("L_done")
    if "wbe" in opt:
        a(f"s_or_b32 s48, s{S_W}, s{S_H}")
        a("s_cbranch_scc1 L_nowb")
        a("buffer_wbl2 sc1")
        a.label("L_nowb")
    if "time" in opt and "dbgtime" not in opt:
        a("s_memrealtime s[94:95]")
        a("s_memtime s[100:101]")
        a("s_waitcnt vmcnt(0) lgkmcnt(0)")
        a(f"s_cmp_lg_u32 s{S_W}, 0")
        a("s_cbranch_scc1 L_exit")
        a(f"s_lshl_b32 s48, s{S_TEAM}, 5")
        a(f"s_add_u32 s48, s48, s{S_H}")
        a("s_lshl_b32 s48, s48, 8")
        a(f"s_add_u32 s48, s48, {hex(WS_STAMP)}")
        a("v_mov_b32 v2, 0")
        a("s_mov_b64 exec, 1")
        for i in range(18):
            a(f"v_mov_b32 v3, s{84+i}")
            a(f"buffer_store_dword v3, v2, {sr(S_WS,4)}, s48 offen offset:{4*i}")
        for i in range(8):
            a(f"v_mov_b32 v3, s{76+i}")
            a(f"buffer_store_dword v3, v2, {sr(S_WS,4)}, s48 offen offset:{80+4*i}")
        a("s_mov_b64 exec, -1")
        a("v_mbcnt_lo_u32_b32 v2, -1, 0")
        a("v_lshlrev_b32 v2, 2, v2")
        a("s_mov_b64 exec, 0xffffffff")
        a(f"buffer_store_dword v143, v2, {sr(S_WS,4)}, s48 offen offset:128")
        a("s_waitcnt vmcnt(0)")
    if "dbgtime" in opt:
        a("s_memrealtime s[94:95]"); a("s_memtime s[100:101]")
        a("s_waitcnt vmcnt(0) lgkmcnt(0)")
        a(f"s_or_b32 s48, s{S_W}, s{S_H}")
        a("s_cbranch_scc1 L_exit")
        a("s_mov_b32 s50, 16")
        a(f"s_cmp_eq_u32 s{S_TEAM}, 0")
        a("s_cbranch_scc1 L_dt")
        a("s_mov_b32 s50, 40")
        a(f"s_cmp_lg_u32 s{S_TEAM}, 6")
        a("s_cbranch_scc1 L_exit")
        a.label("L_dt")
        a("v_mov_b32 v2, s50")
        a("s_mov_b64 exec, 1")
        a("s_sub_u32 s84, s84, s92"); a("s_sub_u32 s86, s86, s92"); a("s_sub_u32 s96, s94, s96"); a("s_sub_u32 s94, s94, s92"); a("s_sub_u32 s100, s100, s98")
        for i, r in enumerate((84, 86, 94, 96, 100)):
            a(f"v_mov_b32 v3, s{r}")
            a(f"global_store_dword v2, v3, {sr(S_DBG,2)} offset:{4*i}")
        a("s_waitcnt vmcnt(0)")
    a.label("L_exit")
    a("s_endpgm")
    a.label("L_codeend")
    a.raw(f".set CODE_BYTES, L_codeend - {KNAME}_kernel - 4")
    a.raw('.section .rodata,"a"')
    a.raw(".p2align 6")
    a.raw(f".amdhsa_kernel {KNAME}_kernel")
    for l in ["next_free_vgpr 512", "next_free_sgpr 102", "accum_offset 256", "group_segment_fixed_size 0", "kernarg_size 128",
              "user_sgpr_count 2", "user_sgpr_kernarg_segment_ptr 1", "system_sgpr_workgroup_id_x 1", "float_denorm_mode_32 3"]:
        a.raw("  .amdhsa_" + l)
    a.raw(".end_amdhsa_kernel")
    return a.text()

if __name__ == "__main__":
    out = sys.argv[1]
    t = build(sys.argv[2:])
    open(out, "w").write(t)
    errs = check_hazards(t)
    for e in errs: print("HAZARD", e)
    print("lines", t.count("\n"), "bytes", len(t), "hazards", len(errs))
```

```python
from common import *
from pre import rnd1, rnd2, MASK, S_TID, xsum_g
import math
import common
def tstamp(a, opt, idx):
    if "midst" in opt and idx < 16 and "time" in opt:
        l = a.uid("ts")
        a("s_cselect_b32 s80, 1, 0")
        a(f"s_cmp_ge_u32 s{S_SEG}, 52"); a(f"s_cbranch_scc1 {l}")
        common.tstamp(a, opt, idx, "v47")
        a.label(l)
        a("s_cmp_lg_u32 s80, 0")
    else: common.tstamp(a, opt, idx, "v47")

S_X, S_O = 20, 24
S_SEG, S_TAG, S_PC, S_PMAX, S_SC, S_L2E = 28, 29, 30, 31, 18, 19
S_P1S, S_P1L, S_P1S2 = 52, 53, 54
S_SLOT, S_PSLOT = 55, 56
S_H2B, S_H2O, S_ACTW, S_ACTR = 57, 58, 59, 60
S_KV, S_Q, S_KM, S_KMV, S_ROW, S_OUT, S_FLG, S_HAVE, S_X2R = 61, 62, 63, 64, 65, 66, 67, 68, 69
S_MKV, S_MQ, S_MODE = 72, 73, 74
S_LIM = 64
S_STR, S_NXT, S_KMB, S_OUTB, S_KVE, S_QE, S_RWE = 76, 77, 78, 79, 81, 82, 83
XS = 48
def set_xs(opt):
    global XS
    XS = 48
    for o in opt:
        if o.startswith('xs') and o[2:].isdigit(): XS = int(o[2:])
vL16, vCol, vP, vKw, vKr, vHg, vHw, vHr, vOw, vZero, vQr, vVr, vEw, vEr, vEo = ["v%d" % i for i in range(1, 16)]
MC = 16
BIAS, SEL = 24, 32
vX2g = "v36"
XR = 37
T0, T1, T2 = 38, 39, 40
L_O, L_ST, L_E, L_KV, L_Q, L_K, L_H = 0, 16384, 20480, 32768, 65536, 81920, 98304
FS, RTS = 1088, 17408
WoF = lambda ct, ks, off=0, n=4: ar((ct * 8 + ks) * 4 + off, n)
GF = lambda m, ks, off=0, n=4: ar(128 + (m * 16 + ks) * 4 + off, n)
DF = lambda t, ks, off=0, n=4: vr(144 + (t * 14 + ks) * 4 + off, n)

def wave_sum(a, x, t):
    a("s_nop 1")
    for ror in (1, 2, 4, 8):
        a(f"v_add_f32_dpp v{x}, v{x}, v{x} row_ror:{ror} row_mask:0xf bank_mask:0xf")
        if ror < 8: a("s_nop 1")
    xsum_g(a, x, t)

def emit_post_addr(a, opt=()):
    LE = lambda *x, **k: lane_expr(a, *x, tmp="v47", **k)
    WS = sr(S_WS, 4)
    LE(vL16, "v0", [(0, 6, 4)])
    LE(vCol, "v0", [(6, 2, 8), (2, 2, 6), (5, 1, 5), (0, 2, 3), (4, 1, 2)])
    LE(vP, "v0", [(0, 4, 14), (4, 2, 4)])
    LE(vKw, "v0", [(6, 2, 12), (0, 4, 5), (4, 2, 3)], L_K)
    LE("v48", "v0", [(2, 2, 3)]); a(f"v_xor_b32 {vKw}, {vKw}, v48")
    LE(vKr, "v0", [(6, 2, 12), (0, 6, 3)], L_K)
    LE("v48", "v0", [(4, 2, 3)]); a(f"v_xor_b32 {vKr}, {vKr}, v48")
    LE(vHg, "v0", [(4, 2, 11), (6, 2, 8), (0, 4, 4)])
    LE("v48", "v0", [(6, 2, 2), (2, 2, 0)])
    a(f"v_mul_u32_u24 {vHw}, {FS}, v48")
    a("v_and_b32 v48, 3, v0"); a("v_mul_u32_u24 v48, 272, v48"); a(f"v_add_u32 {vHw}, {vHw}, v48")
    LE("v48", "v0", [(4, 2, 4)], L_H); a(f"v_add_u32 {vHw}, {vHw}, v48")
    a("v_bfe_u32 v48, v0, 4, 2"); a(f"v_mul_u32_u24 {vHr}, 272, v48")
    LE("v48", "v0", [(0, 4, 4)], L_H); a(f"v_add_u32 {vHr}, {vHr}, v48")
    LE(vOw, "v0", [(6, 1, 13), (7, 1, 12), (0, 6, 4)], L_O)
    a(f"v_mov_b32 {vZero}, 0")
    LE(vQr, "v0", [(6, 2, 12), (0, 6, 4)], L_Q)
    LE(vVr, "v0", [(7, 1, 14), (0, 6, 4)], L_KV)
    LE(vEw, "v0", [(6, 2, 11), (0, 6, 4)], L_E)
    LE(vEr, "v0", [(3, 1, 10), (1, 2, 8), (4, 4, 4), (0, 1, 3)], L_E)
    LE(vEo, "v0", [(4, 4, 10), (0, 4, 2)])
    LE(vX2g, "v0", [(4, 4, 11), (0, 4, 2)])
    a(f"s_sub_u32 s50, s{S_TEAM}, {T0_}")
    sexpr(a, S_P1S, [(50, 0, 3, 20), (S_H, 0, 1, 13), (S_W, 1, 1, 12), (S_H, 1, 4, 8), (S_W, 0, 1, 7)], WS_P1)
    a(f"s_add_u32 s{S_P1S2}, s{S_P1S}, {16*16384}")
    sexpr(a, S_P1L, [(50, 0, 3, 20), (S_H, 0, 5, 14), (S_W, 0, 2, 12)], WS_P1)
    sexpr(a, S_H2B, [(50, 0, 3, 18)], WS_H2)
    sexpr(a, S_H2O, [(50, 0, 3, 18), (S_H, 0, 5, 11)], WS_H2)
    sexpr(a, S_X2R, [(50, 0, 3, 18), (S_H, 0, 1, 15), (S_H, 1, 4, 6)], WS_H2 + 1024)
    sexpr(a, S_ACTW, [(50, 0, 3, 19), (S_H, 0, 5, 11), (S_W, 1, 1, 10), (S_W, 0, 1, 3)], WS_ACT)
    a(f"s_and_b32 s48, s{S_H}, 1"); a(f"s_mul_i32 s48, s48, {56*1024}")
    a(f"s_mul_i32 s51, s{S_W}, {14*1024}"); a("s_add_u32 s48, s48, s51")
    sexpr(a, S_ACTR, [(50, 0, 3, 19)], WS_ACT); a(f"s_add_u32 s{S_ACTR}, s{S_ACTR}, s48")

def emit_post_weights(a, opt):
    LE = lambda *x, **k: lane_expr(a, *x, tmp="v47", **k)
    WS = sr(S_WS, 4)
    def geti(p, d):
        for o in opt:
            if o.startswith(p) and o[len(p):].isdigit(): return int(o[len(p):])
        return d
    import mega
    a.c("==== T role: team-buffer init + stationary weights ====")
    a("s_load_dwordx2 s[34:35], s[0:1], 40")
    a("s_load_dwordx4 s[36:39], s[0:1], 64")
    a("s_load_dwordx2 s[40:41], s[0:1], 80")
    emit_post_addr(a, opt)
    LE("v60", "v0", [(3, 3, 10)]); LE("v61", "v0", [(0, 3, 4)]); LE("v62", "v0", [(4, 2, 5)])
    a("v_xor_b32 v62, v61, v62"); a("v_add_u32 v66, v60, v62")
    LE("v67", "v0", [(6, 2, 15), (2, 4, 7), (1, 1, 4), (3, 2, 5), (0, 1, 3)])
    LE("v60", "v0", [(2, 4, 10)]); LE("v62", "v0", [(0, 2, 4)]); LE("v63", "v0", [(4, 1, 5)])
    a("v_xor_b32 v62, v62, v63"); a("v_add_u32 v68, v60, v62")
    LE("v69", "v0", [(6, 2, 15), (2, 4, 6), (1, 1, 4), (4, 1, 5), (0, 1, 3)])
    a("v_xor_b32 v70, 32, v69")
    a("v_bfe_u32 v60, v0, 3, 3"); a("v_mul_u32_u24 v60, 3584, v60")
    a("v_xor_b32 v62, v61, v63"); a("v_add_u32 v71, v60, v62")
    a("v_xor_b32 v62, 64, v62"); a("v_add_u32 v72, v60, v62")
    LE("v60", "v0", [(4, 2, 10), (2, 2, 7), (0, 1, 3)]); LE("v62", "v0", [(6, 2, 5), (1, 1, 4)]); LE("v63", "v0", [(3, 1, 5), (4, 1, 6)])
    a("v_xor_b32 v62, v62, v63"); a("v_add_u32 v73, v60, v62"); a("v_add_u32 v74, 0x10000, v73")
    S_LB, S_WOS, S_DNS, S_GUS = 76, 77, 78, 79
    sexpr(a, S_LB, [(S_W, 0, 2, 15)])
    sexpr(a, S_WOS, [(S_H, 1, 4, 18), (S_H, 0, 1, 9), (S_W, 0, 2, 7)])
    a(f"s_mul_i32 s{S_DNS}, s{S_W}, {448*1024}"); sexpr(a, 48, [(S_H, 1, 4, 6)]); a(f"s_add_u32 s{S_DNS}, s{S_DNS}, s48")
    a(f"s_mul_i32 s{S_GUS}, s{S_W}, {128*3584}"); a(f"s_min_u32 s48, s{S_H}, 27"); a("s_lshl_b32 s48, s48, 7"); a(f"s_add_u32 s{S_GUS}, s{S_GUS}, s48")
    a(f"s_cmp_lg_u32 s{S_CLM}, 0")
    a("s_cbranch_scc1 T_nw")
    for _ in range(geti("ts", 2)): a("s_sleep 64")
    claim(a)
    verify_claim(a, 0, 163840 - 64)
    wl = geti("wl", 8)
    a(f"s_cmp_ge_u32 s{S_TEAM}, {wl}")
    a(f"s_cselect_b32 s50, {D_LN1}, {D_MOD1}")
    a("s_lshl_b32 s50, s50, 2")
    dbg_wait(a, 0, 32, "v44", "v45", soff=50, sleep=40, limit=10)
    for _ in range(geti("tx", 0)): a("s_sleep 32")
    a.label("T_nw")
    a("s_waitcnt lgkmcnt(0)")
    tstamp(a, opt, 16)
    q = VmQ(a)
    def batch(tag, ptr, nbytes, sbase, voff, half, idxs, rowbytes):
        srd(a, S_T, ptr, nbytes)
        for n, i in enumerate(idxs):
            a(f"s_add_u32 m0, s{S_LB}, {half * 16384 + n * 1024}")
            a(f"s_add_u32 s48, s{sbase}, {i * rowbytes}")
            a(f"buffer_load_dwordx4 v{voff(i)}, {sr(S_T,4)}, s48 offen lds")
            if geti("tw", 0): a(f"s_waitcnt vmcnt({geti('tw', 0)})")
        q.issue(tag, len(idxs))
    wo = lambda h: batch(("wo", h), 34, 4194304, S_WOS, lambda i: 66, h, range(16 * h, 16 * h + 16), 8 * 1024)
    dn = lambda h: batch(("dn", h), 40, 1792 * 1024, S_DNS, lambda i: 68, h, range(16 * h, min(16 * h + 16, 28)), 16 * 1024)
    gu = lambda m: batch(("gu", m), 36 + 2 * m, 512 * 3584, S_GUS, lambda i: 71 + (i & 1), m, range(16), 8 * 3584)
    wo(0); wo(1)
    for h in range(2):
        q.wait(("wo", h))
        for ct in range(4):
            a(f"v_xor_b32 v65, {32 * ct}, v67")
            for ks in range(4 * h, 4 * h + 4):
                for u in range(2):
                    a(f"ds_read_b64_tr_b16 {WoF(ct, ks, 2*u, 2)}, v65 offset:{(32*ks + 16*u) * 128}")
        a("s_waitcnt lgkmcnt(0)")
        dn(h)
    tstamp(a, opt, 17)
    for h in range(2):
        q.wait(("dn", h))
        for t in range(2):
            for ks in range(8 * h, min(8 * h + 8, 14)):
                for u in range(2):
                    a(f"ds_read_b64_tr_b16 {DF(t, ks, 2*u, 2)}, v{69+t} offset:{(32*ks + 16*u) * 64}")
        a("s_waitcnt lgkmcnt(0)")
        gu(h)
    tstamp(a, opt, 18)
    a(f"v_mov_b32 v46, {163840 - 32}")
    a(f"s_cmp_lg_u32 s{S_W}, 0")
    a("s_cbranch_scc1 T_mdw")
    a(f"s_mov_b32 s{S_MODE}, 1")
    mega.emit_mode(a, opt, "T_md1", "v44", "v45")
    a(f"s_mov_b32 s{S_MODE}, 0")
    a.label("T_md1")
    a(f"v_mov_b32 v45, s{S_MODE}")
    a("ds_write_b32 v46, v45")
    a.label("T_mdw")
    a("s_waitcnt vmcnt(0) lgkmcnt(0)")
    a("s_barrier")
    tstamp(a, opt, 19)
    a("ds_read_b32 v45, v46")
    a("s_waitcnt lgkmcnt(0)")
    a(f"v_readfirstlane_b32 s{S_MODE}, v45")
    a("s_nop 3")
    a(f"s_cmp_lg_u32 s{S_MODE}, 0")
    a("s_cbranch_scc1 T_init1")
    for mode, st in ((0, ""), (1, " sc1")):
        a.label(f"T_init{mode}")
        for i in range(2): a(f"v_mov_b32 v{48+i}, -1")
        for i in range(4): a(f"v_mov_b32 v{52+i}, 0")
        for k in range(4):
            a(f"buffer_store_dwordx4 v[52:55], {vL16}, {WS}, s{S_P1L} offen offset:{1024*k}{st}")
        for sl in range(3):
            a(f"s_add_u32 s48, s{S_H2O}, {sl*65536}")
            a(f"buffer_store_dword v48, {vCol}, {WS}, s48 offen{st}")
            a(f"buffer_store_dword v48, {vCol}, {WS}, s48 offen offset:1024{st}")
        a(f"s_cmp_ge_u32 s{S_H}, 28")
        a(f"s_cbranch_scc1 T_nopa{mode}")
        for sl in range(3):
            for rt in range(2):
                a(f"s_add_u32 s48, s{S_ACTW}, {sl*131072 + rt*56*1024}")
                a(f"buffer_store_dwordx2 v[48:49], {vL16}, {WS}, s48 offen{st}")
        a.label(f"T_nopa{mode}")
        if mode == 0: a("s_branch T_initd")
    a.label("T_initd")
    for m in range(2):
        for ks in range(16):
            for u in range(2):
                off = ((ks // 4) % 2) * 32768 + m * 16384 + (32 * (ks % 4) + 4 * u) * 128
                a(f"ds_read_b64_tr_b16 {GF(m, ks, 2*u, 2)}, v{73 + ks // 8} offset:{off}")
    a("s_waitcnt vmcnt(0) lgkmcnt(0)")
    a("s_barrier")
    a(f"s_cmp_lg_u32 s{S_W}, 0")
    a("s_cbranch_scc1 T_noarr")
    a(f"s_lshl_b32 s50, s{S_TEAM}, 2")
    dbg_arrive(a, D_INIT - T0_, "v44", "v45", soff=50)
    a.label("T_noarr")

def emit_post_final(a, opt):
    LE = lambda *x, **k: lane_expr(a, *x, tmp="v47", **k)
    WS = sr(S_WS, 4)
    a("s_load_dwordx2 s[32:33], s[0:1], 0")
    a("s_load_dwordx2 s[42:43], s[0:1], 104")
    dbg_wait(a, D_MOD2, 32, "v44", "v45", sleep=32)
    a(f"s_mov_b32 s48, {hex(WS_MOD + 2048)}")
    for i, k in enumerate((0, 2, 1)):
        a(f"buffer_load_dword v{56+i}, {vCol}, {WS}, s48 offen offset:{1024*k} sc1")
    LE("v60", "v0", [(0, 4, 2)])
    sexpr(a, 48, [(S_H, 1, 4, 6)], WS_MOD + 5 * 1024)
    a(f"buffer_load_dword v59, v60, {WS}, s48 offen sc1")
    a("s_waitcnt vmcnt(0) lgkmcnt(0)")
    for i in range(4):
        a(f"v_lshlrev_b32 v{MC+2*i}, 16, v{56+i}")
        a(f"v_and_b32 v{MC+2*i+1}, s{MASK}, v{56+i}")
    a(f"v_add_f32 v{MC+2}, 1.0, v{MC+2}"); a(f"v_add_f32 v{MC+3}, 1.0, v{MC+3}")
    rnd2(a, MC + 2, MC + 3, 47)
    srd(a, S_X, 32, 2048 * 1024)
    srd(a, S_O, 42, 2048 * 1024)
    a("v_and_b32 v60, 3, v0"); a("v_bfe_u32 v61, v0, 2, 2")
    a("v_mov_b32 v62, 0x3f80"); a("v_mov_b32 v63, 0x3f800000")
    a("v_cmp_eq_u32 vcc, 1, v60"); a("s_nop 1"); a("v_cndmask_b32 v62, v62, v63, vcc")
    a("v_cmp_gt_u32 vcc, 2, v60"); a("s_nop 1"); a("v_cndmask_b32 v62, 0, v62, vcc")
    for d in range(4):
        a(f"v_cmp_eq_u32 vcc, {d}, v61"); a("s_nop 1"); a(f"v_cndmask_b32 v{SEL+d}, 0, v62, vcc")
    LE("v60", "v0", [(6, 1, 4), (0, 4, 0)])
    LE("v61", "v0", [(4, 2, 2)])
    a(f"v_mov_b32 v63, {f32bits(-1e30)}")
    for t in range(2):
        for r in range(4):
            a(f"v_add_u32 v62, {16*t + r}, v61")
            a("v_cmp_gt_u32 vcc, v62, v60"); a("s_nop 1")
            a(f"v_cndmask_b32 v{BIAS+4*t+r}, 0, v63, vcc")
    a(f"s_sub_u32 s{S_SEG}, s{S_TEAM}, {T0_}")
    a(f"s_mov_b32 s{S_LIM}, 64")
    if "g2t" in opt:
        a(f"s_add_u32 s48, s{S_TEAM}, {XS + NT - 2}")
        a(f"s_cmp_lt_u32 s{S_TEAM}, {T0_}")
        a(f"s_cselect_b32 s{S_SEG}, s48, s{S_SEG}")
    sexpr(a, 50, [(S_H, 1, 4, 1), (S_W, 1, 1, 0)])
    a(f"s_mul_i32 s{S_KV}, s50, {HSTR}")
    sexpr(a, 48, [(S_W, 0, 1, 13)], WS_KV); a(f"s_add_u32 s{S_KV}, s{S_KV}, s48")
    a(f"s_mul_i32 s{S_Q}, s50, {QSTR}")
    sexpr(a, 48, [(S_W, 0, 1, 12)], WS_QX); a(f"s_add_u32 s{S_Q}, s{S_Q}, s48")
    sexpr(a, S_MKV, [(S_W, 0, 2, 13)], L_KV)
    sexpr(a, S_MQ, [(S_W, 0, 2, 12)], L_Q)
    a(f"s_mul_i32 s{S_KM}, s50, {MSTR}")
    a(f"s_add_u32 s{S_KMB}, s{S_KM}, {hex(WS_KM)}")
    sexpr(a, S_FLG, [(50, 0, 5, 7)], WS_FLAG)
    sexpr(a, S_ROW, [(S_H, 0, 5, 10)])
    sexpr(a, S_OUTB, [(S_H, 0, 1, 14), (S_H, 1, 4, 6)])
    seg_addrs(a)
    a(f"s_mov_b32 s{S_HAVE}, 0")
    a(f"s_mov_b32 s{S_TAG}, 1")
    a(f"s_mov_b32 s{S_SLOT}, 0")
    a(f"s_mov_b32 s{S_PSLOT}, 2")
    a(f"s_mov_b32 s{S_PMAX}, 100000")
    a(f"s_mov_b32 s{S_SC}, {f32bits(128 ** -0.5)}")
    a(f"s_mov_b32 s{S_L2E}, {f32bits(math.log2(math.e))}")
    a(f"s_lshl_b32 s50, s{S_TEAM}, 2")
    dbg_wait(a, D_INIT - T0_, 32, "v44", "v45", soff=50, sleep=24)

DEFER = []
def poll(a, name, loads, check, sleep=3):
    a(f"s_mov_b32 s{S_PC}, 0")
    a.label(name)
    loads()
    check()
    a(f"s_cbranch_vccnz {name}_f")
    a.label(name + "_ok")
    def tail():
        a.label(name + "_f")
        a(f"s_sleep {sleep}")
        a(f"s_add_u32 s{S_PC}, s{S_PC}, 1")
        a(f"s_cmp_lt_u32 s{S_PC}, s{S_PMAX}")
        a(f"s_cbranch_scc1 {name}")
        a(f"s_mov_b32 s{S_PMAX}, 1")
        a(f"s_branch {name}_ok")
    DEFER.append(tail)

def seg_addrs(a):
    a(f"s_lshl_b32 s48, s{S_SEG}, 12"); a(f"s_add_u32 s{S_KM}, s{S_KMB}, s48")
    a(f"s_lshl_b32 s48, s{S_SEG}, 15"); a(f"s_add_u32 s{S_OUT}, s{S_OUTB}, s48")

def pf_list():
    WS = sr(S_WS, 4)
    L = []
    for half in range(2):
        for i in range(4):
            L.append(([f"s_add_u32 m0, s{S_MKV}, {half*4096}", f"s_add_u32 s48, s{S_KVE}, {half*4096}"] if i == 0 else []) +
                     [f"buffer_load_dwordx4 {vL16}, {WS}, s48 offen offset:{1024*i} sc1 lds"])
    for i in range(4):
        L.append(([f"s_mov_b32 m0, s{S_MQ}", "s_nop 0"] if i == 0 else []) + [f"buffer_load_dwordx4 {vL16}, {WS}, s{S_QE} offen offset:{1024*i} sc1 lds"])
    L.append([f"buffer_load_dword v{XR}, {vCol}, {sr(S_X,4)}, s{S_RWE} offen"])
    return L

def prefetch(a, name, segreg, body=True):
    WS = sr(S_WS, 4)
    a(f"s_cmp_ge_u32 s{segreg}, s{S_LIM}")
    a(f"s_cbranch_scc1 {name}_skip")
    a(f"s_cmp_gt_u32 s{S_HAVE}, s{segreg}")
    a(f"s_cbranch_scc1 {name}_fok")
    a(f"s_mov_b32 s{S_PC}, 0")
    a.label(name + "_fl")
    a("s_mov_b64 exec, 3")
    a(f"buffer_load_dword v45, {vL16}, {WS}, s{S_FLG} offen sc1")
    a("s_mov_b64 exec, -1")
    a("s_waitcnt vmcnt(0)")
    a(f"v_readlane_b32 s{S_HAVE}, v45, 0"); a("v_readlane_b32 s48, v45, 1")
    a("s_nop 1")
    a(f"s_min_u32 s{S_HAVE}, s{S_HAVE}, s48")
    a(f"s_cmp_gt_u32 s{S_HAVE}, s{segreg}")
    a(f"s_cbranch_scc1 {name}_fok")
    a("s_sleep 8")
    a(f"s_add_u32 s{S_PC}, s{S_PC}, 1")
    a(f"s_cmp_lt_u32 s{S_PC}, s{S_PMAX}")
    a(f"s_cbranch_scc1 {name}_fl")
    a(f"s_mov_b32 s{S_PMAX}, 1")
    a.label(name + "_fok")
    a(f"s_lshl_b32 s48, s{segreg}, 14"); a(f"s_add_u32 s{S_KVE}, s{S_KV}, s48")
    a(f"s_lshl_b32 s48, s{segreg}, 13"); a(f"s_add_u32 s{S_QE}, s{S_Q}, s48")
    a(f"s_lshl_b32 s48, s{segreg}, 15"); a(f"s_add_u32 s{S_RWE}, s{S_ROW}, s48")
    if not body: return
    for g in pf_list():
        for x in g: a(x)
    a.label(name + "_skip")

def emit_post_loop(a, fast, pfx, opt):
    def geti(p, d):
        for o in opt:
            if o.startswith(p) and o[len(p):].isdigit(): return int(o[len(p):])
        return d
    st = "" if fast else " sc1"
    WS = sr(S_WS, 4)
    QF, KX, VX, KF, SS, KMR = 48, 64, 64, 96, 112, 124
    WARM = f"v_mfma_f32_32x32x2_f32 v[80:95], {vZero}, {vZero}, 0"
    prefetch(a, pfx + "_pf0", S_SEG)
    if "g2t" in opt:
        a(f"s_cmp_ge_u32 s{S_TEAM}, {T0_}")
        a(f"s_cselect_b32 s48, 1, s{S_W}")
        a("s_cmp_lg_u32 s48, 0")
        a(f"s_cbranch_scc1 {pfx}_lw_ok")
        a(f"s_sub_u32 s49, s{S_KM}, {2*4096}")
        a(f"s_mov_b32 s{S_PC}, 0")
        a("s_mov_b64 exec, 1")
        a.label(pfx + "_lw")
        a(f"buffer_load_dword v45, {vL16}, {WS}, s49 offen sc1")
        a("s_waitcnt vmcnt(0)")
        a("v_readfirstlane_b32 s48, v45")
        a("s_cmp_lg_u32 s48, -1")
        a(f"s_cbranch_scc1 {pfx}_lw_x")
        a("s_sleep 16")
        a(f"s_add_u32 s{S_PC}, s{S_PC}, 1")
        a(f"s_cmp_lt_u32 s{S_PC}, 20000")
        a(f"s_cbranch_scc1 {pfx}_lw")
        a.label(pfx + "_lw_x")
        a("s_mov_b64 exec, -1")
        a.label(pfx + "_lw_ok")
    a("s_waitcnt vmcnt(0)")
    a("s_barrier")
    a.raw(".p2align 6")
    a.label(pfx + "_loop")
    tstamp(a, opt, 0)
    def ldkm():
        for i in range(4): a(f"buffer_load_dwordx4 {vr(KMR+4*i,4)}, {vL16}, {WS}, s{S_KM} offen offset:{1024*i} sc1")
    if "wbl" in opt:
        a(f"s_cmp_lt_u32 s{S_SEG}, {64-NT}")
        a(f"s_cselect_b32 s48, 1, s{S_W}")
        a(f"s_or_b32 s48, s48, s{S_H}")
        a(f"s_cbranch_scc1 {pfx}_nwb")
        a("buffer_wbl2 sc1")
        a.label(pfx + "_nwb")
    ldkm()
    for ks in range(4):
        a(f"ds_read_b128 {vr(QF+4*ks,4)}, {vQr} offset:{1024*ks}")
        for t in range(2):
            i = t * 4 + ks
            a(f"ds_read_b128 {vr(KX+4*i,4)}, {vVr} offset:{(i//2)*4096 + (i%2)*1024}")
    for ks in range(4):
        a(f"s_waitcnt lgkmcnt({9-3*ks})")
        for t in range(2):
            d = vr(SS + 4 * t, 4)
            a(f"v_mfma_f32_16x16x32_bf16 {d}, {vr(KX+4*(t*4+ks),4)}, {vr(QF+4*ks,4)}, {d if ks else vr(BIAS+4*t,4)}")
    for i in range(8):
        a(f"ds_read_b128 {vr(VX+4*i,4)}, {vVr} offset:{(i//2)*4096 + 2048 + (i%2)*1024}")
    def scale(regs):
        for i in range(0, len(regs), 2): rnd2(a, regs[i], regs[i+1], T2)
        for r in regs: a(f"v_mul_f32 v{r}, s{S_SC}, v{r}")
        for i in range(0, len(regs), 2): rnd2(a, regs[i], regs[i+1], T2)
    scale(list(range(SS, SS + 8)))
    MX, LX = 41, 46
    a(f"v_max3_f32 v{MX}, v{SS}, v{SS+1}, v{SS+2}"); a(f"v_max3_f32 v{T1}, v{SS+3}, v{SS+4}, v{SS+5}")
    a(f"v_max3_f32 v{MX}, v{MX}, v{SS+6}, v{SS+7}"); a(f"v_max_f32 v{MX}, v{MX}, v{T1}")
    xsum_g(a, MX, T1, "v_max_f32")
    a(f"v_mul_f32 v{T0}, s{S_L2E}, v{MX}")
    for r in range(8): a(f"v_fma_f32 v{SS+r}, v{SS+r}, s{S_L2E}, -v{T0}")
    for r in range(8): a(f"v_exp_f32 v{SS+r}, v{SS+r}")
    a(f"v_add_f32 v{LX}, v{SS}, v{SS+1}"); a(f"v_add_f32 v{T0}, v{SS+2}, v{SS+3}"); a(f"v_add_f32 v{T1}, v{SS+4}, v{SS+5}")
    a(f"v_add_f32 v{T2}, v{SS+6}, v{SS+7}"); a(f"v_add_f32 v{LX}, v{LX}, v{T0}"); a(f"v_add_f32 v{T1}, v{T1}, v{T2}")
    a(f"v_add_f32 v{LX}, v{LX}, v{T1}")
    PX, PM0, OC = 140, 44, 96
    a(f"v_mov_b32 v{PM0+1}, 0")
    tstamp(a, opt, 1)
    a(f"s_mov_b32 s{S_PC}, 0")
    a.label(pfx + "_km")
    a("s_waitcnt vmcnt(0)")
    a(f"v_max3_u32 v{T0}, v{KMR}, v{KMR+4}, v{KMR+8}")
    a(f"v_max_u32 v{T0}, v{T0}, v{KMR+12}")
    a(f"v_cmp_eq_u32 vcc, -1, v{T0}")
    for i in range(4): a(f"ds_write2st64_b32 {vKw}, v{KMR+4*i+1}, v{KMR+4*i+3} offset0:{4*i} offset1:{4*i+2}")
    a(f"s_cbranch_vccnz {pfx}_km_f")
    def kmtail():
        a.label(pfx + "_km_f")
        a(f"s_sleep {geti('tk', 3)}")
        ldkm()
        a(f"s_add_u32 s{S_PC}, s{S_PC}, 1")
        a(f"s_cmp_lt_u32 s{S_PC}, s{S_PMAX}")
        a(f"s_cbranch_scc1 {pfx}_km")
        a(f"s_mov_b32 s{S_PMAX}, 1")
        a("s_waitcnt vmcnt(0)")
        a(f"s_branch {pfx}_km_ok")
    DEFER.append(kmtail)
    a.label(pfx + "_km_ok")
    tstamp(a, opt, 2)
    for ks in range(4):
        for u in range(2):
            a(f"ds_read_b64_tr_b16 {vr(KF+4*ks+2*u,2)}, {vKr} offset:{1024*ks+512*u}")
    for ks in range(4):
        a(f"s_waitcnt lgkmcnt({6-2*ks})")
        d = vr(SS + 8, 4)
        a(f"v_mfma_f32_16x16x32_bf16 {d}, {vr(KF+4*ks,4)}, {vr(QF+4*ks,4)}, {d if ks else 0}")
    a("s_nop 7")
    scale([SS + 8, SS + 9])
    a(f"v_max3_f32 v{T0}, v{MX}, v{SS+8}, v{SS+9}")
    xsum_g(a, T0, T1, "v_max_f32")
    a(f"v_mul_f32 v{T0}, s{S_L2E}, v{T0}")
    a(f"v_fma_f32 v{MX}, v{MX}, s{S_L2E}, -v{T0}")
    for r in (8, 9): a(f"v_fma_f32 v{SS+r}, v{SS+r}, s{S_L2E}, -v{T0}")
    a(f"v_exp_f32 v{MX}, v{MX}")
    for r in (8, 9): a(f"v_exp_f32 v{SS+r}, v{SS+r}")
    a(f"v_fma_f32 v{LX}, v{LX}, v{MX}, v{SS+8}")
    a(f"v_add_f32 v{LX}, v{LX}, v{SS+9}")
    xsum_g(a, LX, T1)
    a(f"v_rcp_f32 v{LX}, v{LX}")
    a("s_nop 0")
    a(f"v_mul_f32 v42, v{LX}, v{MX}")
    a(f"v_pk_mul_f32 {vr(SS+8,2)}, {vr(SS+8,2)}, {vr(LX,2)} op_sel_hi:[1,0]")
    for r in range(0, 8, 2): a(f"v_pk_mul_f32 {vr(SS+r,2)}, {vr(SS+r,2)}, v[42:43] op_sel_hi:[1,0]")
    a(f"v_cvt_pk_bf16_f32 v{PM0}, v{SS+8}, v{SS+9}")
    for i in range(4): a(f"v_cvt_pk_bf16_f32 v{PX+i}, v{SS+2*i}, v{SS+2*i+1}")
    oc = lambda i: (96 + 4 * i) if i < 4 else (48 + 4 * (i - 4))
    def pk(i2):
        b = oc(2 * i2)
        return [f"v_cvt_pk_bf16_f32 v{SS+4*(i2%2)+k}, v{b+2*k}, v{b+2*k+1}" for k in range(4)] + [f"ds_write_b128 {vOw}, {vr(SS+4*(i2%2),4)} offset:{1024*i2}"]
    for i in range(8):
        a(f"v_mfma_f32_16x16x16_bf16 {vr(oc(i),4)}, {vr(KMR+2*i,2)}, {vr(PM0,2)}, 0")
    for i in range(8):
        a(f"v_mfma_f32_16x16x32_bf16 {vr(oc(i),4)}, {vr(VX+4*i,4)}, {vr(PX,4)}, {vr(oc(i),4)}")
        if i in (3, 5, 7):
            for x in pk((i - 3) // 2): a(x)
    a("s_nop 3")
    for x in pk(3): a(x)
    a("s_waitcnt lgkmcnt(0)"); a("s_barrier")
    OF = 48
    for i in range(16): a(f"ds_read_b128 {vr(OF+4*i,4)}, {vL16} offset:{L_O+1024*i}")
    tstamp(a, opt, 3)
    jobs = [(cq, rt) for rt in range(2) for cq in range(2)]
    def epi(n):
        cq, rt = jobs[n]; ac = 112 + (n % 2) * 8; g = 128 + (n % 2) * 4
        return [f"v_cvt_pk_bf16_f32 v{g+i}, v{ac+2*i}, v{ac+2*i+1}" for i in range(4)] + [f"v_and_or_b32 v{g}, v{g}, -2, s{S_TAG}",
                f"buffer_store_dwordx4 {vr(g,4)}, {vP}, {WS}, s{(S_P1S, S_P1S2)[rt]} offen offset:{64*cq}{st}"]
    for n, (cq, rt) in enumerate(jobs):
        ac = 112 + (n % 2) * 8
        e = epi(n - 1) if n else []
        k = 0
        for ks in range(8):
            if n == 0: a(f"s_waitcnt lgkmcnt({15-ks})")
            if n == 2 and ks == 0: a("s_waitcnt lgkmcnt(0)")
            for u in range(2):
                d = vr(ac + 4 * u, 4)
                a(f"v_mfma_f32_16x16x32_bf16 {d}, {WoF(2*cq+u, ks)}, {vr(OF+4*(rt*8+ks),4)}, {d if ks else 0}")
                k += 1
                if k >= 2:
                    for x in e[2*(k-2):2*(k-1)]: a(x)
    a("s_nop 7")
    for x in epi(3): a(x)
    tstamp(a, opt, 4)
    if geti("t1", 3): a(f"s_sleep {geti('t1', 3)}")
    R = 48
    def ld():
        for i in range(4):
            a(f"buffer_load_dwordx4 {vr(R+4*i,4)}, {vL16}, {WS}, s{S_P1L} offen offset:{1024*i} sc1")
    def ck():
        for i in range(4):
            a(f"s_waitcnt vmcnt({3-i})")
            a(f"v_mfma_f32_16x16x32_bf16 v[112:115], {vr(SEL,4)}, {vr(R+4*i,4)}, {'v[112:115]' if i else 0}")
            a(f"v_xor_b32 v{T1 if i else T0}, s{S_TAG}, v{R+4*i}")
            if i: a(f"v_or_b32 v{T0}, v{T0}, v{T1}")
        a(f"v_and_b32 v{T0}, 1, v{T0}")
        a(f"v_cmp_ne_u32 vcc, 0, v{T0}")
        a(f"v_lshlrev_b32 v116, 16, v{XR}"); a(f"v_and_b32 v117, s{MASK}, v{XR}")
        a(f"s_lshl_b32 s48, s{S_W}, 3"); a("v_mov_b32 v43, s48")
    poll(a, pfx + "_r1", ld, ck, sleep=1)
    tstamp(a, opt, 5)
    rnd2(a, 112, 113, T0)
    a(f"v_mul_f32 v112, v{MC}, v112"); a(f"v_mul_f32 v113, v{MC+1}, v113")
    rnd2(a, 112, 113, T0)
    a("v_add_f32 v116, v116, v112"); a("v_add_f32 v117, v117, v113")
    rnd2(a, 116, 117, 118)
    a(f"s_lshl_b32 s49, s{S_SLOT}, 16"); a(f"s_add_u32 s50, s{S_H2O}, s49")
    a("v_readfirstlane_b32 s51, v116")
    a("s_nop 1")
    a("v_subrev_f32 v112, s51, v116"); a("v_subrev_f32 v113, s51, v117")
    a("v_add_f32 v120, v112, v113")
    a("v_mul_f32 v121, v112, v112"); a("v_fmac_f32 v121, v113, v113")
    for ror in (1, 2, 4, 8):
        a("s_nop 0")
        for r in (120, 121): a(f"v_add_f32_dpp v{r}, v{r}, v{r} row_ror:{ror} row_mask:0xf bank_mask:0xf")
    for sw in ("32", "16"):
        a("v_mov_b32 v122, v120"); a("v_mov_b32 v123, v121"); a("s_nop 0")
        a(f"v_permlane{sw}_swap_b32 v120, v122"); a(f"v_permlane{sw}_swap_b32 v121, v123")
        a("v_add_f32 v120, v120, v122"); a("v_add_f32 v121, v121, v123")
    a(f"v_mul_f32 v122, {f32bits(1/128)}, v120")
    a("v_fma_f32 v121, -v120, v122, v121")
    a("v_add_f32 v120, s51, v122")
    a(f"ds_write_b64 v43, v[120:121] offset:{L_ST}")
    a(WARM)
    a("s_waitcnt lgkmcnt(0)"); a("s_barrier")
    a(f"ds_read_b128 v[124:127], {vZero} offset:{L_ST}")
    a(f"ds_read_b128 v[128:131], {vZero} offset:{L_ST+16}")
    a(WARM)
    a("s_waitcnt lgkmcnt(0)")
    a("v_add_f32 v120, v124, v126"); a("v_add_f32 v121, v128, v130"); a("v_add_f32 v120, v120, v121")
    a("v_mul_f32 v120, 0.25, v120")
    a("v_add_f32 v122, v125, v127"); a("v_add_f32 v123, v129, v131"); a("v_add_f32 v122, v122, v123")
    for r in (124, 126, 128, 130): a(f"v_sub_f32 v{r}, v{r}, v120")
    a("v_mul_f32 v123, v124, v124")
    for r in (126, 128, 130): a(f"v_fmac_f32 v123, v{r}, v{r}")
    a(f"v_mul_f32 v122, {f32bits(1/512)}, v122")
    a("v_fmac_f32 v122, 0.25, v123")
    rnd1(a, 120); rnd1(a, 122)
    a(f"v_add_f32 v122, {f32bits(1e-5)}, v122"); rnd1(a, 122)
    a("v_sqrt_f32 v122, v122")
    a("v_sub_f32 v112, v116, v120"); a("v_sub_f32 v113, v117, v120")
    rnd1(a, 122)
    a("v_rcp_f32 v122, v122")
    rnd2(a, 112, 113, T0)
    a("v_mul_f32 v112, v112, v122"); a("v_mul_f32 v113, v113, v122")
    rnd2(a, 112, 113, T0)
    a(f"v_mul_f32 v112, v112, v{MC+2}"); a(f"v_mul_f32 v113, v113, v{MC+3}")
    rnd2(a, 112, 113, T0)
    a(f"v_add_f32 v112, v112, v{MC+4}"); a(f"v_add_f32 v113, v113, v{MC+5}")
    a(f"v_cvt_pk_bf16_f32 v{T0}, v112, v113")
    a(f"buffer_store_dword v{T0}, {vCol}, {WS}, s50 offen{st}")
    a(f"buffer_store_dword v118, {vCol}, {WS}, s50 offen offset:1024{st}")
    tstamp(a, opt, 6)
    a(f"s_lshl_b32 s48, s{S_PSLOT}, 16"); a(f"s_add_u32 s48, s{S_H2O}, s48")
    a("v_mov_b32 v42, -1"); a("v_mov_b32 v43, -1")
    a(f"buffer_store_dword v42, {vCol}, {WS}, s48 offen{st}")
    a(f"buffer_store_dword v42, {vCol}, {WS}, s48 offen offset:1024{st}")
    a(f"s_cmp_ge_u32 s{S_SEG}, {XS}")
    a(f"s_cselect_b32 s48, {NT + 2 if 'g2t' in opt else NT}, {NT}")
    a(f"s_add_u32 s{S_NXT}, s{S_SEG}, s48")
    a(f"s_cmp_ge_u32 s{S_H}, 28")
    a(f"s_cbranch_scc1 {pfx}_noffn")
    HR = 48
    a(f"s_add_u32 s50, s{S_H2B}, s49")
    def ld():
        for i in range(8):
            a(f"s_add_u32 s48, s50, {i*8192}")
            a(f"buffer_load_dwordx4 {vr(HR+4*i,4)}, {vHg}, {WS}, s48 offen sc1")
    def ck():
        for i in range(8):
            a(f"s_waitcnt vmcnt({7-i})")
            a(f"ds_write_b128 {vHw}, {vr(HR+4*i,4)} offset:{(i//4)*RTS + (i%4)*64}")
            if i: a(f"v_max_u32 v{T0}, v{T0 if i > 1 else HR}, v{HR+4*i}")
        a(f"v_cmp_eq_u32 vcc, -1, v{T0}")
    if geti("t2", 2): a(f"s_sleep {geti('t2', 2)}")
    poll(a, pfx + "_h2", ld, ck, sleep=2)
    tstamp(a, opt, 7)
    a("s_waitcnt lgkmcnt(0)"); a("s_barrier")
    HB = lambda rt, ks: 80 + ((ks % 4) * 2 + rt) * 4
    lq0 = LQ()
    def rd(lq, ks):
        for rt in range(2):
            a(f"ds_read_b128 {vr(HB(rt, ks),4)}, {vHr} offset:{rt*RTS + ks*FS}"); lq.issue(ks)
    for ks in range(3): rd(lq0, ks)
    prefetch(a, pfx + "_pf1", S_NXT, body=False)
    for withpf in (True, False):
        lq = LQ(); lq.q = list(lq0.q)
        pl = pf_list() if withpf else []
        for ks in range(16):
            a(lq.wait(ks))
            n = 0
            for rt in range(2):
                for m in range(2):
                    d = vr(112 + (rt * 2 + m) * 4, 4)
                    a(f"v_mfma_f32_16x16x32_bf16 {d}, {GF(m, ks)}, {vr(HB(rt, ks),4)}, {d if ks else 0}")
                    if n == 0 and ks + 3 < 16: rd(lq, ks + 3)
                    if n == 2 and pl:
                        for x in pl.pop(0): a(x)
                    n += 1
        if withpf:
            a(f"s_branch {pfx}_gud")
            a.label(pfx + "_pf1_skip")
    a.label(pfx + "_gud")
    a(f"s_lshl_b32 s48, s{S_SLOT}, 17"); a(f"s_add_u32 s48, s{S_ACTW}, s48"); a(f"s_add_u32 s50, s48, {56*1024}")
    a("s_nop 0")
    for rt in range(2):
        g0 = 112 + rt * 8; u0 = g0 + 4
        for j in (0, 2): rnd2(a, g0 + j, g0 + j + 1, T0)
        for j in (0, 2): rnd2(a, u0 + j, u0 + j + 1, T0)
        for j in range(4): a(f"v_mul_f32 v{g0+j}, v{g0+j}, v{u0+j}")
        a(f"v_cvt_pk_bf16_f32 v{128+2*rt}, v{g0}, v{g0+1}"); a(f"v_cvt_pk_bf16_f32 v{129+2*rt}, v{g0+2}, v{g0+3}")
        a(f"buffer_store_dwordx2 {vr(128+2*rt,2)}, {vL16}, {WS}, s{(48, 50)[rt]} offen{st}")
    a(f"s_lshl_b32 s48, s{S_PSLOT}, 17"); a(f"s_add_u32 s48, s{S_ACTW}, s48"); a(f"s_add_u32 s50, s48, {56*1024}")
    a(f"buffer_store_dwordx2 v[42:43], {vL16}, {WS}, s48 offen{st}")
    a(f"buffer_store_dwordx2 v[42:43], {vL16}, {WS}, s50 offen{st}")
    if geti("t3", 2): a(f"s_sleep {geti('t3', 2)}")
    a(f"s_branch {pfx}_E")
    a.label(pfx + "_noffn")
    prefetch(a, pfx + "_pf2", S_NXT)
    a("s_sleep 32")
    a.label(pfx + "_E")
    tstamp(a, opt, 8)
    AR = 48
    a(f"s_lshl_b32 s50, s{S_SLOT}, 17"); a(f"s_add_u32 s50, s{S_ACTR}, s50")
    a(f"s_lshl_b32 s49, s{S_SLOT}, 16"); a(f"s_add_u32 s49, s{S_X2R}, s49")
    def ld():
        a(f"buffer_load_dword v41, {vX2g}, {WS}, s49 offen sc1")
        for i in range(14):
            if i % 4 == 0: a(f"s_add_u32 s48, s50, {(i//4)*4096}")
            a(f"buffer_load_dwordx4 {vr(AR+4*i,4)}, {vL16}, {WS}, s48 offen offset:{1024*(i%4)} sc1")
    def ck():
        for i in range(14):
            a(f"s_waitcnt vmcnt({13-i})")
            for t in range(2):
                d = vr(112 + 4 * t, 4)
                a(f"v_mfma_f32_16x16x32_bf16 {d}, {DF(t, i)}, {vr(AR+4*i,4)}, {d if i else 0}")
            a(f"v_max3_u32 v{T0}, v{T0 if i else 41}, v{AR+4*i}, v{AR+4*i+2}")
        a(f"v_cmp_eq_u32 vcc, -1, v{T0}")
        a(f"v_lshlrev_b32 v124, 16, v41"); a(f"v_and_b32 v125, s{MASK}, v41")
    poll(a, pfx + "_act", ld, ck, sleep=2)
    tstamp(a, opt, 9)
    a("s_nop 2")
    a(f"ds_write_b128 {vEw}, v[112:115]"); a(f"ds_write_b128 {vEw}, v[116:119] offset:1024")
    a(WARM)
    a("s_waitcnt lgkmcnt(0)"); a("s_barrier")
    for w in range(4): a(f"ds_read_b64 {vr(112+2*w,2)}, {vEr} offset:{2048*w}")
    a(WARM)
    a("s_waitcnt lgkmcnt(0)")
    a("v_add_f32 v112, v112, v114"); a("v_add_f32 v113, v113, v115"); a("v_add_f32 v116, v116, v118"); a("v_add_f32 v117, v117, v119")
    a("v_add_f32 v112, v112, v116"); a("v_add_f32 v113, v113, v117")
    rnd2(a, 112, 113, T0)
    a(f"v_mul_f32 v112, v{MC+6}, v112"); a(f"v_mul_f32 v113, v{MC+7}, v113")
    rnd2(a, 112, 113, T0)
    a("v_add_f32 v112, v124, v112"); a("v_add_f32 v113, v125, v113")
    a(f"v_cvt_pk_bf16_f32 v{T0}, v112, v113")
    a(f"buffer_store_dword v{T0}, {vEo}, {sr(S_O,4)}, s{S_OUT} offen{' sc1' if 'osc1' in opt else (' nt' if 'ont' in opt else '')}")
    tstamp(a, opt, 10)
    a(f"s_mov_b32 s{S_SEG}, s{S_NXT}")
    seg_addrs(a)
    a(f"s_xor_b32 s{S_TAG}, s{S_TAG}, 1")
    a(f"s_mov_b32 s{S_PSLOT}, s{S_SLOT}")
    a(f"s_add_u32 s{S_SLOT}, s{S_SLOT}, 1")
    a(f"s_cmp_ge_u32 s{S_SLOT}, 3")
    a(f"s_cselect_b32 s{S_SLOT}, 0, s{S_SLOT}")
    a(f"s_cmp_lt_u32 s{S_SEG}, s{S_LIM}")
    a(f"s_cbranch_scc1 {pfx}_loop")
    a(f"s_branch {pfx}_fin")
    while DEFER: DEFER.pop(0)()
    a.label(pfx + "_fin")
    a("s_waitcnt vmcnt(0)")
    if "time" in opt: a("v_mov_b32 v143, v47")

def emit_post(a, opt):
    import mega, pre
    set_xs(opt)
    a(f"s_mov_b32 s{MASK}, 0xffff0000")
    emit_post_weights(a, opt)
    if "time" in opt: a("s_memrealtime s[84:85]")
    emit_post_final(a, opt)
    if "time" in opt: a("s_memrealtime s[86:87]")
    a(f"s_cmp_lg_u32 s{S_MODE}, 0")
    a("s_cbranch_scc1 T_slow")
    emit_post_loop(a, True, "TF", opt)
    a("s_branch L_done")
    a.label("T_slow")
    emit_post_loop(a, False, "TS", opt)
```

```python
from common import *
import math, struct

L_MEM = 0
L_K   = 8192
L_V   = 16384
L_QK  = 24576
L_OS  = 28672
L_SEL = 30720
L_JUNK= 31744
L_MISC= 32256
L_WO  = 32768

S_STEP = 16
S_PST = 17
S_PLD = 19
S_MRD, S_MWR, S_MPO = 22, 23, 24
S_KX, S_VX, S_KVM = 25, 26, 27
S_TAG, S_PMAX, S_PC = 28, 29, 30
S_SC = 31
S_PTR = 32
S_T0, S_T1, S_T2, S_T3 = 48, 49, 50, 51
S_OWN = 52
S_WOB = 53
S_WOL = 54
S_STAMP = 60

vFl = "v0"
vL16w, vL16, vXw, vXr, vOw, vWo, vPs, vMp, vIdx = ["v%d" % i for i in range(1, 10)]
vPl = vL16
vZ = "v[10:11]"
vT0, vT1 = "v12", "v13"
vFx = ["v28", "v29", "v30"]
SX0, SX1, SM = 16, 20, 24
vM = "v31"
FA, FB = 32, 120
F = [32 + 4 * i for i in range(8)]
ACC = {("q", 0): 64, ("q", 1): 68, ("k", 0): 72, ("k", 1): 76, ("v", 0): 80, ("v", 1): 84}
QF = [88 + 4 * i for i in range(4)]
KF = [104 + 4 * i for i in range(4)]
KXR = {(0, 0): 32, (1, 0): 24, (0, 1): 104, (1, 1): 108, (0, 2): 112, (1, 2): 116, (0, 3): 120, (1, 3): 124}
VX = [64, 72]
MI = {"q": 0, "k": 1, "v": 2}

def wreg(m, t, sig, off=0, n=8):
    idx = ((MI[m] * 2 + t) * 8 + sig) * 8 + off
    if idx < 256: return ar(idx, n)
    return vr(128 + idx - 256, n)

def smf(m, t, sig, own=FA):
    f = own + 4 * sig if sig < 2 else F[sig]
    return f"v_smfmac_f32_16x16x64_bf16 {vr(ACC[(m,t)],4)}, {vr(f,4)}, {wreg(m,t,sig)}, {vIdx}"

S_HAVE, S_FLG, S_KVC = 55, 56, 26
S_SC2, S_OM = 58, 46
def emit_rec_init(a, sh, ptr):
    LE = lambda *x, **k: lane_expr(a, *x, tmp="v31", **k)
    WS = sr(S_WS, 4)
    srd(a, S_T, ptr, 8192)
    LE("v16", "v0", [(5, 1, 10), (4, 1, 6), (0, 2, 1)])
    sexpr(a, 48, [(sh, 1, 2, 11), (sh, 3, 2, 8), (S_W, 1, 1, 7), (sh, 0, 1, 4), (S_W, 0, 1, 3)])
    a(f"buffer_load_ushort v17, v16, {sr(S_T,4)}, s48 offen")
    a(f"buffer_load_ushort v18, v16, {sr(S_T,4)}, s48 offen offset:32")
    LE("v20", "v0", [(0, 6, 4)])
    LE("v21", "v0", [(5, 1, 5), (0, 2, 3), (4, 1, 2), (2, 2, 30)])
    for i in range(4): a(f"v_mov_b32 v{24+i}, 0")
    a("v_mov_b32 v19, -1")
    sexpr(a, 48, [(sh, 0, 5, 13), (S_W, 0, 2, 11)], WS_PART)
    a(f"buffer_store_dwordx4 v[24:27], v20, {WS}, s48 offen sc1")
    a(f"buffer_store_dwordx4 v[24:27], v20, {WS}, s48 offen offset:1024 sc1")
    sexpr(a, 50, [(sh, 3, 2, 11), (S_W, 1, 1, 10), (sh, 0, 1, 9), (S_W, 0, 1, 8), (sh, 1, 2, 6)], WS_MEM)
    for sl in (1, 2):
        a(f"s_add_u32 s48, s50, {8192*sl}")
        a(f"buffer_store_dword v19, v21, {WS}, s48 offen sc1")
    a("s_waitcnt vmcnt(4)")
    a("v_lshl_or_b32 v17, v18, 16, v17")
    a(f"buffer_store_dword v17, v21, {WS}, s50 offen sc1")

def emit_rec_setup(a, pfx="R", own_init=True, opt=(), inline=None):
    st = " sc1"
    LE = lambda *x, **k: lane_expr(a, *x, tmp="v31", **k)
    a.c("==== recurrence role: s14 = head, s15 = wave ====")
    q = VmQ(a)
    if own_init:
        emit_rec_init(a, S_H, S_PTR + 2)
        a("s_waitcnt vmcnt(0)")
        dbg_arrive(a, D_RTB)
        a("s_waitcnt vmcnt(0)")

    D = [32, 33]
    E = [36, 37, 38, 39]
    LE("v28", "v0", [(4, 2, 5)])
    LE("v29", "v0", [(0, 4, 4)])
    a("v_xor_b32 v28, v28, v29")
    LE("v30", "v0", [(4, 2, 13)])
    a(f"v_add_u32 v{D[0]}, v28, v30")
    a(f"v_xor_b32 v{D[1]}, 128, v{D[0]}")
    sexpr(a, S_T2, [(S_H, 0, 5, 8), (S_W, 0, 2, 18)])
    sexpr(a, S_T3, [(S_W, 0, 2, 13)], L_WO)

    def dma_chunk(a, q, n):
        m, ch = divmod(n, 4)
        if ch == 0:
            srd(a, S_T, S_PTR + 4 + 2 * m, 4194304)
        for i in range(8):
            a(f"s_add_u32 m0, s{S_T3}, {ch * 32768 + i * 1024}")
            if m < 3:
                a(f"s_add_u32 s{S_T0}, s{S_T2}, {hex((128 * ch + 4 * i) * 8192)}")
                a(f"buffer_load_dwordx4 v{D[(i >> 2) & 1]}, {sr(S_T,4)}, s{S_T0} offen lds")
            else:
                a(f"s_add_u32 s{S_T0}, s{S_WOB}, {hex(4 * i * 1024 + ch * 256)}")
                a(f"buffer_load_dwordx4 v{E[(i & 1) + 2 * ((i >> 2) & 1)]}, {sr(S_T,4)}, s{S_T0} offen lds")
        q.issue(("d", n), 8)

    if "time" in opt: a("s_memrealtime s[76:77]")
    srd(a, S_T, S_PTR + 4, 4194304)
    a(f"s_mov_b32 m0, s{S_T3}"); a(f"s_mov_b32 s{S_T0}, s{S_T2}")
    a("s_movk_i32 s16, 0x400"); a("s_mov_b32 s17, 0x8000"); a("s_mov_b32 s18, 4")
    a.label(pfx + "_d0")
    for i in range(8):
        a(f"buffer_load_dwordx4 v{D[(i >> 2) & 1]}, {sr(S_T,4)}, s{S_T0} offen lds")
        a("s_add_u32 m0, m0, s16"); a(f"s_add_u32 s{S_T0}, s{S_T0}, s17")
    a(f"s_add_u32 m0, m0, {32768 - 8192}"); a(f"s_add_u32 s{S_T0}, s{S_T0}, {hex(96 * 8192)}")
    a("s_sub_u32 s18, s18, 1"); a("s_cmp_lg_u32 s18, 0"); a(f"s_cbranch_scc1 {pfx}_d0")
    for n in range(4): q.issue(("d", n), 8)
    if inline:
        a(f"s_branch {pfx}_cont")
        inline()
        a.label(pfx + "_cont")
    sexpr(a, S_WOB, [(S_H, 0, 5, 17), (S_W, 0, 2, 15)])
    LE(vL16w, "v0", [(0, 6, 4), (6, 2, 11)])
    LE(vL16, "v0", [(0, 6, 4)])
    LE(vXw, "v0", [(6, 2, 10), (0, 4, 5), (4, 2, 3)], L_QK)
    LE("v16", "v0", [(2, 2, 3)])
    a(f"v_xor_b32 {vXw}, {vXw}, v16")
    LE(vXr, "v0", [(0, 6, 3)], L_QK)
    LE("v16", "v0", [(4, 2, 3)])
    a(f"v_xor_b32 {vXr}, {vXr}, v16")
    LE(vOw, "v0", [(6, 2, 9), (5, 1, 8), (2, 2, 6), (0, 1, 5), (4, 1, 4)], L_OS)
    LE("v16", "v0", [(5, 1, 8), (2, 2, 6), (0, 1, 5), (4, 1, 4)], L_JUNK)
    a("v_and_b32 v17, 2, v0")
    a("v_cmp_ne_u32 vcc, 0, v17")
    a("s_nop 1")
    a(f"v_cndmask_b32 {vOw}, {vOw}, v16, vcc")
    for r in (10, 11, 14, 15): a(f"v_mov_b32 v{r}, 0")
    LE(vWo, "v0", [(6, 2, 15), (0, 6, 4)], L_WO)
    LE(vPs, "v0", [(4, 2, 14), (3, 1, 13), (2, 1, 11), (0, 2, 4)])
    LE(vMp, "v0", [(5, 1, 5), (0, 2, 3), (4, 1, 2), (2, 2, 30)])
    a(f"v_and_b32 v16, 1, v0")
    a(f"v_mul_u32_u24 {vIdx}, 0xaaaa, v16")
    a(f"v_add_u32 {vIdx}, 0x4444, {vIdx}")
    a("v_and_b32 v16, 3, v0")
    a("v_bfe_u32 v17, v0, 2, 2")
    a("v_mov_b32 v18, 0x3f80")
    a("v_mov_b32 v19, 0x3f800000")
    a("v_cmp_eq_u32 vcc, 1, v16")
    a("s_nop 1")
    a("v_cndmask_b32 v18, v18, v19, vcc")
    a("v_cmp_gt_u32 vcc, 2, v16")
    a("s_nop 1")
    a("v_cndmask_b32 v18, 0, v18, vcc")
    for d in range(4):
        a(f"v_cmp_eq_u32 vcc, {d}, v17")
        a("s_nop 1")
        a(f"v_cndmask_b32 v{20+d}, 0, v18, vcc")
    a(f"ds_write_b128 {vL16}, v[20:23] offset:{L_SEL}")
    for tau in range(2):
        sexpr(a, S_PST + tau, [(S_W, 0, 2, 16), (S_H, 0, 5, 6)], WS_PART + tau * 4096)
    sexpr(a, S_PLD, [(S_H, 0, 5, 13), (S_W, 0, 2, 11)], WS_PART)
    sexpr(a, S_OWN, [(S_H, 3, 2, 11), (S_W, 1, 1, 10), (S_H, 0, 1, 9), (S_W, 0, 1, 8), (S_H, 1, 2, 6)])
    a(f"s_mov_b32 s{S_MRD}, {hex(WS_MEM)}")
    a(f"s_add_u32 s{S_MPO}, s{S_OWN}, {hex(WS_MEM)}")
    a(f"s_add_u32 s{S_MWR}, s{S_OWN}, {hex(WS_MEM + 8192)}")
    a(f"s_mul_i32 s{S_T0}, s{S_H}, {HSTR}")
    sexpr(a, S_KX, [(S_W, 0, 2, 12)], WS_KV)
    a(f"s_add_u32 s{S_KX}, s{S_KX}, s{S_T0}")
    a(f"s_mul_i32 s{S_T0}, s{S_H}, {MSTR}")
    sexpr(a, S_KVM, [(S_W, 0, 2, 10)], WS_KM)
    a(f"s_add_u32 s{S_KVM}, s{S_KVM}, s{S_T0}")
    a(f"s_mov_b32 s{S_STEP}, 0")
    a(f"s_mov_b32 s{S_TAG}, 1")
    a(f"s_mov_b32 s{S_PMAX}, 100000")
    sc = (128 ** -0.5) * math.log2(math.e)
    a(f"s_mov_b32 s{S_SC}, {hex(struct.unpack('<I', struct.pack('<f', sc))[0])}")

    a(f"s_mov_b32 s{S_SC2}, s{S_SC}"); a(f"s_mov_b32 s{S_SC2+1}, s{S_SC}")
    a(f"s_mov_b32 s{S_OM}, 0x33333333"); a(f"s_mov_b32 s{S_OM+1}, 0x33333333")
    LE("v28", "v0", [(4, 1, 5)])
    LE("v29", "v0", [(0, 4, 4)])
    a("v_xor_b32 v28, v28, v29")
    LE("v30", "v0", [(4, 2, 10)])
    a(f"v_add_u32 v{E[0]}, v28, v30")
    a(f"v_xor_b32 v{E[1]}, 64, v{E[0]}")
    a(f"v_xor_b32 v{E[2]}, 128, v{E[0]}")
    a(f"v_xor_b32 v{E[3]}, 192, v{E[0]}")
    TR = [40, 41]
    LE("v28", "v0", [(2, 1, 12), (5, 1, 10), (3, 1, 9), (4, 1, 8), (0, 1, 3)])
    LE("v29", "v0", [(6, 2, 6), (1, 1, 4)])
    LE("v30", "v0", [(4, 1, 5), (3, 1, 6), (2, 1, 7)])
    a("v_xor_b32 v29, v29, v30")
    a(f"v_add_u32 v{TR[0]}, v28, v29")
    a(f"v_xor_b32 v{TR[1]}, 32, v{TR[0]}")

    done = pfx + "_wdone"
    for w in range(4):
        if w < 3:
            a(f"s_cmp_lg_u32 s{S_W}, {w}")
            a(f"s_cbranch_scc1 {pfx}_wl{w+1}")
        qq = q.clone()
        for n in range(13):
            if n < 12:
                qq.wait(("d", n))
            a("s_barrier")
            if "time" in opt and n in (0, 4, 8): a(f"s_memrealtime s[{78+n//2}:{79+n//2}]")
            if 0 < n and n + 3 < 16: dma_chunk(a, qq, n + 3)
            if not own_init and n == max([int(o[2:]) for o in opt if o.startswith("cn")] + [0] or [0]) + 6 and w == 0:
                claim(a)
            if not own_init and n == 11:
                a(f"v_lshrrev_b32 v122, 2, {vL16}")
            if not own_init and n == 12 and w == 0:
                a(f"s_mov_b32 exec_lo, 1"); a(f"s_mov_b32 exec_hi, {1 << (D_LN1 - 32)}")
                a(f"global_load_dword v123, v122, {sr(S_DBG,2)} sc1")
                a("s_mov_b64 exec, -1")
                a("s_waitcnt vmcnt(0)")
                a(f"ds_write_b32 v122, v123 offset:{L_JUNK}")
                a("s_waitcnt lgkmcnt(0)")
            if n == 12: break
            m, ch = divmod(n, 4)
            mn = "qkv"[m]
            a(f"v_add_u32 v26, {L_WO + ch * 32768}, v{TR[0]}")
            a(f"v_add_u32 v27, {L_WO + ch * 32768}, v{TR[1]}")
            for k2 in range(2):
                sig = (2 * ch + k2) ^ (2 * w)
                for t in range(2):
                    for p in range(4):
                        off = (64 * k2 + 32 * (p % 2) + 8 * (p // 2)) * 256
                        a(f"ds_read_b64_tr_b16 {wreg(mn, t, sig, 2 * p, 2)}, v{26+t} offset:{off}")
            a("s_waitcnt lgkmcnt(0)")
        if w < 3:
            a(f"s_branch {done}")
            a.label(f"{pfx}_wl{w+1}")
    a.label(done)
    LE("v24", "v0", [(4, 1, 12), (5, 1, 11), (3, 1, 10), (2, 1, 8), (6, 2, 15), (1, 1, 4), (0, 1, 3),
                     (2, 1, 5), (3, 1, 6), (4, 1, 7)], L_WO)
    a("s_waitcnt vmcnt(0)")
    if not own_init:
        sexpr(a, S_FLG, [(S_H, 0, 5, 7)], WS_FLAG)
    a("s_barrier")
    if not own_init:
        a(f"buffer_load_dword v119, {vMp}, {sr(S_WS,4)}, s{S_FLG} offen sc1")
        a(f"ds_read_b32 v123, v122 offset:{L_JUNK}")
        if "cp2" in opt:
            a("s_getpc_b64 s[50:51]")
            a.label("R_pcref")
            a("s_add_u32 s50, s50, R_fast - R_pcref")
            a("s_addc_u32 s51, s51, 0")
            a(f"v_lshlrev_b32 v120, 3, {vL16}")
            a("global_load_dword v121, v120, s[50:51]")
    for ks in range(2):
        for tau in range(2):
            for b in range(4):
                a(f"v_xor_b32 v25, {128 * tau + 32 * b}, v24")
                base = 32 + (tau * 4 + b) * 8
                for p in range(4):
                    off = (64 * ks + 32 * (p // 2) + 2 * (p % 2)) * 256
                    a(f"ds_read_b64_tr_b16 {vr(base + 2 * p, 2)}, v25 offset:{off}")
        a("s_waitcnt lgkmcnt(0)")
        for i in range(16):
            a(f"ds_write_b128 {vWo}, {vr(32 + 4 * i, 4)} offset:{ks * 16384 + i * 1024}")
        a("s_waitcnt lgkmcnt(0)")
    if own_init: dbg_wait(a, D_RTB, 128, sleep=8)
    else: verify_claim(a, 2 if 'cp2' in opt else 1, L_MISC)

def kv_wait(a, need_sreg_or_imm, tag):
    l = a.uid(tag)
    need = need_sreg_or_imm
    a(f"s_cmp_ge_u32 s{S_HAVE}, {need}")
    a(f"s_cbranch_scc1 {l}_ok")
    a(f"s_mov_b32 s{S_PC}, 0")
    a.label(l)
    a(f"buffer_load_dword v119, {vMp}, {sr(S_WS,4)}, s{S_FLG} offen sc1")
    a("s_waitcnt vmcnt(0)")
    a(f"v_readlane_b32 s{S_HAVE}, v119, 0")
    a(f"v_readlane_b32 s{S_T0}, v119, 2")
    a("s_nop 1")
    a(f"s_min_u32 s{S_HAVE}, s{S_HAVE}, s{S_T0}")
    a(f"s_cmp_ge_u32 s{S_HAVE}, {need}")
    a(f"s_cbranch_scc1 {l}_ok")
    a("s_sleep 2")
    a(f"s_add_u32 s{S_PC}, s{S_PC}, 1")
    a(f"s_cmp_lt_u32 s{S_PC}, s{S_PMAX}")
    a(f"s_cbranch_scc1 {l}")
    a(f"s_mov_b32 s{S_PMAX}, 1")
    a.label(l + "_ok")

def emit_rec_mega(a, opt, inline=None):
    import mega
    a(f"s_load_dwordx16 {sr(S_PTR,16)}, s[0:1], 0")
    a("s_waitcnt lgkmcnt(0)")
    emit_rec_setup(a, own_init=False, opt=opt, inline=inline)
    if "time" in opt: a("s_memrealtime s[84:85]")
    a(f"v_readlane_b32 s{S_T2}, v123, {D_LN1}")
    a(f"v_readlane_b32 s{S_T3}, v123, 0")
    a("s_waitcnt vmcnt(0)")
    a(f"v_readlane_b32 s{S_HAVE}, v119, 0")
    a(f"v_readlane_b32 s{S_T0}, v119, 2")
    a("s_nop 1")
    a(f"s_min_u32 s{S_HAVE}, s{S_HAVE}, s{S_T0}")
    a(f"s_mov_b32 s57, s{S_T3}")
    a(f"s_cmp_ge_u32 s{S_T2}, {N_LN1}")
    a("s_cbranch_scc1 R_lnok")
    a(f"s_mov_b32 s{S_HAVE}, 0")
    a(f"s_mov_b32 s{S_PC}, 0")
    a.label("R_lnw")
    a(f"global_load_dword v123, v122, {sr(S_DBG,2)} sc1")
    a("s_waitcnt vmcnt(0)")
    a(f"v_readlane_b32 s{S_T2}, v123, {D_LN1}")
    a("s_nop 1")
    a(f"s_cmp_ge_u32 s{S_T2}, {N_LN1}")
    a("s_cbranch_scc1 R_lnok")
    a("s_sleep 32")
    a(f"s_add_u32 s{S_PC}, s{S_PC}, 1")
    a(f"s_cmp_lt_u32 s{S_PC}, s{S_PMAX}")
    a("s_cbranch_scc1 R_lnw")
    a.label("R_lnok")
    kv_wait(a, 2, "kvw")
    if "time" in opt: a("s_memrealtime s[86:87]")
    if "fakexcc" not in opt and "slow" not in opt:
        a("s_cmp_eq_u32 s57, -1")
        a("s_cbranch_scc1 R_fast")
    mega.emit_mode(a, opt, "R_slow")
    a.label("R_fast")
    ropt = list(opt) + ["mega", "oexec", "f1s", "ge5", "ga2", "gb4", "c112", "b15", "de5", "dl5", "db4", "dc2", "o01"]
    emit_rec(a, fast=True, pfx="RF", opt=ropt)
    a("s_branch L_done")
    a.label("R_slow")
    emit_rec(a, fast=False, pfx="RS", opt=ropt)

def emit_rec(a, fast=True, stamps=False, nsteps=64, pfx="R", warm=True, opt=()):
    st = "" if fast else " sc1"
    def geti(p, d):
        for o in opt:
            if o.startswith(p) and o[len(p):].isdigit(): return int(o[len(p):])
        return d
    nst = [0]
    tr0 = geti("tr", -1)
    slotno = [0]
    def stamp(force=False):
        if stamps and (tr0 < 0 or force):
            a(f"s_memtime {sr(S_STAMP + 2 * nst[0], 2)}"); nst[0] += 1
    if "mega" not in opt: emit_rec_setup(a, pfx)

    lq = LQ()
    rms = [o[3:] for o in opt if o.startswith("rm:")]
    def emit(x):
        txt = x if isinstance(x, str) else x[0]
        if isinstance(x, str) and any(r in txt for r in rms): return
        if x == "STAMP": stamp()
        elif isinstance(x, tuple):
            if x[0] == "w":
                wt = lq.wait(x[1])
                if isinstance(x[1], tuple) and x[1][0] == "Fw": assert wt.endswith("(0)")
                a(wt)
            elif x[0] == "L": a.label(x[1])
            else:
                a(x[0]); lq.issue(x[1])
        else: a(x)
    def run(seq, count=True):
        for m, fill in seq:
            if m: a(m)
            if tr0 >= 0 and count and tr0 <= slotno[0] + 12 < tr0 + geti("tn", 13): stamp(True)
            if count: slotno[0] += 1
            for f in fill: emit(f)

    kvd = [f"buffer_load_dwordx4 {vL16}, {sr(S_WS,4)}, s{S_KX} offen offset:{1024*i} sc1 lds" for i in range(4)] + [f"s_add_u32 s{S_KX}, s{S_KX}, 16384"]
    zero16 = lambda r: f"v_mfma_f32_32x32x8_bf16 {vr(r,16)}, {vZ}, {vZ}, 0"
    zero4 = lambda r: f"v_mfma_f32_16x16x16_bf16 {vr(r,4)}, {vZ}, {vZ}, 0"
    def gather(sig):
        return f"buffer_load_dwordx4 {vr(F[sig],4)}, {vL16w}, {sr(S_WS,4)}, s{S_MRD} offen offset:{1024*sig} sc1"
    def fx():
        for i in range(3): a(f"v_xor_b32 {vFx[i]}, {2048 * (i + 1)}, {vL16w}")
    S_MK, S_MV = S_T2, S_T3
    sexpr(a, S_MK, [(S_W, 0, 2, 11)], L_K)
    sexpr(a, S_MV, [(S_W, 0, 2, 11)], L_V - 2048)
    mk, mv = f"s_mov_b32 m0, s{S_MK}", f"s_mov_b32 m0, s{S_MV}"
    for x in [mk, "s_nop 0"] + kvd[:2] + [mv, "s_nop 0"] + kvd[2:] + [mk]: a(x)
    a(f"s_sub_u32 s{S_KVM}, s{S_KVM}, 4096")
    a(f"s_add_u32 s{S_T0}, s{S_KVM}, {65*4096}")
    a(f"s_mov_b32 s{S_KVC}, s{S_T0}")
    if "nokv" in opt: kvd = ["s_nop 0"] * 5
    a(zero16(64)); a(zero16(80))
    fx()
    a(f"s_mov_b32 s{S_PC}, 0")
    if stamps or "nost" in opt or "time" in opt:
        a("s_memrealtime s[96:97]"); a("s_memtime s[98:99]")
    if "rstat" in opt:
        for r in range(60, 64): a(f"s_mov_b32 s{r}, 0")
    for sl in (1, 2):
        a(f"s_add_u32 s{S_T0}, s{S_MRD}, {8192*sl}")
        for n in range(2): a(f"buffer_load_dwordx4 v[96:99], {vL16w}, {sr(S_WS,4)}, s{S_T0} offen offset:{1024*n} sc1")
    for n in range(2): a(f"buffer_load_dwordx4 v[96:99], {vPl}, {sr(S_WS,4)}, s{S_PLD} offen offset:{1024*n} sc1")
    a(gather(1))
    a(gather(0)); a(gather(0))
    if "f1s" not in opt: a(gather(1))

    rdF = lambda sig: (f"ds_read_b128 {vr(F[sig],4)}, {vFx[sig//2-1]} offset:{L_MEM + (sig%2)*1024}", ("F", sig))
    rdKX = lambda t, ks: (f"ds_read_b128 {vr(KXR[(t,ks)],4)}, {vL16} offset:{L_K + (t*4+ks)*1024}", "KX")
    trQ = lambda ks, u: (f"ds_read_b64_tr_b16 {vr(QF[ks]+2*u,2)}, {vXr} offset:{1024*ks+512*u}", ("Q", ks))
    trK = lambda ks, u: (f"ds_read_b64_tr_b16 {vr(KF[ks]+2*u,2)}, {vXr} offset:{1024*ks+512*u}", ("K", ks))
    rdV = lambda t: (f"ds_read_b128 {vr(VX[t],4)}, {vL16w} offset:{L_V + t*1024}", "V")
    def sx(t, ks):
        d = vr([SX0, SX1][t], 4)
        return f"v_mfma_f32_16x16x32_bf16 {d}, {vr(KXR[(t,ks)],4)}, {vr(QF[ks],4)}, {d if ks else 0}"
    def sm(ks):
        d = vr(SM, 4)
        return f"v_mfma_f32_16x16x32_bf16 {d}, {vr(QF[ks],4)}, {vr(QF[ks],4)}, {d if ks else 0}"
    kvm = [f"buffer_store_dwordx4 v[12:15], {vL16}, {sr(S_WS,4)}, s{S_KVC} offen sc1", f"s_add_u32 s{S_KVM}, s{S_KVM}, 4096", f"s_mov_b32 s{S_KVC}, s{S_KVM}"]
    if "nokvm" in opt: kvm[0] = "s_nop 0"

    nc = "nocomm" in opt
    def chk(sig):
        f = F[sig]
        return [f"v_max3_u32 v16, v{f}, v{f+1}, v{f+2}", f"v_max_u32 v16, v16, v{f+3}", f"v_cmp_eq_u32 vcc, -1, v16"]
    wrF = lambda sig: (f"ds_write_b128 {vL16w}, {vr(F[sig],4)} offset:{L_MEM + 1024*sig}", ("Fw", sig))
    def gfail(sig, first_wait, redo):
        a.label(f"{pfx}_gf{sig}")
        a(f"s_waitcnt vmcnt({first_wait})")
        a.label(f"{pfx}_gr{sig}")
        if "rstat" in opt: a(f"s_add_u32 s{61+sig}, s{61+sig}, 1")
        for x in chk(sig): a(x)
        a(f"s_add_u32 s{S_PC}, s{S_PC}, 1")
        a(f"s_cbranch_vccz {pfx}_gx{sig}")
        a(gather(sig))
        a(f"s_cmp_lt_u32 s{S_PC}, s{S_PMAX}")
        a("s_waitcnt vmcnt(0)")
        a(f"s_cbranch_scc1 {pfx}_gr{sig}")
        a(f"s_mov_b32 s{S_PMAX}, 1")
        a.label(f"{pfx}_gx{sig}")
        a(wrF(sig)[0])
        for x in redo: a(x)
        a(f"s_branch {pfx}_gok{sig}")

    dirl = "dirl" in opt
    def gatherx(sig):
        va = vL16w if sig < 2 else vFx[sig // 2 - 1]
        return f"buffer_load_dwordx4 {vr(F[sig],4)}, {va}, {sr(S_WS,4)}, s{S_MRD} offen offset:{1024*(sig%2)} sc1"
    def chkx(sigs):
        if len(sigs) == 1: return [f"v_cmp_eq_u32 vcc, -1, v{F[sigs[0]]}"]
        return [f"v_max3_u32 v16, v{F[sigs[0]]}, v{F[sigs[1]]}, v{F[sigs[2]]}", "v_cmp_eq_u32 vcc, -1, v16"]
    def gfailx(nm, sigs):
        a.label(f"{pfx}_gf{nm}")
        if "rstat" in opt: a("s_add_u32 s62, s62, 1")
        for sg in sigs: a(gatherx(sg))
        a(f"s_add_u32 s{S_PC}, s{S_PC}, 1")
        a("s_waitcnt vmcnt(0)")
        for x in chkx(sigs): a(x)
        a(f"s_cbranch_vccz {pfx}_gok{nm}")
        a(f"s_cmp_lt_u32 s{S_PC}, s{S_PMAX}")
        a(f"s_cbranch_scc1 {pfx}_gf{nm}")
        a(f"s_mov_b32 s{S_PMAX}, 1")
        a(f"s_branch {pfx}_gok{nm}")
    a(f"s_branch {pfx}_gA")
    gfail(0, 0 if "f1s" in opt else 1, [zero4(64), "s_nop 5", smf("q", 0, 0)])
    if dirl:
        gfailx("a", [1]); gfailx("b", [3, 5, 7])
    else: gfail(1, 0, [])
    a.raw(".p2align 6")
    a.label(f"{pfx}_gA")
    if not nc: a(f"s_waitcnt vmcnt({1 if 'f1s' in opt else 2})")
    for x in chk(0)[:2]: a(x)
    emit(wrF(0))
    a(chk(0)[2])
    a(smf("q", 0, 0))
    if not nc: a(f"s_cbranch_vccnz {pfx}_gf0")
    a.label(f"{pfx}_gok0")
    if stamps:
        a(f"s_memtime {sr(S_STAMP, 2)}")
        a(f"s_mov_b32 s{S_STAMP+29}, s{S_PC}")
    nst[0] = 1
    kx = {k: rdKX(*k) for k in KXR}
    WB = [40, 48, 56, 32, 104, 112, 120, 96, 24]
    def rdWo(k, buf, half):
        T, ks = divmod(k, 2)
        return (f"ds_read_b128 {vr(buf + 4*half, 4)}, {vWo} offset:{ks*16384 + T*2048 + half*1024}", ("W", k))
    W = [rdWo(k, WB[k], h) for k in range(9) for h in range(2)]
    def post(acc, dst):
        return [f"v_add_f32 v{acc}, v{acc}, v{acc+1}", f"v_add_f32 v{acc+2}, v{acc+2}, v{acc+3}", f"v_cvt_pk_bf16_f32 v{dst}, v{acc}, v{acc+2}"]
    one = [f"v_mov_b32 v{28+i}, 0x3f803f80" for i in range(4)]
    pq0, pk0, pq1, pk1 = post(64, 12), post(72, 13), post(68, 14), post(76, 15)
    pv0, pv1 = post(80, 12), post(84, 14)
    tr = [trQ(ks, u) for ks in range(4) for u in range(2)]
    QK = (("q", 0), ("k", 0), ("q", 1), ("k", 1))
    ms = [smf("k", 0, 0), smf("q", 1, 0), smf("k", 1, 0), smf("v", 0, 0), smf("v", 1, 0)]
    ms += [smf(m, t, sg) for sg in (2, 4, 6, 1) for m, t in QK]
    ms += [smf(m, t, sg) for m, t in QK for sg in (3, 5, 7)]
    ms += [smf("v", t, sg) for sg in (1, 2, 3, 4, 5, 6, 7) for t in range(2)]
    ms += [sx(0, 0), sx(1, 0), sm(0), sx(0, 1), sx(1, 1), sm(1), sx(0, 2), sx(0, 3), sx(1, 2), sx(1, 3), sm(2), sm(3)]
    fl = {k: [] for k in range(1, 60)}
    hb = geti("hb", 4); c1 = geti("c1", 10); b1 = geti("b1", 6)
    f1s = "f1s" in opt
    if dirl:
        gx = (lambda sg: [gatherx(sg)]) if not nc else (lambda sg: [])
        fl[1] = gx(1); fl[2] = gx(3)
        fl[hb] += [("w", ("Fw", 0)), "s_barrier", rdF(2)]
        fl[5] += [rdF(4), rdF(6), zero4(20)] + gx(5) + [zero4(20)] + gx(7) + [("w", ("F", 2)), "STAMP"]
        rest = [kx[(0, 1)], kx[(1, 1)], kx[(0, 2)], kx[(1, 2)], kx[(0, 3)], kx[(1, 3)], kx[(1, 0)]]
        for n, x in enumerate(rest): fl[6 + n] += [x]
        fl[9] += [("w", ("F", 6))]
        fl[13] += (["s_waitcnt vmcnt(4)"] if not nc else []) + [kx[(0, 0)]]
        fl[14] += [one[3]]
        fl[15] += (["s_waitcnt vmcnt(3)"] if not nc else []) + chkx([1])
        fl[16] += ([f"s_cbranch_vccnz {pfx}_gfa"] if not nc else []) + [("L", f"{pfx}_goka")]
        fl[17] += [("w", "KX"), "s_barrier"]
        fl[19] += (["s_waitcnt vmcnt(0)"] if not nc else []) + chkx([3, 5, 7])[:1]
        fl[20] += chkx([3, 5, 7])[1:]
        fl[21] += ([f"s_cbranch_vccnz {pfx}_gfb"] if not nc else []) + [("L", f"{pfx}_gokb")]
        if not stamps: fl[21] += [f"s_cmp_eq_u32 s{S_STEP}, {nsteps-1}", f"s_cbranch_scc1 {pfx}_last"]
        x0 = 20
        last_ms = [m for m in ms[x0 + 1:47] if "v[64:67]" not in m.split(",")[0] and "v[68:71]" not in m.split(",")[0]]
        fl[22] += [kvd[0]]
        fl[23] += [one[0]]
        fl[39] += [one[1]]
    else:
        fl[geti("f1", 1)] = [gather(1)] if not nc else []
        fl[hb] += [("w", ("Fw", 0)), "s_barrier", rdF(2)]
        fl[5] += [rdF(4), rdF(6), zero4(20), kx[(0, 1)], kx[(1, 1)], zero4(20), ("w", ("F", 2)), "STAMP"]
        rest = [kx[(0, 2)], kx[(1, 2)], kx[(0, 3)], kx[(1, 3)], kx[(1, 0)], kx[(0, 0)]]
        for sl in range(6, c1):
            if len(rest) > 1: fl[sl] += [rest.pop(0)]
        fl[9] += [("w", ("F", 6))]
        if f1s:
            fl[c1] += (["s_waitcnt vmcnt(0)"] if not nc else []) + [wrF(1)]
            fl[c1 + 1] += [f"v_cmp_eq_u32 vcc, -1, v{F[1]}"]
            fl[c1 + 2] += ([f"s_cbranch_vccnz {pfx}_gf1"] if not nc else []) + [("L", f"{pfx}_gok1")]
        else:
            fl[c1] += (["s_waitcnt vmcnt(1)"] if not nc else []) + chk(1)
            fl[c1 + 1] += [wrF(1)] + ([f"s_cbranch_vccnz {pfx}_gf1"] if not nc else []) + [("L", f"{pfx}_gok1")]
        for n, x in enumerate(rest): fl[c1 + 2 + n] += [x]
        fl[c1 + b1] += [("w", "KX"), "s_barrier"]
        x0 = c1 + b1 + 1
        fl[x0] += [rdF(3), rdF(5)]; fl[x0 + 1] += [rdF(7), one[3]]
        if not stamps:
            fl[x0 - 3] += [f"s_cmp_eq_u32 s{S_STEP}, {nsteps-1}"]
            fl[x0 + 1] = [rdF(7), f"s_cbranch_scc1 {pfx}_last"]; fl[x0 + 4] += [one[3]]
        last_ms = [m for m in ms[x0 + 1:47] if "v[64:67]" not in m.split(",")[0] and "v[68:71]" not in m.split(",")[0]]
        fl[x0 + 2] += (["s_waitcnt vmcnt(0)"] if not (nc or f1s) else []) + [kvd[0]]
        fl[x0 + 3] += [one[0]]
        fl[21] += [("w", ("F", 3))]
        fl[22] += [("w", ("F", 7)), one[1]]
    if dirl:
        fl[24] += [kvd[1], "STAMP"]; fl[28] += [mv]; fl[46] += ["ONE2"]
    else:
        fl[23] += [kvd[1]]
        fl[24] += [mv, one[2], "STAMP"]
    fl[25] += kvm[:1]
    fl[26] += kvm[1:2]
    fl[27] += kvm[2:3]
    if "mega" in opt and "nofl" not in opt: fl[30] += [f"buffer_load_dword {vFl}, {vMp}, {sr(S_WS,4)}, s{S_FLG} offen sc1"]
    fl[26] += [pq0[0]]
    fl[27] += [pq0[1]]
    fl[28] += [pq0[2]]
    fl[29] += [rdV(0), pk0[0]]
    fl[30] += [pk0[1]]
    fl[31] += [pk0[2]]
    fl[32] += [rdV(1), pq1[0]]
    fl[33] += [pq1[1]]
    fl[34] += [pq1[2]]
    fl[35] += pk1
    fl[36] += [(f"ds_write2st64_b64 {vXw}, v[12:13], v[14:15] offset1:1", "Xw")]
    fl[37] += [("w", "V"), "v_mov_b32 v77, 0"]
    fl[38] += [kvd[2]]
    fl[39] = [W[0]] + fl[39]
    fl[40] += [kvd[3]]
    fl[41] += [("w", "Xw"), "s_barrier"]
    fl[42] += tr[0:2]
    fl[43] += tr[2:4]
    fl[44] += tr[4:6]
    fl[45] += tr[6:8]
    fl[46] = [W[1]] + ([one[2]] if fl[46] else [])
    fl[47] += [("w", ("Q", 3)), "STAMP"]
    fl[48] += [W[2], pv0[0]]
    fl[49] += [W[3], pv0[1]]
    fl[50] += [W[4], pv0[2]]
    fl[51] += [W[5], pv1[0]]
    fl[52] += [W[6], pv1[1]]
    fl[53] += [W[7], pv1[2]]
    fl[54] += [mk]
    fl[55] += [W[8]]
    fl[56] += [W[9]]
    fl[57] += [W[10], "v_max3_f32 v80, v16, v17, v18"]
    fl[58] += [W[11], kvd[4]]
    fl[59] += [W[12], W[13], "s_nop 1", "v_max3_f32 v82, v19, v20, v21", "v_max3_f32 v80, v80, v22, v23", "v_max_f32 v80, v80, v82", "s_nop 0"]
    slotno[0] = -11
    run([(m, fl[1 + i]) for i, m in enumerate(ms)])
    ee = lambda r: f"v_exp_f32 v{r}, v{r}"
    for x in ["v_max3_f32 v80, v80, v26, v27", "v_mov_b32 v82, v80", W[14], W[15], "v_permlane32_swap_b32 v80, v82", "v_max_f32 v80, v80, v82",
              "v_mov_b32 v82, v80", "s_nop 1", "v_permlane16_swap_b32 v80, v82", "v_max_f32 v80, v80, v82", f"v_mul_f32 v80, s{S_SC}, v80"]:
        emit(x)
    for r in (26, 16, 18, 20, 22):
        a(f"v_pk_fma_f32 {vr(r,2)}, {vr(r,2)}, {sr(S_SC2,2)}, v[80:81] op_sel_hi:[1,1,0] neg_lo:[0,0,1] neg_hi:[0,0,1]")
    stamp()
    for x in [ee(26), ee(27), ee(16), "v_cvt_pk_bf16_f32 v76, v26, v27", ee(17), "s_nop 0"]:
        emit(x)
    run([("v_mfma_f32_16x16x16_bf16 v[84:87], v[28:29], v[76:77], 0", [ee(18), "v_cvt_pk_bf16_f32 v68, v16, v17"]),
         ("v_mfma_f32_16x16x16_bf16 v[88:91], v[12:13], v[76:77], 0", [ee(19), ee(20)]),
         ("v_mfma_f32_16x16x16_bf16 v[92:95], v[14:15], v[76:77], 0", [ee(21), "v_cvt_pk_bf16_f32 v69, v18, v19", ee(22), ee(23),
            "v_cvt_pk_bf16_f32 v70, v20, v21", "v_cvt_pk_bf16_f32 v71, v22, v23", W[16], "s_nop 0"]),
         ("v_mfma_f32_16x16x32_bf16 v[84:87], v[28:31], v[68:71], v[84:87]", [W[17]]),
         (f"v_mfma_f32_16x16x32_bf16 v[88:91], {vr(VX[0],4)}, v[68:71], v[88:91]", []),
         (f"v_mfma_f32_16x16x32_bf16 v[92:95], {vr(VX[1],4)}, v[68:71], v[92:95]", ["v_rcp_f32 v20, v84", "s_nop 2"])])
    for r in range(88, 92): a(f"v_mul_f32 v{r}, v20, v{r}")
    a("v_pk_mul_f32 v[92:93], v[92:93], v[20:21] op_sel_hi:[1,0]")
    a("v_pk_mul_f32 v[94:95], v[94:95], v[20:21] op_sel_hi:[1,0]")
    for i in range(4): a(f"v_cvt_pk_bf16_f32 v{16+i}, v{88+2*i}, v{89+2*i}")
    if "oexec" in opt: a(f"s_mov_b64 exec, {sr(S_OM,2)}")
    emit((f"ds_write_b128 {vOw}, v[16:19]", "Ow"))
    if "oexec" in opt: a("s_mov_b64 exec, -1")
    stamp()
    a(zero16(64))
    if "z2" not in opt: a(zero16(80))
    for _ in range(geti("xa", 0)): a(zero4(84) if "z2" in opt else zero4(76))
    emit(("w", "Ow"))
    a("s_barrier")
    emit((f"ds_read_b128 v[16:19], {vL16} offset:{L_OS}", "O0"))
    emit((f"ds_read_b128 v[20:23], {vL16} offset:{L_OS+1024}", "O1"))
    if "z3" not in opt: a(zero16(80))
    for _ in range(geti("xb", 0)): a("v_mfma_f32_16x16x16_bf16 v[76:79], v[10:11], v[10:11], 0")
    emit(("w", "O0" if "o01" in opt else "O1"))
    stamp()
    OA = [64 + 4 * T for T in range(8)]
    buf = {k: WB[k] for k in range(9)}
    for k in range(9, 16): buf[k] = WB[k - 9]
    def wo(k):
        T, ks = divmod(k, 2)
        return f"v_smfmac_f32_16x16x64_bf16 {vr(OA[T], 4)}, {vr(16 + 4*ks, 4)}, {vr(buf[k], 8)}, {vIdx}"
    def add(T):
        o = OA[T]; return [f"v_add_f32 v{o}, v{o}, v{o+1}", f"v_add_f32 v{o+2}, v{o+2}, v{o+3}"]
    G = [OA[0], OA[4]]
    def cvt(tau, bb):
        o0, o1 = OA[tau*4 + 2*bb], OA[tau*4 + 2*bb + 1]
        return [f"v_cvt_pk_bf16_f32 v{G[tau]+bb}, v{o0}, v{o1}", f"v_cvt_pk_bf16_f32 v{G[tau]+2+bb}, v{o0+2}, v{o1+2}"]
    tag = lambda tau: [f"v_and_or_b32 v{G[tau]}, v{G[tau]}, -2, s{S_TAG}"]
    stp = lambda tau: [f"buffer_store_dwordx4 {vr(G[tau],4)}, {vPs}, {sr(S_WS,4)}, s{S_PST+tau} offen{st}"]
    fill = {k: [] for k in range(16)}
    if "o01" in opt: fill[0].append(("w", "O1"))
    rest = [rdWo(k, buf[k], h) for k in range(9, 16) for h in range(2)]
    if "wo2" in opt:
        sched_rd = {0: 2, 1: 1, 2: 1, 3: 1, 4: 1, 5: 1, 6: 1, 7: 1, 8: 0, 9: 0, 10: 1, 11: 2, 12: 2}
        waits = {8: 10, 10: 12, 12: 13, 13: 14, 14: 15}
        va = {3: add(0)[:1], 4: add(0)[1:], 5: add(1), 6: cvt(0, 0), 7: tag(0) + add(2)[:1], 8: add(2)[1:], 9: add(3) + cvt(0, 1) + stp(0),
              11: add(4)[:1], 12: add(4)[1:], 13: add(5), 14: cvt(1, 0) + tag(1), 15: add(6)}
    else:
        sched_rd = {0: 2, 1: 2, 2: 2, 3: 1, 4: 1, 5: 1, 6: 1, 7: 1, 8: 1, 9: 1, 10: 1}
        waits = {8: 11, 11: 13, 13: 15}
        va = {3: add(0)[:1], 4: add(0)[1:], 5: add(1), 6: cvt(0, 0), 7: tag(0) + add(2)[:1], 8: add(2)[1:], 9: add(3) + cvt(0, 1), 10: stp(0),
              11: add(4)[:1], 12: add(4)[1:], 13: add(5), 14: cvt(1, 0) + tag(1), 15: add(6)}
    for k, n in sched_rd.items():
        for _ in range(n): fill[k].append(rest.pop(0))
    assert not rest
    for k, fr in waits.items(): fill[k].append(("w", ("W", fr)))
    for k, v in va.items(): fill[k] += v
    SEL, RD = 96, 100
    RS = [(104, 108), (112, 120)]
    fill[15] = [(f"ds_read_b128 {vr(SEL,4)}, {vL16} offset:{L_SEL}", "SEL")] + fill[15] + ["v_mov_b32 v117, -1", f"s_mov_b32 s{S_PC}, 0", "s_nop 2"] + add(7) + cvt(1, 1) + stp(1)
    run([(wo(k), fill[k]) for k in range(16)])
    stamp()
    if "nocomm" in opt:
        a(zero16(64)); fx(); a(zero16(80))
        if stamps:
            a(f"s_cmp_eq_u32 s{S_STEP}, {nsteps-1}")
            a(f"s_cbranch_scc1 {pfx}_end")
        a(f"s_add_u32 s{S_STEP}, s{S_STEP}, 1")
        a("s_nop 7")
        a(f"s_branch {pfx}_gA")
    def ldp(st_):
        for n in range(2): a(f"buffer_load_dwordx4 {vr(RS[st_][n],4)}, {vPl}, {sr(S_WS,4)}, s{S_PLD} offen offset:{1024*n} sc1")
    de = geti("de", 4); dl = geti("dl", 6); d2 = geti("db", 3); d3 = geti("dc", 3)
    NOP = "s_nop 7"
    a(zero16(64))
    fx()
    a(zero16(80))
    a(f"s_cmp_lt_u32 s{S_W}, 2")
    for _ in range(de - 2): a(NOP)
    a(f"s_cbranch_scc1 {pfx}_re")
    for _ in range(dl): a(NOP)
    a.label(f"{pfx}_re")
    ldp(0)
    for _ in range(d2): a(zero16(80))
    ldp(1)
    emit(("w", "SEL"))
    for _ in range(d3): a(zero16(80))
    def fin(st_, nm):
        r0, r1 = RS[st_]
        a.label(f"{pfx}_rc{nm}")
        if "spin" in opt and nm == "A":
            for k in range(geti("sn", 8)):
                a(f"s_getreg_b32 s{S_T0}, hwreg(HW_REG_IB_STS, 0, 4)")
                a(f"s_cmp_le_u32 s{S_T0}, {geti('sv', 3)}")
                a(zero4(92))
                a(f"s_cbranch_scc1 {pfx}_sp")
            a.label(f"{pfx}_sp")
        a("s_waitcnt vmcnt(3)")
        a(f"v_mfma_f32_16x16x32_bf16 {vr(RD,4)}, {vr(SEL,4)}, {vr(r0,4)}, 0")
        a(f"v_xor_b32 v118, s{S_TAG}, v{r0}")
        a("s_waitcnt vmcnt(2)")
        a(f"v_mfma_f32_16x16x32_bf16 v[16:19], {vr(SEL,4)}, {vr(r1,4)}, {vr(RD,4)}")
        a(f"v_xor_b32 v119, s{S_TAG}, v{r1}")
        a(f"v_or_b32 v119, v119, v118")
        a("s_nop 1")
        a(f"v_and_b32 v119, 1, v119")
        a("s_nop 0")
        a(f"v_cmp_ne_u32 vcc, 0, v119")
        a("s_nop 0")
        a("v_add_f32_dpp v16, v16, v16 row_ror:8 row_mask:0xf bank_mask:0xf")
        a("v_add_f32_dpp v17, v17, v17 row_ror:8 row_mask:0xf bank_mask:0xf")
        a("s_nop 0")
        a("v_add_f32_dpp v16, v16, v16 row_ror:4 row_mask:0xf bank_mask:0xf")
        a("v_add_f32_dpp v17, v17, v17 row_ror:4 row_mask:0xf bank_mask:0xf")
        a("v_cvt_pk_bf16_f32 v116, v16, v17")
        a(f"s_cbranch_vccnz {pfx}_rf{nm}")
    fin(0, "A")
    a.label(f"{pfx}_rok")
    stamp()
    if stamps: a(f"s_mov_b32 s{S_STAMP+28}, s{S_PC}")
    a(f"buffer_store_dword v116, {vMp}, {sr(S_WS,4)}, s{S_MWR} offen{st}")
    a(f"buffer_store_dword v117, {vMp}, {sr(S_WS,4)}, s{S_MPO} offen{st}")
    if stamps:
        a(f"s_mov_b32 s{S_STAMP+30}, s{S_STAMP+2*nst[0]}")
    stamp()
    if stamps:
        a(f"s_cmp_eq_u32 s{S_STEP}, {nsteps-1}")
        a(f"s_cbranch_scc1 {pfx}_end")
    ge = geti("ge", 5); g1 = geti("ga", 0); g2 = geti("gb", 3); g3 = geti("gc", 3)
    a(f"s_mov_b32 s{S_MPO}, s{S_MWR}")
    a(f"s_sub_u32 s{S_MRD}, s{S_MWR}, s{S_OWN}")
    a(f"s_cmp_ge_u32 s{S_W}, 2")
    a(f"s_cbranch_scc1 {pfx}_gl")
    for _ in range(ge): a(NOP)
    a.label(f"{pfx}_gl")
    for _ in range(g1): a(NOP)
    a(gather(0))
    if "stept" in opt:
        a("s_memrealtime s[70:71]")
        a(f"s_lshl_b32 s72, s{S_STEP}, 2"); a(f"s_add_u32 s72, s72, {L_JUNK}")
        a("v_mov_b32 v118, s72")
        a("s_waitcnt lgkmcnt(0)")
        a("v_mov_b32 v119, s70")
        a("ds_write_b32 v118, v119")
        g2 -= 1
    a(f"s_add_u32 s{S_MWR}, s{S_MWR}, 8192")
    a(f"s_cmp_ge_u32 s{S_MRD}, {hex(WS_MEM + 2*8192)}")
    a(f"s_cselect_b32 s{S_T0}, {3*8192}, 0")
    a(f"s_sub_u32 s{S_MWR}, s{S_MWR}, s{S_T0}")
    a(f"s_add_u32 s{S_STEP}, s{S_STEP}, 1")
    a(f"s_xor_b32 s{S_TAG}, s{S_TAG}, 1")
    if "mega" in opt:
        if "nofl" not in opt:
            a(f"v_readlane_b32 s{S_HAVE}, {vFl}, 0")
            a(f"v_readlane_b32 s{S_T0}, {vFl}, 2")
        a(f"s_add_u32 s{S_T1}, s{S_STEP}, 2")
        a(f"s_min_u32 s{S_T1}, s{S_T1}, 64")
        if "nofl" not in opt: a(f"s_min_u32 s{S_HAVE}, s{S_HAVE}, s{S_T0}")
        kv_wait(a, f"s{S_T1}", pfx + "_kvw")
        g2 -= 1
    a(f"s_mov_b32 s{S_PC}, 0")
    for _ in range(g2 - 1): a(NOP)
    a(gather(0))
    if "f1s" not in opt:
        for _ in range(g3): a(NOP)
        a(gather(1))
    for _ in range(geti("gw", 0)): a(zero16(96))
    a(f"s_branch {pfx}_gA")
    a.label(f"{pfx}_rfA")
    if "rstat" in opt: a("s_add_u32 s60, s60, 1")
    ldp(0)
    a(f"s_add_u32 s{S_PC}, s{S_PC}, 1")
    fin(1, "B")
    a(f"s_branch {pfx}_rok")
    a.label(f"{pfx}_rfB")
    if "rstat" in opt: a("s_add_u32 s63, s63, 1")
    ldp(1)
    a(f"s_add_u32 s{S_PC}, s{S_PC}, 1")
    a(f"s_cmp_lt_u32 s{S_PC}, s{S_PMAX}")
    a(f"s_cbranch_scc1 {pfx}_rcA")
    a(f"s_mov_b32 s{S_PMAX}, 1")
    a(f"s_branch {pfx}_rok")
    if not stamps:
        a.label(pfx + "_last")
        for x in kvm: a(x)
        early = [m for m in last_ms if any(f", {vr(F[sg],4)}," in m for sg in (1, 2, 4, 6))]
        late = [m for m in last_ms if m not in early]
        for m in early: a(m)
        a("s_waitcnt lgkmcnt(0)")
        for m in late: a(m)
        for x in pk0 + pk1: a(x)
        a("s_nop 1")
        for x in pv0 + pv1: a(x)
    a.label(pfx + "_end")
    a(kvm[0])
    if "stept" in opt:
        a(f"v_lshrrev_b32 v118, 2, {vL16}")
        a(f"ds_read_b32 v119, v118 offset:{L_JUNK}")
        a(f"s_lshl_b32 s72, s{S_H}, 8"); a(f"s_add_u32 s72, s72, {hex(WS_STAMP + 0x20000)}")
        a("s_waitcnt lgkmcnt(0)")
        a(f"buffer_store_dword v119, v118, {sr(S_WS,4)}, s72 offen")
    return nst[0]
```

```python
from common import *
from pre import rnd1, rnd2, MASK, S_TID, xsum_g
import math
import common
def tstamp(a, opt, idx):
    if "midst" in opt and idx < 16 and "time" in opt:
        l = a.uid("ts")
        a("s_cselect_b32 s80, 1, 0")
        a(f"s_cmp_ge_u32 s{S_SEG}, 52"); a(f"s_cbranch_scc1 {l}")
        common.tstamp(a, opt, idx, "v47")
        a.label(l)
        a("s_cmp_lg_u32 s80, 0")
    else: common.tstamp(a, opt, idx, "v47")

S_X, S_O = 20, 24
S_SEG, S_TAG, S_PC, S_PMAX, S_SC, S_L2E = 28, 29, 30, 31, 18, 19
S_P1S, S_P1L, S_P1S2 = 52, 53, 54
S_SLOT, S_PSLOT = 55, 56
S_H2B, S_H2O, S_ACTW, S_ACTR = 57, 58, 59, 60
S_KV, S_Q, S_KM, S_KMV, S_ROW, S_OUT, S_FLG, S_HAVE, S_X2R = 61, 62, 63, 64, 65, 66, 67, 68, 69
S_MKV, S_MQ, S_MODE = 72, 73, 74
S_LIM = 64
S_STR, S_NXT, S_KMB, S_OUTB, S_KVE, S_QE, S_RWE = 76, 77, 78, 79, 81, 82, 83
XS = 48
def set_xs(opt):
    global XS
    XS = 48
    for o in opt:
        if o.startswith('xs') and o[2:].isdigit(): XS = int(o[2:])
vL16, vCol, vP, vKw, vKr, vHg, vHw, vHr, vOw, vZero, vQr, vVr, vEw, vEr, vEo = ["v%d" % i for i in range(1, 16)]
MC = 16
BIAS, SEL = 24, 32
vX2g = "v36"
XR = 37
T0, T1, T2 = 38, 39, 40
L_O, L_ST, L_E, L_KV, L_Q, L_K, L_H = 0, 16384, 20480, 32768, 65536, 81920, 98304
FS, RTS = 1088, 17408
WoF = lambda ct, ks, off=0, n=4: ar((ct * 8 + ks) * 4 + off, n)
GF = lambda m, ks, off=0, n=4: ar(128 + (m * 16 + ks) * 4 + off, n)
DF = lambda t, ks, off=0, n=4: vr(144 + (t * 14 + ks) * 4 + off, n)

def wave_sum(a, x, t):
    a("s_nop 1")
    for ror in (1, 2, 4, 8):
        a(f"v_add_f32_dpp v{x}, v{x}, v{x} row_ror:{ror} row_mask:0xf bank_mask:0xf")
        if ror < 8: a("s_nop 1")
    xsum_g(a, x, t)

def emit_post_addr(a, opt=()):
    LE = lambda *x, **k: lane_expr(a, *x, tmp="v47", **k)
    WS = sr(S_WS, 4)
    LE(vL16, "v0", [(0, 6, 4)])
    LE(vCol, "v0", [(6, 2, 8), (2, 2, 6), (5, 1, 5), (0, 2, 3), (4, 1, 2)])
    LE(vP, "v0", [(0, 4, 14), (4, 2, 4)])
    LE(vKw, "v0", [(6, 2, 12), (0, 4, 5), (4, 2, 3)], L_K)
    LE("v48", "v0", [(2, 2, 3)]); a(f"v_xor_b32 {vKw}, {vKw}, v48")
    LE(vKr, "v0", [(6, 2, 12), (0, 6, 3)], L_K)
    LE("v48", "v0", [(4, 2, 3)]); a(f"v_xor_b32 {vKr}, {vKr}, v48")
    LE(vHg, "v0", [(4, 2, 11), (6, 2, 8), (0, 4, 4)])
    LE("v48", "v0", [(6, 2, 2), (2, 2, 0)])
    a(f"v_mul_u32_u24 {vHw}, {FS}, v48")
    a("v_and_b32 v48, 3, v0"); a("v_mul_u32_u24 v48, 272, v48"); a(f"v_add_u32 {vHw}, {vHw}, v48")
    LE("v48", "v0", [(4, 2, 4)], L_H); a(f"v_add_u32 {vHw}, {vHw}, v48")
    a("v_bfe_u32 v48, v0, 4, 2"); a(f"v_mul_u32_u24 {vHr}, 272, v48")
    LE("v48", "v0", [(0, 4, 4)], L_H); a(f"v_add_u32 {vHr}, {vHr}, v48")
    LE(vOw, "v0", [(6, 1, 13), (7, 1, 12), (0, 6, 4)], L_O)
    a(f"v_mov_b32 {vZero}, 0")
    LE(vQr, "v0", [(6, 2, 12), (0, 6, 4)], L_Q)
    LE(vVr, "v0", [(7, 1, 14), (0, 6, 4)], L_KV)
    LE(vEw, "v0", [(6, 2, 11), (0, 6, 4)], L_E)
    LE(vEr, "v0", [(3, 1, 10), (1, 2, 8), (4, 4, 4), (0, 1, 3)], L_E)
    LE(vEo, "v0", [(4, 4, 10), (0, 4, 2)])
    LE(vX2g, "v0", [(4, 4, 11), (0, 4, 2)])
    a(f"s_sub_u32 s50, s{S_TEAM}, {T0_}")
    sexpr(a, S_P1S, [(50, 0, 3, 20), (S_H, 0, 1, 13), (S_W, 1, 1, 12), (S_H, 1, 4, 8), (S_W, 0, 1, 7)], WS_P1)
    a(f"s_add_u32 s{S_P1S2}, s{S_P1S}, {16*16384}")
    sexpr(a, S_P1L, [(50, 0, 3, 20), (S_H, 0, 5, 14), (S_W, 0, 2, 12)], WS_P1)
    sexpr(a, S_H2B, [(50, 0, 3, 18)], WS_H2)
    sexpr(a, S_H2O, [(50, 0, 3, 18), (S_H, 0, 5, 11)], WS_H2)
    sexpr(a, S_X2R, [(50, 0, 3, 18), (S_H, 0, 1, 15), (S_H, 1, 4, 6)], WS_H2 + 1024)
    sexpr(a, S_ACTW, [(50, 0, 3, 19), (S_H, 0, 5, 11), (S_W, 1, 1, 10), (S_W, 0, 1, 3)], WS_ACT)
    a(f"s_and_b32 s48, s{S_H}, 1"); a(f"s_mul_i32 s48, s48, {56*1024}")
    a(f"s_mul_i32 s51, s{S_W}, {14*1024}"); a("s_add_u32 s48, s48, s51")
    sexpr(a, S_ACTR, [(50, 0, 3, 19)], WS_ACT); a(f"s_add_u32 s{S_ACTR}, s{S_ACTR}, s48")

def emit_post_weights(a, opt):
    LE = lambda *x, **k: lane_expr(a, *x, tmp="v47", **k)
    WS = sr(S_WS, 4)
    def geti(p, d):
        for o in opt:
            if o.startswith(p) and o[len(p):].isdigit(): return int(o[len(p):])
        return d
    import mega
    a.c("==== T role: team-buffer init + stationary weights ====")
    a("s_load_dwordx2 s[34:35], s[0:1], 40")
    a("s_load_dwordx4 s[36:39], s[0:1], 64")
    a("s_load_dwordx2 s[40:41], s[0:1], 80")
    emit_post_addr(a, opt)
    LE("v60", "v0", [(3, 3, 10)]); LE("v61", "v0", [(0, 3, 4)]); LE("v62", "v0", [(4, 2, 5)])
    a("v_xor_b32 v62, v61, v62"); a("v_add_u32 v66, v60, v62")
    LE("v67", "v0", [(6, 2, 15), (2, 4, 7), (1, 1, 4), (3, 2, 5), (0, 1, 3)])
    LE("v60", "v0", [(2, 4, 10)]); LE("v62", "v0", [(0, 2, 4)]); LE("v63", "v0", [(4, 1, 5)])
    a("v_xor_b32 v62, v62, v63"); a("v_add_u32 v68, v60, v62")
    LE("v69", "v0", [(6, 2, 15), (2, 4, 6), (1, 1, 4), (4, 1, 5), (0, 1, 3)])
    a("v_xor_b32 v70, 32, v69")
    a("v_bfe_u32 v60, v0, 3, 3"); a("v_mul_u32_u24 v60, 3584, v60")
    a("v_xor_b32 v62, v61, v63"); a("v_add_u32 v71, v60, v62")
    a("v_xor_b32 v62, 64, v62"); a("v_add_u32 v72, v60, v62")
    LE("v60", "v0", [(4, 2, 10), (2, 2, 7), (0, 1, 3)]); LE("v62", "v0", [(6, 2, 5), (1, 1, 4)]); LE("v63", "v0", [(3, 1, 5), (4, 1, 6)])
    a("v_xor_b32 v62, v62, v63"); a("v_add_u32 v73, v60, v62"); a("v_add_u32 v74, 0x10000, v73")
    S_LB, S_WOS, S_DNS, S_GUS = 76, 77, 78, 79
    sexpr(a, S_LB, [(S_W, 0, 2, 15)])
    sexpr(a, S_WOS, [(S_H, 1, 4, 18), (S_H, 0, 1, 9), (S_W, 0, 2, 7)])
    a(f"s_mul_i32 s{S_DNS}, s{S_W}, {448*1024}"); sexpr(a, 48, [(S_H, 1, 4, 6)]); a(f"s_add_u32 s{S_DNS}, s{S_DNS}, s48")
    a(f"s_mul_i32 s{S_GUS}, s{S_W}, {128*3584}"); a(f"s_min_u32 s48, s{S_H}, 27"); a("s_lshl_b32 s48, s48, 7"); a(f"s_add_u32 s{S_GUS}, s{S_GUS}, s48")
    a(f"s_cmp_lg_u32 s{S_CLM}, 0")
    a("s_cbranch_scc1 T_nw")
    for _ in range(geti("ts", 2)): a("s_sleep 64")
    claim(a)
    verify_claim(a, 0, 163840 - 64)
    wl = geti("wl", 8)
    a(f"s_cmp_ge_u32 s{S_TEAM}, {wl}")
    a(f"s_cselect_b32 s50, {D_LN1}, {D_MOD1}")
    a("s_lshl_b32 s50, s50, 2")
    dbg_wait(a, 0, 32, "v44", "v45", soff=50, sleep=40, limit=10)
    if geti("tx", 0):
        a(f"s_cmp_lt_u32 s{S_TEAM}, {wl}")
        a("s_cbranch_scc1 T_nw")
        a(f"s_sleep {32 * geti('tx', 0) - 1}")
    a.label("T_nw")
    a("s_waitcnt lgkmcnt(0)")
    tstamp(a, opt, 16)
    q = VmQ(a)
    def batch(tag, ptr, nbytes, sbase, voff, half, idxs, rowbytes):
        srd(a, S_T, ptr, nbytes)
        for n, i in enumerate(idxs):
            a(f"s_add_u32 m0, s{S_LB}, {half * 16384 + n * 1024}")
            a(f"s_add_u32 s48, s{sbase}, {i * rowbytes}")
            a(f"buffer_load_dwordx4 v{voff(i)}, {sr(S_T,4)}, s48 offen lds")
            if geti("tw", 0): a(f"s_waitcnt vmcnt({geti('tw', 0)})")
        q.issue(tag, len(idxs))
    wo = lambda h: batch(("wo", h), 34, 4194304, S_WOS, lambda i: 66, h, range(16 * h, 16 * h + 16), 8 * 1024)
    dn = lambda h: batch(("dn", h), 40, 1792 * 1024, S_DNS, lambda i: 68, h, range(16 * h, min(16 * h + 16, 28)), 16 * 1024)
    gu = lambda m: batch(("gu", m), 36 + 2 * m, 512 * 3584, S_GUS, lambda i: 71 + (i & 1), m, range(16), 8 * 3584)
    wo(0); wo(1)
    for h in range(2):
        q.wait(("wo", h))
        for ct in range(4):
            a(f"v_xor_b32 v65, {32 * ct}, v67")
            for ks in range(4 * h, 4 * h + 4):
                for u in range(2):
                    a(f"ds_read_b64_tr_b16 {WoF(ct, ks, 2*u, 2)}, v65 offset:{(32*ks + 16*u) * 128}")
        a("s_waitcnt lgkmcnt(0)")
        dn(h)
    tstamp(a, opt, 17)
    for h in range(2):
        q.wait(("dn", h))
        for t in range(2):
            for ks in range(8 * h, min(8 * h + 8, 14)):
                for u in range(2):
                    a(f"ds_read_b64_tr_b16 {DF(t, ks, 2*u, 2)}, v{69+t} offset:{(32*ks + 16*u) * 64}")
        a("s_waitcnt lgkmcnt(0)")
        gu(h)
    tstamp(a, opt, 18)
    a(f"v_mov_b32 v46, {163840 - 32}")
    a(f"s_cmp_lg_u32 s{S_W}, 0")
    a("s_cbranch_scc1 T_mdw")
    a(f"s_mov_b32 s{S_MODE}, 1")
    mega.emit_mode(a, opt, "T_md1", "v44", "v45")
    a(f"s_mov_b32 s{S_MODE}, 0")
    a.label("T_md1")
    a(f"v_mov_b32 v45, s{S_MODE}")
    a("ds_write_b32 v46, v45")
    a.label("T_mdw")
    a("s_waitcnt vmcnt(0) lgkmcnt(0)")
    a("s_barrier")
    tstamp(a, opt, 19)
    a("ds_read_b32 v45, v46")
    a("s_waitcnt lgkmcnt(0)")
    a(f"v_readfirstlane_b32 s{S_MODE}, v45")
    a("s_nop 3")
    a(f"s_cmp_lg_u32 s{S_MODE}, 0")
    a("s_cbranch_scc1 T_init1")
    for mode, st in ((0, ""), (1, " sc1")):
        a.label(f"T_init{mode}")
        for i in range(2): a(f"v_mov_b32 v{48+i}, -1")
        for i in range(4): a(f"v_mov_b32 v{52+i}, 0")
        for k in range(4):
            a(f"buffer_store_dwordx4 v[52:55], {vL16}, {WS}, s{S_P1L} offen offset:{1024*k}{st}")
        for sl in range(3):
            a(f"s_add_u32 s48, s{S_H2O}, {sl*65536}")
            a(f"buffer_store_dword v48, {vCol}, {WS}, s48 offen{st}")
            a(f"buffer_store_dword v48, {vCol}, {WS}, s48 offen offset:1024{st}")
        a(f"s_cmp_ge_u32 s{S_H}, 28")
        a(f"s_cbranch_scc1 T_nopa{mode}")
        for sl in range(3):
            for rt in range(2):
                a(f"s_add_u32 s48, s{S_ACTW}, {sl*131072 + rt*56*1024}")
                a(f"buffer_store_dwordx2 v[48:49], {vL16}, {WS}, s48 offen{st}")
        a.label(f"T_nopa{mode}")
        if mode == 0: a("s_branch T_initd")
    a.label("T_initd")
    for m in range(2):
        for ks in range(16):
            for u in range(2):
                off = ((ks // 4) % 2) * 32768 + m * 16384 + (32 * (ks % 4) + 4 * u) * 128
                a(f"ds_read_b64_tr_b16 {GF(m, ks, 2*u, 2)}, v{73 + ks // 8} offset:{off}")
    a("s_waitcnt vmcnt(0) lgkmcnt(0)")
    a("s_barrier")
    a(f"s_cmp_lg_u32 s{S_W}, 0")
    a("s_cbranch_scc1 T_noarr")
    a(f"s_lshl_b32 s50, s{S_TEAM}, 2")
    dbg_arrive(a, D_INIT - T0_, "v44", "v45", soff=50)
    a.label("T_noarr")

def emit_post_final(a, opt):
    LE = lambda *x, **k: lane_expr(a, *x, tmp="v47", **k)
    WS = sr(S_WS, 4)
    a("s_load_dwordx2 s[32:33], s[0:1], 0")
    a("s_load_dwordx2 s[42:43], s[0:1], 104")
    dbg_wait(a, D_MOD2, 32, "v44", "v45", sleep=32)
    a(f"s_mov_b32 s48, {hex(WS_MOD + 2048)}")
    for i, k in enumerate((0, 2, 1)):
        a(f"buffer_load_dword v{56+i}, {vCol}, {WS}, s48 offen offset:{1024*k} sc1")
    LE("v60", "v0", [(0, 4, 2)])
    sexpr(a, 48, [(S_H, 1, 4, 6)], WS_MOD + 5 * 1024)
    a(f"buffer_load_dword v59, v60, {WS}, s48 offen sc1")
    a("s_waitcnt vmcnt(0) lgkmcnt(0)")
    for i in range(4):
        a(f"v_lshlrev_b32 v{MC+2*i}, 16, v{56+i}")
        a(f"v_and_b32 v{MC+2*i+1}, s{MASK}, v{56+i}")
    a(f"v_add_f32 v{MC+2}, 1.0, v{MC+2}"); a(f"v_add_f32 v{MC+3}, 1.0, v{MC+3}")
    rnd2(a, MC + 2, MC + 3, 47)
    srd(a, S_X, 32, 2048 * 1024)
    srd(a, S_O, 42, 2048 * 1024)
    a("v_and_b32 v60, 3, v0"); a("v_bfe_u32 v61, v0, 2, 2")
    a("v_mov_b32 v62, 0x3f80"); a("v_mov_b32 v63, 0x3f800000")
    a("v_cmp_eq_u32 vcc, 1, v60"); a("s_nop 1"); a("v_cndmask_b32 v62, v62, v63, vcc")
    a("v_cmp_gt_u32 vcc, 2, v60"); a("s_nop 1"); a("v_cndmask_b32 v62, 0, v62, vcc")
    for d in range(4):
        a(f"v_cmp_eq_u32 vcc, {d}, v61"); a("s_nop 1"); a(f"v_cndmask_b32 v{SEL+d}, 0, v62, vcc")
    LE("v60", "v0", [(6, 1, 4), (0, 4, 0)])
    LE("v61", "v0", [(4, 2, 2)])
    a(f"v_mov_b32 v63, {f32bits(-1e30)}")
    for t in range(2):
        for r in range(4):
            a(f"v_add_u32 v62, {16*t + r}, v61")
            a("v_cmp_gt_u32 vcc, v62, v60"); a("s_nop 1")
            a(f"v_cndmask_b32 v{BIAS+4*t+r}, 0, v63, vcc")
    a(f"s_sub_u32 s{S_SEG}, s{S_TEAM}, {T0_}")
    a(f"s_mov_b32 s{S_LIM}, 64")
    if "g2t" in opt:
        a(f"s_add_u32 s48, s{S_TEAM}, {XS + NT - 2}")
        a(f"s_cmp_lt_u32 s{S_TEAM}, {T0_}")
        a(f"s_cselect_b32 s{S_SEG}, s48, s{S_SEG}")
    sexpr(a, 50, [(S_H, 1, 4, 1), (S_W, 1, 1, 0)])
    a(f"s_mul_i32 s{S_KV}, s50, {HSTR}")
    sexpr(a, 48, [(S_W, 0, 1, 13)], WS_KV); a(f"s_add_u32 s{S_KV}, s{S_KV}, s48")
    a(f"s_mul_i32 s{S_Q}, s50, {QSTR}")
    sexpr(a, 48, [(S_W, 0, 1, 12)], WS_QX); a(f"s_add_u32 s{S_Q}, s{S_Q}, s48")
    sexpr(a, S_MKV, [(S_W, 0, 2, 13)], L_KV)
    sexpr(a, S_MQ, [(S_W, 0, 2, 12)], L_Q)
    a(f"s_mul_i32 s{S_KM}, s50, {MSTR}")
    a(f"s_add_u32 s{S_KMB}, s{S_KM}, {hex(WS_KM)}")
    sexpr(a, S_FLG, [(50, 0, 5, 7)], WS_FLAG)
    sexpr(a, S_ROW, [(S_H, 0, 5, 10)])
    sexpr(a, S_OUTB, [(S_H, 0, 1, 14), (S_H, 1, 4, 6)])
    seg_addrs(a)
    a(f"s_mov_b32 s{S_HAVE}, 0")
    a(f"s_mov_b32 s{S_TAG}, 1")
    a(f"s_mov_b32 s{S_SLOT}, 0")
    a(f"s_mov_b32 s{S_PSLOT}, 2")
    a(f"s_mov_b32 s{S_PMAX}, 100000")
    a(f"s_mov_b32 s{S_SC}, {f32bits(128 ** -0.5)}")
    a(f"s_mov_b32 s{S_L2E}, {f32bits(math.log2(math.e))}")
    a(f"s_lshl_b32 s50, s{S_TEAM}, 2")
    dbg_wait(a, D_INIT - T0_, 32, "v44", "v45", soff=50, sleep=24)

DEFER = []
def poll(a, name, loads, check, sleep=3):
    a(f"s_mov_b32 s{S_PC}, 0")
    a.label(name)
    loads()
    check()
    a(f"s_cbranch_vccnz {name}_f")
    a.label(name + "_ok")
    def tail():
        a.label(name + "_f")
        a(f"s_sleep {sleep}")
        a(f"s_add_u32 s{S_PC}, s{S_PC}, 1")
        a(f"s_cmp_lt_u32 s{S_PC}, s{S_PMAX}")
        a(f"s_cbranch_scc1 {name}")
        a(f"s_mov_b32 s{S_PMAX}, 1")
        a(f"s_branch {name}_ok")
    DEFER.append(tail)

def seg_addrs(a):
    a(f"s_lshl_b32 s48, s{S_SEG}, 12"); a(f"s_add_u32 s{S_KM}, s{S_KMB}, s48")
    a(f"s_lshl_b32 s48, s{S_SEG}, 15"); a(f"s_add_u32 s{S_OUT}, s{S_OUTB}, s48")

def pf_list():
    WS = sr(S_WS, 4)
    L = []
    for half in range(2):
        for i in range(4):
            L.append(([f"s_add_u32 m0, s{S_MKV}, {half*4096}", f"s_add_u32 s48, s{S_KVE}, {half*4096}"] if i == 0 else []) +
                     [f"buffer_load_dwordx4 {vL16}, {WS}, s48 offen offset:{1024*i} sc1 lds"])
    for i in range(4):
        L.append(([f"s_mov_b32 m0, s{S_MQ}", "s_nop 0"] if i == 0 else []) + [f"buffer_load_dwordx4 {vL16}, {WS}, s{S_QE} offen offset:{1024*i} sc1 lds"])
    L.append([f"buffer_load_dword v{XR}, {vCol}, {sr(S_X,4)}, s{S_RWE} offen"])
    return L

def prefetch(a, name, segreg, body=True):
    WS = sr(S_WS, 4)
    a(f"s_cmp_ge_u32 s{segreg}, s{S_LIM}")
    a(f"s_cbranch_scc1 {name}_skip")
    a(f"s_cmp_gt_u32 s{S_HAVE}, s{segreg}")
    a(f"s_cbranch_scc1 {name}_fok")
    a(f"s_mov_b32 s{S_PC}, 0")
    a.label(name + "_fl")
    a("s_mov_b64 exec, 3")
    a(f"buffer_load_dword v45, {vL16}, {WS}, s{S_FLG} offen sc1")
    a("s_mov_b64 exec, -1")
    a("s_waitcnt vmcnt(0)")
    a(f"v_readlane_b32 s{S_HAVE}, v45, 0"); a("v_readlane_b32 s48, v45, 1")
    a("s_nop 1")
    a(f"s_min_u32 s{S_HAVE}, s{S_HAVE}, s48")
    a(f"s_cmp_gt_u32 s{S_HAVE}, s{segreg}")
    a(f"s_cbranch_scc1 {name}_fok")
    a("s_sleep 8")
    a(f"s_add_u32 s{S_PC}, s{S_PC}, 1")
    a(f"s_cmp_lt_u32 s{S_PC}, s{S_PMAX}")
    a(f"s_cbranch_scc1 {name}_fl")
    a(f"s_mov_b32 s{S_PMAX}, 1")
    a.label(name + "_fok")
    a(f"s_lshl_b32 s48, s{segreg}, 14"); a(f"s_add_u32 s{S_KVE}, s{S_KV}, s48")
    a(f"s_lshl_b32 s48, s{segreg}, 13"); a(f"s_add_u32 s{S_QE}, s{S_Q}, s48")
    a(f"s_lshl_b32 s48, s{segreg}, 15"); a(f"s_add_u32 s{S_RWE}, s{S_ROW}, s48")
    if not body: return
    for g in pf_list():
        for x in g: a(x)
    a.label(name + "_skip")

def emit_post_loop(a, fast, pfx, opt):
    def geti(p, d):
        for o in opt:
            if o.startswith(p) and o[len(p):].isdigit(): return int(o[len(p):])
        return d
    st = "" if fast else " sc1"
    WS = sr(S_WS, 4)
    QF, KX, VX, KF, SS, KMR = 48, 64, 64, 96, 112, 124
    WARM = f"v_mfma_f32_32x32x2_f32 v[80:95], {vZero}, {vZero}, 0"
    prefetch(a, pfx + "_pf0", S_SEG)
    if "g2t" in opt:
        a(f"s_cmp_ge_u32 s{S_TEAM}, {T0_}")
        a(f"s_cselect_b32 s48, 1, s{S_W}")
        a("s_cmp_lg_u32 s48, 0")
        a(f"s_cbranch_scc1 {pfx}_lw_ok")
        a(f"s_sub_u32 s49, s{S_KM}, {2*4096}")
        a(f"s_mov_b32 s{S_PC}, 0")
        a("s_mov_b64 exec, 1")
        a.label(pfx + "_lw")
        a(f"buffer_load_dword v45, {vL16}, {WS}, s49 offen sc1")
        a("s_waitcnt vmcnt(0)")
        a("v_readfirstlane_b32 s48, v45")
        a("s_cmp_lg_u32 s48, -1")
        a(f"s_cbranch_scc1 {pfx}_lw_x")
        a("s_sleep 16")
        a(f"s_add_u32 s{S_PC}, s{S_PC}, 1")
        a(f"s_cmp_lt_u32 s{S_PC}, 20000")
        a(f"s_cbranch_scc1 {pfx}_lw")
        a.label(pfx + "_lw_x")
        a("s_mov_b64 exec, -1")
        a.label(pfx + "_lw_ok")
    a("s_waitcnt vmcnt(0)")
    a("s_barrier")
    a.raw(".p2align 6")
    a.label(pfx + "_loop")
    tstamp(a, opt, 0)
    def ldkm():
        for i in range(4): a(f"buffer_load_dwordx4 {vr(KMR+4*i,4)}, {vL16}, {WS}, s{S_KM} offen offset:{1024*i} sc1")
    if "wbl" in opt:
        a(f"s_cmp_lt_u32 s{S_SEG}, {64-NT}")
        a(f"s_cselect_b32 s48, 1, s{S_W}")
        a(f"s_or_b32 s48, s48, s{S_H}")
        a(f"s_cbranch_scc1 {pfx}_nwb")
        a("buffer_wbl2 sc1")
        a.label(pfx + "_nwb")
    ldkm()
    for ks in range(4):
        a(f"ds_read_b128 {vr(QF+4*ks,4)}, {vQr} offset:{1024*ks}")
        for t in range(2):
            i = t * 4 + ks
            a(f"ds_read_b128 {vr(KX+4*i,4)}, {vVr} offset:{(i//2)*4096 + (i%2)*1024}")
    for ks in range(4):
        a(f"s_waitcnt lgkmcnt({9-3*ks})")
        for t in range(2):
            d = vr(SS + 4 * t, 4)
            a(f"v_mfma_f32_16x16x32_bf16 {d}, {vr(KX+4*(t*4+ks),4)}, {vr(QF+4*ks,4)}, {d if ks else vr(BIAS+4*t,4)}")
    for i in range(8):
        a(f"ds_read_b128 {vr(VX+4*i,4)}, {vVr} offset:{(i//2)*4096 + 2048 + (i%2)*1024}")
    def scale(regs):
        for i in range(0, len(regs), 2): rnd2(a, regs[i], regs[i+1], T2)
        for r in regs: a(f"v_mul_f32 v{r}, s{S_SC}, v{r}")
        for i in range(0, len(regs), 2): rnd2(a, regs[i], regs[i+1], T2)
    scale(list(range(SS, SS + 8)))
    MX, LX = 41, 46
    a(f"v_max3_f32 v{MX}, v{SS}, v{SS+1}, v{SS+2}"); a(f"v_max3_f32 v{T1}, v{SS+3}, v{SS+4}, v{SS+5}")
    a(f"v_max3_f32 v{MX}, v{MX}, v{SS+6}, v{SS+7}"); a(f"v_max_f32 v{MX}, v{MX}, v{T1}")
    xsum_g(a, MX, T1, "v_max_f32")
    a(f"v_mul_f32 v{T0}, s{S_L2E}, v{MX}")
    for r in range(8): a(f"v_fma_f32 v{SS+r}, v{SS+r}, s{S_L2E}, -v{T0}")
    for r in range(8): a(f"v_exp_f32 v{SS+r}, v{SS+r}")
    a(f"v_add_f32 v{LX}, v{SS}, v{SS+1}"); a(f"v_add_f32 v{T0}, v{SS+2}, v{SS+3}"); a(f"v_add_f32 v{T1}, v{SS+4}, v{SS+5}")
    a(f"v_add_f32 v{T2}, v{SS+6}, v{SS+7}"); a(f"v_add_f32 v{LX}, v{LX}, v{T0}"); a(f"v_add_f32 v{T1}, v{T1}, v{T2}")
    a(f"v_add_f32 v{LX}, v{LX}, v{T1}")
    PX, PM0, OC = 140, 44, 96
    a(f"v_mov_b32 v{PM0+1}, 0")
    tstamp(a, opt, 1)
    a(f"s_mov_b32 s{S_PC}, 0")
    a.label(pfx + "_km")
    a("s_waitcnt vmcnt(0)")
    a(f"v_max3_u32 v{T0}, v{KMR}, v{KMR+4}, v{KMR+8}")
    a(f"v_max_u32 v{T0}, v{T0}, v{KMR+12}")
    a(f"v_cmp_eq_u32 vcc, -1, v{T0}")
    for i in range(4): a(f"ds_write2st64_b32 {vKw}, v{KMR+4*i+1}, v{KMR+4*i+3} offset0:{4*i} offset1:{4*i+2}")
    a(f"s_cbranch_vccnz {pfx}_km_f")
    def kmtail():
        a.label(pfx + "_km_f")
        a(f"s_sleep {geti('tk', 3)}")
        ldkm()
        a(f"s_add_u32 s{S_PC}, s{S_PC}, 1")
        a(f"s_cmp_lt_u32 s{S_PC}, s{S_PMAX}")
        a(f"s_cbranch_scc1 {pfx}_km")
        a(f"s_mov_b32 s{S_PMAX}, 1")
        a("s_waitcnt vmcnt(0)")
        a(f"s_branch {pfx}_km_ok")
    DEFER.append(kmtail)
    a.label(pfx + "_km_ok")
    tstamp(a, opt, 2)
    for ks in range(4):
        for u in range(2):
            a(f"ds_read_b64_tr_b16 {vr(KF+4*ks+2*u,2)}, {vKr} offset:{1024*ks+512*u}")
    for ks in range(4):
        a(f"s_waitcnt lgkmcnt({6-2*ks})")
        d = vr(SS + 8, 4)
        a(f"v_mfma_f32_16x16x32_bf16 {d}, {vr(KF+4*ks,4)}, {vr(QF+4*ks,4)}, {d if ks else 0}")
    a("s_nop 7")
    scale([SS + 8, SS + 9])
    a(f"v_max3_f32 v{T0}, v{MX}, v{SS+8}, v{SS+9}")
    xsum_g(a, T0, T1, "v_max_f32")
    a(f"v_mul_f32 v{T0}, s{S_L2E}, v{T0}")
    a(f"v_fma_f32 v{MX}, v{MX}, s{S_L2E}, -v{T0}")
    for r in (8, 9): a(f"v_fma_f32 v{SS+r}, v{SS+r}, s{S_L2E}, -v{T0}")
    a(f"v_exp_f32 v{MX}, v{MX}")
    for r in (8, 9): a(f"v_exp_f32 v{SS+r}, v{SS+r}")
    a(f"v_fma_f32 v{LX}, v{LX}, v{MX}, v{SS+8}")
    a(f"v_add_f32 v{LX}, v{LX}, v{SS+9}")
    xsum_g(a, LX, T1)
    a(f"v_rcp_f32 v{LX}, v{LX}")
    a("s_nop 0")
    a(f"v_mul_f32 v42, v{LX}, v{MX}")
    a(f"v_pk_mul_f32 {vr(SS+8,2)}, {vr(SS+8,2)}, {vr(LX,2)} op_sel_hi:[1,0]")
    for r in range(0, 8, 2): a(f"v_pk_mul_f32 {vr(SS+r,2)}, {vr(SS+r,2)}, v[42:43] op_sel_hi:[1,0]")
    a(f"v_cvt_pk_bf16_f32 v{PM0}, v{SS+8}, v{SS+9}")
    for i in range(4): a(f"v_cvt_pk_bf16_f32 v{PX+i}, v{SS+2*i}, v{SS+2*i+1}")
    oc = lambda i: (96 + 4 * i) if i < 4 else (48 + 4 * (i - 4))
    def pk(i2):
        b = oc(2 * i2)
        return [f"v_cvt_pk_bf16_f32 v{SS+4*(i2%2)+k}, v{b+2*k}, v{b+2*k+1}" for k in range(4)] + [f"ds_write_b128 {vOw}, {vr(SS+4*(i2%2),4)} offset:{1024*i2}"]
    for i in range(8):
        a(f"v_mfma_f32_16x16x16_bf16 {vr(oc(i),4)}, {vr(KMR+2*i,2)}, {vr(PM0,2)}, 0")
    for i in range(8):
        a(f"v_mfma_f32_16x16x32_bf16 {vr(oc(i),4)}, {vr(VX+4*i,4)}, {vr(PX,4)}, {vr(oc(i),4)}")
        if i in (3, 5, 7):
            for x in pk((i - 3) // 2): a(x)
    a("s_nop 3")
    for x in pk(3): a(x)
    a("s_waitcnt lgkmcnt(0)"); a("s_barrier")
    OF = 48
    for i in range(16): a(f"ds_read_b128 {vr(OF+4*i,4)}, {vL16} offset:{L_O+1024*i}")
    tstamp(a, opt, 3)
    jobs = [(cq, rt) for rt in range(2) for cq in range(2)]
    def epi(n):
        cq, rt = jobs[n]; ac = 112 + (n % 2) * 8; g = 128 + (n % 2) * 4
        return [f"v_cvt_pk_bf16_f32 v{g+i}, v{ac+2*i}, v{ac+2*i+1}" for i in range(4)] + [f"v_and_or_b32 v{g}, v{g}, -2, s{S_TAG}",
                f"buffer_store_dwordx4 {vr(g,4)}, {vP}, {WS}, s{(S_P1S, S_P1S2)[rt]} offen offset:{64*cq}{st}"]
    for n, (cq, rt) in enumerate(jobs):
        ac = 112 + (n % 2) * 8
        e = epi(n - 1) if n else []
        k = 0
        for ks in range(8):
            if n == 0: a(f"s_waitcnt lgkmcnt({15-ks})")
            if n == 2 and ks == 0: a("s_waitcnt lgkmcnt(0)")
            for u in range(2):
                d = vr(ac + 4 * u, 4)
                a(f"v_mfma_f32_16x16x32_bf16 {d}, {WoF(2*cq+u, ks)}, {vr(OF+4*(rt*8+ks),4)}, {d if ks else 0}")
                k += 1
                if k >= 2:
                    for x in e[2*(k-2):2*(k-1)]: a(x)
    a("s_nop 7")
    for x in epi(3): a(x)
    tstamp(a, opt, 4)
    if geti("t1", 3): a(f"s_sleep {geti('t1', 3)}")
    R = 48
    def ld():
        for i in range(4):
            a(f"buffer_load_dwordx4 {vr(R+4*i,4)}, {vL16}, {WS}, s{S_P1L} offen offset:{1024*i} sc1")
    def ck():
        for i in range(4):
            a(f"s_waitcnt vmcnt({3-i})")
            a(f"v_mfma_f32_16x16x32_bf16 v[112:115], {vr(SEL,4)}, {vr(R+4*i,4)}, {'v[112:115]' if i else 0}")
            a(f"v_xor_b32 v{T1 if i else T0}, s{S_TAG}, v{R+4*i}")
            if i: a(f"v_or_b32 v{T0}, v{T0}, v{T1}")
        a(f"v_and_b32 v{T0}, 1, v{T0}")
        a(f"v_cmp_ne_u32 vcc, 0, v{T0}")
        a(f"v_lshlrev_b32 v116, 16, v{XR}"); a(f"v_and_b32 v117, s{MASK}, v{XR}")
        a(f"s_lshl_b32 s48, s{S_W}, 3"); a("v_mov_b32 v43, s48")
    poll(a, pfx + "_r1", ld, ck, sleep=1)
    tstamp(a, opt, 5)
    rnd2(a, 112, 113, T0)
    a(f"v_mul_f32 v112, v{MC}, v112"); a(f"v_mul_f32 v113, v{MC+1}, v113")
    rnd2(a, 112, 113, T0)
    a("v_add_f32 v116, v116, v112"); a("v_add_f32 v117, v117, v113")
    rnd2(a, 116, 117, 118)
    a(f"s_lshl_b32 s49, s{S_SLOT}, 16"); a(f"s_add_u32 s50, s{S_H2O}, s49")
    a("v_readfirstlane_b32 s51, v116")
    a("s_nop 1")
    a("v_subrev_f32 v112, s51, v116"); a("v_subrev_f32 v113, s51, v117")
    a("v_add_f32 v120, v112, v113")
    a("v_mul_f32 v121, v112, v112"); a("v_fmac_f32 v121, v113, v113")
    for ror in (1, 2, 4, 8):
        a("s_nop 0")
        for r in (120, 121): a(f"v_add_f32_dpp v{r}, v{r}, v{r} row_ror:{ror} row_mask:0xf bank_mask:0xf")
    for sw in ("32", "16"):
        a("v_mov_b32 v122, v120"); a("v_mov_b32 v123, v121"); a("s_nop 0")
        a(f"v_permlane{sw}_swap_b32 v120, v122"); a(f"v_permlane{sw}_swap_b32 v121, v123")
        a("v_add_f32 v120, v120, v122"); a("v_add_f32 v121, v121, v123")
    a(f"v_mul_f32 v122, {f32bits(1/128)}, v120")
    a("v_fma_f32 v121, -v120, v122, v121")
    a("v_add_f32 v120, s51, v122")
    a(f"ds_write_b64 v43, v[120:121] offset:{L_ST}")
    a(WARM)
    a("s_waitcnt lgkmcnt(0)"); a("s_barrier")
    a(f"ds_read_b128 v[124:127], {vZero} offset:{L_ST}")
    a(f"ds_read_b128 v[128:131], {vZero} offset:{L_ST+16}")
    a(WARM)
    a("s_waitcnt lgkmcnt(0)")
    a("v_add_f32 v120, v124, v126"); a("v_add_f32 v121, v128, v130"); a("v_add_f32 v120, v120, v121")
    a("v_mul_f32 v120, 0.25, v120")
    a("v_add_f32 v122, v125, v127"); a("v_add_f32 v123, v129, v131"); a("v_add_f32 v122, v122, v123")
    for r in (124, 126, 128, 130): a(f"v_sub_f32 v{r}, v{r}, v120")
    a("v_mul_f32 v123, v124, v124")
    for r in (126, 128, 130): a(f"v_fmac_f32 v123, v{r}, v{r}")
    a(f"v_mul_f32 v122, {f32bits(1/512)}, v122")
    a("v_fmac_f32 v122, 0.25, v123")
    rnd1(a, 120); rnd1(a, 122)
    a(f"v_add_f32 v122, {f32bits(1e-5)}, v122"); rnd1(a, 122)
    a("v_sqrt_f32 v122, v122")
    a("v_sub_f32 v112, v116, v120"); a("v_sub_f32 v113, v117, v120")
    rnd1(a, 122)
    a("v_rcp_f32 v122, v122")
    rnd2(a, 112, 113, T0)
    a("v_mul_f32 v112, v112, v122"); a("v_mul_f32 v113, v113, v122")
    rnd2(a, 112, 113, T0)
    a(f"v_mul_f32 v112, v112, v{MC+2}"); a(f"v_mul_f32 v113, v113, v{MC+3}")
    rnd2(a, 112, 113, T0)
    a(f"v_add_f32 v112, v112, v{MC+4}"); a(f"v_add_f32 v113, v113, v{MC+5}")
    a(f"v_cvt_pk_bf16_f32 v{T0}, v112, v113")
    a(f"buffer_store_dword v{T0}, {vCol}, {WS}, s50 offen{st}")
    a(f"buffer_store_dword v118, {vCol}, {WS}, s50 offen offset:1024{st}")
    tstamp(a, opt, 6)
    a(f"s_lshl_b32 s48, s{S_PSLOT}, 16"); a(f"s_add_u32 s48, s{S_H2O}, s48")
    a("v_mov_b32 v42, -1"); a("v_mov_b32 v43, -1")
    a(f"buffer_store_dword v42, {vCol}, {WS}, s48 offen{st}")
    a(f"buffer_store_dword v42, {vCol}, {WS}, s48 offen offset:1024{st}")
    a(f"s_cmp_ge_u32 s{S_SEG}, {XS}")
    a(f"s_cselect_b32 s48, {NT + 2 if 'g2t' in opt else NT}, {NT}")
    a(f"s_add_u32 s{S_NXT}, s{S_SEG}, s48")
    a(f"s_cmp_ge_u32 s{S_H}, 28")
    a(f"s_cbranch_scc1 {pfx}_noffn")
    HR = 48
    a(f"s_add_u32 s50, s{S_H2B}, s49")
    def ld():
        for i in range(8):
            a(f"s_add_u32 s48, s50, {i*8192}")
            a(f"buffer_load_dwordx4 {vr(HR+4*i,4)}, {vHg}, {WS}, s48 offen sc1")
    def ck():
        for i in range(8):
            a(f"s_waitcnt vmcnt({7-i})")
            a(f"ds_write_b128 {vHw}, {vr(HR+4*i,4)} offset:{(i//4)*RTS + (i%4)*64}")
            if i: a(f"v_max_u32 v{T0}, v{T0 if i > 1 else HR}, v{HR+4*i}")
        a(f"v_cmp_eq_u32 vcc, -1, v{T0}")
    if geti("t2", 2): a(f"s_sleep {geti('t2', 2)}")
    poll(a, pfx + "_h2", ld, ck, sleep=2)
    tstamp(a, opt, 7)
    a("s_waitcnt lgkmcnt(0)"); a("s_barrier")
    HB = lambda rt, ks: 80 + ((ks % 4) * 2 + rt) * 4
    lq0 = LQ()
    def rd(lq, ks):
        for rt in range(2):
            a(f"ds_read_b128 {vr(HB(rt, ks),4)}, {vHr} offset:{rt*RTS + ks*FS}"); lq.issue(ks)
    for ks in range(3): rd(lq0, ks)
    prefetch(a, pfx + "_pf1", S_NXT, body=False)
    for withpf in (True, False):
        lq = LQ(); lq.q = list(lq0.q)
        pl = pf_list() if withpf else []
        for ks in range(16):
            a(lq.wait(ks))
            n = 0
            for rt in range(2):
                for m in range(2):
                    d = vr(112 + (rt * 2 + m) * 4, 4)
                    a(f"v_mfma_f32_16x16x32_bf16 {d}, {GF(m, ks)}, {vr(HB(rt, ks),4)}, {d if ks else 0}")
                    if n == 0 and ks + 3 < 16: rd(lq, ks + 3)
                    if n == 2 and pl:
                        for x in pl.pop(0): a(x)
                    n += 1
        if withpf:
            a(f"s_branch {pfx}_gud")
            a.label(pfx + "_pf1_skip")
    a.label(pfx + "_gud")
    a(f"s_lshl_b32 s48, s{S_SLOT}, 17"); a(f"s_add_u32 s48, s{S_ACTW}, s48"); a(f"s_add_u32 s50, s48, {56*1024}")
    a("s_nop 0")
    for rt in range(2):
        g0 = 112 + rt * 8; u0 = g0 + 4
        for j in (0, 2): rnd2(a, g0 + j, g0 + j + 1, T0)
        for j in (0, 2): rnd2(a, u0 + j, u0 + j + 1, T0)
        for j in range(4): a(f"v_mul_f32 v{g0+j}, v{g0+j}, v{u0+j}")
        a(f"v_cvt_pk_bf16_f32 v{128+2*rt}, v{g0}, v{g0+1}"); a(f"v_cvt_pk_bf16_f32 v{129+2*rt}, v{g0+2}, v{g0+3}")
        a(f"buffer_store_dwordx2 {vr(128+2*rt,2)}, {vL16}, {WS}, s{(48, 50)[rt]} offen{st}")
    a(f"s_lshl_b32 s48, s{S_PSLOT}, 17"); a(f"s_add_u32 s48, s{S_ACTW}, s48"); a(f"s_add_u32 s50, s48, {56*1024}")
    a(f"buffer_store_dwordx2 v[42:43], {vL16}, {WS}, s48 offen{st}")
    a(f"buffer_store_dwordx2 v[42:43], {vL16}, {WS}, s50 offen{st}")
    if geti("t3", 2): a(f"s_sleep {geti('t3', 2)}")
    a(f"s_branch {pfx}_E")
    a.label(pfx + "_noffn")
    prefetch(a, pfx + "_pf2", S_NXT)
    a("s_sleep 32")
    a.label(pfx + "_E")
    tstamp(a, opt, 8)
    AR = 48
    a(f"s_lshl_b32 s50, s{S_SLOT}, 17"); a(f"s_add_u32 s50, s{S_ACTR}, s50")
    a(f"s_lshl_b32 s49, s{S_SLOT}, 16"); a(f"s_add_u32 s49, s{S_X2R}, s49")
    def ld():
        a(f"buffer_load_dword v41, {vX2g}, {WS}, s49 offen sc1")
        for i in range(14):
            if i % 4 == 0: a(f"s_add_u32 s48, s50, {(i//4)*4096}")
            a(f"buffer_load_dwordx4 {vr(AR+4*i,4)}, {vL16}, {WS}, s48 offen offset:{1024*(i%4)} sc1")
    def ck():
        for i in range(14):
            a(f"s_waitcnt vmcnt({13-i})")
            for t in range(2):
                d = vr(112 + 4 * t, 4)
                a(f"v_mfma_f32_16x16x32_bf16 {d}, {DF(t, i)}, {vr(AR+4*i,4)}, {d if i else 0}")
            a(f"v_max3_u32 v{T0}, v{T0 if i else 41}, v{AR+4*i}, v{AR+4*i+2}")
        a(f"v_cmp_eq_u32 vcc, -1, v{T0}")
        a(f"v_lshlrev_b32 v124, 16, v41"); a(f"v_and_b32 v125, s{MASK}, v41")
    poll(a, pfx + "_act", ld, ck, sleep=2)
    tstamp(a, opt, 9)
    a("s_nop 2")
    a(f"ds_write_b128 {vEw}, v[112:115]"); a(f"ds_write_b128 {vEw}, v[116:119] offset:1024")
    a(WARM)
    a("s_waitcnt lgkmcnt(0)"); a("s_barrier")
    for w in range(4): a(f"ds_read_b64 {vr(112+2*w,2)}, {vEr} offset:{2048*w}")
    a(WARM)
    a("s_waitcnt lgkmcnt(0)")
    a("v_add_f32 v112, v112, v114"); a("v_add_f32 v113, v113, v115"); a("v_add_f32 v116, v116, v118"); a("v_add_f32 v117, v117, v119")
    a("v_add_f32 v112, v112, v116"); a("v_add_f32 v113, v113, v117")
    rnd2(a, 112, 113, T0)
    a(f"v_mul_f32 v112, v{MC+6}, v112"); a(f"v_mul_f32 v113, v{MC+7}, v113")
    rnd2(a, 112, 113, T0)
    a("v_add_f32 v112, v124, v112"); a("v_add_f32 v113, v125, v113")
    a(f"v_cvt_pk_bf16_f32 v{T0}, v112, v113")
    a(f"buffer_store_dword v{T0}, {vEo}, {sr(S_O,4)}, s{S_OUT} offen{' sc1' if 'osc1' in opt else (' nt' if 'ont' in opt else '')}")
    tstamp(a, opt, 10)
    a(f"s_mov_b32 s{S_SEG}, s{S_NXT}")
    seg_addrs(a)
    a(f"s_xor_b32 s{S_TAG}, s{S_TAG}, 1")
    a(f"s_mov_b32 s{S_PSLOT}, s{S_SLOT}")
    a(f"s_add_u32 s{S_SLOT}, s{S_SLOT}, 1")
    a(f"s_cmp_ge_u32 s{S_SLOT}, 3")
    a(f"s_cselect_b32 s{S_SLOT}, 0, s{S_SLOT}")
    a(f"s_cmp_lt_u32 s{S_SEG}, s{S_LIM}")
    a(f"s_cbranch_scc1 {pfx}_loop")
    a(f"s_branch {pfx}_fin")
    while DEFER: DEFER.pop(0)()
    a.label(pfx + "_fin")
    a("s_waitcnt vmcnt(0)")
    if "time" in opt: a("v_mov_b32 v143, v47")

def emit_post(a, opt):
    import mega, pre
    set_xs(opt)
    a(f"s_mov_b32 s{MASK}, 0xffff0000")
    emit_post_weights(a, opt)
    if "time" in opt: a("s_memrealtime s[84:85]")
    emit_post_final(a, opt)
    if "time" in opt: a("s_memrealtime s[86:87]")
    a(f"s_cmp_lg_u32 s{S_MODE}, 0")
    a("s_cbranch_scc1 T_slow")
    emit_post_loop(a, True, "TF", opt)
    a("s_branch L_done")
    a.label("T_slow")
    emit_post_loop(a, False, "TS", opt)
```

```python
from common import *
import math, struct

L_MEM = 0
L_K   = 8192
L_V   = 16384
L_QK  = 24576
L_OS  = 28672
L_SEL = 30720
L_JUNK= 31744
L_MISC= 32256
L_WO  = 32768

S_STEP = 16
S_PST = 17
S_PLD = 19
S_MRD, S_MWR, S_MPO = 22, 23, 24
S_KX, S_VX, S_KVM = 25, 26, 27
S_TAG, S_PMAX, S_PC = 28, 29, 30
S_SC = 31
S_PTR = 32
S_T0, S_T1, S_T2, S_T3 = 48, 49, 50, 51
S_OWN = 52
S_WOB = 53
S_WOL = 54
S_STAMP = 60

vFl = "v0"
vL16w, vL16, vXw, vXr, vOw, vWo, vPs, vMp, vIdx = ["v%d" % i for i in range(1, 10)]
vPl = vL16
vZ = "v[10:11]"
vT0, vT1 = "v12", "v13"
vFx = ["v28", "v29", "v30"]
SX0, SX1, SM = 16, 20, 24
vM = "v31"
FA, FB = 32, 120
F = [32 + 4 * i for i in range(8)]
ACC = {("q", 0): 64, ("q", 1): 68, ("k", 0): 72, ("k", 1): 76, ("v", 0): 80, ("v", 1): 84}
QF = [88 + 4 * i for i in range(4)]
KF = [104 + 4 * i for i in range(4)]
KXR = {(0, 0): 32, (1, 0): 24, (0, 1): 104, (1, 1): 108, (0, 2): 112, (1, 2): 116, (0, 3): 120, (1, 3): 124}
VX = [64, 72]
MI = {"q": 0, "k": 1, "v": 2}

def wreg(m, t, sig, off=0, n=8):
    idx = ((MI[m] * 2 + t) * 8 + sig) * 8 + off
    if idx < 256: return ar(idx, n)
    return vr(128 + idx - 256, n)

def smf(m, t, sig, own=FA):
    f = own + 4 * sig if sig < 2 else F[sig]
    return f"v_smfmac_f32_16x16x64_bf16 {vr(ACC[(m,t)],4)}, {vr(f,4)}, {wreg(m,t,sig)}, {vIdx}"

S_HAVE, S_FLG, S_KVC = 55, 56, 26
S_SC2, S_OM = 58, 46
def emit_rec_init(a, sh, ptr):
    LE = lambda *x, **k: lane_expr(a, *x, tmp="v31", **k)
    WS = sr(S_WS, 4)
    srd(a, S_T, ptr, 8192)
    LE("v16", "v0", [(4, 1, 10), (0, 2, 2), (5, 1, 1)])
    sexpr(a, 48, [(sh, 1, 2, 11), (sh, 3, 2, 8), (S_W, 0, 2, 6), (sh, 0, 1, 4)])
    a(f"buffer_load_ushort v17, v16, {sr(S_T,4)}, s48 offen")
    a(f"buffer_load_ushort v18, v16, {sr(S_T,4)}, s48 offen offset:32")
    LE("v20", "v0", [(0, 6, 4)])
    LE("v21", "v0", [(4, 1, 5), (0, 2, 3), (5, 1, 2), (2, 2, 30)])
    for i in range(4): a(f"v_mov_b32 v{24+i}, 0")
    a("v_mov_b32 v19, -1")
    sexpr(a, 48, [(sh, 0, 5, 13), (S_W, 0, 2, 11)], WS_PART)
    a(f"buffer_store_dwordx4 v[24:27], v20, {WS}, s48 offen sc1")
    a(f"buffer_store_dwordx4 v[24:27], v20, {WS}, s48 offen offset:1024 sc1")
    sexpr(a, 50, [(sh, 3, 2, 11), (S_W, 0, 2, 9), (sh, 0, 1, 8), (sh, 1, 2, 6)], WS_MEM)
    for sl in (1, 2):
        a(f"s_add_u32 s48, s50, {8192*sl}")
        a(f"buffer_store_dword v19, v21, {WS}, s48 offen sc1")
    a("s_waitcnt vmcnt(4)")
    a("v_lshl_or_b32 v17, v18, 16, v17")
    a(f"buffer_store_dword v17, v21, {WS}, s50 offen sc1")

def emit_rec_setup(a, pfx="R", own_init=True, opt=(), inline=None):
    st = " sc1"
    LE = lambda *x, **k: lane_expr(a, *x, tmp="v31", **k)
    a.c("==== recurrence role: s14 = head, s15 = wave ====")
    q = VmQ(a)
    if own_init:
        emit_rec_init(a, S_H, S_PTR + 2)
        a("s_waitcnt vmcnt(0)")
        dbg_arrive(a, D_RTB)
        a("s_waitcnt vmcnt(0)")

    D = [32, 33, 34, 35]
    E = [36, 37, 38, 39]
    LE("v28", "v0", [(5, 1, 5)])
    LE("v29", "v0", [(0, 4, 4)])
    a("v_xor_b32 v28, v28, v29")
    LE("v30", "v0", [(4, 2, 13)])
    a(f"v_add_u32 v{D[0]}, v28, v30")
    a(f"v_xor_b32 v{D[1]}, 64, v{D[0]}")
    a(f"v_xor_b32 v{D[2]}, 128, v{D[0]}")
    a(f"v_xor_b32 v{D[3]}, 192, v{D[0]}")
    sexpr(a, S_T2, [(S_H, 0, 5, 8), (S_W, 0, 2, 18)])
    sexpr(a, S_T3, [(S_W, 0, 2, 13)], L_WO)

    def dma_chunk(a, q, n):
        m, ch = divmod(n, 4)
        if ch == 0:
            srd(a, S_T, S_PTR + 4 + 2 * m, 4194304)
        for i in range(8):
            a(f"s_add_u32 m0, s{S_T3}, {ch * 32768 + i * 1024}")
            if m < 3:
                a(f"s_add_u32 s{S_T0}, s{S_T2}, {hex((128 * ch + 4 * i) * 8192)}")
                a(f"buffer_load_dwordx4 v{D[(i & 1) + 2 * ((i >> 2) & 1)]}, {sr(S_T,4)}, s{S_T0} offen lds")
            else:
                a(f"s_add_u32 s{S_T0}, s{S_WOB}, {hex(4 * i * 1024 + ch * 256)}")
                a(f"buffer_load_dwordx4 v{E[(i & 1) + 2 * ((i >> 2) & 1)]}, {sr(S_T,4)}, s{S_T0} offen lds")
        q.issue(("d", n), 8)

    if "time" in opt: a("s_memrealtime s[76:77]")
    srd(a, S_T, S_PTR + 4, 4194304)
    a(f"s_mov_b32 m0, s{S_T3}"); a(f"s_mov_b32 s{S_T0}, s{S_T2}")
    a("s_movk_i32 s16, 0x400"); a("s_mov_b32 s17, 0x8000"); a("s_mov_b32 s18, 4")
    a.label(pfx + "_d0")
    for i in range(8):
        a(f"buffer_load_dwordx4 v{D[(i & 1) + 2 * ((i >> 2) & 1)]}, {sr(S_T,4)}, s{S_T0} offen lds")
        a("s_add_u32 m0, m0, s16"); a(f"s_add_u32 s{S_T0}, s{S_T0}, s17")
    a(f"s_add_u32 m0, m0, {32768 - 8192}"); a(f"s_add_u32 s{S_T0}, s{S_T0}, {hex(96 * 8192)}")
    a("s_sub_u32 s18, s18, 1"); a("s_cmp_lg_u32 s18, 0"); a(f"s_cbranch_scc1 {pfx}_d0")
    for n in range(4): q.issue(("d", n), 8)
    if inline:
        a(f"s_branch {pfx}_cont")
        inline()
        a.label(pfx + "_cont")
    sexpr(a, S_WOB, [(S_H, 0, 5, 17), (S_W, 0, 2, 15)])
    LE(vL16w, "v0", [(0, 6, 4), (6, 2, 11)])
    LE(vL16, "v0", [(0, 6, 4)])
    LE(vXw, "v0", [(6, 2, 10), (0, 4, 5), (4, 2, 3)], L_QK)
    LE("v16", "v0", [(2, 2, 3)])
    a(f"v_xor_b32 {vXw}, {vXw}, v16")
    LE(vXr, "v0", [(0, 6, 3)], L_QK)
    LE("v16", "v0", [(4, 2, 3)])
    a(f"v_xor_b32 {vXr}, {vXr}, v16")
    LE(vOw, "v0", [(6, 2, 9), (5, 1, 8), (2, 2, 6), (0, 1, 5), (4, 1, 4)], L_OS)
    LE("v16", "v0", [(5, 1, 8), (2, 2, 6), (0, 1, 5), (4, 1, 4)], L_JUNK)
    a("v_and_b32 v17, 2, v0")
    a("v_cmp_ne_u32 vcc, 0, v17")
    a("s_nop 1")
    a(f"v_cndmask_b32 {vOw}, {vOw}, v16, vcc")
    for r in (10, 11, 14, 15): a(f"v_mov_b32 v{r}, 0")
    LE(vWo, "v0", [(6, 2, 15), (0, 6, 4)], L_WO)
    LE(vPs, "v0", [(4, 2, 14), (3, 1, 13), (0, 3, 3)])
    LE(vMp, "v0", [(4, 1, 5), (0, 2, 3), (5, 1, 2), (2, 2, 30)])
    a(f"v_and_b32 v16, 1, v0")
    a(f"v_mul_u32_u24 {vIdx}, 0xaaaa, v16")
    a(f"v_add_u32 {vIdx}, 0x4444, {vIdx}")
    a("v_and_b32 v16, 3, v0")
    a("v_bfe_u32 v17, v0, 2, 2")
    a("v_mov_b32 v18, 0x3f80")
    a("v_mov_b32 v19, 0x3f800000")
    a("v_cmp_eq_u32 vcc, 1, v16")
    a("s_nop 1")
    a("v_cndmask_b32 v18, v18, v19, vcc")
    a("v_cmp_gt_u32 vcc, 2, v16")
    a("s_nop 1")
    a("v_cndmask_b32 v18, 0, v18, vcc")
    for d in range(4):
        a(f"v_cmp_eq_u32 vcc, {d}, v17")
        a("s_nop 1")
        a(f"v_cndmask_b32 v{20+d}, 0, v18, vcc")
    a(f"ds_write_b128 {vL16}, v[20:23] offset:{L_SEL}")
    for tau in range(2):
        sexpr(a, S_PST + tau, [(S_W, 0, 2, 16), (S_H, 0, 5, 6)], WS_PART + tau * 4096)
    sexpr(a, S_PLD, [(S_H, 0, 5, 13), (S_W, 0, 2, 11)], WS_PART)
    sexpr(a, S_OWN, [(S_H, 3, 2, 11), (S_W, 0, 2, 9), (S_H, 0, 1, 8), (S_H, 1, 2, 6)])
    a(f"s_mov_b32 s{S_MRD}, {hex(WS_MEM)}")
    a(f"s_add_u32 s{S_MPO}, s{S_OWN}, {hex(WS_MEM)}")
    a(f"s_add_u32 s{S_MWR}, s{S_OWN}, {hex(WS_MEM + 8192)}")
    a(f"s_mul_i32 s{S_T0}, s{S_H}, {HSTR}")
    sexpr(a, S_KX, [(S_W, 0, 2, 12)], WS_KV)
    a(f"s_add_u32 s{S_KX}, s{S_KX}, s{S_T0}")
    a(f"s_mul_i32 s{S_T0}, s{S_H}, {MSTR}")
    sexpr(a, S_KVM, [(S_W, 0, 2, 10)], WS_KM)
    a(f"s_add_u32 s{S_KVM}, s{S_KVM}, s{S_T0}")
    a(f"s_mov_b32 s{S_STEP}, 0")
    a(f"s_mov_b32 s{S_TAG}, 1")
    a(f"s_mov_b32 s{S_PMAX}, 100000")
    sc = (128 ** -0.5) * math.log2(math.e)
    a(f"s_mov_b32 s{S_SC}, {hex(struct.unpack('<I', struct.pack('<f', sc))[0])}")

    a(f"s_mov_b32 s{S_SC2}, s{S_SC}"); a(f"s_mov_b32 s{S_SC2+1}, s{S_SC}")
    a(f"s_mov_b32 s{S_OM}, 0x33333333"); a(f"s_mov_b32 s{S_OM+1}, 0x33333333")
    LE("v28", "v0", [(4, 1, 5)])
    LE("v29", "v0", [(0, 4, 4)])
    a("v_xor_b32 v28, v28, v29")
    LE("v30", "v0", [(4, 2, 10)])
    a(f"v_add_u32 v{E[0]}, v28, v30")
    a(f"v_xor_b32 v{E[1]}, 64, v{E[0]}")
    a(f"v_xor_b32 v{E[2]}, 128, v{E[0]}")
    a(f"v_xor_b32 v{E[3]}, 192, v{E[0]}")
    TR = [40, 41]
    LE("v28", "v0", [(2, 1, 12), (5, 1, 11), (4, 1, 9), (3, 1, 10), (0, 1, 3)])
    LE("v29", "v0", [(6, 2, 6), (1, 1, 4)])
    LE("v30", "v0", [(4, 1, 5), (3, 1, 6), (2, 1, 7)])
    a("v_xor_b32 v29, v29, v30")
    a(f"v_add_u32 v{TR[0]}, v28, v29")
    a(f"v_xor_b32 v{TR[1]}, 32, v{TR[0]}")

    done = pfx + "_wdone"
    for w in range(4):
        if w < 3:
            a(f"s_cmp_lg_u32 s{S_W}, {w}")
            a(f"s_cbranch_scc1 {pfx}_wl{w+1}")
        qq = q.clone()
        for n in range(13):
            if n < 12:
                qq.wait(("d", n))
            a("s_barrier")
            if "time" in opt and n in (0, 4, 8): a(f"s_memrealtime s[{78+n//2}:{79+n//2}]")
            if 0 < n and n + 3 < 16: dma_chunk(a, qq, n + 3)
            if not own_init and n == max([int(o[2:]) for o in opt if o.startswith("cn")] + [0] or [0]) + 6 and w == 0:
                claim(a)
            if not own_init and n == 11:
                a(f"v_lshrrev_b32 v122, 2, {vL16}")
            if not own_init and n == 12 and w == 0:
                a(f"s_mov_b32 exec_lo, 1"); a(f"s_mov_b32 exec_hi, {1 << (D_LN1 - 32)}")
                a(f"global_load_dword v123, v122, {sr(S_DBG,2)} sc1")
                a("s_mov_b64 exec, -1")
                a("s_waitcnt vmcnt(0)")
                a(f"ds_write_b32 v122, v123 offset:{L_JUNK}")
                a("s_waitcnt lgkmcnt(0)")
            if n == 12: break
            m, ch = divmod(n, 4)
            mn = "qkv"[m]
            a(f"v_add_u32 v26, {L_WO + ch * 32768}, v{TR[0]}")
            a(f"v_add_u32 v27, {L_WO + ch * 32768}, v{TR[1]}")
            for k2 in range(2):
                sig = (2 * ch + k2) ^ (2 * w)
                for t in range(2):
                    for p in range(4):
                        off = (64 * k2 + 32 * (p // 2) + (p % 2)) * 256
                        a(f"ds_read_b64_tr_b16 {wreg(mn, t, sig, 2 * p, 2)}, v{26+t} offset:{off}")
            a("s_waitcnt lgkmcnt(0)")
        if w < 3:
            a(f"s_branch {done}")
            a.label(f"{pfx}_wl{w+1}")
    a.label(done)
    LE("v24", "v0", [(4, 1, 12), (5, 1, 11), (3, 1, 10), (2, 1, 8), (6, 2, 15), (1, 1, 4), (0, 1, 3),
                     (2, 1, 5), (3, 1, 6), (4, 1, 7)], L_WO)
    a("s_waitcnt vmcnt(0)")
    if not own_init:
        sexpr(a, S_FLG, [(S_H, 0, 5, 7)], WS_FLAG)
    a("s_barrier")
    if not own_init:
        a(f"buffer_load_dword v119, {vMp}, {sr(S_WS,4)}, s{S_FLG} offen sc1")
        a(f"ds_read_b32 v123, v122 offset:{L_JUNK}")
        if "cp2" in opt:
            a("s_getpc_b64 s[50:51]")
            a.label("R_pcref")
            a("s_add_u32 s50, s50, R_fast - R_pcref")
            a("s_addc_u32 s51, s51, 0")
            a(f"v_lshlrev_b32 v120, 3, {vL16}")
            a("global_load_dword v121, v120, s[50:51]")
    for ks in range(2):
        for tau in range(2):
            for b in range(4):
                a(f"v_xor_b32 v25, {128 * tau + 32 * b}, v24")
                base = 32 + (tau * 4 + b) * 8
                for p in range(4):
                    off = (64 * ks + 32 * (p // 2) + 2 * (p % 2)) * 256
                    a(f"ds_read_b64_tr_b16 {vr(base + 2 * p, 2)}, v25 offset:{off}")
        a("s_waitcnt lgkmcnt(0)")
        for i in range(16):
            a(f"ds_write_b128 {vWo}, {vr(32 + 4 * i, 4)} offset:{ks * 16384 + i * 1024}")
        a("s_waitcnt lgkmcnt(0)")
    if own_init: dbg_wait(a, D_RTB, 128, sleep=8)
    else: verify_claim(a, 2 if 'cp2' in opt else 1, L_MISC)

def kv_wait(a, need_sreg_or_imm, tag):
    l = a.uid(tag)
    need = need_sreg_or_imm
    a(f"s_cmp_ge_u32 s{S_HAVE}, {need}")
    a(f"s_cbranch_scc1 {l}_ok")
    a(f"s_mov_b32 s{S_PC}, 0")
    a.label(l)
    a(f"buffer_load_dword v119, {vMp}, {sr(S_WS,4)}, s{S_FLG} offen sc1")
    a("s_waitcnt vmcnt(0)")
    a(f"v_readlane_b32 s{S_HAVE}, v119, 0")
    a(f"v_readlane_b32 s{S_T0}, v119, 2")
    a("s_nop 1")
    a(f"s_min_u32 s{S_HAVE}, s{S_HAVE}, s{S_T0}")
    a(f"s_cmp_ge_u32 s{S_HAVE}, {need}")
    a(f"s_cbranch_scc1 {l}_ok")
    a("s_sleep 2")
    a(f"s_add_u32 s{S_PC}, s{S_PC}, 1")
    a(f"s_cmp_lt_u32 s{S_PC}, s{S_PMAX}")
    a(f"s_cbranch_scc1 {l}")
    a(f"s_mov_b32 s{S_PMAX}, 1")
    a.label(l + "_ok")

def emit_rec_mega(a, opt, inline=None):
    import mega
    a(f"s_load_dwordx16 {sr(S_PTR,16)}, s[0:1], 0")
    a("s_waitcnt lgkmcnt(0)")
    emit_rec_setup(a, own_init=False, opt=opt, inline=inline)
    if "time" in opt: a("s_memrealtime s[84:85]")
    a(f"v_readlane_b32 s{S_T2}, v123, {D_LN1}")
    a(f"v_readlane_b32 s{S_T3}, v123, 0")
    a("s_waitcnt vmcnt(0)")
    a(f"v_readlane_b32 s{S_HAVE}, v119, 0")
    a(f"v_readlane_b32 s{S_T0}, v119, 2")
    a("s_nop 1")
    a(f"s_min_u32 s{S_HAVE}, s{S_HAVE}, s{S_T0}")
    a(f"s_mov_b32 s57, s{S_T3}")
    a(f"s_cmp_ge_u32 s{S_T2}, {N_LN1}")
    a("s_cbranch_scc1 R_lnok")
    a(f"s_mov_b32 s{S_HAVE}, 0")
    a(f"s_mov_b32 s{S_PC}, 0")
    a.label("R_lnw")
    a(f"global_load_dword v123, v122, {sr(S_DBG,2)} sc1")
    a("s_waitcnt vmcnt(0)")
    a(f"v_readlane_b32 s{S_T2}, v123, {D_LN1}")
    a("s_nop 1")
    a(f"s_cmp_ge_u32 s{S_T2}, {N_LN1}")
    a("s_cbranch_scc1 R_lnok")
    a("s_sleep 32")
    a(f"s_add_u32 s{S_PC}, s{S_PC}, 1")
    a(f"s_cmp_lt_u32 s{S_PC}, s{S_PMAX}")
    a("s_cbranch_scc1 R_lnw")
    a.label("R_lnok")
    kv_wait(a, 2, "kvw")
    if "time" in opt: a("s_memrealtime s[86:87]")
    if "fakexcc" not in opt and "slow" not in opt:
        a("s_cmp_eq_u32 s57, -1")
        a("s_cbranch_scc1 R_fast")
    mega.emit_mode(a, opt, "R_slow")
    a.label("R_fast")
    ropt = list(opt) + ["mega", "oexec", "f1s", "o01", "lad", "de2", "la1", "lb4", "lc4", "ma1", "mb3", "mc4", "ga2", "gb5", "c112", "b15", "db4", "dc2"]
    emit_rec(a, fast=True, pfx="RF", opt=ropt)
    a("s_branch L_done")
    a.label("R_slow")
    emit_rec(a, fast=False, pfx="RS", opt=ropt)

def emit_rec(a, fast=True, stamps=False, nsteps=64, pfx="R", warm=True, opt=()):
    st = "" if fast else " sc1"
    def geti(p, d):
        for o in opt:
            if o.startswith(p) and o[len(p):].isdigit(): return int(o[len(p):])
        return d
    nst = [0]
    tr0 = geti("tr", -1)
    slotno = [0]
    def stamp(force=False):
        if stamps and (tr0 < 0 or force):
            a(f"s_memtime {sr(S_STAMP + 2 * nst[0], 2)}"); nst[0] += 1
    if "mega" not in opt: emit_rec_setup(a, pfx)

    lq = LQ()
    rms = [o[3:] for o in opt if o.startswith("rm:")]
    def emit(x):
        txt = x if isinstance(x, str) else x[0]
        if isinstance(x, str) and any(r in txt for r in rms): return
        if x == "STAMP": stamp()
        elif isinstance(x, tuple):
            if x[0] == "w":
                wt = lq.wait(x[1])
                if isinstance(x[1], tuple) and x[1][0] == "Fw": assert wt.endswith("(0)")
                a(wt)
            elif x[0] == "L": a.label(x[1])
            else:
                a(x[0]); lq.issue(x[1])
        else: a(x)
    def run(seq, count=True):
        for m, fill in seq:
            if m: a(m)
            if tr0 >= 0 and count and tr0 <= slotno[0] + 12 < tr0 + geti("tn", 13): stamp(True)
            if count: slotno[0] += 1
            for f in fill: emit(f)

    kvd = [f"buffer_load_dwordx4 {vL16}, {sr(S_WS,4)}, s{S_KX} offen offset:{1024*i} sc1 lds" for i in range(4)] + [f"s_add_u32 s{S_KX}, s{S_KX}, 16384"]
    zero16 = lambda r: f"v_mfma_f32_32x32x8_bf16 {vr(r,16)}, {vZ}, {vZ}, 0"
    zero4 = lambda r: f"v_mfma_f32_16x16x16_bf16 {vr(r,4)}, {vZ}, {vZ}, 0"
    def gather(sig):
        return f"buffer_load_dwordx4 {vr(F[sig],4)}, {vL16w}, {sr(S_WS,4)}, s{S_MRD} offen offset:{1024*sig} sc1"
    def fx():
        for i in range(3): a(f"v_xor_b32 {vFx[i]}, {2048 * (i + 1)}, {vL16w}")
    S_MK, S_MV = S_T2, S_T3
    sexpr(a, S_MK, [(S_W, 0, 2, 11)], L_K)
    sexpr(a, S_MV, [(S_W, 0, 2, 11)], L_V - 2048)
    mk, mv = f"s_mov_b32 m0, s{S_MK}", f"s_mov_b32 m0, s{S_MV}"
    for x in [mk, "s_nop 0"] + kvd[:2] + [mv, "s_nop 0"] + kvd[2:] + [mk]: a(x)
    a(f"s_sub_u32 s{S_KVM}, s{S_KVM}, 4096")
    a(f"s_add_u32 s{S_T0}, s{S_KVM}, {65*4096}")
    a(f"s_mov_b32 s{S_KVC}, s{S_T0}")
    if "nokv" in opt: kvd = ["s_nop 0"] * 5
    a(zero16(64)); a(zero16(80))
    fx()
    a(f"s_mov_b32 s{S_PC}, 0")
    if stamps or "nost" in opt or "time" in opt:
        a("s_memrealtime s[96:97]"); a("s_memtime s[98:99]")
    if "rstat" in opt:
        for r in range(60, 64): a(f"s_mov_b32 s{r}, 0")
    for sl in (1, 2):
        a(f"s_add_u32 s{S_T0}, s{S_MRD}, {8192*sl}")
        for n in range(2): a(f"buffer_load_dwordx4 v[96:99], {vL16w}, {sr(S_WS,4)}, s{S_T0} offen offset:{1024*n} sc1")
    for n in range(2): a(f"buffer_load_dwordx4 v[96:99], {vPl}, {sr(S_WS,4)}, s{S_PLD} offen offset:{1024*n} sc1")
    a(gather(1))
    a(gather(0)); a(gather(0))
    if "f1s" not in opt: a(gather(1))

    rdF = lambda sig: (f"ds_read_b128 {vr(F[sig],4)}, {vFx[sig//2-1]} offset:{L_MEM + (sig%2)*1024}", ("F", sig))
    rdKX = lambda t, ks: (f"ds_read_b128 {vr(KXR[(t,ks)],4)}, {vL16} offset:{L_K + (t*4+ks)*1024}", "KX")
    trQ = lambda ks, u: (f"ds_read_b64_tr_b16 {vr(QF[ks]+2*u,2)}, {vXr} offset:{1024*ks+512*u}", ("Q", ks))
    trK = lambda ks, u: (f"ds_read_b64_tr_b16 {vr(KF[ks]+2*u,2)}, {vXr} offset:{1024*ks+512*u}", ("K", ks))
    rdV = lambda t: (f"ds_read_b128 {vr(VX[t],4)}, {vL16w} offset:{L_V + t*1024}", "V")
    def sx(t, ks):
        d = vr([SX0, SX1][t], 4)
        return f"v_mfma_f32_16x16x32_bf16 {d}, {vr(KXR[(t,ks)],4)}, {vr(QF[ks],4)}, {d if ks else 0}"
    def sm(ks):
        d = vr(SM, 4)
        return f"v_mfma_f32_16x16x32_bf16 {d}, {vr(QF[ks],4)}, {vr(QF[ks],4)}, {d if ks else 0}"
    kvm = [f"buffer_store_dwordx4 v[12:15], {vL16}, {sr(S_WS,4)}, s{S_KVC} offen sc1", f"s_add_u32 s{S_KVM}, s{S_KVM}, 4096", f"s_mov_b32 s{S_KVC}, s{S_KVM}"]
    if "nokvm" in opt: kvm[0] = "s_nop 0"

    nc = "nocomm" in opt
    def chk(sig):
        f = F[sig]
        return [f"v_max3_u32 v16, v{f}, v{f+1}, v{f+2}", f"v_max_u32 v16, v16, v{f+3}", f"v_cmp_eq_u32 vcc, -1, v16"]
    wrF = lambda sig: (f"ds_write_b128 {vL16w}, {vr(F[sig],4)} offset:{L_MEM + 1024*sig}", ("Fw", sig))
    def gfail(sig, first_wait, redo):
        a.label(f"{pfx}_gf{sig}")
        a(f"s_waitcnt vmcnt({first_wait})")
        a.label(f"{pfx}_gr{sig}")
        if "rstat" in opt: a(f"s_add_u32 s{61+sig}, s{61+sig}, 1")
        for x in chk(sig): a(x)
        a(f"s_add_u32 s{S_PC}, s{S_PC}, 1")
        a(f"s_cbranch_vccz {pfx}_gx{sig}")
        a(gather(sig))
        a(f"s_cmp_lt_u32 s{S_PC}, s{S_PMAX}")
        a("s_waitcnt vmcnt(0)")
        a(f"s_cbranch_scc1 {pfx}_gr{sig}")
        a(f"s_mov_b32 s{S_PMAX}, 1")
        a.label(f"{pfx}_gx{sig}")
        a(wrF(sig)[0])
        for x in redo: a(x)
        a(f"s_branch {pfx}_gok{sig}")

    dirl = "dirl" in opt
    def gatherx(sig):
        va = vL16w if sig < 2 else vFx[sig // 2 - 1]
        return f"buffer_load_dwordx4 {vr(F[sig],4)}, {va}, {sr(S_WS,4)}, s{S_MRD} offen offset:{1024*(sig%2)} sc1"
    def chkx(sigs):
        if len(sigs) == 1: return [f"v_cmp_eq_u32 vcc, -1, v{F[sigs[0]]}"]
        return [f"v_max3_u32 v16, v{F[sigs[0]]}, v{F[sigs[1]]}, v{F[sigs[2]]}", "v_cmp_eq_u32 vcc, -1, v16"]
    def gfailx(nm, sigs):
        a.label(f"{pfx}_gf{nm}")
        if "rstat" in opt: a("s_add_u32 s62, s62, 1")
        for sg in sigs: a(gatherx(sg))
        a(f"s_add_u32 s{S_PC}, s{S_PC}, 1")
        a("s_waitcnt vmcnt(0)")
        for x in chkx(sigs): a(x)
        a(f"s_cbranch_vccz {pfx}_gok{nm}")
        a(f"s_cmp_lt_u32 s{S_PC}, s{S_PMAX}")
        a(f"s_cbranch_scc1 {pfx}_gf{nm}")
        a(f"s_mov_b32 s{S_PMAX}, 1")
        a(f"s_branch {pfx}_gok{nm}")
    a(f"s_branch {pfx}_gA")
    gfail(0, 0 if "f1s" in opt else 1, [zero4(64), "s_nop 5", smf("q", 0, 0)])
    if dirl:
        gfailx("a", [1]); gfailx("b", [3, 5, 7])
    else: gfail(1, 0, [])
    a.raw(".p2align 6")
    a.label(f"{pfx}_gA")
    if not nc: a(f"s_waitcnt vmcnt({1 if 'f1s' in opt else 2})")
    for x in chk(0)[:2]: a(x)
    emit(wrF(0))
    a(chk(0)[2])
    a(smf("q", 0, 0))
    if not nc: a(f"s_cbranch_vccnz {pfx}_gf0")
    a.label(f"{pfx}_gok0")
    if stamps:
        a(f"s_memtime {sr(S_STAMP, 2)}")
        a(f"s_mov_b32 s{S_STAMP+29}, s{S_PC}")
    nst[0] = 1
    kx = {k: rdKX(*k) for k in KXR}
    WB = [40, 48, 56, 32, 104, 112, 120, 96, 24]
    def rdWo(k, buf, half):
        T, ks = divmod(k, 2)
        return (f"ds_read_b128 {vr(buf + 4*half, 4)}, {vWo} offset:{ks*16384 + T*2048 + half*1024}", ("W", k))
    W = [rdWo(k, WB[k], h) for k in range(9) for h in range(2)]
    def post(acc, dst):
        return [f"v_add_f32 v{acc}, v{acc}, v{acc+1}", f"v_add_f32 v{acc+2}, v{acc+2}, v{acc+3}", f"v_cvt_pk_bf16_f32 v{dst}, v{acc}, v{acc+2}"]
    one = [f"v_mov_b32 v{28+i}, 0x3f803f80" for i in range(4)]
    pq0, pk0, pq1, pk1 = post(64, 12), post(72, 13), post(68, 14), post(76, 15)
    pv0, pv1 = post(80, 12), post(84, 14)
    tr = [trQ(ks, u) for ks in range(4) for u in range(2)]
    QK = (("q", 0), ("k", 0), ("q", 1), ("k", 1))
    ms = [smf("k", 0, 0), smf("q", 1, 0), smf("k", 1, 0), smf("v", 0, 0), smf("v", 1, 0)]
    ms += [smf(m, t, sg) for sg in (2, 4, 6, 1) for m, t in QK]
    ms += [smf(m, t, sg) for m, t in QK for sg in (3, 5, 7)]
    ms += [smf("v", t, sg) for sg in (1, 2, 3, 4, 5, 6, 7) for t in range(2)]
    ms += [sx(0, 0), sx(1, 0), sm(0), sx(0, 1), sx(1, 1), sm(1), sx(0, 2), sx(0, 3), sx(1, 2), sx(1, 3), sm(2), sm(3)]
    fl = {k: [] for k in range(1, 60)}
    hb = geti("hb", 4); c1 = geti("c1", 10); b1 = geti("b1", 6)
    f1s = "f1s" in opt
    if dirl:
        gx = (lambda sg: [gatherx(sg)]) if not nc else (lambda sg: [])
        fl[1] = gx(1); fl[2] = gx(3)
        fl[hb] += [("w", ("Fw", 0)), "s_barrier", rdF(2)]
        fl[5] += [rdF(4), rdF(6), zero4(20)] + gx(5) + [zero4(20)] + gx(7) + [("w", ("F", 2)), "STAMP"]
        rest = [kx[(0, 1)], kx[(1, 1)], kx[(0, 2)], kx[(1, 2)], kx[(0, 3)], kx[(1, 3)], kx[(1, 0)]]
        for n, x in enumerate(rest): fl[6 + n] += [x]
        fl[9] += [("w", ("F", 6))]
        fl[13] += (["s_waitcnt vmcnt(4)"] if not nc else []) + [kx[(0, 0)]]
        fl[14] += [one[3]]
        fl[15] += (["s_waitcnt vmcnt(3)"] if not nc else []) + chkx([1])
        fl[16] += ([f"s_cbranch_vccnz {pfx}_gfa"] if not nc else []) + [("L", f"{pfx}_goka")]
        fl[17] += [("w", "KX"), "s_barrier"]
        fl[19] += (["s_waitcnt vmcnt(0)"] if not nc else []) + chkx([3, 5, 7])[:1]
        fl[20] += chkx([3, 5, 7])[1:]
        fl[21] += ([f"s_cbranch_vccnz {pfx}_gfb"] if not nc else []) + [("L", f"{pfx}_gokb")]
        if not stamps: fl[21] += [f"s_cmp_eq_u32 s{S_STEP}, {nsteps-1}", f"s_cbranch_scc1 {pfx}_last"]
        x0 = 20
        last_ms = [m for m in ms[x0 + 1:47] if "v[64:67]" not in m.split(",")[0] and "v[68:71]" not in m.split(",")[0]]
        fl[22] += [kvd[0]]
        fl[23] += [one[0]]
        fl[39] += [one[1]]
    else:
        fl[geti("f1", 1)] = [gather(1)] if not nc else []
        fl[hb] += [("w", ("Fw", 0)), "s_barrier", rdF(2)]
        fl[5] += [rdF(4), rdF(6), zero4(20), kx[(0, 1)], kx[(1, 1)], zero4(20), ("w", ("F", 2)), "STAMP"]
        rest = [kx[(0, 2)], kx[(1, 2)], kx[(0, 3)], kx[(1, 3)], kx[(1, 0)], kx[(0, 0)]]
        for sl in range(6, c1):
            if len(rest) > 1: fl[sl] += [rest.pop(0)]
        fl[9] += [("w", ("F", 6))]
        if f1s:
            fl[c1] += (["s_waitcnt vmcnt(0)"] if not nc else []) + [wrF(1)]
            fl[c1 + 1] += [f"v_cmp_eq_u32 vcc, -1, v{F[1]}"]
            fl[c1 + 2] += ([f"s_cbranch_vccnz {pfx}_gf1"] if not nc else []) + [("L", f"{pfx}_gok1")]
        else:
            fl[c1] += (["s_waitcnt vmcnt(1)"] if not nc else []) + chk(1)
            fl[c1 + 1] += [wrF(1)] + ([f"s_cbranch_vccnz {pfx}_gf1"] if not nc else []) + [("L", f"{pfx}_gok1")]
        for n, x in enumerate(rest): fl[c1 + 2 + n] += [x]
        fl[c1 + b1] += [("w", "KX"), "s_barrier"]
        x0 = c1 + b1 + 1
        fl[x0] += [rdF(3), rdF(5)]; fl[x0 + 1] += [rdF(7), one[3]]
        if not stamps:
            fl[x0 - 3] += [f"s_cmp_eq_u32 s{S_STEP}, {nsteps-1}"]
            fl[x0 + 1] = [rdF(7), f"s_cbranch_scc1 {pfx}_last"]; fl[x0 + 4] += [one[3]]
        last_ms = [m for m in ms[x0 + 1:47] if "v[64:67]" not in m.split(",")[0] and "v[68:71]" not in m.split(",")[0]]
        fl[x0 + 2] += (["s_waitcnt vmcnt(0)"] if not (nc or f1s) else []) + [kvd[0]]
        fl[x0 + 3] += [one[0]]
        fl[21] += [("w", ("F", 3))]
        fl[22] += [("w", ("F", 7)), one[1]]
    if dirl:
        fl[24] += [kvd[1], "STAMP"]; fl[28] += [mv]; fl[46] += ["ONE2"]
    else:
        fl[23] += [kvd[1]]
        fl[24] += [mv, one[2], "STAMP"]
    fl[25] += kvm[:1]
    fl[26] += kvm[1:2]
    fl[27] += kvm[2:3]
    if "mega" in opt and "nofl" not in opt: fl[30] += [f"buffer_load_dword {vFl}, {vMp}, {sr(S_WS,4)}, s{S_FLG} offen sc1"]
    fl[26] += [pq0[0]]
    fl[27] += [pq0[1]]
    fl[28] += [pq0[2]]
    fl[29] += [rdV(0), pk0[0]]
    fl[30] += [pk0[1]]
    fl[31] += [pk0[2]]
    fl[32] += [rdV(1), pq1[0]]
    fl[33] += [pq1[1]]
    fl[34] += [pq1[2]]
    fl[35] += pk1
    fl[36] += [(f"ds_write2st64_b64 {vXw}, v[12:13], v[14:15] offset1:1", "Xw")]
    fl[37] += [("w", "V"), "v_mov_b32 v77, 0"]
    fl[38] += [kvd[2]]
    fl[39] = [W[0]] + fl[39]
    fl[40] += [kvd[3]]
    fl[41] += [("w", "Xw"), "s_barrier"]
    fl[42] += tr[0:2]
    fl[43] += tr[2:4]
    fl[44] += tr[4:6]
    fl[45] += tr[6:8]
    fl[46] = [W[1]] + ([one[2]] if fl[46] else [])
    fl[47] += [("w", ("Q", 3)), "STAMP"]
    fl[48] += [W[2], pv0[0]]
    fl[49] += [W[3], pv0[1]]
    fl[50] += [W[4], pv0[2]]
    fl[51] += [W[5], pv1[0]]
    fl[52] += [W[6], pv1[1]]
    fl[53] += [W[7], pv1[2]]
    fl[54] += [mk]
    fl[55] += [W[8]]
    fl[56] += [W[9]]
    fl[57] += [W[10], "v_max3_f32 v80, v16, v17, v18"]
    fl[58] += [W[11], kvd[4]]
    fl[59] += [W[12], W[13], "s_nop 1", "v_max3_f32 v82, v19, v20, v21", "v_max3_f32 v80, v80, v22, v23", "v_max_f32 v80, v80, v82", "s_nop 0"]
    slotno[0] = -11
    run([(m, fl[1 + i]) for i, m in enumerate(ms)])
    ee = lambda r: f"v_exp_f32 v{r}, v{r}"
    for x in ["v_max3_f32 v80, v80, v26, v27", "v_mov_b32 v82, v80", W[14], W[15], "v_permlane32_swap_b32 v80, v82", "v_max_f32 v80, v80, v82",
              "v_mov_b32 v82, v80", "s_nop 1", "v_permlane16_swap_b32 v80, v82", "v_max_f32 v80, v80, v82", f"v_mul_f32 v80, s{S_SC}, v80"]:
        emit(x)
    for r in (26, 16, 18, 20, 22):
        a(f"v_pk_fma_f32 {vr(r,2)}, {vr(r,2)}, {sr(S_SC2,2)}, v[80:81] op_sel_hi:[1,1,0] neg_lo:[0,0,1] neg_hi:[0,0,1]")
    stamp()
    for x in [ee(26), ee(27), ee(16), "v_cvt_pk_bf16_f32 v76, v26, v27", ee(17), "s_nop 0"]:
        emit(x)
    run([("v_mfma_f32_16x16x16_bf16 v[84:87], v[28:29], v[76:77], 0", [ee(18), "v_cvt_pk_bf16_f32 v68, v16, v17"]),
         ("v_mfma_f32_16x16x16_bf16 v[88:91], v[12:13], v[76:77], 0", [ee(19), ee(20)]),
         ("v_mfma_f32_16x16x16_bf16 v[92:95], v[14:15], v[76:77], 0", [ee(21), "v_cvt_pk_bf16_f32 v69, v18, v19", ee(22), ee(23),
            "v_cvt_pk_bf16_f32 v70, v20, v21", "v_cvt_pk_bf16_f32 v71, v22, v23", W[16], "s_nop 0"]),
         ("v_mfma_f32_16x16x32_bf16 v[84:87], v[28:31], v[68:71], v[84:87]", [W[17]]),
         (f"v_mfma_f32_16x16x32_bf16 v[88:91], {vr(VX[0],4)}, v[68:71], v[88:91]", []),
         (f"v_mfma_f32_16x16x32_bf16 v[92:95], {vr(VX[1],4)}, v[68:71], v[92:95]", ["v_rcp_f32 v20, v84", "s_nop 2"])])
    for r in range(88, 92): a(f"v_mul_f32 v{r}, v20, v{r}")
    a("v_pk_mul_f32 v[92:93], v[92:93], v[20:21] op_sel_hi:[1,0]")
    a("v_pk_mul_f32 v[94:95], v[94:95], v[20:21] op_sel_hi:[1,0]")
    for i in range(4): a(f"v_cvt_pk_bf16_f32 v{16+i}, v{88+2*i}, v{89+2*i}")
    if "oexec" in opt: a(f"s_mov_b64 exec, {sr(S_OM,2)}")
    emit((f"ds_write_b128 {vOw}, v[16:19]", "Ow"))
    if "oexec" in opt: a("s_mov_b64 exec, -1")
    stamp()
    a(zero16(64))
    if "z2" not in opt: a(zero16(80))
    for _ in range(geti("xa", 0)): a(zero4(84) if "z2" in opt else zero4(76))
    emit(("w", "Ow"))
    a("s_barrier")
    emit((f"ds_read_b128 v[16:19], {vL16} offset:{L_OS}", "O0"))
    emit((f"ds_read_b128 v[20:23], {vL16} offset:{L_OS+1024}", "O1"))
    if "z3" not in opt: a(zero16(80))
    for _ in range(geti("xb", 0)): a("v_mfma_f32_16x16x16_bf16 v[76:79], v[10:11], v[10:11], 0")
    emit(("w", "O0" if "o01" in opt else "O1"))
    stamp()
    OA = [64 + 4 * T for T in range(8)]
    buf = {k: WB[k] for k in range(9)}
    for k in range(9, 16): buf[k] = WB[k - 9]
    def wo(k):
        T, ks = divmod(k, 2)
        return f"v_smfmac_f32_16x16x64_bf16 {vr(OA[T], 4)}, {vr(16 + 4*ks, 4)}, {vr(buf[k], 8)}, {vIdx}"
    def add(T):
        o = OA[T]; return [f"v_add_f32 v{o}, v{o}, v{o+1}", f"v_add_f32 v{o+2}, v{o+2}, v{o+3}"]
    def cvt(pi):
        o0, o1 = OA[2*pi], OA[2*pi + 1]
        return [f"v_cvt_pk_bf16_f32 v{o0}, v{o0}, v{o1}", f"v_cvt_pk_bf16_f32 v{o0+1}, v{o0+2}, v{o1+2}", f"v_and_or_b32 v{o0}, v{o0}, -2, s{S_TAG}"]
    stp = lambda pi: [f"buffer_store_dwordx2 {vr(OA[2*pi],2)}, {vPs}, {sr(S_WS,4)}, s{S_PST+pi//2} offen offset:{2048*(pi%2)}{st}"]
    fill = {k: [] for k in range(16)}
    if "o01" in opt: fill[0].append(("w", "O1"))
    rest = [rdWo(k, buf[k], h) for k in range(9, 16) for h in range(2)]
    sched_rd = {0: 2, 1: 2, 2: 2, 3: 1, 4: 1, 5: 1, 6: 0, 7: 1, 8: 1, 9: 1, 10: 0, 11: 2}
    waits = {8: 11, 11: 13, 13: 14, 14: 15}
    va = {3: add(0)[:1], 4: add(0)[1:], 5: add(1) + cvt(0), 6: stp(0), 7: add(2)[:1], 8: add(2)[1:], 9: add(3) + cvt(1), 10: stp(1),
          11: add(4)[:1], 12: add(4)[1:], 13: add(5) + cvt(2), 14: stp(2), 15: add(6)}
    if "st9" in opt: va[9] += va.pop(10)
    for k, n in sched_rd.items():
        for _ in range(n): fill[k].append(rest.pop(0))
    assert not rest
    for k, fr in waits.items(): fill[k].append(("w", ("W", fr)))
    for k, v in va.items(): fill[k] += v
    SEL, RD = 96, 100
    RS = [(104, 108), (112, 120)]
    fill[15] = [(f"ds_read_b128 {vr(SEL,4)}, {vL16} offset:{L_SEL}", "SEL")] + fill[15] + ["v_mov_b32 v117, -1", f"s_mov_b32 s{S_PC}, 0", "s_nop 2"] + add(7) + cvt(3) + stp(3)
    run([(wo(k), fill[k]) for k in range(16)])
    stamp()
    if "nocomm" in opt:
        a(zero16(64)); fx(); a(zero16(80))
        if stamps:
            a(f"s_cmp_eq_u32 s{S_STEP}, {nsteps-1}")
            a(f"s_cbranch_scc1 {pfx}_end")
        a(f"s_add_u32 s{S_STEP}, s{S_STEP}, 1")
        a("s_nop 7")
        a(f"s_branch {pfx}_gA")
    def ldp(st_):
        for n in range(2): a(f"buffer_load_dwordx4 {vr(RS[st_][n],4)}, {vPl}, {sr(S_WS,4)}, s{S_PLD} offen offset:{1024*n} sc1")
    de = geti("de", 4); dl = geti("dl", 6); d2 = geti("db", 3); d3 = geti("dc", 3)
    NOP = "s_nop 7"
    a(zero16(64))
    fx()
    a(zero16(80))
    if "lad" in opt:
        for _ in range(de - 2): a(NOP)
        for k, nm in enumerate(("la", "lb", "lc")):
            a(f"s_cmp_eq_u32 s{S_W}, {k}")
            a(f"s_cbranch_scc1 {pfx}_re")
            n = geti(nm, 0)
            for _ in range(n // 2): a(NOP)
            if n % 2: a("s_nop 3")
    else:
        a(f"s_cmp_lt_u32 s{S_W}, 2")
        for _ in range(de - 2): a(NOP)
        a(f"s_cbranch_scc1 {pfx}_re")
        for _ in range(dl): a(NOP)
    a.label(f"{pfx}_re")
    ldp(0)
    for _ in range(d2): a(zero16(80))
    ldp(1)
    emit(("w", "SEL"))
    for _ in range(d3): a(zero16(80))
    def fin(st_, nm):
        r0, r1 = RS[st_]
        a.label(f"{pfx}_rc{nm}")
        if "spin" in opt and nm == "A":
            for k in range(geti("sn", 8)):
                a(f"s_getreg_b32 s{S_T0}, hwreg(HW_REG_IB_STS, 0, 4)")
                a(f"s_cmp_le_u32 s{S_T0}, {geti('sv', 3)}")
                a(zero4(92))
                a(f"s_cbranch_scc1 {pfx}_sp")
            a.label(f"{pfx}_sp")
        a("s_waitcnt vmcnt(3)")
        a(f"v_mfma_f32_16x16x32_bf16 {vr(RD,4)}, {vr(SEL,4)}, {vr(r0,4)}, 0")
        a(f"v_xor_b32 v118, s{S_TAG}, v{r0}")
        a("s_waitcnt vmcnt(2)")
        a(f"v_mfma_f32_16x16x32_bf16 v[16:19], {vr(SEL,4)}, {vr(r1,4)}, {vr(RD,4)}")
        a(f"v_xor_b32 v119, s{S_TAG}, v{r1}")
        a(f"v_or_b32 v119, v119, v118")
        a("s_nop 1")
        a(f"v_and_b32 v119, 1, v119")
        a("s_nop 0")
        a(f"v_cmp_ne_u32 vcc, 0, v119")
        a("s_nop 0")
        a("v_add_f32_dpp v16, v16, v16 row_ror:8 row_mask:0xf bank_mask:0xf")
        a("v_add_f32_dpp v17, v17, v17 row_ror:8 row_mask:0xf bank_mask:0xf")
        a("s_nop 0")
        a("v_add_f32_dpp v16, v16, v16 row_ror:4 row_mask:0xf bank_mask:0xf")
        a("v_add_f32_dpp v17, v17, v17 row_ror:4 row_mask:0xf bank_mask:0xf")
        a("v_cvt_pk_bf16_f32 v116, v16, v17")
        a(f"s_cbranch_vccnz {pfx}_rf{nm}")
    fin(0, "A")
    a.label(f"{pfx}_rok")
    stamp()
    if stamps: a(f"s_mov_b32 s{S_STAMP+28}, s{S_PC}")
    a(f"buffer_store_dword v116, {vMp}, {sr(S_WS,4)}, s{S_MWR} offen{st}")
    a(f"buffer_store_dword v117, {vMp}, {sr(S_WS,4)}, s{S_MPO} offen{st}")
    if stamps:
        a(f"s_mov_b32 s{S_STAMP+30}, s{S_STAMP+2*nst[0]}")
    stamp()
    if stamps:
        a(f"s_cmp_eq_u32 s{S_STEP}, {nsteps-1}")
        a(f"s_cbranch_scc1 {pfx}_end")
    ge = geti("ge", 5); g1 = geti("ga", 0); g2 = geti("gb", 3); g3 = geti("gc", 3)
    a(f"s_mov_b32 s{S_MPO}, s{S_MWR}")
    a(f"s_sub_u32 s{S_MRD}, s{S_MWR}, s{S_OWN}")
    if "lad" in opt:
        for k, nm in ((3, "mc"), (2, "mb"), (1, "ma")):
            a(f"s_cmp_eq_u32 s{S_W}, {k}")
            a(f"s_cbranch_scc1 {pfx}_gl")
            n = geti(nm, 0)
            for _ in range(n // 2): a(NOP)
            if n % 2: a("s_nop 3")
    else:
        a(f"s_cmp_ge_u32 s{S_W}, 2")
        a(f"s_cbranch_scc1 {pfx}_gl")
        for _ in range(ge): a(NOP)
    a.label(f"{pfx}_gl")
    for _ in range(g1): a(NOP)
    a(gather(0))
    if "stept" in opt:
        a("s_memrealtime s[70:71]")
        a(f"s_lshl_b32 s72, s{S_STEP}, 2"); a(f"s_add_u32 s72, s72, {L_JUNK}")
        a("v_mov_b32 v118, s72")
        a("s_waitcnt lgkmcnt(0)")
        a("v_mov_b32 v119, s70")
        a("ds_write_b32 v118, v119")
        g2 -= 1
    a(f"s_add_u32 s{S_MWR}, s{S_MWR}, 8192")
    a(f"s_cmp_ge_u32 s{S_MRD}, {hex(WS_MEM + 2*8192)}")
    a(f"s_cselect_b32 s{S_T0}, {3*8192}, 0")
    a(f"s_sub_u32 s{S_MWR}, s{S_MWR}, s{S_T0}")
    a(f"s_add_u32 s{S_STEP}, s{S_STEP}, 1")
    a(f"s_xor_b32 s{S_TAG}, s{S_TAG}, 1")
    if "mega" in opt:
        if "nofl" not in opt:
            a(f"v_readlane_b32 s{S_HAVE}, {vFl}, 0")
            a(f"v_readlane_b32 s{S_T0}, {vFl}, 2")
        a(f"s_add_u32 s{S_T1}, s{S_STEP}, 2")
        a(f"s_min_u32 s{S_T1}, s{S_T1}, 64")
        if "nofl" not in opt: a(f"s_min_u32 s{S_HAVE}, s{S_HAVE}, s{S_T0}")
        kv_wait(a, f"s{S_T1}", pfx + "_kvw")
        g2 -= 1
    a(f"s_mov_b32 s{S_PC}, 0")
    for _ in range(g2 - 1): a(NOP)
    a(gather(0))
    if "f1s" not in opt:
        for _ in range(g3): a(NOP)
        a(gather(1))
    for _ in range(geti("gw", 0)): a(zero16(96))
    a(f"s_branch {pfx}_gA")
    a.label(f"{pfx}_rfA")
    if "rstat" in opt: a("s_add_u32 s60, s60, 1")
    ldp(0)
    a(f"s_add_u32 s{S_PC}, s{S_PC}, 1")
    fin(1, "B")
    a(f"s_branch {pfx}_rok")
    a.label(f"{pfx}_rfB")
    if "rstat" in opt: a("s_add_u32 s63, s63, 1")
    ldp(1)
    a(f"s_add_u32 s{S_PC}, s{S_PC}, 1")
    a(f"s_cmp_lt_u32 s{S_PC}, s{S_PMAX}")
    a(f"s_cbranch_scc1 {pfx}_rcA")
    a(f"s_mov_b32 s{S_PMAX}, 1")
    a(f"s_branch {pfx}_rok")
    if not stamps:
        a.label(pfx + "_last")
        for x in kvm: a(x)
        early = [m for m in last_ms if any(f", {vr(F[sg],4)}," in m for sg in (1, 2, 4, 6))]
        late = [m for m in last_ms if m not in early]
        for m in early: a(m)
        a("s_waitcnt lgkmcnt(0)")
        for m in late: a(m)
        for x in pk0 + pk1: a(x)
        a("s_nop 1")
        for x in pv0 + pv1: a(x)
    a.label(pfx + "_end")
    a(kvm[0])
    if "stept" in opt:
        a(f"v_lshrrev_b32 v118, 2, {vL16}")
        a(f"ds_read_b32 v119, v118 offset:{L_JUNK}")
        a(f"s_lshl_b32 s72, s{S_H}, 8"); a(f"s_add_u32 s72, s72, {hex(WS_STAMP + 0x20000)}")
        a("s_waitcnt lgkmcnt(0)")
        a(f"buffer_store_dword v119, v118, {sr(S_WS,4)}, s72 offen")
    return nst[0]
```

```python
from common import *
import math, struct

L_MEM = 0
L_K   = 8192
L_V   = 16384
L_QK  = 24576
L_OS  = 28672
L_SEL = 30720
L_JUNK= 31744
L_MISC= 32256
L_WO  = 32768

S_STEP = 16
S_PST = 17
S_PLD = 19
S_MRD, S_MWR, S_MPO = 22, 23, 24
S_KX, S_VX, S_KVM = 25, 26, 27
S_TAG, S_PMAX, S_PC = 28, 29, 30
S_SC = 31
S_PTR = 32
S_T0, S_T1, S_T2, S_T3 = 48, 49, 50, 51
S_OWN = 52
S_WOB = 53
S_WOL = 54
S_STAMP = 60

vFl = "v0"
vL16w, vL16, vXw, vXr, vOw, vWo, vPs, vMp, vIdx = ["v%d" % i for i in range(1, 10)]
vPl = vL16
vZ = "v[10:11]"
vT0, vT1 = "v12", "v13"
vFx = ["v28", "v29", "v30"]
SX0, SX1, SM = 16, 20, 24
vM = "v31"
FA, FB = 32, 120
F = [32 + 4 * i for i in range(8)]
ACC = {("q", 0): 64, ("q", 1): 68, ("k", 0): 72, ("k", 1): 76, ("v", 0): 80, ("v", 1): 84}
QF = [88 + 4 * i for i in range(4)]
KF = [104 + 4 * i for i in range(4)]
KXR = {(0, 0): 32, (1, 0): 24, (0, 1): 104, (1, 1): 108, (0, 2): 112, (1, 2): 116, (0, 3): 120, (1, 3): 124}
VX = [64, 72]
MI = {"q": 0, "k": 1, "v": 2}

def wreg(m, t, sig, off=0, n=8):
    idx = ((MI[m] * 2 + t) * 8 + sig) * 8 + off
    if idx < 256: return ar(idx, n)
    return vr(128 + idx - 256, n)

def smf(m, t, sig, own=FA):
    f = own + 4 * sig if sig < 2 else F[sig]
    return f"v_smfmac_f32_16x16x64_bf16 {vr(ACC[(m,t)],4)}, {vr(f,4)}, {wreg(m,t,sig)}, {vIdx}"

S_HAVE, S_FLG, S_KVC = 55, 56, 26
S_SC2, S_OM = 58, 46
def emit_rec_init(a, sh, ptr):
    LE = lambda *x, **k: lane_expr(a, *x, tmp="v31", **k)
    WS = sr(S_WS, 4)
    srd(a, S_T, ptr, 8192)
    LE("v16", "v0", [(4, 1, 10), (0, 2, 2), (5, 1, 1)])
    sexpr(a, 48, [(sh, 1, 2, 11), (sh, 3, 2, 8), (S_W, 0, 2, 6), (sh, 0, 1, 4)])
    a(f"buffer_load_ushort v17, v16, {sr(S_T,4)}, s48 offen")
    a(f"buffer_load_ushort v18, v16, {sr(S_T,4)}, s48 offen offset:32")
    LE("v20", "v0", [(0, 6, 4)])
    LE("v21", "v0", [(4, 1, 5), (0, 2, 3), (5, 1, 2), (2, 2, 30)])
    for i in range(4): a(f"v_mov_b32 v{24+i}, 0")
    a("v_mov_b32 v19, -1")
    sexpr(a, 48, [(sh, 0, 5, 13), (S_W, 0, 2, 11)], WS_PART)
    a(f"buffer_store_dwordx4 v[24:27], v20, {WS}, s48 offen sc1")
    a(f"buffer_store_dwordx4 v[24:27], v20, {WS}, s48 offen offset:1024 sc1")
    sexpr(a, 50, [(sh, 3, 2, 11), (S_W, 0, 2, 9), (sh, 0, 1, 8), (sh, 1, 2, 6)], WS_MEM)
    for sl in (1, 2):
        a(f"s_add_u32 s48, s50, {8192*sl}")
        a(f"buffer_store_dword v19, v21, {WS}, s48 offen sc1")
    a("s_waitcnt vmcnt(4)")
    a("v_lshl_or_b32 v17, v18, 16, v17")
    a(f"buffer_store_dword v17, v21, {WS}, s50 offen sc1")

def emit_rec_setup(a, pfx="R", own_init=True, opt=(), inline=None):
    st = " sc1"
    LE = lambda *x, **k: lane_expr(a, *x, tmp="v31", **k)
    a.c("==== recurrence role: s14 = head, s15 = wave ====")
    q = VmQ(a)
    if own_init:
        emit_rec_init(a, S_H, S_PTR + 2)
        a("s_waitcnt vmcnt(0)")
        dbg_arrive(a, D_RTB)
        a("s_waitcnt vmcnt(0)")

    D = [32, 33, 34, 35]
    E = [36, 37, 38, 39]
    LE("v28", "v0", [(5, 1, 5)])
    LE("v29", "v0", [(0, 4, 4)])
    a("v_xor_b32 v28, v28, v29")
    LE("v30", "v0", [(4, 2, 13)])
    a(f"v_add_u32 v{D[0]}, v28, v30")
    a(f"v_xor_b32 v{D[1]}, 64, v{D[0]}")
    a(f"v_xor_b32 v{D[2]}, 128, v{D[0]}")
    a(f"v_xor_b32 v{D[3]}, 192, v{D[0]}")
    sexpr(a, S_T2, [(S_H, 0, 5, 8), (S_W, 0, 2, 18)])
    sexpr(a, S_T3, [(S_W, 0, 2, 13)], L_WO)

    def dma_chunk(a, q, n):
        m, ch = divmod(n, 4)
        if ch == 0:
            srd(a, S_T, S_PTR + 4 + 2 * m, 4194304)
        for i in range(8):
            a(f"s_add_u32 m0, s{S_T3}, {ch * 32768 + i * 1024}")
            if m < 3:
                a(f"s_add_u32 s{S_T0}, s{S_T2}, {hex((128 * ch + 4 * i) * 8192)}")
                a(f"buffer_load_dwordx4 v{D[(i & 1) + 2 * ((i >> 2) & 1)]}, {sr(S_T,4)}, s{S_T0} offen lds")
            else:
                a(f"s_add_u32 s{S_T0}, s{S_WOB}, {hex(4 * i * 1024 + ch * 256)}")
                a(f"buffer_load_dwordx4 v{E[(i & 1) + 2 * ((i >> 2) & 1)]}, {sr(S_T,4)}, s{S_T0} offen lds")
        q.issue(("d", n), 8)

    if "time" in opt: a("s_memrealtime s[76:77]")
    srd(a, S_T, S_PTR + 4, 4194304)
    a(f"s_mov_b32 m0, s{S_T3}"); a(f"s_mov_b32 s{S_T0}, s{S_T2}")
    a("s_movk_i32 s16, 0x400"); a("s_mov_b32 s17, 0x8000"); a("s_mov_b32 s18, 4")
    a.label(pfx + "_d0")
    for i in range(8):
        a(f"buffer_load_dwordx4 v{D[(i & 1) + 2 * ((i >> 2) & 1)]}, {sr(S_T,4)}, s{S_T0} offen lds")
        a("s_add_u32 m0, m0, s16"); a(f"s_add_u32 s{S_T0}, s{S_T0}, s17")
    a(f"s_add_u32 m0, m0, {32768 - 8192}"); a(f"s_add_u32 s{S_T0}, s{S_T0}, {hex(96 * 8192)}")
    a("s_sub_u32 s18, s18, 1"); a("s_cmp_lg_u32 s18, 0"); a(f"s_cbranch_scc1 {pfx}_d0")
    for n in range(4): q.issue(("d", n), 8)
    if inline:
        a(f"s_branch {pfx}_cont")
        inline()
        a.label(pfx + "_cont")
    sexpr(a, S_WOB, [(S_H, 0, 5, 17), (S_W, 0, 2, 15)])
    LE(vL16w, "v0", [(0, 6, 4), (6, 2, 11)])
    LE(vL16, "v0", [(0, 6, 4)])
    LE(vXw, "v0", [(6, 2, 10), (0, 4, 5), (4, 2, 3)], L_QK)
    LE("v16", "v0", [(2, 2, 3)])
    a(f"v_xor_b32 {vXw}, {vXw}, v16")
    LE(vXr, "v0", [(0, 6, 3)], L_QK)
    LE("v16", "v0", [(4, 2, 3)])
    a(f"v_xor_b32 {vXr}, {vXr}, v16")
    LE(vOw, "v0", [(6, 2, 9), (5, 1, 8), (2, 2, 6), (0, 1, 5), (4, 1, 4)], L_OS)
    LE("v16", "v0", [(5, 1, 8), (2, 2, 6), (0, 1, 5), (4, 1, 4)], L_JUNK)
    a("v_and_b32 v17, 2, v0")
    a("v_cmp_ne_u32 vcc, 0, v17")
    a("s_nop 1")
    a(f"v_cndmask_b32 {vOw}, {vOw}, v16, vcc")
    for r in (10, 11, 14, 15): a(f"v_mov_b32 v{r}, 0")
    LE(vWo, "v0", [(6, 2, 15), (0, 6, 4)], L_WO)
    LE(vPs, "v0", [(4, 2, 14), (3, 1, 13), (0, 3, 3)])
    LE(vMp, "v0", [(4, 1, 5), (0, 2, 3), (5, 1, 2), (2, 2, 30)])
    a(f"v_and_b32 v16, 1, v0")
    a(f"v_mul_u32_u24 {vIdx}, 0xaaaa, v16")
    a(f"v_add_u32 {vIdx}, 0x4444, {vIdx}")
    a("v_and_b32 v16, 3, v0")
    a("v_bfe_u32 v17, v0, 2, 2")
    a("v_mov_b32 v18, 0x3f80")
    a("v_mov_b32 v19, 0x3f800000")
    a("v_cmp_eq_u32 vcc, 1, v16")
    a("s_nop 1")
    a("v_cndmask_b32 v18, v18, v19, vcc")
    a("v_cmp_gt_u32 vcc, 2, v16")
    a("s_nop 1")
    a("v_cndmask_b32 v18, 0, v18, vcc")
    for d in range(4):
        a(f"v_cmp_eq_u32 vcc, {d}, v17")
        a("s_nop 1")
        a(f"v_cndmask_b32 v{20+d}, 0, v18, vcc")
    a(f"ds_write_b128 {vL16}, v[20:23] offset:{L_SEL}")
    for tau in range(2):
        sexpr(a, S_PST + tau, [(S_W, 0, 2, 16), (S_H, 0, 5, 6)], WS_PART + tau * 4096)
    sexpr(a, S_PLD, [(S_H, 0, 5, 13), (S_W, 0, 2, 11)], WS_PART)
    sexpr(a, S_OWN, [(S_H, 3, 2, 11), (S_W, 0, 2, 9), (S_H, 0, 1, 8), (S_H, 1, 2, 6)])
    a(f"s_mov_b32 s{S_MRD}, {hex(WS_MEM)}")
    a(f"s_add_u32 s{S_MPO}, s{S_OWN}, {hex(WS_MEM)}")
    a(f"s_add_u32 s{S_MWR}, s{S_OWN}, {hex(WS_MEM + 8192)}")
    a(f"s_mul_i32 s{S_T0}, s{S_H}, {HSTR}")
    sexpr(a, S_KX, [(S_W, 0, 2, 12)], WS_KV)
    a(f"s_add_u32 s{S_KX}, s{S_KX}, s{S_T0}")
    a(f"s_mul_i32 s{S_T0}, s{S_H}, {MSTR}")
    sexpr(a, S_KVM, [(S_W, 0, 2, 10)], WS_KM)
    a(f"s_add_u32 s{S_KVM}, s{S_KVM}, s{S_T0}")
    a(f"s_mov_b32 s{S_STEP}, 0")
    a(f"s_mov_b32 s{S_TAG}, 1")
    a(f"s_mov_b32 s{S_PMAX}, 100000")
    sc = (128 ** -0.5) * math.log2(math.e)
    a(f"s_mov_b32 s{S_SC}, {hex(struct.unpack('<I', struct.pack('<f', sc))[0])}")

    a(f"s_mov_b32 s{S_SC2}, s{S_SC}"); a(f"s_mov_b32 s{S_SC2+1}, s{S_SC}")
    a(f"s_mov_b32 s{S_OM}, 0x33333333"); a(f"s_mov_b32 s{S_OM+1}, 0x33333333")
    LE("v28", "v0", [(4, 1, 5)])
    LE("v29", "v0", [(0, 4, 4)])
    a("v_xor_b32 v28, v28, v29")
    LE("v30", "v0", [(4, 2, 10)])
    a(f"v_add_u32 v{E[0]}, v28, v30")
    a(f"v_xor_b32 v{E[1]}, 64, v{E[0]}")
    a(f"v_xor_b32 v{E[2]}, 128, v{E[0]}")
    a(f"v_xor_b32 v{E[3]}, 192, v{E[0]}")
    TR = [40, 41]
    LE("v28", "v0", [(2, 1, 12), (5, 1, 11), (4, 1, 9), (3, 1, 10), (0, 1, 3)])
    LE("v29", "v0", [(6, 2, 6), (1, 1, 4)])
    LE("v30", "v0", [(4, 1, 5), (3, 1, 6), (2, 1, 7)])
    a("v_xor_b32 v29, v29, v30")
    a(f"v_add_u32 v{TR[0]}, v28, v29")
    a(f"v_xor_b32 v{TR[1]}, 32, v{TR[0]}")

    done = pfx + "_wdone"
    for w in range(4):
        if w < 3:
            a(f"s_cmp_lg_u32 s{S_W}, {w}")
            a(f"s_cbranch_scc1 {pfx}_wl{w+1}")
        qq = q.clone()
        for n in range(13):
            if n < 12:
                qq.wait(("d", n))
            a("s_barrier")
            if "time" in opt and n in (0, 4, 8): a(f"s_memrealtime s[{78+n//2}:{79+n//2}]")
            if 0 < n and n + 3 < 16: dma_chunk(a, qq, n + 3)
            if not own_init and n == max([int(o[2:]) for o in opt if o.startswith("cn")] + [0] or [0]) + 6 and w == 0:
                claim(a)
            if not own_init and n == 11:
                a(f"v_lshrrev_b32 v122, 2, {vL16}")
            if not own_init and n == 12 and w == 0:
                a(f"s_mov_b32 exec_lo, 1"); a(f"s_mov_b32 exec_hi, {1 << (D_LN1 - 32)}")
                a(f"global_load_dword v123, v122, {sr(S_DBG,2)} sc1")
                a("s_mov_b64 exec, -1")
                a("s_waitcnt vmcnt(0)")
                a(f"ds_write_b32 v122, v123 offset:{L_JUNK}")
                a("s_waitcnt lgkmcnt(0)")
            if n == 12: break
            m, ch = divmod(n, 4)
            mn = "qkv"[m]
            a(f"v_add_u32 v26, {L_WO + ch * 32768}, v{TR[0]}")
            a(f"v_add_u32 v27, {L_WO + ch * 32768}, v{TR[1]}")
            for k2 in range(2):
                sig = (2 * ch + k2) ^ (2 * w)
                for t in range(2):
                    for p in range(4):
                        off = (64 * k2 + 32 * (p // 2) + (p % 2)) * 256
                        a(f"ds_read_b64_tr_b16 {wreg(mn, t, sig, 2 * p, 2)}, v{26+t} offset:{off}")
            a("s_waitcnt lgkmcnt(0)")
        if w < 3:
            a(f"s_branch {done}")
            a.label(f"{pfx}_wl{w+1}")
    a.label(done)
    LE("v24", "v0", [(4, 1, 12), (5, 1, 11), (3, 1, 10), (2, 1, 8), (6, 2, 15), (1, 1, 4), (0, 1, 3),
                     (2, 1, 5), (3, 1, 6), (4, 1, 7)], L_WO)
    a("s_waitcnt vmcnt(0)")
    if not own_init:
        sexpr(a, S_FLG, [(S_H, 0, 5, 7)], WS_FLAG)
    a("s_barrier")
    if not own_init:
        a(f"buffer_load_dword v119, {vMp}, {sr(S_WS,4)}, s{S_FLG} offen sc1")
        a(f"ds_read_b32 v123, v122 offset:{L_JUNK}")
        if "cp2" in opt:
            a("s_getpc_b64 s[50:51]")
            a.label("R_pcref")
            a("s_add_u32 s50, s50, R_fast - R_pcref")
            a("s_addc_u32 s51, s51, 0")
            a(f"v_lshlrev_b32 v120, 3, {vL16}")
            a("global_load_dword v121, v120, s[50:51]")
    for ks in range(2):
        for tau in range(2):
            for b in range(4):
                a(f"v_xor_b32 v25, {128 * tau + 32 * b}, v24")
                base = 32 + (tau * 4 + b) * 8
                for p in range(4):
                    off = (64 * ks + 32 * (p // 2) + 2 * (p % 2)) * 256
                    a(f"ds_read_b64_tr_b16 {vr(base + 2 * p, 2)}, v25 offset:{off}")
        a("s_waitcnt lgkmcnt(0)")
        for i in range(16):
            a(f"ds_write_b128 {vWo}, {vr(32 + 4 * i, 4)} offset:{ks * 16384 + i * 1024}")
        a("s_waitcnt lgkmcnt(0)")
    if own_init: dbg_wait(a, D_RTB, 128, sleep=8)
    else: verify_claim(a, 2 if 'cp2' in opt else 1, L_MISC)

def kv_wait(a, need_sreg_or_imm, tag):
    l = a.uid(tag)
    need = need_sreg_or_imm
    a(f"s_cmp_ge_u32 s{S_HAVE}, {need}")
    a(f"s_cbranch_scc1 {l}_ok")
    a(f"s_mov_b32 s{S_PC}, 0")
    a.label(l)
    a(f"buffer_load_dword v119, {vMp}, {sr(S_WS,4)}, s{S_FLG} offen sc1")
    a("s_waitcnt vmcnt(0)")
    a(f"v_readlane_b32 s{S_HAVE}, v119, 0")
    a(f"v_readlane_b32 s{S_T0}, v119, 2")
    a("s_nop 1")
    a(f"s_min_u32 s{S_HAVE}, s{S_HAVE}, s{S_T0}")
    a(f"s_cmp_ge_u32 s{S_HAVE}, {need}")
    a(f"s_cbranch_scc1 {l}_ok")
    a("s_sleep 2")
    a(f"s_add_u32 s{S_PC}, s{S_PC}, 1")
    a(f"s_cmp_lt_u32 s{S_PC}, s{S_PMAX}")
    a(f"s_cbranch_scc1 {l}")
    a(f"s_mov_b32 s{S_PMAX}, 1")
    a.label(l + "_ok")

def emit_rec_mega(a, opt, inline=None):
    import mega
    a(f"s_load_dwordx16 {sr(S_PTR,16)}, s[0:1], 0")
    a("s_waitcnt lgkmcnt(0)")
    emit_rec_setup(a, own_init=False, opt=opt, inline=inline)
    if "time" in opt: a("s_memrealtime s[84:85]")
    a(f"v_readlane_b32 s{S_T2}, v123, {D_LN1}")
    a(f"v_readlane_b32 s{S_T3}, v123, 0")
    a("s_waitcnt vmcnt(0)")
    a(f"v_readlane_b32 s{S_HAVE}, v119, 0")
    a(f"v_readlane_b32 s{S_T0}, v119, 2")
    a("s_nop 1")
    a(f"s_min_u32 s{S_HAVE}, s{S_HAVE}, s{S_T0}")
    a(f"s_mov_b32 s57, s{S_T3}")
    a(f"s_cmp_ge_u32 s{S_T2}, {N_LN1}")
    a("s_cbranch_scc1 R_lnok")
    a(f"s_mov_b32 s{S_HAVE}, 0")
    a(f"s_mov_b32 s{S_PC}, 0")
    a.label("R_lnw")
    a(f"global_load_dword v123, v122, {sr(S_DBG,2)} sc1")
    a("s_waitcnt vmcnt(0)")
    a(f"v_readlane_b32 s{S_T2}, v123, {D_LN1}")
    a("s_nop 1")
    a(f"s_cmp_ge_u32 s{S_T2}, {N_LN1}")
    a("s_cbranch_scc1 R_lnok")
    a("s_sleep 32")
    a(f"s_add_u32 s{S_PC}, s{S_PC}, 1")
    a(f"s_cmp_lt_u32 s{S_PC}, s{S_PMAX}")
    a("s_cbranch_scc1 R_lnw")
    a.label("R_lnok")
    kv_wait(a, 2, "kvw")
    if "time" in opt: a("s_memrealtime s[86:87]")
    if "fakexcc" not in opt and "slow" not in opt:
        a("s_cmp_eq_u32 s57, -1")
        a("s_cbranch_scc1 R_fast")
    mega.emit_mode(a, opt, "R_slow")
    a.label("R_fast")
    ropt = list(opt) + ["mega", "oexec", "f1s", "o01", "lad", "de2", "la1", "lb4", "lc4", "ma1", "mb3", "mc4", "ga2", "gb5", "c112", "b15", "db4", "dc2"]
    emit_rec(a, fast=True, pfx="RF", opt=ropt)
    a("s_branch L_done")
    a.label("R_slow")
    emit_rec(a, fast=False, pfx="RS", opt=ropt)

def emit_rec(a, fast=True, stamps=False, nsteps=64, pfx="R", warm=True, opt=()):
    st = "" if fast else " sc1"
    def geti(p, d):
        for o in opt:
            if o.startswith(p) and o[len(p):].isdigit(): return int(o[len(p):])
        return d
    nst = [0]
    tr0 = geti("tr", -1)
    slotno = [0]
    def stamp(force=False):
        if stamps and (tr0 < 0 or force):
            a(f"s_memtime {sr(S_STAMP + 2 * nst[0], 2)}"); nst[0] += 1
    if "mega" not in opt: emit_rec_setup(a, pfx)

    lq = LQ()
    rms = [o[3:] for o in opt if o.startswith("rm:")]
    def emit(x):
        txt = x if isinstance(x, str) else x[0]
        if isinstance(x, str) and any(r in txt for r in rms): return
        if x == "STAMP": stamp()
        elif isinstance(x, tuple):
            if x[0] == "w":
                wt = lq.wait(x[1])
                if isinstance(x[1], tuple) and x[1][0] == "Fw": assert wt.endswith("(0)")
                a(wt)
            elif x[0] == "L": a.label(x[1])
            else:
                a(x[0]); lq.issue(x[1])
        else: a(x)
    def run(seq, count=True):
        for m, fill in seq:
            if m: a(m)
            if tr0 >= 0 and count and tr0 <= slotno[0] + 12 < tr0 + geti("tn", 13): stamp(True)
            if count: slotno[0] += 1
            for f in fill: emit(f)

    kvd = [f"buffer_load_dwordx4 {vL16}, {sr(S_WS,4)}, s{S_KX} offen offset:{1024*i} sc1 lds" for i in range(4)] + [f"s_add_u32 s{S_KX}, s{S_KX}, 16384"]
    zero16 = lambda r: f"v_mfma_f32_32x32x8_bf16 {vr(r,16)}, {vZ}, {vZ}, 0"
    zero4 = lambda r: f"v_mfma_f32_16x16x16_bf16 {vr(r,4)}, {vZ}, {vZ}, 0"
    def gather(sig):
        return f"buffer_load_dwordx4 {vr(F[sig],4)}, {vL16w}, {sr(S_WS,4)}, s{S_MRD} offen offset:{1024*sig} sc1"
    def fx():
        for i in range(3): a(f"v_xor_b32 {vFx[i]}, {2048 * (i + 1)}, {vL16w}")
    S_MK, S_MV = S_T2, S_T3
    sexpr(a, S_MK, [(S_W, 0, 2, 11)], L_K)
    sexpr(a, S_MV, [(S_W, 0, 2, 11)], L_V - 2048)
    mk, mv = f"s_mov_b32 m0, s{S_MK}", f"s_mov_b32 m0, s{S_MV}"
    for x in [mk, "s_nop 0"] + kvd[:2] + [mv, "s_nop 0"] + kvd[2:] + [mk]: a(x)
    a(f"s_sub_u32 s{S_KVM}, s{S_KVM}, 4096")
    a(f"s_add_u32 s{S_T0}, s{S_KVM}, {65*4096}")
    a(f"s_mov_b32 s{S_KVC}, s{S_T0}")
    if "nokv" in opt: kvd = ["s_nop 0"] * 5
    a(zero16(64)); a(zero16(80))
    fx()
    a(f"s_mov_b32 s{S_PC}, 0")
    if stamps or "nost" in opt or "time" in opt:
        a("s_memrealtime s[96:97]"); a("s_memtime s[98:99]")
    if "rstat" in opt:
        for r in range(60, 64): a(f"s_mov_b32 s{r}, 0")
    for sl in (1, 2):
        a(f"s_add_u32 s{S_T0}, s{S_MRD}, {8192*sl}")
        for n in range(2): a(f"buffer_load_dwordx4 v[96:99], {vL16w}, {sr(S_WS,4)}, s{S_T0} offen offset:{1024*n} sc1")
    for n in range(2): a(f"buffer_load_dwordx4 v[96:99], {vPl}, {sr(S_WS,4)}, s{S_PLD} offen offset:{1024*n} sc1")
    a(gather(1))
    a(gather(0)); a(gather(0))
    if "f1s" not in opt: a(gather(1))

    rdF = lambda sig: (f"ds_read_b128 {vr(F[sig],4)}, {vFx[sig//2-1]} offset:{L_MEM + (sig%2)*1024}", ("F", sig))
    rdKX = lambda t, ks: (f"ds_read_b128 {vr(KXR[(t,ks)],4)}, {vL16} offset:{L_K + (t*4+ks)*1024}", "KX")
    trQ = lambda ks, u: (f"ds_read_b64_tr_b16 {vr(QF[ks]+2*u,2)}, {vXr} offset:{1024*ks+512*u}", ("Q", ks))
    trK = lambda ks, u: (f"ds_read_b64_tr_b16 {vr(KF[ks]+2*u,2)}, {vXr} offset:{1024*ks+512*u}", ("K", ks))
    rdV = lambda t: (f"ds_read_b128 {vr(VX[t],4)}, {vL16w} offset:{L_V + t*1024}", "V")
    def sx(t, ks):
        d = vr([SX0, SX1][t], 4)
        return f"v_mfma_f32_16x16x32_bf16 {d}, {vr(KXR[(t,ks)],4)}, {vr(QF[ks],4)}, {d if ks else 0}"
    def sm(ks):
        d = vr(SM, 4)
        return f"v_mfma_f32_16x16x32_bf16 {d}, {vr(QF[ks],4)}, {vr(QF[ks],4)}, {d if ks else 0}"
    kvm = [f"buffer_store_dwordx4 v[12:15], {vL16}, {sr(S_WS,4)}, s{S_KVC} offen sc1", f"s_add_u32 s{S_KVM}, s{S_KVM}, 4096", f"s_mov_b32 s{S_KVC}, s{S_KVM}"]
    if "nokvm" in opt: kvm[0] = "s_nop 0"

    nc = "nocomm" in opt
    def chk(sig):
        f = F[sig]
        return [f"v_max3_u32 v16, v{f}, v{f+1}, v{f+2}", f"v_max_u32 v16, v16, v{f+3}", f"v_cmp_eq_u32 vcc, -1, v16"]
    wrF = lambda sig: (f"ds_write_b128 {vL16w}, {vr(F[sig],4)} offset:{L_MEM + 1024*sig}", ("Fw", sig))
    def gfail(sig, first_wait, redo):
        a.label(f"{pfx}_gf{sig}")
        a(f"s_waitcnt vmcnt({first_wait})")
        a.label(f"{pfx}_gr{sig}")
        if "rstat" in opt: a(f"s_add_u32 s{61+sig}, s{61+sig}, 1")
        for x in chk(sig): a(x)
        a(f"s_add_u32 s{S_PC}, s{S_PC}, 1")
        a(f"s_cbranch_vccz {pfx}_gx{sig}")
        a(gather(sig))
        a(f"s_cmp_lt_u32 s{S_PC}, s{S_PMAX}")
        a("s_waitcnt vmcnt(0)")
        a(f"s_cbranch_scc1 {pfx}_gr{sig}")
        a(f"s_mov_b32 s{S_PMAX}, 1")
        a.label(f"{pfx}_gx{sig}")
        a(wrF(sig)[0])
        for x in redo: a(x)
        a(f"s_branch {pfx}_gok{sig}")

    dirl = "dirl" in opt
    def gatherx(sig):
        va = vL16w if sig < 2 else vFx[sig // 2 - 1]
        return f"buffer_load_dwordx4 {vr(F[sig],4)}, {va}, {sr(S_WS,4)}, s{S_MRD} offen offset:{1024*(sig%2)} sc1"
    def chkx(sigs):
        if len(sigs) == 1: return [f"v_cmp_eq_u32 vcc, -1, v{F[sigs[0]]}"]
        return [f"v_max3_u32 v16, v{F[sigs[0]]}, v{F[sigs[1]]}, v{F[sigs[2]]}", "v_cmp_eq_u32 vcc, -1, v16"]
    def gfailx(nm, sigs):
        a.label(f"{pfx}_gf{nm}")
        if "rstat" in opt: a("s_add_u32 s62, s62, 1")
        for sg in sigs: a(gatherx(sg))
        a(f"s_add_u32 s{S_PC}, s{S_PC}, 1")
        a("s_waitcnt vmcnt(0)")
        for x in chkx(sigs): a(x)
        a(f"s_cbranch_vccz {pfx}_gok{nm}")
        a(f"s_cmp_lt_u32 s{S_PC}, s{S_PMAX}")
        a(f"s_cbranch_scc1 {pfx}_gf{nm}")
        a(f"s_mov_b32 s{S_PMAX}, 1")
        a(f"s_branch {pfx}_gok{nm}")
    a(f"s_branch {pfx}_gA")
    gfail(0, 0 if "f1s" in opt else 1, [zero4(64), "s_nop 5", smf("q", 0, 0)])
    if dirl:
        gfailx("a", [1]); gfailx("b", [3, 5, 7])
    else: gfail(1, 0, [])
    a.raw(".p2align 6")
    a.label(f"{pfx}_gA")
    if not nc: a(f"s_waitcnt vmcnt({1 if 'f1s' in opt else 2})")
    for x in chk(0)[:2]: a(x)
    emit(wrF(0))
    a(chk(0)[2])
    a(smf("q", 0, 0))
    if not nc: a(f"s_cbranch_vccnz {pfx}_gf0")
    a.label(f"{pfx}_gok0")
    if stamps:
        a(f"s_memtime {sr(S_STAMP, 2)}")
        a(f"s_mov_b32 s{S_STAMP+29}, s{S_PC}")
    nst[0] = 1
    kx = {k: rdKX(*k) for k in KXR}
    WB = [40, 48, 56, 32, 104, 112, 120, 96, 24]
    def rdWo(k, buf, half):
        T, ks = divmod(k, 2)
        return (f"ds_read_b128 {vr(buf + 4*half, 4)}, {vWo} offset:{ks*16384 + T*2048 + half*1024}", ("W", k))
    W = [rdWo(k, WB[k], h) for k in range(9) for h in range(2)]
    def post(acc, dst):
        return [f"v_add_f32 v{acc}, v{acc}, v{acc+1}", f"v_add_f32 v{acc+2}, v{acc+2}, v{acc+3}", f"v_cvt_pk_bf16_f32 v{dst}, v{acc}, v{acc+2}"]
    one = [f"v_mov_b32 v{28+i}, 0x3f803f80" for i in range(4)]
    pq0, pk0, pq1, pk1 = post(64, 12), post(72, 13), post(68, 14), post(76, 15)
    pv0, pv1 = post(80, 12), post(84, 14)
    tr = [trQ(ks, u) for ks in range(4) for u in range(2)]
    QK = (("q", 0), ("k", 0), ("q", 1), ("k", 1))
    ms = [smf("k", 0, 0), smf("q", 1, 0), smf("k", 1, 0), smf("v", 0, 0), smf("v", 1, 0)]
    ms += [smf(m, t, sg) for sg in (2, 4, 6, 1) for m, t in QK]
    ms += [smf(m, t, sg) for m, t in QK for sg in (3, 5, 7)]
    ms += [smf("v", t, sg) for sg in (1, 2, 3, 4, 5, 6, 7) for t in range(2)]
    ms += [sx(0, 0), sx(1, 0), sm(0), sx(0, 1), sx(1, 1), sm(1), sx(0, 2), sx(0, 3), sx(1, 2), sx(1, 3), sm(2), sm(3)]
    fl = {k: [] for k in range(1, 60)}
    hb = geti("hb", 4); c1 = geti("c1", 10); b1 = geti("b1", 6)
    f1s = "f1s" in opt
    if dirl:
        gx = (lambda sg: [gatherx(sg)]) if not nc else (lambda sg: [])
        fl[1] = gx(1); fl[2] = gx(3)
        fl[hb] += [("w", ("Fw", 0)), "s_barrier", rdF(2)]
        fl[5] += [rdF(4), rdF(6), zero4(20)] + gx(5) + [zero4(20)] + gx(7) + [("w", ("F", 2)), "STAMP"]
        rest = [kx[(0, 1)], kx[(1, 1)], kx[(0, 2)], kx[(1, 2)], kx[(0, 3)], kx[(1, 3)], kx[(1, 0)]]
        for n, x in enumerate(rest): fl[6 + n] += [x]
        fl[9] += [("w", ("F", 6))]
        fl[13] += (["s_waitcnt vmcnt(4)"] if not nc else []) + [kx[(0, 0)]]
        fl[14] += [one[3]]
        fl[15] += (["s_waitcnt vmcnt(3)"] if not nc else []) + chkx([1])
        fl[16] += ([f"s_cbranch_vccnz {pfx}_gfa"] if not nc else []) + [("L", f"{pfx}_goka")]
        fl[17] += [("w", "KX"), "s_barrier"]
        fl[19] += (["s_waitcnt vmcnt(0)"] if not nc else []) + chkx([3, 5, 7])[:1]
        fl[20] += chkx([3, 5, 7])[1:]
        fl[21] += ([f"s_cbranch_vccnz {pfx}_gfb"] if not nc else []) + [("L", f"{pfx}_gokb")]
        if not stamps: fl[21] += [f"s_cmp_eq_u32 s{S_STEP}, {nsteps-1}", f"s_cbranch_scc1 {pfx}_last"]
        x0 = 20
        last_ms = [m for m in ms[x0 + 1:47] if "v[64:67]" not in m.split(",")[0] and "v[68:71]" not in m.split(",")[0]]
        fl[22] += [kvd[0]]
        fl[23] += [one[0]]
        fl[39] += [one[1]]
    else:
        fl[geti("f1", 1)] = [gather(1)] if not nc else []
        fl[hb] += [("w", ("Fw", 0)), "s_barrier", rdF(2)]
        fl[5] += [rdF(4), rdF(6), zero4(20), kx[(0, 1)], kx[(1, 1)], zero4(20), ("w", ("F", 2)), "STAMP"]
        rest = [kx[(0, 2)], kx[(1, 2)], kx[(0, 3)], kx[(1, 3)], kx[(1, 0)], kx[(0, 0)]]
        for sl in range(6, c1):
            if len(rest) > 1: fl[sl] += [rest.pop(0)]
        fl[9] += [("w", ("F", 6))]
        if f1s:
            fl[c1] += (["s_waitcnt vmcnt(0)"] if not nc else []) + [wrF(1)]
            fl[c1 + 1] += [f"v_cmp_eq_u32 vcc, -1, v{F[1]}"]
            fl[c1 + 2] += ([f"s_cbranch_vccnz {pfx}_gf1"] if not nc else []) + [("L", f"{pfx}_gok1")]
        else:
            fl[c1] += (["s_waitcnt vmcnt(1)"] if not nc else []) + chk(1)
            fl[c1 + 1] += [wrF(1)] + ([f"s_cbranch_vccnz {pfx}_gf1"] if not nc else []) + [("L", f"{pfx}_gok1")]
        for n, x in enumerate(rest): fl[c1 + 2 + n] += [x]
        fl[c1 + b1] += [("w", "KX"), "s_barrier"]
        x0 = c1 + b1 + 1
        fl[x0] += [rdF(3), rdF(5)]; fl[x0 + 1] += [rdF(7), one[3]]
        if not stamps:
            fl[x0 - 3] += [f"s_cmp_eq_u32 s{S_STEP}, {nsteps-1}"]
            fl[x0 + 1] = [rdF(7), f"s_cbranch_scc1 {pfx}_last"]; fl[x0 + 4] += [one[3]]
        last_ms = [m for m in ms[x0 + 1:47] if "v[64:67]" not in m.split(",")[0] and "v[68:71]" not in m.split(",")[0]]
        fl[x0 + 2] += (["s_waitcnt vmcnt(0)"] if not (nc or f1s) else []) + [kvd[0]]
        fl[x0 + 3] += [one[0]]
        fl[21] += [("w", ("F", 3))]
        fl[22] += [("w", ("F", 7)), one[1]]
    if dirl:
        fl[24] += [kvd[1], "STAMP"]; fl[28] += [mv]; fl[46] += ["ONE2"]
    else:
        fl[23] += [kvd[1]]
        fl[24] += [mv, one[2], "STAMP"]
    fl[25] += kvm[:1]
    fl[26] += kvm[1:2]
    fl[27] += kvm[2:3]
    if "mega" in opt and "nofl" not in opt: fl[30] += [f"buffer_load_dword {vFl}, {vMp}, {sr(S_WS,4)}, s{S_FLG} offen sc1"]
    fl[26] += [pq0[0]]
    fl[27] += [pq0[1]]
    fl[28] += [pq0[2]]
    fl[29] += [rdV(0), pk0[0]]
    fl[30] += [pk0[1]]
    fl[31] += [pk0[2]]
    fl[32] += [rdV(1), pq1[0]]
    fl[33] += [pq1[1]]
    fl[34] += [pq1[2]]
    fl[35] += pk1
    fl[36] += [(f"ds_write2st64_b64 {vXw}, v[12:13], v[14:15] offset1:1", "Xw")]
    fl[37] += [("w", "V"), "v_mov_b32 v77, 0"]
    fl[38] += [kvd[2]]
    fl[39] = [W[0]] + fl[39]
    fl[40] += [kvd[3]]
    fl[41] += [("w", "Xw"), "s_barrier"]
    fl[42] += tr[0:2]
    fl[43] += tr[2:4]
    fl[44] += tr[4:6]
    fl[45] += tr[6:8]
    fl[46] = [W[1]] + ([one[2]] if fl[46] else [])
    fl[47] += [("w", ("Q", 3)), "STAMP"]
    fl[48] += [W[2], pv0[0]]
    fl[49] += [W[3], pv0[1]]
    fl[50] += [W[4], pv0[2]]
    fl[51] += [W[5], pv1[0]]
    fl[52] += [W[6], pv1[1]]
    fl[53] += [W[7], pv1[2]]
    fl[54] += [mk]
    fl[55] += [W[8]]
    fl[56] += [W[9]]
    fl[57] += [W[10], "v_max3_f32 v80, v16, v17, v18"]
    fl[58] += [W[11], kvd[4]]
    fl[59] += [W[12], W[13], "s_nop 1", "v_max3_f32 v82, v19, v20, v21", "v_max3_f32 v80, v80, v22, v23", "v_max_f32 v80, v80, v82", "s_nop 0"]
    slotno[0] = -11
    run([(m, fl[1 + i]) for i, m in enumerate(ms)])
    ee = lambda r: f"v_exp_f32 v{r}, v{r}"
    for x in ["v_max3_f32 v80, v80, v26, v27", "v_mov_b32 v82, v80", W[14], W[15], "v_permlane32_swap_b32 v80, v82", "v_max_f32 v80, v80, v82",
              "v_mov_b32 v82, v80", "s_nop 1", "v_permlane16_swap_b32 v80, v82", "v_max_f32 v80, v80, v82", f"v_mul_f32 v80, s{S_SC}, v80"]:
        emit(x)
    for r in (26, 16, 18, 20, 22):
        a(f"v_pk_fma_f32 {vr(r,2)}, {vr(r,2)}, {sr(S_SC2,2)}, v[80:81] op_sel_hi:[1,1,0] neg_lo:[0,0,1] neg_hi:[0,0,1]")
    stamp()
    for x in [ee(26), ee(27), ee(16), "v_cvt_pk_bf16_f32 v76, v26, v27", ee(17), "s_nop 0"]:
        emit(x)
    run([("v_mfma_f32_16x16x16_bf16 v[84:87], v[28:29], v[76:77], 0", [ee(18), "v_cvt_pk_bf16_f32 v68, v16, v17"]),
         ("v_mfma_f32_16x16x16_bf16 v[88:91], v[12:13], v[76:77], 0", [ee(19), ee(20)]),
         ("v_mfma_f32_16x16x16_bf16 v[92:95], v[14:15], v[76:77], 0", [ee(21), "v_cvt_pk_bf16_f32 v69, v18, v19", ee(22), ee(23),
            "v_cvt_pk_bf16_f32 v70, v20, v21", "v_cvt_pk_bf16_f32 v71, v22, v23", W[16], "s_nop 0"]),
         ("v_mfma_f32_16x16x32_bf16 v[84:87], v[28:31], v[68:71], v[84:87]", [W[17]]),
         (f"v_mfma_f32_16x16x32_bf16 v[88:91], {vr(VX[0],4)}, v[68:71], v[88:91]", []),
         (f"v_mfma_f32_16x16x32_bf16 v[92:95], {vr(VX[1],4)}, v[68:71], v[92:95]", ["v_rcp_f32 v20, v84", "s_nop 2"])])
    for r in range(88, 92): a(f"v_mul_f32 v{r}, v20, v{r}")
    a("v_pk_mul_f32 v[92:93], v[92:93], v[20:21] op_sel_hi:[1,0]")
    a("v_pk_mul_f32 v[94:95], v[94:95], v[20:21] op_sel_hi:[1,0]")
    for i in range(4): a(f"v_cvt_pk_bf16_f32 v{16+i}, v{88+2*i}, v{89+2*i}")
    if "oexec" in opt: a(f"s_mov_b64 exec, {sr(S_OM,2)}")
    emit((f"ds_write_b128 {vOw}, v[16:19]", "Ow"))
    if "oexec" in opt: a("s_mov_b64 exec, -1")
    stamp()
    a(zero16(64))
    if "z2" not in opt: a(zero16(80))
    for _ in range(geti("xa", 0)): a(zero4(84) if "z2" in opt else zero4(76))
    emit(("w", "Ow"))
    a("s_barrier")
    emit((f"ds_read_b128 v[16:19], {vL16} offset:{L_OS}", "O0"))
    emit((f"ds_read_b128 v[20:23], {vL16} offset:{L_OS+1024}", "O1"))
    if "z3" not in opt: a(zero16(80))
    for _ in range(geti("xb", 0)): a("v_mfma_f32_16x16x16_bf16 v[76:79], v[10:11], v[10:11], 0")
    emit(("w", "O0" if "o01" in opt else "O1"))
    stamp()
    OA = [64 + 4 * T for T in range(8)]
    buf = {k: WB[k] for k in range(9)}
    for k in range(9, 16): buf[k] = WB[k - 9]
    def wo(k):
        T, ks = divmod(k, 2)
        return f"v_smfmac_f32_16x16x64_bf16 {vr(OA[T], 4)}, {vr(16 + 4*ks, 4)}, {vr(buf[k], 8)}, {vIdx}"
    def add(T):
        o = OA[T]; return [f"v_add_f32 v{o}, v{o}, v{o+1}", f"v_add_f32 v{o+2}, v{o+2}, v{o+3}"]
    def cvt(pi):
        o0, o1 = OA[2*pi], OA[2*pi + 1]
        return [f"v_cvt_pk_bf16_f32 v{o0}, v{o0}, v{o1}", f"v_cvt_pk_bf16_f32 v{o0+1}, v{o0+2}, v{o1+2}", f"v_and_or_b32 v{o0}, v{o0}, -2, s{S_TAG}"]
    stp = lambda pi: [f"buffer_store_dwordx2 {vr(OA[2*pi],2)}, {vPs}, {sr(S_WS,4)}, s{S_PST+pi//2} offen offset:{2048*(pi%2)}{st}"]
    fill = {k: [] for k in range(16)}
    if "o01" in opt: fill[0].append(("w", "O1"))
    rest = [rdWo(k, buf[k], h) for k in range(9, 16) for h in range(2)]
    sched_rd = {0: 2, 1: 2, 2: 2, 3: 1, 4: 1, 5: 1, 6: 0, 7: 1, 8: 1, 9: 1, 10: 0, 11: 2}
    waits = {8: 11, 11: 13, 13: 14, 14: 15}
    va = {3: add(0)[:1], 4: add(0)[1:], 5: add(1) + cvt(0), 6: stp(0), 7: add(2)[:1], 8: add(2)[1:], 9: add(3) + cvt(1), 10: stp(1),
          11: add(4)[:1], 12: add(4)[1:], 13: add(5) + cvt(2), 14: stp(2), 15: add(6)}
    if "st9" in opt: va[9] += va.pop(10)
    for k, n in sched_rd.items():
        for _ in range(n): fill[k].append(rest.pop(0))
    assert not rest
    for k, fr in waits.items(): fill[k].append(("w", ("W", fr)))
    for k, v in va.items(): fill[k] += v
    SEL, RD = 96, 100
    RS = [(104, 108), (112, 120)]
    fill[15] = [(f"ds_read_b128 {vr(SEL,4)}, {vL16} offset:{L_SEL}", "SEL")] + fill[15] + ["v_mov_b32 v117, -1", f"s_mov_b32 s{S_PC}, 0", "s_nop 2"] + add(7) + cvt(3) + stp(3)
    run([(wo(k), fill[k]) for k in range(16)])
    stamp()
    if "nocomm" in opt:
        a(zero16(64)); fx(); a(zero16(80))
        if stamps:
            a(f"s_cmp_eq_u32 s{S_STEP}, {nsteps-1}")
            a(f"s_cbranch_scc1 {pfx}_end")
        a(f"s_add_u32 s{S_STEP}, s{S_STEP}, 1")
        a("s_nop 7")
        a(f"s_branch {pfx}_gA")
    def ldp(st_):
        for n in range(2): a(f"buffer_load_dwordx4 {vr(RS[st_][n],4)}, {vPl}, {sr(S_WS,4)}, s{S_PLD} offen offset:{1024*n} sc1")
    de = geti("de", 4); dl = geti("dl", 6); d2 = geti("db", 3); d3 = geti("dc", 3)
    NOP = "s_nop 7"
    a(zero16(64))
    fx()
    a(zero16(80))
    if "lad" in opt:
        for _ in range(de - 2): a(NOP)
        for k, nm in enumerate(("la", "lb", "lc")):
            a(f"s_cmp_eq_u32 s{S_W}, {k}")
            a(f"s_cbranch_scc1 {pfx}_re")
            n = geti(nm, 0)
            for _ in range(n // 2): a(NOP)
            if n % 2: a("s_nop 3")
    else:
        a(f"s_cmp_lt_u32 s{S_W}, 2")
        for _ in range(de - 2): a(NOP)
        a(f"s_cbranch_scc1 {pfx}_re")
        for _ in range(dl): a(NOP)
    a.label(f"{pfx}_re")
    ldp(0)
    for _ in range(d2): a(zero16(80))
    ldp(1)
    emit(("w", "SEL"))
    for _ in range(d3): a(zero16(80))
    for _ in range(geti("dq", 0)): a(zero4(20))
    for _ in range(geti("dv", 0)): a("v_mov_b32 v21, 0"); a("s_nop 1")
    def fin(st_, nm):
        r0, r1 = RS[st_]
        a.label(f"{pfx}_rc{nm}")
        if "spin" in opt and nm == "A":
            for k in range(geti("sn", 8)):
                a(f"s_getreg_b32 s{S_T0}, hwreg(HW_REG_IB_STS, 0, 4)")
                a(f"s_cmp_le_u32 s{S_T0}, {geti('sv', 3)}")
                a(zero4(92))
                a(f"s_cbranch_scc1 {pfx}_sp")
            a.label(f"{pfx}_sp")
        a("s_waitcnt vmcnt(3)")
        a(f"v_mfma_f32_16x16x32_bf16 {vr(RD,4)}, {vr(SEL,4)}, {vr(r0,4)}, 0")
        a(f"v_and_b32 v118, 1, v{r0}")
        a(f"v_cmp_ne_u32 s[44:45], s{S_TAG}, v118")
        a("s_waitcnt vmcnt(2)")
        a(f"v_mfma_f32_16x16x32_bf16 v[16:19], {vr(SEL,4)}, {vr(r1,4)}, {vr(RD,4)}")
        a(f"v_and_b32 v119, 1, v{r1}")
        a("s_nop 2")
        a(f"v_cmp_ne_u32 vcc, s{S_TAG}, v119")
        a("s_nop 2")
        a("v_add_f32_dpp v16, v16, v16 row_ror:8 row_mask:0xf bank_mask:0xf")
        a("v_add_f32_dpp v17, v17, v17 row_ror:8 row_mask:0xf bank_mask:0xf")
        a("s_nop 0")
        a("v_add_f32_dpp v16, v16, v16 row_ror:4 row_mask:0xf bank_mask:0xf")
        a("v_add_f32_dpp v17, v17, v17 row_ror:4 row_mask:0xf bank_mask:0xf")
        a("s_or_b64 vcc, vcc, s[44:45]")
        a("v_cvt_pk_bf16_f32 v116, v16, v17")
        a(f"s_cbranch_vccnz {pfx}_rf{nm}")
    fin(0, "A")
    a.label(f"{pfx}_rok")
    stamp()
    if stamps: a(f"s_mov_b32 s{S_STAMP+28}, s{S_PC}")
    a(f"buffer_store_dword v116, {vMp}, {sr(S_WS,4)}, s{S_MWR} offen{st}")
    a(f"buffer_store_dword v117, {vMp}, {sr(S_WS,4)}, s{S_MPO} offen{st}")
    if stamps:
        a(f"s_mov_b32 s{S_STAMP+30}, s{S_STAMP+2*nst[0]}")
    stamp()
    if stamps:
        a(f"s_cmp_eq_u32 s{S_STEP}, {nsteps-1}")
        a(f"s_cbranch_scc1 {pfx}_end")
    ge = geti("ge", 5); g1 = geti("ga", 0); g2 = geti("gb", 3); g3 = geti("gc", 3)
    a(f"s_mov_b32 s{S_MPO}, s{S_MWR}")
    a(f"s_sub_u32 s{S_MRD}, s{S_MWR}, s{S_OWN}")
    if "lad" in opt:
        for k, nm in ((3, "mc"), (2, "mb"), (1, "ma")):
            a(f"s_cmp_eq_u32 s{S_W}, {k}")
            a(f"s_cbranch_scc1 {pfx}_gl")
            n = geti(nm, 0)
            for _ in range(n // 2): a(NOP)
            if n % 2: a("s_nop 3")
    else:
        a(f"s_cmp_ge_u32 s{S_W}, 2")
        a(f"s_cbranch_scc1 {pfx}_gl")
        for _ in range(ge): a(NOP)
    a.label(f"{pfx}_gl")
    for _ in range(g1): a(NOP)
    a(gather(0))
    if "stept" in opt:
        a("s_memrealtime s[70:71]")
        a(f"s_lshl_b32 s72, s{S_STEP}, 2"); a(f"s_add_u32 s72, s72, {L_JUNK}")
        a("v_mov_b32 v118, s72")
        a("s_waitcnt lgkmcnt(0)")
        a("v_mov_b32 v119, s70")
        a("ds_write_b32 v118, v119")
        g2 -= 1
    a(f"s_add_u32 s{S_MWR}, s{S_MWR}, 8192")
    a(f"s_cmp_ge_u32 s{S_MRD}, {hex(WS_MEM + 2*8192)}")
    a(f"s_cselect_b32 s{S_T0}, {3*8192}, 0")
    a(f"s_sub_u32 s{S_MWR}, s{S_MWR}, s{S_T0}")
    a(f"s_add_u32 s{S_STEP}, s{S_STEP}, 1")
    a(f"s_xor_b32 s{S_TAG}, s{S_TAG}, 1")
    if "mega" in opt:
        if "nofl" not in opt:
            a(f"v_readlane_b32 s{S_HAVE}, {vFl}, 0")
            a(f"v_readlane_b32 s{S_T0}, {vFl}, 2")
        a(f"s_add_u32 s{S_T1}, s{S_STEP}, 2")
        a(f"s_min_u32 s{S_T1}, s{S_T1}, 64")
        if "nofl" not in opt: a(f"s_min_u32 s{S_HAVE}, s{S_HAVE}, s{S_T0}")
        kv_wait(a, f"s{S_T1}", pfx + "_kvw")
        g2 -= 1
    a(f"s_mov_b32 s{S_PC}, 0")
    for _ in range(g2 - 1): a(NOP)
    a(gather(0))
    if "f1s" not in opt:
        for _ in range(g3): a(NOP)
        a(gather(1))
    for _ in range(geti("gw", 0)): a(zero16(96))
    a(f"s_branch {pfx}_gA")
    a.label(f"{pfx}_rfA")
    if "rstat" in opt: a("s_add_u32 s60, s60, 1")
    ldp(0)
    a(f"s_add_u32 s{S_PC}, s{S_PC}, 1")
    fin(1, "B")
    a(f"s_branch {pfx}_rok")
    a.label(f"{pfx}_rfB")
    if "rstat" in opt: a("s_add_u32 s63, s63, 1")
    ldp(1)
    a(f"s_add_u32 s{S_PC}, s{S_PC}, 1")
    a(f"s_cmp_lt_u32 s{S_PC}, s{S_PMAX}")
    a(f"s_cbranch_scc1 {pfx}_rcA")
    a(f"s_mov_b32 s{S_PMAX}, 1")
    a(f"s_branch {pfx}_rok")
    if not stamps:
        a.label(pfx + "_last")
        for x in kvm: a(x)
        early = [m for m in last_ms if any(f", {vr(F[sg],4)}," in m for sg in (1, 2, 4, 6))]
        late = [m for m in last_ms if m not in early]
        for m in early: a(m)
        a("s_waitcnt lgkmcnt(0)")
        for m in late: a(m)
        for x in pk0 + pk1: a(x)
        a("s_nop 1")
        for x in pv0 + pv1: a(x)
    a.label(pfx + "_end")
    a(kvm[0])
    if "stept" in opt:
        a(f"v_lshrrev_b32 v118, 2, {vL16}")
        a(f"ds_read_b32 v119, v118 offset:{L_JUNK}")
        a(f"s_lshl_b32 s72, s{S_H}, 8"); a(f"s_add_u32 s72, s72, {hex(WS_STAMP + 0x20000)}")
        a("s_waitcnt lgkmcnt(0)")
        a(f"buffer_store_dword v119, v118, {sr(S_WS,4)}, s72 offen")
    return nst[0]
```

```python
from common import *
from pre import rnd1, rnd2, MASK, S_TID, xsum_g
import math
import common
def tstamp(a, opt, idx):
    if "midst" in opt and idx < 16 and "time" in opt:
        l = a.uid("ts")
        a("s_cselect_b32 s80, 1, 0")
        a(f"s_cmp_ge_u32 s{S_SEG}, 52"); a(f"s_cbranch_scc1 {l}")
        common.tstamp(a, opt, idx, "v47")
        a.label(l)
        a("s_cmp_lg_u32 s80, 0")
    else: common.tstamp(a, opt, idx, "v47")

S_X, S_O = 20, 24
S_SEG, S_TAG, S_PC, S_PMAX, S_SC, S_L2E = 28, 29, 30, 31, 18, 19
S_P1S, S_P1L, S_P1S2 = 52, 53, 54
S_SLOT, S_PSLOT = 55, 56
S_H2B, S_H2O, S_ACTW, S_ACTR = 57, 58, 59, 60
S_KV, S_Q, S_KM, S_KMV, S_ROW, S_OUT, S_FLG, S_HAVE, S_X2R = 61, 62, 63, 64, 65, 66, 67, 68, 69
S_MKV, S_MQ, S_MODE = 72, 73, 74
S_LIM = 64
S_STR, S_NXT, S_KMB, S_OUTB, S_KVE, S_QE, S_RWE = 76, 77, 78, 79, 81, 82, 83
XS = 48
def set_xs(opt):
    global XS
    XS = 48
    for o in opt:
        if o.startswith('xs') and o[2:].isdigit(): XS = int(o[2:])
vL16, vCol, vP, vKw, vKr, vHg, vHw, vHr, vOw, vZero, vQr, vVr, vEw, vEr, vEo = ["v%d" % i for i in range(1, 16)]
MC = 16
BIAS, SEL = 24, 32
vX2g = "v36"
XR = 37
T0, T1, T2 = 38, 39, 40
L_O, L_ST, L_E, L_KV, L_Q, L_K, L_H = 0, 16384, 20480, 32768, 65536, 81920, 98304
FS, RTS = 1088, 17408
WoF = lambda ct, ks, off=0, n=4: ar((ct * 8 + ks) * 4 + off, n)
GF = lambda m, ks, off=0, n=4: ar(128 + (m * 16 + ks) * 4 + off, n)
DF = lambda t, ks, off=0, n=4: vr(144 + (t * 14 + ks) * 4 + off, n)

def wave_sum(a, x, t):
    a("s_nop 1")
    for ror in (1, 2, 4, 8):
        a(f"v_add_f32_dpp v{x}, v{x}, v{x} row_ror:{ror} row_mask:0xf bank_mask:0xf")
        if ror < 8: a("s_nop 1")
    xsum_g(a, x, t)

def emit_post_addr(a, opt=()):
    LE = lambda *x, **k: lane_expr(a, *x, tmp="v47", **k)
    WS = sr(S_WS, 4)
    LE(vL16, "v0", [(0, 6, 4)])
    LE(vCol, "v0", [(6, 2, 8), (2, 2, 6), (5, 1, 5), (0, 2, 3), (4, 1, 2)])
    LE(vP, "v0", [(0, 4, 14), (4, 2, 4)])
    LE(vKw, "v0", [(6, 2, 12), (0, 4, 5), (4, 2, 3)], L_K)
    LE("v48", "v0", [(2, 2, 3)]); a(f"v_xor_b32 {vKw}, {vKw}, v48")
    LE(vKr, "v0", [(6, 2, 12), (0, 6, 3)], L_K)
    LE("v48", "v0", [(4, 2, 3)]); a(f"v_xor_b32 {vKr}, {vKr}, v48")
    LE(vHg, "v0", [(4, 2, 11), (6, 2, 8), (0, 4, 4)])
    LE("v48", "v0", [(6, 2, 2), (2, 2, 0)])
    a(f"v_mul_u32_u24 {vHw}, {FS}, v48")
    a("v_and_b32 v48, 3, v0"); a("v_mul_u32_u24 v48, 272, v48"); a(f"v_add_u32 {vHw}, {vHw}, v48")
    LE("v48", "v0", [(4, 2, 4)], L_H); a(f"v_add_u32 {vHw}, {vHw}, v48")
    a("v_bfe_u32 v48, v0, 4, 2"); a(f"v_mul_u32_u24 {vHr}, 272, v48")
    LE("v48", "v0", [(0, 4, 4)], L_H); a(f"v_add_u32 {vHr}, {vHr}, v48")
    LE(vOw, "v0", [(6, 1, 13), (7, 1, 12), (0, 6, 4)], L_O)
    a(f"v_mov_b32 {vZero}, 0")
    LE(vQr, "v0", [(6, 2, 12), (0, 6, 4)], L_Q)
    LE(vVr, "v0", [(7, 1, 14), (0, 6, 4)], L_KV)
    LE(vEw, "v0", [(6, 2, 11), (0, 6, 4)], L_E)
    LE(vEr, "v0", [(3, 1, 10), (1, 2, 8), (4, 4, 4), (0, 1, 3)], L_E)
    LE(vEo, "v0", [(4, 4, 10), (0, 4, 2)])
    LE(vX2g, "v0", [(4, 4, 11), (0, 4, 2)])
    a(f"s_sub_u32 s50, s{S_TEAM}, {T0_}")
    sexpr(a, S_P1S, [(50, 0, 3, 20), (S_H, 0, 1, 13), (S_W, 1, 1, 12), (S_H, 1, 4, 8), (S_W, 0, 1, 7)], WS_P1)
    a(f"s_add_u32 s{S_P1S2}, s{S_P1S}, {16*16384}")
    sexpr(a, S_P1L, [(50, 0, 3, 20), (S_H, 0, 5, 14), (S_W, 0, 2, 12)], WS_P1)
    sexpr(a, S_H2B, [(50, 0, 3, 18)], WS_H2)
    sexpr(a, S_H2O, [(50, 0, 3, 18), (S_H, 0, 5, 11)], WS_H2)
    sexpr(a, S_X2R, [(50, 0, 3, 18), (S_H, 0, 1, 15), (S_H, 1, 4, 6)], WS_H2 + 1024)
    sexpr(a, S_ACTW, [(50, 0, 3, 19), (S_H, 0, 5, 11), (S_W, 1, 1, 10), (S_W, 0, 1, 3)], WS_ACT)
    a(f"s_and_b32 s48, s{S_H}, 1"); a(f"s_mul_i32 s48, s48, {56*1024}")
    a(f"s_mul_i32 s51, s{S_W}, {14*1024}"); a("s_add_u32 s48, s48, s51")
    sexpr(a, S_ACTR, [(50, 0, 3, 19)], WS_ACT); a(f"s_add_u32 s{S_ACTR}, s{S_ACTR}, s48")

def emit_post_weights(a, opt):
    LE = lambda *x, **k: lane_expr(a, *x, tmp="v47", **k)
    WS = sr(S_WS, 4)
    def geti(p, d):
        for o in opt:
            if o.startswith(p) and o[len(p):].isdigit(): return int(o[len(p):])
        return d
    import mega
    a.c("==== T role: team-buffer init + stationary weights ====")
    a("s_load_dwordx2 s[34:35], s[0:1], 40")
    a("s_load_dwordx4 s[36:39], s[0:1], 64")
    a("s_load_dwordx2 s[40:41], s[0:1], 80")
    emit_post_addr(a, opt)
    LE("v60", "v0", [(3, 3, 10)]); LE("v61", "v0", [(0, 3, 4)]); LE("v62", "v0", [(4, 2, 5)])
    a("v_xor_b32 v62, v61, v62"); a("v_add_u32 v66, v60, v62")
    LE("v67", "v0", [(6, 2, 15), (2, 4, 7), (1, 1, 4), (3, 2, 5), (0, 1, 3)])
    LE("v60", "v0", [(2, 4, 10)]); LE("v62", "v0", [(0, 2, 4)]); LE("v63", "v0", [(4, 1, 5)])
    a("v_xor_b32 v62, v62, v63"); a("v_add_u32 v68, v60, v62")
    LE("v69", "v0", [(6, 2, 15), (2, 4, 6), (1, 1, 4), (4, 1, 5), (0, 1, 3)])
    a("v_xor_b32 v70, 32, v69")
    a("v_bfe_u32 v60, v0, 3, 3"); a("v_mul_u32_u24 v60, 3584, v60")
    a("v_xor_b32 v62, v61, v63"); a("v_add_u32 v71, v60, v62")
    a("v_xor_b32 v62, 64, v62"); a("v_add_u32 v72, v60, v62")
    LE("v60", "v0", [(4, 2, 10), (2, 2, 7), (0, 1, 3)]); LE("v62", "v0", [(6, 2, 5), (1, 1, 4)]); LE("v63", "v0", [(3, 1, 5), (4, 1, 6)])
    a("v_xor_b32 v62, v62, v63"); a("v_add_u32 v73, v60, v62"); a("v_add_u32 v74, 0x10000, v73")
    S_LB, S_WOS, S_DNS, S_GUS = 76, 77, 78, 79
    sexpr(a, S_LB, [(S_W, 0, 2, 15)])
    sexpr(a, S_WOS, [(S_H, 1, 4, 18), (S_H, 0, 1, 9), (S_W, 0, 2, 7)])
    a(f"s_mul_i32 s{S_DNS}, s{S_W}, {448*1024}"); sexpr(a, 48, [(S_H, 1, 4, 6)]); a(f"s_add_u32 s{S_DNS}, s{S_DNS}, s48")
    a(f"s_mul_i32 s{S_GUS}, s{S_W}, {128*3584}"); a(f"s_min_u32 s48, s{S_H}, 27"); a("s_lshl_b32 s48, s48, 7"); a(f"s_add_u32 s{S_GUS}, s{S_GUS}, s48")
    a(f"s_cmp_lg_u32 s{S_CLM}, 0")
    a("s_cbranch_scc1 T_nw")
    for _ in range(geti("ts", 2)): a("s_sleep 64")
    claim(a)
    verify_claim(a, 0, 163840 - 64)
    wl = geti("wl", 8)
    a(f"s_cmp_ge_u32 s{S_TEAM}, {wl}")
    a(f"s_cselect_b32 s50, {D_LN1}, {D_MOD1}")
    a("s_lshl_b32 s50, s50, 2")
    dbg_wait(a, 0, 32, "v44", "v45", soff=50, sleep=40, limit=10)
    if geti("tx", 0):
        a(f"s_cmp_lt_u32 s{S_TEAM}, {wl}")
        a("s_cbranch_scc1 T_nw")
        a(f"s_sleep {32 * geti('tx', 0) - 1}")
    a.label("T_nw")
    a("s_waitcnt lgkmcnt(0)")
    tstamp(a, opt, 16)
    q = VmQ(a)
    def batch(tag, ptr, nbytes, sbase, voff, half, idxs, rowbytes):
        srd(a, S_T, ptr, nbytes)
        for n, i in enumerate(idxs):
            a(f"s_add_u32 m0, s{S_LB}, {half * 16384 + n * 1024}")
            a(f"s_add_u32 s48, s{sbase}, {i * rowbytes}")
            a(f"buffer_load_dwordx4 v{voff(i)}, {sr(S_T,4)}, s48 offen lds")
            if geti("tw", 0): a(f"s_waitcnt vmcnt({geti('tw', 0)})")
        q.issue(tag, len(idxs))
    wo = lambda h: batch(("wo", h), 34, 4194304, S_WOS, lambda i: 66, h, range(16 * h, 16 * h + 16), 8 * 1024)
    dn = lambda h: batch(("dn", h), 40, 1792 * 1024, S_DNS, lambda i: 68, h, range(16 * h, min(16 * h + 16, 28)), 16 * 1024)
    gu = lambda m: batch(("gu", m), 36 + 2 * m, 512 * 3584, S_GUS, lambda i: 71 + (i & 1), m, range(16), 8 * 3584)
    wo(0); wo(1)
    for h in range(2):
        q.wait(("wo", h))
        for ct in range(4):
            a(f"v_xor_b32 v65, {32 * ct}, v67")
            for ks in range(4 * h, 4 * h + 4):
                for u in range(2):
                    a(f"ds_read_b64_tr_b16 {WoF(ct, ks, 2*u, 2)}, v65 offset:{(32*ks + 16*u) * 128}")
        a("s_waitcnt lgkmcnt(0)")
        dn(h)
    tstamp(a, opt, 17)
    for h in range(2):
        q.wait(("dn", h))
        for t in range(2):
            for ks in range(8 * h, min(8 * h + 8, 14)):
                for u in range(2):
                    a(f"ds_read_b64_tr_b16 {DF(t, ks, 2*u, 2)}, v{69+t} offset:{(32*ks + 16*u) * 64}")
        a("s_waitcnt lgkmcnt(0)")
        gu(h)
    tstamp(a, opt, 18)
    a(f"v_mov_b32 v46, {163840 - 32}")
    a(f"s_cmp_lg_u32 s{S_W}, 0")
    a("s_cbranch_scc1 T_mdw")
    a(f"s_mov_b32 s{S_MODE}, 1")
    mega.emit_mode(a, opt, "T_md1", "v44", "v45")
    a(f"s_mov_b32 s{S_MODE}, 0")
    a.label("T_md1")
    a(f"v_mov_b32 v45, s{S_MODE}")
    a("ds_write_b32 v46, v45")
    a.label("T_mdw")
    a("s_waitcnt vmcnt(0) lgkmcnt(0)")
    a("s_barrier")
    tstamp(a, opt, 19)
    a("ds_read_b32 v45, v46")
    a("s_waitcnt lgkmcnt(0)")
    a(f"v_readfirstlane_b32 s{S_MODE}, v45")
    a("s_nop 3")
    a(f"s_cmp_lg_u32 s{S_MODE}, 0")
    a("s_cbranch_scc1 T_init1")
    for mode, st in ((0, ""), (1, " sc1")):
        a.label(f"T_init{mode}")
        for i in range(2): a(f"v_mov_b32 v{48+i}, -1")
        for i in range(4): a(f"v_mov_b32 v{52+i}, 0")
        for k in range(4):
            a(f"buffer_store_dwordx4 v[52:55], {vL16}, {WS}, s{S_P1L} offen offset:{1024*k}{st}")
        for sl in range(3):
            a(f"s_add_u32 s48, s{S_H2O}, {sl*65536}")
            a(f"buffer_store_dword v48, {vCol}, {WS}, s48 offen{st}")
            a(f"buffer_store_dword v48, {vCol}, {WS}, s48 offen offset:1024{st}")
        a(f"s_cmp_ge_u32 s{S_H}, 28")
        a(f"s_cbranch_scc1 T_nopa{mode}")
        for sl in range(3):
            for rt in range(2):
                a(f"s_add_u32 s48, s{S_ACTW}, {sl*131072 + rt*56*1024}")
                a(f"buffer_store_dwordx2 v[48:49], {vL16}, {WS}, s48 offen{st}")
        a.label(f"T_nopa{mode}")
        if mode == 0: a("s_branch T_initd")
    a.label("T_initd")
    for m in range(2):
        for ks in range(16):
            for u in range(2):
                off = ((ks // 4) % 2) * 32768 + m * 16384 + (32 * (ks % 4) + 4 * u) * 128
                a(f"ds_read_b64_tr_b16 {GF(m, ks, 2*u, 2)}, v{73 + ks // 8} offset:{off}")
    a("s_waitcnt vmcnt(0) lgkmcnt(0)")
    a("s_barrier")
    a(f"s_cmp_lg_u32 s{S_W}, 0")
    a("s_cbranch_scc1 T_noarr")
    a(f"s_lshl_b32 s50, s{S_TEAM}, 2")
    dbg_arrive(a, D_INIT - T0_, "v44", "v45", soff=50)
    a.label("T_noarr")

def emit_post_final(a, opt):
    LE = lambda *x, **k: lane_expr(a, *x, tmp="v47", **k)
    WS = sr(S_WS, 4)
    a("s_load_dwordx2 s[32:33], s[0:1], 0")
    a("s_load_dwordx2 s[42:43], s[0:1], 104")
    dbg_wait(a, D_MOD2, 32, "v44", "v45", sleep=32)
    a(f"s_mov_b32 s48, {hex(WS_MOD + 2048)}")
    for i, k in enumerate((0, 2, 1)):
        a(f"buffer_load_dword v{56+i}, {vCol}, {WS}, s48 offen offset:{1024*k} sc1")
    LE("v60", "v0", [(0, 4, 2)])
    sexpr(a, 48, [(S_H, 1, 4, 6)], WS_MOD + 5 * 1024)
    a(f"buffer_load_dword v59, v60, {WS}, s48 offen sc1")
    a("s_waitcnt vmcnt(0) lgkmcnt(0)")
    for i in range(4):
        a(f"v_lshlrev_b32 v{MC+2*i}, 16, v{56+i}")
        a(f"v_and_b32 v{MC+2*i+1}, s{MASK}, v{56+i}")
    a(f"v_add_f32 v{MC+2}, 1.0, v{MC+2}"); a(f"v_add_f32 v{MC+3}, 1.0, v{MC+3}")
    rnd2(a, MC + 2, MC + 3, 47)
    srd(a, S_X, 32, 2048 * 1024)
    srd(a, S_O, 42, 2048 * 1024)
    a("v_and_b32 v60, 3, v0"); a("v_bfe_u32 v61, v0, 2, 2")
    a("v_mov_b32 v62, 0x3f80"); a("v_mov_b32 v63, 0x3f800000")
    a("v_cmp_eq_u32 vcc, 1, v60"); a("s_nop 1"); a("v_cndmask_b32 v62, v62, v63, vcc")
    a("v_cmp_gt_u32 vcc, 2, v60"); a("s_nop 1"); a("v_cndmask_b32 v62, 0, v62, vcc")
    for d in range(4):
        a(f"v_cmp_eq_u32 vcc, {d}, v61"); a("s_nop 1"); a(f"v_cndmask_b32 v{SEL+d}, 0, v62, vcc")
    LE("v60", "v0", [(6, 1, 4), (0, 4, 0)])
    LE("v61", "v0", [(4, 2, 2)])
    a(f"v_mov_b32 v63, {f32bits(-1e30)}")
    for t in range(2):
        for r in range(4):
            a(f"v_add_u32 v62, {16*t + r}, v61")
            a("v_cmp_gt_u32 vcc, v62, v60"); a("s_nop 1")
            a(f"v_cndmask_b32 v{BIAS+4*t+r}, 0, v63, vcc")
    a(f"s_sub_u32 s{S_SEG}, s{S_TEAM}, {T0_}")
    a(f"s_mov_b32 s{S_LIM}, 64")
    if "g2t" in opt:
        a(f"s_add_u32 s48, s{S_TEAM}, {XS - 2 if XS % 4 else XS + NT - 2}")
        a(f"s_cmp_lt_u32 s{S_TEAM}, {T0_}")
        a(f"s_cselect_b32 s{S_SEG}, s48, s{S_SEG}")
    sexpr(a, 50, [(S_H, 1, 4, 1), (S_W, 1, 1, 0)])
    a(f"s_mul_i32 s{S_KV}, s50, {HSTR}")
    sexpr(a, 48, [(S_W, 0, 1, 13)], WS_KV); a(f"s_add_u32 s{S_KV}, s{S_KV}, s48")
    a(f"s_mul_i32 s{S_Q}, s50, {QSTR}")
    sexpr(a, 48, [(S_W, 0, 1, 12)], WS_QX); a(f"s_add_u32 s{S_Q}, s{S_Q}, s48")
    sexpr(a, S_MKV, [(S_W, 0, 2, 13)], L_KV)
    sexpr(a, S_MQ, [(S_W, 0, 2, 12)], L_Q)
    a(f"s_mul_i32 s{S_KM}, s50, {MSTR}")
    a(f"s_add_u32 s{S_KMB}, s{S_KM}, {hex(WS_KM)}")
    sexpr(a, S_FLG, [(50, 0, 5, 7)], WS_FLAG)
    sexpr(a, S_ROW, [(S_H, 0, 5, 10)])
    sexpr(a, S_OUTB, [(S_H, 0, 1, 14), (S_H, 1, 4, 6)])
    seg_addrs(a)
    a(f"s_mov_b32 s{S_HAVE}, 0")
    a(f"s_mov_b32 s{S_TAG}, 1")
    a(f"s_mov_b32 s{S_SLOT}, 0")
    a(f"s_mov_b32 s{S_PSLOT}, 2")
    a(f"s_mov_b32 s{S_PMAX}, 100000")
    a(f"s_mov_b32 s{S_SC}, {f32bits(128 ** -0.5)}")
    a(f"s_mov_b32 s{S_L2E}, {f32bits(math.log2(math.e))}")
    a(f"s_lshl_b32 s50, s{S_TEAM}, 2")
    dbg_wait(a, D_INIT - T0_, 32, "v44", "v45", soff=50, sleep=24)

DEFER = []
def poll(a, name, loads, check, sleep=3):
    a(f"s_mov_b32 s{S_PC}, 0")
    a.label(name)
    loads()
    check()
    a(f"s_cbranch_vccnz {name}_f")
    a.label(name + "_ok")
    def tail():
        a.label(name + "_f")
        a(f"s_sleep {sleep}")
        a(f"s_add_u32 s{S_PC}, s{S_PC}, 1")
        a(f"s_cmp_lt_u32 s{S_PC}, s{S_PMAX}")
        a(f"s_cbranch_scc1 {name}")
        a(f"s_mov_b32 s{S_PMAX}, 1")
        a(f"s_branch {name}_ok")
    DEFER.append(tail)

def seg_addrs(a):
    a(f"s_lshl_b32 s48, s{S_SEG}, 12"); a(f"s_add_u32 s{S_KM}, s{S_KMB}, s48")
    a(f"s_lshl_b32 s48, s{S_SEG}, 15"); a(f"s_add_u32 s{S_OUT}, s{S_OUTB}, s48")

def pf_list():
    WS = sr(S_WS, 4)
    L = []
    for half in range(2):
        for i in range(4):
            L.append(([f"s_add_u32 m0, s{S_MKV}, {half*4096}", f"s_add_u32 s48, s{S_KVE}, {half*4096}"] if i == 0 else []) +
                     [f"buffer_load_dwordx4 {vL16}, {WS}, s48 offen offset:{1024*i} sc1 lds"])
    for i in range(4):
        L.append(([f"s_mov_b32 m0, s{S_MQ}", "s_nop 0"] if i == 0 else []) + [f"buffer_load_dwordx4 {vL16}, {WS}, s{S_QE} offen offset:{1024*i} sc1 lds"])
    L.append([f"buffer_load_dword v{XR}, {vCol}, {sr(S_X,4)}, s{S_RWE} offen"])
    return L

def prefetch(a, name, segreg, body=True):
    WS = sr(S_WS, 4)
    a(f"s_cmp_ge_u32 s{segreg}, s{S_LIM}")
    a(f"s_cbranch_scc1 {name}_skip")
    a(f"s_cmp_gt_u32 s{S_HAVE}, s{segreg}")
    a(f"s_cbranch_scc1 {name}_fok")
    a(f"s_mov_b32 s{S_PC}, 0")
    a.label(name + "_fl")
    a("s_mov_b64 exec, 3")
    a(f"buffer_load_dword v45, {vL16}, {WS}, s{S_FLG} offen sc1")
    a("s_mov_b64 exec, -1")
    a("s_waitcnt vmcnt(0)")
    a(f"v_readlane_b32 s{S_HAVE}, v45, 0"); a("v_readlane_b32 s48, v45, 1")
    a("s_nop 1")
    a(f"s_min_u32 s{S_HAVE}, s{S_HAVE}, s48")
    a(f"s_cmp_gt_u32 s{S_HAVE}, s{segreg}")
    a(f"s_cbranch_scc1 {name}_fok")
    a("s_sleep 8")
    a(f"s_add_u32 s{S_PC}, s{S_PC}, 1")
    a(f"s_cmp_lt_u32 s{S_PC}, s{S_PMAX}")
    a(f"s_cbranch_scc1 {name}_fl")
    a(f"s_mov_b32 s{S_PMAX}, 1")
    a.label(name + "_fok")
    a(f"s_lshl_b32 s48, s{segreg}, 14"); a(f"s_add_u32 s{S_KVE}, s{S_KV}, s48")
    a(f"s_lshl_b32 s48, s{segreg}, 13"); a(f"s_add_u32 s{S_QE}, s{S_Q}, s48")
    a(f"s_lshl_b32 s48, s{segreg}, 15"); a(f"s_add_u32 s{S_RWE}, s{S_ROW}, s48")
    if not body: return
    for g in pf_list():
        for x in g: a(x)
    a.label(name + "_skip")

def emit_post_loop(a, fast, pfx, opt):
    def geti(p, d):
        for o in opt:
            if o.startswith(p) and o[len(p):].isdigit(): return int(o[len(p):])
        return d
    st = "" if fast else " sc1"
    WS = sr(S_WS, 4)
    QF, KX, VX, KF, SS, KMR = 48, 64, 64, 96, 112, 124
    WARM = f"v_mfma_f32_32x32x2_f32 v[80:95], {vZero}, {vZero}, 0"
    prefetch(a, pfx + "_pf0", S_SEG)
    if "g2t" in opt:
        a(f"s_cmp_ge_u32 s{S_TEAM}, {T0_}")
        a(f"s_cselect_b32 s48, 1, s{S_W}")
        a("s_cmp_lg_u32 s48, 0")
        a(f"s_cbranch_scc1 {pfx}_lw_ok")
        a(f"s_sub_u32 s49, s{S_KM}, {2*4096}")
        a(f"s_mov_b32 s{S_PC}, 0")
        a("s_mov_b64 exec, 1")
        a.label(pfx + "_lw")
        a(f"buffer_load_dword v45, {vL16}, {WS}, s49 offen sc1")
        a("s_waitcnt vmcnt(0)")
        a("v_readfirstlane_b32 s48, v45")
        a("s_cmp_lg_u32 s48, -1")
        a(f"s_cbranch_scc1 {pfx}_lw_x")
        a("s_sleep 16")
        a(f"s_add_u32 s{S_PC}, s{S_PC}, 1")
        a(f"s_cmp_lt_u32 s{S_PC}, 20000")
        a(f"s_cbranch_scc1 {pfx}_lw")
        a.label(pfx + "_lw_x")
        a("s_mov_b64 exec, -1")
        a.label(pfx + "_lw_ok")
    a("s_waitcnt vmcnt(0)")
    a("s_barrier")
    a.raw(".p2align 6")
    a.label(pfx + "_loop")
    tstamp(a, opt, 0)
    def ldkm():
        for i in range(4): a(f"buffer_load_dwordx4 {vr(KMR+4*i,4)}, {vL16}, {WS}, s{S_KM} offen offset:{1024*i} sc1")
    if "wbl" in opt:
        a(f"s_cmp_lt_u32 s{S_SEG}, {64-NT}")
        a(f"s_cselect_b32 s48, 1, s{S_W}")
        a(f"s_or_b32 s48, s48, s{S_H}")
        a(f"s_cbranch_scc1 {pfx}_nwb")
        a("buffer_wbl2 sc1")
        a.label(pfx + "_nwb")
    ldkm()
    for ks in range(4):
        a(f"ds_read_b128 {vr(QF+4*ks,4)}, {vQr} offset:{1024*ks}")
        for t in range(2):
            i = t * 4 + ks
            a(f"ds_read_b128 {vr(KX+4*i,4)}, {vVr} offset:{(i//2)*4096 + (i%2)*1024}")
    for ks in range(4):
        a(f"s_waitcnt lgkmcnt({9-3*ks})")
        for t in range(2):
            d = vr(SS + 4 * t, 4)
            a(f"v_mfma_f32_16x16x32_bf16 {d}, {vr(KX+4*(t*4+ks),4)}, {vr(QF+4*ks,4)}, {d if ks else vr(BIAS+4*t,4)}")
    for i in range(8):
        a(f"ds_read_b128 {vr(VX+4*i,4)}, {vVr} offset:{(i//2)*4096 + 2048 + (i%2)*1024}")
    def scale(regs):
        for i in range(0, len(regs), 2): rnd2(a, regs[i], regs[i+1], T2)
        for r in regs: a(f"v_mul_f32 v{r}, s{S_SC}, v{r}")
        for i in range(0, len(regs), 2): rnd2(a, regs[i], regs[i+1], T2)
    scale(list(range(SS, SS + 8)))
    MX, LX = 41, 46
    a(f"v_max3_f32 v{MX}, v{SS}, v{SS+1}, v{SS+2}"); a(f"v_max3_f32 v{T1}, v{SS+3}, v{SS+4}, v{SS+5}")
    a(f"v_max3_f32 v{MX}, v{MX}, v{SS+6}, v{SS+7}"); a(f"v_max_f32 v{MX}, v{MX}, v{T1}")
    xsum_g(a, MX, T1, "v_max_f32")
    a(f"v_mul_f32 v{T0}, s{S_L2E}, v{MX}")
    for r in range(8): a(f"v_fma_f32 v{SS+r}, v{SS+r}, s{S_L2E}, -v{T0}")
    for r in range(8): a(f"v_exp_f32 v{SS+r}, v{SS+r}")
    a(f"v_add_f32 v{LX}, v{SS}, v{SS+1}"); a(f"v_add_f32 v{T0}, v{SS+2}, v{SS+3}"); a(f"v_add_f32 v{T1}, v{SS+4}, v{SS+5}")
    a(f"v_add_f32 v{T2}, v{SS+6}, v{SS+7}"); a(f"v_add_f32 v{LX}, v{LX}, v{T0}"); a(f"v_add_f32 v{T1}, v{T1}, v{T2}")
    a(f"v_add_f32 v{LX}, v{LX}, v{T1}")
    PX, PM0, OC = 140, 44, 96
    a(f"v_mov_b32 v{PM0+1}, 0")
    tstamp(a, opt, 1)
    a(f"s_mov_b32 s{S_PC}, 0")
    a.label(pfx + "_km")
    a("s_waitcnt vmcnt(0)")
    a(f"v_max3_u32 v{T0}, v{KMR}, v{KMR+4}, v{KMR+8}")
    a(f"v_max_u32 v{T0}, v{T0}, v{KMR+12}")
    a(f"v_cmp_eq_u32 vcc, -1, v{T0}")
    for i in range(4): a(f"ds_write2st64_b32 {vKw}, v{KMR+4*i+1}, v{KMR+4*i+3} offset0:{4*i} offset1:{4*i+2}")
    a(f"s_cbranch_vccnz {pfx}_km_f")
    def kmtail():
        a.label(pfx + "_km_f")
        a(f"s_sleep {geti('tk', 3)}")
        ldkm()
        a(f"s_add_u32 s{S_PC}, s{S_PC}, 1")
        a(f"s_cmp_lt_u32 s{S_PC}, s{S_PMAX}")
        a(f"s_cbranch_scc1 {pfx}_km")
        a(f"s_mov_b32 s{S_PMAX}, 1")
        a("s_waitcnt vmcnt(0)")
        a(f"s_branch {pfx}_km_ok")
    DEFER.append(kmtail)
    a.label(pfx + "_km_ok")
    tstamp(a, opt, 2)
    for ks in range(4):
        for u in range(2):
            a(f"ds_read_b64_tr_b16 {vr(KF+4*ks+2*u,2)}, {vKr} offset:{1024*ks+512*u}")
    for ks in range(4):
        a(f"s_waitcnt lgkmcnt({6-2*ks})")
        d = vr(SS + 8, 4)
        a(f"v_mfma_f32_16x16x32_bf16 {d}, {vr(KF+4*ks,4)}, {vr(QF+4*ks,4)}, {d if ks else 0}")
    a("s_nop 7")
    scale([SS + 8, SS + 9])
    a(f"v_max3_f32 v{T0}, v{MX}, v{SS+8}, v{SS+9}")
    xsum_g(a, T0, T1, "v_max_f32")
    a(f"v_mul_f32 v{T0}, s{S_L2E}, v{T0}")
    a(f"v_fma_f32 v{MX}, v{MX}, s{S_L2E}, -v{T0}")
    for r in (8, 9): a(f"v_fma_f32 v{SS+r}, v{SS+r}, s{S_L2E}, -v{T0}")
    a(f"v_exp_f32 v{MX}, v{MX}")
    for r in (8, 9): a(f"v_exp_f32 v{SS+r}, v{SS+r}")
    a(f"v_fma_f32 v{LX}, v{LX}, v{MX}, v{SS+8}")
    a(f"v_add_f32 v{LX}, v{LX}, v{SS+9}")
    xsum_g(a, LX, T1)
    a(f"v_rcp_f32 v{LX}, v{LX}")
    a("s_nop 0")
    a(f"v_mul_f32 v42, v{LX}, v{MX}")
    a(f"v_pk_mul_f32 {vr(SS+8,2)}, {vr(SS+8,2)}, {vr(LX,2)} op_sel_hi:[1,0]")
    for r in range(0, 8, 2): a(f"v_pk_mul_f32 {vr(SS+r,2)}, {vr(SS+r,2)}, v[42:43] op_sel_hi:[1,0]")
    a(f"v_cvt_pk_bf16_f32 v{PM0}, v{SS+8}, v{SS+9}")
    for i in range(4): a(f"v_cvt_pk_bf16_f32 v{PX+i}, v{SS+2*i}, v{SS+2*i+1}")
    oc = lambda i: (96 + 4 * i) if i < 4 else (48 + 4 * (i - 4))
    def pk(i2):
        b = oc(2 * i2)
        return [f"v_cvt_pk_bf16_f32 v{SS+4*(i2%2)+k}, v{b+2*k}, v{b+2*k+1}" for k in range(4)] + [f"ds_write_b128 {vOw}, {vr(SS+4*(i2%2),4)} offset:{1024*i2}"]
    for i in range(8):
        a(f"v_mfma_f32_16x16x16_bf16 {vr(oc(i),4)}, {vr(KMR+2*i,2)}, {vr(PM0,2)}, 0")
    for i in range(8):
        a(f"v_mfma_f32_16x16x32_bf16 {vr(oc(i),4)}, {vr(VX+4*i,4)}, {vr(PX,4)}, {vr(oc(i),4)}")
        if i in (3, 5, 7):
            for x in pk((i - 3) // 2): a(x)
    a("s_nop 3")
    for x in pk(3): a(x)
    a("s_waitcnt lgkmcnt(0)"); a("s_barrier")
    OF = 48
    for i in range(16): a(f"ds_read_b128 {vr(OF+4*i,4)}, {vL16} offset:{L_O+1024*i}")
    tstamp(a, opt, 3)
    jobs = [(cq, rt) for rt in range(2) for cq in range(2)]
    def epi(n):
        cq, rt = jobs[n]; ac = 112 + (n % 2) * 8; g = 128 + (n % 2) * 4
        return [f"v_cvt_pk_bf16_f32 v{g+i}, v{ac+2*i}, v{ac+2*i+1}" for i in range(4)] + [f"v_and_or_b32 v{g}, v{g}, -2, s{S_TAG}",
                f"buffer_store_dwordx4 {vr(g,4)}, {vP}, {WS}, s{(S_P1S, S_P1S2)[rt]} offen offset:{64*cq}{st}"]
    for n, (cq, rt) in enumerate(jobs):
        ac = 112 + (n % 2) * 8
        e = epi(n - 1) if n else []
        k = 0
        for ks in range(8):
            if n == 0: a(f"s_waitcnt lgkmcnt({15-ks})")
            if n == 2 and ks == 0: a("s_waitcnt lgkmcnt(0)")
            for u in range(2):
                d = vr(ac + 4 * u, 4)
                a(f"v_mfma_f32_16x16x32_bf16 {d}, {WoF(2*cq+u, ks)}, {vr(OF+4*(rt*8+ks),4)}, {d if ks else 0}")
                k += 1
                if k >= 2:
                    for x in e[2*(k-2):2*(k-1)]: a(x)
    a("s_nop 7")
    for x in epi(3): a(x)
    tstamp(a, opt, 4)
    if geti("t1", 3): a(f"s_sleep {geti('t1', 3)}")
    R = 48
    def ld():
        for i in range(4):
            a(f"buffer_load_dwordx4 {vr(R+4*i,4)}, {vL16}, {WS}, s{S_P1L} offen offset:{1024*i} sc1")
    def ck():
        for i in range(4):
            a(f"s_waitcnt vmcnt({3-i})")
            a(f"v_mfma_f32_16x16x32_bf16 v[112:115], {vr(SEL,4)}, {vr(R+4*i,4)}, {'v[112:115]' if i else 0}")
            a(f"v_xor_b32 v{T1 if i else T0}, s{S_TAG}, v{R+4*i}")
            if i: a(f"v_or_b32 v{T0}, v{T0}, v{T1}")
        a(f"v_and_b32 v{T0}, 1, v{T0}")
        a(f"v_cmp_ne_u32 vcc, 0, v{T0}")
        a(f"v_lshlrev_b32 v116, 16, v{XR}"); a(f"v_and_b32 v117, s{MASK}, v{XR}")
        a(f"s_lshl_b32 s48, s{S_W}, 3"); a("v_mov_b32 v43, s48")
    poll(a, pfx + "_r1", ld, ck, sleep=1)
    tstamp(a, opt, 5)
    rnd2(a, 112, 113, T0)
    a(f"v_mul_f32 v112, v{MC}, v112"); a(f"v_mul_f32 v113, v{MC+1}, v113")
    rnd2(a, 112, 113, T0)
    a("v_add_f32 v116, v116, v112"); a("v_add_f32 v117, v117, v113")
    rnd2(a, 116, 117, 118)
    a(f"s_lshl_b32 s49, s{S_SLOT}, 16"); a(f"s_add_u32 s50, s{S_H2O}, s49")
    a("v_readfirstlane_b32 s51, v116")
    a("s_nop 1")
    a("v_subrev_f32 v112, s51, v116"); a("v_subrev_f32 v113, s51, v117")
    a("v_add_f32 v120, v112, v113")
    a("v_mul_f32 v121, v112, v112"); a("v_fmac_f32 v121, v113, v113")
    for ror in (1, 2, 4, 8):
        a("s_nop 0")
        for r in (120, 121): a(f"v_add_f32_dpp v{r}, v{r}, v{r} row_ror:{ror} row_mask:0xf bank_mask:0xf")
    for sw in ("32", "16"):
        a("v_mov_b32 v122, v120"); a("v_mov_b32 v123, v121"); a("s_nop 0")
        a(f"v_permlane{sw}_swap_b32 v120, v122"); a(f"v_permlane{sw}_swap_b32 v121, v123")
        a("v_add_f32 v120, v120, v122"); a("v_add_f32 v121, v121, v123")
    a(f"v_mul_f32 v122, {f32bits(1/128)}, v120")
    a("v_fma_f32 v121, -v120, v122, v121")
    a("v_add_f32 v120, s51, v122")
    a(f"ds_write_b64 v43, v[120:121] offset:{L_ST}")
    a(WARM)
    a("s_waitcnt lgkmcnt(0)"); a("s_barrier")
    a(f"ds_read_b128 v[124:127], {vZero} offset:{L_ST}")
    a(f"ds_read_b128 v[128:131], {vZero} offset:{L_ST+16}")
    a(WARM)
    a("s_waitcnt lgkmcnt(0)")
    a("v_add_f32 v120, v124, v126"); a("v_add_f32 v121, v128, v130"); a("v_add_f32 v120, v120, v121")
    a("v_mul_f32 v120, 0.25, v120")
    a("v_add_f32 v122, v125, v127"); a("v_add_f32 v123, v129, v131"); a("v_add_f32 v122, v122, v123")
    for r in (124, 126, 128, 130): a(f"v_sub_f32 v{r}, v{r}, v120")
    a("v_mul_f32 v123, v124, v124")
    for r in (126, 128, 130): a(f"v_fmac_f32 v123, v{r}, v{r}")
    a(f"v_mul_f32 v122, {f32bits(1/512)}, v122")
    a("v_fmac_f32 v122, 0.25, v123")
    rnd1(a, 120); rnd1(a, 122)
    a(f"v_add_f32 v122, {f32bits(1e-5)}, v122"); rnd1(a, 122)
    a("v_sqrt_f32 v122, v122")
    a("v_sub_f32 v112, v116, v120"); a("v_sub_f32 v113, v117, v120")
    rnd1(a, 122)
    a("v_rcp_f32 v122, v122")
    rnd2(a, 112, 113, T0)
    a("v_mul_f32 v112, v112, v122"); a("v_mul_f32 v113, v113, v122")
    rnd2(a, 112, 113, T0)
    a(f"v_mul_f32 v112, v112, v{MC+2}"); a(f"v_mul_f32 v113, v113, v{MC+3}")
    rnd2(a, 112, 113, T0)
    a(f"v_add_f32 v112, v112, v{MC+4}"); a(f"v_add_f32 v113, v113, v{MC+5}")
    a(f"v_cvt_pk_bf16_f32 v{T0}, v112, v113")
    a(f"buffer_store_dword v{T0}, {vCol}, {WS}, s50 offen{st}")
    a(f"buffer_store_dword v118, {vCol}, {WS}, s50 offen offset:1024{st}")
    tstamp(a, opt, 6)
    a(f"s_lshl_b32 s48, s{S_PSLOT}, 16"); a(f"s_add_u32 s48, s{S_H2O}, s48")
    a("v_mov_b32 v42, -1"); a("v_mov_b32 v43, -1")
    a(f"buffer_store_dword v42, {vCol}, {WS}, s48 offen{st}")
    a(f"buffer_store_dword v42, {vCol}, {WS}, s48 offen offset:1024{st}")
    a(f"s_cmp_ge_u32 s{S_SEG}, {XS}")
    a(f"s_cselect_b32 s48, {NT + 2 if 'g2t' in opt else NT}, {NT}")
    a(f"s_add_u32 s{S_NXT}, s{S_SEG}, s48")
    if XS % 4:
        a(f"s_lshr_b32 s48, s{S_NXT}, 1")
        a(f"s_cmp_eq_u32 s48, {XS // 2}")
        a(f"s_cselect_b32 s48, {NT}, 0")
        a(f"s_add_u32 s{S_NXT}, s{S_NXT}, s48")
    a(f"s_cmp_ge_u32 s{S_H}, 28")
    a(f"s_cbranch_scc1 {pfx}_noffn")
    HR = 48
    a(f"s_add_u32 s50, s{S_H2B}, s49")
    def ld():
        for i in range(8):
            a(f"s_add_u32 s48, s50, {i*8192}")
            a(f"buffer_load_dwordx4 {vr(HR+4*i,4)}, {vHg}, {WS}, s48 offen sc1")
    def ck():
        for i in range(8):
            a(f"s_waitcnt vmcnt({7-i})")
            a(f"ds_write_b128 {vHw}, {vr(HR+4*i,4)} offset:{(i//4)*RTS + (i%4)*64}")
            if i: a(f"v_max_u32 v{T0}, v{T0 if i > 1 else HR}, v{HR+4*i}")
        a(f"v_cmp_eq_u32 vcc, -1, v{T0}")
    if geti("t2", 2): a(f"s_sleep {geti('t2', 2)}")
    poll(a, pfx + "_h2", ld, ck, sleep=2)
    tstamp(a, opt, 7)
    a("s_waitcnt lgkmcnt(0)"); a("s_barrier")
    HB = lambda rt, ks: 80 + ((ks % 4) * 2 + rt) * 4
    lq0 = LQ()
    def rd(lq, ks):
        for rt in range(2):
            a(f"ds_read_b128 {vr(HB(rt, ks),4)}, {vHr} offset:{rt*RTS + ks*FS}"); lq.issue(ks)
    for ks in range(3): rd(lq0, ks)
    prefetch(a, pfx + "_pf1", S_NXT, body=False)
    for withpf in (True, False):
        lq = LQ(); lq.q = list(lq0.q)
        pl = pf_list() if withpf else []
        for ks in range(16):
            a(lq.wait(ks))
            n = 0
            for rt in range(2):
                for m in range(2):
                    d = vr(112 + (rt * 2 + m) * 4, 4)
                    a(f"v_mfma_f32_16x16x32_bf16 {d}, {GF(m, ks)}, {vr(HB(rt, ks),4)}, {d if ks else 0}")
                    if n == 0 and ks + 3 < 16: rd(lq, ks + 3)
                    if n == 2 and pl:
                        for x in pl.pop(0): a(x)
                    n += 1
        if withpf:
            a(f"s_branch {pfx}_gud")
            a.label(pfx + "_pf1_skip")
    a.label(pfx + "_gud")
    a(f"s_lshl_b32 s48, s{S_SLOT}, 17"); a(f"s_add_u32 s48, s{S_ACTW}, s48"); a(f"s_add_u32 s50, s48, {56*1024}")
    a("s_nop 0")
    for rt in range(2):
        g0 = 112 + rt * 8; u0 = g0 + 4
        for j in (0, 2): rnd2(a, g0 + j, g0 + j + 1, T0)
        for j in (0, 2): rnd2(a, u0 + j, u0 + j + 1, T0)
        for j in range(4): a(f"v_mul_f32 v{g0+j}, v{g0+j}, v{u0+j}")
        a(f"v_cvt_pk_bf16_f32 v{128+2*rt}, v{g0}, v{g0+1}"); a(f"v_cvt_pk_bf16_f32 v{129+2*rt}, v{g0+2}, v{g0+3}")
        a(f"buffer_store_dwordx2 {vr(128+2*rt,2)}, {vL16}, {WS}, s{(48, 50)[rt]} offen{st}")
    a(f"s_lshl_b32 s48, s{S_PSLOT}, 17"); a(f"s_add_u32 s48, s{S_ACTW}, s48"); a(f"s_add_u32 s50, s48, {56*1024}")
    a(f"buffer_store_dwordx2 v[42:43], {vL16}, {WS}, s48 offen{st}")
    a(f"buffer_store_dwordx2 v[42:43], {vL16}, {WS}, s50 offen{st}")
    if geti("t3", 2): a(f"s_sleep {geti('t3', 2)}")
    a(f"s_branch {pfx}_E")
    a.label(pfx + "_noffn")
    prefetch(a, pfx + "_pf2", S_NXT)
    a("s_sleep 32")
    a.label(pfx + "_E")
    tstamp(a, opt, 8)
    AR = 48
    a(f"s_lshl_b32 s50, s{S_SLOT}, 17"); a(f"s_add_u32 s50, s{S_ACTR}, s50")
    a(f"s_lshl_b32 s49, s{S_SLOT}, 16"); a(f"s_add_u32 s49, s{S_X2R}, s49")
    def ld():
        a(f"buffer_load_dword v41, {vX2g}, {WS}, s49 offen sc1")
        for i in range(14):
            if i % 4 == 0: a(f"s_add_u32 s48, s50, {(i//4)*4096}")
            a(f"buffer_load_dwordx4 {vr(AR+4*i,4)}, {vL16}, {WS}, s48 offen offset:{1024*(i%4)} sc1")
    def ck():
        for i in range(14):
            a(f"s_waitcnt vmcnt({13-i})")
            for t in range(2):
                d = vr(112 + 4 * t, 4)
                a(f"v_mfma_f32_16x16x32_bf16 {d}, {DF(t, i)}, {vr(AR+4*i,4)}, {d if i else 0}")
            a(f"v_max3_u32 v{T0}, v{T0 if i else 41}, v{AR+4*i}, v{AR+4*i+2}")
        a(f"v_cmp_eq_u32 vcc, -1, v{T0}")
        a(f"v_lshlrev_b32 v124, 16, v41"); a(f"v_and_b32 v125, s{MASK}, v41")
    poll(a, pfx + "_act", ld, ck, sleep=2)
    tstamp(a, opt, 9)
    a("s_nop 2")
    a(f"ds_write_b128 {vEw}, v[112:115]"); a(f"ds_write_b128 {vEw}, v[116:119] offset:1024")
    a(WARM)
    a("s_waitcnt lgkmcnt(0)"); a("s_barrier")
    for w in range(4): a(f"ds_read_b64 {vr(112+2*w,2)}, {vEr} offset:{2048*w}")
    a(WARM)
    a("s_waitcnt lgkmcnt(0)")
    a("v_add_f32 v112, v112, v114"); a("v_add_f32 v113, v113, v115"); a("v_add_f32 v116, v116, v118"); a("v_add_f32 v117, v117, v119")
    a("v_add_f32 v112, v112, v116"); a("v_add_f32 v113, v113, v117")
    rnd2(a, 112, 113, T0)
    a(f"v_mul_f32 v112, v{MC+6}, v112"); a(f"v_mul_f32 v113, v{MC+7}, v113")
    rnd2(a, 112, 113, T0)
    a("v_add_f32 v112, v124, v112"); a("v_add_f32 v113, v125, v113")
    a(f"v_cvt_pk_bf16_f32 v{T0}, v112, v113")
    a(f"buffer_store_dword v{T0}, {vEo}, {sr(S_O,4)}, s{S_OUT} offen{' sc1' if 'osc1' in opt else (' nt' if 'ont' in opt else '')}")
    tstamp(a, opt, 10)
    a(f"s_mov_b32 s{S_SEG}, s{S_NXT}")
    seg_addrs(a)
    a(f"s_xor_b32 s{S_TAG}, s{S_TAG}, 1")
    a(f"s_mov_b32 s{S_PSLOT}, s{S_SLOT}")
    a(f"s_add_u32 s{S_SLOT}, s{S_SLOT}, 1")
    a(f"s_cmp_ge_u32 s{S_SLOT}, 3")
    a(f"s_cselect_b32 s{S_SLOT}, 0, s{S_SLOT}")
    a(f"s_cmp_lt_u32 s{S_SEG}, s{S_LIM}")
    a(f"s_cbranch_scc1 {pfx}_loop")
    a(f"s_branch {pfx}_fin")
    while DEFER: DEFER.pop(0)()
    a.label(pfx + "_fin")
    a("s_waitcnt vmcnt(0)")
    if "time" in opt: a("v_mov_b32 v143, v47")

def emit_post(a, opt):
    import mega, pre
    set_xs(opt)
    a(f"s_mov_b32 s{MASK}, 0xffff0000")
    emit_post_weights(a, opt)
    if "time" in opt: a("s_memrealtime s[84:85]")
    emit_post_final(a, opt)
    if "time" in opt: a("s_memrealtime s[86:87]")
    a(f"s_cmp_lg_u32 s{S_MODE}, 0")
    a("s_cbranch_scc1 T_slow")
    emit_post_loop(a, True, "TF", opt)
    a("s_branch L_done")
    a.label("T_slow")
    emit_post_loop(a, False, "TS", opt)
```

```python
from common import *
from pre import rnd1, rnd2, MASK, S_TID, xsum_g
import math
import common
def tstamp(a, opt, idx):
    if "midst" in opt and idx < 16 and "time" in opt:
        l = a.uid("ts")
        a("s_cselect_b32 s80, 1, 0")
        a(f"s_cmp_ge_u32 s{S_SEG}, 52"); a(f"s_cbranch_scc1 {l}")
        common.tstamp(a, opt, idx, "v47")
        a.label(l)
        a("s_cmp_lg_u32 s80, 0")
    else: common.tstamp(a, opt, idx, "v47")

S_X, S_O = 20, 24
S_SEG, S_TAG, S_PC, S_PMAX, S_SC, S_L2E = 28, 29, 30, 31, 18, 19
S_P1S, S_P1L, S_P1S2 = 52, 53, 54
S_SLOT, S_PSLOT = 55, 56
S_H2B, S_H2O, S_ACTW, S_ACTR = 57, 58, 59, 60
S_KV, S_Q, S_KM, S_KMV, S_ROW, S_OUT, S_FLG, S_HAVE, S_X2R = 61, 62, 63, 64, 65, 66, 67, 68, 69
S_MKV, S_MQ, S_MODE = 72, 73, 74
S_LIM = 64
S_STR, S_NXT, S_KMB, S_OUTB, S_KVE, S_QE, S_RWE = 76, 77, 78, 79, 81, 82, 83
XS = 48
def set_xs(opt):
    global XS
    XS = 48
    for o in opt:
        if o.startswith('xs') and o[2:].isdigit(): XS = int(o[2:])
vL16, vCol, vP, vKw, vKr, vHg, vHw, vHr, vOw, vZero, vQr, vVr, vEw, vEr, vEo = ["v%d" % i for i in range(1, 16)]
MC = 16
BIAS, SEL = 24, 32
vX2g = "v36"
XR = 37
T0, T1, T2 = 38, 39, 40
L_O, L_ST, L_E, L_KV, L_Q, L_K, L_H = 0, 16384, 20480, 32768, 65536, 81920, 98304
FS, RTS = 1088, 17408
WoF = lambda ct, ks, off=0, n=4: ar((ct * 8 + ks) * 4 + off, n)
GF = lambda m, ks, off=0, n=4: ar(128 + (m * 16 + ks) * 4 + off, n)
DF = lambda t, ks, off=0, n=4: vr(144 + (t * 14 + ks) * 4 + off, n)

def wave_sum(a, x, t):
    a("s_nop 1")
    for ror in (1, 2, 4, 8):
        a(f"v_add_f32_dpp v{x}, v{x}, v{x} row_ror:{ror} row_mask:0xf bank_mask:0xf")
        if ror < 8: a("s_nop 1")
    xsum_g(a, x, t)

def emit_post_addr(a, opt=()):
    LE = lambda *x, **k: lane_expr(a, *x, tmp="v47", **k)
    WS = sr(S_WS, 4)
    LE(vL16, "v0", [(0, 6, 4)])
    LE(vCol, "v0", [(6, 2, 8), (2, 2, 6), (5, 1, 5), (0, 2, 3), (4, 1, 2)])
    LE(vP, "v0", [(0, 4, 14), (4, 2, 4)])
    LE(vKw, "v0", [(6, 2, 12), (0, 4, 5), (4, 2, 3)], L_K)
    LE("v48", "v0", [(2, 2, 3)]); a(f"v_xor_b32 {vKw}, {vKw}, v48")
    LE(vKr, "v0", [(6, 2, 12), (0, 6, 3)], L_K)
    LE("v48", "v0", [(4, 2, 3)]); a(f"v_xor_b32 {vKr}, {vKr}, v48")
    LE(vHg, "v0", [(4, 2, 11), (6, 2, 8), (0, 4, 4)])
    LE("v48", "v0", [(6, 2, 2), (2, 2, 0)])
    a(f"v_mul_u32_u24 {vHw}, {FS}, v48")
    a("v_and_b32 v48, 3, v0"); a("v_mul_u32_u24 v48, 272, v48"); a(f"v_add_u32 {vHw}, {vHw}, v48")
    LE("v48", "v0", [(4, 2, 4)], L_H); a(f"v_add_u32 {vHw}, {vHw}, v48")
    a("v_bfe_u32 v48, v0, 4, 2"); a(f"v_mul_u32_u24 {vHr}, 272, v48")
    LE("v48", "v0", [(0, 4, 4)], L_H); a(f"v_add_u32 {vHr}, {vHr}, v48")
    LE(vOw, "v0", [(6, 1, 13), (7, 1, 12), (0, 6, 4)], L_O)
    a(f"v_mov_b32 {vZero}, 0")
    LE(vQr, "v0", [(6, 2, 12), (0, 6, 4)], L_Q)
    LE(vVr, "v0", [(7, 1, 14), (0, 6, 4)], L_KV)
    LE(vEw, "v0", [(6, 2, 11), (0, 6, 4)], L_E)
    LE(vEr, "v0", [(3, 1, 10), (1, 2, 8), (4, 4, 4), (0, 1, 3)], L_E)
    LE(vEo, "v0", [(4, 4, 10), (0, 4, 2)])
    LE(vX2g, "v0", [(4, 4, 11), (0, 4, 2)])
    a(f"s_sub_u32 s50, s{S_TEAM}, {T0_}")
    sexpr(a, S_P1S, [(50, 0, 3, 20), (S_H, 0, 1, 13), (S_W, 1, 1, 12), (S_H, 1, 4, 8), (S_W, 0, 1, 7)], WS_P1)
    a(f"s_add_u32 s{S_P1S2}, s{S_P1S}, {16*16384}")
    sexpr(a, S_P1L, [(50, 0, 3, 20), (S_H, 0, 5, 14), (S_W, 0, 2, 12)], WS_P1)
    sexpr(a, S_H2B, [(50, 0, 3, 18)], WS_H2)
    sexpr(a, S_H2O, [(50, 0, 3, 18), (S_H, 0, 5, 11)], WS_H2)
    sexpr(a, S_X2R, [(50, 0, 3, 18), (S_H, 0, 1, 15), (S_H, 1, 4, 6)], WS_H2 + 1024)
    sexpr(a, S_ACTW, [(50, 0, 3, 19), (S_H, 0, 5, 11), (S_W, 1, 1, 10), (S_W, 0, 1, 3)], WS_ACT)
    a(f"s_and_b32 s48, s{S_H}, 1"); a(f"s_mul_i32 s48, s48, {56*1024}")
    a(f"s_mul_i32 s51, s{S_W}, {14*1024}"); a("s_add_u32 s48, s48, s51")
    sexpr(a, S_ACTR, [(50, 0, 3, 19)], WS_ACT); a(f"s_add_u32 s{S_ACTR}, s{S_ACTR}, s48")

def emit_post_weights(a, opt):
    LE = lambda *x, **k: lane_expr(a, *x, tmp="v47", **k)
    WS = sr(S_WS, 4)
    def geti(p, d):
        for o in opt:
            if o.startswith(p) and o[len(p):].isdigit(): return int(o[len(p):])
        return d
    import mega
    a.c("==== T role: team-buffer init + stationary weights ====")
    a("s_load_dwordx2 s[34:35], s[0:1], 40")
    a("s_load_dwordx4 s[36:39], s[0:1], 64")
    a("s_load_dwordx2 s[40:41], s[0:1], 80")
    emit_post_addr(a, opt)
    LE("v60", "v0", [(3, 3, 10)]); LE("v61", "v0", [(0, 3, 4)]); LE("v62", "v0", [(4, 2, 5)])
    a("v_xor_b32 v62, v61, v62"); a("v_add_u32 v66, v60, v62")
    LE("v67", "v0", [(6, 2, 15), (2, 4, 7), (1, 1, 4), (3, 2, 5), (0, 1, 3)])
    LE("v60", "v0", [(2, 4, 10)]); LE("v62", "v0", [(0, 2, 4)]); LE("v63", "v0", [(4, 1, 5)])
    a("v_xor_b32 v62, v62, v63"); a("v_add_u32 v68, v60, v62")
    LE("v69", "v0", [(6, 2, 15), (2, 4, 6), (1, 1, 4), (4, 1, 5), (0, 1, 3)])
    a("v_xor_b32 v70, 32, v69")
    a("v_bfe_u32 v60, v0, 3, 3"); a("v_mul_u32_u24 v60, 3584, v60")
    a("v_xor_b32 v62, v61, v63"); a("v_add_u32 v71, v60, v62")
    a("v_xor_b32 v62, 64, v62"); a("v_add_u32 v72, v60, v62")
    LE("v60", "v0", [(4, 2, 10), (2, 2, 7), (0, 1, 3)]); LE("v62", "v0", [(6, 2, 5), (1, 1, 4)]); LE("v63", "v0", [(3, 1, 5), (4, 1, 6)])
    a("v_xor_b32 v62, v62, v63"); a("v_add_u32 v73, v60, v62"); a("v_add_u32 v74, 0x10000, v73")
    S_LB, S_WOS, S_DNS, S_GUS = 76, 77, 78, 79
    sexpr(a, S_LB, [(S_W, 0, 2, 15)])
    sexpr(a, S_WOS, [(S_H, 1, 4, 18), (S_H, 0, 1, 9), (S_W, 0, 2, 7)])
    a(f"s_mul_i32 s{S_DNS}, s{S_W}, {448*1024}"); sexpr(a, 48, [(S_H, 1, 4, 6)]); a(f"s_add_u32 s{S_DNS}, s{S_DNS}, s48")
    a(f"s_mul_i32 s{S_GUS}, s{S_W}, {128*3584}"); a(f"s_min_u32 s48, s{S_H}, 27"); a("s_lshl_b32 s48, s48, 7"); a(f"s_add_u32 s{S_GUS}, s{S_GUS}, s48")
    a(f"s_cmp_lg_u32 s{S_CLM}, 0")
    a("s_cbranch_scc1 T_nw")
    for _ in range(geti("ts", 2)): a("s_sleep 64")
    claim(a)
    verify_claim(a, 0, 163840 - 64)
    wl = geti("wl", 8)
    a(f"s_cmp_ge_u32 s{S_TEAM}, {wl}")
    a(f"s_cselect_b32 s50, {D_LN1}, {D_MOD1}")
    a("s_lshl_b32 s50, s50, 2")
    dbg_wait(a, 0, 32, "v44", "v45", soff=50, sleep=40, limit=10)
    if geti("tx", 0):
        a(f"s_cmp_lt_u32 s{S_TEAM}, {wl}")
        a("s_cbranch_scc1 T_nw")
        a(f"s_sleep {32 * geti('tx', 0) - 1}")
    a.label("T_nw")
    a("s_waitcnt lgkmcnt(0)")
    tstamp(a, opt, 16)
    q = VmQ(a)
    def batch(tag, ptr, nbytes, sbase, voff, half, idxs, rowbytes):
        srd(a, S_T, ptr, nbytes)
        for n, i in enumerate(idxs):
            a(f"s_add_u32 m0, s{S_LB}, {half * 16384 + n * 1024}")
            a(f"s_add_u32 s48, s{sbase}, {i * rowbytes}")
            a(f"buffer_load_dwordx4 v{voff(i)}, {sr(S_T,4)}, s48 offen lds")
            if geti("tw", 0): a(f"s_waitcnt vmcnt({geti('tw', 0)})")
        q.issue(tag, len(idxs))
    wo = lambda h: batch(("wo", h), 34, 4194304, S_WOS, lambda i: 66, h, range(16 * h, 16 * h + 16), 8 * 1024)
    dn = lambda h: batch(("dn", h), 40, 1792 * 1024, S_DNS, lambda i: 68, h, range(16 * h, min(16 * h + 16, 28)), 16 * 1024)
    gu = lambda m: batch(("gu", m), 36 + 2 * m, 512 * 3584, S_GUS, lambda i: 71 + (i & 1), m, range(16), 8 * 3584)
    wo(0); wo(1)
    for h in range(2):
        q.wait(("wo", h))
        for ct in range(4):
            a(f"v_xor_b32 v65, {32 * ct}, v67")
            for ks in range(4 * h, 4 * h + 4):
                for u in range(2):
                    a(f"ds_read_b64_tr_b16 {WoF(ct, ks, 2*u, 2)}, v65 offset:{(32*ks + 16*u) * 128}")
        a("s_waitcnt lgkmcnt(0)")
        dn(h)
    tstamp(a, opt, 17)
    for h in range(2):
        q.wait(("dn", h))
        for t in range(2):
            for ks in range(8 * h, min(8 * h + 8, 14)):
                for u in range(2):
                    a(f"ds_read_b64_tr_b16 {DF(t, ks, 2*u, 2)}, v{69+t} offset:{(32*ks + 16*u) * 64}")
        a("s_waitcnt lgkmcnt(0)")
        gu(h)
    tstamp(a, opt, 18)
    a(f"v_mov_b32 v46, {163840 - 32}")
    a(f"s_cmp_lg_u32 s{S_W}, 0")
    a("s_cbranch_scc1 T_mdw")
    a(f"s_mov_b32 s{S_MODE}, 1")
    mega.emit_mode(a, opt, "T_md1", "v44", "v45")
    a(f"s_mov_b32 s{S_MODE}, 0")
    a.label("T_md1")
    a(f"v_mov_b32 v45, s{S_MODE}")
    a("ds_write_b32 v46, v45")
    a.label("T_mdw")
    a("s_waitcnt vmcnt(0) lgkmcnt(0)")
    a("s_barrier")
    tstamp(a, opt, 19)
    a("ds_read_b32 v45, v46")
    a("s_waitcnt lgkmcnt(0)")
    a(f"v_readfirstlane_b32 s{S_MODE}, v45")
    a("s_nop 3")
    a(f"s_cmp_lg_u32 s{S_MODE}, 0")
    a("s_cbranch_scc1 T_init1")
    for mode, st in ((0, ""), (1, " sc1")):
        a.label(f"T_init{mode}")
        for i in range(2): a(f"v_mov_b32 v{48+i}, -1")
        for i in range(4): a(f"v_mov_b32 v{52+i}, 0")
        for k in range(4):
            a(f"buffer_store_dwordx4 v[52:55], {vL16}, {WS}, s{S_P1L} offen offset:{1024*k}{st}")
        for sl in range(3):
            a(f"s_add_u32 s48, s{S_H2O}, {sl*65536}")
            a(f"buffer_store_dword v48, {vCol}, {WS}, s48 offen{st}")
            a(f"buffer_store_dword v48, {vCol}, {WS}, s48 offen offset:1024{st}")
        a(f"s_cmp_ge_u32 s{S_H}, 28")
        a(f"s_cbranch_scc1 T_nopa{mode}")
        for sl in range(3):
            for rt in range(2):
                a(f"s_add_u32 s48, s{S_ACTW}, {sl*131072 + rt*56*1024}")
                a(f"buffer_store_dwordx2 v[48:49], {vL16}, {WS}, s48 offen{st}")
        a.label(f"T_nopa{mode}")
        if mode == 0: a("s_branch T_initd")
    a.label("T_initd")
    for m in range(2):
        for ks in range(16):
            for u in range(2):
                off = ((ks // 4) % 2) * 32768 + m * 16384 + (32 * (ks % 4) + 4 * u) * 128
                a(f"ds_read_b64_tr_b16 {GF(m, ks, 2*u, 2)}, v{73 + ks // 8} offset:{off}")
    a("s_waitcnt vmcnt(0) lgkmcnt(0)")
    a("s_barrier")
    a(f"s_cmp_lg_u32 s{S_W}, 0")
    a("s_cbranch_scc1 T_noarr")
    a(f"s_lshl_b32 s50, s{S_TEAM}, 2")
    dbg_arrive(a, D_INIT - T0_, "v44", "v45", soff=50)
    a.label("T_noarr")

def emit_post_final(a, opt):
    LE = lambda *x, **k: lane_expr(a, *x, tmp="v47", **k)
    WS = sr(S_WS, 4)
    a("s_load_dwordx2 s[32:33], s[0:1], 0")
    a("s_load_dwordx2 s[42:43], s[0:1], 104")
    dbg_wait(a, D_MOD2, 32, "v44", "v45", sleep=32)
    a(f"s_mov_b32 s48, {hex(WS_MOD + 2048)}")
    for i, k in enumerate((0, 2, 1)):
        a(f"buffer_load_dword v{56+i}, {vCol}, {WS}, s48 offen offset:{1024*k} sc1")
    LE("v60", "v0", [(0, 4, 2)])
    sexpr(a, 48, [(S_H, 1, 4, 6)], WS_MOD + 5 * 1024)
    a(f"buffer_load_dword v59, v60, {WS}, s48 offen sc1")
    a("s_waitcnt vmcnt(0) lgkmcnt(0)")
    for i in range(4):
        a(f"v_lshlrev_b32 v{MC+2*i}, 16, v{56+i}")
        a(f"v_and_b32 v{MC+2*i+1}, s{MASK}, v{56+i}")
    a(f"v_add_f32 v{MC+2}, 1.0, v{MC+2}"); a(f"v_add_f32 v{MC+3}, 1.0, v{MC+3}")
    rnd2(a, MC + 2, MC + 3, 47)
    srd(a, S_X, 32, 2048 * 1024)
    srd(a, S_O, 42, 2048 * 1024)
    a("v_and_b32 v60, 3, v0"); a("v_bfe_u32 v61, v0, 2, 2")
    a("v_mov_b32 v62, 0x3f80"); a("v_mov_b32 v63, 0x3f800000")
    a("v_cmp_eq_u32 vcc, 1, v60"); a("s_nop 1"); a("v_cndmask_b32 v62, v62, v63, vcc")
    a("v_cmp_gt_u32 vcc, 2, v60"); a("s_nop 1"); a("v_cndmask_b32 v62, 0, v62, vcc")
    for d in range(4):
        a(f"v_cmp_eq_u32 vcc, {d}, v61"); a("s_nop 1"); a(f"v_cndmask_b32 v{SEL+d}, 0, v62, vcc")
    LE("v60", "v0", [(6, 1, 4), (0, 4, 0)])
    LE("v61", "v0", [(4, 2, 2)])
    a(f"v_mov_b32 v63, {f32bits(-1e30)}")
    for t in range(2):
        for r in range(4):
            a(f"v_add_u32 v62, {16*t + r}, v61")
            a("v_cmp_gt_u32 vcc, v62, v60"); a("s_nop 1")
            a(f"v_cndmask_b32 v{BIAS+4*t+r}, 0, v63, vcc")
    a(f"s_sub_u32 s{S_SEG}, s{S_TEAM}, {T0_}")
    a(f"s_mov_b32 s{S_LIM}, 64")
    if "g2t" in opt:
        a(f"s_add_u32 s48, s{S_TEAM}, {XS - 2 if XS % 4 else XS + NT - 2}")
        a(f"s_cmp_lt_u32 s{S_TEAM}, {T0_}")
        a(f"s_cselect_b32 s{S_SEG}, s48, s{S_SEG}")
    sexpr(a, 50, [(S_H, 1, 4, 1), (S_W, 1, 1, 0)])
    a(f"s_mul_i32 s{S_KV}, s50, {HSTR}")
    sexpr(a, 48, [(S_W, 0, 1, 13)], WS_KV); a(f"s_add_u32 s{S_KV}, s{S_KV}, s48")
    a(f"s_mul_i32 s{S_Q}, s50, {QSTR}")
    sexpr(a, 48, [(S_W, 0, 1, 12)], WS_QX); a(f"s_add_u32 s{S_Q}, s{S_Q}, s48")
    sexpr(a, S_MKV, [(S_W, 0, 2, 13)], L_KV)
    sexpr(a, S_MQ, [(S_W, 0, 2, 12)], L_Q)
    a(f"s_mul_i32 s{S_KM}, s50, {MSTR}")
    a(f"s_add_u32 s{S_KMB}, s{S_KM}, {hex(WS_KM)}")
    sexpr(a, S_FLG, [(50, 0, 5, 7)], WS_FLAG)
    sexpr(a, S_ROW, [(S_H, 0, 5, 10)])
    sexpr(a, S_OUTB, [(S_H, 0, 1, 14), (S_H, 1, 4, 6)])
    seg_addrs(a)
    a(f"s_mov_b32 s{S_HAVE}, 0")
    a(f"s_mov_b32 s{S_TAG}, 1")
    a(f"s_mov_b32 s{S_SLOT}, 0")
    a(f"s_mov_b32 s{S_PSLOT}, 2")
    a(f"s_mov_b32 s{S_PMAX}, 100000")
    a(f"s_mov_b32 s{S_SC}, {f32bits(128 ** -0.5)}")
    a(f"s_mov_b32 s{S_L2E}, {f32bits(math.log2(math.e))}")
    a(f"s_lshl_b32 s50, s{S_TEAM}, 2")
    dbg_wait(a, D_INIT - T0_, 32, "v44", "v45", soff=50, sleep=24)

DEFER = []
def poll(a, name, loads, check, sleep=3):
    a(f"s_mov_b32 s{S_PC}, 0")
    a.label(name)
    loads()
    check()
    a(f"s_cbranch_vccnz {name}_f")
    a.label(name + "_ok")
    def tail():
        a.label(name + "_f")
        a(f"s_sleep {sleep}")
        a(f"s_add_u32 s{S_PC}, s{S_PC}, 1")
        a(f"s_cmp_lt_u32 s{S_PC}, s{S_PMAX}")
        a(f"s_cbranch_scc1 {name}")
        a(f"s_mov_b32 s{S_PMAX}, 1")
        a(f"s_branch {name}_ok")
    DEFER.append(tail)

def light_wait(a, name, soff, nlanes):
    a(f"s_mov_b32 s{S_PC}, 0")
    a(f"s_mov_b64 exec, {hex((1 << nlanes) - 1)}")
    a.label(name)
    a(f"buffer_load_dword v{T0}, v{T1}, {sr(S_WS,4)}, s{soff} offen sc1")
    a(f"s_add_u32 s{S_PC}, s{S_PC}, 1")
    a(f"s_cmp_ge_u32 s{S_PC}, s{S_PMAX}")
    a("s_waitcnt vmcnt(0)")
    a(f"v_cmp_eq_u32 vcc, -1, v{T0}")
    a(f"s_cbranch_scc1 {name}_x")
    a(f"s_cbranch_vccnz {name}")
    a.label(name + "_x")
    a("s_mov_b64 exec, -1")

def seg_addrs(a):
    a(f"s_lshl_b32 s48, s{S_SEG}, 12"); a(f"s_add_u32 s{S_KM}, s{S_KMB}, s48")
    a(f"s_lshl_b32 s48, s{S_SEG}, 15"); a(f"s_add_u32 s{S_OUT}, s{S_OUTB}, s48")

def pf_list():
    WS = sr(S_WS, 4)
    L = []
    for half in range(2):
        for i in range(4):
            L.append(([f"s_add_u32 m0, s{S_MKV}, {half*4096}", f"s_add_u32 s48, s{S_KVE}, {half*4096}"] if i == 0 else []) +
                     [f"buffer_load_dwordx4 {vL16}, {WS}, s48 offen offset:{1024*i} sc1 lds"])
    for i in range(4):
        L.append(([f"s_mov_b32 m0, s{S_MQ}", "s_nop 0"] if i == 0 else []) + [f"buffer_load_dwordx4 {vL16}, {WS}, s{S_QE} offen offset:{1024*i} sc1 lds"])
    L.append([f"buffer_load_dword v{XR}, {vCol}, {sr(S_X,4)}, s{S_RWE} offen"])
    return L

def prefetch(a, name, segreg, body=True):
    WS = sr(S_WS, 4)
    a(f"s_cmp_ge_u32 s{segreg}, s{S_LIM}")
    a(f"s_cbranch_scc1 {name}_skip")
    a(f"s_cmp_gt_u32 s{S_HAVE}, s{segreg}")
    a(f"s_cbranch_scc1 {name}_fok")
    a(f"s_mov_b32 s{S_PC}, 0")
    a.label(name + "_fl")
    a("s_mov_b64 exec, 3")
    a(f"buffer_load_dword v45, {vL16}, {WS}, s{S_FLG} offen sc1")
    a("s_mov_b64 exec, -1")
    a("s_waitcnt vmcnt(0)")
    a(f"v_readlane_b32 s{S_HAVE}, v45, 0"); a("v_readlane_b32 s48, v45, 1")
    a("s_nop 1")
    a(f"s_min_u32 s{S_HAVE}, s{S_HAVE}, s48")
    a(f"s_cmp_gt_u32 s{S_HAVE}, s{segreg}")
    a(f"s_cbranch_scc1 {name}_fok")
    a("s_sleep 8")
    a(f"s_add_u32 s{S_PC}, s{S_PC}, 1")
    a(f"s_cmp_lt_u32 s{S_PC}, s{S_PMAX}")
    a(f"s_cbranch_scc1 {name}_fl")
    a(f"s_mov_b32 s{S_PMAX}, 1")
    a.label(name + "_fok")
    a(f"s_lshl_b32 s48, s{segreg}, 14"); a(f"s_add_u32 s{S_KVE}, s{S_KV}, s48")
    a(f"s_lshl_b32 s48, s{segreg}, 13"); a(f"s_add_u32 s{S_QE}, s{S_Q}, s48")
    a(f"s_lshl_b32 s48, s{segreg}, 15"); a(f"s_add_u32 s{S_RWE}, s{S_ROW}, s48")
    if not body: return
    for g in pf_list():
        for x in g: a(x)
    a.label(name + "_skip")

def emit_post_loop(a, fast, pfx, opt):
    def geti(p, d):
        for o in opt:
            if o.startswith(p) and o[len(p):].isdigit(): return int(o[len(p):])
        return d
    st = "" if fast else " sc1"
    WS = sr(S_WS, 4)
    QF, KX, VX, KF, SS, KMR = 48, 64, 64, 96, 112, 124
    WARM = f"v_mfma_f32_32x32x2_f32 v[80:95], {vZero}, {vZero}, 0"
    prefetch(a, pfx + "_pf0", S_SEG)
    if "g2t" in opt:
        a(f"s_cmp_ge_u32 s{S_TEAM}, {T0_}")
        a(f"s_cselect_b32 s48, 1, s{S_W}")
        a("s_cmp_lg_u32 s48, 0")
        a(f"s_cbranch_scc1 {pfx}_lw_ok")
        a(f"s_sub_u32 s49, s{S_KM}, {2*4096}")
        a(f"s_mov_b32 s{S_PC}, 0")
        a("s_mov_b64 exec, 1")
        a.label(pfx + "_lw")
        a(f"buffer_load_dword v45, {vL16}, {WS}, s49 offen sc1")
        a("s_waitcnt vmcnt(0)")
        a("v_readfirstlane_b32 s48, v45")
        a("s_cmp_lg_u32 s48, -1")
        a(f"s_cbranch_scc1 {pfx}_lw_x")
        a("s_sleep 16")
        a(f"s_add_u32 s{S_PC}, s{S_PC}, 1")
        a(f"s_cmp_lt_u32 s{S_PC}, 20000")
        a(f"s_cbranch_scc1 {pfx}_lw")
        a.label(pfx + "_lw_x")
        a("s_mov_b64 exec, -1")
        a.label(pfx + "_lw_ok")
    a("s_waitcnt vmcnt(0)")
    a("s_barrier")
    a.raw(".p2align 6")
    a.label(pfx + "_loop")
    tstamp(a, opt, 0)
    def ldkm():
        for i in range(4): a(f"buffer_load_dwordx4 {vr(KMR+4*i,4)}, {vL16}, {WS}, s{S_KM} offen offset:{1024*i} sc1")
    if "wbl" in opt:
        a(f"s_cmp_lt_u32 s{S_SEG}, {64-NT}")
        a(f"s_cselect_b32 s48, 1, s{S_W}")
        a(f"s_or_b32 s48, s48, s{S_H}")
        a(f"s_cbranch_scc1 {pfx}_nwb")
        a("buffer_wbl2 sc1")
        a.label(pfx + "_nwb")
    ldkm()
    for ks in range(4):
        a(f"ds_read_b128 {vr(QF+4*ks,4)}, {vQr} offset:{1024*ks}")
        for t in range(2):
            i = t * 4 + ks
            a(f"ds_read_b128 {vr(KX+4*i,4)}, {vVr} offset:{(i//2)*4096 + (i%2)*1024}")
    for ks in range(4):
        a(f"s_waitcnt lgkmcnt({9-3*ks})")
        for t in range(2):
            d = vr(SS + 4 * t, 4)
            a(f"v_mfma_f32_16x16x32_bf16 {d}, {vr(KX+4*(t*4+ks),4)}, {vr(QF+4*ks,4)}, {d if ks else vr(BIAS+4*t,4)}")
    for i in range(8):
        a(f"ds_read_b128 {vr(VX+4*i,4)}, {vVr} offset:{(i//2)*4096 + 2048 + (i%2)*1024}")
    def scale(regs):
        for i in range(0, len(regs), 2): rnd2(a, regs[i], regs[i+1], T2)
        for r in regs: a(f"v_mul_f32 v{r}, s{S_SC}, v{r}")
        for i in range(0, len(regs), 2): rnd2(a, regs[i], regs[i+1], T2)
    scale(list(range(SS, SS + 8)))
    MX, LX = 41, 46
    a(f"v_max3_f32 v{MX}, v{SS}, v{SS+1}, v{SS+2}"); a(f"v_max3_f32 v{T1}, v{SS+3}, v{SS+4}, v{SS+5}")
    a(f"v_max3_f32 v{MX}, v{MX}, v{SS+6}, v{SS+7}"); a(f"v_max_f32 v{MX}, v{MX}, v{T1}")
    xsum_g(a, MX, T1, "v_max_f32")
    a(f"v_mul_f32 v{T0}, s{S_L2E}, v{MX}")
    for r in range(8): a(f"v_fma_f32 v{SS+r}, v{SS+r}, s{S_L2E}, -v{T0}")
    for r in range(8): a(f"v_exp_f32 v{SS+r}, v{SS+r}")
    a(f"v_add_f32 v{LX}, v{SS}, v{SS+1}"); a(f"v_add_f32 v{T0}, v{SS+2}, v{SS+3}"); a(f"v_add_f32 v{T1}, v{SS+4}, v{SS+5}")
    a(f"v_add_f32 v{T2}, v{SS+6}, v{SS+7}"); a(f"v_add_f32 v{LX}, v{LX}, v{T0}"); a(f"v_add_f32 v{T1}, v{T1}, v{T2}")
    a(f"v_add_f32 v{LX}, v{LX}, v{T1}")
    PX, PM0, OC = 140, 44, 96
    a(f"v_mov_b32 v{PM0+1}, 0")
    tstamp(a, opt, 1)
    a(f"s_mov_b32 s{S_PC}, 0")
    a.label(pfx + "_km")
    a("s_waitcnt vmcnt(0)")
    a(f"v_max3_u32 v{T0}, v{KMR}, v{KMR+4}, v{KMR+8}")
    a(f"v_max_u32 v{T0}, v{T0}, v{KMR+12}")
    a(f"v_cmp_eq_u32 vcc, -1, v{T0}")
    for i in range(4): a(f"ds_write2st64_b32 {vKw}, v{KMR+4*i+1}, v{KMR+4*i+3} offset0:{4*i} offset1:{4*i+2}")
    a(f"s_cbranch_vccnz {pfx}_km_f")
    def kmtail():
        a.label(pfx + "_km_f")
        a(f"s_sleep {geti('tk', 3)}")
        ldkm()
        a(f"s_add_u32 s{S_PC}, s{S_PC}, 1")
        a(f"s_cmp_lt_u32 s{S_PC}, s{S_PMAX}")
        a(f"s_cbranch_scc1 {pfx}_km")
        a(f"s_mov_b32 s{S_PMAX}, 1")
        a("s_waitcnt vmcnt(0)")
        a(f"s_branch {pfx}_km_ok")
    DEFER.append(kmtail)
    a.label(pfx + "_km_ok")
    tstamp(a, opt, 2)
    for ks in range(4):
        for u in range(2):
            a(f"ds_read_b64_tr_b16 {vr(KF+4*ks+2*u,2)}, {vKr} offset:{1024*ks+512*u}")
    for ks in range(4):
        a(f"s_waitcnt lgkmcnt({6-2*ks})")
        d = vr(SS + 8, 4)
        a(f"v_mfma_f32_16x16x32_bf16 {d}, {vr(KF+4*ks,4)}, {vr(QF+4*ks,4)}, {d if ks else 0}")
    a("s_nop 7")
    scale([SS + 8, SS + 9])
    a(f"v_max3_f32 v{T0}, v{MX}, v{SS+8}, v{SS+9}")
    xsum_g(a, T0, T1, "v_max_f32")
    a(f"v_mul_f32 v{T0}, s{S_L2E}, v{T0}")
    a(f"v_fma_f32 v{MX}, v{MX}, s{S_L2E}, -v{T0}")
    for r in (8, 9): a(f"v_fma_f32 v{SS+r}, v{SS+r}, s{S_L2E}, -v{T0}")
    a(f"v_exp_f32 v{MX}, v{MX}")
    for r in (8, 9): a(f"v_exp_f32 v{SS+r}, v{SS+r}")
    a(f"v_fma_f32 v{LX}, v{LX}, v{MX}, v{SS+8}")
    a(f"v_add_f32 v{LX}, v{LX}, v{SS+9}")
    xsum_g(a, LX, T1)
    a(f"v_rcp_f32 v{LX}, v{LX}")
    a("s_nop 0")
    a(f"v_mul_f32 v42, v{LX}, v{MX}")
    a(f"v_pk_mul_f32 {vr(SS+8,2)}, {vr(SS+8,2)}, {vr(LX,2)} op_sel_hi:[1,0]")
    for r in range(0, 8, 2): a(f"v_pk_mul_f32 {vr(SS+r,2)}, {vr(SS+r,2)}, v[42:43] op_sel_hi:[1,0]")
    a(f"v_cvt_pk_bf16_f32 v{PM0}, v{SS+8}, v{SS+9}")
    for i in range(4): a(f"v_cvt_pk_bf16_f32 v{PX+i}, v{SS+2*i}, v{SS+2*i+1}")
    oc = lambda i: (96 + 4 * i) if i < 4 else (48 + 4 * (i - 4))
    def pk(i2):
        b = oc(2 * i2)
        return [f"v_cvt_pk_bf16_f32 v{SS+4*(i2%2)+k}, v{b+2*k}, v{b+2*k+1}" for k in range(4)] + [f"ds_write_b128 {vOw}, {vr(SS+4*(i2%2),4)} offset:{1024*i2}"]
    for i in range(8):
        a(f"v_mfma_f32_16x16x16_bf16 {vr(oc(i),4)}, {vr(KMR+2*i,2)}, {vr(PM0,2)}, 0")
    for i in range(8):
        a(f"v_mfma_f32_16x16x32_bf16 {vr(oc(i),4)}, {vr(VX+4*i,4)}, {vr(PX,4)}, {vr(oc(i),4)}")
        if i in (3, 5, 7):
            for x in pk((i - 3) // 2): a(x)
    a("s_nop 3")
    for x in pk(3): a(x)
    a("s_waitcnt lgkmcnt(0)"); a("s_barrier")
    OF = 48
    for i in range(16): a(f"ds_read_b128 {vr(OF+4*i,4)}, {vL16} offset:{L_O+1024*i}")
    tstamp(a, opt, 3)
    jobs = [(cq, rt) for rt in range(2) for cq in range(2)]
    def epi(n):
        cq, rt = jobs[n]; ac = 112 + (n % 2) * 8; g = 128 + (n % 2) * 4
        return [f"v_cvt_pk_bf16_f32 v{g+i}, v{ac+2*i}, v{ac+2*i+1}" for i in range(4)] + [f"v_and_or_b32 v{g}, v{g}, -2, s{S_TAG}",
                f"buffer_store_dwordx4 {vr(g,4)}, {vP}, {WS}, s{(S_P1S, S_P1S2)[rt]} offen offset:{64*cq}{st}"]
    for n, (cq, rt) in enumerate(jobs):
        ac = 112 + (n % 2) * 8
        e = epi(n - 1) if n else []
        k = 0
        for ks in range(8):
            if n == 0: a(f"s_waitcnt lgkmcnt({15-ks})")
            if n == 2 and ks == 0: a("s_waitcnt lgkmcnt(0)")
            for u in range(2):
                d = vr(ac + 4 * u, 4)
                a(f"v_mfma_f32_16x16x32_bf16 {d}, {WoF(2*cq+u, ks)}, {vr(OF+4*(rt*8+ks),4)}, {d if ks else 0}")
                k += 1
                if k >= 2:
                    for x in e[2*(k-2):2*(k-1)]: a(x)
    a("s_nop 7")
    for x in epi(3): a(x)
    tstamp(a, opt, 4)
    if geti("t1", 3): a(f"s_sleep {geti('t1', 3)}")
    R = 48
    def ld():
        for i in range(4):
            a(f"buffer_load_dwordx4 {vr(R+4*i,4)}, {vL16}, {WS}, s{S_P1L} offen offset:{1024*i} sc1")
    def ck():
        for i in range(4):
            a(f"s_waitcnt vmcnt({3-i})")
            a(f"v_mfma_f32_16x16x32_bf16 v[112:115], {vr(SEL,4)}, {vr(R+4*i,4)}, {'v[112:115]' if i else 0}")
            a(f"v_xor_b32 v{T1 if i else T0}, s{S_TAG}, v{R+4*i}")
            if i: a(f"v_or_b32 v{T0}, v{T0}, v{T1}")
        a(f"v_and_b32 v{T0}, 1, v{T0}")
        a(f"v_cmp_ne_u32 vcc, 0, v{T0}")
        a(f"v_lshlrev_b32 v116, 16, v{XR}"); a(f"v_and_b32 v117, s{MASK}, v{XR}")
        a(f"s_lshl_b32 s48, s{S_W}, 3"); a("v_mov_b32 v43, s48")
    poll(a, pfx + "_r1", ld, ck, sleep=1)
    tstamp(a, opt, 5)
    rnd2(a, 112, 113, T0)
    a(f"v_mul_f32 v112, v{MC}, v112"); a(f"v_mul_f32 v113, v{MC+1}, v113")
    rnd2(a, 112, 113, T0)
    a("v_add_f32 v116, v116, v112"); a("v_add_f32 v117, v117, v113")
    rnd2(a, 116, 117, 118)
    a(f"s_lshl_b32 s49, s{S_SLOT}, 16"); a(f"s_add_u32 s50, s{S_H2O}, s49")
    a("v_readfirstlane_b32 s51, v116")
    a("s_nop 1")
    a("v_subrev_f32 v112, s51, v116"); a("v_subrev_f32 v113, s51, v117")
    a("v_add_f32 v120, v112, v113")
    a("v_mul_f32 v121, v112, v112"); a("v_fmac_f32 v121, v113, v113")
    for ror in (1, 2, 4, 8):
        a("s_nop 0")
        for r in (120, 121): a(f"v_add_f32_dpp v{r}, v{r}, v{r} row_ror:{ror} row_mask:0xf bank_mask:0xf")
    for sw in ("32", "16"):
        a("v_mov_b32 v122, v120"); a("v_mov_b32 v123, v121"); a("s_nop 0")
        a(f"v_permlane{sw}_swap_b32 v120, v122"); a(f"v_permlane{sw}_swap_b32 v121, v123")
        a("v_add_f32 v120, v120, v122"); a("v_add_f32 v121, v121, v123")
    a(f"v_mul_f32 v122, {f32bits(1/128)}, v120")
    a("v_fma_f32 v121, -v120, v122, v121")
    a("v_add_f32 v120, s51, v122")
    a(f"ds_write_b64 v43, v[120:121] offset:{L_ST}")
    a(WARM)
    a("s_waitcnt lgkmcnt(0)"); a("s_barrier")
    a(f"ds_read_b128 v[124:127], {vZero} offset:{L_ST}")
    a(f"ds_read_b128 v[128:131], {vZero} offset:{L_ST+16}")
    a(WARM)
    a("s_waitcnt lgkmcnt(0)")
    a("v_add_f32 v120, v124, v126"); a("v_add_f32 v121, v128, v130"); a("v_add_f32 v120, v120, v121")
    a("v_mul_f32 v120, 0.25, v120")
    a("v_add_f32 v122, v125, v127"); a("v_add_f32 v123, v129, v131"); a("v_add_f32 v122, v122, v123")
    for r in (124, 126, 128, 130): a(f"v_sub_f32 v{r}, v{r}, v120")
    a("v_mul_f32 v123, v124, v124")
    for r in (126, 128, 130): a(f"v_fmac_f32 v123, v{r}, v{r}")
    a(f"v_mul_f32 v122, {f32bits(1/512)}, v122")
    a("v_fmac_f32 v122, 0.25, v123")
    rnd1(a, 120); rnd1(a, 122)
    a(f"v_add_f32 v122, {f32bits(1e-5)}, v122"); rnd1(a, 122)
    a("v_sqrt_f32 v122, v122")
    a("v_sub_f32 v112, v116, v120"); a("v_sub_f32 v113, v117, v120")
    rnd1(a, 122)
    a("v_rcp_f32 v122, v122")
    rnd2(a, 112, 113, T0)
    a("v_mul_f32 v112, v112, v122"); a("v_mul_f32 v113, v113, v122")
    rnd2(a, 112, 113, T0)
    a(f"v_mul_f32 v112, v112, v{MC+2}"); a(f"v_mul_f32 v113, v113, v{MC+3}")
    rnd2(a, 112, 113, T0)
    a(f"v_add_f32 v112, v112, v{MC+4}"); a(f"v_add_f32 v113, v113, v{MC+5}")
    a(f"v_cvt_pk_bf16_f32 v{T0}, v112, v113")
    a(f"buffer_store_dword v{T0}, {vCol}, {WS}, s50 offen{st}")
    a(f"buffer_store_dword v118, {vCol}, {WS}, s50 offen offset:1024{st}")
    tstamp(a, opt, 6)
    a(f"s_lshl_b32 s48, s{S_PSLOT}, 16"); a(f"s_add_u32 s48, s{S_H2O}, s48")
    a("v_mov_b32 v42, -1"); a("v_mov_b32 v43, -1")
    a(f"buffer_store_dword v42, {vCol}, {WS}, s48 offen{st}")
    a(f"buffer_store_dword v42, {vCol}, {WS}, s48 offen offset:1024{st}")
    a(f"s_cmp_ge_u32 s{S_SEG}, {XS}")
    a(f"s_cselect_b32 s48, {NT + 2 if 'g2t' in opt else NT}, {NT}")
    a(f"s_add_u32 s{S_NXT}, s{S_SEG}, s48")
    if XS % 4:
        a(f"s_lshr_b32 s48, s{S_NXT}, 1")
        a(f"s_cmp_eq_u32 s48, {XS // 2}")
        a(f"s_cselect_b32 s48, {NT}, 0")
        a(f"s_add_u32 s{S_NXT}, s{S_NXT}, s48")
    a(f"s_cmp_ge_u32 s{S_H}, 28")
    a(f"s_cbranch_scc1 {pfx}_noffn")
    HR = 48
    a(f"s_add_u32 s50, s{S_H2B}, s49")
    def ld():
        for i in range(8):
            a(f"s_add_u32 s48, s50, {i*8192}")
            a(f"buffer_load_dwordx4 {vr(HR+4*i,4)}, {vHg}, {WS}, s48 offen sc1")
    def ck():
        for i in range(8):
            a(f"s_waitcnt vmcnt({7-i})")
            a(f"ds_write_b128 {vHw}, {vr(HR+4*i,4)} offset:{(i//4)*RTS + (i%4)*64}")
            if i: a(f"v_max_u32 v{T0}, v{T0 if i > 1 else HR}, v{HR+4*i}")
        a(f"v_cmp_eq_u32 vcc, -1, v{T0}")
    if geti("t2", 2): a(f"s_sleep {geti('t2', 2)}")
    if "lw2" in opt:
        a(f"s_lshl_b32 s48, s{S_W}, 8"); a("s_add_u32 s51, s50, s48")
        a(f"v_lshlrev_b32 v{T1}, 7, {vL16}")
        light_wait(a, pfx + "_lh", 51, 32)
    poll(a, pfx + "_h2", ld, ck, sleep=2)
    tstamp(a, opt, 7)
    a("s_waitcnt lgkmcnt(0)"); a("s_barrier")
    HB = lambda rt, ks: 80 + ((ks % 4) * 2 + rt) * 4
    lq0 = LQ()
    def rd(lq, ks):
        for rt in range(2):
            a(f"ds_read_b128 {vr(HB(rt, ks),4)}, {vHr} offset:{rt*RTS + ks*FS}"); lq.issue(ks)
    for ks in range(3): rd(lq0, ks)
    prefetch(a, pfx + "_pf1", S_NXT, body=False)
    for withpf in (True, False):
        lq = LQ(); lq.q = list(lq0.q)
        pl = pf_list() if withpf else []
        for ks in range(16):
            a(lq.wait(ks))
            n = 0
            for rt in range(2):
                for m in range(2):
                    d = vr(112 + (rt * 2 + m) * 4, 4)
                    a(f"v_mfma_f32_16x16x32_bf16 {d}, {GF(m, ks)}, {vr(HB(rt, ks),4)}, {d if ks else 0}")
                    if n == 0 and ks + 3 < 16: rd(lq, ks + 3)
                    if n == 2 and pl:
                        for x in pl.pop(0): a(x)
                    n += 1
        if withpf:
            a(f"s_branch {pfx}_gud")
            a.label(pfx + "_pf1_skip")
    a.label(pfx + "_gud")
    a(f"s_lshl_b32 s48, s{S_SLOT}, 17"); a(f"s_add_u32 s48, s{S_ACTW}, s48"); a(f"s_add_u32 s50, s48, {56*1024}")
    a("s_nop 0")
    for rt in range(2):
        g0 = 112 + rt * 8; u0 = g0 + 4
        for j in (0, 2): rnd2(a, g0 + j, g0 + j + 1, T0)
        for j in (0, 2): rnd2(a, u0 + j, u0 + j + 1, T0)
        for j in range(4): a(f"v_mul_f32 v{g0+j}, v{g0+j}, v{u0+j}")
        a(f"v_cvt_pk_bf16_f32 v{128+2*rt}, v{g0}, v{g0+1}"); a(f"v_cvt_pk_bf16_f32 v{129+2*rt}, v{g0+2}, v{g0+3}")
        a(f"buffer_store_dwordx2 {vr(128+2*rt,2)}, {vL16}, {WS}, s{(48, 50)[rt]} offen{st}")
    a(f"s_lshl_b32 s48, s{S_PSLOT}, 17"); a(f"s_add_u32 s48, s{S_ACTW}, s48"); a(f"s_add_u32 s50, s48, {56*1024}")
    a(f"buffer_store_dwordx2 v[42:43], {vL16}, {WS}, s48 offen{st}")
    a(f"buffer_store_dwordx2 v[42:43], {vL16}, {WS}, s50 offen{st}")
    if geti("t3", 2): a(f"s_sleep {geti('t3', 2)}")
    a(f"s_branch {pfx}_E")
    a.label(pfx + "_noffn")
    prefetch(a, pfx + "_pf2", S_NXT)
    a("s_sleep 32")
    a.label(pfx + "_E")
    tstamp(a, opt, 8)
    AR = 48
    a(f"s_lshl_b32 s50, s{S_SLOT}, 17"); a(f"s_add_u32 s50, s{S_ACTR}, s50")
    a(f"s_lshl_b32 s49, s{S_SLOT}, 16"); a(f"s_add_u32 s49, s{S_X2R}, s49")
    def ld():
        a(f"buffer_load_dword v41, {vX2g}, {WS}, s49 offen sc1")
        for i in range(14):
            if i % 4 == 0: a(f"s_add_u32 s48, s50, {(i//4)*4096}")
            a(f"buffer_load_dwordx4 {vr(AR+4*i,4)}, {vL16}, {WS}, s48 offen offset:{1024*(i%4)} sc1")
    def ck():
        for i in range(14):
            a(f"s_waitcnt vmcnt({13-i})")
            for t in range(2):
                d = vr(112 + 4 * t, 4)
                a(f"v_mfma_f32_16x16x32_bf16 {d}, {DF(t, i)}, {vr(AR+4*i,4)}, {d if i else 0}")
            a(f"v_max3_u32 v{T0}, v{T0 if i else 41}, v{AR+4*i}, v{AR+4*i+2}")
        a(f"v_cmp_eq_u32 vcc, -1, v{T0}")
        a(f"v_lshlrev_b32 v124, 16, v41"); a(f"v_and_b32 v125, s{MASK}, v41")
    if "lw3" in opt:
        a(f"v_lshlrev_b32 v{T1}, 5, {vL16}")
        a(f"v_and_b32 v{T0}, 16, {vL16}")
        a(f"v_lshrrev_b32 v{T0}, 1, v{T0}")
        a(f"v_add_u32 v{T1}, v{T1}, v{T0}")
        light_wait(a, pfx + "_la", 50, 28)
    poll(a, pfx + "_act", ld, ck, sleep=2)
    tstamp(a, opt, 9)
    a("s_nop 2")
    a(f"ds_write_b128 {vEw}, v[112:115]"); a(f"ds_write_b128 {vEw}, v[116:119] offset:1024")
    a(WARM)
    a("s_waitcnt lgkmcnt(0)"); a("s_barrier")
    for w in range(4): a(f"ds_read_b64 {vr(112+2*w,2)}, {vEr} offset:{2048*w}")
    a(WARM)
    a("s_waitcnt lgkmcnt(0)")
    a("v_add_f32 v112, v112, v114"); a("v_add_f32 v113, v113, v115"); a("v_add_f32 v116, v116, v118"); a("v_add_f32 v117, v117, v119")
    a("v_add_f32 v112, v112, v116"); a("v_add_f32 v113, v113, v117")
    rnd2(a, 112, 113, T0)
    a(f"v_mul_f32 v112, v{MC+6}, v112"); a(f"v_mul_f32 v113, v{MC+7}, v113")
    rnd2(a, 112, 113, T0)
    a("v_add_f32 v112, v124, v112"); a("v_add_f32 v113, v125, v113")
    a(f"v_cvt_pk_bf16_f32 v{T0}, v112, v113")
    a(f"buffer_store_dword v{T0}, {vEo}, {sr(S_O,4)}, s{S_OUT} offen{' sc1' if 'osc1' in opt else (' nt' if 'ont' in opt else '')}")
    tstamp(a, opt, 10)
    a(f"s_mov_b32 s{S_SEG}, s{S_NXT}")
    seg_addrs(a)
    a(f"s_xor_b32 s{S_TAG}, s{S_TAG}, 1")
    a(f"s_mov_b32 s{S_PSLOT}, s{S_SLOT}")
    a(f"s_add_u32 s{S_SLOT}, s{S_SLOT}, 1")
    a(f"s_cmp_ge_u32 s{S_SLOT}, 3")
    a(f"s_cselect_b32 s{S_SLOT}, 0, s{S_SLOT}")
    a(f"s_cmp_lt_u32 s{S_SEG}, s{S_LIM}")
    a(f"s_cbranch_scc1 {pfx}_loop")
    a(f"s_branch {pfx}_fin")
    while DEFER: DEFER.pop(0)()
    a.label(pfx + "_fin")
    a("s_waitcnt vmcnt(0)")
    if "time" in opt: a("v_mov_b32 v143, v47")

def emit_post(a, opt):
    import mega, pre
    set_xs(opt)
    a(f"s_mov_b32 s{MASK}, 0xffff0000")
    emit_post_weights(a, opt)
    if "time" in opt: a("s_memrealtime s[84:85]")
    emit_post_final(a, opt)
    if "time" in opt: a("s_memrealtime s[86:87]")
    a(f"s_cmp_lg_u32 s{S_MODE}, 0")
    a("s_cbranch_scc1 T_slow")
    emit_post_loop(a, True, "TF", opt)
    a("s_branch L_done")
    a.label("T_slow")
    emit_post_loop(a, False, "TS", opt)
```

```python
import sys
from common import *
import rec, pre, gemm
DOC = """
One persistent launch, 256 workgroups (one per CU), 8 teams of 32 (generated by a script, hand-scheduled):
  team 0  R : the 63-step memory recurrence, one head per CU; Wq/Wk/Wv in registers, Wo in LDS; sparse MFMA
              (8 rows x 2 K-halves); per step a reduce-scatter of bf16 partials and an all-gather of mem
  team 1  P : mod = silu(c) @ w_mod, LayerNorm-1, initialisation of every tag / flag used later
  team 2,3 G: K / V / Q projections of the x rows (weight stationary); they join the T rotation afterwards
  team 4-7 T: per segment: attention of the 32 x rows, Wo, residual, LayerNorm-2, gate/up, down, output
A workgroup presumes (team, member) from its die id and id, claims the slot in d_debug and falls back to a
vacant slot on a conflict. A team whose 32 members all sit on one die exchanges through that die's L2
(plain stores); otherwise it runs the same code with write-through stores. Every wait is bounded.
"""
L_BOOT = 163840 - 64

def read_counts(a, vdst="v25", vaddr="v24"):
    a(f"global_load_dword {vdst}, {vaddr}, {sr(S_DBG,2)} sc1")
    a("s_waitcnt vmcnt(0)")

def sum_arrivals(a, vb, dst, tmp):
    a(f"v_readlane_b32 s{dst}, {vb}, {D_OVF}")
    for x in range(8):
        a(f"v_readlane_b32 s{tmp}, {vb}, {0 if x == 0 else 15 + x}")
        a("s_nop 1")
        a(f"s_bcnt1_i32_b32 s{tmp}, s{tmp}")
        a(f"s_add_u32 s{dst}, s{dst}, s{tmp}")

def emit_entry(a, opt):
    a("s_cmp_ge_u32 s2, 256")
    a("s_cbranch_scc1 L_exit")
    a("s_load_dwordx4 s[48:51], s[0:1], 112")
    a("s_load_dwordx16 s[32:47], s[0:1], 0")
    a(f"s_getreg_b32 s{S_TEAM}, hwreg(HW_REG_XCC_ID)")
    a(f"s_and_b32 s{S_TEAM}, s{S_TEAM}, 7")
    for o in opt:
        if o.startswith("map"):
            word = sum(int(c) << (4 * i) for i, c in enumerate(o[3:]))
            a(f"s_lshl_b32 s16, s{S_TEAM}, 2")
            a(f"s_lshr_b32 s{S_TEAM}, {hex(word)}, s16")
            a(f"s_and_b32 s{S_TEAM}, s{S_TEAM}, 7")
    if "fakexcc" in opt:
        a(f"s_lshr_b32 s{S_TEAM}, s2, 5")
        a("s_and_b32 s16, s2, 7")
        a("s_cmp_eq_u32 s16, 3")
        a(f"s_cselect_b32 s16, 5, s{S_TEAM}")
        a(f"s_mov_b32 s{S_TEAM}, s16")
    if "time" in opt: a("s_memrealtime s[92:93]")
    a("v_lshrrev_b32 v1, 6, v0")
    a(f"s_lshr_b32 s{S_H}, s2, 3")
    a(f"v_readfirstlane_b32 s{S_W}, v1")
    a(f"s_mov_b32 s{S_CLM}, 0")
    a("s_waitcnt lgkmcnt(0)")
    a(f"s_mov_b32 s{S_DBG}, s48")
    a(f"s_mov_b32 s{S_DBG+1}, s49")
    srd(a, S_WS, 50, WS_SIZE)
    if "cpf" in opt:
        a("s_getpc_b64 s[16:17]")
        a("s_and_b32 s16, s16, 0xffffff00")
        a(f"s_lshl_b32 s18, s{S_H}, 12"); a(f"s_lshl_b32 s19, s{S_W}, 10"); a("s_add_u32 s18, s18, s19")
        a("v_and_b32 v123, 7, v0"); a("v_lshlrev_b32 v123, 7, v123"); a("v_add_u32 v123, s18, v123")
        a("v_min_u32 v123, CODE_BYTES, v123")
        a("s_mov_b64 exec, 0xff")
        a("global_load_dword v122, v123, s[16:17]")
        a("s_mov_b64 exec, -1")
    a.label("L_role")

def emit_overflow(a):
    a.label("L_overflow")
    a("s_waitcnt vmcnt(0) lgkmcnt(0)")
    a("s_barrier")
    a("v_mov_b32 v2, 0"); a("v_mov_b32 v3, 1"); a("v_mov_b32 v5, 0")
    a(f"s_cmp_lg_u32 s{S_W}, 0")
    a("s_cbranch_scc1 L_ovw")
    a("s_mov_b64 exec, 1")
    a(f"global_atomic_add v4, v2, v3, {sr(S_DBG,2)} offset:{4*D_OVF} sc0")
    a("s_waitcnt vmcnt(0)")
    a("ds_write_b32 v5, v4")
    a("s_waitcnt lgkmcnt(0)")
    a("s_mov_b64 exec, -1")
    a.label("L_ovw")
    a("s_barrier")
    a("ds_read_b32 v4, v5")
    a("s_waitcnt lgkmcnt(0)")
    a("v_readfirstlane_b32 s18, v4")
    a("s_barrier")
    a("v_and_b32 v24, 31, v0"); a("v_lshlrev_b32 v24, 2, v24")
    a("s_mov_b32 s17, 0")
    a.label("L_ov")
    read_counts(a)
    sum_arrivals(a, "v25", 19, 20)
    a("s_cmp_ge_u32 s19, 256")
    a("s_cbranch_scc1 L_ovok")
    a("s_sleep 32")
    a("s_add_u32 s17, s17, 1")
    a("s_cmp_lt_u32 s17, 50000")
    a("s_cbranch_scc1 L_ov")
    a("s_branch L_exit")
    a.label("L_ovok")
    for x in range(8):
        a(f"v_readlane_b32 s20, v25, {0 if x == 0 else 15 + x}")
        a(f"s_mov_b32 s{S_TEAM}, {x}")
        a("s_nop 1")
        a("s_bcnt0_i32_b32 s19, s20")
        a("s_cmp_lt_u32 s18, s19")
        a("s_cbranch_scc1 L_ovf")
        a("s_sub_u32 s18, s18, s19")
    a("s_branch L_exit")
    a.label("L_ovf")
    a("s_cmp_eq_u32 s18, 0")
    a("s_cbranch_scc1 L_ovg")
    a("s_add_u32 s19, s20, 1")
    a("s_or_b32 s20, s20, s19")
    a("s_sub_u32 s18, s18, 1")
    a("s_branch L_ovf")
    a.label("L_ovg")
    a(f"s_ff0_i32_b32 s{S_H}, s20")
    a(f"s_and_b32 s{S_H}, s{S_H}, 31")
    a("s_branch L_role")

def emit_mode(a, opt, slow_label, va="v24", vb="v25"):
    if "fakexcc" in opt or "slow" in opt:
        a(f"s_branch {slow_label}")
        return
    l = a.uid("md")
    a(f"v_mbcnt_lo_u32_b32 {va}, -1, 0")
    a(f"v_and_b32 {va}, 31, {va}"); a(f"v_lshlrev_b32 {va}, 2, {va}")
    a(f"s_add_u32 s50, s{S_TEAM}, 15")
    a(f"s_cmp_eq_u32 s{S_TEAM}, 0")
    a("s_cselect_b32 s50, 0, s50")
    a("s_mov_b32 s51, 0")
    a.label(l)
    read_counts(a, vb, va)
    a(f"v_readlane_b32 s48, {vb}, s50")
    a("s_nop 1")
    a("s_cmp_eq_u32 s48, -1")
    a(f"s_cbranch_scc1 {l}_ok")
    sum_arrivals(a, vb, 48, 49)
    a("s_cmp_ge_u32 s48, 256")
    a(f"s_cbranch_scc1 {slow_label}")
    a("s_sleep 32")
    a("s_add_u32 s51, s51, 1")
    a("s_cmp_lt_u32 s51, 50000")
    a(f"s_cbranch_scc1 {l}")
    a(f"s_branch {slow_label}")
    a.label(l + "_ok")

def build(opt=()):
    opt = list(opt)
    if not any(o.startswith("map") for o in opt): opt.append("map62105347")
    a = Asm()
    hdr = open("cdna_kernels/" + KNAME + ".s.ref").read().split("\n") if "nohdr" not in opt else []
    for l in hdr:
        if l.startswith(";") and "@launch" not in l: a.raw(l)
        elif not l.startswith(";"): break
    a.raw("; @launch grid=(256,1,1) block=(256,1,1) lds=163840")
    a.raw('.amdgcn_target "amdgcn-amd-amdhsa--gfx950"')
    for l in DOC.strip("\n").split("\n"): a.raw("; " + l)
    a.raw(".text")
    a.raw(f".globl {KNAME}_kernel")
    a.raw(".p2align 8")
    a.raw(f".type {KNAME}_kernel,@function")
    a.label(f"{KNAME}_kernel")
    emit_entry(a, opt)
    a(f"s_cmp_eq_u32 s{S_TEAM}, 1")
    a("s_cbranch_scc1 L_P")
    a(f"s_cmp_ge_u32 s{S_TEAM}, {T0_}")
    a("s_cbranch_scc1 L_T")
    a(f"s_cmp_ge_u32 s{S_TEAM}, 2")
    a("s_cbranch_scc1 L_G")
    def p_role():
        a.label("L_P")
        a(f"s_mov_b32 s16, s{S_H}")
        a.label("L_Ploop")
        pre.emit_pre(a, opt)
        a("s_add_u32 s16, s16, 32")
        a("s_cmp_lt_u32 s16, 128")
        a("s_barrier")
        a("s_cbranch_scc1 L_Ploop")
        a("s_waitcnt vmcnt(0)")
        a("s_barrier")
        a(f"s_cmp_lg_u32 s{S_W}, 0")
        a("s_cbranch_scc1 L_done")
        dbg_arrive(a, D_PRE)
        a("s_branch L_done")
    rec.emit_rec_mega(a, opt, p_role)
    a("s_branch L_done")
    a.label("L_G")
    for o in opt:
        if o.startswith("gdel"): a(f"s_sleep {int(o[4:])}")
    gemm.emit_gemm(a, opt)
    if "g2t" in opt:
        if "time" in opt: a("s_memrealtime s[88:89]")
        a("s_barrier")
        a("s_branch L_T")
    else: a("s_branch L_done")
    emit_overflow(a)
    a.label("L_T")
    import post
    post.emit_post(a, opt)
    a.label("L_done")
    if "wbe" in opt:
        a(f"s_or_b32 s48, s{S_W}, s{S_H}")
        a("s_cbranch_scc1 L_nowb")
        a("buffer_wbl2 sc1")
        a.label("L_nowb")
    if "time" in opt and "dbgtime" not in opt:
        a("s_memrealtime s[94:95]")
        a("s_memtime s[100:101]")
        a("s_waitcnt vmcnt(0) lgkmcnt(0)")
        a(f"s_cmp_lg_u32 s{S_W}, 0")
        a("s_cbranch_scc1 L_exit")
        a(f"s_lshl_b32 s48, s{S_TEAM}, 5")
        a(f"s_add_u32 s48, s48, s{S_H}")
        a("s_lshl_b32 s48, s48, 8")
        a(f"s_add_u32 s48, s48, {hex(WS_STAMP)}")
        a("v_mov_b32 v2, 0")
        a("s_mov_b64 exec, 1")
        for i in range(18):
            a(f"v_mov_b32 v3, s{84+i}")
            a(f"buffer_store_dword v3, v2, {sr(S_WS,4)}, s48 offen offset:{4*i}")
        for i in range(8):
            a(f"v_mov_b32 v3, s{76+i}")
            a(f"buffer_store_dword v3, v2, {sr(S_WS,4)}, s48 offen offset:{80+4*i}")
        a("s_mov_b64 exec, -1")
        a("v_mbcnt_lo_u32_b32 v2, -1, 0")
        a("v_lshlrev_b32 v2, 2, v2")
        a("s_mov_b64 exec, 0xffffffff")
        a(f"buffer_store_dword v143, v2, {sr(S_WS,4)}, s48 offen offset:128")
        a("s_waitcnt vmcnt(0)")
    if "dbgtime" in opt:
        a("s_memrealtime s[94:95]"); a("s_memtime s[100:101]")
        a("s_waitcnt vmcnt(0) lgkmcnt(0)")
        a(f"s_or_b32 s48, s{S_W}, s{S_H}")
        a("s_cbranch_scc1 L_exit")
        a("s_mov_b32 s50, 16")
        a(f"s_cmp_eq_u32 s{S_TEAM}, 0")
        a("s_cbranch_scc1 L_dt")
        a("s_mov_b32 s50, 40")
        a(f"s_cmp_lg_u32 s{S_TEAM}, 6")
        a("s_cbranch_scc1 L_exit")
        a.label("L_dt")
        a("v_mov_b32 v2, s50")
        a("s_mov_b64 exec, 1")
        a("s_sub_u32 s84, s84, s92"); a("s_sub_u32 s86, s86, s92"); a("s_sub_u32 s96, s94, s96"); a("s_sub_u32 s94, s94, s92"); a("s_sub_u32 s100, s100, s98")
        for i, r in enumerate((84, 86, 94, 96, 100)):
            a(f"v_mov_b32 v3, s{r}")
            a(f"global_store_dword v2, v3, {sr(S_DBG,2)} offset:{4*i}")
        a("s_waitcnt vmcnt(0)")
    a.label("L_exit")
    a("s_endpgm")
    a.label("L_codeend")
    a.raw(f".set CODE_BYTES, L_codeend - {KNAME}_kernel - 4")
    a.raw('.section .rodata,"a"')
    a.raw(".p2align 6")
    a.raw(f".amdhsa_kernel {KNAME}_kernel")
    for l in ["next_free_vgpr 512", "next_free_sgpr 102", "accum_offset 256", "group_segment_fixed_size 0", "kernarg_size 128",
              "user_sgpr_count 2", "user_sgpr_kernarg_segment_ptr 1", "system_sgpr_workgroup_id_x 1", "float_denorm_mode_32 3"]:
        a.raw("  .amdhsa_" + l)
    a.raw(".end_amdhsa_kernel")
    return a.text()

if __name__ == "__main__":
    out = sys.argv[1]
    t = build(sys.argv[2:])
    open(out, "w").write(t)
    errs = check_hazards(t)
    for e in errs: print("HAZARD", e)
    print("lines", t.count("\n"), "bytes", len(t), "hazards", len(errs))
```
